```python
import torch

def _softmax(x, axis=-1):
    return torch.softmax(x, dim=axis)

def _gelu(x):
    return torch.nn.functional.gelu(x, approximate='tanh')

def _silu(x):
    return torch.nn.functional.silu(x)

def _sigmoid(x):
    return torch.sigmoid(x)

def _layernorm(x, axis=-1, eps=1e-05):
    m = x.mean(dim=axis, keepdim=True)
    v = x.var(dim=axis, keepdim=True, unbiased=False)
    return (x - m) / torch.sqrt(v + eps)

def _scatter_add(tgt, idx, src, axis=0):
    return tgt.clone().index_add_(axis, idx, src)

def _segment_sum(src, seg, n):
    out = torch.zeros((n,) + src.shape[1:], dtype=src.dtype)
    return out.index_add_(0, seg, src)

def _pad(x, pw):
    flat = tuple((v for pair in reversed(pw) for v in pair))
    return torch.nn.functional.pad(x, flat)
kernel_name = 'gated_mix__memory_aug_recurrent_mem_tr__glu_gated_reglu__prompt'

def setup_inputs():

    _w = lambda a: (lambda t: t.to(torch.bfloat16) if t.is_floating_point() else t)(torch.as_tensor(a))

    def _A_setup():
        B, S, Dm = (1, 2048, 512)
        H, Dh = (32, 128)
        M, seg = (8, 32)
        seg = min(seg, S)
        S = S // seg * seg
        return {'x': _w((lambda *s: torch.randn(*s, dtype=torch.bfloat16) * 0.05)(B, S, Dm)), 'mem0': _w((lambda *s: torch.randn(*s, dtype=torch.bfloat16) * 0.4)(B, M, Dm)), 'Wq': _w((lambda *s: torch.randn(*s, dtype=torch.bfloat16) * 6.4)(Dm, H, Dh) * Dm ** (-0.5)), 'Wk': _w((lambda *s: torch.randn(*s, dtype=torch.bfloat16) * 6.4)(Dm, H, Dh) * Dm ** (-0.5)), 'Wv': _w((lambda *s: torch.randn(*s, dtype=torch.bfloat16) * 0.4)(Dm, H, Dh) * Dm ** (-0.5)), 'Wo': _w((lambda *s: torch.randn(*s, dtype=torch.bfloat16) * 0.4)(H, Dh, Dm) * (H * Dh) ** (-0.5)), 'seg_len': seg}
    _A_in = _A_setup()

    def _B_setup():
        B, S, D, F = (1, 2048, 512, 1792)
        return {'x': _w((lambda *s: torch.randn(*s, dtype=torch.bfloat16) * 0.05)(B, S, D)), 'W_gate': _w((lambda *s: torch.randn(*s, dtype=torch.bfloat16) * 0.8)(D, F) * (2.0 / D) ** 0.5), 'W_up': _w((lambda *s: torch.randn(*s, dtype=torch.bfloat16) * 0.8)(D, F) * (2.0 / D) ** 0.5), 'W_down': _w((lambda *s: torch.randn(*s, dtype=torch.bfloat16) * 0.8)(F, D) * (1.0 / F) ** 0.5)}
    _B_in = _B_setup()
    return {'A_x': _A_in['x'], 'A_mem0': _A_in['mem0'], 'A_Wq': _A_in['Wq'], 'A_Wk': _A_in['Wk'], 'A_Wv': _A_in['Wv'], 'A_Wo': _A_in['Wo'], 'A_seg_len': _A_in['seg_len'], 'B_x': _B_in['x'], 'B_W_gate': _B_in['W_gate'], 'B_W_up': _B_in['W_up'], 'B_W_down': _B_in['W_down'], 'gate_w': _w((lambda *s: torch.randn(*s, dtype=torch.bfloat16) * 0.05)(512) * 16.0)}

def reference(A_x, A_mem0, A_Wq, A_Wk, A_Wv, A_Wo, A_seg_len, B_x, B_W_gate, B_W_up, B_W_down, gate_w):

    def _A_ref(x, mem0, Wq, Wk, Wv, Wo, seg_len):
        B, S, Dm = x.shape
        H, Dh = (Wq.shape[1], Wq.shape[2])
        M = mem0.shape[1]
        scale = Dh ** (-0.5)
        n_seg = S // seg_len
        L = M + seg_len
        idx = torch.arange(L)
        mask = (idx[:, None] < M) | (idx[:, None] >= idx[None, :])
        mem = mem0
        outs = []
        for s in range(n_seg):
            xs = x[:, s * seg_len:(s + 1) * seg_len, :].clone()
            h = torch.concatenate([mem, xs], axis=1)
            q = torch.einsum('btd,dhe->bhte', h, Wq)
            k = torch.einsum('btd,dhe->bhte', h, Wk)
            v = torch.einsum('btd,dhe->bhte', h, Wv)
            scores = torch.einsum('bhqe,bhke->bhqk', q, k) * scale
            scores = torch.where(mask[None, None], scores, -1000000000.0)
            p = _softmax(scores, axis=-1)
            o = torch.einsum('bhqk,bhke->bhqe', p, v)
            o = torch.einsum('bhte,hed->btd', o, Wo)
            mem = o[:, :M, :].clone()
            outs.append(o[:, M:, :])
        return torch.concatenate(outs, axis=1)

    def _B_ref(x, W_gate, W_up, W_down):
        gate = torch.einsum('bsd,df->bsf', x, W_gate)
        up = torch.einsum('bsd,df->bsf', x, W_up)
        gate = gate * (lambda x, dt: x.to(dt))(gate > 0, gate.dtype)
        h = gate * up
        return torch.einsum('bsf,fd->bsd', h, W_down)
    x = A_x
    g = _sigmoid((x * gate_w).sum(-1, keepdims=True))
    a = _A_ref(x, A_mem0, A_Wq, A_Wk, A_Wv, A_Wo, A_seg_len)
    b = _B_ref(x, B_W_gate, B_W_up, B_W_down)
    return g * a + (1 - g) * b
```

```python
import re

def regs_of(tok):
    tok = tok.strip()
    tok = tok.lstrip('-')
    m = re.fullmatch(r'abs\((.*)\)|\|(.*)\|', tok)
    if m: tok = m.group(1) or m.group(2)
    m = re.fullmatch(r'([vas])\[(\d+):(\d+)\]', tok)
    if m: return {m.group(1) + str(i) for i in range(int(m.group(2)), int(m.group(3)) + 1)}
    m = re.fullmatch(r'([vas])(\d+)', tok)
    if m: return {tok}
    if tok in ('vcc', 'vcc_lo', 'vcc_hi'): return {'vcc'}
    if tok in ('exec', 'exec_lo', 'exec_hi'): return {'exec'}
    if tok == 'm0': return {'m0'}
    return set()

TRANS = ('v_exp_f32', 'v_log_f32', 'v_rcp_f32', 'v_rsq_f32', 'v_sqrt_f32', 'v_sin_f32', 'v_cos_f32')

class Ins:
    def __init__(self, text):
        self.text = text
        body = text.split(';')[0].strip()
        parts = body.split(None, 1)
        self.op = parts[0]
        rest = parts[1] if len(parts) > 1 else ''
        ops = [o.strip() for o in rest.split(',')] if rest else []
        fixed = []
        depth = 0
        for o in ops:
            if depth > 0:
                fixed[-1] += ',' + o
            else:
                fixed.append(o)
            depth += o.count('[') - o.count(']') + o.count('(') - o.count(')')
        ops = fixed
        self.mods = ''
        if ops:
            last = ops[-1].split(None, 1)
            ops[-1] = last[0]
            if len(last) > 1: self.mods = last[1]
        self.ops = ops
        op = self.op
        self.kind = 'other'
        self.w = set(); self.r = set()
        self.A = self.B = self.C = set()
        self.passes = 0; self.storedata = set(); self.wide = False
        R = [regs_of(o) for o in ops]
        if op.startswith('v_mfma') or op.startswith('v_smfmac'):
            self.kind = 'mfma'
            self.passes = 8 if '32x32' in op else 4
            if op.endswith('x4_f32') : self.passes = 8
            self.w = R[0]; self.A = R[1] | R[2]
            if op.startswith('v_smfmac'):
                self.C = R[0]; self.A |= R[3]
            else:
                self.C = R[3]
            self.r = self.A | self.C
        elif op.startswith('v_'):
            self.kind = 'valu'
            base = op.replace('_e32', '').replace('_e64', '').replace('_dpp', '')
            self.trans = base in TRANS
            self.dpp = op.endswith('_dpp') or 'row_' in self.mods or 'quad_perm' in self.mods
            if base.startswith('v_permlane') and 'swap' in base:
                self.w = R[0] | R[1]; self.r = R[0] | R[1]
            elif base.startswith('v_cmp'):
                self.w = R[0]; self.r = set().union(*R[1:])
                if base.startswith('v_cmpx'): self.w |= {'exec'}
            elif base in ('v_add_co_u32', 'v_sub_co_u32', 'v_addc_co_u32'):
                self.w = R[0] | R[1]; self.r = set().union(*R[2:])
            else:
                self.w = R[0]; self.r = set().union(*R[1:]) if len(R) > 1 else set()
                if base in ('v_fmac_f32', 'v_dot2c_f32_bf16', 'v_writelane_b32') or self.dpp: self.r |= R[0]
        elif op.startswith('buffer_') or op.startswith('global_'):
            self.kind = 'vmem'
            if op in ('buffer_inv', 'buffer_wbl2'):
                pass
            elif 'lds' in self.mods.split():
                self.r = set().union(*R) | {'m0'}
                self.ldsdma = True
            elif '_load' in op:
                self.w = R[0]; self.r = set().union(*R[1:])
            elif '_store' in op:
                self.r = set().union(*R); self.storedata = R[0]
                self.wide = op.endswith('x4') or op.endswith('x3')
            elif '_atomic' in op:
                self.r = set().union(*R)
                if 'sc0' in self.mods.split(): self.w = R[0]
        elif op.startswith('ds_'):
            self.kind = 'ds'
            if op.startswith('ds_read') or 'permute' in op or 'swizzle' in op:
                self.w = R[0]; self.r = set().union(*R[1:])
            else:
                self.r = set().union(*R)
        elif op.startswith('s_'):
            self.kind = 'salu'
            if op in ('s_nop', 's_waitcnt', 's_barrier', 's_sleep', 's_endpgm', 's_setprio') or op.startswith('s_cbranch') or op == 's_branch':
                pass
            elif op.startswith('s_cmp') or op.startswith('s_bitcmp'):
                self.r = set().union(*R)
            else:
                self.w = R[0] if R else set(); self.r = set().union(*R[1:]) if len(R) > 1 else set()
                if 'saveexec' in op: self.w |= {'exec'}

def isv(s): return {x for x in s if x[0] in 'va' and x not in ('vcc',)}
def iss(s): return {x for x in s if x[0] == 's' or x == 'vcc'}

def need(p, c):
    n = 0
    if p.kind == 'valu':
        pv = isv(p.w); ps = iss(p.w)
        if c.kind == 'mfma':
            if pv & c.r: n = max(n, 2)
            if 'exec' in p.w: n = max(n, 4)
        if c.kind == 'valu':
            if c.op.startswith('v_permlane') and pv & c.r: n = max(n, 2)
            if c.dpp and pv & c.r: n = max(n, 2)
            if c.dpp and 'exec' in p.w: n = max(n, 5)
            if (c.op.startswith('v_readfirstlane') or c.op.startswith('v_readlane')) and pv & c.r: n = max(n, 1)
            if p.trans and not c.trans and pv & c.r: n = max(n, 1)
            if p.trans and pv & c.r: n = max(n, 1)
            if ps & c.r: n = max(n, 4 if ('lane' in c.op) else 2)
            if p.op.startswith('v_dot2') and pv & (c.r | c.w) and not (c.op == p.op): n = max(n, 3)
            if p.op.startswith('v_dot2') and c.op == p.op and pv & (regs_of(c.ops[1]) | regs_of(c.ops[2])): n = max(n, 3)
        if c.kind == 'vmem' and ps & c.r: n = max(n, 5)
        if c.kind in ('vmem', 'ds') and p.op.startswith('v_dot2') and pv & c.r: n = max(n, 3)
    if p.kind == 'mfma':
        k = {4: 0, 8: 1}[p.passes]
        if c.kind == 'mfma':
            if p.w & c.A: n = max(n, (8, 12)[k])
            if p.w & c.C:
                if not (p.w == c.C and p.op == c.op): n = max(n, (6, 10)[k])
            if p.w & c.w and not (p.w & c.C): n = max(n, (6, 10)[k])
        if c.kind == 'valu':
            if p.w & (c.r | c.w): n = max(n, (8, 12)[k])
            if p.C & c.w: n = max(n, (3, 7)[k])
        if c.kind in ('vmem', 'ds'):
            if p.w & (c.r | c.w): n = max(n, (8, 12)[k])
            if p.C & c.w: n = max(n, (3, 7)[k])
    if p.kind == 'vmem' and p.storedata and p.wide:
        if p.storedata & c.w: n = max(n, 2)
    if p.kind == 'salu' and 'm0' in p.w and getattr(c, 'ldsdma', False): n = max(n, 1)
    return n

class Asm:
    def __init__(self):
        self.lines = []
        self._lab = 0
        self.hist = []
        self.ds_n = 0; self.vm_n = 0
        self.nops = 0
        self.drop = ()
    def label(self, base="L"):
        self._lab += 1
        return "%s_%d" % (base, self._lab)
    def _dist(self, k, ins):
        now = 0; pipe = -1
        for p in self.hist[k:]:
            t = max(now, pipe) if p.kind == 'mfma' else now
            now = t + (4 * (int(p.ops[0], 0) + 1) if p.op == 's_nop' else 4)
            if p.kind == 'mfma': pipe = t + 4 * p.passes
        return (max(now, pipe) if ins is not None and ins.kind == 'mfma' else now), now
    def _nop(self, k):
        while k > 0:
            m = min(k, 16)
            t = Ins("s_nop %d" % (m - 1))
            self.lines.append("    " + t.text); self.hist.append(t); self.nops += m
            k -= m
    def _emit(self, ins):
        pad = 0
        for k in range(max(0, len(self.hist) - 20), len(self.hist)):
            n = need(self.hist[k], ins)
            if n:
                d, now = self._dist(k, ins)
                if d < 4 * (n + 1): pad = max(pad, (4 * (n + 1) - now + 3) // 4)
        self._nop(pad)
        self.lines.append("    " + ins.text)
        self.hist.append(ins)
        if ins.kind == 'ds': self.ds_n += 1
        if ins.kind == 'vmem': self.vm_n += 1
    def __call__(self, s):
        for ln in s.split("\n"):
            ln = ln.strip()
            if not ln or ln.startswith(';'): continue
            if ln.endswith(":") or ln.startswith('.'):
                self.lines.append(ln)
            elif self.drop and any(ln.startswith(p) for p in self.drop):
                continue
            else:
                self._emit(Ins(ln))
    def fence(self):
        pad = 0
        for k in range(max(0, len(self.hist) - 20), len(self.hist)):
            p = self.hist[k]; n = 0
            if p.kind == 'mfma': n = (8, 12)[p.passes // 8]
            elif p.kind == 'valu': n = 5 if (iss(p.w) or 'exec' in p.w) else 3
            elif p.kind == 'vmem' and p.wide: n = 2
            elif p.kind == 'salu' and 'm0' in p.w: n = 1
            if n:
                d, now = self._dist(k, None)
                pad = max(pad, (4 * (n + 1) - now + 3) // 4)
        self._nop(pad)
    def ds(self, s):
        self(s); return self.ds_n
    def vm(self, s):
        self(s); return self.vm_n
    def wait_ds(self, tok):
        self("s_waitcnt lgkmcnt(%d)" % min(self.ds_n - tok, 15))
    def wait_vm(self, tok):
        self("s_waitcnt vmcnt(%d)" % min(self.vm_n - tok, 63))
    def text(self):
        return "\n".join(self.lines) + "\n"

def vr(b, n=4, k='v'):
    return "%s[%d:%d]" % (k, b, b + n - 1) if n > 1 else "%s%d" % (k, b)
def ar(b, n=4): return vr(b, n, 'a')
```

```python
from asmlib2 import *
import gen as G

vLin, vIdx, vWq, vMem0, vKx, vVm, vQw, vQr, vKr, vOw, vOr, vPst, vPub, vKp, vFl = \
    ["v%d" % i for i in (0, 6, 7, 3, 4, 5, 8, 9, 10, 11, 12, 13, 14, 15, 1)]
SEL, ONES = 16, 20
MEMA, ACQ, ACK, ACV, STG, VXR = 24, 56, 64, 72, 80, 120
WO = 128
SM = "v_smfmac_f32_16x16x64_bf16"
MF = "v_mfma_f32_16x16x32_bf16"
MF16 = "v_mfma_f32_16x16x16_bf16"

def stage_read(a, j):
    b = STG + 8 * (j % 5)
    a.ds(f"ds_read_b128 {vr(b)}, {vWq} offset:{j*2048}")
    return a.ds(f"ds_read_b128 {vr(b+4)}, {vWq} offset:{j*2048 + 1024}")

def idle_prep(a):
    for j in range(5): stage_read(a, j)
    for r in range(ACQ, ACQ + 24): a(f"v_mov_b32 v{r}, 0")

def addr_prep(a):
    for u in range(1, 4): a(f"v_add_u32 v{MEMA + 8*u + 4}, s{97+u}, {vLin}")

def startup(a, opt):
    WS, DBG = G.WS, G.DBG
    a("L_chain:")
    G.srd(a, 20, G.P_MEM0, 8192); G.srd(a, 24, G.P_WQ, 0x400000); G.srd(a, 28, G.P_WK, 0x400000)
    G.srd(a, 32, G.P_WV, 0x400000); G.srd(a, 36, G.P_WO, 0x400000)
    G.make_sel(a, SEL, 24)
    for r in range(4): a(f"v_mov_b32 v{ONES+r}, 0x3f803f80")
    a(f"""
    v_and_b32 v24, 1, v2
    v_mov_b32 v25, 0x4444
    v_mov_b32 v26, 0xeeee
    v_cmp_eq_u32 vcc, 0, v24
    v_cndmask_b32 {vIdx}, v26, v25, vcc
    v_lshlrev_b32 {vVm}, 3, v0
    v_and_b32 {vKp}, 31, v0
    v_lshlrev_b32 {vKp}, 4, {vKp}
    s_lshl_b32 s7, s3, 10
    s_add_u32 s90, s7, {G.L_QK + 512}
    v_add_u32 {vKp}, s90, {vKp}
    v_lshlrev_b32 v0, 4, v0
    s_add_u32 s90, s7, {G.L_MX}
    v_add_u32 {vMem0}, s90, {vLin}
    v_add_u32 {vKx}, {G.L_KX}, {vLin}
    s_lshl_b32 s90, s3, 15
    v_add_u32 {vWq}, s90, {vLin}
    ; q write: QK + w*1024 + (n/4)*128 + 2g*16 + (n%4)*4
    v_lshrrev_b32 v25, 2, v2
    v_and_b32 v26, 3, v2
    v_lshlrev_b32 {vQw}, 7, v25
    v_lshl_add_u32 {vQw}, v1, 5, {vQw}
    v_lshl_add_u32 {vQw}, v26, 2, {vQw}
    s_add_u32 s90, s7, {G.L_QK}
    v_add_u32 {vQw}, s90, {vQw}
    ; q read: QK + g*128 + (n%8)*16
    v_and_b32 v27, 7, v2
    v_lshlrev_b32 v27, 4, v27
    v_lshl_add_u32 v27, v1, 7, v27
    v_add_u32 {vQr}, {G.L_QK}, v27
    ; o write: OB + w*512 + g*128 + (n%8)*16
    s_lshl_b32 s90, s3, 9
    s_add_u32 s90, s90, {G.L_OB}
    v_add_u32 {vOw}, s90, v27
    ; k read: QK + 512 + g*128 + (2*(n/4) + n%2)*16
    v_lshl_add_u32 v27, v25, 1, v24
    v_lshlrev_b32 v27, 4, v27
    v_lshl_add_u32 v27, v1, 7, v27
    v_add_u32 {vKr}, {G.L_QK + 512}, v27
    ; o read: OB + (2g + n%2)*128 + (n/2)*16
    v_lshl_add_u32 v27, v1, 1, v24
    v_lshlrev_b32 v27, 7, v27
    v_lshrrev_b32 v28, 1, v2
    v_lshl_add_u32 v27, v28, 4, v27
    v_add_u32 {vOr}, {G.L_OB}, v27
    ; partial store: (8w + 2(n/4) + g/2)*8192 + (g%2)*2048 + 64h + 16(n%4)
    v_lshrrev_b32 v27, 1, v1
    v_lshl_add_u32 v27, v25, 1, v27
    v_lshlrev_b32 v27, 13, v27
    v_and_b32 v29, 1, v1
    v_lshl_add_u32 v27, v29, 11, v27
    v_lshl_add_u32 v27, v26, 4, v27
    s_lshl_b32 s90, s3, 16
    s_lshl_b32 s91, s4, 6
    s_add_u32 s90, s90, s91
    v_add_u32 {vPst}, s90, v27
    ; publish: (w/2)*4096 + h*128 + (w%2)*64 + g*32 + n*8   (lanes g<2, n<4)
    s_lshr_b32 s90, s3, 1
    s_lshl_b32 s90, s90, 12
    s_lshl_b32 s91, s4, 7
    s_add_u32 s90, s90, s91
    s_and_b32 s91, s3, 1
    s_lshl_b32 s91, s91, 6
    s_add_u32 s90, s90, s91
    v_lshlrev_b32 v27, 5, v29
    v_lshl_add_u32 v27, v26, 3, v27
    v_add_u32 {vPub}, s90, v27
    s_mov_b32 s58, 0x000f000f
    s_mov_b32 s59, 0
    s_lshl_b32 s44, s4, 2
    s_add_u32 s44, s44, s3
    s_lshl_b32 s44, s44, 11
    s_add_u32 s44, s44, {G.PART}
    s_lshl_b32 s55, s4, 7
    s_lshl_b32 s90, s3, 2
    s_add_u32 s54, s55, s90
    s_add_u32 s54, s54, {G.FLG_FCH}
    s_add_u32 s55, s55, {G.FLG_FB}
    """)
    for u in range(4):
        a(f"s_add_u32 s7, s3, {u}\n s_and_b32 s7, s7, 3\n s_lshl_b32 s{92+u}, s7, 20")
        if u: a(f"s_lshl_b32 s7, s7, 10\n s_add_u32 s{97+u}, s7, {G.L_MX}")
    for r in range(40, 44): a(f"v_mov_b32 v{r}, -1")
    a(f"s_add_u32 s7, s44, 0x40000")
    for so in ("s44", "s7"):
        for o in (0, 1024): a(f"buffer_store_dwordx4 v[40:43], {vLin}, {WS}, {so} offen offset:{o} sc1")
    a("s_mov_b64 exec, s[58:59]")
    for sl in range(4):
        a(f"s_mov_b32 s7, {G.MEMB + sl*8192}\n buffer_store_dwordx2 v[40:41], {vPub}, {WS}, s7 offen sc1")
    a("s_mov_b64 exec, -1")
    G.flag_store(a, "s54", "0", "v44")
    a(f"""
    v_lshrrev_b32 v27, 1, v1
    v_lshlrev_b32 v27, 18, v27
    v_lshl_add_u32 v27, v29, 16, v27
    v_lshl_add_u32 v27, v2, 2, v27
    s_lshl_b32 s90, s4, 8
    s_lshl_b32 s91, s3, 6
    s_add_u32 s90, s90, s91
    v_add_u32 v30, s90, v27
    v_add_u32 v31, 8192, v30
    ; Wo voffset: rows 16(g/2)+4(g%2), column bytes 256w + 16n, head base
    v_lshrrev_b32 v27, 1, v1
    v_lshlrev_b32 v27, 14, v27
    v_lshl_add_u32 v27, v29, 12, v27
    v_lshl_add_u32 v27, v2, 4, v27
    s_lshl_b32 s90, s4, 17
    s_lshl_b32 s91, s3, 8
    s_add_u32 s90, s90, s91
    v_add_u32 v26, s90, v27
    ; mem0 voffset: (n/2)*1024 + 2*(128w + 32g + 16(n%2))
    v_lshlrev_b32 v25, 10, v28
    v_lshl_add_u32 v25, v1, 6, v25
    v_lshl_add_u32 v25, v24, 5, v25
    v_add_u32 v25, s91, v25
    """)
    def units():
        us = []
        for tau in range(8):
            for rr in range(8):
                row = 64*(rr//4) + 16*(rr%2) + 4*(tau%2) + 2*((rr//2)%2)
                us.append(lambda tau=tau, row=row: a(f"s_add_u32 s7, s{92 + tau//2}, {row*8192}"))
        return us
    TMP = 128
    def q_sink(u, r0, r1):
        tau, rr = u // 8, u % 8
        o = 48 + 8 * ((u // 4) % 2)
        a(f"v_perm_b32 v{o + rr%4}, v{r1}, v{r0}, s40\n v_perm_b32 v{o + 4 + rr%4}, v{r1}, v{r0}, s41")
        if rr % 4 == 3:
            for T in range(2): a(f"ds_write_b128 {vWq}, {vr(o + 4*T)} offset:{(tau*2+T)*2048 + (rr//4)*1024}")
    G.load_pair(a, G.W1, "v30", "v31", units(), q_sink, TMP, 26)
    G.init_arrive(a, "v44")
    G.load_pair(a, G.W2, "v30", "v31", units(), G.acc_sink(a, lambda u, T: ((u//8)*2 + T)*8 + u % 8, 46), TMP, 30)
    G.load_pair(a, G.W3, "v30", "v31", units(), G.acc_sink(a, lambda u, T: 128 + ((u//8)*2 + T)*8 + u % 8, 46), TMP, 30)
    ou = [(lambda t=t, rr=rr: a(f"s_mov_b32 s7, {(64*t + 32*(rr//4) + 8*(rr%2) + 2*((rr//2)%2))*1024}")) for t in range(2) for rr in range(8)]
    G.load_oct(a, G.W4, "v26", ou, lambda u, T: WO + (T*2 + u//8)*8 + u % 8, 32, 12)
    a("v_mov_b32 v32, v25")
    for hf in range(2):
        for c in range(2):
            a(f"buffer_load_dwordx2 {vr(MEMA + 4*hf + 2*c, 2)}, v32, {G.OUT}, 0 offen offset:{8*hf + 16*c}")
    G.wait_scalar(a, DBG, G.D_INIT, 256, "s7", vFl, 2)
    G.wait_scalar(a, DBG, 0, 0, "s43", vFl, 2)
    G.wait_scalar(a, WS, "s55", 1, "s7", vFl, 2)
    a(f"""
    s_mov_b32 s6, 0
    s_mov_b32 s56, 0
    s_lshl_b32 s52, s4, 14
    s_add_u32 s52, s52, {G.KXV}
    s_lshl_b32 s7, s3, 11
    s_add_u32 s52, s52, s7
    s_lshl_b32 s53, s4, 12
    s_add_u32 s53, s53, {G.KVM}
    s_add_u32 s57, s7, {G.L_KX}
    s_mov_b32 m0, s57
    s_nop 0
    buffer_load_dwordx4 {vLin}, {WS}, s52 offen sc1 lds
    buffer_load_dwordx4 {vLin}, {WS}, s52 offen offset:1024 sc1 lds
    s_waitcnt lgkmcnt(0)
    """)
    idle_prep(a); addr_prep(a)
    a("s_waitcnt vmcnt(0) lgkmcnt(0)")
    a.fence()
    a("s_cmp_lt_u32 s43, 32\n s_cbranch_scc1 CS_loop")

def loop(a, opt, P, st):
    WS = G.WS
    prof = opt.get("prof")
    def stamp(k):
        if prof: a(f"s_memtime s[{60+2*k}:{61+2*k}]\n s_waitcnt lgkmcnt(0)")
    d1, d2 = opt.get("d1", 4), opt.get("d2", 2)
    a(f"{P}_loop:")
    stamp(0)
    seq = []
    for tau in range(2):
        for T in range(2): seq += [("q", tau, T), ("k", tau, T), ("v", tau, T)]
    for tau in range(2, 7):
        for T in range(2): seq += [("q", tau, T), ("k", tau, T)]
    seq += [("q", 7, 0), ("q", 7, 1), ("k", 7, 0), ("k", 7, 1)]
    for tau in range(2, 8):
        for T in range(2): seq.append(("v", tau, T))
    tk = {}
    fill = {i: [] for i in range(len(seq))}
    def mem_rd(tau):
        ad = MEMA + 8*(tau//2) + 4
        tk[("m", tau)] = a.ds(f"ds_read_b128 {vr(MEMA + 4*tau)}, v{ad} offset:{4096*(tau%2)}")
    def st_rd(j): tk[("w", j)] = stage_read(a, j)
    KX = 88
    def kx_rd(f): tk[("x", f)] = a.ds(f"ds_read_b128 {vr(KX + 4*f)}, {vKx} offset:{f*1024}")
    def bar():
        a.wait_ds(tk["wr"]); a("s_barrier")
    def vx_ld():
        a(f"s_add_u32 s7, s52, 8192")
        a(f"buffer_load_dwordx4 {vr(VXR)}, {vLin}, {WS}, s7 offen sc1")
        tk["vx"] = a.vm(f"buffer_load_dwordx4 {vr(VXR+4)}, {vLin}, {WS}, s7 offen offset:1024 sc1")
    def fl_st(): G.flag_store(a, "s54", "s6", vFl)
    def fb_check():
        a(f"s_add_u32 s90, s6, 1\n s_min_u32 s90, s90, 63\n s_lshr_b32 s91, s90, 1\n s_cmp_gt_u32 s56, s91\n s_cbranch_scc0 {P}_fbwait\n{P}_fbok:")
        a(f"s_cmp_lt_u32 s6, 63\n s_cselect_b32 s7, 0x80000, 0\n s_add_u32 s52, s52, s7\n s_xor_b32 s57, s57, 8192\n s_mov_b32 m0, s57")
    def dma(o): a(f"buffer_load_dwordx4 {vLin}, {WS}, s52 offen offset:{o} sc1 lds")
    def fb_ld():
        a(f"s_and_b32 s7, s6, 1\n s_lshl_b32 s7, s7, 2\n s_add_u32 s7, s7, s55\n buffer_load_dword {vFl}, off, {WS}, s7 sc1")
    fill[0] += [vx_ld]
    fill[1] += [fl_st]
    fill[3] += [bar, lambda: mem_rd(2), lambda: mem_rd(3)]
    fill[4] += [lambda: st_rd(5)]
    fill[5] += [lambda: mem_rd(4), lambda: mem_rd(5)]
    fill[6] += [lambda: st_rd(6)]
    fill[7] += [lambda: mem_rd(6), lambda: mem_rd(7)]
    fill[8] += [lambda: st_rd(7)]
    fill[9] += [fb_check]
    fill[10] += [lambda: st_rd(8)]
    fill[11] += [lambda: dma(0)]
    fill[13] += [lambda: dma(1024)]
    fill[15] += [fb_ld]
    qpos = {2*t + T: i for i, (m, t, T) in enumerate(seq) if m == "q"}
    for j in range(4, 11): fill[qpos[j]].append(lambda j=j: st_rd(j + 5))
    for j, fs in ((11, (0, 1)), (12, (2, 3)), (13, (4, 5)), (14, (6, 7))):
        for f in fs: fill[qpos[j]].append(lambda f=f: kx_rd(f))
    def fold(b, o0):
        return [lambda: a(f"v_add_f32 v{b}, v{b}, v{b+1}\n v_add_f32 v{b+4}, v{b+4}, v{b+5}"),
                lambda: a(f"v_add_f32 v{b+2}, v{b+2}, v{b+3}\n v_add_f32 v{b+6}, v{b+6}, v{b+7}"),
                lambda: (a(f"v_cvt_pk_bf16_f32 v{b+1}, v{b}, v{b+4}\n v_cvt_pk_bf16_f32 v{b+3}, v{b+2}, v{b+6}"),
                         tk.__setitem__("wr", a.ds(f"ds_write2_b32 {vQw}, v{b+1}, v{b+3} offset0:{o0} offset1:{o0+4}")))]
    fq, fk = fold(ACQ, 0), fold(ACK, 128)
    fill[35] += [fq[0]]; fill[36] += [fq[1], fq[2]]; fill[37] += [fk[0]]; fill[38] += [fk[1], fk[2]]
    QB = [80, 84, 56, 60]; KM = MEMA
    def qk_rd():
        for t in range(4): tk[("q", t)] = a.ds(f"ds_read_b128 {vr(QB[t])}, {vQr} offset:{t*1024}")
    def km_rd():
        for t in range(4): tk[("km", t)] = a.ds(f"ds_read_b128 {vr(KM + 4*t)}, {vKr} offset:{t*1024}")
        tk["kp"] = a.ds(f"ds_read_b128 v[64:67], {vKp}")
    fill[42] += [bar, qk_rd]
    fill[43] += [km_rd]
    fill[44] += [lambda: a("v_mov_b32 v69, 0")]
    fill[45] += [lambda: a("v_mov_b32 v70, 0")]
    fill[46] += [lambda: a(f"v_xor_b32 {vKx}, 8192, {vKx}")]
    a(f"ds_write_b128 {vMem0}, {vr(MEMA)}")
    tk["wr"] = a.ds(f"ds_write_b128 {vMem0}, {vr(MEMA+4)} offset:4096")
    waited = set()
    for i, (m, tau, T) in enumerate(seq):
        needs = []
        if tau >= 2: needs.append(("m", tau))
        if m == "q" and 2*tau + T >= 5: needs.append(("w", 2*tau + T))
        needs = [k for k in needs if k not in waited]
        if needs:
            a.wait_ds(max(tk[k] for k in needs)); waited.update(needs)
        j = 2*tau + T
        B = {"q": vr(STG + 8*(j % 5), 8), "k": ar(j*8, 8), "v": ar(128 + j*8, 8)}[m]
        D = {"q": ACQ, "k": ACK, "v": ACV}[m] + 4*T
        a(f"{SM} {vr(D)}, {vr(MEMA + 4*tau)}, {B}, {vIdx}")
        for f in fill[i]: f()
    stamp(1)
    X0, X1, M = 40, 44, 48
    vf = [f"v_add_f32 v72, v72, v73\n v_add_f32 v74, v74, v75", f"v_add_f32 v76, v76, v77\n v_add_f32 v78, v78, v79",
          f"v_cvt_pk_bf16_f32 v72, v72, v74\n v_cvt_pk_bf16_f32 v73, v76, v78"]
    n = 0
    for rt in range(2):
        for t in range(4):
            if rt == 0: a.wait_ds(tk[("q", t)])
            d = vr(X0 + 4*rt)
            a(f"{MF} {d}, {vr(KX + (rt*4+t)*4)}, {vr(QB[t])}, {d if t else '0'}")
            if 2 <= n < 5: a(vf[n-2])
            if n == 5:
                a.wait_ds(tk["kp"])
                a(f"s_lshl_b32 s7, s3, 10\n s_add_u32 s7, s7, s53\n buffer_store_dwordx2 v[72:73], {vVm}, {WS}, s7 offen sc1")
            if n == 6:
                a(f"s_sub_u32 s7, s53, {G.L_QK}\n buffer_store_dwordx4 v[64:67], {vKp}, {WS}, s7 offen sc1")
            n += 1
    for t in range(4): a(f"{MF} {vr(M)}, {vr(KM + 4*t)}, {vr(QB[t])}, {vr(M) if t else '0'}")
    a(f"s_add_u32 s53, s53, 0x20000\n s_cmp_eq_u32 s6, 63\n s_cbranch_scc1 L_chain_done")
    PX, PM, O, Lr = 64, 68, 80, 88
    G.softmax(a, X0, X1, M, 52, PX, PM)
    a.wait_vm(tk["vx"])
    a(f"{MF} {vr(Lr)}, {vr(ONES)}, {vr(PX)}, 0\n {MF16} {vr(Lr)}, {vr(ONES, 2)}, {vr(PM, 2)}, {vr(Lr)}")
    for T in range(2):
        d = vr(O + 4*T)
        a(f"{MF} {d}, {vr(VXR + 4*T)}, {vr(PX)}, 0")
        a(f"v_mov_b32 v{24 + 4*T}, 0\n v_mov_b32 v{25 + 4*T}, 0")
        a(f"{MF16} {d}, v[72:73], {vr(PM + 2*T, 2)}, {d}")
        a(f"v_mov_b32 v{26 + 4*T}, 0\n v_mov_b32 v{27 + 4*T}, 0")
    a(f"v_rcp_f32 v56, v{Lr}")
    for r in range(32, 36): a(f"v_mov_b32 v{r}, 0")
    for r in range(8): a(f"v_mul_f32 v{O+r}, v{O+r}, v56")
    for i in range(4): a(f"v_cvt_pk_bf16_f32 v{64+i}, v{O+i}, v{O+4+i}")
    a(f"ds_write_b128 {vOw}, v[64:67]")
    for r in range(36, 48): a(f"v_mov_b32 v{r}, 0")
    a("s_waitcnt lgkmcnt(0)\n s_barrier")
    to = [a.ds(f"ds_read_b128 {vr(56 + 4*t)}, {vOr} offset:{t*1024}") for t in range(2)]
    for r in range(48, 56): a(f"v_mov_b32 v{r}, 0")
    a(f"s_and_b32 s7, s6, 1\n s_lshl_b32 s7, s7, 18\n s_add_u32 s45, s7, {G.PART}\n s_add_u32 s46, s45, 4096\n s_add_u32 s47, s44, s7")
    stamp(2)
    def wfold(T): return f"v_add_f32 v{24+4*T}, v{24+4*T}, v{25+4*T}\n v_add_f32 v{26+4*T}, v{26+4*T}, v{27+4*T}"
    def wpack(T):
        r = 64 + 4*(T//4) + (T % 4)//2
        return f"v_cvt_pk_bf16_f32 v{r}, v{24+4*T}, v{28+4*T}\n v_cvt_pk_bf16_f32 v{r+2}, v{26+4*T}, v{30+4*T}"
    def wst(hf): return f"buffer_store_dwordx4 {vr(64 + 4*hf)}, {vPst}, {WS}, s{45+hf} offen {st}"
    post = {3: [wfold(0)], 5: [wfold(1)], 6: [wpack(0)], 7: [wfold(2)], 9: [wfold(3)], 10: [wpack(2), wst(0)],
            11: [wfold(4)], 13: [wfold(5)], 14: [wpack(4)], 15: [wfold(6), wfold(7), wpack(6), wst(1)]}
    for T in range(8):
        for t in range(2):
            if T == 0: a.wait_ds(to[t])
            a(f"{SM} {vr(24 + 4*T)}, {vr(56 + 4*t)}, {vr(WO + (T*2+t)*8, 8)}, {vIdx}")
            for x in post.get(2*T + t, []): a(x)
    stamp(3)
    idle_prep(a)
    for r in range(40, 44): a(f"v_mov_b32 v{r}, -1")
    a(f"s_and_b32 s7, s6, 3\n s_lshl_b32 s7, s7, 13\n s_add_u32 s48, s7, {G.MEMB}\n s_lshl_b32 s7, s3, 10\n s_add_u32 s49, s48, s7\n s_add_u32 s50, s49, 4096")
    a(f"s_add_u32 s7, s6, 3\n s_and_b32 s7, s7, 3\n s_lshl_b32 s7, s7, 13\n s_add_u32 s51, s7, {G.MEMB}\n s_mov_b32 s96, 0")
    for _ in range(d1): a("s_nop 15")
    a(f"buffer_load_dwordx4 v[24:27], {vLin}, {WS}, s47 offen sc1\n buffer_load_dwordx4 v[28:31], {vLin}, {WS}, s47 offen offset:1024 sc1")
    a(f"{P}_r1:\n s_waitcnt vmcnt(0)")
    a(f"{MF} v[32:35], {vr(SEL)}, v[24:27], 0\n {MF} v[32:35], {vr(SEL)}, v[28:31], v[32:35]")
    a(f"v_readfirstlane_b32 s56, {vFl}")
    a("v_cmp_u_f32 vcc, v32, v32")
    for k in (4, 8):
        for r in range(32, 36): a(f"v_add_f32_dpp v{r}, v{r}, v{r} row_ror:{k} row_mask:0xf bank_mask:0xf")
    a(f"v_cvt_pk_bf16_f32 v32, v32, v33\n v_cvt_pk_bf16_f32 v33, v34, v35\n s_cbranch_vccnz {P}_r1retry\n{P}_r1ok:")
    a(f"s_mov_b64 exec, s[58:59]\n buffer_store_dwordx2 v[32:33], {vPub}, {WS}, s48 offen {st}")
    stamp(4)
    a(f"buffer_store_dwordx2 v[40:41], {vPub}, {WS}, s51 offen {st}\n s_mov_b64 exec, -1")
    for o in (0, 1024): a(f"buffer_store_dwordx4 v[40:43], {vLin}, {WS}, s47 offen offset:{o} {st}")
    addr_prep(a)
    a("s_add_u32 s6, s6, 1\n s_mov_b32 s96, 0")
    for _ in range(d2): a("s_nop 15")
    a(f"buffer_load_dwordx4 v[24:27], {vLin}, {WS}, s49 offen sc1\n buffer_load_dwordx4 v[28:31], {vLin}, {WS}, s50 offen sc1")
    def sentinel_masks():
        a("""
        v_max3_u32 v32, v24, v25, v26
        v_max3_u32 v33, v28, v29, v30
        v_max_u32 v32, v32, v27
        v_max_u32 v33, v33, v31
        v_cmp_eq_u32 s[90:91], -1, v32
        v_cmp_eq_u32 vcc, -1, v33
        """)
    a(f"{P}_r2:\n s_waitcnt vmcnt(0) lgkmcnt(0)")
    sentinel_masks()
    if prof:
        a(f"s_or_b64 s[92:93], s[90:91], vcc\n s_cbranch_scc0 {P}_prof")
    else:
        a(f"s_or_b64 s[92:93], s[90:91], vcc\n s_cbranch_scc0 {P}_loop")
    a(f"s_mov_b64 exec, s[90:91]\n buffer_load_dwordx4 v[24:27], {vLin}, {WS}, s49 offen sc1")
    a(f"s_mov_b64 exec, vcc\n buffer_load_dwordx4 v[28:31], {vLin}, {WS}, s50 offen sc1\n s_mov_b64 exec, -1")
    if prof: a("s_add_u32 s79, s79, 1")
    G.spin_tail(a, f"{P}_r2")
    if prof:
        a(f"{P}_prof:")
        stamp(5)
        for k in range(5): a(f"s_sub_u32 s7, s{62+2*k}, s{60+2*k}\n s_add_u32 s{72+k}, s{72+k}, s7")
        a(f"s_branch {P}_loop")
    a(f"{P}_r1retry:")
    a("v_mov_b32 v34, v32\n v_mov_b32 v35, v33")
    sentinel_masks()
    a("v_mov_b32 v32, v34\n v_mov_b32 v33, v35")
    a(f"s_or_b64 s[92:93], s[90:91], vcc\n s_cbranch_scc0 {P}_r1ok")
    a(f"s_mov_b64 exec, s[90:91]\n buffer_load_dwordx4 v[24:27], {vLin}, {WS}, s47 offen sc1")
    a(f"s_mov_b64 exec, vcc\n buffer_load_dwordx4 v[28:31], {vLin}, {WS}, s47 offen offset:1024 sc1\n s_mov_b64 exec, -1")
    if prof: a("s_add_u32 s78, s78, 1")
    G.spin_tail(a, f"{P}_r1")
    a(f"{P}_fbwait:")
    a("s_and_b32 s90, s90, 1\n s_lshl_b32 s90, s90, 2\n s_add_u32 s90, s90, s55\n s_add_u32 s91, s91, 1")
    G.wait_scalar(a, WS, "s90", "s91", "s56", vFl, 1)
    a(f"s_branch {P}_fbok")

def role_chain(a, opt):
    startup(a, opt)
    if opt.get("prof"):
        for k in range(72, 80): a(f"s_mov_b32 s{k}, 0")
    loop(a, opt, "CF", "")
    loop(a, opt, "CS", "sc1")
    a("L_chain_done:\n s_waitcnt vmcnt(0)")
    G.flag_store(a, "s54", "64", vFl)
    if opt.get("prof"):
        a(f"s_lshl_b32 s7, s4, 2\n s_add_u32 s7, s7, s3\n s_lshl_b32 s7, s7, 5\n s_add_u32 s7, s7, {G.PROF}\n s_mov_b64 exec, 1")
        for k in range(8):
            a(f"v_mov_b32 v24, s{72+k}\n buffer_store_dword v24, off, {G.WS}, s7 offset:{4*k} sc1")
    a("s_waitcnt vmcnt(0)\n s_endpgm")
```

```python
import sys, math, struct
from asmlib2 import *

NAME = "gated_mix__memory_aug_recurrent_mem_tr__glu_gated_reglu__prompt"

FLG_FB  = 0x0000
FLG_FCH = 0x2000
FLG_FC  = 0x3000
FLG_FF  = 0x3100
MEMB = 0x4000
PART = 0x10000
KVM  = 0x100000
KXV  = 0x1000000
CP   = 0x3000000
FP   = 0x7000000
PROF = 0x9000000
D_CH, D_INIT, D_WK, D_ERR = 0, 64, 128, 192
L_KX, L_MX, L_QK, L_OB, L_ROLE = 131072, 147456, 155648, 159744, 161792
XROW = 1040; XBUF = 32 * XROW
L_QX = 2 * XBUF; L_OX = L_QX + 8192
LDS_BYTES = 163840
SPIN = 1 << 17

X, WS, DBG, OUT, W1, W2, W3, W4 = ["s[%d:%d]" % (b, b + 3) for b in (8, 12, 16, 20, 24, 28, 32, 36)]
P_X, P_MEM0, P_WQ, P_WK, P_WV, P_WO, P_WG, P_WU, P_WD, P_GW, P_OUT, P_DBG, P_WS = 60, 62, 64, 66, 68, 70, 76, 78, 80, 82, 84, 86, 88

def f32bits(x): return struct.unpack("<I", struct.pack("<f", x))[0]
CSC = f32bits(128 ** -0.5 * math.log2(math.e))

def srd(a, base, ptr, size):
    a(f"s_mov_b32 s{base}, s{ptr}\n s_mov_b32 s{base+1}, s{ptr+1}\n s_mov_b32 s{base+2}, {size}\n s_mov_b32 s{base+3}, 0x20000")

def spin_tail(a, loop, sleep=0):
    if sleep: a(f"s_sleep {sleep}")
    a(f"s_add_u32 s96, s96, 1\n s_cmp_lt_u32 s96, {SPIN}\n s_cbranch_scc1 {loop}\n s_branch L_bail")

def wait_scalar(a, srdn, soff, need, dst, vt, sleep=1):
    lp = a.label("WS"); ok = a.label("WSOK")
    a(f"s_mov_b32 s96, 0\n{lp}:")
    a(f"buffer_load_dword {vt}, off, {srdn}, {soff} sc1\n s_waitcnt vmcnt(0)\n v_readfirstlane_b32 {dst}, {vt}")
    a(f"s_nop 3\n s_cmp_ge_u32 {dst}, {need}\n s_cbranch_scc1 {ok}")
    spin_tail(a, lp, sleep)
    a(f"{ok}:")

def wait_lanes(a, vaddr, soff, nl, need, vt, sleep=1):
    lp = a.label("WL"); ok = a.label("WLOK")
    a(f"s_mov_b32 s96, 0\n s_mov_b32 exec_lo, {hex((1 << nl) - 1)}\n s_mov_b32 exec_hi, 0\n{lp}:")
    a(f"buffer_load_dword {vt}, {vaddr}, {WS}, {soff} offen sc1\n s_waitcnt vmcnt(0)\n v_cmp_gt_u32 vcc, {need}, {vt}\n s_cbranch_vccz {ok}")
    spin_tail(a, lp, sleep)
    a(f"{ok}:\n s_mov_b64 exec, -1")

def flag_store(a, soff, sval, vt):
    a(f"v_mov_b32 {vt}, {sval}\n s_mov_b64 exec, 1\n buffer_store_dword {vt}, off, {WS}, {soff} sc1\n s_mov_b64 exec, -1")

def init_arrive(a, vt):
    sk = a.label("IA")
    a(f"s_barrier\n s_cmp_lg_u32 s3, 0\n s_cbranch_scc1 {sk}")
    a(f"v_mov_b32 {vt}, 1\n s_mov_b64 exec, 1\n buffer_atomic_add {vt}, off, {DBG}, 0 offset:{D_INIT}\n s_mov_b64 exec, -1\n{sk}:")

def load_pair(a, srdn, v0, v1, units, sink, tmp, depth):
    n = len(units); tok = {}
    def issue(u):
        units[u]()
        r = tmp + 2 * (u % depth)
        a(f"buffer_load_dword v{r}, {v0}, {srdn}, s7 offen")
        tok[u] = a.vm(f"buffer_load_dword v{r+1}, {v1}, {srdn}, s7 offen")
    for u in range(min(depth, n)): issue(u)
    for u in range(n):
        a.wait_vm(tok[u])
        r = tmp + 2 * (u % depth)
        sink(u, r, r + 1)
        if u + depth < n: issue(u + depth)

def load_oct(a, srdn, v0, units, dst, tmp, depth):
    n = len(units); tok = {}
    def issue(u):
        units[u]()
        r = tmp + 8 * (u % depth)
        a(f"buffer_load_dwordx4 {vr(r)}, {v0}, {srdn}, s7 offen")
        tok[u] = a.vm(f"buffer_load_dwordx4 {vr(r+4)}, {v0}, {srdn}, s7 offen offset:1024")
    for u in range(min(depth, n)): issue(u)
    for u in range(n):
        a.wait_vm(tok[u])
        r = tmp + 8 * (u % depth)
        for T in range(8):
            a(f"v_perm_b32 v{dst(u, T)}, v{r+4+T//2}, v{r+T//2}, s{40 + T % 2}")
        if u + depth < n: issue(u + depth)

def acc_sink(a, dst, t0):
    def sink(u, r0, r1):
        a(f"v_perm_b32 v{t0}, v{r1}, v{r0}, s40\n v_perm_b32 v{t0+1}, v{r1}, v{r0}, s41")
        a(f"v_accvgpr_write_b32 a{dst(u, 0)}, v{t0}\n v_accvgpr_write_b32 a{dst(u, 1)}, v{t0+1}")
    return sink

def prologue(a, opt):
    a(f"""
    s_cmp_ge_u32 s2, 256
    s_cbranch_scc1 L_end
    s_load_dwordx16 s[60:75], s[0:1], 0
    s_load_dwordx8 s[76:83], s[0:1], 64
    s_load_dwordx4 s[84:87], s[0:1], 96
    s_load_dwordx2 s[88:89], s[0:1], 112
    v_lshrrev_b32 v1, 6, v0
    v_and_b32 v0, 63, v0
    v_readfirstlane_b32 s3, v1
    s_mov_b32 s40, 0x05040100
    s_mov_b32 s41, 0x07060302
    s_mov_b32 s42, {CSC}
    s_getreg_b32 s4, hwreg(HW_REG_XCC_ID)
    s_and_b32 s4, s4, 15
    """)
    if opt.get("force_slow"):
        a("s_cmp_lt_u32 s2, 20\n s_cselect_b32 s4, 0, 1")
    a("s_waitcnt lgkmcnt(0)")
    srd(a, 8, P_X, 0x200000); srd(a, 12, P_WS, 0x10000000); srd(a, 16, P_DBG, 256)
    a(f"""
    v_mov_b32 v3, {L_ROLE}
    s_cmp_lg_u32 s3, 0
    s_cbranch_scc1 L_role_wait
    s_mov_b64 exec, 1
    s_cmp_lg_u32 s4, 0
    s_cbranch_scc1 L_role_worker
    v_mov_b32 v2, 1
    buffer_atomic_add v2, off, {DBG}, 0 offset:{D_CH} sc0
    s_waitcnt vmcnt(0)
    v_readfirstlane_b32 s5, v2
    s_nop 3
    s_cmp_lt_u32 s5, 32
    s_cbranch_scc1 L_role_have
    L_role_worker:
    v_mov_b32 v2, 1
    buffer_atomic_add v2, off, {DBG}, 0 offset:{D_WK} sc0
    s_waitcnt vmcnt(0)
    v_readfirstlane_b32 s5, v2
    s_nop 3
    s_sub_u32 s7, 255, s5
    s_add_u32 s5, s5, 32
    s_cmp_ge_u32 s5, 256
    s_cselect_b32 s5, s7, s5
    L_role_have:
    v_mov_b32 v2, s5
    ds_write_b32 v3, v2
    s_waitcnt lgkmcnt(0)
    s_mov_b64 exec, -1
    L_role_wait:
    s_barrier
    ds_read_b32 v2, v3
    s_waitcnt lgkmcnt(0)
    v_readfirstlane_b32 s4, v2
    v_lshrrev_b32 v1, 4, v0
    v_and_b32 v2, 15, v0
    s_nop 2
    s_and_b32 s4, s4, 255
    s_cmp_lt_u32 s4, 32
    s_cbranch_scc1 L_chain
    s_cmp_lt_u32 s4, 96
    s_cbranch_scc1 L_B
    s_cmp_lt_u32 s4, 160
    s_cbranch_scc1 L_C
    s_cmp_lt_u32 s4, 188
    s_cbranch_scc1 L_F
    s_cmp_lt_u32 s4, 252
    s_cbranch_scc1 L_R
    """)
    init_arrive(a, "v3")
    a(f"""
    s_waitcnt vmcnt(0)
    s_endpgm
    L_bail:
    s_mov_b64 exec, 1
    v_mov_b32 v0, s4
    v_add_u32 v0, 0x100, v0
    buffer_store_dword v0, off, {DBG}, 0 offset:{D_ERR}
    s_waitcnt vmcnt(0)
    L_end:
    s_endpgm
    """)

def x_dma(a, sseg, sbuf):
    a(f"s_lshl_b32 s90, {sseg}, 15\n s_lshl_b32 s91, s3, 13\n s_add_u32 s90, s90, s91")
    a(f"s_mul_i32 s91, s3, {8*XROW}\n s_add_u32 s91, s91, {sbuf}")
    for r in range(8):
        a(f"s_add_u32 m0, s91, {r*XROW}")
        a(f"s_nop 0\n buffer_load_dwordx4 v0, {X}, s90 offen lds")
        if r < 7: a("s_add_u32 s90, s90, 1024")

def gemm1(a, vx, mats, fr):
    tok = {}
    def rd(t):
        for rt in range(2):
            tok[t] = a.ds(f"ds_read_b128 {vr(fr + 8*(t%3) + 4*rt)}, {vx} offset:{rt*16*XROW + t*64}")
    rd(0); rd(1)
    for t in range(16):
        if t + 2 < 16: rd(t + 2)
        a.wait_ds(tok[t])
        for wreg, acc, wA in mats:
            for T in range(2):
                for rt in range(2):
                    xf = vr(fr + 8*(t%3) + 4*rt); d = vr(acc(T, rt)); c = d if t else "0"
                    A, B = (wreg(t, T), xf) if wA else (xf, wreg(t, T))
                    a(f"v_mfma_f32_16x16x32_bf16 {d}, {A}, {B}, {c}")

def stage2(a, vrd, vst, sdst, oa, acc, tmp):
    tok = {}
    for t in range(4):
        for rt in range(2):
            tok[(rt, t)] = a.ds(f"ds_read_b128 {vr(oa + (rt*4+t)*4)}, {vrd} offset:{(rt*4+t)*1024}")
    def epi(rt, i):
        r = tmp + 4 * (i % 2)
        for p in range(4):
            a(f"v_cvt_pk_bf16_f32 v{r+p}, v{acc + (rt*8+2*p)*4 + i}, v{acc + (rt*8+2*p+1)*4 + i}")
        if rt: a(f"s_add_u32 s7, {sdst}, 16384")
        a(f"buffer_store_dwordx4 {vr(r)}, {vst}, {WS}, {'s7' if rt else sdst} offen offset:{i*1024} sc1")
    for rt in range(2):
        for t in range(4):
            a.wait_ds(tok[(rt, t)])
            for T in range(8):
                d = vr(acc + (rt*8+T)*4)
                a(f"v_mfma_f32_16x16x32_bf16 {d}, {vr(oa + (rt*4+t)*4)}, {vr(128 + (T*4+t)*4)}, {d if t else '0'}")
            if rt == 1: epi(0, t)
    for i in range(4): epi(1, i)

def w_lane(a, vd0, vd1, stride, scol):
    a(f"s_lshl_b32 s7, s3, 6\n s_add_u32 s7, s7, {scol}\n s_mov_b32 s90, {8*stride}\n v_mul_lo_u32 {vd0}, v1, s90")
    a(f"v_lshl_add_u32 {vd0}, v2, 2, {vd0}\n v_add_u32 {vd0}, s7, {vd0}\n v_add_u32 {vd1}, {stride}, {vd0}")

def nat_units(a, stride):
    return [(lambda t=t, rr=rr: a(f"s_mov_b32 s7, {(32*t + 2*rr)*stride}")) for t in range(16) for rr in range(4)]

def load_w2(a, srdn, sbase, vt):
    a(f"v_lshlrev_b32 {vt}, 13, v1\n v_lshl_add_u32 {vt}, v2, 4, {vt}\n s_lshl_b32 s7, s3, 8\n s_add_u32 s7, s7, {sbase}\n v_add_u32 {vt}, s7, {vt}")
    units = [(lambda t=t, rr=rr: a(f"s_mov_b32 s7, {(32*t + 2*rr)*1024}")) for t in range(4) for rr in range(4)]
    load_oct(a, srdn, vt, units, lambda u, T: 128 + (T*4 + u//4)*4 + u % 4, 24, 12)

def worker_top(a, name, sflag):
    sk = a.label("NF"); sk2 = a.label("ND")
    a(f"{name}_loop:\n s_waitcnt vmcnt(0)\n s_barrier")
    a(f"s_cmp_lg_u32 s3, 0\n s_cbranch_scc1 {sk}")
    flag_store(a, sflag, "s6", "v24")
    a(f"{sk}:\n s_cmp_eq_u32 s6, 32\n s_cbranch_scc1 L_wdone")
    a(f"s_lshl_b32 s43, s6, 1\n s_add_u32 s43, s43, s5")
    a(f"s_cmp_eq_u32 s6, 31\n s_cbranch_scc1 {sk2}")
    a(f"s_add_u32 s44, s43, 2\n s_sub_u32 s45, {XBUF}, s46")
    x_dma(a, "s44", "s45")
    a(f"{sk2}:\n v_add_u32 v4, s46, v3")

def worker_bot(a, name):
    a(f"s_sub_u32 s46, {XBUF}, s46\n s_add_u32 s6, s6, 1")
    a.fence()
    a(f"s_branch {name}_loop")

def worker_init(a, first, per, flagbase, fl_hshift, fl_gshift):
    a(f"s_sub_u32 s4, s4, {first}\n s_cmp_ge_u32 s4, {per}\n s_cselect_b32 s5, 1, 0\n s_cselect_b32 s7, {per}, 0\n s_sub_u32 s4, s4, s7")
    a(f"s_lshl_b32 s47, s4, {fl_hshift}\n s_lshl_b32 s7, s5, {fl_gshift}\n s_add_u32 s47, s47, s7\n s_add_u32 s47, s47, {flagbase}")
    a("s_mov_b32 s6, 0\n s_mov_b32 s46, 0")
    flag_store(a, "s47", "0", "v24")
    a(f"s_mov_b32 s7, {XROW}\n v_mul_lo_u32 v3, v2, s7\n v_lshl_add_u32 v3, v1, 4, v3\n v_lshlrev_b32 v0, 4, v0")
    a("s_waitcnt vmcnt(0)")
    init_arrive(a, "v24")
    x_dma(a, "s5", "s46")

def role_B(a, opt):
    a("L_B:")
    worker_init(a, 32, 32, FLG_FB, 7, 2)
    srd(a, 24, P_WK, 0x400000); srd(a, 28, P_WV, 0x400000)
    a("s_lshl_b32 s48, s4, 8")
    w_lane(a, "v5", "v6", 8192, "s48")
    load_pair(a, W1, "v5", "v6", nat_units(a, 8192), acc_sink(a, lambda u, T: ((u//4)*2 + T)*4 + u % 4, 20), 24, 26)
    load_pair(a, W2, "v5", "v6", nat_units(a, 8192), acc_sink(a, lambda u, T: 128 + ((u//4)*2 + T)*4 + u % 4, 20), 24, 26)
    worker_top(a, "B", "s47")
    gemm1(a, "v4", [(lambda t, T: ar((t*2+T)*4), lambda T, rt: 64 + (T*2+rt)*4, True),
                    (lambda t, T: ar(128 + (t*2+T)*4), lambda T, rt: 80 + (T*2+rt)*4, False)], 32)
    a(f"s_lshl_b32 s48, s43, 5\n s_add_u32 s48, s48, s4\n s_lshl_b32 s48, s48, 14\n s_add_u32 s48, s48, {KXV}")
    a("s_lshl_b32 s7, s3, 10\n s_add_u32 s49, s48, s7\n s_add_u32 s50, s49, 4096\n s_lshl_b32 s7, s3, 11\n s_add_u32 s51, s48, s7\n s_add_u32 s51, s51, 8192")
    for rt in range(2):
        r = 96 + 4*rt
        for i in range(4): a(f"v_cvt_pk_bf16_f32 v{r+i}, v{64 + rt*4 + i}, v{64 + (2+rt)*4 + i}")
        a(f"buffer_store_dwordx4 {vr(r)}, v0, {WS}, s{49+rt} offen sc1")
    for T in range(2):
        r = 104 + 4*T; b = 80 + T*8
        for p in range(4): a(f"v_cvt_pk_bf16_f32 v{r+p}, v{b + 2*p}, v{b + 2*p + 1}")
        a(f"buffer_store_dwordx4 {vr(r)}, v0, {WS}, s51 offen offset:{T*1024} sc1")
    worker_bot(a, "B")
    a("L_wdone:\n s_waitcnt vmcnt(0)\n s_endpgm")

def st2_addrs(a):
    a(f"v_add_u32 v6, {L_OX}, v0\n s_lshl_b32 s7, s3, 10\n v_add_u32 v5, s7, v6")
    a(f"v_lshlrev_b32 v7, 12, v1\n v_lshl_add_u32 v7, v2, 4, v7\n s_lshl_b32 s7, s3, 8\n v_add_u32 v7, s7, v7")

def role_F(a, opt):
    a("L_F:")
    worker_init(a, 160, 14, FLG_FF, 2, 7)
    srd(a, 24, P_WG, 512*3584); srd(a, 28, P_WU, 512*3584); srd(a, 32, P_WD, 1792*1024)
    a("s_lshl_b32 s48, s4, 8")
    w_lane(a, "v5", "v6", 3584, "s48")
    load_pair(a, W1, "v5", "v6", nat_units(a, 3584), acc_sink(a, lambda u, T: ((u//4)*2 + T)*4 + u % 4, 20), 24, 26)
    load_pair(a, W2, "v5", "v6", nat_units(a, 3584), acc_sink(a, lambda u, T: 128 + ((u//4)*2 + T)*4 + u % 4, 20), 24, 26)
    a("s_lshl_b32 s48, s4, 17")
    load_w2(a, W3, "s48", "v5")
    st2_addrs(a)
    worker_top(a, "F", "s47")
    gemm1(a, "v4", [(lambda t, T: ar((t*2+T)*4), lambda T, rt: 64 + (T*2+rt)*4, True),
                    (lambda t, T: ar(128 + (t*2+T)*4), lambda T, rt: 80 + (T*2+rt)*4, True)], 32)
    for r in range(16): a(f"v_max_f32 v{64+r}, 0, v{64+r}")
    for r in range(16): a(f"v_mul_f32 v{64+r}, v{64+r}, v{80+r}")
    for rt in range(2):
        r = 96 + 4*rt
        for i in range(4): a(f"v_cvt_pk_bf16_f32 v{r+i}, v{64 + rt*4 + i}, v{64 + (2+rt)*4 + i}")
        a(f"ds_write_b128 v5, {vr(r)} offset:{rt*4096}")
    a(f"s_lshl_b32 s48, s43, 4\n s_add_u32 s48, s48, s4\n s_lshl_b32 s48, s48, 15\n s_add_u32 s48, s48, {FP}")
    a("s_waitcnt lgkmcnt(0)\n s_barrier")
    stage2(a, "v6", "v7", "s48", 32, 64, 24)
    worker_bot(a, "F")

def softmax(a, X0, X1, M, t, pX, pM):
    a(f"""
    v_max3_f32 v{t}, v{X0}, v{X0+1}, v{X0+2}
    v_max3_f32 v{t+1}, v{X0+3}, v{X1}, v{X1+1}
    v_max3_f32 v{t}, v{t}, v{X1+2}, v{X1+3}
    v_max3_f32 v{t+1}, v{t+1}, v{M}, v{M+1}
    v_max_f32 v{t}, v{t}, v{t+1}
    v_max_f32 v{t+1}, v{t}, v{t+1}
    v_permlane16_swap_b32 v{t}, v{t+1}
    v_max_f32 v{t+2}, v{t}, v{t+1}
    v_max_f32 v{t+3}, v{t}, v{t+1}
    v_permlane32_swap_b32 v{t+2}, v{t+3}
    v_max_f32 v{t}, v{t+2}, v{t+3}
    v_mul_f32 v{t}, s42, v{t}
    """)
    regs = [X0, X0+1, X0+2, X0+3, X1, X1+1, X1+2, X1+3, M, M+1]
    for r in regs: a(f"v_fma_f32 v{r}, v{r}, s42, -v{t}")
    for k, r in enumerate(regs):
        a(f"v_exp_f32 v{r}, v{r}")
        if k >= 2 and k % 2 == 0: a(f"v_cvt_pk_bf16_f32 v{pX + k//2 - 1}, v{regs[k-2]}, v{regs[k-1]}")
    a(f"v_cvt_pk_bf16_f32 v{pM}, v{M}, v{M+1}\n v_cvt_pk_bf16_f32 v{pM+3}, v{M}, v{M+1}")

def role_C(a, opt):
    a("L_C:")
    worker_init(a, 96, 32, FLG_FC, 2, 7)
    srd(a, 24, P_WQ, 0x400000); srd(a, 28, P_WO, 0x400000)
    a("s_lshl_b32 s48, s4, 8")
    w_lane(a, "v5", "v6", 8192, "s48")
    load_pair(a, W1, "v5", "v6", nat_units(a, 8192), acc_sink(a, lambda u, T: ((u//4)*2 + T)*4 + u % 4, 20), 24, 26)
    a("s_lshl_b32 s48, s4, 17")
    load_w2(a, W2, "s48", "v5")
    st2_addrs(a)
    a(f"""
    v_subrev_u32 v8, 8192, v5
    s_lshr_b32 s52, s3, 1
    s_and_b32 s53, s3, 1
    s_lshl_b32 s7, s52, 12
    s_add_u32 s7, s7, {L_QX}
    v_add_u32 v9, s7, v0
    v_lshrrev_b32 v10, 2, v2
    v_lshlrev_b32 v10, 1, v10
    v_and_b32 v11, 1, v2
    v_add_u32 v10, v10, v11
    v_lshlrev_b32 v10, 4, v10
    v_lshl_add_u32 v10, v1, 7, v10
    v_add_u32 v10, 512, v10
    v_lshrrev_b32 v11, 1, v0
    s_lshl_b32 s7, s53, 11
    v_add_u32 v11, s7, v11
    s_lshl_b32 s7, s3, 11
    v_add_u32 v12, s7, v6
    v_lshrrev_b32 v13, 2, v0
    s_lshl_b32 s7, s52, 4
    v_add_u32 v14, s7, v2
    v_lshlrev_b32 v15, 2, v1
    v_sub_u32 v14, v14, v15
    """)
    for k in range(8):
        a(f"v_cmp_le_i32 s[{60+2*k}:{61+2*k}], {k if k < 4 else 12 + k}, v14")
    a("v_mov_b32 v14, 0xf149f2ca")
    for r in range(16, 20): a(f"v_mov_b32 v{r}, 0x3f803f80")
    a("v_mov_b32 v21, 0\n v_mov_b32 v22, 0")
    a(f"s_lshl_b32 s54, s4, 7\n s_add_u32 s55, s54, {FLG_FCH}\n s_lshl_b32 s7, s5, 2\n s_add_u32 s54, s54, s7\n s_add_u32 s54, s54, {FLG_FB}\n s_mov_b32 s56, 0")
    wait_scalar(a, DBG, D_INIT, 256, "s7", "v24", 8)
    worker_top(a, "C", "s47")
    gemm1(a, "v4", [(lambda t, T: ar((t*2+T)*4), lambda T, rt: 64 + (T*2+rt)*4, True)], 32)
    for rt in range(2):
        r = 96 + 4*rt
        for i in range(4): a(f"v_cvt_pk_bf16_f32 v{r+i}, v{64 + rt*4 + i}, v{64 + (2+rt)*4 + i}")
        a(f"ds_write_b128 v8, {vr(r)} offset:{rt*4096}")
    ok = a.label("CB")
    a(f"s_add_u32 s57, s6, 1\n s_cmp_ge_u32 s56, s57\n s_cbranch_scc1 {ok}")
    wait_scalar(a, WS, "s54", "s57", "s56", "v24", 4)
    a(f"{ok}:")
    a(f"s_lshl_b32 s48, s43, 5\n s_add_u32 s48, s48, s4\n s_lshl_b32 s49, s48, 14\n s_add_u32 s49, s49, {KXV}\n s_add_u32 s50, s49, 4096")
    a(f"s_lshl_b32 s7, s53, 12\n s_add_u32 s51, s49, s7\n s_add_u32 s51, s51, 8192")
    KX, VX, QB, KM, VM = 32, 64, 80, 96, 112
    for f in range(8): a(f"buffer_load_dwordx4 {vr(KX + 4*f)}, v0, {WS}, s{49 + f//4} offen offset:{(f%4)*1024} sc1")
    for f in range(4): a(f"buffer_load_dwordx4 {vr(VX + 4*f)}, v0, {WS}, s51 offen offset:{f*1024} sc1")
    a("s_waitcnt lgkmcnt(0)\n s_barrier")
    for t in range(4): a(f"ds_read_b128 {vr(QB + 4*t)}, v9 offset:{t*1024}")
    a("s_waitcnt vmcnt(0) lgkmcnt(0)")
    X0, X1, M = 116, 120, 124
    for rt in range(2):
        d = vr(X0 + 4*rt)
        for t in range(4): a(f"v_mfma_f32_16x16x32_bf16 {d}, {vr(KX + (rt*4+t)*4)}, {vr(QB + 4*t)}, {d if t else '0'}")
    for k in range(8): a(f"v_cndmask_b32 v{X0+k}, v14, v{X0+k}, s[{60+2*k}:{61+2*k}]")
    a(f"s_add_u32 s57, s43, 1\n s_lshl_b32 s49, s48, 12\n s_add_u32 s49, s49, {KVM}")
    wait_lanes(a, "v13", "s55", 4, "s57", "v24", 1)
    for t in range(4): a(f"buffer_load_dwordx4 {vr(KM + 4*t)}, v10, {WS}, s49 offen offset:{t*1024} sc1")
    for f in range(2): a(f"buffer_load_dwordx2 {vr(VM + 2*f, 2)}, v11, {WS}, s49 offen offset:{f*1024} sc1")
    a("s_waitcnt vmcnt(0)")
    for t in range(4): a(f"v_mfma_f32_16x16x32_bf16 {vr(M)}, {vr(KM + 4*t)}, {vr(QB + 4*t)}, {vr(M) if t else '0'}")
    PX, PM, O, Lr = 24, 20, 32, 48
    softmax(a, X0, X1, M, 28, PX, PM)
    a(f"v_mfma_f32_16x16x32_bf16 {vr(Lr)}, v[16:19], {vr(PX)}, 0")
    a(f"v_mfma_f32_16x16x16_bf16 {vr(Lr)}, v[16:17], {vr(PM, 2)}, {vr(Lr)}")
    for f in range(4):
        d = vr(O + 4*f)
        a(f"v_mfma_f32_16x16x32_bf16 {d}, {vr(VX + 4*f)}, {vr(PX)}, 0")
        a(f"v_mfma_f32_16x16x16_bf16 {d}, {vr(VM + 2*(f//2), 2)}, {vr(PM + 2*(f%2), 2)}, {d}")
    a(f"v_rcp_f32 v28, v{Lr}")
    for r in range(16): a(f"v_mul_f32 v{O+r}, v{O+r}, v28")
    for hw in range(2):
        r = 52 + 4*hw
        for i in range(4): a(f"v_cvt_pk_bf16_f32 v{r+i}, v{O + 8*hw + i}, v{O + 8*hw + 4 + i}")
        a(f"ds_write_b128 v12, {vr(r)} offset:{hw*1024}")
    a(f"s_lshl_b32 s48, s48, 15\n s_add_u32 s48, s48, {CP}")
    a("s_waitcnt lgkmcnt(0)\n s_barrier")
    stage2(a, "v6", "v7", "s48", 32, 64, 24)
    worker_bot(a, "C")

def make_sel(a, b, t):
    a(f"v_and_b32 v{t}, 1, v2\n v_lshlrev_b32 v{t}, 4, v{t}\n v_mov_b32 v{t+1}, 0x3f80\n v_lshlrev_b32 v{t}, v{t}, v{t+1}")
    a(f"v_bfe_u32 v{t+1}, v2, 1, 2")
    for p in range(4):
        a(f"v_cmp_eq_u32 vcc, {p}, v{t+1}\n v_cndmask_b32 v{b+p}, 0, v{t}, vcc")

def role_R(a, opt):
    a("L_R:")
    a("s_sub_u32 s4, s4, 188\n s_lshr_b32 s5, s4, 5\n s_and_b32 s4, s4, 31")
    init_arrive(a, "v24")
    srd(a, 20, P_OUT, 0x200000); srd(a, 24, P_GW, 1024)
    make_sel(a, 16, 24)
    a(f"""
    v_lshlrev_b32 v3, 2, v0
    v_lshlrev_b32 v0, 4, v0
    buffer_load_dwordx4 v[8:11], v0, {W1}, 0 offen
    v_lshlrev_b32 v4, 15, v1
    v_lshl_add_u32 v4, v2, 4, v4
    s_lshl_b32 s7, s4, 10
    s_lshl_b32 s43, s3, 8
    s_add_u32 s7, s7, s43
    v_add_u32 v4, s7, v4
    v_lshlrev_b32 v5, 3, v1
    v_lshl_add_u32 v5, v2, 4, v5
    v_add_u32 v5, s7, v5
    s_lshl_b32 s7, s5, 7
    s_add_u32 s54, s7, {FLG_FC}
    s_add_u32 s55, s7, {FLG_FF}
    s_mov_b32 s6, 0
    s_mov_b32 s58, {f32bits(-math.log2(math.e))}
    """)
    for r in range(76, 80): a(f"v_mov_b32 v{r}, 0")
    wait_scalar(a, DBG, D_INIT, 256, "s7", "v24", 8)
    a(f"""
    R_loop:
    s_lshl_b32 s43, s6, 1
    s_add_u32 s43, s43, s5
    s_add_u32 s57, s6, 1
    s_lshl_b32 s44, s43, 15
    s_lshl_b32 s7, s4, 10
    s_add_u32 s7, s7, s44
    buffer_load_dwordx4 v[12:15], v0, {X}, s7 offen
    """)
    wait_lanes(a, "v3", "s55", 14, "s57", "v24", 8)
    a(f"s_lshl_b32 s45, s43, 19\n s_add_u32 s45, s45, {FP}")
    for u in range(4):
        if u == 3: a("s_mov_b32 exec_hi, 0")
        a(f"buffer_load_dwordx4 {vr(64 + 4*u)}, v4, {WS}, s45 offen sc1")
        if u < 3: a("s_add_u32 s45, s45, 0x20000")
    a("s_mov_b64 exec, -1")
    a("v_mov_b32 v24, 0")
    for p in range(4): a(f"v_dot2c_f32_bf16 v24, v{12+p}, v{8+p}")
    for k in (8, 4, 2, 1): a(f"v_add_f32_dpp v24, v24, v24 row_ror:{k} row_mask:0xf bank_mask:0xf")
    a("""
    v_mov_b32 v25, v24
    v_permlane16_swap_b32 v24, v25
    v_add_f32 v24, v24, v25
    v_mov_b32 v25, v24
    v_permlane32_swap_b32 v24, v25
    v_add_f32 v24, v24, v25
    v_mul_f32 v24, s58, v24
    v_exp_f32 v24, v24
    v_add_f32 v24, 1.0, v24
    v_rcp_f32 v6, v24
    v_sub_f32 v7, 1.0, v6
    s_waitcnt vmcnt(0)
    """)
    for u in range(4): a(f"v_mfma_f32_16x16x32_bf16 v[28:31], v[16:19], {vr(64 + 4*u)}, {'v[28:31]' if u else '0'}")
    for i in range(4): a(f"v_mul_f32 v{28+i}, v{28+i}, v7")
    wait_lanes(a, "v3", "s54", 32, "s57", "v24", 1)
    a(f"s_lshl_b32 s45, s43, 20\n s_add_u32 s45, s45, {CP}")
    tok = []
    for u in range(8):
        tok.append(a.vm(f"buffer_load_dwordx4 {vr(32 + 4*u)}, v4, {WS}, s45 offen sc1"))
        if u < 7: a("s_add_u32 s45, s45, 0x20000")
    for u in range(8):
        a.wait_vm(tok[u])
        a(f"v_mfma_f32_16x16x32_bf16 v[24:27], v[16:19], {vr(32 + 4*u)}, {'v[24:27]' if u else '0'}")
    for i in range(4): a(f"v_fma_f32 v{24+i}, v{24+i}, v6, v{28+i}")
    a(f"""
    v_cvt_pk_bf16_f32 v24, v24, v25
    v_cvt_pk_bf16_f32 v25, v26, v27
    s_mov_b32 exec_hi, 0
    buffer_store_dwordx2 v[24:25], v5, {OUT}, s44 offen
    s_mov_b64 exec, -1
    s_add_u32 s6, s6, 1
    s_cmp_lt_u32 s6, 32
    """)
    a.fence()
    a("s_cbranch_scc1 R_loop\n s_waitcnt vmcnt(0)\n s_endpgm")

def build(opt):
    from chain import role_chain
    a = Asm()
    prologue(a, opt)
    role_R(a, opt)
    role_chain(a, opt)
    role_B(a, opt)
    role_C(a, opt)
    role_F(a, opt)
    hdr = open("cdna_kernels/%s.s.ref" % NAME).read().split("; Override")[0] if opt.get("hdr", True) else ""
    k = NAME + "_kernel"
    return f"""{hdr}; @launch grid=(256,1,1) block=(256,1,1) lds={LDS_BYTES}
.amdgcn_target "amdgcn-amd-amdhsa--gfx950"
.text
.globl {k}
.p2align 8
.type {k},@function
{k}:
{a.text()}.section .rodata,"a"
.p2align 6
.amdhsa_kernel {k}
  .amdhsa_next_free_vgpr 512
  .amdhsa_next_free_sgpr 102
  .amdhsa_accum_offset 256
  .amdhsa_group_segment_fixed_size 0
  .amdhsa_kernarg_size 120
  .amdhsa_user_sgpr_count 2
  .amdhsa_user_sgpr_kernarg_segment_ptr 1
  .amdhsa_system_sgpr_workgroup_id_x 1
.end_amdhsa_kernel
"""

if __name__ == "__main__":
    opt = {}
    out = "cdna_kernels/%s.s" % NAME
    for arg in sys.argv[1:]:
        k, _, v = arg.partition("=")
        if k == "out": out = v
        else: opt[k] = int(v) if v else 1
    open(out, "w").write(build(opt))
    print("wrote", out)
```

```python
from asmlib2 import *
import gen as G

vLin, vPub, vT, vMem0, vKx, vTch, vIdx, vWq, vQw, vQr, vJunk, vOw, vOr, vPst = \
    ["v%d" % i for i in (0, 1, 2, 3, 4, 5, 6, 7, 8, 9, 10, 11, 12, 13)]
FB = 14
SEL, ONES = 16, 20
MEMA, ACQ, ACK, ACV, KX, VXR = 24, 56, 64, 72, 80, 120
QBUF = [80, 88, 96, 104, 112]
def wq_reg(j): return QBUF[j % 5] if j < 8 else 128 + (j - 8) * 8
WB = {0: 24, 1: 32, 2: 80, 3: 88, 4: 96, 5: 104, 14: 80, 15: 88}
def wo_reg(j): return WB[j] if j in WB else 192 + (j - 6) * 8
WA = [40, 44, 48, 52, 68, 72, 76, 60]
QS = 1280
SM = "v_smfmac_f32_16x16x64_bf16"
MF = "v_mfma_f32_16x16x32_bf16"
MF16 = "v_mfma_f32_16x16x16_bf16"

def tile_read(a, b, off):
    a.ds(f"ds_read_b128 {vr(b)}, {vWq} offset:{off}")
    return a.ds(f"ds_read_b128 {vr(b+4)}, {vWq} offset:{off + 1024}")
def wo_read(a, j): return tile_read(a, WB[j], 16384 + (j if j < 6 else j - 8) * 2048)
def wq_read(a, j): return tile_read(a, QBUF[j % 5], j * 2048)

def zero(a, lo, hi, val="0"):
    for r in range(lo, hi, 2): a(f"v_mov_b64 {vr(r, 2)}, {val}")

def idle_prep(a, mid=None):
    for j in range(5):
        wq_read(a, j)
        zero(a, ACQ + 4*j, ACQ + 4*j + 4)
    zero(a, ACQ + 20, ACQ + 24)
    for u in range(1, 4): a(f"v_add_u32 v{MEMA + 16 + 4*u}, s{80+u}, {vLin}")

def busy(a, n):
    for _ in range(n): a(f"v_mov_b32 {vT}, 0\n s_nop 2")

def startup(a, opt):
    WS, DBG = G.WS, G.DBG
    REP = opt.get("rep", 1)
    a("L_chain:")
    G.srd(a, 20, G.P_MEM0, 8192); G.srd(a, 24, G.P_WQ, 0x400000); G.srd(a, 28, G.P_WK, 0x400000)
    G.srd(a, 32, G.P_WV, 0x400000); G.srd(a, 36, G.P_WO, 0x400000)
    a(f"""
    v_and_b32 v24, 1, v2
    v_lshrrev_b32 v25, 2, v2
    v_and_b32 v26, 3, v2
    v_lshrrev_b32 v28, 1, v2
    v_and_b32 v29, 1, v1
    v_lshrrev_b32 v15, 1, v1
    ; weight voffsets: rows 128w + 32(g/2) + 8(g%2), column bytes 256h + 16n
    v_lshlrev_b32 v27, 18, v15
    v_lshl_add_u32 v27, v29, 16, v27
    v_lshl_add_u32 v27, v2, 4, v27
    s_lshl_b32 s90, s4, 8
    s_lshl_b32 s91, s3, 20
    s_add_u32 s90, s90, s91
    v_add_u32 v30, s90, v27
    v_add_u32 v31, 8192, v30
    ; LDS scatter base: (n/4)*WSTR + ((w - n/4)%4)*4096 + g*256 + (n%4)*64
    s_mov_b32 s90, {G.WSTR}
    v_mul_lo_u32 v14, v25, s90
    v_sub_u32 v27, s3, v25
    v_and_b32 v27, 3, v27
    v_lshl_add_u32 v14, v27, 12, v14
    v_lshl_add_u32 v14, v1, 8, v14
    v_lshl_add_u32 v14, v26, 6, v14
    ; Wo voffset: rows 16(g/2)+4(g%2), column bytes 256w + 16n, head base
    v_lshlrev_b32 v27, 14, v15
    v_lshl_add_u32 v27, v29, 12, v27
    v_lshl_add_u32 v27, v2, 4, v27
    s_lshl_b32 s90, s4, 17
    s_lshl_b32 s91, s3, 8
    s_add_u32 s90, s90, s91
    v_add_u32 {vJunk}, s90, v27
    v_lshlrev_b32 {vTch}, 6, v0
    v_lshlrev_b32 v0, 4, v0
    s_mul_i32 s90, s3, {G.WSTR}
    v_add_u32 {vWq}, s90, {vLin}
    """)
    def rest():
        G.make_sel(a, SEL, 20)
        a(f"""
        v_mov_b32 v20, 0x4444
        v_mov_b32 v21, 0xeeee
        v_cmp_eq_u32 vcc, 0, v24
        v_cndmask_b32 {vIdx}, v21, v20, vcc
        s_lshl_b32 s7, s3, 10
        s_add_u32 s90, s7, {G.L_MX}
        v_add_u32 {vMem0}, s90, {vLin}
        v_add_u32 {vKx}, {G.L_KX}, {vLin}
        ; q write: QK + w*QS + (n/4)*128 + 2g*16 + (n%4)*4
        v_lshlrev_b32 {vQw}, 7, v25
        v_lshl_add_u32 {vQw}, v1, 5, {vQw}
        v_lshl_add_u32 {vQw}, v26, 2, {vQw}
        s_mul_i32 s90, s3, {QS}
        s_add_u32 s90, s90, {G.L_QK}
        v_add_u32 {vQw}, s90, {vQw}
        ; v27 = g*128 + (2(n/4) + n%2)*16 ; lanes n%4 < 2 carry keys, the others queries
        v_lshl_add_u32 v27, v25, 1, v24
        v_lshlrev_b32 v27, 4, v27
        v_lshl_add_u32 v27, v1, 7, v27
        v_cmp_gt_u32 vcc, 2, v26
        v_mov_b32 v20, {G.L_QK}
        v_mov_b32 v21, {G.L_QK + 640}
        v_cndmask_b32 v20, v20, v21, vcc
        v_add_u32 {vQr}, v20, v27
        s_lshl_b32 s90, s3, 9
        s_add_u32 s90, s90, {G.L_OB}
        v_add_u32 v20, s90, v27
        v_add_u32 v21, 2048, v20
        v_cndmask_b32 {vOw}, v20, v21, vcc
        ; o read: OB + (2g + n%2)*128 + (n/2)*16
        v_lshl_add_u32 v27, v1, 1, v24
        v_lshlrev_b32 v27, 7, v27
        v_lshl_add_u32 v27, v28, 4, v27
        v_add_u32 {vOr}, {G.L_OB}, v27
        ; partial store: (8w + 2(n/4) + g/2)*8192 + (g%2)*2048 + 64h + 16(n%4)
        v_lshl_add_u32 v27, v25, 1, v15
        v_lshlrev_b32 v27, 13, v27
        v_lshl_add_u32 v27, v29, 11, v27
        v_lshl_add_u32 v27, v26, 4, v27
        s_lshl_b32 s90, s3, 16
        s_lshl_b32 s91, s4, 6
        s_add_u32 s90, s90, s91
        v_add_u32 {vPst}, s90, v27
        ; mem0 voffset: (n/2)*1024 + 2*(128w + 32g + 16(n%2))
        v_lshlrev_b32 v25, 10, v28
        v_lshl_add_u32 v25, v1, 6, v25
        v_lshl_add_u32 v25, v24, 5, v25
        s_lshl_b32 s91, s3, 8
        v_add_u32 v25, s91, v25
        ; publish: (w/2)*4096 + h*128 + (w%2)*64 + g*32 + n*8   (lanes g<2, n<4)
        s_lshr_b32 s90, s3, 1
        s_lshl_b32 s90, s90, 12
        s_lshl_b32 s91, s4, 7
        s_add_u32 s90, s90, s91
        s_and_b32 s91, s3, 1
        s_lshl_b32 s91, s91, 6
        s_add_u32 s90, s90, s91
        v_lshlrev_b32 v27, 5, v29
        v_lshl_add_u32 v27, v26, 3, v27
        v_lshrrev_b32 v20, 2, v2
        v_lshl_add_u32 v20, v15, 2, v20
        v_lshl_add_u32 v27, v20, 13, v27
        v_add_u32 {vPub}, s90, v27
        s_mov_b32 s58, {hex({1: 0x000f000f, 2: 0x00ff00ff}.get(REP, 0xffffffff))}
        s_mov_b32 s59, {-1 if REP == 8 else 0}
        s_cmp_lt_u32 s3, 2
        s_cselect_b64 s[88:89], -1, 0
        s_and_b32 s86, s4, {REP - 1}
        s_lshl_b32 s86, s86, 13
        s_lshl_b32 s7, s3, 10
        s_add_u32 s86, s86, s7
        s_lshl_b32 s44, s4, 2
        s_add_u32 s44, s44, s3
        s_lshl_b32 s44, s44, 11
        s_add_u32 s44, s44, {G.PART}
        s_lshl_b32 s55, s4, 7
        s_add_u32 s55, s55, {G.FLG_FB}
        """)
        for u in range(1, 4):
            a(f"s_add_u32 s7, s3, {u}\n s_and_b32 s7, s7, 3\n s_lshl_b32 s7, s7, 10\n s_add_u32 s{80+u}, s7, {G.L_MX}")
        zero(a, 20, 24, "-1")
        a(f"s_add_u32 s7, s44, 0x40000")
        for so in ("s44", "s7"):
            for o in (0, 1024): a(f"buffer_store_dwordx4 v[20:23], {vLin}, {WS}, {so} offen offset:{o} sc1")
        a("s_mov_b64 exec, s[58:59]")
        for sl in range(4):
            a(f"s_mov_b32 s7, {G.MEMB + sl*65536}\n buffer_store_dwordx2 v[20:21], {vPub}, {WS}, s7 offen sc1")
        a("s_mov_b64 exec, -1")
    rest()
    def job(srdn, done):
        return dict(kind='lds', srd=srdn, stride=8192, v0="v30", v1="v31", vdst="v14",
                    row=lambda u: 64*((u//4) % 2) + 16*(u % 2) + 4*(u//8) + 2*((u//2) % 2),
                    imm=lambda grp, c: (grp//2)*16384 + (c % 2)*2048 + (grp % 2)*1024 + (c//2)*16, done=done)
    k_done = G.lds_to_regs(a, vWq, lambda f: ar(4*f))
    jobs = [job(G.W2, lambda: (k_done(), G.init_arrive(a, "v27"))), job(G.W3, G.lds_to_regs(a, vWq, lambda f: ar(128 + 4*f))),
            job(G.W1, G.lds_to_regs(a, vWq, lambda f: vr(128 + 4*(f - 16)), 16)),
            dict(kind='lds', srd=G.W4, stride=1024, v0=vJunk, row=lambda u: 64*(u//8) + 32*((u//4) % 2) + 8*(u % 2) + 2*((u//2) % 2),
                 vdst=vWq, imm=lambda grp, c: 16384 + (min(c, 3)*2 + grp//2)*2048 + (grp % 2)*1024,
                 regc=(3, 4, 5, 6), dst=lambda u, T: wo_reg(T*2 + u//8) + u % 8)]
    G.load_stream(a, jobs, tmp=64, depth=8, out=32)
    G.tl(a, opt, 4, "v32")
    for r in range(4): a(f"v_mov_b32 v{ONES+r}, 0x3f803f80")
    a("v_mov_b32 v32, v25")
    for hf in range(2):
        for c in range(2):
            a(f"buffer_load_dwordx2 {vr(MEMA + 16*hf + 2*c, 2)}, v32, {G.OUT}, 0 offen offset:{8*hf + 16*c}")
    G.wait_scalar(a, DBG, G.D_INIT, 256, "s7", vT, 2)
    G.wait_scalar(a, DBG, 0, 0, "s43", vT, 2)
    G.wait_scalar(a, WS, "s55", 1, "s84", vT, 2)
    a(f"""
    buffer_load_dwordx2 {vr(FB, 2)}, off, {WS}, s55 sc1
    s_lshl_b32 s52, s4, 14
    s_add_u32 s52, s52, {G.KXV}
    s_lshl_b32 s7, s3, 11
    s_add_u32 s52, s52, s7
    s_add_u32 m0, s7, {G.L_KX}
    s_lshl_b32 s53, s4, 12
    s_add_u32 s53, s53, {G.KVM}
    s_lshl_b32 s7, s3, 10
    s_add_u32 s53, s53, s7
    buffer_load_dwordx4 {vLin}, {WS}, s52 offen sc1 lds
    buffer_load_dwordx4 {vLin}, {WS}, s52 offen offset:1024 sc1 lds
    s_add_u32 s7, s52, 8192
    buffer_load_dwordx4 {vr(VXR)}, {vLin}, {WS}, s7 offen sc1
    buffer_load_dwordx4 {vr(VXR+4)}, {vLin}, {WS}, s7 offen offset:1024 sc1
    s_waitcnt lgkmcnt(0)
    s_barrier
    """)
    G.tl(a, opt, 2, "v56")
    idle_prep(a)
    zero(a, 36, 40, "-1")
    a(f"""
    s_lshl_b32 s50, s4, 2
    s_add_u32 s50, s50, s3
    s_lshl_b32 s50, s50, 10
    s_add_u32 s50, s50, {G.SCR}
    buffer_store_dwordx4 {vr(MEMA + 16)}, {vLin}, {WS}, s50 offen sc1
    s_mov_b32 s54, 0x40000
    s_mov_b32 s45, {G.PART}
    s_mov_b32 s46, {G.PART + 4096}
    s_mov_b32 s47, s44
    s_xor_b32 s95, s44, s54
    s_mov_b32 s48, {G.MEMB}
    s_mov_b32 s51, {G.MEMB + 3*65536}
    s_waitcnt vmcnt(0) lgkmcnt(0)
    v_readfirstlane_b32 s84, v{FB}
    v_readfirstlane_b32 s85, v{FB+1}
    s_mov_b32 s6, -1
    s_nop 2
    """)
    next_seg(a, "C0")
    a("s_mov_b32 s6, 0")
    if opt.get("prof"):
        for k in range(20, 32): a(f"s_mov_b32 s{k}, 0")
    a.fence()
    a("s_cmp_lt_u32 s43, 32\n s_cbranch_scc1 CS_loop\n s_branch CF_loop")
    fb_wait(a, "C0")

def next_seg(a, P):
    a(f"""
    s_add_u32 s90, s6, 2
    s_cmp_lt_u32 s90, 64
    s_cselect_b32 s7, 0x80000, 0
    s_add_u32 s52, s52, s7
    s_min_u32 s90, s90, 63
    s_lshr_b32 s91, s90, 1
    s_bitcmp1_b32 s90, 0
    s_cselect_b32 s7, s85, s84
    s_cmp_gt_u32 s7, s91
    s_cbranch_scc0 {P}_fbwait
    {P}_fbok:
    s_add_u32 s87, s52, 8192
    s_lshl_b32 s7, s3, 11
    s_add_u32 s56, s52, s7
    s_min_u32 s7, s84, s85
    s_add_u32 s91, s91, 3
    s_min_u32 s91, s91, 31
    s_cmp_gt_u32 s7, s91
    s_cselect_b64 s[98:99], 0, 1
    """)

def fb_wait(a, P):
    a(f"{P}_fbwait:")
    a("s_and_b32 s92, s90, 1\n s_lshl_b32 s92, s92, 2\n s_add_u32 s92, s92, s55\n s_add_u32 s93, s91, 1")
    G.wait_scalar(a, G.WS, "s92", "s93", "s7", vT, 1)
    a(f"s_branch {P}_fbok")

def loop(a, opt, P, st):
    WS = G.WS
    ld = "nt" if (opt.get("nt") and st == "") else "sc1"
    prof = opt.get("prof")
    cnt = [0]
    sel = opt.get("stamps")
    dflt = ("top", "end", "5", "23", "seq", "s11", "pv", "wo", "h1", "h2")
    def stamp(k):
        if prof and (k in ("top", "end") or str(k) in (sel or dflt)):
            i = cnt[0]; cnt[0] += 1
            assert i < 10
            a(f"s_mem{'real' if opt.get('trace') else ''}time s[{60+2*i}:{61+2*i}]")
    def delay(n):
        while n > 0:
            a(f"s_nop {min(n, 16) - 1}"); n -= 16
    LS = MEMA + 16
    a(f"{P}_loop:")
    stamp("top")
    seq = []
    for tau in range(4):
        for T in range(2): seq += [("q", tau, T), ("k", tau, T), ("v", tau, T)]
    seq += [(m, tau, T) for m in "qkv" for tau in range(4, 8) for T in range(2)]
    tk = {}
    fill = {i: [] for i in range(len(seq))}
    full = opt.get("rep", 1) == 8
    mask_on = "" if full else "s_mov_b64 exec, s[58:59]\n"
    mask_off = "" if full else "\n s_mov_b64 exec, -1"
    def F(i, x): fill[i].append(x if callable(x) else (lambda: a(x)))
    def D(i, key, text): F(i, lambda: tk.__setitem__(key, a.ds(text)))
    def W(i, key): F(i, lambda: a.wait_ds(tk[key]))
    def mem_rd(i, tau): D(i, ("m", tau), f"ds_read_b128 {vr(MEMA + 4*tau)}, v{LS + 4*(tau % 4)} offset:{4096*(tau//4)}")
    def bar(i):
        W(i, "wr"); F(i, lambda: stamp("prebar")); F(i, "s_barrier"); F(i, lambda: stamp("postbar"))
    b1, lc, b3, b4 = opt.get("b1", 1), opt.get("lc", 15), opt.get("b3", 42), opt.get("b4", 2)
    b2 = lc + opt.get("lb", 6)
    F(opt.get("lg", 0), f"buffer_load_dwordx4 {vr(LS)}, {vLin}, {WS}, s50 offen {ld}")
    if not opt.get("noclr"):
        F(0, f"buffer_store_dwordx4 v[36:39], {vLin}, {WS}, s95 offen {st}")
        F(1, f"buffer_store_dwordx4 v[36:39], {vLin}, {WS}, s95 offen offset:1024 {st}")
    bar(b1); mem_rd(b1, 1); mem_rd(b1+1, 2); mem_rd(b1+1, 3)
    W(5, ("m", 1))
    for k in range(6):
        j = 5 + k // 2
        D(6 + k if k < 5 else 10, ("w", k), f"ds_read_b128 {vr(QBUF[j % 5] + 4*(k % 2))}, {vWq} offset:{j*2048 + 1024*(k % 2)}")
    W(11, ("m", 3)); W(14, ("w", 5))
    F(lc, f"s_waitcnt vmcnt({2 if opt.get('lg', 0) == 0 and not opt.get('noclr') else 0})")
    D(lc, "wr", f"ds_write_b128 {vMem0}, {vr(LS)} offset:4096")
    F(lc+1, f"v_max3_u32 {vT}, v{LS}, v{LS+1}, v{LS+2}")
    F(lc+2, f"v_max_u32 {vT}, {vT}, v{LS+3}")
    F(lc+3, f"v_cmp_eq_u32 vcc, -1, {'v0' if opt.get('free') else vT}")
    F(b2-1, f"s_cbranch_vccnz {P}_lretry\n{P}_lok:")
    bar(b2); mem_rd(b2, 5); mem_rd(b2+1, 6); mem_rd(b2+1, 7)
    assert b2 + 1 <= 25
    W(25, ("m", 5)); W(27, ("m", 7))
    if not opt.get("notouch"): F(b2+2, f"buffer_load_dword {vJunk}, {vTch}, {WS}, s56 offen sc1")
    for k, f in enumerate((6, 7, 0, 1, 2, 3, 4, 5)): D(max(b2, 21) + 2 + k, ("x", f), f"ds_read_b128 {vr(KX + 4*f)}, {vKx} offset:{f*1024}")
    F(37, f"s_waitcnt vmcnt({0 if opt.get('notouch') else 1})")
    F(38, f"s_mov_b64 exec, s[98:99]\n buffer_load_dwordx2 {vr(FB, 2)}, off, {WS}, s55 sc1\n s_mov_b64 exec, -1")
    F(39, "s_add_u32 s49, s48, s86\n s_add_u32 s50, s49, 0x1000")
    def add(r): return f"v_add_f32 v{r}, v{r}, v{r+1}"
    def fold(i, b, o0):
        for k, r in enumerate((b, b+2, b+4, b+6)): F(i + k, add(r))
        F(i + 3, f"v_cvt_pk_bf16_f32 v{b}, v{b}, v{b+4}")
        F(i + 4, f"v_cvt_pk_bf16_f32 v{b+1}, v{b+2}, v{b+6}")
        D(i + 4, "wr", f"ds_write2_b32 {vQw}, v{b}, v{b+1} offset0:{o0} offset1:{o0+4}")
    fold(32, ACQ, 0)
    QB = [24, 28, 32, 36]; KB = [112, 116, 56, 60]
    bar(b3)
    for t in range(4): D(b3 + (t + 1) // 2, ("q", t), f"ds_read_b128 {vr(QB[t])}, {vQr} offset:{t*QS}")
    fold(40, ACK, 160)
    PX, PM, O, Lr = 72, 68, 112, 76
    F(45, f"v_mov_b32 v{PM+1}, 0")
    F(46, f"v_mov_b32 v{PM+2}, 0")
    W(47, ("q", 3))
    def wo_rd(j): tk[("o", j)] = wo_read(a, j)
    a.drop = tuple(opt.get("drop", ()))
    tk["wr"] = a.ds(f"ds_write_b128 {vMem0}, {vr(MEMA)}")
    for i, (m, tau, T) in enumerate(seq):
        j = 2*tau + T
        B = {"q": vr(wq_reg(j), 8), "k": ar(j*8, 8), "v": ar(128 + j*8, 8)}[m]
        a(f"{SM} {vr({'q': ACQ, 'k': ACK, 'v': ACV}[m] + 4*T)}, {vr(MEMA + 4*tau)}, {B}, {vIdx}")
        for f in fill[i]: f()
        stamp(i)
    stamp("seq")
    X0, X1, M = 40, 44, 48
    t0 = 52
    fill = {i: [] for i in range(12)}
    bar(b4)
    for t in range(4): D(b4 + (t + 1) // 2, ("k", t), f"ds_read_b128 {vr(KB[t])}, {vQr} offset:{t*QS}")
    F(0, add(72)); F(1, add(74)); F(1, add(76)); F(3, add(78))
    F(4, "v_cvt_pk_bf16_f32 v66, v72, v74")
    F(5, "v_cvt_pk_bf16_f32 v67, v76, v78")
    F(5, lambda: wo_rd(2))
    if not opt.get("nokvm"): F(6, f"buffer_store_dwordx4 v[64:67], {vLin}, {WS}, s53 offen sc1")
    F(7, f"v_max3_f32 v{t0}, v{X0}, v{X0+1}, v{X0+2}")
    W(7, ("k", 3))
    F(8, lambda: wo_rd(3)); F(9, lambda: wo_rd(4))
    F(10, f"v_max3_f32 v{t0+1}, v{X0+3}, v{X1}, v{X1+1}\n v_max3_f32 v{t0}, v{t0}, v{X1+2}, v{X1+3}")
    F(11, lambda: wo_rd(5)); F(11, lambda: wo_rd(0))
    n = 0
    for d, A, B in ((X0, lambda t: KX + 4*t, QB), (X1, lambda t: KX + 16 + 4*t, QB), (M, lambda t: KB[t], KB)):
        for t in range(4):
            a(f"{MF} {vr(d)}, {vr(A(t))}, {vr(B[t])}, {vr(d) if t else '0'}")
            for f in fill[n]: f()
            stamp("s%d" % n)
            n += 1
    a(f"s_cmp_eq_u32 s6, 63\n s_cbranch_scc1 L_chain_done")
    if not opt.get("nopf"): a(f"buffer_load_dwordx4 {vLin}, {WS}, s52 offen sc1 lds")
    a(f"""
    v_max3_f32 v{t0+1}, v{t0+1}, v{M}, v{M+1}
    v_max_f32 v{t0+2}, v{t0}, v{t0+1}
    v_max_f32 v{t0+3}, v{t0}, v{t0+1}
    v_mov_b64 v[60:61], 0
    ds_read_b128 v[32:35], {vWq} offset:{16384 + 2048}
    v_permlane16_swap_b32 v{t0+2}, v{t0+3}
    v_max_f32 v{t0}, v{t0+2}, v{t0+3}
    v_max_f32 v{t0+1}, v{t0+2}, v{t0+3}
    v_mov_b64 v[62:63], 0
    ds_read_b128 v[36:39], {vWq} offset:{16384 + 3072}
    v_permlane32_swap_b32 v{t0}, v{t0+1}
    v_max_f32 v{t0}, v{t0}, v{t0+1}
    v_mul_f32 v{t0}, s42, v{t0}
    """)
    stamp("mx")
    regs = [X0, X0+1, X0+2, X0+3, X1, X1+1, X1+2, X1+3, M, M+1]
    for r in regs: a(f"v_fma_f32 v{r}, v{r}, s42, -v{t0}")
    for k, r in enumerate(regs[:9]):
        a(f"v_exp_f32 v{r}, v{r}")
        if k >= 2 and k % 2 == 0: a(f"v_cvt_pk_bf16_f32 v{PX + k//2 - 1}, v{regs[k-2]}, v{regs[k-1]}")
    stamp("pv")
    a(f"v_exp_f32 v{M+1}, v{M+1}")
    a(f"{MF} {vr(Lr)}, {vr(ONES)}, {vr(PX)}, 0")
    a(f"v_cvt_pk_bf16_f32 v{PM}, v{M}, v{M+1}\n v_cvt_pk_bf16_f32 v{PM+3}, v{M}, v{M+1}")
    for T in range(2):
        a(f"{MF} {vr(O + 4*T)}, {vr(SEL if opt.get('trace') else VXR + 4*T)}, {vr(PX)}, 0")
        zero(a, 40 + 4*T, 44 + 4*T)
    a(f"{MF16} {vr(Lr)}, {vr(ONES, 2)}, {vr(PM, 2)}, {vr(Lr)}")
    zero(a, 48, 52)
    for T in range(2):
        a(f"{MF16} {vr(O + 4*T)}, v[66:67], {vr(PM + 2*T, 2)}, {vr(O + 4*T)}")
        a(f"v_mov_b64 {vr(52 + 2*T, 2)}, 0")
    stamp("p1")
    a(f"v_rcp_f32 v56, v{Lr}")
    if not opt.get("nopf"): a(f"buffer_load_dwordx4 {vLin}, {WS}, s52 offen offset:1024 sc1 lds")
    for r in range(0, 8, 2): a(f"v_pk_mul_f32 {vr(O+r, 2)}, {vr(O+r, 2)}, v[56:57] op_sel_hi:[1,0]")
    for i in range(4): a(f"v_cvt_pk_bf16_f32 v{64+i}, v{O+i}, v{O+4+i}")
    stamp("p2")
    a(f"ds_write_b128 {vOw}, v[64:67]")
    if not opt.get("nopf"): a(f"buffer_load_dwordx4 {vr(VXR)}, {vLin}, {WS}, s87 offen sc1")
    zero(a, 68, 80)
    busy(a, opt.get("bo1", 0))
    stamp("p3")
    a("s_waitcnt lgkmcnt(0)\n s_barrier")
    stamp("p4")
    OA = 112
    to = [a.ds(f"ds_read_b128 {vr(OA + 4*t)}, {vOr} offset:{t*1024}") for t in range(2)]
    if not opt.get("nopf"): a(f"buffer_load_dwordx4 {vr(VXR+4)}, {vLin}, {WS}, s87 offen offset:1024 sc1")
    busy(a, opt.get("bo2", 0))
    stamp("wo")
    PK = [64, 56]
    inbox = f"buffer_load_dwordx4 v[28:31], {vLin}, {WS}, s47 offen {ld}\n buffer_load_dwordx4 v[32:35], {vLin}, {WS}, s47 offen offset:1024 {ld}"
    def wf(T, h): return f"v_add_f32 v{WA[T]+2*h}, v{WA[T]+2*h}, v{WA[T]+1+2*h}"
    def wpk(T, h):
        return f"v_cvt_pk_bf16_f32 v{PK[T//4] + (T % 4)//2 + 2*h}, v{WA[T]+2*h}, v{WA[T+1]+2*h}"
    def wst(hf): return f"buffer_store_dwordx4 {vr(PK[hf])}, {vPst}, {WS}, s{45+hf} offen {st}"
    post = {3: [wf(0, 0)], 4: [wf(0, 1)], 5: [wf(1, 0), wf(1, 1)], 6: [wpk(0, 0), wpk(0, 1)],
            7: [wf(2, 0)], 8: [wf(2, 1)], 9: [wf(3, 0), wf(3, 1), wpk(2, 0), wpk(2, 1), wst(0)],
            11: [wf(4, 0)], 12: [wf(4, 1)], 13: [wf(5, 0), wf(5, 1)], 14: [wpk(4, 0), wpk(4, 1)], 15: [wf(6, 0), wf(6, 1)]}
    for j in range(16):
        T, t = j // 2, j % 2
        if T == 0: a.wait_ds(to[t])
        if j == 14: a.wait_ds(tk[("o", 15)])
        a(f"{SM} {vr(WA[T])}, {vr(OA + 4*t)}, {vr(wo_reg(j), 8)}, {vIdx}")
        if j in (2, 3): wo_rd(j + 12)
        for x in post.get(j, []): a(x)
        stamp("w%d" % j)
    if opt.get("ein", 0):
        a(f"s_mov_b64 exec, s[88:89]\n {inbox}\n s_mov_b64 exec, -1")
    for x in (wf(7, 0), wf(7, 1), wpk(6, 0), wpk(6, 1), wst(1)): a(x)
    a.drop = ()
    stamp("h1")
    ein = opt.get("ein", 0)
    c1, c2 = opt.get("c1", 2), opt.get("c2", 2)
    free = opt.get("free")
    RD = LS
    work = [lambda: zero(a, 28, 36, "-1")]
    for j in range(5): work.append(lambda j=j: (wq_read(a, j), zero(a, ACQ + 4*j, ACQ + 4*j + 4)))
    work.append(lambda: (zero(a, ACQ + 20, ACQ + 24), zero(a, 24, 28, "-1")))
    work.append(lambda: (zero(a, 36, 40, "-1"), [a(f"v_add_u32 v{MEMA + 16 + 4*u}, s{80+u}, {vLin}") for u in range(1, 4)]))
    pe, pl = opt.get("pe", 0b100001001), opt.get("pl", 0b100001000)
    for k in range(9):
        e, l = pe >> k & 1, pl >> k & 1
        if e and l: a(inbox)
        elif e: a(f"s_mov_b64 exec, s[88:89]\n {inbox}\n s_mov_b64 exec, -1")
        elif l: a(f"s_not_b64 exec, s[88:89]\n {inbox}\n s_mov_b64 exec, -1")
        if k < 8: work[k]()
    a("s_mov_b32 s96, 0")
    a(f"{P}_r1:")
    if free == 1: a("s_waitcnt vmcnt(0)")
    for k in range(c1):
        a(f"""
        v_max3_u32 v45, v28, v29, v30
        v_max3_u32 v46, v31, v32, v33
        v_max3_u32 v45, v45, v34, v35
        v_max_u32 v45, v45, v46
        v_cmp_eq_u32 vcc, -1, {'v0' if free else 'v45'}
        {MF} {vr(RD)}, {vr(SEL)}, v[28:31], 0
        {MF} {vr(RD)}, {vr(SEL)}, v[32:35], {vr(RD)}
        s_cbranch_vccz {P}_r1ok
        """)
    a(f"s_mov_b64 exec, vcc\n {inbox}\n s_mov_b64 exec, -1")
    if prof: a("s_add_u32 s30, s30, 1")
    G.spin_tail(a, f"{P}_r1")
    a(f"{P}_r1ok:")
    stamp("r1")
    a("s_nop 5")
    for k in (4, 8):
        for r in range(RD, RD + 4): a(f"v_add_f32_dpp v{r}, v{r}, v{r} row_ror:{k} row_mask:0xf bank_mask:0xf")
    a(f"v_cvt_pk_bf16_f32 v{RD}, v{RD}, v{RD+1}\n v_cvt_pk_bf16_f32 v{RD+1}, v{RD+2}, v{RD+3}")
    a(f"{mask_on} buffer_store_dwordx2 {vr(RD, 2)}, {vPub}, {WS}, s48 offen {st}")
    stamp("h2")
    a(f"buffer_store_dwordx2 v[36:37], {vPub}, {WS}, s51 offen {st}{mask_off}")
    gath = f"buffer_load_dwordx4 v[24:27], {vLin}, {WS}, s49 offen {ld}"
    a(f"s_cmp_ge_u32 s3, 2\n s_cbranch_scc1 {P}_a2")
    busy(a, opt.get("ge", 4))
    a(f"{P}_a2:")
    busy(a, opt.get("gl", 0))
    a(gath)
    a(f"v_readfirstlane_b32 s84, v{FB}\n v_readfirstlane_b32 s85, v{FB+1}")
    next_seg(a, P)
    if opt.get("g2", 1): a(gath)
    a(f"""
    v_mov_b32 {vT}, 0
    s_add_u32 s6, s6, 1
    s_add_u32 s53, s53, 0x20000
    s_mov_b32 s96, 0
    s_mov_b32 s95, s47
    s_xor_b32 s45, s45, s54
    s_xor_b32 s46, s46, s54
    s_xor_b32 s47, s47, s54
    v_mov_b32 {vT}, 0
    s_mov_b32 s51, s48
    s_and_b32 s7, s6, 3
    s_lshl_b32 s7, s7, 16
    s_add_u32 s48, s7, {G.MEMB}
    s_waitcnt lgkmcnt(0)
    """)
    stamp("g1")
    a(f"{P}_r2:")
    if free == 1: a("s_waitcnt vmcnt(0)")
    for k in range(c2):
        a(f"v_max3_u32 {vT}, v24, v25, v26\n v_max_u32 {vT}, {vT}, v27\n v_cmp_eq_u32 vcc, -1, {'v0' if free else vT}")
        a(f"s_cbranch_vccz {P}_prof" if prof else f"s_cbranch_vccz {P}_loop")
    a(f"s_mov_b64 exec, vcc\n {gath}\n s_mov_b64 exec, -1")
    if prof: a("s_add_u32 s31, s31, 1")
    G.spin_tail(a, f"{P}_r2")
    if prof:
        a(f"{P}_prof:")
        stamp("end")
        a("s_waitcnt lgkmcnt(0)")
        if opt.get("trace"):
            assert cnt[0] <= 8
            a("s_mov_b32 m0, s6")
            for k in range(cnt[0]): a(f"v_writelane_b32 v{VXR+k}, s{60+2*k}, m0")
        else:
            a(f"s_cmp_lt_u32 s6, 5\n s_cbranch_scc1 {P}_loop")
            for k in range(cnt[0] - 1): a(f"s_sub_u32 s7, s{62+2*k}, s{60+2*k}\n s_add_u32 s{20+k}, s{20+k}, s7")
        a(f"s_branch {P}_loop")
    a(f"{P}_lretry:")
    a(f"s_mov_b64 exec, vcc\n buffer_load_dwordx4 {vr(LS)}, {vLin}, {WS}, s50 offen {ld}\n s_mov_b64 exec, -1\n s_waitcnt vmcnt(0)")
    if prof: a("s_add_u32 s29, s29, 1")
    a(f"v_max3_u32 {vT}, v{LS}, v{LS+1}, v{LS+2}\n v_max_u32 {vT}, {vT}, v{LS+3}\n v_cmp_eq_u32 vcc, -1, {vT}\n ds_write_b128 {vMem0}, {vr(LS)} offset:4096\n s_waitcnt lgkmcnt(0)\n s_cbranch_vccz {P}_lok")
    G.spin_tail(a, f"{P}_lretry")
    fb_wait(a, P)


def role_chain(a, opt):
    startup(a, opt)
    loop(a, opt, "CF", "")
    loop(a, opt, "CS", "sc1")
    a("L_chain_done:\n s_waitcnt vmcnt(0)")
    G.tl(a, opt, 3)
    if opt.get("trace"):
        a(f"s_lshl_b32 s7, s4, 2\n s_add_u32 s7, s7, s3\n s_lshl_b32 s7, s7, 11\n s_add_u32 s7, s7, {G.PROF + 0x40000}")
        a(f"buffer_store_dwordx4 {vr(VXR)}, {vLin}, {G.WS}, s7 offen sc1\n buffer_store_dwordx4 {vr(VXR+4)}, {vLin}, {G.WS}, s7 offen offset:1024 sc1")
    if opt.get("prof"):
        a(f"s_lshl_b32 s7, s4, 2\n s_add_u32 s7, s7, s3\n s_lshl_b32 s7, s7, 6\n s_add_u32 s7, s7, {G.PROF}\n s_mov_b64 exec, 1")
        for k in range(12):
            a(f"v_mov_b32 v24, s{20+k}\n buffer_store_dword v24, off, {G.WS}, s7 offset:{4*k} sc1")
    a("s_waitcnt vmcnt(0)\n s_endpgm")
```

```python
import sys, math, struct
from asmlib2 import *

NAME = "gated_mix__memory_aug_recurrent_mem_tr__glu_gated_reglu__prompt"

FLG_FB  = 0x0000
FLG_FC  = 0x2000
FLG_FF  = 0x2400
MEMB = 0x10000
SCR  = 0x50000
PART = 0x80000
KVM  = 0x100000
KXV  = 0x1000000
CP   = 0x3000000
FP   = 0x7000000
PROF = 0x9000000
QXG  = 0xA000000
D_CH, D_INIT, D_WK, D_ERR = 0, 64, 128, 192
WSTR = 32784
L_KX, L_MX, L_QK, L_OB, L_ROLE = 131200, 139392, 147584, 152704, 161792
XROW = 1040; XBUF = 32 * XROW
L_OX = 2 * XBUF; L_KM = L_OX + 8192; L_VM = L_KM + 2048
LDS_BYTES = 163840
SPIN = 1 << 17

X, WS, DBG, OUT, W1, W2, W3, W4 = ["s[%d:%d]" % (b, b + 3) for b in (8, 12, 16, 20, 24, 28, 32, 36)]
P_X, P_MEM0, P_WQ, P_WK, P_WV, P_WO, P_WG, P_WU, P_WD, P_GW, P_OUT, P_DBG, P_WS = 60, 62, 64, 66, 68, 70, 76, 78, 80, 82, 84, 86, 88

def f32bits(x): return struct.unpack("<I", struct.pack("<f", x))[0]
CSC = f32bits(128 ** -0.5 * math.log2(math.e))

def srd(a, base, ptr, size):
    a(f"s_mov_b32 s{base}, s{ptr}\n s_mov_b32 s{base+1}, s{ptr+1}\n s_mov_b32 s{base+2}, {size}\n s_mov_b32 s{base+3}, 0x20000")

def spin_tail(a, loop, sleep=0):
    if sleep: a(f"s_sleep {sleep}")
    a(f"s_add_u32 s96, s96, 1\n s_cmp_lt_u32 s96, {SPIN}\n s_cbranch_scc1 {loop}\n s_branch L_bail")

def wait_scalar(a, srdn, soff, need, dst, vt, sleep=1):
    lp = a.label("WS"); ok = a.label("WSOK")
    a(f"s_mov_b32 s96, 0\n{lp}:")
    a(f"buffer_load_dword {vt}, off, {srdn}, {soff} sc1\n s_waitcnt vmcnt(0)\n v_readfirstlane_b32 {dst}, {vt}")
    a(f"s_nop 3\n s_cmp_ge_u32 {dst}, {need}\n s_cbranch_scc1 {ok}")
    spin_tail(a, lp, sleep)
    a(f"{ok}:")

def wait_lanes(a, vaddr, soff, nl, need, vt, sleep=1):
    lp = a.label("WL"); ok = a.label("WLOK")
    a(f"s_mov_b32 s96, 0\n s_mov_b32 exec_lo, {hex((1 << nl) - 1)}\n s_mov_b32 exec_hi, 0\n{lp}:")
    a(f"buffer_load_dword {vt}, {vaddr}, {WS}, {soff} offen sc1\n s_waitcnt vmcnt(0)\n v_cmp_gt_u32 vcc, {need}, {vt}\n s_cbranch_vccz {ok}")
    spin_tail(a, lp, sleep)
    a(f"{ok}:\n s_mov_b64 exec, -1")

def flag_store(a, soff, sval, vt):
    a(f"v_mov_b32 {vt}, {sval}\n s_mov_b64 exec, 1\n buffer_store_dword {vt}, off, {WS}, {soff} sc1\n s_mov_b64 exec, -1")

TL = PROF + 0x10000
def tl(a, opt, k, vt="v24"):
    if not opt.get("tl"): return
    sk = a.label("TL")
    a(f"s_cmp_lg_u32 s3, 0\n s_cbranch_scc1 {sk}\n s_memrealtime s[100:101]\n s_waitcnt lgkmcnt(0)\n v_mov_b32 {vt}, s100")
    a(f"s_lshl_b32 s100, s2, 5\n s_add_u32 s100, s100, {TL}\n s_mov_b64 exec, 1\n buffer_store_dword {vt}, off, {WS}, s100 offset:{4*k} sc1")
    if k in (2, 3):
        a(f"s_memtime s[98:99]\n s_waitcnt lgkmcnt(0) vmcnt(0)\n v_mov_b32 {vt}, s98\n buffer_store_dword {vt}, off, {WS}, s100 offset:{4*(k+3)} sc1")
    a(f"s_mov_b64 exec, -1\n{sk}:")

def wp(a, opt, k):
    if not opt.get("wprof"): return
    a(f"s_memtime s[100:101]\n s_waitcnt lgkmcnt(0)\n s_sub_u32 s99, s100, s98\n s_mov_b32 s98, s100")
    if k is not None: a(f"s_add_u32 s{76+k}, s{76+k}, s99")
def wp_init(a, opt):
    if not opt.get("wprof"): return
    for k in range(8): a(f"s_mov_b32 s{76+k}, 0")
    wp(a, opt, None)
def wp_dump(a, opt):
    if not opt.get("wprof"): return
    a(f"s_lshl_b32 s7, s2, 2\n s_add_u32 s7, s7, s3\n s_lshl_b32 s7, s7, 5\n s_add_u32 s7, s7, {PROF + 0x20000}\n s_mov_b64 exec, 1")
    for k in range(8): a(f"v_mov_b32 v24, s{76+k}\n buffer_store_dword v24, off, {WS}, s7 offset:{4*k} sc1")
    a("s_mov_b64 exec, -1")

def init_arrive(a, vt):
    sk = a.label("IA")
    a(f"s_barrier\n s_cmp_lg_u32 s3, 0\n s_cbranch_scc1 {sk}")
    a(f"v_mov_b32 {vt}, 1\n s_mov_b64 exec, 1\n buffer_atomic_add {vt}, off, {DBG}, 0 offset:{D_INIT}\n s_mov_b64 exec, -1\n{sk}:")
    a.vm_n -= 1

def load_stream(a, jobs, tmp=32, depth=12, out=128):
    units = [(job, u) for job in jobs for u in range(16)]
    n = len(units); tok = {}
    def issue(k):
        job, u = units[k]
        a(f"s_mov_b32 s7, {job['row'](u) * job['stride']}")
        r = tmp + 8 * (k % depth)
        a(f"buffer_load_dwordx4 {vr(r)}, {job['v0']}, {job['srd']}, s7 offen")
        if job['stride'] < 4096:
            tok[k] = a.vm(f"buffer_load_dwordx4 {vr(r+4)}, {job['v0']}, {job['srd']}, s7 offen offset:{job['stride']}")
        else:
            tok[k] = a.vm(f"buffer_load_dwordx4 {vr(r+4)}, {job['v1']}, {job['srd']}, s7 offen")
    for k in range(min(depth, n)): issue(k)
    for k in range(n):
        job, u = units[k]
        a.wait_vm(tok[k])
        r = tmp + 8 * (k % depth)
        for c in range(8):
            d = job['dst'](u, c) if (job['kind'] == 'reg' or c in job.get('regc', ())) else out + 4*c + u % 4
            a(f"v_perm_b32 v{d}, v{r+4+c//2}, v{r+c//2}, s{40 + c % 2}")
        if k + depth < n: issue(k + depth)
        if job['kind'] == 'lds' and u % 4 == 3:
            for c in range(8):
                if c not in job.get('regc', ()): a(f"ds_write_b128 {job['vdst']}, {vr(out + 4*c)} offset:{job['imm'](u // 4, c)}")
        if u == 15 and job.get('done'): job['done']()

def lds_to_regs(a, vsrc, dst, first=0):
    def done():
        a("s_waitcnt lgkmcnt(0)\n s_barrier")
        for f in range(first, 32): a(f"ds_read_b128 {dst(f)}, {vsrc} offset:{f*1024}")
        a("s_waitcnt lgkmcnt(0)\n s_barrier")
    return done

def w1_setup(a, stride, scol):
    a(f"""
    s_mov_b32 s90, {8*stride}
    v_mul_lo_u32 v24, v1, s90
    v_lshl_add_u32 v24, v2, 4, v24
    s_mul_i32 s7, s3, {128*stride}
    s_add_u32 s7, s7, {scol}
    v_add_u32 v24, s7, v24
    v_add_u32 v25, {stride}, v24
    v_lshrrev_b32 v26, 2, v2
    s_mov_b32 s90, {WSTR}
    v_mul_lo_u32 v26, v26, s90
    v_lshl_add_u32 v26, v1, 8, v26
    v_and_b32 v27, 3, v2
    v_lshl_add_u32 v26, v27, 6, v26
    s_lshl_b32 s7, s3, 13
    v_add_u32 v26, s7, v26
    s_mul_i32 s7, s3, {WSTR}
    v_add_u32 v27, s7, v0
    """)

def w1_job(a, srdn, stride, dst):
    return dict(kind='lds', srd=srdn, stride=stride, v0="v24", v1="v25", row=lambda u: 32*(u//4) + 2*(u%4), vdst="v26",
                imm=lambda grp, c: (grp*2 + c % 2)*1024 + (c//2)*16, done=lds_to_regs(a, "v27", dst))

def w2_job(a, srdn, sbase):
    a(f"v_lshlrev_b32 v28, 13, v1\n v_lshl_add_u32 v28, v2, 4, v28\n s_lshl_b32 s7, s3, 8\n s_add_u32 s7, s7, {sbase}\n v_add_u32 v28, s7, v28")
    return dict(kind='reg', srd=srdn, stride=1024, v0="v28", row=lambda u: 32*(u//4) + 2*(u%4),
                dst=lambda u, T: 128 + (T*4 + u//4)*4 + u % 4)

def prologue(a, opt):
    a(f"""
    s_cmp_ge_u32 s2, 256
    s_cbranch_scc1 L_end
    s_load_dwordx16 s[60:75], s[0:1], 0
    s_load_dwordx8 s[76:83], s[0:1], 64
    s_load_dwordx4 s[84:87], s[0:1], 96
    s_load_dwordx2 s[88:89], s[0:1], 112
    v_lshrrev_b32 v1, 6, v0
    v_and_b32 v0, 63, v0
    v_readfirstlane_b32 s3, v1
    s_mov_b32 s40, 0x05040100
    s_mov_b32 s41, 0x07060302
    s_mov_b32 s42, {CSC}
    s_getreg_b32 s4, hwreg(HW_REG_XCC_ID)
    s_and_b32 s4, s4, 15
    """)
    if opt.get("force_slow"):
        a("s_cmp_lt_u32 s2, 20\n s_cselect_b32 s4, 0, 1")
    a("s_waitcnt lgkmcnt(0)")
    srd(a, 8, P_X, 0x200000); srd(a, 12, P_WS, 0x10000000); srd(a, 16, P_DBG, 256)
    a(f"""
    v_mov_b32 v3, {L_ROLE}
    """)
    tl(a, opt, 0)
    a(f"""
    s_cmp_lg_u32 s3, 0
    s_cbranch_scc1 L_role_wait
    s_mov_b64 exec, 1
    s_cmp_lg_u32 s4, 0
    s_cbranch_scc1 L_role_worker
    v_mov_b32 v2, 1
    buffer_atomic_add v2, off, {DBG}, 0 offset:{D_CH} sc0
    s_waitcnt vmcnt(0)
    v_readfirstlane_b32 s5, v2
    s_nop 3
    s_cmp_lt_u32 s5, 32
    s_cbranch_scc1 L_role_have
    L_role_worker:
    v_mov_b32 v2, 1
    buffer_atomic_add v2, off, {DBG}, 0 offset:{D_WK} sc0
    s_waitcnt vmcnt(0)
    v_readfirstlane_b32 s5, v2
    s_nop 3
    s_sub_u32 s7, 255, s5
    s_add_u32 s5, s5, 32
    s_cmp_ge_u32 s5, 256
    s_cselect_b32 s5, s7, s5
    L_role_have:
    v_mov_b32 v2, s5
    ds_write_b32 v3, v2
    s_waitcnt lgkmcnt(0)
    s_mov_b64 exec, -1
    L_role_wait:
    s_barrier
    ds_read_b32 v2, v3
    s_waitcnt lgkmcnt(0)
    v_readfirstlane_b32 s4, v2
    v_lshrrev_b32 v1, 4, v0
    v_and_b32 v2, 15, v0
    s_nop 2
    s_and_b32 s4, s4, 255
    """)
    tl(a, opt, 1)
    if opt.get("tl"):
        a(f"v_mov_b32 v24, s4\n s_lshl_b32 s100, s2, 5\n s_add_u32 s100, s100, {TL}\n buffer_store_dword v24, off, {WS}, s100 offset:28 sc1")
    a(f"""
    s_cmp_lt_u32 s4, 32
    s_cbranch_scc1 L_chain
    s_cmp_lt_u32 s4, 96
    s_cbranch_scc1 L_B
    """)
    if not opt.get("nocfr"): a("""
    s_cmp_lt_u32 s4, 160
    s_cbranch_scc1 L_C
    s_cmp_lt_u32 s4, 188
    s_cbranch_scc1 L_F
    s_cmp_lt_u32 s4, 252
    s_cbranch_scc1 L_R
    """)
    init_arrive(a, "v3")
    a(f"""
    s_waitcnt vmcnt(0)
    s_endpgm
    L_bail:
    s_mov_b64 exec, 1
    v_mov_b32 v0, s4
    v_add_u32 v0, 0x100, v0
    buffer_store_dword v0, off, {DBG}, 0 offset:{D_ERR}
    s_waitcnt vmcnt(0)
    L_end:
    s_endpgm
    """)

def x_dma(a, sseg, sbuf):
    a(f"s_lshl_b32 s90, {sseg}, 15\n s_lshl_b32 s91, s3, 13\n s_add_u32 s90, s90, s91")
    a(f"s_mul_i32 s91, s3, {8*XROW}\n s_add_u32 s91, s91, {sbuf}")
    for r in range(8):
        a(f"s_add_u32 m0, s91, {r*XROW}")
        a(f"s_nop 0\n buffer_load_dwordx4 v0, {X}, s90 offen lds")
        if r < 7: a("s_add_u32 s90, s90, 1024")

def gemm1(a, vx, mats, fr, mid=None):
    tok = {}
    def rd(t):
        for rt in range(2):
            tok[t] = a.ds(f"ds_read_b128 {vr(fr + 8*(t%3) + 4*rt)}, {vx} offset:{rt*16*XROW + t*64}")
    rd(0); rd(1)
    for t in range(16):
        if t + 2 < 16: rd(t + 2)
        a.wait_ds(tok[t])
        for wreg, acc, wA in mats:
            for T in range(2):
                for rt in range(2):
                    xf = vr(fr + 8*(t%3) + 4*rt); d = vr(acc(T, rt)); c = d if t else "0"
                    A, B = (wreg(t, T), xf) if wA else (xf, wreg(t, T))
                    a(f"v_mfma_f32_16x16x32_bf16 {d}, {A}, {B}, {c}")
        if mid and t == mid[0]: mid[1]()

def stage2(a, vrd, vst, sdst, oa, acc, tmp):
    tok = {}
    for rt in range(2):
        for t in range(4):
            tok[(rt, t)] = a.ds(f"ds_read_b128 {vr(oa + (rt*4+t)*4)}, {vrd} offset:{(rt*4+t)*1024}")
    def cv(rt, i, p):
        a(f"v_cvt_pk_bf16_f32 v{tmp + 4*(i%2) + p}, v{acc + (rt*8+2*p)*4 + i}, v{acc + (rt*8+2*p+1)*4 + i}")
    def st(rt, i):
        a(f"buffer_store_dwordx4 {vr(tmp + 4*(i%2))}, {vst}, {WS}, {'s7' if rt else sdst} offen offset:{i*1024} sc1")
    a(f"s_add_u32 s7, {sdst}, 16384")
    for rt in range(2):
        for t in range(4):
            a.wait_ds(tok[(rt, t)])
            for T in range(8):
                d = vr(acc + (rt*8+T)*4)
                a(f"v_mfma_f32_16x16x32_bf16 {d}, {vr(oa + (rt*4+t)*4)}, {vr(128 + (T*4+t)*4)}, {d if t else '0'}")
                if rt == 1 and 2 <= T < 6: cv(0, t, T - 2)
                if rt == 1 and T == 6: st(0, t)
    for i in range(4):
        for p in range(4): cv(1, i, p)
        st(1, i)

def worker_top(a, name, nst):
    a("s_waitcnt vmcnt(0)")
    a(f"{name}_loop:\n s_waitcnt vmcnt({nst})\n s_barrier")
    a(f"s_lshl_b32 s43, s6, 1\n s_add_u32 s43, s43, s5")
    a(f"s_add_u32 s44, s43, 2\n s_min_u32 s44, s44, 63\n s_sub_u32 s45, {XBUF}, s46")
    x_dma(a, "s44", "s45")
    a(f"v_add_u32 v4, s46, v3")

def worker_bot(a, name):
    a(f"s_sub_u32 s46, {XBUF}, s46\n s_add_u32 s6, s6, 1\n s_cmp_lt_u32 s6, 32")
    a.fence()
    a(f"s_cbranch_scc1 {name}_loop")

def worker_init(a, first, per):
    a(f"s_sub_u32 s4, s4, {first}\n s_cmp_ge_u32 s4, {per}\n s_cselect_b32 s5, 1, 0\n s_cselect_b32 s7, {per}, 0\n s_sub_u32 s4, s4, s7")
    a("s_mov_b32 s6, 0\n s_mov_b32 s46, 0")
    a(f"s_mov_b32 s7, {XROW}\n v_mul_lo_u32 v3, v2, s7\n v_lshl_add_u32 v3, v1, 4, v3\n v_lshlrev_b32 v0, 4, v0")

def wave_flag(a, base):
    a(f"s_lshl_b32 s47, s5, 2\n s_add_u32 s47, s47, s3\n s_lshl_b32 s47, s47, 7\n s_lshl_b32 s7, s4, 2\n s_add_u32 s47, s47, s7\n s_add_u32 s47, s47, {base}")
    flag_store(a, "s47", "0", "v24")

def worker_end(a, opt):
    wp_dump(a, opt)
    tl(a, opt, 3)
    a("s_waitcnt vmcnt(0)\n s_endpgm")

def role_B(a, opt):
    a("L_B:")
    worker_init(a, 32, 32)
    a(f"s_lshl_b32 s47, s4, 7\n s_lshl_b32 s7, s5, 2\n s_add_u32 s47, s47, s7\n s_add_u32 s47, s47, {FLG_FB}")
    flag_store(a, "s47", "0", "v24")
    a("s_waitcnt vmcnt(0)")
    init_arrive(a, "v24")
    srd(a, 24, P_WK, 0x400000); srd(a, 28, P_WV, 0x400000); srd(a, 32, P_WQ, 0x400000)
    a("s_lshl_b32 s48, s4, 8")
    w1_setup(a, 8192, "s48")
    load_stream(a, [w1_job(a, W1, 8192, lambda f: ar(4*f)), w1_job(a, W2, 8192, lambda f: ar(128 + 4*f)),
                    w1_job(a, W3, 8192, lambda f: vr(128 + 4*f))])
    x_dma(a, "s5", "s46")
    tl(a, opt, 2)
    wp_init(a, opt)
    def publish():
        sk = a.label("BF")
        a(f"s_barrier\n s_cmp_lg_u32 s3, 0\n s_cbranch_scc1 {sk}")
        flag_store(a, "s47", "s6", "v24")
        a(f"{sk}:")
    worker_top(a, "B", 6)
    wp(a, opt, 0)
    gemm1(a, "v4", [(lambda t, T: ar((t*2+T)*4), lambda T, rt: 64 + (T*2+rt)*4, True),
                    (lambda t, T: ar(128 + (t*2+T)*4), lambda T, rt: 80 + (T*2+rt)*4, False),
                    (lambda t, T: vr(128 + (t*2+T)*4), lambda T, rt: 96 + (T*2+rt)*4, True)], 32,
          mid=(4, lambda: (a("s_waitcnt vmcnt(8)"), publish())))
    wp(a, opt, 1)
    a(f"s_lshl_b32 s52, s43, 5\n s_add_u32 s52, s52, s4\n s_lshl_b32 s48, s52, 14\n s_add_u32 s48, s48, {KXV}")
    a("s_lshl_b32 s7, s3, 10\n s_add_u32 s49, s48, s7\n s_add_u32 s50, s49, 4096")
    a(f"s_lshl_b32 s52, s52, 13\n s_add_u32 s52, s52, s7\n s_add_u32 s52, s52, {QXG}\n s_add_u32 s53, s52, 4096")
    a("s_lshl_b32 s7, s3, 11\n s_add_u32 s51, s48, s7\n s_add_u32 s51, s51, 8192")
    for rt in range(2):
        r = 112 + 4*rt
        for i in range(4): a(f"v_cvt_pk_bf16_f32 v{r+i}, v{64 + rt*4 + i}, v{64 + (2+rt)*4 + i}")
        a(f"buffer_store_dwordx4 {vr(r)}, v0, {WS}, s{49+rt} offen sc1")
    for T in range(2):
        r = 120 + 4*T; b = 80 + T*8
        for p in range(4): a(f"v_cvt_pk_bf16_f32 v{r+p}, v{b + 2*p}, v{b + 2*p + 1}")
        a(f"buffer_store_dwordx4 {vr(r)}, v0, {WS}, s51 offen offset:{T*1024} sc1")
    for rt in range(2):
        r = 56 + 4*rt
        for i in range(4): a(f"v_cvt_pk_bf16_f32 v{r+i}, v{96 + rt*4 + i}, v{96 + (2+rt)*4 + i}")
        a(f"buffer_store_dwordx4 {vr(r)}, v0, {WS}, s{52+rt} offen sc1")
    wp(a, opt, 7)
    worker_bot(a, "B")
    a("s_waitcnt vmcnt(0)")
    publish()
    worker_end(a, opt)

def st2_addrs(a):
    a(f"v_add_u32 v6, {L_OX}, v0")
    a(f"v_lshlrev_b32 v7, 12, v1\n v_lshl_add_u32 v7, v2, 4, v7\n s_lshl_b32 s7, s3, 8\n v_add_u32 v7, s7, v7")

def role_F(a, opt):
    a("L_F:")
    worker_init(a, 160, 14)
    wave_flag(a, FLG_FF)
    a("s_waitcnt vmcnt(0)")
    init_arrive(a, "v24")
    srd(a, 24, P_WG, 512*3584); srd(a, 28, P_WU, 512*3584); srd(a, 32, P_WD, 1792*1024)
    a("s_lshl_b32 s48, s4, 8")
    w1_setup(a, 3584, "s48")
    a("s_lshl_b32 s48, s4, 17")
    load_stream(a, [w1_job(a, W1, 3584, lambda f: ar(4*f)), w1_job(a, W2, 3584, lambda f: ar(128 + 4*f)), w2_job(a, W3, "s48")])
    x_dma(a, "s5", "s46")
    st2_addrs(a)
    a("s_lshl_b32 s7, s3, 10\n v_add_u32 v5, s7, v6")
    tl(a, opt, 2)
    wp_init(a, opt)
    worker_top(a, "F", 8)
    wp(a, opt, 0)
    gemm1(a, "v4", [(lambda t, T: ar((t*2+T)*4), lambda T, rt: 64 + (T*2+rt)*4, True),
                    (lambda t, T: ar(128 + (t*2+T)*4), lambda T, rt: 80 + (T*2+rt)*4, True)], 32,
          mid=(9, lambda: (a("s_waitcnt vmcnt(8)"), flag_store(a, "s47", "s6", "v24"))))
    wp(a, opt, 1)
    for r in range(16): a(f"v_max_f32 v{64+r}, 0, v{64+r}")
    for r in range(16): a(f"v_mul_f32 v{64+r}, v{64+r}, v{80+r}")
    for rt in range(2):
        r = 96 + 4*rt
        for i in range(4): a(f"v_cvt_pk_bf16_f32 v{r+i}, v{64 + rt*4 + i}, v{64 + (2+rt)*4 + i}")
        a(f"ds_write_b128 v5, {vr(r)} offset:{rt*4096}")
    a(f"s_lshl_b32 s48, s43, 4\n s_add_u32 s48, s48, s4\n s_lshl_b32 s48, s48, 15\n s_add_u32 s48, s48, {FP}")
    a("s_waitcnt lgkmcnt(0)\n s_barrier")
    stage2(a, "v6", "v7", "s48", 32, 64, 24)
    wp(a, opt, 7)
    worker_bot(a, "F")
    a("s_waitcnt vmcnt(0)")
    flag_store(a, "s47", "s6", "v24")
    worker_end(a, opt)

def softmax(a, X0, X1, M, t, pX, pM):
    a(f"""
    v_max3_f32 v{t}, v{X0}, v{X0+1}, v{X0+2}
    v_max3_f32 v{t+1}, v{X0+3}, v{X1}, v{X1+1}
    v_max3_f32 v{t}, v{t}, v{X1+2}, v{X1+3}
    v_max3_f32 v{t+1}, v{t+1}, v{M}, v{M+1}
    v_max_f32 v{t}, v{t}, v{t+1}
    v_max_f32 v{t+1}, v{t}, v{t+1}
    v_permlane16_swap_b32 v{t}, v{t+1}
    v_max_f32 v{t+2}, v{t}, v{t+1}
    v_max_f32 v{t+3}, v{t}, v{t+1}
    v_permlane32_swap_b32 v{t+2}, v{t+3}
    v_max_f32 v{t}, v{t+2}, v{t+3}
    v_mul_f32 v{t}, s42, v{t}
    """)
    regs = [X0, X0+1, X0+2, X0+3, X1, X1+1, X1+2, X1+3, M, M+1]
    for r in regs: a(f"v_fma_f32 v{r}, v{r}, s42, -v{t}")
    for k, r in enumerate(regs):
        a(f"v_exp_f32 v{r}, v{r}")
        if k >= 2 and k % 2 == 0: a(f"v_cvt_pk_bf16_f32 v{pX + k//2 - 1}, v{regs[k-2]}, v{regs[k-1]}")
    a(f"v_cvt_pk_bf16_f32 v{pM}, v{M}, v{M+1}\n v_cvt_pk_bf16_f32 v{pM+3}, v{M}, v{M+1}")

def role_C(a, opt):
    a("L_C:")
    worker_init(a, 96, 32)
    wave_flag(a, FLG_FC)
    a(f"s_lshl_b32 s55, s5, 5\n s_add_u32 s55, s55, s4\n s_lshl_b32 s55, s55, 12\n s_lshl_b32 s7, s3, 10\n s_add_u32 s55, s55, s7\n s_add_u32 s55, s55, {KVM}")
    a("v_mov_b64 v[24:25], -1\n v_mov_b64 v[26:27], -1\n s_mov_b32 s7, s55")
    for k in range(32): a(f"buffer_store_dwordx4 v[24:27], v0, {WS}, s7 offen sc1\n s_add_u32 s7, s7, 0x40000")
    a("s_waitcnt vmcnt(0)")
    init_arrive(a, "v24")
    srd(a, 28, P_WO, 0x400000)
    a("s_lshl_b32 s48, s4, 17")
    load_stream(a, [w2_job(a, W2, "s48")])
    st2_addrs(a)
    a(f"""
    s_lshr_b32 s52, s3, 1
    s_and_b32 s53, s3, 1
    v_lshrrev_b32 v24, 2, v2
    v_and_b32 v25, 3, v2
    v_lshlrev_b32 v8, 7, v24
    v_lshl_add_u32 v8, v1, 5, v8
    v_lshl_add_u32 v8, v25, 2, v8
    s_lshl_b32 s7, s3, 9
    s_add_u32 s90, s7, {L_KM}
    v_add_u32 v8, s90, v8
    v_lshrrev_b32 v11, 1, v0
    s_add_u32 s90, s7, {L_VM}
    v_add_u32 v9, s90, v11
    s_lshl_b32 s7, s53, 10
    s_add_u32 s7, s7, {L_VM}
    v_add_u32 v11, s7, v11
    v_and_b32 v25, 1, v2
    v_lshl_add_u32 v10, v24, 1, v25
    v_lshlrev_b32 v10, 4, v10
    v_lshl_add_u32 v10, v1, 7, v10
    v_add_u32 v10, {L_KM}, v10
    s_lshl_b32 s7, s3, 11
    v_add_u32 v12, s7, v6
    s_lshl_b32 s7, s52, 4
    v_add_u32 v14, s7, v2
    v_lshlrev_b32 v15, 2, v1
    v_sub_u32 v14, v14, v15
    """)
    for k in range(8):
        a(f"v_cmp_le_i32 s[{60+2*k}:{61+2*k}], {k if k < 4 else 12 + k}, v14")
    a("v_mov_b32 v14, 0xf149f2ca")
    for r in range(16, 20): a(f"v_mov_b32 v{r}, 0x3f803f80")
    a("v_mov_b32 v21, 0\n v_mov_b32 v22, 0")
    a(f"s_lshl_b32 s54, s4, 7\n s_lshl_b32 s7, s5, 2\n s_add_u32 s54, s54, s7\n s_add_u32 s54, s54, {FLG_FB}\n s_mov_b32 s56, 0")
    wait_scalar(a, DBG, D_INIT, 256, "s7", "v24", 8)
    QB, KX, VX = 0, 16, 48
    a("s_lshl_b32 s7, s52, 12\n s_add_u32 s7, s7, 16384\n v_add_u32 v3, s7, v0\n s_lshl_b32 s7, s53, 12\n s_add_u32 s7, s7, 8192\n v_add_u32 v4, s7, v0")
    def fetch(sidx):
        ok = a.label("CB")
        a(f"s_cmp_gt_u32 s56, {sidx}\n s_cbranch_scc1 {ok}\n s_add_u32 s57, {sidx}, 1")
        wait_scalar(a, WS, "s54", "s57", "s56", "v13", 4)
        a(f"{ok}:")
        a(f"s_lshl_b32 s49, {sidx}, 1\n s_add_u32 s49, s49, s5\n s_lshl_b32 s49, s49, 5\n s_add_u32 s49, s49, s4")
        a(f"s_lshl_b32 s57, s49, 13\n s_lshl_b32 s7, s3, 11\n s_add_u32 s57, s57, s7\n s_add_u32 s57, s57, {QXG}\n s_add_u32 m0, s7, 16384")
        a(f"s_lshl_b32 s49, s49, 14\n s_add_u32 s49, s49, {KXV}\n s_lshl_b32 s7, s3, 12\n s_add_u32 s49, s49, s7")
        for f in range(2): a(f"buffer_load_dwordx4 v0, {WS}, s57 offen offset:{f*1024} sc1 lds")
        a("s_mov_b32 m0, s7")
        for f in range(4): a(f"buffer_load_dwordx4 v0, {WS}, s49 offen offset:{f*1024} sc1 lds")
    fetch("s6")
    tl(a, opt, 2)
    wp_init(a, opt)
    a("C_loop:\n s_waitcnt vmcnt(0)")
    flag_store(a, "s47", "s6", "v13")
    a("s_cmp_eq_u32 s6, 32\n s_cbranch_scc1 C_last\n s_barrier")
    wp(a, opt, 0)
    for f in range(4): a(f"ds_read_b128 {ar(QB + 4*f)}, v3 offset:{f*1024}")
    for f in range(8): a(f"ds_read_b128 {ar(KX + 4*f)}, v0 offset:{f*1024}")
    for f in range(4): a(f"ds_read_b128 {ar(VX + 4*f)}, v4 offset:{f*1024}")
    a("s_waitcnt lgkmcnt(0)")
    KM, VM, X0, X1, M = 96, 112, 116, 120, 124
    for rt in range(2):
        d = vr(X0 + 4*rt)
        for t in range(4): a(f"v_mfma_f32_16x16x32_bf16 {d}, {ar(KX + (rt*4+t)*4)}, {ar(QB + 4*t)}, {d if t else '0'}")
    for k in range(8): a(f"v_cndmask_b32 v{X0+k}, v14, v{X0+k}, s[{60+2*k}:{61+2*k}]")
    wp(a, opt, 1)
    a(f"""
    s_mov_b32 s96, 0
    C_poll:
    buffer_load_dwordx4 v[24:27], v0, {WS}, s55 offen sc1
    s_waitcnt vmcnt(0)
    v_max3_u32 v28, v24, v25, v26
    v_max_u32 v28, v28, v27
    v_cmp_eq_u32 vcc, -1, v28
    s_cbranch_vccz C_have
    """)
    spin_tail(a, "C_poll", opt.get("slc", 2))
    a("C_have:")
    wp(a, opt, 3)
    a("ds_write2_b32 v8, v24, v25 offset0:0 offset1:4\n ds_write_b64 v9, v[26:27]\n s_add_u32 s55, s55, 0x40000\n s_waitcnt lgkmcnt(0)\n s_barrier")
    tk = [a.ds(f"ds_read_b128 {vr(KM + 4*t)}, v10 offset:{t*512}") for t in range(4)]
    for f in range(2): a(f"ds_read_b64 {vr(VM + 2*f, 2)}, v11 offset:{f*512}")
    for t in range(4):
        a.wait_ds(tk[t])
        a(f"v_mfma_f32_16x16x32_bf16 {vr(M)}, {vr(KM + 4*t)}, {ar(QB + 4*t)}, {vr(M) if t else '0'}")
    a("s_add_u32 s44, s6, 1\n s_min_u32 s44, s44, 31")
    fetch("s44")
    wp(a, opt, 4)
    PX, PM, O, Lr = 24, 20, 32, 48
    softmax(a, X0, X1, M, 28, PX, PM)
    a("s_waitcnt lgkmcnt(0)")
    a(f"v_mfma_f32_16x16x32_bf16 {vr(Lr)}, v[16:19], {vr(PX)}, 0")
    for f in range(4): a(f"v_mfma_f32_16x16x32_bf16 {vr(O + 4*f)}, {ar(VX + 4*f)}, {vr(PX)}, 0")
    a(f"v_mfma_f32_16x16x16_bf16 {vr(Lr)}, v[16:17], {vr(PM, 2)}, {vr(Lr)}")
    for f in range(4): a(f"v_mfma_f32_16x16x16_bf16 {vr(O + 4*f)}, {vr(VM + 2*(f//2), 2)}, {vr(PM + 2*(f%2), 2)}, {vr(O + 4*f)}")
    a(f"v_rcp_f32 v28, v{Lr}")
    for r in range(16): a(f"v_mul_f32 v{O+r}, v{O+r}, v28")
    for hw in range(2):
        r = 52 + 4*hw
        for i in range(4): a(f"v_cvt_pk_bf16_f32 v{r+i}, v{O + 8*hw + i}, v{O + 8*hw + 4 + i}")
        a(f"ds_write_b128 v12, {vr(r)} offset:{hw*1024}")
    wp(a, opt, 5)
    a(f"s_lshl_b32 s48, s6, 1\n s_add_u32 s48, s48, s5\n s_lshl_b32 s48, s48, 5\n s_add_u32 s48, s48, s4\n s_lshl_b32 s48, s48, 15\n s_add_u32 s48, s48, {CP}")
    a("s_waitcnt lgkmcnt(0)\n s_barrier")
    wp(a, opt, 6)
    stage2(a, "v6", "v7", "s48", 32, 64, 24)
    wp(a, opt, 7)
    a("s_add_u32 s6, s6, 1")
    a.fence()
    a("s_branch C_loop\nC_last:")
    worker_end(a, opt)

def make_sel(a, b, t):
    a(f"v_and_b32 v{t}, 1, v2\n v_lshlrev_b32 v{t}, 4, v{t}\n v_mov_b32 v{t+1}, 0x3f80\n v_lshlrev_b32 v{t}, v{t}, v{t+1}")
    a(f"v_bfe_u32 v{t+1}, v2, 1, 2")
    for p in range(4):
        a(f"v_cmp_eq_u32 vcc, {p}, v{t+1}\n v_cndmask_b32 v{b+p}, 0, v{t}, vcc")

def role_R(a, opt):
    a("L_R:")
    a("s_sub_u32 s4, s4, 188\n s_lshr_b32 s5, s4, 5\n s_and_b32 s4, s4, 31")
    init_arrive(a, "v24")
    srd(a, 20, P_OUT, 0x200000); srd(a, 24, P_GW, 1024)
    make_sel(a, 16, 24)
    a(f"""
    v_lshlrev_b32 v3, 2, v0
    v_lshlrev_b32 v0, 4, v0
    buffer_load_dwordx4 v[8:11], v0, {W1}, 0 offen
    v_lshlrev_b32 v4, 15, v1
    v_lshl_add_u32 v4, v2, 4, v4
    s_lshl_b32 s7, s4, 10
    s_lshl_b32 s43, s3, 8
    s_add_u32 s7, s7, s43
    v_add_u32 v4, s7, v4
    v_lshlrev_b32 v5, 3, v1
    v_lshl_add_u32 v5, v2, 4, v5
    v_add_u32 v5, s7, v5
    s_lshl_b32 s7, s5, 2
    s_add_u32 s7, s7, s3
    s_lshl_b32 s7, s7, 7
    s_add_u32 s54, s7, {FLG_FC}
    s_add_u32 s55, s7, {FLG_FF}
    s_mov_b32 s6, 0
    s_mov_b32 s58, {f32bits(-math.log2(math.e))}
    """)
    for r in range(76, 80): a(f"v_mov_b32 v{r}, 0")
    wait_scalar(a, DBG, D_INIT, 256, "s7", "v24", 8)
    tl(a, opt, 2)
    a(f"""
    R_loop:
    s_lshl_b32 s43, s6, 1
    s_add_u32 s43, s43, s5
    s_add_u32 s57, s6, 1
    s_lshl_b32 s44, s43, 15
    s_lshl_b32 s7, s4, 10
    s_add_u32 s7, s7, s44
    buffer_load_dwordx4 v[12:15], v0, {X}, s7 offen
    """)
    wait_lanes(a, "v3", "s55", 14, "s57", "v24", 8)
    a(f"s_lshl_b32 s45, s43, 19\n s_add_u32 s45, s45, {FP}")
    for u in range(4):
        if u == 3: a("s_mov_b32 exec_hi, 0")
        a(f"buffer_load_dwordx4 {vr(64 + 4*u)}, v4, {WS}, s45 offen sc1")
        if u < 3: a("s_add_u32 s45, s45, 0x20000")
    a("s_mov_b64 exec, -1")
    a("v_mov_b32 v24, 0")
    for p in range(4): a(f"v_dot2c_f32_bf16 v24, v{12+p}, v{8+p}")
    for k in (8, 4, 2, 1): a(f"v_add_f32_dpp v24, v24, v24 row_ror:{k} row_mask:0xf bank_mask:0xf")
    a("""
    v_mov_b32 v25, v24
    v_permlane16_swap_b32 v24, v25
    v_add_f32 v24, v24, v25
    v_mov_b32 v25, v24
    v_permlane32_swap_b32 v24, v25
    v_add_f32 v24, v24, v25
    v_mul_f32 v24, s58, v24
    v_exp_f32 v24, v24
    v_add_f32 v24, 1.0, v24
    v_rcp_f32 v6, v24
    v_sub_f32 v7, 1.0, v6
    s_waitcnt vmcnt(0)
    """)
    for u in range(4): a(f"v_mfma_f32_16x16x32_bf16 v[28:31], v[16:19], {vr(64 + 4*u)}, {'v[28:31]' if u else '0'}")
    for i in range(4): a(f"v_mul_f32 v{28+i}, v{28+i}, v7")
    wait_lanes(a, "v3", "s54", 32, "s57", "v24", opt.get("slr", 4))
    a(f"s_lshl_b32 s45, s43, 20\n s_add_u32 s45, s45, {CP}")
    tok = []
    for u in range(8):
        tok.append(a.vm(f"buffer_load_dwordx4 {vr(32 + 4*u)}, v4, {WS}, s45 offen sc1"))
        if u < 7: a("s_add_u32 s45, s45, 0x20000")
    for u in range(8):
        a.wait_vm(tok[u])
        a(f"v_mfma_f32_16x16x32_bf16 v[24:27], v[16:19], {vr(32 + 4*u)}, {'v[24:27]' if u else '0'}")
    for i in range(4): a(f"v_fma_f32 v{24+i}, v{24+i}, v6, v{28+i}")
    a(f"""
    v_cvt_pk_bf16_f32 v24, v24, v25
    v_cvt_pk_bf16_f32 v25, v26, v27
    s_mov_b32 exec_hi, 0
    buffer_store_dwordx2 v[24:25], v5, {OUT}, s44 offen {['', 'sc1', 'nt', 'sc0 sc1'][opt.get('ost', 0)]}
    s_mov_b64 exec, -1
    s_add_u32 s6, s6, 1
    s_cmp_lt_u32 s6, 32
    """)
    a.fence()
    a("s_cbranch_scc1 R_loop\n s_waitcnt vmcnt(0)")
    tl(a, opt, 3)
    a("s_waitcnt vmcnt(0)\n s_endpgm")

def build(opt):
    from chain import role_chain
    a = Asm()
    prologue(a, opt)
    if not opt.get("nocfr"): role_R(a, opt)
    role_chain(a, opt)
    role_B(a, opt)
    if not opt.get("nocfr"):
        role_C(a, opt)
        role_F(a, opt)
    hdr = open("cdna_kernels/%s.s.ref" % NAME).read().split("; Override")[0] if opt.get("hdr", True) else ""
    k = NAME + "_kernel"
    return f"""{hdr}; @launch grid=(256,1,1) block=(256,1,1) lds={LDS_BYTES}
.amdgcn_target "amdgcn-amd-amdhsa--gfx950"
.text
.globl {k}
.p2align 8
.type {k},@function
{k}:
{a.text()}.section .rodata,"a"
.p2align 6
.amdhsa_kernel {k}
  .amdhsa_next_free_vgpr 512
  .amdhsa_next_free_sgpr 102
  .amdhsa_accum_offset 256
  .amdhsa_group_segment_fixed_size 0
  .amdhsa_kernarg_size 120
  .amdhsa_user_sgpr_count 2
  .amdhsa_user_sgpr_kernarg_segment_ptr 1
  .amdhsa_system_sgpr_workgroup_id_x 1
.end_amdhsa_kernel
"""

if __name__ == "__main__":
    opt = {}
    out = "cdna_kernels/%s.s" % NAME
    for arg in sys.argv[1:]:
        k, _, v = arg.partition("=")
        if k == "out": out = v
        elif k in ("stamps", "drop"): opt[k] = v.split(",")
        else: opt[k] = int(v, 0) if v else 1
    open(out, "w").write(build(opt))
    print("wrote", out)
```

```python
import re

def regs_of(tok):
    tok = tok.strip()
    tok = tok.lstrip('-')
    m = re.fullmatch(r'abs\((.*)\)|\|(.*)\|', tok)
    if m: tok = m.group(1) or m.group(2)
    m = re.fullmatch(r'([vas])\[(\d+):(\d+)\]', tok)
    if m: return {m.group(1) + str(i) for i in range(int(m.group(2)), int(m.group(3)) + 1)}
    m = re.fullmatch(r'([vas])(\d+)', tok)
    if m: return {tok}
    if tok in ('vcc', 'vcc_lo', 'vcc_hi'): return {'vcc'}
    if tok in ('exec', 'exec_lo', 'exec_hi'): return {'exec'}
    if tok == 'm0': return {'m0'}
    return set()

TRANS = ('v_exp_f32', 'v_log_f32', 'v_rcp_f32', 'v_rsq_f32', 'v_sqrt_f32', 'v_sin_f32', 'v_cos_f32')

class Ins:
    def __init__(self, text):
        self.text = text
        body = text.split(';')[0].strip()
        parts = body.split(None, 1)
        self.op = parts[0]
        rest = parts[1] if len(parts) > 1 else ''
        ops = [o.strip() for o in rest.split(',')] if rest else []
        fixed = []
        depth = 0
        for o in ops:
            if depth > 0:
                fixed[-1] += ',' + o
            else:
                fixed.append(o)
            depth += o.count('[') - o.count(']') + o.count('(') - o.count(')')
        ops = fixed
        self.mods = ''
        if ops:
            last = ops[-1].split(None, 1)
            ops[-1] = last[0]
            if len(last) > 1: self.mods = last[1]
        self.ops = ops
        op = self.op
        self.kind = 'other'
        self.w = set(); self.r = set()
        self.A = self.B = self.C = set()
        self.passes = 0; self.storedata = set(); self.wide = False
        R = [regs_of(o) for o in ops]
        if op.startswith('v_mfma') or op.startswith('v_smfmac'):
            self.kind = 'mfma'
            self.passes = 8 if '32x32' in op else 4
            if op.endswith('x4_f32') : self.passes = 8
            self.w = R[0]; self.A = R[1] | R[2]
            if op.startswith('v_smfmac'):
                self.C = R[0]; self.A |= R[3]
            else:
                self.C = R[3]
            self.r = self.A | self.C
        elif op.startswith('v_'):
            self.kind = 'valu'
            base = op.replace('_e32', '').replace('_e64', '').replace('_dpp', '')
            self.trans = base in TRANS
            self.dpp = op.endswith('_dpp') or 'row_' in self.mods or 'quad_perm' in self.mods
            if base.startswith('v_permlane') and 'swap' in base:
                self.w = R[0] | R[1]; self.r = R[0] | R[1]
            elif base.startswith('v_cmp'):
                self.w = R[0]; self.r = set().union(*R[1:])
                if base.startswith('v_cmpx'): self.w |= {'exec'}
            elif base in ('v_add_co_u32', 'v_sub_co_u32', 'v_addc_co_u32'):
                self.w = R[0] | R[1]; self.r = set().union(*R[2:])
            else:
                self.w = R[0]; self.r = set().union(*R[1:]) if len(R) > 1 else set()
                if base in ('v_fmac_f32', 'v_dot2c_f32_bf16', 'v_writelane_b32') or self.dpp: self.r |= R[0]
        elif op.startswith('buffer_') or op.startswith('global_'):
            self.kind = 'vmem'
            if op in ('buffer_inv', 'buffer_wbl2'):
                pass
            elif 'lds' in self.mods.split():
                self.r = set().union(*R) | {'m0'}
                self.ldsdma = True
            elif '_load' in op:
                self.w = R[0]; self.r = set().union(*R[1:])
            elif '_store' in op:
                self.r = set().union(*R); self.storedata = R[0]
                self.wide = op.endswith('x4') or op.endswith('x3')
            elif '_atomic' in op:
                self.r = set().union(*R)
                if 'sc0' in self.mods.split(): self.w = R[0]
        elif op.startswith('ds_'):
            self.kind = 'ds'
            if op.startswith('ds_read') or 'permute' in op or 'swizzle' in op:
                self.w = R[0]; self.r = set().union(*R[1:])
            else:
                self.r = set().union(*R)
        elif op.startswith('s_'):
            self.kind = 'salu'
            if op in ('s_nop', 's_waitcnt', 's_barrier', 's_sleep', 's_endpgm', 's_setprio') or op.startswith('s_cbranch') or op == 's_branch':
                pass
            elif op.startswith('s_cmp') or op.startswith('s_bitcmp'):
                self.r = set().union(*R)
            else:
                self.w = R[0] if R else set(); self.r = set().union(*R[1:]) if len(R) > 1 else set()
                if 'saveexec' in op: self.w |= {'exec'}

def isv(s): return {x for x in s if x[0] in 'va' and x not in ('vcc',)}
def iss(s): return {x for x in s if x[0] == 's' or x == 'vcc'}

def need(p, c):
    n = 0
    if p.kind == 'valu':
        pv = isv(p.w); ps = iss(p.w)
        if c.kind == 'mfma':
            if pv & c.r: n = max(n, 2)
            if 'exec' in p.w: n = max(n, 4)
        if c.kind == 'valu':
            if c.op.startswith('v_permlane') and pv & c.r: n = max(n, 2)
            if c.dpp and pv & set().union(*[regs_of(o) for o in c.ops[1:]]): n = max(n, 2)
            if c.dpp and 'exec' in p.w: n = max(n, 5)
            if (c.op.startswith('v_readfirstlane') or c.op.startswith('v_readlane')) and pv & c.r: n = max(n, 1)
            if p.trans and not c.trans and pv & c.r: n = max(n, 1)
            if p.trans and pv & c.r: n = max(n, 1)
            if ps & c.r: n = max(n, 4 if ('lane' in c.op) else 2)
            if p.op.startswith('v_dot2') and pv & (c.r | c.w) and not (c.op == p.op): n = max(n, 3)
            if p.op.startswith('v_dot2') and c.op == p.op and pv & (regs_of(c.ops[1]) | regs_of(c.ops[2])): n = max(n, 3)
        if c.kind == 'vmem' and ps & c.r: n = max(n, 5)
        if c.kind in ('vmem', 'ds') and p.op.startswith('v_dot2') and pv & c.r: n = max(n, 3)
    if p.kind == 'mfma':
        k = {4: 0, 8: 1}[p.passes]
        if c.kind == 'mfma':
            if p.w & c.A: n = max(n, (8, 12)[k])
            if p.w & c.C:
                if not (p.w == c.C and p.op == c.op): n = max(n, (6, 10)[k])
            if p.w & c.w and not (p.w & c.C): n = max(n, (6, 10)[k])
        if c.kind == 'valu':
            if p.w & (c.r | c.w): n = max(n, (8, 12)[k])
            if p.C & c.w: n = max(n, (3, 7)[k])
        if c.kind in ('vmem', 'ds'):
            if p.w & (c.r | c.w): n = max(n, (8, 12)[k])
            if p.C & c.w: n = max(n, (3, 7)[k])
    if p.kind == 'vmem' and p.storedata and p.wide:
        if p.storedata & c.w: n = max(n, 2)
    if p.kind == 'salu' and 'm0' in p.w and getattr(c, 'ldsdma', False): n = max(n, 1)
    return n

class Asm:
    def __init__(self):
        self.lines = []
        self._lab = 0
        self.hist = []
        self.ds_n = 0; self.vm_n = 0
        self.nops = 0
        self.drop = ()
        self.ds_done = 0
    def label(self, base="L"):
        self._lab += 1
        return "%s_%d" % (base, self._lab)
    def _dist(self, k, ins):
        now = 0; pipe = -1
        for p in self.hist[k:]:
            t = max(now, pipe) if p.kind == 'mfma' else now
            now = t + (4 * (int(p.ops[0], 0) + 1) if p.op == 's_nop' else 4)
            if p.kind == 'mfma': pipe = t + 4 * p.passes
        return (max(now, pipe) if ins is not None and ins.kind == 'mfma' else now), now
    def _nop(self, k):
        while k > 0:
            m = min(k, 16)
            t = Ins("s_nop %d" % (m - 1))
            self.lines.append("    " + t.text); self.hist.append(t); self.nops += m
            k -= m
    def _emit(self, ins):
        pad = 0
        for k in range(max(0, len(self.hist) - 20), len(self.hist)):
            n = need(self.hist[k], ins)
            if n:
                d, now = self._dist(k, ins)
                if d < 4 * (n + 1): pad = max(pad, (4 * (n + 1) - now + 3) // 4)
        self._nop(pad)
        self.lines.append("    " + ins.text)
        self.hist.append(ins)
        if ins.kind == 'ds': self.ds_n += 1
        if ins.kind == 'vmem': self.vm_n += 1
    def __call__(self, s):
        for ln in s.split("\n"):
            ln = ln.strip()
            if not ln or ln.startswith(';'): continue
            if ln.endswith(":") or ln.startswith('.'):
                self.lines.append(ln)
            elif self.drop and any(ln.startswith(p) for p in self.drop):
                continue
            else:
                self._emit(Ins(ln))
    def fence(self):
        pad = 0
        for k in range(max(0, len(self.hist) - 20), len(self.hist)):
            p = self.hist[k]; n = 0
            if p.kind == 'mfma': n = (8, 12)[p.passes // 8]
            elif p.kind == 'valu': n = 5 if (iss(p.w) or 'exec' in p.w) else 3
            elif p.kind == 'vmem' and p.wide: n = 2
            elif p.kind == 'salu' and 'm0' in p.w: n = 1
            if n:
                d, now = self._dist(k, None)
                pad = max(pad, (4 * (n + 1) - now + 3) // 4)
        self._nop(pad)
    def ds(self, s):
        self(s); return self.ds_n
    def vm(self, s):
        self(s); return self.vm_n
    def wait_ds(self, tok):
        if tok <= self.ds_done: return
        n = min(self.ds_n - tok, 15)
        self.ds_done = self.ds_n - n
        self("s_waitcnt lgkmcnt(%d)" % n)
    def wait_vm(self, tok):
        self("s_waitcnt vmcnt(%d)" % min(self.vm_n - tok, 63))
    def note(self, t):
        for ln in t.split('\n'): self.lines.append('; ' + ln)
    def text(self):
        return "\n".join(self.lines) + "\n"

def vr(b, n=4, k='v'):
    return "%s[%d:%d]" % (k, b, b + n - 1) if n > 1 else "%s%d" % (k, b)
def ar(b, n=4): return vr(b, n, 'a')
```

```python
from asmlib2 import *
import gen as G

vLin, vPub, vT, vMem0, vIdx, vQw, vOr, vPst = ["v%d" % i for i in range(8)]
vQr, vOw, vVx, vJunk, vKa = "v8", "v9", "v20", "v21", "v22"
vW, vKp = "v8", "v9"
FB, SEL, ONES, KV = 10, 12, 16, 60
MEMA, ACQ, ACK = 24, 56, 64
LS = MEMA + 16
ACV, QBUF = 72, [88, 96, 104, 112, 120]
QS = 1280
L_KX, L_VX, L_MX, L_QK, L_W = 0, 8192, 16384, 24576, 29696
L_OB = L_MX
SM = "v_smfmac_f32_16x16x64_bf16"
MF = "v_mfma_f32_16x16x32_bf16"
MF16 = "v_mfma_f32_16x16x16_bf16"

def zero(a, lo, hi, val="0"):
    for r in range(lo, hi, 2): a(f"v_mov_b64 {vr(r, 2)}, {val}")
def busy(a, n):
    for _ in range(n): a(f"v_mov_b32 {vT}, 0\n s_nop 2")
def wq_half(j, h): return f"ds_read_b128 {vr(QBUF[j % 5] + 4*h)}, {vW} offset:{G.WSTR + j*2048 + 1024*h}"
KX, VX = 72, 104
def xv_load(f):
    return f"buffer_load_dwordx4 {vr(KX + 4*f)}, {vLin}, {G.WS}, {('s52', 's87', 's57')[f // 4]} offen offset:{(f % 4)*1024} sc1"
def addr_prep(a):
    for u in range(1, 4): a(f"v_add_u32 v{LS + 4*u}, s{80+u}, {vLin}")

def next_seg(a, P):
    a(f"""
    v_readfirstlane_b32 s84, v{FB}
    v_readfirstlane_b32 s85, v{FB+1}
    s_add_u32 s90, s6, 1
    s_cmp_lt_u32 s90, 64
    s_cselect_b32 s7, 0x80000, 0
    s_add_u32 s52, s52, s7
    s_min_u32 s90, s90, 63
    s_lshr_b32 s91, s90, 1
    s_bitcmp1_b32 s90, 0
    s_cselect_b32 s7, s85, s84
    s_cmp_gt_u32 s7, s91
    s_cbranch_scc0 {P}_fbwait
    {P}_fbok:
    v_mov_b32 {vT}, 0
    s_add_u32 s92, s90, 1
    s_lshr_b32 s93, s92, 1
    s_bitcmp1_b32 s92, 0
    s_cselect_b32 s7, s85, s84
    s_cmp_gt_u32 s7, s93
    s_cselect_b32 s7, 0x80000, 0
    s_add_u32 s56, s52, s7
    s_add_u32 s56, s56, s94
    s_add_u32 s87, s52, 0x1000
    s_add_u32 s57, s52, s95
    """)

def ring_next(a):
    a(f"""
    s_mov_b32 s51, s48
    s_and_b32 s7, s6, 3
    s_lshl_b32 s48, s7, 13
    s_add_u32 s48, s48, {G.MEMB}
    s_lshr_b32 s97, s7, 1
    s_sub_u32 s98, s97, 1
    s_mov_b32 s99, s98
    s_and_b32 s7, s7, 1
    s_lshl_b32 s7, s7, 18
    s_add_u32 s45, s7, {G.PART}
    s_add_u32 s46, s45, 0x1000
    s_add_u32 s47, s44, s7
    """)

def fb_wait(a, P):
    a(f"{P}_fbwait:")
    a("s_and_b32 s92, s90, 1\n s_lshl_b32 s92, s92, 2\n s_add_u32 s92, s92, s55\n s_add_u32 s93, s91, 1")
    G.wait_scalar(a, G.WS, "s92", "s93", "s7", vT, 1)
    a(f"s_branch {P}_fbok")

def startup(a, opt):
    WS, DBG, WSTR = G.WS, G.DBG, G.WSTR
    a("L_chain:")
    G.srd(a, 20, G.P_MEM0, 8192); G.srd(a, 24, G.P_WQ, 0x400000); G.srd(a, 28, G.P_WK, 0x400000)
    G.srd(a, 32, G.P_WV, 0x400000); G.srd(a, 36, G.P_WO, 0x400000)
    G.make_sel(a, SEL, 20)
    a(f"""
    v_mov_b32 v22, v0
    v_lshlrev_b32 v0, 4, v0
    v_and_b32 v24, 1, v2
    v_lshrrev_b32 v25, 2, v2
    v_and_b32 v26, 3, v2
    v_lshrrev_b32 v28, 1, v2
    v_and_b32 v29, 1, v1
    v_lshrrev_b32 v23, 1, v1
    ; weight voffsets: rows 128w + 32(g/2) + 8(g%2), column bytes 256h + 16n
    v_lshlrev_b32 v27, 18, v23
    v_lshl_add_u32 v27, v29, 16, v27
    v_lshl_add_u32 v27, v2, 4, v27
    s_lshl_b32 s90, s4, 8
    s_lshl_b32 s91, s3, 20
    s_add_u32 s90, s90, s91
    v_add_u32 v30, s90, v27
    v_add_u32 v31, 8192, v30
    ; LDS scatter bases. q,k (v16): region swap(n/4), slot (w - n/4)%4 ; v (v17): region n/4, slot (w - 2 - n/8)%4
    v_lshlrev_b32 v18, 8, v1
    v_lshl_add_u32 v18, v26, 6, v18
    v_add_u32 v18, {L_W}, v18
    s_mov_b32 s90, {WSTR}
    v_lshrrev_b32 v27, 1, v25
    v_and_b32 v19, 1, v25
    v_lshl_add_u32 v19, v19, 1, v27
    v_mul_lo_u32 v16, v19, s90
    v_sub_u32 v19, s3, v25
    v_and_b32 v19, 3, v19
    v_lshl_add_u32 v16, v19, 12, v16
    v_add_u32 v16, v16, v18
    v_mul_lo_u32 v17, v25, s90
    v_sub_u32 v19, s3, v27
    v_add_u32 v19, 2, v19
    v_and_b32 v19, 3, v19
    v_lshl_add_u32 v17, v19, 12, v17
    v_add_u32 v17, v17, v18
    ; v18 = own pair of regions (2(w%2)), v19 = own q/k region
    s_and_b32 s91, s3, 1
    s_mul_i32 s91, s91, {2*WSTR}
    s_add_u32 s91, s91, {L_W}
    v_add_u32 v18, s91, {vLin}
    s_lshr_b32 s7, s3, 1
    s_mul_i32 s7, s7, {WSTR}
    v_add_u32 v19, s7, v18
    ; Wo voffset (v11): rows 16(g/2)+4(g%2), column bytes 256w + 16n, head base
    v_lshlrev_b32 v27, 14, v23
    v_lshl_add_u32 v27, v29, 12, v27
    v_lshl_add_u32 v27, v2, 4, v27
    s_lshl_b32 s90, s4, 17
    s_lshl_b32 s91, s3, 8
    s_add_u32 s90, s90, s91
    v_add_u32 v11, s90, v27
    v_mov_b32 v20, 0x4444
    v_mov_b32 v21, 0xeeee
    v_cmp_eq_u32 vcc, 0, v24
    v_cndmask_b32 {vIdx}, v21, v20, vcc
    s_lshl_b32 s86, s3, 10
    s_add_u32 s90, s86, {L_MX}
    v_add_u32 {vMem0}, s90, {vLin}
    ; q write: QK + w*QS + (n/4)*128 + 2g*16 + (n%4)*4
    v_lshlrev_b32 {vQw}, 7, v25
    v_lshl_add_u32 {vQw}, v1, 5, {vQw}
    v_lshl_add_u32 {vQw}, v26, 2, {vQw}
    s_mul_i32 s90, s3, {QS}
    s_add_u32 s90, s90, {L_QK}
    v_add_u32 {vQw}, s90, {vQw}
    ; v27 = g*128 + (2(n/4) + n%2)*16 ; lanes n%4 < 2 carry keys, the others queries
    v_lshl_add_u32 v27, v25, 1, v24
    v_lshlrev_b32 v27, 4, v27
    v_lshl_add_u32 v27, v1, 7, v27
    v_cmp_gt_u32 vcc, 2, v26
    v_mov_b32 v20, {L_QK}
    v_mov_b32 v21, {L_QK + 640}
    v_cndmask_b32 v20, v20, v21, vcc
    v_add_u32 {vQr}, v20, v27
    s_add_u32 s90, s86, {L_OB}
    v_add_u32 v20, s90, v27
    v_add_u32 v21, 6208, v20
    v_cndmask_b32 {vOw}, v20, v21, vcc
    ; o read: OB + (2g + n%2)*128 + (n/2)*16
    v_lshl_add_u32 v27, v1, 1, v24
    v_lshlrev_b32 v27, 7, v27
    v_lshl_add_u32 v27, v28, 4, v27
    v_add_u32 {vOr}, {L_OB}, v27
    ; partial store: (8w + 2(n/4) + g/2)*8192 + (g%2)*2048 + 64h + 16(n%4)
    v_lshl_add_u32 v27, v25, 1, v23
    v_lshlrev_b32 v27, 13, v27
    v_lshl_add_u32 v27, v29, 11, v27
    v_lshl_add_u32 v27, v26, 4, v27
    s_lshl_b32 s90, s3, 16
    s_lshl_b32 s91, s4, 6
    s_add_u32 s90, s90, s91
    v_add_u32 {vPst}, s90, v27
    ; mem0 voffset (v25): (n/2)*1024 + 2*(128w + 32g + 16(n%2))
    v_lshlrev_b32 v25, 10, v28
    v_lshl_add_u32 v25, v1, 6, v25
    v_lshl_add_u32 v25, v24, 5, v25
    s_lshl_b32 s91, s3, 8
    v_add_u32 v25, s91, v25
    ; key image read (v24): QK + 640 + (2(w%2) + g/2)*QS + (lane%32)*16
    s_and_b32 s91, s3, 1
    s_mul_i32 s91, s91, {2*QS}
    s_add_u32 s91, s91, {L_QK + 640}
    v_mul_u32_u24 v24, {QS}, v23
    v_and_b32 v27, 31, v22
    v_lshl_add_u32 v24, v27, 4, v24
    v_add_u32 v24, s91, v24
    ; publish: (w/2)*4096 + h*128 + (w%2)*64 + g*32 + n*8   (lanes g<2, n<4)
    s_lshr_b32 s90, s3, 1
    s_lshl_b32 s90, s90, 12
    s_lshl_b32 s91, s4, 7
    s_add_u32 s90, s90, s91
    s_and_b32 s91, s3, 1
    s_lshl_b32 s91, s91, 6
    s_add_u32 s90, s90, s91
    v_lshlrev_b32 v27, 5, v29
    v_lshl_add_u32 v27, v26, 3, v27
    v_add_u32 {vPub}, s90, v27
    s_mov_b32 s58, 0x000f000f
    s_mov_b32 s59, 0
    s_lshl_b32 s44, s4, 2
    s_add_u32 s44, s44, s3
    s_lshl_b32 s44, s44, 11
    s_add_u32 s44, s44, {G.PART}
    s_lshl_b32 s55, s4, 7
    s_add_u32 s55, s55, {G.FLG_FB}
    """)
    for u in range(1, 4):
        a(f"s_add_u32 s7, s3, {u}\n s_and_b32 s7, s7, 3\n s_lshl_b32 s7, s7, 10\n s_add_u32 s{80+u}, s7, {L_MX}")
    zero(a, 20, 24, "-1")
    for sl in range(2):
        a(f"s_add_u32 s7, s44, {sl*0x40000}")
        for o in (0, 1024): a(f"buffer_store_dwordx4 v[20:23], {vLin}, {WS}, s7 offen offset:{o} sc1")
    a("s_mov_b64 exec, s[58:59]")
    for sl in range(4):
        a(f"s_mov_b32 s7, {G.MEMB + sl*8192}\n buffer_store_dwordx2 v[20:21], {vPub}, {WS}, s7 offen sc1")
    a("s_mov_b64 exec, -1")
    def job(srdn, vdst, done):
        return dict(kind='lds', srd=srdn, stride=8192, v0="v30", v1="v31", vdst=vdst,
                    row=lambda u: 64*((u//4) % 2) + 16*(u % 2) + 4*(u//8) + 2*((u//2) % 2),
                    imm=lambda grp, c: (grp//2)*16384 + (c % 2)*2048 + (grp % 2)*1024 + (c//2)*16, done=done)
    def pick(fa, fv, after=None):
        def done():
            lv, le = a.label("PV"), a.label("PE")
            a(f"s_waitcnt lgkmcnt(0)\n s_barrier\n s_cmp_ge_u32 s3, 2\n s_cbranch_scc1 {lv}")
            fa()
            a(f"s_branch {le}\n{lv}:")
            fv()
            a(f"{le}:\n s_waitcnt lgkmcnt(0)\n s_barrier")
            if after: after()
        return done
    def rd(src, dst, off=0):
        return lambda: [a(f"ds_read_b128 {dst(f)}, {src} offset:{off + f*1024}") for f in range(32)]
    nothing = lambda: None
    def wo_group(grp):
        lv, le = a.label("OV"), a.label("OE")
        a(f"s_cmp_ge_u32 s3, 2\n s_cbranch_scc1 {lv}")
        for c in range(8):
            for r in range(4): a(f"v_accvgpr_write_b32 a{128 + (c*2 + grp//2)*8 + (grp % 2)*4 + r}, v{32 + 4*c + r}")
        a(f"s_branch {le}\n{lv}:")
        for c in range(8): a(f"ds_write_b128 v18, {vr(32 + 4*c)} offset:{(c*2 + grp//2)*2048 + (grp % 2)*1024}")
        a(f"{le}:")
    kd = G.lds_to_regs(a, "v19", lambda f: ar(4*f))
    jobs = [job(G.W2, "v16", lambda: (kd(), G.init_arrive(a, "v27"))),
            job(G.W1, "v16", G.lds_to_regs(a, "v19", lambda f: vr(128 + 4*f))),
            job(G.W3, "v17", pick(nothing, rd("v18", lambda f: ar(128 + 4*f)))),
            dict(kind='lds', srd=G.W4, stride=1024, v0="v11", row=lambda u: 64*(u//8) + 32*((u//4) % 2) + 8*(u % 2) + 2*((u//2) % 2), group=wo_group)]
    G.load_stream(a, jobs, tmp=64, depth=8, out=32)
    G.tl(a, opt, 4, "v32")
    a("v_mov_b32 v32, v25\n v_mov_b32 v33, v24")
    for hf in range(2):
        for c in range(2):
            a(f"buffer_load_dwordx2 {vr(MEMA + 16*hf + 2*c, 2)}, v32, {G.OUT}, 0 offen offset:{8*hf + 16*c}")
    G.wait_scalar(a, DBG, G.D_INIT, 256, "s7", vT, 2)
    G.wait_scalar(a, DBG, 0, 0, "s43", vT, 2)
    a(f"""
    buffer_load_dwordx2 {vr(FB, 2)}, off, {WS}, s55 sc1
    s_lshl_b32 s52, s4, 14
    s_add_u32 s52, s52, {G.KXV - 0x80000}
    s_and_b32 s7, s3, 1
    s_lshl_b32 s94, s7, 13
    s_lshl_b32 s95, s7, 12
    s_add_u32 s95, s95, 0x2000
    s_add_u32 s87, s52, 0x1000
    s_add_u32 s57, s52, s95
    s_lshl_b32 s53, s4, 12
    s_add_u32 s53, s53, {G.KVM - 0x20000}
    s_lshl_b32 s7, s7, 10
    s_add_u32 s53, s53, s7
    """)
    a(f"""
    s_lshl_b32 s50, s4, 2
    s_add_u32 s50, s50, s3
    s_lshl_b32 s50, s50, 10
    s_add_u32 s50, s50, {G.SCR}
    buffer_store_dwordx4 {vr(LS)}, {vLin}, {WS}, s50 offen sc1
    s_mov_b32 s48, {G.MEMB + 3*8192}
    s_waitcnt vmcnt(0) lgkmcnt(0)
    s_mov_b32 s6, -1
    """)
    G.tl(a, opt, 2, "v56")
    next_seg(a, "C0")
    a("s_mov_b32 s6, 0")
    ring_next(a)
    addr_prep(a)
    if opt.get("prof"):
        for k in range(20, 32): a(f"s_mov_b32 s{k}, 0")
    a("s_cmp_ge_u32 s3, 2\n s_cbranch_scc1 L_vstart")
    for r in range(4): a(f"v_mov_b32 v{ONES+r}, 0x3f803f80")
    zero(a, ACQ, ACQ + 16)
    a(f"v_mov_b32 {vKa}, v33")
    a.fence()
    a("s_cmp_lt_u32 s43, 32\n s_cbranch_scc1 SA_loop\n s_branch FA_loop\nL_vstart:")
    a(f"v_mov_b32 {vW}, v18\n v_mov_b32 {vKp}, v33")
    for j in range(5):
        for h in range(2): a(wq_half(j, h))
    zero(a, ACQ, ACQ + 32)
    a("s_waitcnt lgkmcnt(0)")
    a.fence()
    a("s_cmp_lt_u32 s43, 32\n s_cbranch_scc1 SV_loop\n s_branch FV_loop")
    fb_wait(a, "C0")

def loop(a, opt, P, st, A):
    WS = G.WS
    prof = opt.get("prof"); free = opt.get("free")
    cnt = [0]
    sel = opt.get("stamps")
    dflt = ("top", "end", "3", "15", "31", "sc", "pv", "wo", "w9", "h1")
    def stamp(k):
        if prof == 1 and (k in ("top", "end") or str(k) in (sel or dflt)):
            i = cnt[0]; cnt[0] += 1
            assert i < 10
            a(f"s_memtime s[{60+2*i}:{61+2*i}]")
    tk = {}
    fill = {}
    def F(i, x, cls=None):
        if cls is None: cls = 1 if (isinstance(x, str) and x.startswith("v_")) else 0
        fill.setdefault(i, []).append((cls, x if callable(x) else (lambda: a(x))))
    def D(i, key, text, cls=0): F(i, lambda: tk.__setitem__(key, a.ds(text)), cls)
    def W(i, key): F(i, lambda: a.wait_ds(tk[key]))
    def Z(i, lo, hi, val="0"):
        for r in range(lo, hi, 2): F(i, f"v_mov_b64 {vr(r, 2)}, {val}")
    def run(i):
        for cls, f in sorted(fill.pop(i, []), key=lambda e: e[0]): f()
    def mem_rd(i, tau): D(i, ("m", tau), f"ds_read_b128 {vr(MEMA + 4*tau)}, v{LS + 4*(tau % 4)} offset:{4096*(tau//4)}")
    def bar(i): W(i, "wr"); F(i, "s_barrier")
    def add(r): return f"v_add_f32 v{r}, v{r}, v{r+1}"
    def cvt(d, x, y): return f"v_cvt_pk_bf16_f32 v{d}, v{x}, v{y}"
    def smv(tau, t4):
        j = 2*tau + t4 % 2
        def emit():
            if t4 >= 2 and j >= 5: a.wait_ds(tk[("w", j)])
            a(f"{SM} {vr(ACV + 4*t4)}, {vr(MEMA + 4*tau)}, {ar(128 + j*8, 8) if t4 < 2 else vr(QBUF[j % 5], 8)}, {vIdx}")
            if pend:
                jp = pend.pop(); tk[("w", jp)] = a.ds(wq_half(jp, 1))
            if t4 >= 2 and j + 5 < 16:
                a.ds(wq_half(j + 5, 0)); pend.append(j + 5)
        return emit
    pend = []
    a(f"{P}_loop:")
    a.drop = tuple(opt.get("drop", ()))
    stamp("top")
    seq = [(m, tau, T) for tau in range(4) for T in range(2) for m in "qk"]
    ql = opt.get("ql", 1)
    if ql: seq += [(m, tau, T) for m in "qk" for tau in range(4, 8) for T in range(2)]
    else:
        seq += [(m, 4, T) for m in "qk" for T in range(2)]
        seq += [(m, tau, T) for m in "qk" for tau in range(5, 8) for T in range(2)]
    qpos = {2*t + T: i for i, (m, t, T) in enumerate(seq) if m == "q"}
    lc = opt.get("lc", 10); b2 = lc + opt.get("lb", 5)
    assert b2 <= 15 + 1
    lg = opt.get("lg", 2)
    lload = f"buffer_load_dwordx4 {vr(LS)}, {vLin}, {WS}, s50 offen sc1"
    F(lg, lambda: tk.__setitem__("L", a.vm(lload)))
    bar(3)
    sp = opt.get("sp", 23)
    for u in range(1, 4): mem_rd(3, u)
    def M_(i, key, text): F(i, lambda: tk.__setitem__(key, a.vm(text)))
    if A:
        xp = [int(p) for p in opt.get("xp", (3, 3, 3, 5, 7, 9, 11, 13, 16, 18, 20, 22))]
        if not opt.get("nopf"):
            for f in range(12): M_(xp[f], ("xv", f), xv_load(f))
        F(1, f"v_lshlrev_b32 {vJunk}, 3, {vLin}")
        F(sp, f"buffer_load_dwordx2 {vr(FB, 2)}, off, {WS}, s55 sc1")
        if not opt.get("notouch"): F(sp, f"buffer_load_dword {vJunk}, {vJunk}, {WS}, s56 offen sc1")
        if not opt.get("nokvm"):
            for k in range(2): F(sp + 4 + k*opt.get("k2", 2), f"buffer_store_dwordx4 {vr(120 + 4*k)}, {vLin}, {WS}, s53 offen offset:{2048*k} sc1")
        if not opt.get("nopf"): F(31, lambda: a.wait_vm(tk[("xv", 7)]))
    else:
        nv0, nv1, nv2 = opt.get("nv0", 4), opt.get("nv1", 0), opt.get("nv2", 2)
        vs = [(tau, t4) for tau in range(8) for t4 in (2, 0, 3, 1)]
        for k in range(nv0): F(3, smv(*vs.pop(0)))
        for k in range(nv1): F(lc, smv(*vs.pop(0)))
        for k in range(nv2): F(qpos[10] - 1, smv(*vs.pop(0)))
        for k in range(opt.get("nv3", 0)): F(opt.get("q3", 30), smv(*vs.pop(0)))
    W(3, ("m", 1)); W(7, ("m", 3))
    F(lc, lambda: a.wait_vm(tk["L"]))
    D(lc, "wr", f"ds_write_b128 {vMem0}, {vr(LS)} offset:4096")
    F(lc+1, f"v_max3_u32 {vT}, v{LS}, v{LS+1}, v{LS+2}")
    F(lc+2, f"v_max_u32 {vT}, {vT}, v{LS+3}")
    F(lc+3, f"v_cmp_eq_u32 vcc, -1, {'v0' if free else vT}")
    F(min(b2, 15), f"s_cbranch_vccnz {P}_lretry\n{P}_lok:")
    bar(b2); mem_rd(b2, 5); mem_rd(b2+1, 6); mem_rd(b2+1, 7)
    W(qpos[10] - 1, ("m", 5)); W(qpos[12] - 1, ("m", 7))
    F(22, "s_add_u32 s49, s48, s86\n s_add_u32 s50, s49, 0x1000")
    qe = qpos[15]
    F(qe+1, add(56)); F(qe+1, add(58)); F(qe+2, add(60)); F(qe+2, add(62))
    F(qe+2, cvt(56, 56, 60)); F(qe+2, cvt(57, 58, 62))
    D(qe+3, "wr", f"ds_write2_b32 {vQw}, v56, v57 offset0:0 offset1:4")
    q3 = opt.get("q3", 30)
    bar(q3)
    if A:
        for t in range(4): D(min(q3 + (t + 1)//2, 31), ("q", t), f"ds_read_b128 {vr(24 + 4*t)}, {vQr} offset:{t*QS}")
    tk["wr"] = a.ds(f"ds_write_b128 {vMem0}, {vr(MEMA)}")
    for i, (m, tau, T) in enumerate(seq):
        j = 2*tau + T
        B = vr(128 + j*8, 8) if m == "q" else ar(j*8, 8)
        a(f"{SM} {vr((ACQ if m == 'q' else ACK) + 4*T)}, {vr(MEMA + 4*tau)}, {B}, {vIdx}")
        run(i)
        stamp(i)
    assert not fill, fill.keys()
    kfold = [add(64), add(66), add(68), add(70), cvt(64, 64, 68), cvt(65, 66, 70)]
    kwr = f"ds_write2_b32 {vQw}, v64, v65 offset0:160 offset1:164"
    inbox = f"buffer_load_dwordx4 v[28:31], {vLin}, {WS}, s47 offen sc1\n buffer_load_dwordx4 v[32:35], {vLin}, {WS}, s47 offen offset:1024 sc1"
    if A:
        QB, KB, X0, X1, M, t0 = 24, 40, 56, 60, 120, 124
        PX, PM, VM, O, Lr, PKO = 64, 68, 24, 28, 44, 48
        WA, OA, PK = [56, 60, 28, 32, 24, 36, 40, 44], 120, [64, 68]
        xl = []
        tq = [tk[("q", t)] for t in range(4)]
        kf = opt.get("kf", 1)
        if kf:
            for x in kfold: a(x)
            tk["wr"] = a.ds(kwr)
        else:
            a(kfold[0]); a(kfold[1])
            for x in kfold[2:]: F(0, x)
            D(1, "wr", kwr)
        b4 = opt.get("b4", 4)
        bar(b4)
        for t in range(4): D(min(b4 + (t + 1)//2, 7), ("k", t), f"ds_read_b128 {vr(KB + 4*t)}, {vQr} offset:{t*QS}")
        F(2, f"v_mov_b32 v{PM+1}, 0\n v_mov_b32 v{PM+2}, 0")
        F(6, f"v_max3_f32 v{t0}, v{X0}, v{X0+1}, v{X0+2}")
        for p in (7, 8, 9, 10, 11, 11)[:opt.get("x1", 6)]:
            if xl: F(p, xl.pop(0))
        F(10, f"v_max3_f32 v{t0+1}, v{X0+3}, v{X1}, v{X1+1}\n v_max3_f32 v{t0}, v{t0}, v{X1+2}, v{X1+3}")
        for t in range(1, 4): F(t - 1, lambda t=t: a.wait_ds(tq[t]))
        for t in range(4): W(7 + t, ("k", t))
        for n in range(12):
            t = n % 4
            if n == 0: a.wait_ds(tq[t])
            d, Ao, Bo = ((X0, KX + 4*t, QB + 4*t), (X1, KX + 16 + 4*t, QB + 4*t), (M, KB + 4*t, KB + 4*t))[n // 4]
            a(f"{MF} {vr(d)}, {vr(Ao)}, {vr(Bo)}, {vr(d) if t else '0'}")
            run(n)
            stamp("s%d" % n)
        stamp("sc")
        a(f"s_cmp_eq_u32 s6, 63\n s_cbranch_scc1 L_chain_end")
        if not opt.get("nopf"): a.wait_vm(tk[("xv", 11)])
        a(f"""
        v_max3_f32 v{t0+1}, v{t0+1}, v{M}, v{M+1}
        v_max_f32 v{t0+2}, v{t0}, v{t0+1}
        v_max_f32 v{t0+3}, v{t0}, v{t0+1}
        v_permlane16_swap_b32 v{t0+2}, v{t0+3}
        v_max_f32 v{t0}, v{t0+2}, v{t0+3}
        v_max_f32 v{t0+1}, v{t0+2}, v{t0+3}
        v_permlane32_swap_b32 v{t0}, v{t0+1}
        v_max_f32 v{t0}, v{t0}, v{t0+1}
        v_mul_f32 v{t0}, s42, v{t0}
        """)
        regs = [X0, X0+1, X0+2, X0+3, X1, X1+1, X1+2, X1+3, M, M+1]
        for r in regs: a(f"v_fma_f32 v{r}, v{r}, s42, -v{t0}")
        for k, r in enumerate(regs[:9]):
            a(f"v_exp_f32 v{r}, v{r}")
            if k >= 2 and k % 2 == 0: a(cvt(PX + k//2 - 1, regs[k-2], regs[k-1]))
        stamp("pv")
        a(f"v_exp_f32 v{M+1}, v{M+1}")
        b5 = opt.get("b5", 2)
        F(b5, "s_barrier")
        D(b5, "vm", f"ds_read_b128 {vr(VM)}, {vMem0} offset:4096")
        F(1, cvt(PM, M, M+1)); F(1, cvt(PM+3, M, M+1))
        Z(3, 56, 60); Z(4, 60, 64)
        for p in range(9):
            if len(xl) > 4 or (xl and p >= 9 - len(xl) and p >= 5): F(p, xl.pop(0))
        W(5, "vm")
        pv = [f"{MF} {vr(Lr)}, {vr(ONES)}, {vr(PX)}, 0"] + [f"{MF} {vr(O + 4*f)}, {vr(VX + 4*f)}, {vr(PX)}, 0" for f in range(4)]
        pv += [f"{MF16} {vr(Lr)}, {vr(ONES, 2)}, {vr(PM, 2)}, {vr(Lr)}"]
        pv += [f"{MF16} {vr(O + 4*f)}, {vr(VM + 2*(f//2), 2)}, {vr(PM + 2*(f % 2), 2)}, {vr(O + 4*f)}" for f in range(4)]
        def mul(r): return f"v_mul_f32 v{r}, v{r}, v{t0}"
        F(7, f"v_rcp_f32 v{t0}, v{Lr}")
        for r in (0, 1): F(8, mul(O + r))
        for r in range(2, 8): F(9, mul(O + r))
        for n, x in enumerate(pv):
            a(x); run(n)
        stamp("p1")
        for hw in range(2):
            if hw:
                for r in range(0, 8, 2): a(f"v_pk_mul_f32 {vr(O + 8 + r, 2)}, {vr(O + 8 + r, 2)}, {vr(t0, 2)} op_sel_hi:[1,0]")
            for i in range(4): a(cvt(PKO + 4*hw + i, O + 8*hw + i, O + 8*hw + 4 + i))
            a(f"ds_write_b128 {vOw}, {vr(PKO + 4*hw)} offset:{hw*512}")
        for x in xl: a(x)
        zero(a, 24, 40)
        stamp("p2")
        wo_reg = lambda j: ar(128 + j*8, 8)
    else:
        WB = [88, 96, 104, 112, 120, 16, 56, 64]
        WA, OA, PK = [28, 32, 36, 40, 44, 48, 52, 72], 76, [84, 24]
        def woh(j, h): return f"ds_read_b128 {vr(WB[j % 8] + 4*h)}, {vW} offset:{j*2048 + 1024*h}"
        nv = len(vs); sh = 32 - nv
        F(0, kfold[0]); F(0, kfold[1])
        for x in kfold[2:]: F(1, x)
        D(2, "wr", kwr)
        v4 = opt.get("v4", 7)
        bar(v4)
        wl = [(k // 2, k % 2) for k in range(16)]
        if opt.get("pw", 1):
            pos = {2*t + t4 % 2: n for n, (t, t4) in enumerate(vs) if t4 >= 2}
            free_at = {5: 0, 6: 3, 1: pos[11], 2: pos[12], 3: pos[13], 4: pos[14]}
            slot = pos[10] + 2
            for jj in (5, 6, 1, 2, 3, 4):
                for hh in range(2):
                    slot = max(slot, free_at[jj])
                    if slot < nv - 1:
                        D(slot, "_", woh(jj, hh)); wl.remove((jj, hh)); slot += 1
        zl = [(r, "0") for r in range(28, 52, 2)]
        for i in range(3, nv - 2):
            if opt.get("zv", 0) and zl and i + sh > (zl[0][0] - MEMA) // 4 * 4 + 3:
                r, val = zl.pop(0); F(i, f"v_mov_b64 {vr(r, 2)}, {val}")
        F(nv-2, add(80)); F(nv-2, add(82)); F(nv-1, add(72)); F(nv-1, add(74)); F(nv-1, cvt(KV+6, 80, 82)); F(nv-1, cvt(KV+4, 72, 74))
        for n, (tau, t4) in enumerate(vs):
            if n + 1 < nv and vs[n+1][1] >= 2 and 2*vs[n+1][0] + vs[n+1][1] % 2 >= 5: W(n, ("w", 2*vs[n+1][0] + vs[n+1][1] % 2))
            smv(tau, t4)(); run(n)
        assert not fill and not pend
        stamp("sc")
        for x in (add(84), add(86), cvt(KV+7, 84, 86), add(76), add(78), cvt(KV+5, 76, 78)): a(x)
        tk["wr"] = a.ds(f"ds_write_b128 {vMem0}, {vr(KV+4)} offset:2048")
        a(f"s_cmp_eq_u32 s6, 63\n s_cbranch_scc1 L_chain_done")
        zero(a, 52, 56); zero(a, 72, 76)
        for r, val in zl[:6]: a(f"v_mov_b64 {vr(r, 2)}, {val}")
        a.wait_ds(tk["wr"]); a("s_barrier")
        stamp("pv")
        for r, val in zl[6:]: a(f"v_mov_b64 {vr(r, 2)}, {val}")
        for x in wl: a(woh(*x))
        busy(a, opt.get("bv", 0))
        wo_reg = lambda j: vr(WB[j % 8], 8)
    a("s_waitcnt lgkmcnt(0)\n s_barrier")
    to = [a.ds(f"ds_read_b128 {vr(OA + 4*t)}, {vOr} offset:{t*1024}") for t in range(2)]
    if A: zero(a, 40, 48)
    busy(a, opt.get("bo2", 0))
    stamp("wo")
    def wf(T, h): return add(WA[T] + 2*h)
    def wpk(T, h): return cvt(PK[T//4] + (T % 4)//2 + 2*h, WA[T] + 2*h, WA[T+1] + 2*h)
    def tag(T, h):
        r = PK[T//4] + (T % 4)//2 + 2*h
        return f"v_and_or_b32 v{r}, v{r}, -2, s97"
    def wst(hf): return f"buffer_store_dwordx4 {vr(PK[hf])}, {vPst}, {WS}, s{45+hf} offen {st}"
    post = {3: [wf(0, 0)], 4: [wf(0, 1)], 5: [wf(1, 0), wf(1, 1)], 6: [wpk(0, 0), wpk(0, 1)],
            7: [wf(2, 0), wf(2, 1)], 8: [tag(0, 0), tag(0, 1)], 9: [wf(3, 0), wf(3, 1), wpk(2, 0), wpk(2, 1), tag(2, 0), tag(2, 1)],
            11: [wf(4, 0)], 12: [wf(4, 1)], 13: [wf(5, 0), wf(5, 1)], 14: [wpk(4, 0), wpk(4, 1)], 15: [wf(6, 0), wf(6, 1), tag(4, 0), tag(4, 1)]}
    for j, xs in post.items():
        for x in xs: F(j, x)
    F(9, wst(0), 2)
    F(0, lambda: a.wait_ds(to[1]))
    if not A:
        for j in range(8, 16):
            D(j - 8 + (j - 8)//2, "_", woh(j, 0)); D(j - 8 + (j - 7)//2, ("o", j), woh(j, 1)); W(j - 1, ("o", j))
    a.wait_ds(to[0])
    for j in range(16):
        T, t = j // 2, j % 2
        a(f"{SM} {vr(WA[T])}, {vr(OA + 4*t)}, {wo_reg(j)}, {vIdx}")
        run(j)
        stamp("w%d" % j)
    if A and opt.get("ein"): a(inbox)
    for x in (wf(7, 0), wf(7, 1), wpk(6, 0), wpk(6, 1), tag(6, 0), tag(6, 1), wst(1)): a(x)
    a.drop = ()
    stamp("h1")
    c1, c2 = opt.get("c1", 2) if A else opt.get("c1v", 3), opt.get("c2", 2) if A else opt.get("c2v", 2)
    RD = LS
    work = [lambda: (zero(a, 28, 36, "s[98:99]"), zero(a, 36, 38, "-1"))]
    if A:
        work += [lambda: (a(f"ds_read_b128 v[120:123], {vKa}\n ds_read_b128 v[124:127], {vMem0} offset:4096"), zero(a, 24, 28, "-1")),
                 lambda: zero(a, ACQ, ACQ + 8), lambda: zero(a, ACK, ACK + 8)]
        work += [lambda: busy(a, 2)] * 4
    else:
        for j in range(5): work.append(lambda j=j: (a(wq_half(j, 0)), a(wq_half(j, 1)), zero(a, ACQ + 4*j, ACQ + 4*j + 4)))
        work += [lambda: (zero(a, 24, 28, "-1"), zero(a, ACQ + 20, ACQ + 24)), lambda: zero(a, ACQ + 24, ACQ + 32)]
    pm = opt.get("pe", 0b100100001) if A else opt.get("pl", 0x100)
    for k in range(9):
        if k == 8: busy(a, opt.get("de", 0) if A else opt.get("dl", 0))
        if pm >> k & 1: a(inbox)
        if k < 8: work[k]()
    a(f"s_mov_b32 s96, 0\n s_cmp_lg_u32 s97, 0\n s_cbranch_scc1 {P}_r11")
    for ph in range(2):
        a(f"{P}_r1{ph}:")
        if free == 1: a("s_waitcnt vmcnt(0)")
        op3 = ("v_or3_b32 {0}, {1}, {2}, {3}", "v_bitop3_b32 {0}, {1}, {2}, {3} bitop3:0x80")[ph]
        for k in range(c1):
            a(op3.format("v45", "v28", "v29", "v30")); a(op3.format("v46", "v31", "v32", "v33")); a(op3.format("v45", "v45", "v34", "v35"))
            a(f"""
            v_bitop3_b32 v45, v45, v46, 1 bitop3:{('0xa8', '0x80')[ph]}
            v_cmp_ne_u32 vcc, {'v45' if free else ph}, v45
            {MF} {vr(RD)}, {vr(SEL)}, v[28:31], 0
            {MF} {vr(RD)}, {vr(SEL)}, v[32:35], {vr(RD)}
            s_cbranch_vccz {P}_r1ok
            """)
        a(f"s_mov_b64 exec, vcc\n {inbox}\n s_mov_b64 exec, -1")
        if prof: a("s_add_u32 s30, s30, 1")
        G.spin_tail(a, f"{P}_r1{ph}")
    a(f"{P}_r1ok:")
    stamp("r1")
    gath = f"buffer_load_dwordx4 v[24:27], {vLin}, {WS}, s49 offen sc1"
    a("s_nop 5")
    for k in (4, 8):
        for r in range(RD, RD + 4): a(f"v_add_f32_dpp v{r}, v{r}, v{r} row_ror:{k} row_mask:0xf bank_mask:0xf")
    a(cvt(RD, RD, RD+1)); a(cvt(RD+1, RD+2, RD+3))
    if not A and opt.get("gx"): a(gath)
    a(f"s_mov_b64 exec, s[58:59]\n buffer_store_dwordx2 {vr(RD, 2)}, {vPub}, {WS}, s48 offen {st}")
    stamp("h2")
    a(f"buffer_store_dwordx2 v[36:37], {vPub}, {WS}, s51 offen {st}\n s_mov_b64 exec, -1")
    busy(a, opt.get("ge", 4) if A else opt.get("gl", 0))
    a(gath)
    addr_prep(a)
    if A: next_seg(a, P)
    else: busy(a, opt.get("gv", 5))
    if opt.get("g2", 3) >> (0 if A else 1) & 1: a(gath)
    a(f"s_add_u32 s6, s6, 1\n s_add_u32 s53, s53, 0x20000\n s_mov_b32 s96, 0\n v_mov_b32 {vT}, 0")
    ring_next(a)
    a("s_waitcnt lgkmcnt(0)")
    stamp("g1")
    a(f"{P}_r2:")
    if free == 1: a("s_waitcnt vmcnt(0)")
    for k in range(c2):
        a(f"v_max3_u32 {vT}, v24, v25, v26\n v_max_u32 {vT}, {vT}, v27\n v_cmp_eq_u32 vcc, -1, {'v0' if free else vT}")
        a(f"s_cbranch_vccz {P}_prof" if prof == 1 else f"s_cbranch_vccz {P}_loop")
    a(f"s_mov_b64 exec, vcc\n {gath}\n s_mov_b64 exec, -1")
    if prof: a("s_add_u32 s31, s31, 1")
    G.spin_tail(a, f"{P}_r2")
    if prof == 1:
        a(f"{P}_prof:")
        stamp("end")
        a("s_waitcnt lgkmcnt(0)")
        a(f"s_cmp_lt_u32 s6, 5\n s_cbranch_scc1 {P}_loop")
        for k in range(cnt[0] - 1): a(f"s_sub_u32 s7, s{62+2*k}, s{60+2*k}\n s_add_u32 s{20+k}, s{20+k}, s7")
        a(f"s_branch {P}_loop")
    a(f"{P}_lretry:")
    a(f"s_mov_b64 exec, vcc\n buffer_load_dwordx4 {vr(LS)}, {vLin}, {WS}, s50 offen sc1\n s_mov_b64 exec, -1\n s_waitcnt vmcnt(0)")
    if prof: a("s_add_u32 s29, s29, 1")
    a(f"v_max3_u32 {vT}, v{LS}, v{LS+1}, v{LS+2}\n v_max_u32 {vT}, {vT}, v{LS+3}\n v_cmp_eq_u32 vcc, -1, {vT}\n ds_write_b128 {vMem0}, {vr(LS)} offset:4096\n s_waitcnt lgkmcnt(0)\n s_cbranch_vccz {P}_lok")
    G.spin_tail(a, f"{P}_lretry")
    if A: fb_wait(a, P)

def role_chain(a, opt):
    startup(a, opt)
    loop(a, opt, "FA", "", True)
    loop(a, opt, "FV", "", False)
    loop(a, opt, "SA", "sc1", True)
    loop(a, opt, "SV", "sc1", False)
    a(f"L_chain_done:\n ds_read_b128 {vr(KV)}, {vKp}\n s_add_u32 s53, s53, 0x20000\n s_waitcnt lgkmcnt(0)")
    for k in range(2): a(f"buffer_store_dwordx4 {vr(KV + 4*k)}, {vLin}, {G.WS}, s53 offen offset:{2048*k} sc1")
    a("L_chain_end:\n s_waitcnt vmcnt(0)")
    G.tl(a, opt, 3)
    if opt.get("prof"):
        a(f"s_lshl_b32 s7, s4, 2\n s_add_u32 s7, s7, s3\n s_lshl_b32 s7, s7, 6\n s_add_u32 s7, s7, {G.PROF}\n s_mov_b64 exec, 1")
        for k in range(12):
            a(f"v_mov_b32 v24, s{20+k}\n buffer_store_dword v24, off, {G.WS}, s7 offset:{4*k} sc1")
    a("s_waitcnt vmcnt(0)\n s_endpgm")
```

```python
import sys, math, struct
from asmlib2 import *

NAME = "gated_mix__memory_aug_recurrent_mem_tr__glu_gated_reglu__prompt"

FLG_FB  = 0x0000
FLG_FC  = 0x2000
FLG_FF  = 0x2400
MEMB = 0x10000
SCR  = 0x50000
PART = 0x100000
KVM  = 0x300000
KXV  = 0x1000000
CP   = 0x3000000
FP   = 0x7000000
PROF = 0x9000000
QXG  = 0xA000000
D_CH, D_INIT, D_WK, D_ERR = 0, 64, 128, 192
WSTR = 32784
L_KX, L_MX, L_QK, L_OB, L_KV, L_ROLE = 131200, 139392, 147584, 152704, 156800, 161792
XROW = 1040; XBUF = 32 * XROW
L_OX = 2 * XBUF; L_KM = L_OX + 8192; L_VM = L_KM + 2048
LDS_BYTES = 163840
SPIN = 1 << 17

X, WS, DBG, OUT, W1, W2, W3, W4 = ["s[%d:%d]" % (b, b + 3) for b in (8, 12, 16, 20, 24, 28, 32, 36)]
P_X, P_MEM0, P_WQ, P_WK, P_WV, P_WO, P_WG, P_WU, P_WD, P_GW, P_OUT, P_DBG, P_WS = 60, 62, 64, 66, 68, 70, 76, 78, 80, 82, 84, 86, 88

def f32bits(x): return struct.unpack("<I", struct.pack("<f", x))[0]
CSC = f32bits(128 ** -0.5 * math.log2(math.e))

def srd(a, base, ptr, size):
    a(f"s_mov_b32 s{base}, s{ptr}\n s_mov_b32 s{base+1}, s{ptr+1}\n s_mov_b32 s{base+2}, {size}\n s_mov_b32 s{base+3}, 0x20000")

def spin_tail(a, loop, sleep=0):
    if sleep: a(f"s_sleep {sleep}")
    a(f"s_add_u32 s96, s96, 1\n s_cmp_lt_u32 s96, {SPIN}\n s_cbranch_scc1 {loop}\n s_branch L_bail")

def wait_scalar(a, srdn, soff, need, dst, vt, sleep=1):
    lp = a.label("WS"); ok = a.label("WSOK")
    a(f"s_mov_b32 s96, 0\n{lp}:")
    a(f"buffer_load_dword {vt}, off, {srdn}, {soff} sc1\n s_waitcnt vmcnt(0)\n v_readfirstlane_b32 {dst}, {vt}")
    a(f"s_nop 3\n s_cmp_ge_u32 {dst}, {need}\n s_cbranch_scc1 {ok}")
    spin_tail(a, lp, sleep)
    a(f"{ok}:")

def wait_lanes(a, vaddr, soff, nl, need, vt, sleep=1):
    lp = a.label("WL"); ok = a.label("WLOK")
    a(f"s_mov_b32 s96, 0\n s_mov_b32 exec_lo, {hex((1 << nl) - 1)}\n s_mov_b32 exec_hi, 0\n{lp}:")
    a(f"buffer_load_dword {vt}, {vaddr}, {WS}, {soff} offen sc1\n s_waitcnt vmcnt(0)\n v_cmp_gt_u32 vcc, {need}, {vt}\n s_cbranch_vccz {ok}")
    spin_tail(a, lp, sleep)
    a(f"{ok}:\n s_mov_b64 exec, -1")

def flag_store(a, soff, sval, vt):
    a(f"v_mov_b32 {vt}, {sval}\n s_mov_b64 exec, 1\n buffer_store_dword {vt}, off, {WS}, {soff} sc1\n s_mov_b64 exec, -1")

TL = PROF + 0x10000
def tl(a, opt, k, vt="v24"):
    if not opt.get("tl"): return
    sk = a.label("TL")
    a(f"s_cmp_lg_u32 s3, 0\n s_cbranch_scc1 {sk}\n s_memrealtime s[100:101]\n s_waitcnt lgkmcnt(0)\n v_mov_b32 {vt}, s100")
    a(f"s_lshl_b32 s100, s2, 5\n s_add_u32 s100, s100, {TL}\n s_mov_b64 exec, 1\n buffer_store_dword {vt}, off, {WS}, s100 offset:{4*k} sc1")
    if k in (2, 3):
        a(f"s_memtime s[98:99]\n s_waitcnt lgkmcnt(0) vmcnt(0)\n v_mov_b32 {vt}, s98\n buffer_store_dword {vt}, off, {WS}, s100 offset:{4*(k+3)} sc1")
    a(f"s_mov_b64 exec, -1\n{sk}:")

def wp(a, opt, k):
    if not opt.get("wprof"): return
    a(f"s_memtime s[100:101]\n s_waitcnt lgkmcnt(0)\n s_sub_u32 s99, s100, s98\n s_mov_b32 s98, s100")
    if k is not None: a(f"s_add_u32 s{76+k}, s{76+k}, s99")
def wp_init(a, opt):
    if not opt.get("wprof"): return
    for k in range(8): a(f"s_mov_b32 s{76+k}, 0")
    wp(a, opt, None)
def wp_dump(a, opt):
    if not opt.get("wprof"): return
    a(f"s_lshl_b32 s7, s2, 2\n s_add_u32 s7, s7, s3\n s_lshl_b32 s7, s7, 5\n s_add_u32 s7, s7, {PROF + 0x20000}\n s_mov_b64 exec, 1")
    for k in range(8): a(f"v_mov_b32 v24, s{76+k}\n buffer_store_dword v24, off, {WS}, s7 offset:{4*k} sc1")
    a("s_mov_b64 exec, -1")

def init_arrive(a, vt):
    sk = a.label("IA")
    a(f"s_barrier\n s_cmp_lg_u32 s3, 0\n s_cbranch_scc1 {sk}")
    a(f"v_mov_b32 {vt}, 1\n s_mov_b64 exec, 1\n buffer_atomic_add {vt}, off, {DBG}, 0 offset:{D_INIT}\n s_mov_b64 exec, -1\n{sk}:")
    a.vm_n -= 1

def load_stream(a, jobs, tmp=32, depth=12, out=128):
    units = [(job, u) for job in jobs for u in range(16)]
    n = len(units); tok = {}
    def issue(k):
        job, u = units[k]
        a(f"s_mov_b32 s7, {job['row'](u) * job['stride']}")
        r = tmp + 8 * (k % depth)
        a(f"buffer_load_dwordx4 {vr(r)}, {job['v0']}, {job['srd']}, s7 offen")
        if job['stride'] < 4096:
            tok[k] = a.vm(f"buffer_load_dwordx4 {vr(r+4)}, {job['v0']}, {job['srd']}, s7 offen offset:{job['stride']}")
        else:
            tok[k] = a.vm(f"buffer_load_dwordx4 {vr(r+4)}, {job['v1']}, {job['srd']}, s7 offen")
    for k in range(min(depth, n)): issue(k)
    for k in range(n):
        job, u = units[k]
        a.wait_vm(tok[k])
        r = tmp + 8 * (k % depth)
        for c in range(8):
            d = job['dst'](u, c) if (job['kind'] == 'reg' or c in job.get('regc', ())) else out + 4*c + u % 4
            a(f"v_perm_b32 v{d}, v{r+4+c//2}, v{r+c//2}, s{40 + c % 2}")
        if k + depth < n: issue(k + depth)
        if job.get('group'):
            if u % 4 == 3: job['group'](u // 4)
        elif job['kind'] == 'lds' and u % 4 == 3:
            for c in range(8):
                if c not in job.get('regc', ()): a(f"ds_write_b128 {job['vdst']}, {vr(out + 4*c)} offset:{job['imm'](u // 4, c)}")
        if u == 15 and job.get('done'): job['done']()

def lds_to_regs(a, vsrc, dst, first=0):
    def done():
        a("s_waitcnt lgkmcnt(0)\n s_barrier")
        for f in range(first, 32): a(f"ds_read_b128 {dst(f)}, {vsrc} offset:{f*1024}")
        a("s_waitcnt lgkmcnt(0)\n s_barrier")
    return done

def w1_setup(a, stride, scol):
    a(f"""
    s_mov_b32 s90, {8*stride}
    v_mul_lo_u32 v24, v1, s90
    v_lshl_add_u32 v24, v2, 4, v24
    s_mul_i32 s7, s3, {128*stride}
    s_add_u32 s7, s7, {scol}
    v_add_u32 v24, s7, v24
    v_add_u32 v25, {stride}, v24
    v_lshrrev_b32 v26, 2, v2
    s_mov_b32 s90, {WSTR}
    v_mul_lo_u32 v26, v26, s90
    v_lshl_add_u32 v26, v1, 8, v26
    v_and_b32 v27, 3, v2
    v_lshl_add_u32 v26, v27, 6, v26
    s_lshl_b32 s7, s3, 13
    v_add_u32 v26, s7, v26
    s_mul_i32 s7, s3, {WSTR}
    v_add_u32 v27, s7, v0
    """)

def w1_job(a, srdn, stride, dst):
    return dict(kind='lds', srd=srdn, stride=stride, v0="v24", v1="v25", row=lambda u: 32*(u//4) + 2*(u%4), vdst="v26",
                imm=lambda grp, c: (grp*2 + c % 2)*1024 + (c//2)*16, done=lds_to_regs(a, "v27", dst))

def w2_job(a, srdn, sbase):
    a(f"v_lshlrev_b32 v28, 13, v1\n v_lshl_add_u32 v28, v2, 4, v28\n s_lshl_b32 s7, s3, 8\n s_add_u32 s7, s7, {sbase}\n v_add_u32 v28, s7, v28")
    return dict(kind='reg', srd=srdn, stride=1024, v0="v28", row=lambda u: 32*(u//4) + 2*(u%4),
                dst=lambda u, T: 128 + (T*4 + u//4)*4 + u % 4)

def prologue(a, opt):
    a(f"""
    s_cmp_ge_u32 s2, 256
    s_cbranch_scc1 L_end
    s_load_dwordx16 s[60:75], s[0:1], 0
    s_load_dwordx8 s[76:83], s[0:1], 64
    s_load_dwordx4 s[84:87], s[0:1], 96
    s_load_dwordx2 s[88:89], s[0:1], 112
    v_lshrrev_b32 v1, 6, v0
    v_and_b32 v0, 63, v0
    v_readfirstlane_b32 s3, v1
    s_mov_b32 s40, 0x05040100
    s_mov_b32 s41, 0x07060302
    s_mov_b32 s42, {CSC}
    s_getreg_b32 s4, hwreg(HW_REG_XCC_ID)
    s_and_b32 s4, s4, 15
    """)
    if opt.get("force_slow"):
        a("s_cmp_lt_u32 s2, 20\n s_cselect_b32 s4, 0, 1")
    a("s_waitcnt lgkmcnt(0)")
    srd(a, 8, P_X, 0x200000); srd(a, 12, P_WS, 0x10000000); srd(a, 16, P_DBG, 256)
    a(f"""
    v_mov_b32 v3, {L_ROLE}
    """)
    tl(a, opt, 0)
    a(f"""
    s_cmp_lg_u32 s3, 0
    s_cbranch_scc1 L_role_wait
    s_mov_b64 exec, 1
    s_cmp_lg_u32 s4, 0
    s_cbranch_scc1 L_role_worker
    v_mov_b32 v2, 1
    buffer_atomic_add v2, off, {DBG}, 0 offset:{D_CH} sc0
    s_waitcnt vmcnt(0)
    v_readfirstlane_b32 s5, v2
    s_nop 3
    s_cmp_lt_u32 s5, 32
    s_cbranch_scc1 L_role_have
    L_role_worker:
    v_mov_b32 v2, 1
    buffer_atomic_add v2, off, {DBG}, 0 offset:{D_WK} sc0
    s_waitcnt vmcnt(0)
    v_readfirstlane_b32 s5, v2
    s_nop 3
    s_sub_u32 s7, 255, s5
    s_add_u32 s5, s5, 32
    s_cmp_ge_u32 s5, 256
    s_cselect_b32 s5, s7, s5
    L_role_have:
    v_mov_b32 v2, s5
    ds_write_b32 v3, v2
    s_waitcnt lgkmcnt(0)
    s_mov_b64 exec, -1
    L_role_wait:
    s_barrier
    ds_read_b32 v2, v3
    s_waitcnt lgkmcnt(0)
    v_readfirstlane_b32 s4, v2
    v_lshrrev_b32 v1, 4, v0
    v_and_b32 v2, 15, v0
    s_nop 2
    s_and_b32 s4, s4, 255
    """)
    tl(a, opt, 1)
    if opt.get("tl"):
        a(f"v_mov_b32 v24, s4\n s_lshl_b32 s100, s2, 5\n s_add_u32 s100, s100, {TL}\n buffer_store_dword v24, off, {WS}, s100 offset:28 sc1")
    a(f"""
    s_cmp_lt_u32 s4, 32
    s_cbranch_scc1 L_chain
    s_cmp_lt_u32 s4, 96
    s_cbranch_scc1 L_B
    """)
    if not opt.get("nocfr"): a("""
    s_cmp_lt_u32 s4, 160
    s_cbranch_scc1 L_C
    s_cmp_lt_u32 s4, 188
    s_cbranch_scc1 L_F
    s_cmp_lt_u32 s4, 252
    s_cbranch_scc1 L_R
    """)
    init_arrive(a, "v3")
    a(f"""
    s_waitcnt vmcnt(0)
    s_endpgm
    L_bail:
    s_mov_b64 exec, 1
    v_mov_b32 v0, s4
    v_add_u32 v0, 0x100, v0
    buffer_store_dword v0, off, {DBG}, 0 offset:{D_ERR}
    s_waitcnt vmcnt(0)
    L_end:
    s_endpgm
    """)

def x_dma(a, sseg, sbuf):
    a(f"s_lshl_b32 s90, {sseg}, 15\n s_lshl_b32 s91, s3, 13\n s_add_u32 s90, s90, s91")
    a(f"s_mul_i32 s91, s3, {8*XROW}\n s_add_u32 s91, s91, {sbuf}")
    for r in range(8):
        a(f"s_add_u32 m0, s91, {r*XROW}")
        a(f"s_nop 0\n buffer_load_dwordx4 v0, {X}, s90 offen lds")
        if r < 7: a("s_add_u32 s90, s90, 1024")

def gemm1(a, vx, mats, fr, mid=None):
    tok = {}
    def rd(t):
        for rt in range(2):
            tok[t] = a.ds(f"ds_read_b128 {vr(fr + 8*(t%3) + 4*rt)}, {vx} offset:{rt*16*XROW + t*64}")
    rd(0); rd(1)
    for t in range(16):
        if t + 2 < 16: rd(t + 2)
        a.wait_ds(tok[t])
        for wreg, acc, wA in mats:
            for T in range(2):
                for rt in range(2):
                    xf = vr(fr + 8*(t%3) + 4*rt); d = vr(acc(T, rt)); c = d if t else "0"
                    A, B = (wreg(t, T), xf) if wA else (xf, wreg(t, T))
                    a(f"v_mfma_f32_16x16x32_bf16 {d}, {A}, {B}, {c}")
        if mid and t == mid[0]: mid[1]()

def stage2(a, vrd, vst, sdst, oa, acc, tmp):
    tok = {}
    for rt in range(2):
        for t in range(4):
            tok[(rt, t)] = a.ds(f"ds_read_b128 {vr(oa + (rt*4+t)*4)}, {vrd} offset:{(rt*4+t)*1024}")
    def cv(rt, i, p):
        a(f"v_cvt_pk_bf16_f32 v{tmp + 4*(i%2) + p}, v{acc + (rt*8+2*p)*4 + i}, v{acc + (rt*8+2*p+1)*4 + i}")
    def st(rt, i):
        a(f"buffer_store_dwordx4 {vr(tmp + 4*(i%2))}, {vst}, {WS}, {'s7' if rt else sdst} offen offset:{i*1024} sc1")
    a(f"s_add_u32 s7, {sdst}, 16384")
    for rt in range(2):
        for t in range(4):
            a.wait_ds(tok[(rt, t)])
            for T in range(8):
                d = vr(acc + (rt*8+T)*4)
                a(f"v_mfma_f32_16x16x32_bf16 {d}, {vr(oa + (rt*4+t)*4)}, {vr(128 + (T*4+t)*4)}, {d if t else '0'}")
                if rt == 1 and 2 <= T < 6: cv(0, t, T - 2)
                if rt == 1 and T == 6: st(0, t)
    for i in range(4):
        for p in range(4): cv(1, i, p)
        st(1, i)

def worker_top(a, name, nst):
    a("s_waitcnt vmcnt(0)")
    a(f"{name}_loop:\n s_waitcnt vmcnt({nst})\n s_barrier")
    a(f"s_lshl_b32 s43, s6, 1\n s_add_u32 s43, s43, s5")
    a(f"s_add_u32 s44, s43, 2\n s_min_u32 s44, s44, 63\n s_sub_u32 s45, {XBUF}, s46")
    x_dma(a, "s44", "s45")
    a(f"v_add_u32 v4, s46, v3")

def worker_bot(a, name):
    a(f"s_sub_u32 s46, {XBUF}, s46\n s_add_u32 s6, s6, 1\n s_cmp_lt_u32 s6, 32")
    a.fence()
    a(f"s_cbranch_scc1 {name}_loop")

def worker_init(a, first, per):
    a(f"s_sub_u32 s4, s4, {first}\n s_cmp_ge_u32 s4, {per}\n s_cselect_b32 s5, 1, 0\n s_cselect_b32 s7, {per}, 0\n s_sub_u32 s4, s4, s7")
    a("s_mov_b32 s6, 0\n s_mov_b32 s46, 0")
    a(f"s_mov_b32 s7, {XROW}\n v_mul_lo_u32 v3, v2, s7\n v_lshl_add_u32 v3, v1, 4, v3\n v_lshlrev_b32 v0, 4, v0")

def wave_flag(a, base):
    a(f"s_lshl_b32 s47, s5, 2\n s_add_u32 s47, s47, s3\n s_lshl_b32 s47, s47, 7\n s_lshl_b32 s7, s4, 2\n s_add_u32 s47, s47, s7\n s_add_u32 s47, s47, {base}")
    flag_store(a, "s47", "0", "v24")

def worker_end(a, opt):
    wp_dump(a, opt)
    tl(a, opt, 3)
    a("s_waitcnt vmcnt(0)\n s_endpgm")

def role_B(a, opt):
    a("L_B:")
    worker_init(a, 32, 32)
    a(f"s_lshl_b32 s47, s4, 7\n s_lshl_b32 s7, s5, 2\n s_add_u32 s47, s47, s7\n s_add_u32 s47, s47, {FLG_FB}")
    flag_store(a, "s47", "0", "v24")
    a("s_waitcnt vmcnt(0)")
    init_arrive(a, "v24")
    srd(a, 24, P_WK, 0x400000); srd(a, 28, P_WV, 0x400000); srd(a, 32, P_WQ, 0x400000)
    a("s_lshl_b32 s48, s4, 8")
    w1_setup(a, 8192, "s48")
    load_stream(a, [w1_job(a, W1, 8192, lambda f: ar(4*f)), w1_job(a, W2, 8192, lambda f: ar(128 + 4*f)),
                    w1_job(a, W3, 8192, lambda f: vr(128 + 4*f))])
    x_dma(a, "s5", "s46")
    tl(a, opt, 2)
    wp_init(a, opt)
    def publish():
        sk = a.label("BF")
        a(f"s_barrier\n s_cmp_lg_u32 s3, 0\n s_cbranch_scc1 {sk}")
        flag_store(a, "s47", "s6", "v24")
        a(f"{sk}:")
    worker_top(a, "B", 6)
    wp(a, opt, 0)
    gemm1(a, "v4", [(lambda t, T: ar((t*2+T)*4), lambda T, rt: 64 + (T*2+rt)*4, True),
                    (lambda t, T: ar(128 + (t*2+T)*4), lambda T, rt: 80 + (T*2+rt)*4, False),
                    (lambda t, T: vr(128 + (t*2+T)*4), lambda T, rt: 96 + (T*2+rt)*4, True)], 32,
          mid=(4, lambda: (a("s_waitcnt vmcnt(8)"), publish())))
    wp(a, opt, 1)
    a(f"s_lshl_b32 s52, s43, 5\n s_add_u32 s52, s52, s4\n s_lshl_b32 s48, s52, 14\n s_add_u32 s48, s48, {KXV}")
    a("s_lshl_b32 s7, s3, 10\n s_add_u32 s49, s48, s7\n s_add_u32 s50, s49, 4096")
    a(f"s_lshl_b32 s52, s52, 13\n s_add_u32 s52, s52, s7\n s_add_u32 s52, s52, {QXG}\n s_add_u32 s53, s52, 4096")
    a("s_lshl_b32 s7, s3, 11\n s_add_u32 s51, s48, s7\n s_add_u32 s51, s51, 8192")
    for rt in range(2):
        r = 112 + 4*rt
        for i in range(4): a(f"v_cvt_pk_bf16_f32 v{r+i}, v{64 + rt*4 + i}, v{64 + (2+rt)*4 + i}")
        a(f"buffer_store_dwordx4 {vr(r)}, v0, {WS}, s{49+rt} offen sc1")
    for T in range(2):
        r = 120 + 4*T; b = 80 + T*8
        for p in range(4): a(f"v_cvt_pk_bf16_f32 v{r+p}, v{b + 2*p}, v{b + 2*p + 1}")
        a(f"buffer_store_dwordx4 {vr(r)}, v0, {WS}, s51 offen offset:{T*1024} sc1")
    for rt in range(2):
        r = 56 + 4*rt
        for i in range(4): a(f"v_cvt_pk_bf16_f32 v{r+i}, v{96 + rt*4 + i}, v{96 + (2+rt)*4 + i}")
        a(f"buffer_store_dwordx4 {vr(r)}, v0, {WS}, s{52+rt} offen sc1")
    wp(a, opt, 7)
    worker_bot(a, "B")
    a("s_waitcnt vmcnt(0)")
    publish()
    worker_end(a, opt)

def st2_addrs(a):
    a(f"v_add_u32 v6, {L_OX}, v0")
    a(f"v_lshlrev_b32 v7, 12, v1\n v_lshl_add_u32 v7, v2, 4, v7\n s_lshl_b32 s7, s3, 8\n v_add_u32 v7, s7, v7")

def role_F(a, opt):
    a("L_F:")
    worker_init(a, 160, 14)
    wave_flag(a, FLG_FF)
    a("s_waitcnt vmcnt(0)")
    init_arrive(a, "v24")
    srd(a, 24, P_WG, 512*3584); srd(a, 28, P_WU, 512*3584); srd(a, 32, P_WD, 1792*1024)
    a("s_lshl_b32 s48, s4, 8")
    w1_setup(a, 3584, "s48")
    a("s_lshl_b32 s48, s4, 17")
    load_stream(a, [w1_job(a, W1, 3584, lambda f: ar(4*f)), w1_job(a, W2, 3584, lambda f: ar(128 + 4*f)), w2_job(a, W3, "s48")])
    x_dma(a, "s5", "s46")
    st2_addrs(a)
    a("s_lshl_b32 s7, s3, 10\n v_add_u32 v5, s7, v6")
    tl(a, opt, 2)
    wp_init(a, opt)
    worker_top(a, "F", 8)
    wp(a, opt, 0)
    gemm1(a, "v4", [(lambda t, T: ar((t*2+T)*4), lambda T, rt: 64 + (T*2+rt)*4, True),
                    (lambda t, T: ar(128 + (t*2+T)*4), lambda T, rt: 80 + (T*2+rt)*4, True)], 32,
          mid=(9, lambda: (a("s_waitcnt vmcnt(8)"), flag_store(a, "s47", "s6", "v24"))))
    wp(a, opt, 1)
    for r in range(16): a(f"v_max_f32 v{64+r}, 0, v{64+r}")
    for r in range(16): a(f"v_mul_f32 v{64+r}, v{64+r}, v{80+r}")
    for rt in range(2):
        r = 96 + 4*rt
        for i in range(4): a(f"v_cvt_pk_bf16_f32 v{r+i}, v{64 + rt*4 + i}, v{64 + (2+rt)*4 + i}")
        a(f"ds_write_b128 v5, {vr(r)} offset:{rt*4096}")
    a(f"s_lshl_b32 s48, s43, 4\n s_add_u32 s48, s48, s4\n s_lshl_b32 s48, s48, 15\n s_add_u32 s48, s48, {FP}")
    a("s_waitcnt lgkmcnt(0)\n s_barrier")
    stage2(a, "v6", "v7", "s48", 32, 64, 24)
    wp(a, opt, 7)
    worker_bot(a, "F")
    a("s_waitcnt vmcnt(0)")
    flag_store(a, "s47", "s6", "v24")
    worker_end(a, opt)

def softmax(a, X0, X1, M, t, pX, pM):
    a(f"""
    v_max3_f32 v{t}, v{X0}, v{X0+1}, v{X0+2}
    v_max3_f32 v{t+1}, v{X0+3}, v{X1}, v{X1+1}
    v_max3_f32 v{t}, v{t}, v{X1+2}, v{X1+3}
    v_max3_f32 v{t+1}, v{t+1}, v{M}, v{M+1}
    v_max_f32 v{t}, v{t}, v{t+1}
    v_max_f32 v{t+1}, v{t}, v{t+1}
    v_permlane16_swap_b32 v{t}, v{t+1}
    v_max_f32 v{t+2}, v{t}, v{t+1}
    v_max_f32 v{t+3}, v{t}, v{t+1}
    v_permlane32_swap_b32 v{t+2}, v{t+3}
    v_max_f32 v{t}, v{t+2}, v{t+3}
    v_mul_f32 v{t}, s42, v{t}
    """)
    regs = [X0, X0+1, X0+2, X0+3, X1, X1+1, X1+2, X1+3, M, M+1]
    for r in regs: a(f"v_fma_f32 v{r}, v{r}, s42, -v{t}")
    for k, r in enumerate(regs):
        a(f"v_exp_f32 v{r}, v{r}")
        if k >= 2 and k % 2 == 0: a(f"v_cvt_pk_bf16_f32 v{pX + k//2 - 1}, v{regs[k-2]}, v{regs[k-1]}")
    a(f"v_cvt_pk_bf16_f32 v{pM}, v{M}, v{M+1}\n v_cvt_pk_bf16_f32 v{pM+3}, v{M}, v{M+1}")

def role_C(a, opt):
    a("L_C:")
    worker_init(a, 96, 32)
    wave_flag(a, FLG_FC)
    a(f"s_lshl_b32 s55, s5, 5\n s_add_u32 s55, s55, s4\n s_lshl_b32 s55, s55, 12\n s_lshl_b32 s7, s3, 10\n s_add_u32 s55, s55, s7\n s_add_u32 s55, s55, {KVM}")
    a("v_mov_b64 v[24:25], -1\n v_mov_b64 v[26:27], -1\n s_mov_b32 s7, s55")
    for k in range(32): a(f"buffer_store_dwordx4 v[24:27], v0, {WS}, s7 offen sc1\n s_add_u32 s7, s7, 0x40000")
    a("s_waitcnt vmcnt(0)")
    init_arrive(a, "v24")
    srd(a, 28, P_WO, 0x400000)
    a("s_lshl_b32 s48, s4, 17")
    load_stream(a, [w2_job(a, W2, "s48")])
    st2_addrs(a)
    a(f"""
    s_lshr_b32 s52, s3, 1
    s_and_b32 s53, s3, 1
    v_lshrrev_b32 v24, 2, v2
    s_lshl_b32 s7, s3, 10
    s_add_u32 s90, s7, {L_KM}
    v_add_u32 v8, s90, v0
    s_lshl_b32 s7, s53, 10
    s_add_u32 s7, s7, {L_VM}
    v_add_u32 v11, s7, v0
    v_and_b32 v25, 1, v2
    v_lshl_add_u32 v10, v24, 1, v25
    v_lshlrev_b32 v10, 4, v10
    v_lshl_add_u32 v10, v1, 7, v10
    v_add_u32 v10, {L_KM}, v10
    s_lshl_b32 s7, s3, 11
    v_add_u32 v12, s7, v6
    s_lshl_b32 s7, s52, 4
    v_add_u32 v14, s7, v2
    v_lshlrev_b32 v15, 2, v1
    v_sub_u32 v14, v14, v15
    """)
    for k in range(8):
        a(f"v_cmp_le_i32 s[{60+2*k}:{61+2*k}], {k if k < 4 else 12 + k}, v14")
    a("v_mov_b32 v14, 0xf149f2ca")
    for r in range(16, 20): a(f"v_mov_b32 v{r}, 0x3f803f80")
    a("v_mov_b32 v21, 0\n v_mov_b32 v22, 0")
    a(f"s_lshl_b32 s54, s4, 7\n s_lshl_b32 s7, s5, 2\n s_add_u32 s54, s54, s7\n s_add_u32 s54, s54, {FLG_FB}\n s_mov_b32 s56, 0")
    wait_scalar(a, DBG, D_INIT, 256, "s7", "v24", 8)
    QB, KX, VX = 0, 16, 48
    a("s_lshl_b32 s7, s52, 12\n s_add_u32 s7, s7, 16384\n v_add_u32 v3, s7, v0\n s_lshl_b32 s7, s53, 12\n s_add_u32 s7, s7, 8192\n v_add_u32 v4, s7, v0")
    def fetch(sidx):
        ok = a.label("CB")
        a(f"s_cmp_gt_u32 s56, {sidx}\n s_cbranch_scc1 {ok}\n s_add_u32 s57, {sidx}, 1")
        wait_scalar(a, WS, "s54", "s57", "s56", "v13", 4)
        a(f"{ok}:")
        a(f"s_lshl_b32 s49, {sidx}, 1\n s_add_u32 s49, s49, s5\n s_lshl_b32 s49, s49, 5\n s_add_u32 s49, s49, s4")
        a(f"s_lshl_b32 s57, s49, 13\n s_lshl_b32 s7, s3, 11\n s_add_u32 s57, s57, s7\n s_add_u32 s57, s57, {QXG}\n s_add_u32 m0, s7, 16384")
        a(f"s_lshl_b32 s49, s49, 14\n s_add_u32 s49, s49, {KXV}\n s_lshl_b32 s7, s3, 12\n s_add_u32 s49, s49, s7")
        for f in range(2): a(f"buffer_load_dwordx4 v0, {WS}, s57 offen offset:{f*1024} {['sc1', '', 'nt'][opt.get('cf', 0)]} lds")
        a("s_mov_b32 m0, s7")
        for f in range(4): a(f"buffer_load_dwordx4 v0, {WS}, s49 offen offset:{f*1024} {['sc1', '', 'nt'][opt.get('cf', 0)]} lds")
    fetch("s6")
    tl(a, opt, 2)
    wp_init(a, opt)
    a("C_loop:\n s_waitcnt vmcnt(0)")
    flag_store(a, "s47", "s6", "v13")
    a("s_cmp_eq_u32 s6, 32\n s_cbranch_scc1 C_last\n s_barrier")
    wp(a, opt, 0)
    for f in range(4): a(f"ds_read_b128 {ar(QB + 4*f)}, v3 offset:{f*1024}")
    for f in range(8): a(f"ds_read_b128 {ar(KX + 4*f)}, v0 offset:{f*1024}")
    for f in range(4): a(f"ds_read_b128 {ar(VX + 4*f)}, v4 offset:{f*1024}")
    a("s_waitcnt lgkmcnt(0)")
    KM, VM, X0, X1, M = 96, 112, 116, 120, 124
    for rt in range(2):
        d = vr(X0 + 4*rt)
        for t in range(4): a(f"v_mfma_f32_16x16x32_bf16 {d}, {ar(KX + (rt*4+t)*4)}, {ar(QB + 4*t)}, {d if t else '0'}")
    for k in range(8): a(f"v_cndmask_b32 v{X0+k}, v14, v{X0+k}, s[{60+2*k}:{61+2*k}]")
    wp(a, opt, 1)
    a(f"""
    s_mov_b32 s96, 0
    C_poll:
    buffer_load_dwordx4 v[24:27], v0, {WS}, s55 offen sc1
    s_waitcnt vmcnt(0)
    v_max3_u32 v28, v24, v25, v26
    v_max_u32 v28, v28, v27
    v_cmp_eq_u32 vcc, -1, v28
    s_cbranch_vccz C_have
    """)
    spin_tail(a, "C_poll", opt.get("slc", 2))
    a("C_have:")
    wp(a, opt, 3)
    a("ds_write_b128 v8, v[24:27]\n s_add_u32 s55, s55, 0x40000\n s_waitcnt lgkmcnt(0)\n s_barrier")
    tk = [a.ds(f"ds_read_b128 {vr(KM + 4*t)}, v10 offset:{t*512}") for t in range(4)]
    a(f"ds_read_b128 {vr(VM)}, v11")
    for t in range(4):
        a.wait_ds(tk[t])
        a(f"v_mfma_f32_16x16x32_bf16 {vr(M)}, {vr(KM + 4*t)}, {ar(QB + 4*t)}, {vr(M) if t else '0'}")
    a("s_add_u32 s44, s6, 1\n s_min_u32 s44, s44, 31")
    fetch("s44")
    wp(a, opt, 4)
    PX, PM, O, Lr = 24, 20, 32, 48
    softmax(a, X0, X1, M, 28, PX, PM)
    a("s_waitcnt lgkmcnt(0)")
    a(f"v_mfma_f32_16x16x32_bf16 {vr(Lr)}, v[16:19], {vr(PX)}, 0")
    for f in range(4): a(f"v_mfma_f32_16x16x32_bf16 {vr(O + 4*f)}, {ar(VX + 4*f)}, {vr(PX)}, 0")
    a(f"v_mfma_f32_16x16x16_bf16 {vr(Lr)}, v[16:17], {vr(PM, 2)}, {vr(Lr)}")
    for f in range(4): a(f"v_mfma_f32_16x16x16_bf16 {vr(O + 4*f)}, {vr(VM + 2*(f//2), 2)}, {vr(PM + 2*(f%2), 2)}, {vr(O + 4*f)}")
    a(f"v_rcp_f32 v28, v{Lr}")
    for r in range(16): a(f"v_mul_f32 v{O+r}, v{O+r}, v28")
    for hw in range(2):
        r = 52 + 4*hw
        for i in range(4): a(f"v_cvt_pk_bf16_f32 v{r+i}, v{O + 8*hw + i}, v{O + 8*hw + 4 + i}")
        a(f"ds_write_b128 v12, {vr(r)} offset:{hw*1024}")
    wp(a, opt, 5)
    a(f"s_lshl_b32 s48, s6, 1\n s_add_u32 s48, s48, s5\n s_lshl_b32 s48, s48, 5\n s_add_u32 s48, s48, s4\n s_lshl_b32 s48, s48, 15\n s_add_u32 s48, s48, {CP}")
    a("s_waitcnt lgkmcnt(0)\n s_barrier")
    wp(a, opt, 6)
    stage2(a, "v6", "v7", "s48", 32, 64, 24)
    wp(a, opt, 7)
    a("s_add_u32 s6, s6, 1")
    a.fence()
    a("s_branch C_loop\nC_last:")
    worker_end(a, opt)

def make_sel(a, b, t):
    a(f"v_and_b32 v{t}, 1, v2\n v_lshlrev_b32 v{t}, 4, v{t}\n v_mov_b32 v{t+1}, 0x3f80\n v_lshlrev_b32 v{t}, v{t}, v{t+1}")
    a(f"v_bfe_u32 v{t+1}, v2, 1, 2")
    for p in range(4):
        a(f"v_cmp_eq_u32 vcc, {p}, v{t+1}\n v_cndmask_b32 v{b+p}, 0, v{t}, vcc")

def role_R(a, opt):
    a("L_R:")
    a("s_sub_u32 s4, s4, 188\n s_lshr_b32 s5, s4, 5\n s_and_b32 s4, s4, 31")
    init_arrive(a, "v24")
    srd(a, 20, P_OUT, 0x200000); srd(a, 24, P_GW, 1024)
    make_sel(a, 16, 24)
    a(f"""
    v_lshlrev_b32 v3, 2, v0
    v_lshlrev_b32 v0, 4, v0
    buffer_load_dwordx4 v[8:11], v0, {W1}, 0 offen
    v_lshlrev_b32 v4, 15, v1
    v_lshl_add_u32 v4, v2, 4, v4
    s_lshl_b32 s7, s4, 10
    s_lshl_b32 s43, s3, 8
    s_add_u32 s7, s7, s43
    v_add_u32 v4, s7, v4
    v_lshlrev_b32 v5, 3, v1
    v_lshl_add_u32 v5, v2, 4, v5
    v_add_u32 v5, s7, v5
    s_lshl_b32 s7, s5, 2
    s_add_u32 s7, s7, s3
    s_lshl_b32 s7, s7, 7
    s_add_u32 s54, s7, {FLG_FC}
    s_add_u32 s55, s7, {FLG_FF}
    s_mov_b32 s6, 0
    s_mov_b32 s58, {f32bits(-math.log2(math.e))}
    """)
    for r in range(76, 80): a(f"v_mov_b32 v{r}, 0")
    wait_scalar(a, DBG, D_INIT, 256, "s7", "v24", 8)
    tl(a, opt, 2)
    a(f"""
    R_loop:
    s_lshl_b32 s43, s6, 1
    s_add_u32 s43, s43, s5
    s_add_u32 s57, s6, 1
    s_lshl_b32 s44, s43, 15
    s_lshl_b32 s7, s4, 10
    s_add_u32 s7, s7, s44
    buffer_load_dwordx4 v[12:15], v0, {X}, s7 offen
    """)
    wait_lanes(a, "v3", "s55", 14, "s57", "v24", 8)
    a(f"s_lshl_b32 s45, s43, 19\n s_add_u32 s45, s45, {FP}")
    for u in range(4):
        if u == 3: a("s_mov_b32 exec_hi, 0")
        a(f"buffer_load_dwordx4 {vr(64 + 4*u)}, v4, {WS}, s45 offen sc1")
        if u < 3: a("s_add_u32 s45, s45, 0x20000")
    a("s_mov_b64 exec, -1")
    a("v_mov_b32 v24, 0")
    for p in range(4): a(f"v_dot2c_f32_bf16 v24, v{12+p}, v{8+p}")
    for k in (8, 4, 2, 1): a(f"v_add_f32_dpp v24, v24, v24 row_ror:{k} row_mask:0xf bank_mask:0xf")
    a("""
    v_mov_b32 v25, v24
    v_permlane16_swap_b32 v24, v25
    v_add_f32 v24, v24, v25
    v_mov_b32 v25, v24
    v_permlane32_swap_b32 v24, v25
    v_add_f32 v24, v24, v25
    v_mul_f32 v24, s58, v24
    v_exp_f32 v24, v24
    v_add_f32 v24, 1.0, v24
    v_rcp_f32 v6, v24
    v_sub_f32 v7, 1.0, v6
    s_waitcnt vmcnt(0)
    """)
    for u in range(4): a(f"v_mfma_f32_16x16x32_bf16 v[28:31], v[16:19], {vr(64 + 4*u)}, {'v[28:31]' if u else '0'}")
    for i in range(4): a(f"v_mul_f32 v{28+i}, v{28+i}, v7")
    wait_lanes(a, "v3", "s54", 32, "s57", "v24", opt.get("slr", 4))
    a(f"s_lshl_b32 s45, s43, 20\n s_add_u32 s45, s45, {CP}")
    tok = []
    for u in range(8):
        tok.append(a.vm(f"buffer_load_dwordx4 {vr(32 + 4*u)}, v4, {WS}, s45 offen sc1"))
        if u < 7: a("s_add_u32 s45, s45, 0x20000")
    for u in range(8):
        a.wait_vm(tok[u])
        a(f"v_mfma_f32_16x16x32_bf16 v[24:27], v[16:19], {vr(32 + 4*u)}, {'v[24:27]' if u else '0'}")
    for i in range(4): a(f"v_fma_f32 v{24+i}, v{24+i}, v6, v{28+i}")
    a(f"""
    v_cvt_pk_bf16_f32 v24, v24, v25
    v_cvt_pk_bf16_f32 v25, v26, v27
    s_mov_b32 exec_hi, 0
    buffer_store_dwordx2 v[24:25], v5, {OUT}, s44 offen {['', 'sc1', 'nt', 'sc0 sc1'][opt.get('ost', 0)]}
    s_mov_b64 exec, -1
    s_add_u32 s6, s6, 1
    s_cmp_lt_u32 s6, 32
    """)
    a.fence()
    a("s_cbranch_scc1 R_loop\n s_waitcnt vmcnt(0)")
    tl(a, opt, 3)
    a("s_waitcnt vmcnt(0)\n s_endpgm")

def build(opt):
    from chain import role_chain
    a = Asm()
    prologue(a, opt)
    if not opt.get("nocfr"): role_R(a, opt)
    role_chain(a, opt)
    role_B(a, opt)
    if not opt.get("nocfr"):
        role_C(a, opt)
        role_F(a, opt)
    hdr = open("cdna_kernels/%s.s.ref" % NAME).read().split("; Override")[0] if opt.get("hdr", True) else ""
    k = NAME + "_kernel"
    return f"""{hdr}; @launch grid=(256,1,1) block=(256,1,1) lds={LDS_BYTES}
.amdgcn_target "amdgcn-amd-amdhsa--gfx950"
.text
.globl {k}
.p2align 8
.type {k},@function
{k}:
{a.text()}.section .rodata,"a"
.p2align 6
.amdhsa_kernel {k}
  .amdhsa_next_free_vgpr 512
  .amdhsa_next_free_sgpr 102
  .amdhsa_accum_offset 256
  .amdhsa_group_segment_fixed_size 0
  .amdhsa_kernarg_size 120
  .amdhsa_user_sgpr_count 2
  .amdhsa_user_sgpr_kernarg_segment_ptr 1
  .amdhsa_system_sgpr_workgroup_id_x 1
.end_amdhsa_kernel
"""

if __name__ == "__main__":
    opt = {}
    out = "cdna_kernels/%s.s" % NAME
    for arg in sys.argv[1:]:
        k, _, v = arg.partition("=")
        if k == "out": out = v
        elif k in ("stamps", "drop", "xp"): opt[k] = v.split(",")
        else: opt[k] = int(v, 0) if v else 1
    open(out, "w").write(build(opt))
    print("wrote", out)
```

```python
from asmlib2 import *
import gen as G

vLin, vPub, vT, vMem0, vIdx, vQw, vOr, vPst = ["v%d" % i for i in range(8)]
vQr, vOw, vInf, vJunk, vKa, vQq = "v8", "v9", "v20", "v21", "v22", "v23"
vW, vKp = "v8", "v9"
FB, SEL, ONES, KV = 10, 12, 16, 60
MEMA, ACQ, ACK = 24, 56, 64
LS = MEMA + 16
ACV, QBUF = 72, [88, 96, 104, 112, 120]
QS = 1280
L_KX, L_VX, L_MX, L_QK, L_W = 0, 8192, 16384, 24576, 29696
L_OB = L_MX
SM = "v_smfmac_f32_16x16x64_bf16"
MF = "v_mfma_f32_16x16x32_bf16"
MF16 = "v_mfma_f32_16x16x16_bf16"

def zero(a, lo, hi, val="0"):
    for r in range(lo, hi, 2): a(f"v_mov_b64 {vr(r, 2)}, {val}")
def busy(a, n):
    for _ in range(n): a(f"v_mov_b32 {vT}, 0\n s_nop 2")
def wq_half(j, h): return f"ds_read_b128 {vr(QBUF[j % 5] + 4*h)}, {vW} offset:{G.WSTR + j*2048 + 1024*h}"
KX, VX = 72, 104
def xv_load(f):
    return f"buffer_load_dwordx4 {vr(KX + 4*f)}, {vLin}, {G.WS}, {('s52', 's87', 's57')[f // 4]} offen offset:{(f % 4)*1024} sc1"
def addr_prep(a):
    for u in range(1, 4): a(f"v_add_u32 v{LS + 4*u}, s{80+u}, {vLin}")

def next_seg(a, P):
    a(f"""
    v_readfirstlane_b32 s84, v{FB}
    v_readfirstlane_b32 s85, v{FB+1}
    s_add_u32 s90, s6, 1
    s_cmp_lt_u32 s90, 64
    s_cselect_b32 s7, 0x80000, 0
    s_add_u32 s52, s52, s7
    s_min_u32 s90, s90, 63
    s_lshr_b32 s91, s90, 1
    s_bitcmp1_b32 s90, 0
    s_cselect_b32 s7, s85, s84
    s_cmp_gt_u32 s7, s91
    s_cbranch_scc0 {P}_fbwait
    {P}_fbok:
    v_mov_b32 {vT}, 0
    s_add_u32 s92, s90, 1
    s_lshr_b32 s93, s92, 1
    s_bitcmp1_b32 s92, 0
    s_cselect_b32 s7, s85, s84
    s_cmp_gt_u32 s7, s93
    s_cselect_b32 s7, 0x80000, 0
    s_add_u32 s56, s52, s7
    s_add_u32 s56, s56, s94
    s_add_u32 s87, s52, 0x1000
    s_add_u32 s57, s52, s95
    """)

def ring_next(a):
    a(f"""
    s_mov_b32 s51, s48
    s_and_b32 s7, s6, 3
    s_lshl_b32 s48, s7, 13
    s_add_u32 s48, s48, {G.MEMB}
    s_lshr_b32 s97, s7, 1
    s_sub_u32 s98, s97, 1
    s_mov_b32 s99, s98
    s_and_b32 s7, s7, 1
    s_lshl_b32 s7, s7, 18
    s_add_u32 s45, s7, {G.PART}
    s_add_u32 s46, s45, 0x1000
    s_add_u32 s47, s44, s7
    """)

def fb_wait(a, P):
    a(f"{P}_fbwait:")
    a("s_and_b32 s92, s90, 1\n s_lshl_b32 s92, s92, 2\n s_add_u32 s92, s92, s55\n s_add_u32 s93, s91, 1")
    G.wait_scalar(a, G.WS, "s92", "s93", "s7", vT, 1)
    a(f"s_branch {P}_fbok")

def startup(a, opt):
    WS, DBG, WSTR = G.WS, G.DBG, G.WSTR
    a("L_chain:")
    G.srd(a, 20, G.P_MEM0, 8192); G.srd(a, 24, G.P_WQ, 0x400000); G.srd(a, 28, G.P_WK, 0x400000)
    G.srd(a, 32, G.P_WV, 0x400000); G.srd(a, 36, G.P_WO, 0x400000)
    G.make_sel(a, SEL, 20)
    a(f"""
    v_mov_b32 v22, v0
    v_lshlrev_b32 v0, 4, v0
    v_and_b32 v24, 1, v2
    v_lshrrev_b32 v25, 2, v2
    v_and_b32 v26, 3, v2
    v_lshrrev_b32 v28, 1, v2
    v_and_b32 v29, 1, v1
    v_lshrrev_b32 v23, 1, v1
    ; weight voffsets: rows 128w + 32(g/2) + 8(g%2), column bytes 256h + 16n
    v_lshlrev_b32 v27, 18, v23
    v_lshl_add_u32 v27, v29, 16, v27
    v_lshl_add_u32 v27, v2, 4, v27
    s_lshl_b32 s90, s4, 8
    s_lshl_b32 s91, s3, 20
    s_add_u32 s90, s90, s91
    v_add_u32 v30, s90, v27
    v_add_u32 v31, 8192, v30
    ; LDS scatter bases. q,k (v16): region swap(n/4), slot (w - n/4)%4 ; v (v17): region n/4, slot (w - 2 - n/8)%4
    v_lshlrev_b32 v18, 8, v1
    v_lshl_add_u32 v18, v26, 6, v18
    v_add_u32 v18, {L_W}, v18
    s_mov_b32 s90, {WSTR}
    v_lshrrev_b32 v27, 1, v25
    v_and_b32 v19, 1, v25
    v_lshl_add_u32 v19, v19, 1, v27
    v_mul_lo_u32 v16, v19, s90
    v_sub_u32 v19, s3, v25
    v_and_b32 v19, 3, v19
    v_lshl_add_u32 v16, v19, 12, v16
    v_add_u32 v16, v16, v18
    v_mul_lo_u32 v17, v25, s90
    v_sub_u32 v19, s3, v27
    v_add_u32 v19, 2, v19
    v_and_b32 v19, 3, v19
    v_lshl_add_u32 v17, v19, 12, v17
    v_add_u32 v17, v17, v18
    ; v18 = own pair of regions (2(w%2)), v19 = own q/k region
    s_and_b32 s91, s3, 1
    s_mul_i32 s91, s91, {2*WSTR}
    s_add_u32 s91, s91, {L_W}
    v_add_u32 v18, s91, {vLin}
    s_lshr_b32 s7, s3, 1
    s_mul_i32 s7, s7, {WSTR}
    v_add_u32 v19, s7, v18
    ; Wo voffset (v11): rows 16(g/2)+4(g%2), column bytes 256w + 16n, head base
    v_lshlrev_b32 v27, 14, v23
    v_lshl_add_u32 v27, v29, 12, v27
    v_lshl_add_u32 v27, v2, 4, v27
    s_lshl_b32 s90, s4, 17
    s_lshl_b32 s91, s3, 8
    s_add_u32 s90, s90, s91
    v_add_u32 v11, s90, v27
    v_mov_b32 v20, 0x4444
    v_mov_b32 v21, 0xeeee
    v_cmp_eq_u32 vcc, 0, v24
    v_cndmask_b32 {vIdx}, v21, v20, vcc
    s_lshl_b32 s86, s3, 10
    s_add_u32 s90, s86, {L_MX}
    v_add_u32 {vMem0}, s90, {vLin}
    ; q write: QK + w*QS + (n/4)*128 + 2g*16 + (n%4)*4
    v_lshlrev_b32 {vQw}, 7, v25
    v_lshl_add_u32 {vQw}, v1, 5, {vQw}
    v_lshl_add_u32 {vQw}, v26, 2, {vQw}
    s_mul_i32 s90, s3, {QS}
    s_add_u32 s90, s90, {L_QK}
    v_add_u32 {vQw}, s90, {vQw}
    ; v27 = g*128 + (2(n/4) + n%2)*16 ; lanes n%4 < 2 carry keys, the others queries
    v_lshl_add_u32 v27, v25, 1, v24
    v_lshlrev_b32 v27, 4, v27
    v_lshl_add_u32 v27, v1, 7, v27
    v_cmp_gt_u32 vcc, 2, v26
    v_mov_b32 v20, {L_QK}
    v_mov_b32 v21, {L_QK + 640}
    v_cndmask_b32 v20, v20, v21, vcc
    v_add_u32 {vQr}, v20, v27
    s_add_u32 s90, s86, {L_OB}
    v_add_u32 v20, s90, v27
    v_add_u32 v21, 512, v20
    v_cndmask_b32 {vOw}, v20, v21, vcc
    ; o read: OB + (2g + n%2)*128 + (n/2)*16
    v_lshl_add_u32 v27, v1, 1, v24
    v_lshlrev_b32 v27, 7, v27
    v_lshl_add_u32 v27, v28, 4, v27
    v_add_u32 {vOr}, {L_OB}, v27
    ; partial store: (8w + 2(n/4) + g/2)*8192 + (g%2)*2048 + 64h + 16(n%4)
    v_lshl_add_u32 v27, v25, 1, v23
    v_lshlrev_b32 v27, 13, v27
    v_lshl_add_u32 v27, v29, 11, v27
    v_lshl_add_u32 v27, v26, 4, v27
    s_lshl_b32 s90, s3, 16
    s_lshl_b32 s91, s4, 6
    s_add_u32 s90, s90, s91
    v_add_u32 {vPst}, s90, v27
    ; mem0 voffset (v25): (n/2)*1024 + 2*(128w + 32g + 16(n%2))
    v_lshlrev_b32 v25, 10, v28
    v_lshl_add_u32 v25, v1, 6, v25
    v_lshl_add_u32 v25, v24, 5, v25
    s_lshl_b32 s91, s3, 8
    v_add_u32 v25, s91, v25
    ; key image read (v24): QK + 640 + (2(w%2) + g/2)*QS + (lane%32)*16
    s_and_b32 s91, s3, 1
    s_mul_i32 s91, s91, {2*QS}
    s_add_u32 s91, s91, {L_QK + 640}
    v_mul_u32_u24 v24, {QS}, v23
    v_and_b32 v27, 31, v22
    v_lshl_add_u32 v24, v27, 4, v24
    v_add_u32 v24, s91, v24
    ; publish: (w/2)*4096 + h*128 + (w%2)*64 + g*32 + n*8   (lanes g<2, n<4)
    s_lshr_b32 s90, s3, 1
    s_lshl_b32 s90, s90, 12
    s_lshl_b32 s91, s4, 7
    s_add_u32 s90, s90, s91
    s_and_b32 s91, s3, 1
    s_lshl_b32 s91, s91, 6
    s_add_u32 s90, s90, s91
    v_lshlrev_b32 v27, 5, v29
    v_lshl_add_u32 v27, v26, 3, v27
    v_add_u32 {vPub}, s90, v27
    s_mov_b32 s58, 0x000f000f
    s_mov_b32 s59, 0
    s_lshl_b32 s44, s4, 2
    s_add_u32 s44, s44, s3
    s_lshl_b32 s44, s44, 11
    s_add_u32 s44, s44, {G.PART}
    s_lshl_b32 s55, s4, 7
    s_lshl_b32 s54, s3, 2
    s_add_u32 s54, s54, s55
    s_add_u32 s54, s54, {G.FLG_FH}
    s_add_u32 s55, s55, {G.FLG_FB}
    """)
    for u in range(1, 4):
        a(f"s_add_u32 s7, s3, {u}\n s_and_b32 s7, s7, 3\n s_lshl_b32 s7, s7, 10\n s_add_u32 s{80+u}, s7, {L_MX}")
    zero(a, 20, 24, "-1")
    for sl in range(2):
        a(f"s_add_u32 s7, s44, {sl*0x40000}")
        for o in (0, 1024): a(f"buffer_store_dwordx4 v[20:23], {vLin}, {WS}, s7 offen offset:{o} sc1")
    a("s_mov_b64 exec, s[58:59]")
    for sl in range(4):
        a(f"s_mov_b32 s7, {G.MEMB + sl*8192}\n buffer_store_dwordx2 v[20:21], {vPub}, {WS}, s7 offen sc1")
    a("s_mov_b64 exec, -1")
    G.flag_store(a, "s54", "0", "v27")
    def job(srdn, vdst, done):
        return dict(kind='lds', srd=srdn, stride=8192, v0="v30", v1="v31", vdst=vdst,
                    row=lambda u: 64*((u//4) % 2) + 16*(u % 2) + 4*(u//8) + 2*((u//2) % 2),
                    imm=lambda grp, c: (grp//2)*16384 + (c % 2)*2048 + (grp % 2)*1024 + (c//2)*16, done=done)
    def pick(fa, fv, after=None):
        def done():
            lv, le = a.label("PV"), a.label("PE")
            a(f"s_waitcnt lgkmcnt(0)\n s_barrier\n s_cmp_ge_u32 s3, 2\n s_cbranch_scc1 {lv}")
            fa()
            a(f"s_branch {le}\n{lv}:")
            fv()
            a(f"{le}:\n s_waitcnt lgkmcnt(0)\n s_barrier")
            if after: after()
        return done
    def rd(src, dst, off=0):
        return lambda: [a(f"ds_read_b128 {dst(f)}, {src} offset:{off + f*1024}") for f in range(32)]
    nothing = lambda: None
    def wo_group(grp):
        if grp == 2: a(f"buffer_load_dwordx2 v[30:31], off, {WS}, s55 sc1")
        lv, le = a.label("OV"), a.label("OE")
        a(f"s_cmp_ge_u32 s3, 2\n s_cbranch_scc1 {lv}")
        for c in range(8):
            for r in range(4): a(f"v_accvgpr_write_b32 a{128 + (c*2 + grp//2)*8 + (grp % 2)*4 + r}, v{32 + 4*c + r}")
        a(f"s_branch {le}\n{lv}:")
        for c in range(8): a(f"ds_write_b128 v18, {vr(32 + 4*c)} offset:{(c*2 + grp//2)*2048 + (grp % 2)*1024}")
        a(f"{le}:")
    def early():
        for hf in range(2):
            for c in range(2):
                a(f"buffer_load_dwordx2 {vr((20, 26)[hf] + 2*c, 2)}, v25, {G.OUT}, 0 offen offset:{8*hf + 16*c}")
        a(f"buffer_load_dword v16, off, {DBG}, 0 offset:{G.D_INIT} sc1\n buffer_load_dword v17, off, {DBG}, 0 sc1")
    kd = G.lds_to_regs(a, "v19", lambda f: ar(4*f))
    jobs = [job(G.W2, "v16", lambda: (kd(), G.init_arrive(a, "v27"))),
            job(G.W1, "v16", G.lds_to_regs(a, "v19", lambda f: vr(128 + 4*f))),
            job(G.W3, "v17", pick(nothing, rd("v18", lambda f: ar(128 + 4*f)), early)),
            dict(kind='lds', srd=G.W4, stride=1024, v0="v11", row=lambda u: 64*(u//8) + 32*((u//4) % 2) + 8*(u % 2) + 2*((u//2) % 2), group=wo_group)]
    G.load_stream(a, jobs, tmp=64, depth=8, out=32)
    a("s_waitcnt vmcnt(0)")
    G.tl(a, opt, 4, "v32")
    a(f"""
    v_mov_b32 v33, v24
    v_readfirstlane_b32 s7, v16
    v_readfirstlane_b32 s43, v17
    v_mov_b64 {vr(LS, 2)}, v[26:27]
    v_mov_b64 {vr(LS+2, 2)}, v[28:29]
    v_mov_b64 v[24:25], v[20:21]
    v_mov_b64 v[26:27], v[22:23]
    s_cmp_ge_u32 s7, 256
    s_cbranch_scc1 L_chain_up
    """)
    G.wait_scalar(a, DBG, G.D_INIT, 256, "s7", vT, 2)
    G.wait_scalar(a, DBG, 0, 0, "s43", vT, 2)
    a(f"""
    buffer_load_dwordx2 v[30:31], off, {WS}, s55 sc1
    s_waitcnt vmcnt(0)
    L_chain_up:
    v_mov_b64 {vr(FB, 2)}, v[30:31]
    s_lshl_b32 s52, s4, 14
    s_add_u32 s52, s52, {G.KXV - 0x80000}
    s_and_b32 s7, s3, 1
    s_lshl_b32 s94, s7, 13
    s_lshl_b32 s95, s7, 12
    s_add_u32 s95, s95, 0x2000
    s_add_u32 s87, s52, 0x1000
    s_add_u32 s57, s52, s95
    s_lshl_b32 s53, s4, 12
    s_add_u32 s53, s53, {G.KVM - 0x20000}
    s_lshl_b32 s7, s7, 10
    s_add_u32 s53, s53, s7
    """)
    a(f"""
    s_mov_b32 s50, {G.MEMB}
    s_mov_b32 s80, 0
    s_mov_b64 s[88:89], 0
    s_mov_b32 s48, {G.MEMB + 3*8192}
    s_waitcnt lgkmcnt(0)
    s_mov_b32 s6, -1
    """)
    next_seg(a, "C0")
    G.tl(a, opt, 2, "v56")
    a("s_mov_b32 s6, 0")
    ring_next(a)
    addr_prep(a)
    if opt.get("prof"):
        for k in range(20, 32): a(f"s_mov_b32 s{k}, 0")
    a("s_cmp_ge_u32 s3, 2\n s_cbranch_scc1 L_vstart")
    for r in range(4): a(f"v_mov_b32 v{ONES+r}, 0x3f803f80")
    zero(a, ACQ, ACQ + 16)
    a(f"v_mov_b32 {vKa}, v33")
    a(f"v_and_b32 {vQq}, 32, {vLin}\n v_mul_u32_u24 {vQq}, 20, {vQq}\n v_add_u32 {vQq}, {vQq}, {vQr}\n v_subrev_u32 {vQq}, 640, {vQq}")
    a(f"v_and_b32 {vInf}, 32, {vLin}\n v_lshlrev_b32 {vInf}, 26, {vInf}\n v_or_b32 {vInf}, 0x7f800000, {vInf}")
    a.fence()
    a("s_cmp_lt_u32 s43, 32\n s_cbranch_scc1 SA_loop\n s_branch FA_loop\nL_vstart:")
    a(f"v_mov_b32 {vW}, v18\n v_mov_b32 {vKp}, v33")
    for j in range(5):
        for h in range(2): a(wq_half(j, h))
    zero(a, ACQ, ACQ + 32)
    a("s_waitcnt lgkmcnt(0)")
    a.fence()
    a("s_cmp_lt_u32 s43, 32\n s_cbranch_scc1 SV_loop\n s_branch FV_loop")
    fb_wait(a, "C0")

def loop(a, opt, P, st, A):
    WS = G.WS
    prof = opt.get("prof"); free = opt.get("free")
    cnt = [0]
    sel = opt.get("stamps")
    dflt = ("top", "end", "3", "15", "31", "sc", "pv", "wo", "w9", "h1")
    def stamp(k):
        if prof == 1 and (k in ("top", "end") or str(k) in (sel or dflt)):
            i = cnt[0]; cnt[0] += 1
            assert i < 10
            a(f"s_memtime s[{60+2*i}:{61+2*i}]")
    tk = {}
    fill = {}
    def F(i, x, cls=None):
        if cls is None: cls = 1 if (isinstance(x, str) and x.startswith("v_")) else 0
        fill.setdefault(i, []).append((cls, x if callable(x) else (lambda: a(x))))
    def D(i, key, text, cls=0): F(i, lambda: tk.__setitem__(key, a.ds(text)), cls)
    def W(i, key): F(i, lambda: a.wait_ds(tk[key]))
    def Z(i, lo, hi, val="0"):
        for r in range(lo, hi, 2): F(i, f"v_mov_b64 {vr(r, 2)}, {val}")
    def run(i):
        for cls, f in sorted(fill.pop(i, []), key=lambda e: e[0]): f()
    def mem_rd(i, tau): D(i, ("m", tau), f"ds_read_b128 {vr(MEMA + 4*tau)}, v{LS + 4*(tau % 4)} offset:{4096*(tau//4)}")
    def bar(i): W(i, "wr"); F(i, "s_barrier")
    def add(r): return f"v_add_f32 v{r}, v{r}, v{r+1}"
    def cvt(d, x, y): return f"v_cvt_pk_bf16_f32 v{d}, v{x}, v{y}"
    def smv(tau, t4):
        j = 2*tau + t4 % 2
        def emit():
            if t4 >= 2 and j >= 5: a.wait_ds(tk[("w", j)])
            a(f"{SM} {vr(ACV + 4*t4)}, {vr(MEMA + 4*tau)}, {ar(128 + j*8, 8) if t4 < 2 else vr(QBUF[j % 5], 8)}, {vIdx}")
            if pend:
                jp = pend.pop(); tk[("w", jp)] = a.ds(wq_half(jp, 1))
            if t4 >= 2 and j + 5 < 16:
                a.ds(wq_half(j + 5, 0)); pend.append(j + 5)
        return emit
    pend = []
    a(f"{P}_loop:")
    a.drop = tuple(opt.get("drop", ()))
    stamp("top")
    seq = [(m, tau, T) for tau in range(4) for T in range(2) for m in "qk"]
    ql = opt.get("ql", 1)
    if ql: seq += [(m, tau, T) for m in "qk" for tau in range(4, 8) for T in range(2)]
    else:
        seq += [(m, 4, T) for m in "qk" for T in range(2)]
        seq += [(m, tau, T) for m in "qk" for tau in range(5, 8) for T in range(2)]
    qpos = {2*t + T: i for i, (m, t, T) in enumerate(seq) if m == "q"}
    lc = opt.get("lc", 10); b2 = lc + opt.get("lb", 5)
    assert b2 <= 15 + 1
    lg = opt.get("lg", 2)
    lload = f"buffer_load_dwordx4 {vr(LS)}, {vLin}, {WS}, s50 offen sc1"
    F(lg, "s_mov_b64 exec, s[88:89]")
    F(lg, lambda: tk.__setitem__("L", a.vm(lload)))
    F(lg, "s_mov_b64 exec, -1")
    bar(3)
    sp = opt.get("sp", 16)
    for u in range(1, 4): mem_rd(3, u)
    def M_(i, key, text): F(i, lambda: tk.__setitem__(key, a.vm(text)))
    if A:
        xp = [int(p) for p in opt.get("xp", (3, 3, 3, 4, 5, 6, 7, 8, 9, 11, 12, 13))]
        if not opt.get("nopf"):
            for f in range(12): M_(xp[f], ("xv", f), xv_load(f))
        F(1, f"v_lshlrev_b32 {vJunk}, 3, {vLin}")
        F(sp, f"buffer_load_dwordx2 {vr(FB, 2)}, off, {WS}, s55 sc1")
        if not opt.get("notouch"): F(sp, f"buffer_load_dword {vJunk}, {vJunk}, {WS}, s56 offen sc1")
        if not opt.get("nokvm"):
            for k in range(2): F(sp + 4 + k*opt.get("k2", 1), f"buffer_store_dwordx4 {vr(120 + 4*k)}, {vLin}, {WS}, s53 offen offset:{2048*k} sc1")
        assert sp > lc + 3
        F(sp + 1, f"v_mov_b32 {vT}, s80")
        F(sp + 2, f"s_mov_b64 exec, 1\n buffer_store_dword {vT}, off, {WS}, s54 sc1\n s_mov_b64 exec, -1")
        if not opt.get("nopf"): F(31, lambda: a.wait_vm(tk[("xv", 7)]))
    else:
        nv0, nv1, nv2 = opt.get("nv0", 4), opt.get("nv1", 0), opt.get("nv2", 2)
        vs = [(tau, t4) for tau in range(8) for t4 in (2, 0, 3, 1)]
        for k in range(nv0): F(3, smv(*vs.pop(0)))
        for k in range(nv1): F(lc, smv(*vs.pop(0)))
        for k in range(nv2): F(qpos[10] - 1, smv(*vs.pop(0)))
        for k in range(opt.get("nv3", 0)): F(opt.get("q3", 30), smv(*vs.pop(0)))
    W(3, ("m", 1)); W(7, ("m", 3))
    F(lc, lambda: a.wait_vm(tk["L"]))
    D(lc, "wr", f"ds_write_b128 {vMem0}, {vr(LS)} offset:4096")
    F(lc+1, f"v_max3_u32 {vT}, v{LS}, v{LS+1}, v{LS+2}")
    F(lc+2, f"v_max_u32 {vT}, {vT}, v{LS+3}")
    F(lc+3, f"v_cmp_eq_u32 vcc, -1, {'v0' if free else vT}")
    F(min(b2, 15), f"s_cbranch_vccnz {P}_lretry\n{P}_lok:")
    bar(b2); mem_rd(b2, 5); mem_rd(b2+1, 6); mem_rd(b2+1, 7)
    W(qpos[10] - 1, ("m", 5)); W(qpos[12] - 1, ("m", 7))
    F(22, "s_add_u32 s49, s48, s86\n s_add_u32 s50, s49, 0x1000")
    F(21, "s_mov_b64 s[88:89], -1")
    qe = qpos[15]
    F(qe+1, add(56)); F(qe+1, add(58)); F(qe+2, add(60)); F(qe+2, add(62))
    F(qe+2, cvt(56, 56, 60)); F(qe+2, cvt(57, 58, 62))
    D(qe+3, "wr", f"ds_write2_b32 {vQw}, v56, v57 offset0:0 offset1:4")
    q3 = opt.get("q3", 30)
    bar(q3)
    if A:
        for t in range(4): D(min(q3 + (t + 1)//2, 31), ("q", t), f"ds_read_b128 {vr(24 + 4*t)}, {vQq} offset:{t*QS}")
    tk["wr"] = a.ds(f"ds_write_b128 {vMem0}, {vr(MEMA)}")
    for i, (m, tau, T) in enumerate(seq):
        j = 2*tau + T
        B = vr(128 + j*8, 8) if m == "q" else ar(j*8, 8)
        a(f"{SM} {vr((ACQ if m == 'q' else ACK) + 4*T)}, {vr(MEMA + 4*tau)}, {B}, {vIdx}")
        run(i)
        stamp(i)
    assert not fill, fill.keys()
    kfold = [add(64), add(66), add(68), add(70), cvt(64, 64, 68), cvt(65, 66, 70)]
    kwr = f"ds_write2_b32 {vQw}, v64, v65 offset0:160 offset1:164"
    inbox = f"buffer_load_dwordx4 v[28:31], {vLin}, {WS}, s47 offen sc1\n buffer_load_dwordx4 v[32:35], {vLin}, {WS}, s47 offen offset:1024 sc1"
    if A:
        QB, KB, X0, X1, M, t0 = 24, 40, 56, 60, 120, 124
        PX, PM, PXB, PMB, VM, O, Lr, PKO = 64, 68, 48, 52, 24, 28, 44, 120
        WA, OA, PK = [56, 60, 28, 32, 24, 36, 40, 44], 120, [64, 68]
        xl = []
        tq = [tk[("q", t)] for t in range(4)]
        kf = opt.get("kf", 1)
        if kf:
            for x in kfold: a(x)
            tk["wr"] = a.ds(kwr)
        else:
            a(kfold[0]); a(kfold[1])
            for x in kfold[2:]: F(0, x)
            D(1, "wr", kwr)
        b4 = opt.get("b4", 4)
        bar(b4)
        for t in range(4): D(min(b4 + (t + 1)//2, 7), ("k", t), f"ds_read_b128 {vr(KB + 4*t)}, {vQr} offset:{t*QS}")
        F(2, f"v_mov_b32 v{PM+1}, 0\n v_mov_b32 v{PM+2}, 0")
        F(6, f"v_max3_f32 v{t0}, v{X0}, v{X0+1}, v{X0+2}")
        for p in (7, 8, 9, 10, 11, 11)[:opt.get("x1", 6)]:
            if xl: F(p, xl.pop(0))
        F(10, f"v_max3_f32 v{t0+1}, v{X0+3}, v{X1}, v{X1+1}\n v_max3_f32 v{t0}, v{t0}, v{X1+2}, v{X1+3}")
        for t in range(1, 4): F(t - 1, lambda t=t: a.wait_ds(tq[t]))
        for t in range(4): W(7 + t, ("k", t))
        for n in range(12):
            t = n % 4
            if n == 0: a.wait_ds(tq[t])
            d, Ao, Bo = ((X0, KX + 4*t, QB + 4*t), (X1, KX + 16 + 4*t, QB + 4*t), (M, KB + 4*t, QB + 4*t))[n // 4]
            a(f"{MF} {vr(d)}, {vr(Ao)}, {vr(Bo)}, {vr(d) if t else '0'}")
            run(n)
            stamp("s%d" % n)
        stamp("sc")
        a(f"s_cmp_eq_u32 s6, 63\n s_cbranch_scc1 L_chain_end")
        if not opt.get("nopf"): a.wait_vm(tk[("xv", 11)])
        a(f"""
        v_max3_f32 v{t0+1}, v{t0+1}, v{M}, v{M+1}
        v_max_f32 v{t0+2}, v{t0}, v{t0+1}
        v_max_f32 v{t0+3}, v{t0}, v{t0+1}
        v_mov_b64 v[36:37], 0
        v_mov_b64 v[38:39], 0
        v_permlane16_swap_b32 v{t0+2}, v{t0+3}
        v_max_f32 v{t0}, v{t0+2}, v{t0+3}
        v_max_f32 v{t0+1}, v{t0+2}, v{t0+3}
        v_mov_b64 v[40:41], 0
        v_mov_b64 v[42:43], 0
        v_permlane32_swap_b32 v{t0}, v{t0+1}
        v_max3_f32 v{t0}, v{t0}, v{t0+1}, {vInf}
        v_mul_f32 v{t0}, s42, v{t0}
        """)
        regs = [X0, X0+1, X0+2, X0+3, X1, X1+1, X1+2, X1+3, M, M+1]
        for r in regs: a(f"v_fma_f32 v{r}, v{r}, s42, -v{t0}")
        for k, r in enumerate(regs[:9]):
            a(f"v_exp_f32 v{r}, v{r}")
            if k >= 2 and k % 2 == 0: a(cvt(PX + k//2 - 1, regs[k-2], regs[k-1]))
        stamp("pv")
        a(f"v_exp_f32 v{M+1}, v{M+1}")
        b5 = opt.get("b5", 2)
        F(b5, "s_barrier")
        D(b5, "vm", f"ds_read_b128 {vr(VM)}, {vMem0} offset:4096")
        def sw(d, x): return f"v_mov_b32_dpp v{d}, v{x} quad_perm:[2,3,0,1] row_mask:0xf bank_mask:0xf"
        F(0, sw(PXB, PX)); F(0, sw(PXB+1, PX+1)); F(1, sw(PXB+2, PX+2)); F(1, sw(PXB+3, PX+3))
        F(2, cvt(PM, M, M+1)); F(2, cvt(PM+3, M, M+1))
        F(3, f"v_mov_b32 v{PMB+1}, 0"); F(3, f"v_mov_b32 v{PMB+2}, 0")
        F(4, sw(PMB, PM)); F(4, sw(PMB+3, PM))
        Z(5, 56, 60); Z(6, 60, 64)
        W(5, "vm")
        pv = [f"{MF} {vr(Lr)}, {vr(ONES)}, {vr(PX)}, 0"]
        pv += [f"{MF} {vr(O + 4*(f % 2))}, {vr(VX + 4*f)}, {vr((PX, PXB)[f//2])}, {vr(O + 4*(f % 2)) if f//2 else '0'}" for f in range(4)]
        pv += [f"{MF16} {vr(Lr)}, {vr(ONES, 2)}, {vr(PM, 2)}, {vr(Lr)}"]
        pv += [f"{MF16} {vr(O + 4*(f % 2))}, {vr(VM + 2*(f//2), 2)}, {vr((PM, PMB)[f//2] + 2*(f % 2), 2)}, {vr(O + 4*(f % 2))}" for f in (0, 2, 1, 3)]
        F(7, f"v_add_f32_dpp v{t0}, v{Lr}, v{Lr} quad_perm:[2,3,0,1] row_mask:0xf bank_mask:0xf")
        F(8, f"v_rcp_f32 v{t0}, v{t0}")
        for r in range(4): F(9, f"v_mul_f32 v{O+r}, v{O+r}, v{t0}")
        Z(9, 44, 48)
        for n, x in enumerate(pv):
            a(x); run(n)
        stamp("p1")
        for r in (4, 6): a(f"v_pk_mul_f32 {vr(O + r, 2)}, {vr(O + r, 2)}, {vr(t0, 2)} op_sel_hi:[1,0]")
        for i in range(4): a(cvt(PKO + i, O + i, O + 4 + i))
        a(f"ds_write_b128 {vOw}, {vr(PKO)}")
        zero(a, 24, 36)
        busy(a, opt.get("bo1", 0))
        stamp("p2")
        wo_reg = lambda j: ar(128 + j*8, 8)
    else:
        WB = [88, 96, 104, 112, 120, 16, 56, 64]
        WA, OA, PK = [28, 32, 36, 40, 44, 48, 52, 72], 76, [84, 24]
        def woh(j, h): return f"ds_read_b128 {vr(WB[j % 8] + 4*h)}, {vW} offset:{j*2048 + 1024*h}"
        nv = len(vs); sh = 32 - nv
        F(0, kfold[0]); F(0, kfold[1])
        for x in kfold[2:]: F(1, x)
        D(2, "wr", kwr)
        v4 = opt.get("v4", 7)
        bar(v4)
        wl = [(k // 2, k % 2) for k in range(16)]
        if opt.get("pw", 1):
            pos = {2*t + t4 % 2: n for n, (t, t4) in enumerate(vs) if t4 >= 2}
            free_at = {5: 0, 6: 3, 1: pos[11], 2: pos[12], 3: pos[13], 4: pos[14]}
            slot = pos[10] + 2
            for jj in (5, 6, 1, 2, 3, 4):
                for hh in range(2):
                    slot = max(slot, free_at[jj])
                    if slot < nv - 1:
                        D(slot, "_", woh(jj, hh)); wl.remove((jj, hh)); slot += 1
        zl = [(r, "0") for r in range(28, 52, 2)]
        for i in range(3, nv - 2):
            if opt.get("zv", 0) and zl and i + sh > (zl[0][0] - MEMA) // 4 * 4 + 3:
                r, val = zl.pop(0); F(i, f"v_mov_b64 {vr(r, 2)}, {val}")
        F(nv-2, add(80)); F(nv-2, add(82)); F(nv-1, add(72)); F(nv-1, add(74)); F(nv-1, cvt(KV+6, 80, 82)); F(nv-1, cvt(KV+4, 72, 74))
        for n, (tau, t4) in enumerate(vs):
            if n + 1 < nv and vs[n+1][1] >= 2 and 2*vs[n+1][0] + vs[n+1][1] % 2 >= 5: W(n, ("w", 2*vs[n+1][0] + vs[n+1][1] % 2))
            smv(tau, t4)(); run(n); stamp("v%d" % n)
        assert not fill and not pend
        stamp("sc")
        for x in (add(84), add(86), cvt(KV+7, 84, 86), add(76), add(78), cvt(KV+5, 76, 78)): a(x)
        tk["wr"] = a.ds(f"ds_write_b128 {vMem0}, {vr(KV+4)} offset:2048")
        a(f"s_cmp_eq_u32 s6, 63\n s_cbranch_scc1 L_chain_done")
        zero(a, 52, 56); zero(a, 72, 76)
        for r, val in zl[:6]: a(f"v_mov_b64 {vr(r, 2)}, {val}")
        a.wait_ds(tk["wr"]); a("s_barrier")
        stamp("pv")
        for r, val in zl[6:]: a(f"v_mov_b64 {vr(r, 2)}, {val}")
        for x in wl: a(woh(*x))
        busy(a, opt.get("bv", 0))
        wo_reg = lambda j: vr(WB[j % 8], 8)
    a("s_waitcnt lgkmcnt(0)\n s_barrier")
    to = [a.ds(f"ds_read_b128 {vr(OA + 4*t)}, {vOr} offset:{t*1024}") for t in range(2)]
    busy(a, opt.get("bo2", 0))
    stamp("wo")
    def wf(T, h): return add(WA[T] + 2*h)
    def wpk(T, h): return cvt(PK[T//4] + (T % 4)//2 + 2*h, WA[T] + 2*h, WA[T+1] + 2*h)
    def tag(T, h):
        r = PK[T//4] + (T % 4)//2 + 2*h
        return f"v_and_or_b32 v{r}, v{r}, -2, s97"
    def wst(hf): return f"buffer_store_dwordx4 {vr(PK[hf])}, {vPst}, {WS}, s{45+hf} offen {st}"
    post = {3: [wf(0, 0)], 4: [wf(0, 1)], 5: [wf(1, 0), wf(1, 1)], 6: [wpk(0, 0), wpk(0, 1)],
            7: [wf(2, 0), wf(2, 1)], 8: [tag(0, 0), tag(0, 1)], 9: [wf(3, 0), wf(3, 1), wpk(2, 0), wpk(2, 1), tag(2, 0), tag(2, 1)],
            11: [wf(4, 0)], 12: [wf(4, 1)], 13: [wf(5, 0), wf(5, 1)], 14: [wpk(4, 0), wpk(4, 1)], 15: [wf(6, 0), wf(6, 1), tag(4, 0), tag(4, 1)]}
    for j, xs in post.items():
        for x in xs: F(j, x)
    F(9, wst(0), 2)
    F(0, lambda: a.wait_ds(to[1]))
    if not A:
        for j in range(8, 16):
            D(j - 8 + (j - 8)//2, "_", woh(j, 0)); D(j - 8 + (j - 7)//2, ("o", j), woh(j, 1)); W(j - 1, ("o", j))
    a.wait_ds(to[0])
    for j in range(16):
        T, t = j // 2, j % 2
        a(f"{SM} {vr(WA[T])}, {vr(OA + 4*t)}, {wo_reg(j)}, {vIdx}")
        run(j)
        stamp("w%d" % j)
    if A and opt.get("ein"): a(inbox)
    for x in (wf(7, 0), wf(7, 1), wpk(6, 0), wpk(6, 1), tag(6, 0), tag(6, 1), wst(1)): a(x)
    a.drop = ()
    stamp("h1")
    c1, c2 = opt.get("c1", 2) if A else opt.get("c1v", 3), opt.get("c2", 2) if A else opt.get("c2v", 2)
    RD = LS
    work = [lambda: (zero(a, 28, 36, "s[98:99]"), zero(a, 36, 38, "-1"))]
    if A:
        work += [lambda: (a(f"ds_read_b128 v[120:123], {vKa}\n ds_read_b128 v[124:127], {vMem0} offset:4096"), zero(a, 24, 28, "-1")),
                 lambda: zero(a, ACQ, ACQ + 8), lambda: zero(a, ACK, ACK + 8)]
        work += [lambda: busy(a, 2)] * 4
    else:
        for j in range(5): work.append(lambda j=j: (a(wq_half(j, 0)), a(wq_half(j, 1)), zero(a, ACQ + 4*j, ACQ + 4*j + 4)))
        work += [lambda: (zero(a, 24, 28, "-1"), zero(a, ACQ + 20, ACQ + 24)), lambda: zero(a, ACQ + 24, ACQ + 32)]
    pm = opt.get("pe", 0b100100001) if A else opt.get("pl", 0x100)
    for k in range(9):
        if k == 8: busy(a, opt.get("de", 0) if A else opt.get("dl", 0))
        if pm >> k & 1: a(inbox)
        if k < 8: work[k]()
    a(f"s_mov_b32 s96, 0\n s_cmp_lg_u32 s97, 0\n s_cbranch_scc1 {P}_r11")
    for ph in range(2):
        a(f"{P}_r1{ph}:")
        if free == 1: a("s_waitcnt vmcnt(0)")
        op3 = ("v_or3_b32 {0}, {1}, {2}, {3}", "v_bitop3_b32 {0}, {1}, {2}, {3} bitop3:0x80")[ph]
        for k in range(c1):
            a(op3.format("v45", "v28", "v29", "v30")); a(op3.format("v46", "v31", "v32", "v33")); a(op3.format("v45", "v45", "v34", "v35"))
            a(f"""
            v_bitop3_b32 v45, v45, v46, 1 bitop3:{('0xa8', '0x80')[ph]}
            v_cmp_ne_u32 vcc, {'v45' if free else ph}, v45
            """)
            if not opt.get("nsp"): a(f"{MF} {vr(RD)}, {vr(SEL)}, v[28:31], 0\n {MF} {vr(RD)}, {vr(SEL)}, v[32:35], {vr(RD)}")
            a(f"s_cbranch_vccz {P}_r1ok")
        a(f"s_mov_b64 exec, vcc\n {inbox}\n s_mov_b64 exec, -1")
        if prof: a("s_add_u32 s30, s30, 1")
        G.spin_tail(a, f"{P}_r1{ph}")
    a(f"{P}_r1ok:")
    stamp("r1")
    gath = f"buffer_load_dwordx4 v[24:27], {vLin}, {WS}, s49 offen sc1"
    if opt.get("nsp"): a(f"{MF} {vr(RD)}, {vr(SEL)}, v[28:31], 0\n {MF} {vr(RD)}, {vr(SEL)}, v[32:35], {vr(RD)}")
    else: a("s_nop 5")
    for k in (4, 8):
        for r in range(RD, RD + 4): a(f"v_add_f32_dpp v{r}, v{r}, v{r} row_ror:{k} row_mask:0xf bank_mask:0xf")
    a(cvt(RD, RD, RD+1)); a(cvt(RD+1, RD+2, RD+3))
    if not A and opt.get("gx"): a(gath)
    a(f"s_mov_b64 exec, s[58:59]\n buffer_store_dwordx2 {vr(RD, 2)}, {vPub}, {WS}, s48 offen {st}")
    stamp("h2")
    a(f"buffer_store_dwordx2 v[36:37], {vPub}, {WS}, s51 offen {st}\n s_mov_b64 exec, -1")
    busy(a, opt.get("ge", 4) if A else opt.get("gl", 0))
    a(gath)
    addr_prep(a)
    if A: next_seg(a, P)
    else: busy(a, opt.get("gv", 5))
    if opt.get("g2", 3) >> (0 if A else 1) & 1: a(gath)
    a(f"s_mov_b32 s80, s6\n s_add_u32 s6, s6, 1\n s_add_u32 s53, s53, 0x20000\n s_mov_b32 s96, 0\n v_mov_b32 {vT}, 0")
    ring_next(a)
    a("s_waitcnt lgkmcnt(0)")
    stamp("g1")
    a(f"{P}_r2:")
    if free == 1: a("s_waitcnt vmcnt(0)")
    for k in range(c2):
        a(f"v_max3_u32 {vT}, v24, v25, v26\n v_max_u32 {vT}, {vT}, v27\n v_cmp_eq_u32 vcc, -1, {'v0' if free else vT}")
        a(f"s_cbranch_vccz {P}_prof" if prof == 1 else f"s_cbranch_vccz {P}_loop")
    a(f"s_mov_b64 exec, vcc\n {gath}\n s_mov_b64 exec, -1")
    if prof: a("s_add_u32 s31, s31, 1")
    G.spin_tail(a, f"{P}_r2")
    if prof == 1:
        a(f"{P}_prof:")
        stamp("end")
        a("s_waitcnt lgkmcnt(0)")
        a(f"s_cmp_lt_u32 s6, 5\n s_cbranch_scc1 {P}_loop")
        for k in range(cnt[0] - 1): a(f"s_sub_u32 s7, s{62+2*k}, s{60+2*k}\n s_add_u32 s{20+k}, s{20+k}, s7")
        a(f"s_branch {P}_loop")
    a(f"{P}_lretry:")
    a(f"s_mov_b64 exec, vcc\n buffer_load_dwordx4 {vr(LS)}, {vLin}, {WS}, s50 offen sc1\n s_mov_b64 exec, -1\n s_waitcnt vmcnt(0)")
    if prof: a("s_add_u32 s29, s29, 1")
    a(f"v_max3_u32 {vT}, v{LS}, v{LS+1}, v{LS+2}\n v_max_u32 {vT}, {vT}, v{LS+3}\n v_cmp_eq_u32 vcc, -1, {vT}\n ds_write_b128 {vMem0}, {vr(LS)} offset:4096\n s_waitcnt lgkmcnt(0)\n s_cbranch_vccz {P}_lok")
    G.spin_tail(a, f"{P}_lretry")
    if A: fb_wait(a, P)

def role_chain(a, opt):
    startup(a, opt)
    loop(a, opt, "FA", "", True)
    loop(a, opt, "FV", "", False)
    loop(a, opt, "SA", "sc1", True)
    loop(a, opt, "SV", "sc1", False)
    a(f"L_chain_done:\n ds_read_b128 {vr(KV)}, {vKp}\n s_add_u32 s53, s53, 0x20000\n s_waitcnt lgkmcnt(0)")
    for k in range(2): a(f"buffer_store_dwordx4 {vr(KV + 4*k)}, {vLin}, {G.WS}, s53 offen offset:{2048*k} sc1")
    a("L_chain_end:\n s_waitcnt vmcnt(0)")
    G.tl(a, opt, 3)
    if opt.get("prof"):
        a(f"s_lshl_b32 s7, s4, 2\n s_add_u32 s7, s7, s3\n s_lshl_b32 s7, s7, 6\n s_add_u32 s7, s7, {G.PROF}\n s_mov_b64 exec, 1")
        for k in range(12):
            a(f"v_mov_b32 v24, s{20+k}\n buffer_store_dword v24, off, {G.WS}, s7 offset:{4*k} sc1")
    a("s_waitcnt vmcnt(0)\n s_endpgm")
```

```python
import sys, math, struct
from asmlib2 import *

NAME = "gated_mix__memory_aug_recurrent_mem_tr__glu_gated_reglu__prompt"

FLG_FB  = 0x0000
FLG_FH  = 0x1000
FLG_FC  = 0x2000
FLG_FF  = 0x2800
MEMB = 0x10000
SCR  = 0x50000
PART = 0x100000
KVM  = 0x300000
KXV  = 0x1000000
CP   = 0x3000000
FP   = 0x7000000
PROF = 0x9000000
QXG  = 0xA000000
D_CH, D_INIT, D_WK, D_ERR = 0, 64, 128, 192
WSTR = 32784
L_KX, L_MX, L_QK, L_OB, L_KV, L_ROLE = 131200, 139392, 147584, 152704, 156800, 161792
XROW = 1040; XBUF = 32 * XROW
L_OX = 2 * XBUF; L_KM = L_OX + 8192; L_VM = L_KM + 2048
LDS_BYTES = 163840
SPIN = 1 << 17

X, WS, DBG, OUT, W1, W2, W3, W4 = ["s[%d:%d]" % (b, b + 3) for b in (8, 12, 16, 20, 24, 28, 32, 36)]
P_X, P_MEM0, P_WQ, P_WK, P_WV, P_WO, P_WG, P_WU, P_WD, P_GW, P_OUT, P_DBG, P_WS = 60, 62, 64, 66, 68, 70, 76, 78, 80, 82, 84, 86, 88

ROLES = (("B", 32, 96), ("C", 96, 160), ("F", 160, 188), ("R", 188, 252))
def f32bits(x): return struct.unpack("<I", struct.pack("<f", x))[0]
CSC = f32bits(128 ** -0.5 * math.log2(math.e))

def srd(a, base, ptr, size):
    a(f"s_mov_b32 s{base}, s{ptr}\n s_mov_b32 s{base+1}, s{ptr+1}\n s_mov_b32 s{base+2}, {size}\n s_mov_b32 s{base+3}, 0x20000")

def spin_tail(a, loop, sleep=0):
    if sleep: a(f"s_sleep {sleep}")
    a(f"s_add_u32 s96, s96, 1\n s_cmp_lt_u32 s96, {SPIN}\n s_cbranch_scc1 {loop}\n s_branch L_bail")

def wait_scalar(a, srdn, soff, need, dst, vt, sleep=1):
    lp = a.label("WS"); ok = a.label("WSOK")
    a(f"s_mov_b32 s96, 0\n{lp}:")
    a(f"buffer_load_dword {vt}, off, {srdn}, {soff} sc1\n s_waitcnt vmcnt(0)\n v_readfirstlane_b32 {dst}, {vt}")
    a(f"s_nop 3\n s_cmp_ge_u32 {dst}, {need}\n s_cbranch_scc1 {ok}")
    spin_tail(a, lp, sleep)
    a(f"{ok}:")

def wait_lanes(a, vaddr, soff, nl, need, vt, sleep=1):
    lp = a.label("WL"); ok = a.label("WLOK")
    a(f"s_mov_b32 s96, 0\n s_mov_b32 exec_lo, {hex((1 << nl) - 1)}\n s_mov_b32 exec_hi, 0\n{lp}:")
    a(f"buffer_load_dword {vt}, {vaddr}, {WS}, {soff} offen sc1\n s_waitcnt vmcnt(0)\n v_cmp_gt_u32 vcc, {need}, {vt}\n s_cbranch_vccz {ok}")
    spin_tail(a, lp, sleep)
    a(f"{ok}:\n s_mov_b64 exec, -1")

def flag_store(a, soff, sval, vt):
    a(f"v_mov_b32 {vt}, {sval}\n s_mov_b64 exec, 1\n buffer_store_dword {vt}, off, {WS}, {soff} sc1\n s_mov_b64 exec, -1")

TL = PROF + 0x10000
def tl(a, opt, k, vt="v24"):
    if not opt.get("tl"): return
    sk = a.label("TL")
    a(f"s_cmp_lg_u32 s3, 0\n s_cbranch_scc1 {sk}\n s_memrealtime s[100:101]\n s_waitcnt lgkmcnt(0)\n v_mov_b32 {vt}, s100")
    a(f"s_lshl_b32 s100, s2, 5\n s_add_u32 s100, s100, {TL}\n s_mov_b64 exec, 1\n buffer_store_dword {vt}, off, {WS}, s100 offset:{4*k} sc1")
    if k in (2, 3):
        a(f"s_memtime s[98:99]\n s_waitcnt lgkmcnt(0) vmcnt(0)\n v_mov_b32 {vt}, s98\n buffer_store_dword {vt}, off, {WS}, s100 offset:{4*(k+3)} sc1")
    a(f"s_mov_b64 exec, -1\n{sk}:")

def wp(a, opt, k):
    if not opt.get("wprof"): return
    a(f"s_memtime s[100:101]\n s_waitcnt lgkmcnt(0)\n s_sub_u32 s99, s100, s98\n s_mov_b32 s98, s100")
    if k is not None: a(f"s_add_u32 s{76+k}, s{76+k}, s99")
def wp_init(a, opt):
    if not opt.get("wprof"): return
    for k in range(8): a(f"s_mov_b32 s{76+k}, 0")
    wp(a, opt, None)
def wp_dump(a, opt):
    if not opt.get("wprof"): return
    a(f"s_lshl_b32 s7, s2, 2\n s_add_u32 s7, s7, s3\n s_lshl_b32 s7, s7, 5\n s_add_u32 s7, s7, {PROF + 0x20000}\n s_mov_b64 exec, 1")
    for k in range(8): a(f"v_mov_b32 v24, s{76+k}\n buffer_store_dword v24, off, {WS}, s7 offset:{4*k} sc1")
    a("s_mov_b64 exec, -1")

def init_arrive(a, vt):
    sk = a.label("IA")
    a(f"s_barrier\n s_cmp_lg_u32 s3, 0\n s_cbranch_scc1 {sk}")
    a(f"v_mov_b32 {vt}, 1\n s_mov_b64 exec, 1\n buffer_atomic_add {vt}, off, {DBG}, 0 offset:{D_INIT}\n s_mov_b64 exec, -1\n{sk}:")
    a.vm_n -= 1

def load_stream(a, jobs, tmp=32, depth=12, out=128):
    units = [(job, u) for job in jobs for u in range(16)]
    n = len(units); tok = {}
    def issue(k):
        job, u = units[k]
        a(f"s_mov_b32 s7, {job['row'](u) * job['stride']}")
        r = tmp + 8 * (k % depth)
        a(f"buffer_load_dwordx4 {vr(r)}, {job['v0']}, {job['srd']}, s7 offen")
        if job['stride'] < 4096:
            tok[k] = a.vm(f"buffer_load_dwordx4 {vr(r+4)}, {job['v0']}, {job['srd']}, s7 offen offset:{job['stride']}")
        else:
            tok[k] = a.vm(f"buffer_load_dwordx4 {vr(r+4)}, {job['v1']}, {job['srd']}, s7 offen")
    for k in range(min(depth, n)): issue(k)
    for k in range(n):
        job, u = units[k]
        a.wait_vm(tok[k])
        r = tmp + 8 * (k % depth)
        for c in range(8):
            d = job['dst'](u, c) if (job['kind'] == 'reg' or c in job.get('regc', ())) else out + 4*c + u % 4
            a(f"v_perm_b32 v{d}, v{r+4+c//2}, v{r+c//2}, s{40 + c % 2}")
        if k + depth < n: issue(k + depth)
        if job.get('group'):
            if u % 4 == 3: job['group'](u // 4)
        elif job['kind'] == 'lds' and u % 4 == 3:
            for c in range(8):
                if c not in job.get('regc', ()): a(f"ds_write_b128 {job['vdst']}, {vr(out + 4*c)} offset:{job['imm'](u // 4, c)}")
        if u == 15 and job.get('done'): job['done']()

def lds_to_regs(a, vsrc, dst, first=0):
    def done():
        a("s_waitcnt lgkmcnt(0)\n s_barrier")
        for f in range(first, 32): a(f"ds_read_b128 {dst(f)}, {vsrc} offset:{f*1024}")
        a("s_waitcnt lgkmcnt(0)\n s_barrier")
    return done

def w1_setup(a, stride, scol):
    a(f"""
    s_mov_b32 s90, {8*stride}
    v_mul_lo_u32 v24, v1, s90
    v_lshl_add_u32 v24, v2, 4, v24
    s_mul_i32 s7, s3, {128*stride}
    s_add_u32 s7, s7, {scol}
    v_add_u32 v24, s7, v24
    v_add_u32 v25, {stride}, v24
    v_lshrrev_b32 v26, 2, v2
    s_mov_b32 s90, {WSTR}
    v_mul_lo_u32 v26, v26, s90
    v_lshl_add_u32 v26, v1, 8, v26
    v_and_b32 v27, 3, v2
    v_lshl_add_u32 v26, v27, 6, v26
    s_lshl_b32 s7, s3, 13
    v_add_u32 v26, s7, v26
    s_mul_i32 s7, s3, {WSTR}
    v_add_u32 v27, s7, v0
    """)

def w1_job(a, srdn, stride, dst):
    return dict(kind='lds', srd=srdn, stride=stride, v0="v24", v1="v25", row=lambda u: 32*(u//4) + 2*(u%4), vdst="v26",
                imm=lambda grp, c: (grp*2 + c % 2)*1024 + (c//2)*16, done=lds_to_regs(a, "v27", dst))

def w2_job(a, srdn, sbase, row0=0, done=None):
    a(f"v_lshlrev_b32 v28, 13, v1\n v_lshl_add_u32 v28, v2, 4, v28\n s_lshl_b32 s7, s3, 8\n s_add_u32 s7, s7, {sbase}\n v_add_u32 v28, s7, v28")
    return dict(kind='reg', srd=srdn, stride=1024, v0="v28", row=lambda u: row0 + 32*(u//4) + 2*(u%4), done=done,
                dst=lambda u, T: 128 + (T*4 + u//4)*4 + u % 4)

def prologue(a, opt):
    a(f"""
    s_cmp_ge_u32 s2, 256
    s_cbranch_scc1 L_end
    s_load_dwordx16 s[60:75], s[0:1], 0
    s_load_dwordx8 s[76:83], s[0:1], 64
    s_load_dwordx4 s[84:87], s[0:1], 96
    s_load_dwordx2 s[88:89], s[0:1], 112
    v_lshrrev_b32 v1, 6, v0
    v_and_b32 v0, 63, v0
    v_readfirstlane_b32 s3, v1
    s_mov_b32 s40, 0x05040100
    s_mov_b32 s41, 0x07060302
    s_mov_b32 s42, {CSC}
    s_getreg_b32 s4, hwreg(HW_REG_XCC_ID)
    s_and_b32 s4, s4, 7
    """)
    if opt.get("force_slow"):
        a("s_lshr_b32 s7, s2, 6\n s_add_u32 s7, s7, 1\n s_cmp_lt_u32 s2, 20\n s_cselect_b32 s4, 0, s7")
    a("s_waitcnt lgkmcnt(0)")
    srd(a, 8, P_X, 0x200000); srd(a, 12, P_WS, 0x10000000); srd(a, 16, P_DBG, 256)
    a(f"""
    v_mov_b32 v3, {L_ROLE}
    """)
    tl(a, opt, 0)
    a(f"""
    s_cmp_lg_u32 s3, 0
    s_cbranch_scc1 L_role_wait
    v_lshlrev_b32 v4, 2, v0
    v_add_u32 v4, {D_WK}, v4
    v_cmp_eq_u32 vcc, 0, v0
    v_cndmask_b32 v4, v4, v0, vcc
    s_mov_b64 exec, 1
    s_lshl_b32 s7, s4, 2
    s_add_u32 s7, s7, {D_WK}
    s_cmp_eq_u32 s4, 0
    s_cselect_b32 s7, {D_CH}, s7
    v_mov_b32 v2, 1
    buffer_atomic_add v2, off, {DBG}, s7 sc0
    s_waitcnt vmcnt(0)
    v_readfirstlane_b32 s5, v2
    s_nop 3
    s_cmp_lt_u32 s5, 32
    s_cbranch_scc1 L_role_slot
    v_mov_b32 v2, 1
    buffer_atomic_add v2, off, {DBG}, 0 offset:{D_WK} sc0
    s_waitcnt vmcnt(0)
    v_readfirstlane_b32 s6, v2
    s_mov_b64 exec, 0xff
    s_mov_b32 s96, 0
    L_role_census:
    buffer_load_dword v2, v4, {DBG}, 0 offen sc1
    s_waitcnt vmcnt(0)
    """)
    for x in range(8): a(f"v_readlane_b32 s{44+x}, v2, {x}")
    a("s_nop 3\n s_mov_b32 s7, 0")
    for x in range(8): a(f"s_add_u32 s7, s7, s{44+x}")
    a("s_cmp_ge_u32 s7, 256\n s_cbranch_scc1 L_role_pick")
    spin_tail(a, "L_role_census", 4)
    a("L_role_pick:\n s_mov_b64 exec, 1")
    for x in range(8):
        a(f"s_min_u32 s7, s{44+x}, 32\n s_mov_b32 s4, {x}\n s_add_u32 s5, s7, s6\n s_cmp_lt_u32 s5, 32\n s_cbranch_scc1 L_role_slot\n s_sub_u32 s6, s5, 32")
    a(f"""
    s_branch L_bail
    L_role_slot:
    s_mul_i32 s7, s5, 7
    s_add_u32 s7, s7, s4
    s_add_u32 s7, s7, 31
    s_cmp_eq_u32 s4, 0
    s_cselect_b32 s5, s5, s7
    L_role_have:
    v_mov_b32 v2, s5
    ds_write_b32 v3, v2
    s_waitcnt lgkmcnt(0)
    s_mov_b64 exec, -1
    L_role_wait:
    s_barrier
    ds_read_b32 v2, v3
    s_waitcnt lgkmcnt(0)
    v_readfirstlane_b32 s4, v2
    v_lshrrev_b32 v1, 4, v0
    v_and_b32 v2, 15, v0
    s_nop 2
    s_and_b32 s4, s4, 255
    """)
    tl(a, opt, 1)
    if opt.get("tl"):
        a(f"v_mov_b32 v24, s4\n s_lshl_b32 s100, s2, 5\n s_add_u32 s100, s100, {TL}\n buffer_store_dword v24, off, {WS}, s100 offset:28 sc1")
    a(f"""
    s_cmp_lt_u32 s4, 32
    s_cbranch_scc1 L_chain
    s_cmp_lt_u32 s4, 96
    s_cbranch_scc1 L_B
    """)
    if not opt.get("nocfr"): a("""
    s_cmp_lt_u32 s4, 160
    s_cbranch_scc1 L_C
    s_cmp_lt_u32 s4, 188
    s_cbranch_scc1 L_F
    s_cmp_lt_u32 s4, 252
    s_cbranch_scc1 L_R
    """)
    init_arrive(a, "v3")
    a(f"""
    s_waitcnt vmcnt(0)
    s_endpgm
    L_bail:
    s_mov_b64 exec, 1
    v_mov_b32 v0, s4
    v_add_u32 v0, 0x100, v0
    buffer_store_dword v0, off, {DBG}, 0 offset:{D_ERR}
    s_waitcnt vmcnt(0)
    L_end:
    s_endpgm
    """)

def x_dma(a, sseg, sbuf):
    a(f"s_lshl_b32 s90, {sseg}, 15\n s_lshl_b32 s91, s3, 13\n s_add_u32 s90, s90, s91")
    a(f"s_mul_i32 s91, s3, {8*XROW}\n s_add_u32 s91, s91, {sbuf}")
    for r in range(8):
        a(f"s_add_u32 m0, s91, {r*XROW}")
        a(f"s_nop 0\n buffer_load_dwordx4 v0, {X}, s90 offen lds")
        if r < 7: a("s_add_u32 s90, s90, 1024")

def gemm1(a, vx, mats, fr, mid=None):
    tok = {}
    def rd(t):
        for rt in range(2):
            tok[t] = a.ds(f"ds_read_b128 {vr(fr + 8*(t%3) + 4*rt)}, {vx} offset:{rt*16*XROW + t*64}")
    rd(0); rd(1)
    for t in range(16):
        if t + 2 < 16: rd(t + 2)
        a.wait_ds(tok[t])
        for wreg, acc, wA in mats:
            for T in range(2):
                for rt in range(2):
                    xf = vr(fr + 8*(t%3) + 4*rt); d = vr(acc(T, rt)); c = d if t else "0"
                    A, B = (wreg(t, T), xf) if wA else (xf, wreg(t, T))
                    a(f"v_mfma_f32_16x16x32_bf16 {d}, {A}, {B}, {c}")
        if mid and t == mid[0]: mid[1]()

ST2 = 'sc1'
def stage2(a, vrd, vst, sdst, oa, acc, tmp, nt=4):
    tok = {}
    for rt in range(2):
        for t in range(nt):
            tok[(rt, t)] = a.ds(f"ds_read_b128 {oa(rt*nt+t)}, {vrd} offset:{(rt*nt+t)*1024}")
    def cv(rt, i, p):
        a(f"v_cvt_pk_bf16_f32 v{tmp + 4*(i%2) + p}, v{acc + (rt*8+2*p)*4 + i}, v{acc + (rt*8+2*p+1)*4 + i}")
    def st(rt, i):
        a(f"buffer_store_dwordx4 {vr(tmp + 4*(i%2))}, {vst}, {WS}, {'s7' if rt else sdst} offen offset:{i*1024} {ST2}")
    a(f"s_add_u32 s7, {sdst}, 16384")
    for rt in range(2):
        for t in range(nt):
            a.wait_ds(tok[(rt, t)])
            for T in range(8):
                d = vr(acc + (rt*8+T)*4)
                a(f"v_mfma_f32_16x16x32_bf16 {d}, {oa(rt*nt+t)}, {(vr, ar)[t//4](128 + (T*4 + t % 4)*4)}, {d if t else '0'}")
                if rt == 1 and t < 4 and 2 <= T < 6: cv(0, t, T - 2)
                if rt == 1 and t < 4 and T == 6: st(0, t)
    for i in range(4):
        for p in range(4): cv(1, i, p)
        st(1, i)

def worker_top(a, name, nst):
    a("s_waitcnt vmcnt(0)")
    a(f"{name}_loop:\n s_waitcnt vmcnt({nst})\n s_barrier")
    a(f"s_lshl_b32 s43, s6, 1\n s_add_u32 s43, s43, s5")
    a(f"s_add_u32 s44, s43, 2\n s_min_u32 s44, s44, 63\n s_sub_u32 s45, {XBUF}, s46")
    x_dma(a, "s44", "s45")
    a(f"v_add_u32 v4, s46, v3")

def worker_bot(a, name):
    a(f"s_sub_u32 s46, {XBUF}, s46\n s_add_u32 s6, s6, 1\n s_cmp_lt_u32 s6, 32")
    a.fence()
    a(f"s_cbranch_scc1 {name}_loop")

def worker_init(a, first, per):
    a(f"s_sub_u32 s4, s4, {first}\n s_cmp_ge_u32 s4, {per}\n s_cselect_b32 s5, 1, 0\n s_cselect_b32 s7, {per}, 0\n s_sub_u32 s4, s4, s7")
    a("s_mov_b32 s6, 0\n s_mov_b32 s46, 0")
    a(f"s_mov_b32 s7, {XROW}\n v_mul_lo_u32 v3, v2, s7\n v_lshl_add_u32 v3, v1, 4, v3\n v_lshlrev_b32 v0, 4, v0")

def wave_flag(a, base):
    a(f"s_lshl_b32 s47, s5, 2\n s_add_u32 s47, s47, s3\n s_lshl_b32 s47, s47, 7\n s_lshl_b32 s7, s4, 2\n s_add_u32 s47, s47, s7\n s_add_u32 s47, s47, {base}")
    flag_store(a, "s47", "0", "v24")

def worker_end(a, opt):
    wp_dump(a, opt)
    tl(a, opt, 3)
    a("s_waitcnt vmcnt(0)\n s_endpgm")

def role_B(a, opt):
    a("L_B:")
    worker_init(a, 32, 32)
    a(f"s_lshl_b32 s47, s4, 7\n s_lshl_b32 s7, s5, 2\n s_add_u32 s47, s47, s7\n s_add_u32 s47, s47, {FLG_FB}\n v_lshrrev_b32 v5, 1, v0")
    def flags(kv, q):
        a(f"v_mov_b32 v6, {q}\n v_writelane_b32 v6, {kv}, 0\n s_mov_b64 exec, 3\n buffer_store_dword v6, v5, {WS}, s47 offen sc1\n s_mov_b64 exec, -1")
    flags("0", "0")
    a("s_waitcnt vmcnt(0)")
    init_arrive(a, "v24")
    srd(a, 24, P_WK, 0x400000); srd(a, 28, P_WV, 0x400000); srd(a, 32, P_WQ, 0x400000)
    a("s_lshl_b32 s48, s4, 8")
    w1_setup(a, 8192, "s48")
    def publish():
        sk = a.label("BF")
        a(f"s_barrier\n s_cmp_lg_u32 s3, 0\n s_cbranch_scc1 {sk}\n s_max_u32 s7, s6, {opt.get('fkv', 0)}")
        flags("s7", "s6")
        a(f"{sk}:")
        a.vm_n -= 1
    mk = lambda acc: (lambda t, T: ar((t*2+T)*4), lambda T, rt: acc + (T*2+rt)*4, True)
    mv = lambda acc: (lambda t, T: ar(128 + (t*2+T)*4), lambda T, rt: acc + (T*2+rt)*4, False)
    def kv_out(ak, av, r0):
        a(f"s_lshl_b32 s52, s43, 5\n s_add_u32 s52, s52, s4\n s_lshl_b32 s48, s52, 14\n s_add_u32 s48, s48, {KXV}")
        a("s_lshl_b32 s7, s3, 10\n s_add_u32 s49, s48, s7\n s_add_u32 s50, s49, 4096")
        a(f"s_lshl_b32 s52, s52, 13\n s_add_u32 s52, s52, s7\n s_add_u32 s52, s52, {QXG}\n s_add_u32 s53, s52, 4096")
        a("s_lshl_b32 s7, s3, 11\n s_add_u32 s51, s48, s7\n s_add_u32 s51, s51, 8192")
        for rt in range(2):
            r = r0 + 4*rt
            for i in range(4): a(f"v_cvt_pk_bf16_f32 v{r+i}, v{ak + rt*4 + i}, v{ak + (2+rt)*4 + i}")
            a(f"buffer_store_dwordx4 {vr(r)}, v0, {WS}, s{49+rt} offen sc1")
        for T in range(2):
            r = r0 + 8 + 4*T; b = av + T*8
            for p in range(4): a(f"v_cvt_pk_bf16_f32 v{r+p}, v{b + 2*p}, v{b + 2*p + 1}")
            a(f"buffer_store_dwordx4 {vr(r)}, v0, {WS}, s51 offen offset:{T*1024} sc1")
    jv = w1_job(a, W2, 8192, lambda f: ar(128 + 4*f))
    vdone = jv['done']
    def first_kv():
        vdone()
        x_dma(a, "s5", "s46")
        a("s_mov_b32 s43, s5\n s_waitcnt vmcnt(0)\n s_barrier")
        gemm1(a, "v3", [mk(192), mv(208)], 160)
        kv_out(192, 208, 224)
        a("s_waitcnt vmcnt(0)")
        publish()
    if opt.get("fkv", 0): jv['done'] = first_kv
    load_stream(a, [w1_job(a, W1, 8192, lambda f: ar(4*f)), jv, w1_job(a, W3, 8192, lambda f: vr(128 + 4*f))])
    x_dma(a, "s5", "s46")
    tl(a, opt, 2)
    wp_init(a, opt)
    worker_top(a, "B", 6)
    wp(a, opt, 0)
    gemm1(a, "v4", [mk(64), mv(80), (lambda t, T: vr(128 + (t*2+T)*4), lambda T, rt: 96 + (T*2+rt)*4, True)], 32,
          mid=(4, lambda: (a("s_waitcnt vmcnt(8)"), publish())))
    wp(a, opt, 1)
    kv_out(64, 80, 112)
    for rt in range(2):
        r = 56 + 4*rt
        for i in range(4): a(f"v_cvt_pk_bf16_f32 v{r+i}, v{96 + rt*4 + i}, v{96 + (2+rt)*4 + i}")
        a(f"buffer_store_dwordx4 {vr(r)}, v0, {WS}, s{52+rt} offen sc1")
    wp(a, opt, 7)
    worker_bot(a, "B")
    a("s_waitcnt vmcnt(0)")
    publish()
    worker_end(a, opt)

def st2_addrs(a):
    a(f"v_add_u32 v6, {L_OX}, v0")
    a(f"v_lshlrev_b32 v7, 12, v1\n v_lshl_add_u32 v7, v2, 4, v7\n s_lshl_b32 s7, s3, 8\n v_add_u32 v7, s7, v7")

def role_F(a, opt):
    a("L_F:")
    worker_init(a, 160, 14)
    wave_flag(a, FLG_FF)
    a("s_waitcnt vmcnt(0)")
    init_arrive(a, "v24")
    if opt.get("hold", 0):
        wait_scalar(a, DBG, D_INIT, 256, "s7", "v24", opt.get("si", 48))
        a(f"s_lshl_b32 s48, s4, 7\n s_add_u32 s48, s48, {FLG_FB + opt.get('hf', 8)}")
        wait_scalar(a, WS, "s48", 1, "s7", "v24", 16)
    srd(a, 24, P_WG, 512*3584); srd(a, 28, P_WU, 512*3584); srd(a, 32, P_WD, 1792*1024)
    a("s_lshl_b32 s48, s4, 8")
    w1_setup(a, 3584, "s48")
    a("s_lshl_b32 s48, s4, 17")
    load_stream(a, [w1_job(a, W1, 3584, lambda f: ar(4*f)), w1_job(a, W2, 3584, lambda f: ar(128 + 4*f)), w2_job(a, W3, "s48")])
    x_dma(a, "s5", "s46")
    st2_addrs(a)
    a("s_lshl_b32 s7, s3, 10\n v_add_u32 v5, s7, v6")
    tl(a, opt, 2)
    wp_init(a, opt)
    worker_top(a, "F", 8)
    wp(a, opt, 0)
    gemm1(a, "v4", [(lambda t, T: ar((t*2+T)*4), lambda T, rt: 64 + (T*2+rt)*4, True),
                    (lambda t, T: ar(128 + (t*2+T)*4), lambda T, rt: 80 + (T*2+rt)*4, True)], 32,
          mid=(9, lambda: (a("s_waitcnt vmcnt(8)"), flag_store(a, "s47", "s6", "v24"))))
    wp(a, opt, 1)
    for r in range(16): a(f"v_max_f32 v{64+r}, 0, v{64+r}")
    for r in range(16): a(f"v_mul_f32 v{64+r}, v{64+r}, v{80+r}")
    for rt in range(2):
        r = 96 + 4*rt
        for i in range(4): a(f"v_cvt_pk_bf16_f32 v{r+i}, v{64 + rt*4 + i}, v{64 + (2+rt)*4 + i}")
        a(f"ds_write_b128 v5, {vr(r)} offset:{rt*4096}")
    a(f"s_lshl_b32 s48, s43, 4\n s_add_u32 s48, s48, s4\n s_lshl_b32 s48, s48, 15\n s_and_b32 s48, s48, {hex((opt.get('fring', 64) << 19) - 1)}\n s_add_u32 s48, s48, {FP}")
    a("s_waitcnt lgkmcnt(0)\n s_barrier")
    stage2(a, "v6", "v7", "s48", lambda f: vr(32 + 4*f), 64, 24)
    wp(a, opt, 7)
    if opt.get("zf"): a(f"s_sleep {opt['zf']}")
    worker_bot(a, "F")
    a("s_waitcnt vmcnt(0)")
    flag_store(a, "s47", "s6", "v24")
    worker_end(a, opt)

def softmax(a, X0, X1, M, t, pX, pM):
    a(f"""
    v_max3_f32 v{t}, v{X0}, v{X0+1}, v{X0+2}
    v_max3_f32 v{t+1}, v{X0+3}, v{X1}, v{X1+1}
    v_max3_f32 v{t}, v{t}, v{X1+2}, v{X1+3}
    v_max3_f32 v{t+1}, v{t+1}, v{M}, v{M+1}
    v_max_f32 v{t}, v{t}, v{t+1}
    v_max_f32 v{t+1}, v{t}, v{t+1}
    v_permlane16_swap_b32 v{t}, v{t+1}
    v_max_f32 v{t+2}, v{t}, v{t+1}
    v_max_f32 v{t+3}, v{t}, v{t+1}
    v_permlane32_swap_b32 v{t+2}, v{t+3}
    v_max_f32 v{t}, v{t+2}, v{t+3}
    v_mul_f32 v{t}, s42, v{t}
    """)
    regs = [X0, X0+1, X0+2, X0+3, X1, X1+1, X1+2, X1+3, M, M+1]
    for r in regs: a(f"v_fma_f32 v{r}, v{r}, s42, -v{t}")
    for k, r in enumerate(regs):
        a(f"v_exp_f32 v{r}, v{r}")
        if k >= 2 and k % 2 == 0: a(f"v_cvt_pk_bf16_f32 v{pX + k//2 - 1}, v{regs[k-2]}, v{regs[k-1]}")
    a(f"v_cvt_pk_bf16_f32 v{pM}, v{M}, v{M+1}\n v_cvt_pk_bf16_f32 v{pM+3}, v{M}, v{M+1}")

def role_C(a, opt):
    C_OX, C_KV = 49152, 65536
    a("L_C:")
    a("s_sub_u32 s4, s4, 96\n s_lshr_b32 s5, s4, 4\n s_and_b32 s4, s4, 15\n s_mov_b32 s6, 0\n v_lshlrev_b32 v0, 4, v0")
    wave_flag(a, FLG_FC)
    a(f"""
    s_lshr_b32 s52, s3, 1
    s_and_b32 s53, s3, 1
    s_lshl_b32 s58, s4, 1
    s_add_u32 s58, s58, s52
    s_lshl_b32 s55, s5, 5
    s_add_u32 s55, s55, s58
    s_lshl_b32 s55, s55, 12
    s_lshl_b32 s7, s53, 11
    s_add_u32 s55, s55, s7
    s_add_u32 s55, s55, {KVM}
    v_mov_b64 v[24:25], -1
    v_mov_b64 v[26:27], -1
    s_add_u32 s7, s55, {15*0x80000}
    buffer_store_dwordx4 v[24:27], v0, {WS}, s7 offen sc1
    buffer_store_dwordx4 v[24:27], v0, {WS}, s7 offen offset:1024 sc1
    s_lshl_b32 s50, s58, 7
    s_add_u32 s50, s50, {FLG_FH}
    v_lshrrev_b32 v9, 2, v0
    """)
    a("s_waitcnt vmcnt(0)")
    init_arrive(a, "v24")
    if opt.get("hold", 0):
        wait_scalar(a, DBG, D_INIT, 256, "s7", "v24", opt.get("si", 48))
        a(f"s_lshl_b32 s48, s58, 7\n s_add_u32 s48, s48, {FLG_FB + opt.get('hc', 0)}")
        wait_scalar(a, WS, "s48", 1, "s7", "v24", 16)
    srd(a, 28, P_WO, 0x400000)
    a("s_lshl_b32 s48, s4, 18")
    load_stream(a, [w2_job(a, W2, "s48", 128, lambda: [a(f"v_accvgpr_write_b32 a{r}, v{r}") for r in range(128, 256)]), w2_job(a, W2, "s48")])
    st2_addrs(a)
    a(f"""
    v_add_u32 v6, {C_OX}, v0
    s_mul_i32 s59, s52, 24576
    v_add_u32 v3, s59, v0
    s_lshl_b32 s7, s53, 12
    s_add_u32 s7, s7, 16384
    v_add_u32 v4, s7, v3
    s_lshl_b32 s7, s3, 11
    s_add_u32 s7, s7, {C_KV}
    v_add_u32 v8, s7, v0
    s_lshl_b32 s7, s52, 12
    s_add_u32 s90, s7, {C_KV + 2048}
    v_add_u32 v11, s90, v0
    v_lshrrev_b32 v24, 2, v2
    v_and_b32 v25, 1, v2
    v_lshl_add_u32 v10, v24, 1, v25
    v_lshlrev_b32 v10, 4, v10
    v_lshl_add_u32 v10, v1, 7, v10
    s_add_u32 s90, s7, {C_KV}
    v_add_u32 v10, s90, v10
    s_lshl_b32 s90, s53, 13
    s_add_u32 s90, s90, s7
    v_add_u32 v12, s90, v6
    s_lshl_b32 s7, s53, 4
    v_add_u32 v14, s7, v2
    v_lshlrev_b32 v15, 2, v1
    v_sub_u32 v14, v14, v15
    """)
    for k in range(8):
        a(f"v_cmp_le_i32 s[{60+2*k}:{61+2*k}], {k if k < 4 else 12 + k}, v14")
    a("v_mov_b32 v14, 0xf149f2ca")
    for r in range(16, 20): a(f"v_mov_b32 v{r}, 0x3f803f80")
    a("v_mov_b32 v21, 0\n v_mov_b32 v22, 0")
    a(f"s_lshl_b32 s54, s58, 7\n s_and_b32 s7, s5, 1\n s_lshl_b32 s7, s7, 2\n s_add_u32 s54, s54, s7\n s_add_u32 s54, s54, {FLG_FB + 8}\n s_mov_b32 s56, 0")
    wait_scalar(a, DBG, D_INIT, 256, "s7", "v24", opt.get("si", 48))
    QB, KX, VX = 0, 16, 48
    def fetch(sidx):
        ok = a.label("CB")
        a(f"s_lshl_b32 s49, {sidx}, 2\n s_add_u32 s49, s49, s5\n s_lshr_b32 s57, s49, 1\n s_cmp_gt_u32 s56, s57\n s_cbranch_scc1 {ok}\n s_add_u32 s57, s57, 1")
        wait_scalar(a, WS, "s54", "s57", "s56", "v13", 4)
        a(f"{ok}:")
        a(f"s_lshl_b32 s49, s49, 5\n s_add_u32 s49, s49, s58")
        a(f"s_lshl_b32 s57, s49, 13\n s_lshl_b32 s7, s53, 12\n s_add_u32 s57, s57, s7\n s_add_u32 s57, s57, {QXG}\n s_add_u32 s7, s7, s59\n s_add_u32 m0, s7, 16384")
        a(f"s_lshl_b32 s49, s49, 14\n s_add_u32 s49, s49, {KXV}\n s_lshl_b32 s7, s53, 13\n s_add_u32 s49, s49, s7\n s_add_u32 s7, s7, s59")
        for f in range(4): a(f"buffer_load_dwordx4 v0, {WS}, s57 offen offset:{f*1024} sc1 lds")
        for hf in range(2):
            a(f"s_add_u32 m0, s7, {hf*4096}")
            if hf: a("s_add_u32 s49, s49, 4096")
            for f in range(4): a(f"buffer_load_dwordx4 v0, {WS}, s49 offen offset:{f*1024} sc1 lds")
    fetch("s6")
    tl(a, opt, 2)
    wp_init(a, opt)
    a("s_waitcnt vmcnt(0)\nC_loop:\n s_barrier")
    wp(a, opt, 0)
    for f in range(4): a(f"ds_read_b128 {ar(QB + 4*f)}, v4 offset:{f*1024}")
    for f in range(16): a(f"ds_read_b128 {ar(KX + 4*f)}, v3 offset:{f*1024}")
    a("s_waitcnt lgkmcnt(0)")
    KM, VM, X0, X1, M = 88, 104, 116, 120, 124
    for rt in range(2):
        d = vr(X0 + 4*rt)
        for t in range(4): a(f"v_mfma_f32_16x16x32_bf16 {d}, {ar(KX + (rt*4+t)*4)}, {ar(QB + 4*t)}, {d if t else '0'}")
    for k in range(8): a(f"v_cndmask_b32 v{X0+k}, v14, v{X0+k}, s[{60+2*k}:{61+2*k}]")
    wp(a, opt, 1)
    a("s_cmp_eq_u32 s6, 15\n s_cbranch_scc1 C_direct\n s_lshl_b32 s57, s6, 2\n s_add_u32 s57, s57, s5\n s_add_u32 s57, s57, 1")
    wait_lanes(a, "v9", "s50", 2, "s57", "v24", 8)
    a(f"""
    C_direct:
    s_mov_b32 s96, 0
    C_poll:
    buffer_load_dwordx4 v[24:27], v0, {WS}, s55 offen sc1
    buffer_load_dwordx4 v[28:31], v0, {WS}, s55 offen offset:1024 sc1
    s_waitcnt vmcnt(0)
    v_max3_u32 v32, v24, v25, v26
    v_max3_u32 v33, v27, v28, v29
    v_max3_u32 v32, v32, v30, v31
    v_max_u32 v32, v32, v33
    v_cmp_eq_u32 vcc, -1, v32
    s_cbranch_vccz C_have
    """)
    spin_tail(a, "C_poll", opt.get("slc", 1))
    a("C_have:")
    wp(a, opt, 3)
    a("ds_write_b128 v8, v[24:27]\n ds_write_b128 v8, v[28:31] offset:1024\n s_add_u32 s55, s55, 0x80000\n s_waitcnt lgkmcnt(0)\n s_barrier")
    tk = [a.ds(f"ds_read_b128 {vr(KM + 4*t)}, v10 offset:{t*512}") for t in range(4)]
    for f in range(2): a(f"ds_read_b128 {vr(VM + 4*f)}, v11 offset:{f*1024}")
    for t in range(4):
        a.wait_ds(tk[t])
        a(f"v_mfma_f32_16x16x32_bf16 {vr(M)}, {vr(KM + 4*t)}, {ar(QB + 4*t)}, {vr(M) if t else '0'}")
    wp(a, opt, 4)
    PX, PM, O, Lr = 24, 20, 32, 64
    softmax(a, X0, X1, M, 28, PX, PM)
    a("s_waitcnt lgkmcnt(0)")
    a(f"v_mfma_f32_16x16x32_bf16 {vr(Lr)}, v[16:19], {vr(PX)}, 0")
    for f in range(8): a(f"v_mfma_f32_16x16x32_bf16 {vr(O + 4*f)}, {ar(VX + 4*f)}, {vr(PX)}, 0")
    a(f"v_mfma_f32_16x16x16_bf16 {vr(Lr)}, v[16:17], {vr(PM, 2)}, {vr(Lr)}")
    for f in range(8):
        a(f"v_mfma_f32_16x16x16_bf16 {vr(O + 4*f)}, {vr(VM + 2*(f//2), 2)}, {vr(PM + 2*(f%2), 2)}, {vr(O + 4*f)}")
        if f == 2: a(f"v_rcp_f32 v28, v{Lr}")
        if f >= 3:
            for r in range(2): a(f"v_mul_f32 v{O + 2*(f-3) + r}, v{O + 2*(f-3) + r}, v28")
    for hw in range(4):
        r = 68 + 4*hw
        for q in range(max(10, 8*hw), 8*hw + 8, 2): a(f"v_pk_mul_f32 {vr(O + q, 2)}, {vr(O + q, 2)}, v[28:29] op_sel_hi:[1,0]")
        for i in range(4): a(f"v_cvt_pk_bf16_f32 v{r+i}, v{O + 8*hw + i}, v{O + 8*hw + 4 + i}")
        a(f"ds_write_b128 v12, {vr(r)} offset:{hw*1024}")
    wp(a, opt, 5)
    a("s_cmp_eq_u32 s6, 15\n s_cbranch_scc1 C_nofetch\n s_add_u32 s44, s6, 1")
    fetch("s44")
    a("C_nofetch:")
    a(f"s_lshl_b32 s48, s6, 2\n s_add_u32 s48, s48, s5\n s_lshl_b32 s48, s48, 4\n s_add_u32 s48, s48, s4\n s_lshl_b32 s48, s48, 15\n s_add_u32 s48, s48, {CP}")
    a("s_waitcnt lgkmcnt(0)\n s_barrier")
    wp(a, opt, 6)
    stage2(a, "v6", "v7", "s48", lambda f: ar(4*f), 64, 24, 8)
    wp(a, opt, 7)
    a("s_add_u32 s6, s6, 1\n s_waitcnt vmcnt(0)")
    flag_store(a, "s47", "s6", "v13")
    wp(a, opt, 2)
    a("s_cmp_lt_u32 s6, 16")
    a.fence()
    a("s_cbranch_scc1 C_loop")
    worker_end(a, opt)

def make_sel(a, b, t):
    a(f"v_and_b32 v{t}, 1, v2\n v_lshlrev_b32 v{t}, 4, v{t}\n v_mov_b32 v{t+1}, 0x3f80\n v_lshlrev_b32 v{t}, v{t}, v{t+1}")
    a(f"v_bfe_u32 v{t+1}, v2, 1, 2")
    for p in range(4):
        a(f"v_cmp_eq_u32 vcc, {p}, v{t+1}\n v_cndmask_b32 v{b+p}, 0, v{t}, vcc")

def role_R(a, opt):
    a("L_R:")
    a("s_sub_u32 s4, s4, 188\n s_lshr_b32 s5, s4, 5\n s_and_b32 s4, s4, 31")
    a(f"""
    v_lshlrev_b32 v4, 15, v1
    v_lshl_add_u32 v4, v2, 4, v4
    s_lshl_b32 s7, s4, 10
    s_lshl_b32 s43, s3, 8
    s_add_u32 s7, s7, s43
    v_add_u32 v4, s7, v4
    v_lshlrev_b32 v5, 3, v1
    v_lshl_add_u32 v5, v2, 4, v5
    v_add_u32 v5, s7, v5
    v_mov_b64 v[24:25], -1
    v_mov_b64 v[26:27], -1
    s_lshl_b32 s45, s5, 19
    s_add_u32 s45, s45, {CP + (62 << 19)}
    """)
    for u in range(4): a(f"buffer_store_dwordx4 v[24:27], v4, {WS}, s45 offen sc1\n s_add_u32 s45, s45, 0x20000")
    a("s_waitcnt vmcnt(0)")
    init_arrive(a, "v24")
    if opt.get("warm", 1):
        a("s_lshl_b32 s7, s5, 5\n s_add_u32 s7, s7, s4\n s_lshl_b32 s7, s7, 2\n s_add_u32 s7, s7, s3\n s_lshl_b32 s7, s7, 14\n v_lshlrev_b32 v24, 7, v0")
        for n, p in enumerate([(P_WQ, P_WV, P_WO), (P_WO,), (P_WK, P_WQ, P_WV, P_WO)][opt.get("warm", 1) - 1]):
            srd(a, 24, p, 0x400000)
            a(f"buffer_load_dword v{26+2*n}, v24, {W1}, s7 offen\n s_add_u32 s43, s7, 8192\n buffer_load_dword v{27+2*n}, v24, {W1}, s43 offen")
        a("s_waitcnt vmcnt(0)")
    srd(a, 20, P_OUT, 0x200000); srd(a, 24, P_GW, 1024)
    make_sel(a, 16, 24)
    a(f"""
    v_lshlrev_b32 v3, 2, v0
    v_lshlrev_b32 v0, 4, v0
    buffer_load_dwordx4 v[8:11], v0, {W1}, 0 offen
    s_lshl_b32 s7, s5, 2
    s_add_u32 s7, s7, s3
    s_lshl_b32 s7, s7, 7
    s_add_u32 s54, s7, {FLG_FC}
    s_add_u32 s55, s7, {FLG_FF}
    s_mov_b32 s6, 0
    s_mov_b32 s58, {f32bits(-math.log2(math.e))}
    """)
    for r in range(76, 80): a(f"v_mov_b32 v{r}, 0")
    wait_scalar(a, DBG, D_INIT, 256, "s7", "v24", opt.get("si", 48))
    tl(a, opt, 2)
    wp_init(a, opt)
    a(f"""
    R_loop:
    s_lshl_b32 s43, s6, 1
    s_add_u32 s43, s43, s5
    s_add_u32 s57, s6, 1
    s_lshl_b32 s44, s43, 15
    s_lshl_b32 s7, s4, 10
    s_add_u32 s7, s7, s44
    buffer_load_dwordx4 v[12:15], v0, {X}, s7 offen
    """)
    wait_lanes(a, "v3", "s55", 14, "s57", "v24", 8)
    wp(a, opt, 0)
    a(f"s_lshl_b32 s45, s43, 19\n s_and_b32 s45, s45, {hex((opt.get('fring', 64) << 19) - 1)}\n s_add_u32 s45, s45, {FP}")
    for u in range(4):
        if u == 3: a("s_mov_b32 exec_hi, 0")
        a(f"buffer_load_dwordx4 {vr(64 + 4*u)}, v4, {WS}, s45 offen {['sc1', 'sc1 nt'][opt.get('rnt', 0)]}")
        if u < 3: a("s_add_u32 s45, s45, 0x20000")
    a("s_mov_b64 exec, -1")
    a("v_mov_b32 v24, 0")
    for p in range(4): a(f"v_dot2c_f32_bf16 v24, v{12+p}, v{8+p}")
    for k in (8, 4, 2, 1): a(f"v_add_f32_dpp v24, v24, v24 row_ror:{k} row_mask:0xf bank_mask:0xf")
    a("""
    v_mov_b32 v25, v24
    v_permlane16_swap_b32 v24, v25
    v_add_f32 v24, v24, v25
    v_mov_b32 v25, v24
    v_permlane32_swap_b32 v24, v25
    v_add_f32 v24, v24, v25
    v_mul_f32 v24, s58, v24
    v_exp_f32 v24, v24
    v_add_f32 v24, 1.0, v24
    v_rcp_f32 v6, v24
    v_sub_f32 v7, 1.0, v6
    s_waitcnt vmcnt(0)
    """)
    for u in range(4): a(f"v_mfma_f32_16x16x32_bf16 v[28:31], v[16:19], {vr(64 + 4*u)}, {'v[28:31]' if u else '0'}")
    for i in range(4): a(f"v_mul_f32 v{28+i}, v{28+i}, v7")
    wp(a, opt, 1)
    a("s_cmp_eq_u32 s6, 31\n s_cbranch_scc1 R_direct")
    a("s_and_b32 s7, s6, 1\n s_lshl_b32 s7, s7, 10\n s_add_u32 s46, s54, s7\n s_lshr_b32 s57, s6, 1\n s_add_u32 s57, s57, 1")
    wait_lanes(a, "v3", "s46", 16, "s57", "v24", opt.get("slr", 8))
    a("R_direct:\n s_mov_b32 s96, 0")
    wp(a, opt, 2)
    a(f"R_poll:\n s_lshl_b32 s45, s43, 19\n s_add_u32 s45, s45, {CP}")
    tok = []
    for u in range(4):
        tok.append(a.vm(f"buffer_load_dwordx4 {vr(32 + 4*u)}, v4, {WS}, s45 offen sc1"))
        if u < 3: a("s_add_u32 s45, s45, 0x20000")
    for u in range(4):
        a.wait_vm(tok[u])
        a(f"v_mfma_f32_16x16x32_bf16 v[24:27], v[16:19], {vr(32 + 4*u)}, {'v[24:27]' if u else '0'}")
        a(f"v_max3_u32 v{48+u}, v{32+4*u}, v{33+4*u}, v{34+4*u}\n v_max_u32 v{48+u}, v{48+u}, v{35+4*u}")
    a("v_max3_u32 v48, v48, v49, v50\n v_max_u32 v48, v48, v51\n v_cmp_eq_u32 vcc, -1, v48\n s_cbranch_vccz R_have")
    spin_tail(a, "R_poll", opt.get("sld", 2))
    a("R_have:\n s_nop 3")
    for i in range(4): a(f"v_fma_f32 v{24+i}, v{24+i}, v6, v{28+i}")
    a(f"""
    v_cvt_pk_bf16_f32 v24, v24, v25
    v_cvt_pk_bf16_f32 v25, v26, v27
    s_mov_b32 exec_hi, 0
    buffer_store_dwordx2 v[24:25], v5, {OUT}, s44 offen {['', 'sc1', 'nt', 'sc0 sc1'][opt.get('ost', 0)]}
    s_mov_b64 exec, -1
    """)
    wp(a, opt, 3)
    a("s_add_u32 s6, s6, 1\n s_cmp_lt_u32 s6, 32")
    a.fence()
    a("s_cbranch_scc1 R_loop\n s_waitcnt vmcnt(0)")
    wp_dump(a, opt)
    tl(a, opt, 3)
    a("s_waitcnt vmcnt(0)\n s_endpgm")

def build(opt):
    from chain import role_chain
    global ST2
    ST2 = ['sc1', 'sc1 nt', ''][opt.get('st2', 0)]
    a = Asm()
    prologue(a, opt)
    if not opt.get("nocfr"): role_R(a, opt)
    role_chain(a, opt)
    role_B(a, opt)
    if not opt.get("nocfr"):
        role_C(a, opt)
        role_F(a, opt)
    hdr = open("cdna_kernels/%s.s.ref" % NAME).read().split("; Override")[0] if opt.get("hdr", True) else ""
    k = NAME + "_kernel"
    return f"""{hdr}; @launch grid=(256,1,1) block=(256,1,1) lds={LDS_BYTES}
.amdgcn_target "amdgcn-amd-amdhsa--gfx950"
.text
.globl {k}
.p2align 8
.type {k},@function
{k}:
{a.text()}.section .rodata,"a"
.p2align 6
.amdhsa_kernel {k}
  .amdhsa_next_free_vgpr 512
  .amdhsa_next_free_sgpr 102
  .amdhsa_accum_offset 256
  .amdhsa_group_segment_fixed_size 0
  .amdhsa_kernarg_size 120
  .amdhsa_user_sgpr_count 2
  .amdhsa_user_sgpr_kernarg_segment_ptr 1
  .amdhsa_system_sgpr_workgroup_id_x 1
.end_amdhsa_kernel
"""

if __name__ == "__main__":
    opt = {}
    out = "cdna_kernels/%s.s" % NAME
    for arg in sys.argv[1:]:
        k, _, v = arg.partition("=")
        if k == "out": out = v
        elif k in ("stamps", "drop", "xp"): opt[k] = v.split(",")
        else: opt[k] = int(v, 0) if v else 1
    open(out, "w").write(build(opt))
    print("wrote", out)
```

```python
from asmlib2 import *
import gen as G

vLin, vPub, vT, vMem0, vIdx, vQw, vOr, vPst = ["v%d" % i for i in range(8)]
vQr, vOw, vInf, vJunk, vKa, vQq = "v8", "v9", "v20", "v21", "v22", "v23"
vW, vKp = "v8", "v9"
FB, SEL, ONES, KV = 10, 12, 16, 60
MEMA, ACQ, ACK = 24, 56, 64
LS = MEMA + 16
ACV, QBUF = 72, [88, 96, 104, 112, 120]
QS = 1280
L_MX, L_QK, L_AW, L_W = 0, 8192, 13312, 29696
L_OB = L_MX
SM = "v_smfmac_f32_16x16x64_bf16"
MF = "v_mfma_f32_16x16x32_bf16"
MF16 = "v_mfma_f32_16x16x16_bf16"

def zero(a, lo, hi, val="0"):
    for r in range(lo, hi, 2): a(f"v_mov_b64 {vr(r, 2)}, {val}")
def busy(a, n):
    for _ in range(n): a(f"v_mov_b32 {vT}, 0\n s_nop 2")
def wq_half(j, h): return f"ds_read_b128 {vr(QBUF[j % 5] + 4*h)}, {vW} offset:{G.WSTR + j*2048 + 1024*h}"
KX, VX = 72, 104
NK = 224
def kx_load(f, dst): return f"buffer_load_dwordx4 {dst}, {vLin}, {G.WS}, {('s52', 's87')[f // 4]} offen offset:{(f % 4)*1024} sc1"
def vx_load(f): return f"buffer_load_dwordx4 {vr(VX + 4*f)}, {vLin}, {G.WS}, s57 offen offset:{f*1024} sc1"
def addr_prep(a):
    for u in range(1, 4): a(f"v_add_u32 v{LS + 4*u}, s{80+u}, {vLin}")

def next_seg(a, P):
    a(f"""
    v_readfirstlane_b32 s84, v{FB}
    v_readfirstlane_b32 s85, v{FB+1}
    s_mov_b32 s57, s56
    s_add_u32 s90, s6, 2
    s_cmp_lt_u32 s90, 64
    s_cselect_b32 s7, 0x80000, 0
    s_add_u32 s52, s52, s7
    s_min_u32 s90, s90, 63
    s_lshr_b32 s91, s90, 1
    s_bitcmp1_b32 s90, 0
    s_cselect_b32 s7, s85, s84
    s_cmp_gt_u32 s7, s91
    s_cbranch_scc0 {P}_fbwait
    {P}_fbok:
    s_add_u32 s87, s52, 0x1000
    s_add_u32 s56, s52, s95
    s_lshl_b32 s94, s3, 13
    s_add_u32 s94, s94, s52
    """)

def ring_next(a):
    a(f"""
    s_mov_b32 s51, s48
    s_and_b32 s7, s6, 3
    s_lshl_b32 s48, s7, 13
    s_add_u32 s48, s48, {G.MEMB}
    s_lshr_b32 s97, s7, 1
    s_sub_u32 s98, s97, 1
    s_mov_b32 s99, s98
    s_and_b32 s7, s7, 1
    s_lshl_b32 s7, s7, 18
    s_add_u32 s45, s7, {G.PART}
    s_add_u32 s46, s45, 0x1000
    s_add_u32 s47, s44, s7
    """)

def fb_wait(a, P):
    a(f"{P}_fbwait:")
    a("s_and_b32 s92, s90, 1\n s_lshl_b32 s92, s92, 2\n s_add_u32 s92, s92, s55\n s_add_u32 s93, s91, 1")
    G.wait_scalar(a, G.WS, "s92", "s93", "s7", vT, 1)
    a(f"s_branch {P}_fbok")

def startup(a, opt):
    WS, DBG, WSTR = G.WS, G.DBG, G.WSTR
    a("L_chain:")
    G.srd(a, 20, G.P_MEM0, 8192); G.srd(a, 24, G.P_WQ, 0x400000); G.srd(a, 28, G.P_WK, 0x400000)
    G.srd(a, 32, G.P_WV, 0x400000); G.srd(a, 36, G.P_WO, 0x400000)
    G.make_sel(a, SEL, 20)
    a(f"""
    v_mov_b32 v22, v0
    v_lshlrev_b32 v0, 4, v0
    v_and_b32 v24, 1, v2
    v_lshrrev_b32 v25, 2, v2
    v_and_b32 v26, 3, v2
    v_lshrrev_b32 v28, 1, v2
    v_and_b32 v29, 1, v1
    v_lshrrev_b32 v23, 1, v1
    ; weight voffsets: rows 128w + 32(g/2) + 8(g%2), column bytes 256h + 16n
    v_lshlrev_b32 v27, 18, v23
    v_lshl_add_u32 v27, v29, 16, v27
    v_lshl_add_u32 v27, v2, 4, v27
    s_lshl_b32 s90, s4, 8
    s_lshl_b32 s91, s3, 20
    s_add_u32 s90, s90, s91
    v_add_u32 v30, s90, v27
    v_add_u32 v31, 8192, v30
    ; LDS scatter bases. q,k (v16): region swap(n/4), slot (w - n/4)%4 ; v (v17): region n/4, slot (w - 2 - n/8)%4
    v_lshlrev_b32 v18, 8, v1
    v_lshl_add_u32 v18, v26, 6, v18
    v_add_u32 v18, {L_W}, v18
    s_mov_b32 s90, {WSTR}
    v_lshrrev_b32 v27, 1, v25
    v_and_b32 v19, 1, v25
    v_lshl_add_u32 v19, v19, 1, v27
    v_mul_lo_u32 v16, v19, s90
    v_sub_u32 v19, s3, v25
    v_and_b32 v19, 3, v19
    v_lshl_add_u32 v16, v19, 12, v16
    v_add_u32 v16, v16, v18
    v_mul_lo_u32 v17, v25, s90
    v_sub_u32 v19, s3, v27
    v_add_u32 v19, 2, v19
    v_and_b32 v19, 3, v19
    v_lshl_add_u32 v17, v19, 12, v17
    v_add_u32 v17, v17, v18
    ; v18 = own pair of regions (2(w%2)), v19 = own q/k region
    s_and_b32 s91, s3, 1
    s_mul_i32 s91, s91, {2*WSTR}
    s_add_u32 s91, s91, {L_W}
    v_add_u32 v18, s91, {vLin}
    s_lshr_b32 s7, s3, 1
    s_mul_i32 s7, s7, {WSTR}
    v_add_u32 v19, s7, v18
    ; Wo voffset (v11): rows 16(g/2)+4(g%2), column bytes 256w + 16n, head base
    v_lshlrev_b32 v27, 14, v23
    v_lshl_add_u32 v27, v29, 12, v27
    v_lshl_add_u32 v27, v2, 4, v27
    s_lshl_b32 s90, s4, 17
    s_lshl_b32 s91, s3, 8
    s_add_u32 s90, s90, s91
    v_add_u32 v11, s90, v27
    v_mov_b32 v20, 0x4444
    v_mov_b32 v21, 0xeeee
    v_cmp_eq_u32 vcc, 0, v24
    v_cndmask_b32 {vIdx}, v21, v20, vcc
    s_lshl_b32 s86, s3, 10
    s_add_u32 s90, s86, {L_MX}
    v_add_u32 {vMem0}, s90, {vLin}
    ; q write: QK + w*QS + (n/4)*128 + 2g*16 + (n%4)*4
    v_lshlrev_b32 {vQw}, 7, v25
    v_lshl_add_u32 {vQw}, v1, 5, {vQw}
    v_lshl_add_u32 {vQw}, v26, 2, {vQw}
    s_mul_i32 s90, s3, {QS}
    s_add_u32 s90, s90, {L_QK}
    v_add_u32 {vQw}, s90, {vQw}
    ; v27 = g*128 + (2(n/4) + n%2)*16 ; lanes n%4 < 2 carry keys, the others queries
    v_lshl_add_u32 v27, v25, 1, v24
    v_lshlrev_b32 v27, 4, v27
    v_lshl_add_u32 v27, v1, 7, v27
    v_cmp_gt_u32 vcc, 2, v26
    v_mov_b32 v20, {L_QK}
    v_mov_b32 v21, {L_QK + 640}
    v_cndmask_b32 v20, v20, v21, vcc
    v_add_u32 {vQr}, v20, v27
    s_add_u32 s90, s86, {L_OB}
    v_add_u32 v20, s90, v27
    v_add_u32 v21, 512, v20
    v_cndmask_b32 {vOw}, v20, v21, vcc
    ; o read: OB + (2g + n%2)*128 + (n/2)*16
    v_lshl_add_u32 v27, v1, 1, v24
    v_lshlrev_b32 v27, 7, v27
    v_lshl_add_u32 v27, v28, 4, v27
    v_add_u32 {vOr}, {L_OB}, v27
    ; partial store: (8w + 2(n/4) + g/2)*8192 + (g%2)*2048 + 64h + 16(n%4)
    v_lshl_add_u32 v27, v25, 1, v23
    v_lshlrev_b32 v27, 13, v27
    v_lshl_add_u32 v27, v29, 11, v27
    v_lshl_add_u32 v27, v26, 4, v27
    s_lshl_b32 s90, s3, 16
    s_lshl_b32 s91, s4, 6
    s_add_u32 s90, s90, s91
    v_add_u32 {vPst}, s90, v27
    ; mem0 voffset (v25): (n/2)*1024 + 2*(128w + 32g + 16(n%2))
    v_lshlrev_b32 v25, 10, v28
    v_lshl_add_u32 v25, v1, 6, v25
    v_lshl_add_u32 v25, v24, 5, v25
    s_lshl_b32 s91, s3, 8
    v_add_u32 v25, s91, v25
    ; key image read (v24): QK + 640 + (2(w%2) + g/2)*QS + (lane%32)*16
    s_and_b32 s91, s3, 1
    s_mul_i32 s91, s91, {2*QS}
    s_add_u32 s91, s91, {L_QK + 640}
    v_mul_u32_u24 v24, {QS}, v23
    v_and_b32 v27, 31, v22
    v_lshl_add_u32 v24, v27, 4, v24
    v_add_u32 v24, s91, v24
    ; publish: (w/2)*4096 + h*128 + (w%2)*64 + g*32 + n*8   (lanes g<2, n<4)
    s_lshr_b32 s90, s3, 1
    s_lshl_b32 s90, s90, 12
    s_lshl_b32 s91, s4, 7
    s_add_u32 s90, s90, s91
    s_and_b32 s91, s3, 1
    s_lshl_b32 s91, s91, 6
    s_add_u32 s90, s90, s91
    v_lshlrev_b32 v27, 5, v29
    v_lshl_add_u32 v27, v26, 3, v27
    v_add_u32 {vPub}, s90, v27
    s_mov_b32 s58, 0x000f000f
    s_mov_b32 s59, 0
    s_lshl_b32 s44, s4, 2
    s_add_u32 s44, s44, s3
    s_lshl_b32 s44, s44, 11
    s_add_u32 s44, s44, {G.PART}
    s_lshl_b32 s55, s4, 7
    s_lshl_b32 s54, s3, 2
    s_add_u32 s54, s54, s55
    s_add_u32 s54, s54, {G.FLG_FH}
    s_add_u32 s55, s55, {G.FLG_FB}
    """)
    for u in range(1, 4):
        a(f"s_add_u32 s7, s3, {u}\n s_and_b32 s7, s7, 3\n s_lshl_b32 s7, s7, 10\n s_add_u32 s{80+u}, s7, {L_MX}")
    zero(a, 20, 24, "-1")
    for sl in range(2):
        a(f"s_add_u32 s7, s44, {sl*0x40000}")
        for o in (0, 1024): a(f"buffer_store_dwordx4 v[20:23], {vLin}, {WS}, s7 offen offset:{o} sc1")
    a("s_mov_b64 exec, s[58:59]")
    for sl in range(4):
        a(f"s_mov_b32 s7, {G.MEMB + sl*8192}\n buffer_store_dwordx2 v[20:21], {vPub}, {WS}, s7 offen sc1")
    a("s_mov_b64 exec, -1")
    G.flag_store(a, "s54", "0", "v27")
    def job(srdn, vdst, done):
        return dict(kind='lds', srd=srdn, stride=8192, v0="v30", v1="v31", vdst=vdst,
                    row=lambda u: 64*((u//4) % 2) + 16*(u % 2) + 4*(u//8) + 2*((u//2) % 2),
                    imm=lambda grp, c: (grp//2)*16384 + (c % 2)*2048 + (grp % 2)*1024 + (c//2)*16, done=done)
    def pick(fa, fv, after=None):
        def done():
            lv, le = a.label("PV"), a.label("PE")
            a(f"s_waitcnt lgkmcnt(0)\n s_barrier\n s_cmp_ge_u32 s3, 2\n s_cbranch_scc1 {lv}")
            fa()
            a(f"s_branch {le}\n{lv}:")
            fv()
            a(f"{le}:\n s_waitcnt lgkmcnt(0)\n s_barrier")
            if after: after()
        return done
    def rd(src, dst, off=0):
        return lambda: [a(f"ds_read_b128 {dst(f)}, {src} offset:{off + f*1024}") for f in range(32)]
    nothing = lambda: None
    def wo_group(grp):
        if grp == 2: a(f"buffer_load_dwordx2 v[30:31], off, {WS}, s55 sc1")
        lv, le = a.label("OV"), a.label("OE")
        a(f"s_cmp_ge_u32 s3, 2\n s_cbranch_scc1 {lv}")
        for c in range(6):
            for r in range(4): a(f"v_accvgpr_write_b32 a{128 + (c*2 + grp//2)*8 + (grp % 2)*4 + r}, v{32 + 4*c + r}")
        for c in (6, 7): a(f"ds_write_b128 {vMem0}, {vr(32 + 4*c)} offset:{L_AW + (((c - 6)*2 + grp//2)*2 + grp % 2)*2048}")
        a(f"s_branch {le}\n{lv}:")
        for c in range(8): a(f"ds_write_b128 v18, {vr(32 + 4*c)} offset:{(c*2 + grp//2)*2048 + (grp % 2)*1024}")
        a(f"{le}:")
    def early():
        for hf in range(2):
            for c in range(2):
                a(f"buffer_load_dwordx2 {vr((20, 26)[hf] + 2*c, 2)}, v25, {G.OUT}, 0 offen offset:{8*hf + 16*c}")
        a(f"buffer_load_dword v16, off, {DBG}, 0 offset:{G.D_GO} sc1\n buffer_load_dword v17, off, {DBG}, 0 sc1")
    kd = G.lds_to_regs(a, "v19", lambda f: ar(4*f))
    jobs = [dict(job(G.W2, "v16", kd), first=lambda: G.init_arrive(a, "v27")),
            job(G.W1, "v16", G.lds_to_regs(a, "v19", lambda f: vr(128 + 4*f))),
            job(G.W3, "v17", pick(nothing, rd("v18", lambda f: ar(128 + 4*f)), early)),
            dict(kind='lds', srd=G.W4, stride=1024, v0="v11", row=lambda u: 64*(u//8) + 32*((u//4) % 2) + 8*(u % 2) + 2*((u//2) % 2), group=wo_group)]
    G.load_stream(a, jobs, tmp=64, depth=8, out=32)
    a("s_waitcnt vmcnt(0)")
    G.tl(a, opt, 4, "v32")
    a(f"""
    v_mov_b32 v33, v24
    v_readfirstlane_b32 s7, v16
    v_readfirstlane_b32 s43, v17
    v_mov_b64 {vr(LS, 2)}, v[26:27]
    v_mov_b64 {vr(LS+2, 2)}, v[28:29]
    v_mov_b64 v[24:25], v[20:21]
    v_mov_b64 v[26:27], v[22:23]
    s_cmp_ge_u32 s7, 1
    s_cbranch_scc1 L_chain_up
    """)
    G.wait_go(a, vT, 2)
    G.wait_scalar(a, DBG, 0, 0, "s43", vT, 2)
    a(f"""
    buffer_load_dwordx2 v[30:31], off, {WS}, s55 sc1
    s_waitcnt vmcnt(0)
    L_chain_up:
    v_mov_b64 {vr(FB, 2)}, v[30:31]
    s_lshl_b32 s52, s4, 14
    s_add_u32 s52, s52, {G.KXV - 0x80000}
    s_and_b32 s7, s3, 1
    s_lshl_b32 s95, s7, 12
    s_add_u32 s95, s95, 0x2000
    s_mov_b32 s56, 0
    s_lshl_b32 s53, s4, 12
    s_add_u32 s53, s53, {G.KVM - 0x20000}
    s_lshl_b32 s7, s7, 10
    s_add_u32 s53, s53, s7
    """)
    a(f"""
    s_mov_b32 s50, {G.MEMB}
    s_mov_b32 s80, 0
    s_mov_b64 s[88:89], 0
    s_mov_b32 s48, {G.MEMB + 3*8192}
    s_waitcnt lgkmcnt(0)
    s_mov_b32 s6, -2
    """)
    next_seg(a, "C1")
    for f in range(8): a(kx_load(f, vr(KX + 4*f)))
    a(f"v_lshlrev_b32 v56, 2, {vLin}\n buffer_load_dword v56, v56, {WS}, s56 offen sc1\n s_mov_b32 s6, -1")
    next_seg(a, "C0")
    a("s_waitcnt vmcnt(0)")
    G.tl(a, opt, 2, "v56")
    a("s_mov_b32 s6, 0")
    ring_next(a)
    addr_prep(a)
    if opt.get("prof"):
        for k in range(20, 32): a(f"s_mov_b32 s{k}, 0")
    a("s_cmp_ge_u32 s3, 2\n s_cbranch_scc1 L_vstart")
    for r in range(4): a(f"v_mov_b32 v{ONES+r}, 0x3f803f80")
    zero(a, ACQ, ACQ + 16)
    a(f"v_mov_b32 {vKa}, v33")
    a(f"v_and_b32 {vQq}, 32, {vLin}\n v_mul_u32_u24 {vQq}, 20, {vQq}\n v_add_u32 {vQq}, {vQq}, {vQr}\n v_subrev_u32 {vQq}, 640, {vQq}")
    a(f"v_and_b32 {vInf}, 32, {vLin}\n v_lshlrev_b32 {vInf}, 26, {vInf}\n v_or_b32 {vInf}, 0x7f800000, {vInf}")
    a.fence()
    a("s_cmp_lt_u32 s43, 32\n s_cbranch_scc1 SA_loop\n s_branch FA_loop\nL_vstart:")
    a(f"v_mov_b32 {vW}, v18\n v_mov_b32 {vKp}, v33")
    for j in range(5):
        for h in range(2): a(wq_half(j, h))
    zero(a, ACQ, ACQ + 32)
    a("s_waitcnt lgkmcnt(0)")
    a.fence()
    a("s_cmp_lt_u32 s43, 32\n s_cbranch_scc1 SV_loop\n s_branch FV_loop")
    fb_wait(a, "C0")
    fb_wait(a, "C1")

def loop(a, opt, P, st, A):
    WS = G.WS
    prof = opt.get("prof"); free = opt.get("free")
    cnt = [0]
    sel = opt.get("stamps")
    dflt = ("top", "end", "3", "15", "31", "sc", "pv", "wo", "w9", "h1")
    def stamp(k):
        if prof == 1 and (k in ("top", "end") or str(k) in (sel or dflt)):
            i = cnt[0]; cnt[0] += 1
            assert i < 10
            a(f"s_mem{'real' if opt.get('trace') else ''}time s[{60+2*i}:{61+2*i}]")
    tk = {}
    fill = {}
    def F(i, x, cls=None):
        if cls is None: cls = 1 if (isinstance(x, str) and x.startswith("v_")) else 0
        fill.setdefault(i, []).append((cls, x if callable(x) else (lambda: a(x))))
    def D(i, key, text, cls=0): F(i, lambda: tk.__setitem__(key, a.ds(text)), cls)
    def W(i, key): F(i, lambda: a.wait_ds(tk[key]))
    def Z(i, lo, hi, val="0"):
        for r in range(lo, hi, 2): F(i, f"v_mov_b64 {vr(r, 2)}, {val}")
    def run(i):
        for cls, f in sorted(fill.pop(i, []), key=lambda e: e[0]): f()
    def mem_rd(i, tau): D(i, ("m", tau), f"ds_read_b128 {vr(MEMA + 4*tau)}, v{LS + 4*(tau % 4)} offset:{4096*(tau//4)}")
    nw = opt.get("nw", 0x60)
    val = opt.get("val", 1)
    def bar(i, bit=0):
        if not nw >> bit & 1: W(i, "wr")
        F(i, "s_barrier")
    def add(r): return f"v_add_f32 v{r}, v{r}, v{r+1}"
    def cvt(d, x, y): return f"v_cvt_pk_bf16_f32 v{d}, v{x}, v{y}"
    def smv(tau, t4):
        j = 2*tau + t4 % 2
        def emit():
            if t4 >= 2 and j >= 5: a.wait_ds(tk[("w", j)])
            a(f"{SM} {vr(ACV + 4*t4)}, {vr(MEMA + 4*tau)}, {ar(128 + j*8, 8) if t4 < 2 else vr(QBUF[j % 5], 8)}, {vIdx}")
            if pend:
                jp = pend.pop(); tk[("w", jp)] = a.ds(wq_half(jp, 1))
            if t4 >= 2 and j + 5 < 16:
                a.ds(wq_half(j + 5, 0)); pend.append(j + 5)
        return emit
    pend = []
    a(f"{P}_loop:")
    a.drop = tuple(opt.get("drop", ()))
    stamp("top")
    seq = [(m, tau, T) for tau in range(4) for T in range(2) for m in "qk"]
    ql = opt.get("ql", 1)
    if ql: seq += [(m, tau, T) for m in "qk" for tau in range(4, 8) for T in range(2)]
    else:
        seq += [(m, 4, T) for m in "qk" for T in range(2)]
        seq += [(m, tau, T) for m in "qk" for tau in range(5, 8) for T in range(2)]
    qpos = {2*t + T: i for i, (m, t, T) in enumerate(seq) if m == "q"}
    lc = opt.get("lc", 10); b2 = lc + opt.get("lb", 5)
    assert b2 <= 15 + 1
    lg = opt.get("lg", 2)
    lload = f"buffer_load_dwordx4 {vr(LS)}, {vLin}, {WS}, s50 offen sc1"
    F(lg, "s_mov_b64 exec, s[88:89]")
    F(lg, lambda: tk.__setitem__("L", a.vm(lload)))
    F(lg, "s_mov_b64 exec, -1")
    b1 = opt.get("b1", 3)
    bar(b1, 1)
    sp = opt.get("sp", 16)
    for u in range(1, 4): mem_rd(b1, u)
    def M_(i, key, text): F(i, lambda: tk.__setitem__(key, a.vm(text)))
    if A:
        xp = [int(p) for p in opt.get("xp", (3, 3, 3, 3, 5, 6, 7, 8, 9, 11, 12, 13, 14))]
        ta = opt.get("ta", 0)
        F(1, f"v_lshlrev_b32 {vJunk}, {3 if ta else 2}, {vLin}")
        if not opt.get("nopf"):
            for f in range(4): M_(xp[f], "vx", vx_load(f))
            F(xp[4], f"buffer_load_dword {vJunk}, {vJunk}, {WS}, {'s94' if ta else 's56'} offen sc1")
            for f in range(8): F(xp[5 + f], kx_load(f, ar(NK + 4*f)))
        F(sp, f"buffer_load_dwordx2 {vr(FB, 2)}, off, {WS}, s55 sc1")
        kvst = [f"buffer_store_dwordx4 {vr(120 + 4*k)}, {vLin}, {WS}, s53 offen offset:{2048*k} sc1" for k in range(2)]
        flst = f"s_mov_b64 exec, 1\n buffer_store_dword {vT}, off, {WS}, s54 sc1\n s_mov_b64 exec, -1"
        ks = opt.get("ks", 0)
        assert sp > lc + 3
        F(sp + 1, f"v_mov_b32 {vT}, s80")
        if not ks:
            for k in range(2): F(sp + 4 + k*opt.get("k2", 1), kvst[k])
            F(sp + 2, flst)
    else:
        nv0, nv1, nv2 = opt.get("nv0", 4), opt.get("nv1", 0), opt.get("nv2", 2)
        vs = [(tau, t4) for tau in range(8) for t4 in (2, 0, 3, 1)]
        for k in range(nv0): F(3, smv(*vs.pop(0)))
        for k in range(nv1): F(lc, smv(*vs.pop(0)))
        for k in range(nv2): F(qpos[10] - 1, smv(*vs.pop(0)))
        for k in range(opt.get("nv3", 0)): F(opt.get("q3", 31), smv(*vs.pop(0)))
    W(3, ("m", 1)); W(7, ("m", 3))
    F(lc, lambda: a.wait_vm(tk["L"]))
    D(lc, "wr", f"ds_write_b128 {vMem0}, {vr(LS)} offset:4096")
    F(lc+1, f"v_max3_u32 {vT}, v{LS}, v{LS+1}, v{LS+2}")
    F(lc+2, f"v_max_u32 {vT}, {vT}, v{LS+3}")
    F(lc+3, f"v_cmp_eq_u32 vcc, -1, {'v0' if free else vT}")
    assert lc + 3 < b2 or free
    F(min(b2, 15), f"s_cbranch_vccnz {P}_lretry\n{P}_lok:")
    bar(b2, 2); mem_rd(b2, 5); mem_rd(b2+1, 6); mem_rd(b2+1, 7)
    if A and val:
        F(lc + 4, "v_mov_b64 v[24:25], -1"); F(b2 + 1, "v_mov_b64 v[26:27], -1")
        pp = opt.get("pp", 22)
        D(pp, "_", f"ds_write_b128 {vMem0}, v[24:27]"); D(pp + opt.get("pq", 1), "_", f"ds_write_b128 {vMem0}, v[24:27] offset:2048")
    W(qpos[10] - 1, ("m", 5)); W(qpos[12] - 1, ("m", 7))
    F(22, "s_add_u32 s49, s48, s86\n s_add_u32 s50, s49, 0x1000")
    F(21, "s_mov_b64 s[88:89], -1")
    qe = qpos[15]
    F(qe+1, add(56)); F(qe+1, add(58)); F(qe+2, add(60)); F(qe+2, add(62))
    F(qe+2, cvt(56, 56, 60)); F(qe+2, cvt(57, 58, 62))
    D(qe+3, "wr", f"ds_write2_b32 {vQw}, v56, v57 offset0:0 offset1:4")
    q3 = opt.get("q3", 31)
    bar(q3, 3)
    if A:
        for t in range(4): D(min(q3 + (t + 1)//2, 31), ("q", t), f"ds_read_b128 {vr(24 + 4*t)}, {vQq} offset:{t*QS}")
    tk["wr"] = a.ds(f"ds_write_b128 {vMem0}, {vr(MEMA)}")
    for i, (m, tau, T) in enumerate(seq):
        j = 2*tau + T
        B = vr(128 + j*8, 8) if m == "q" else ar(j*8, 8)
        a(f"{SM} {vr((ACQ if m == 'q' else ACK) + 4*T)}, {vr(MEMA + 4*tau)}, {B}, {vIdx}")
        run(i)
        stamp(i)
    assert not fill, fill.keys()
    kfold = [add(64), add(66), add(68), add(70), cvt(64, 64, 68), cvt(65, 66, 70)]
    kwr = f"ds_write2_b32 {vQw}, v64, v65 offset0:160 offset1:164"
    inbox = f"buffer_load_dwordx4 v[28:31], {vLin}, {WS}, s47 offen sc1\n buffer_load_dwordx4 v[32:35], {vLin}, {WS}, s47 offen offset:1024 sc1"
    if A:
        QB, KB, X0, X1, M, t0 = 24, 40, 56, 60, 120, 124
        PX, PM, PXB, PMB, VM, O, Lr, PKO = 64, 68, 48, 52, 24, 28, 44, 120
        WA, OA, PK = [56, 60, 28, 32, 24, 36, 40, 44], 120, [64, 68]
        xl = []
        tq = [tk[("q", t)] for t in range(4)]
        kf = opt.get("kf", 1)
        if kf:
            for x in kfold: a(x)
            tk["wr"] = a.ds(kwr)
        else:
            a(kfold[0]); a(kfold[1])
            for x in kfold[2:]: F(0, x)
            D(1, "wr", kwr)
        b4 = opt.get("b4", 4)
        bar(b4, 4)
        for t in range(4): D(min(b4 + (t + 1)//2, 7), ("k", t), f"ds_read_b128 {vr(KB + 4*t)}, {vQr} offset:{t*QS}")
        if ks:
            F(1, kvst[1]); F(3, kvst[0]); F(7, flst)
        F(2, f"v_mov_b32 v{PM+1}, 0\n v_mov_b32 v{PM+2}, 0")
        F(6, f"v_max3_f32 v{t0}, v{X0}, v{X0+1}, v{X0+2}")
        for p in (7, 8, 9, 10, 11, 11)[:opt.get("x1", 6)]:
            if xl: F(p, xl.pop(0))
        awr = [f"ds_read_b128 {vr(KX + 4*k)}, {vMem0} offset:{L_AW + k*2048}" for k in range(8)]
        for p in (8, 9, 10, 11): F(p, awr.pop(0))
        F(10, f"v_max3_f32 v{t0+1}, v{X0+3}, v{X1}, v{X1+1}\n v_max3_f32 v{t0}, v{t0}, v{X1+2}, v{X1+3}")
        for t in range(1, 4): F(t - 1, lambda t=t: a.wait_ds(tq[t]))
        for t in range(4): W(7 + t, ("k", t))
        for n in range(12):
            t = n % 4
            if n == 0: a.wait_ds(tq[t])
            d, Ao, Bo = ((X0, KX + 4*t, QB + 4*t), (X1, KX + 16 + 4*t, QB + 4*t), (M, KB + 4*t, QB + 4*t))[n // 4]
            a(f"{MF} {vr(d)}, {vr(Ao)}, {vr(Bo)}, {vr(d) if t else '0'}")
            run(n)
            stamp("s%d" % n)
        stamp("sc")
        a(f"s_cmp_eq_u32 s6, 63\n s_cbranch_scc1 L_chain_end")
        if not opt.get("nopf"): a.wait_vm(tk["vx"])
        a(f"""
        v_max3_f32 v{t0+1}, v{t0+1}, v{M}, v{M+1}
        v_max_f32 v{t0+2}, v{t0}, v{t0+1}
        v_max_f32 v{t0+3}, v{t0}, v{t0+1}
        v_mov_b64 v[36:37], 0
        v_mov_b64 v[38:39], 0
        v_permlane16_swap_b32 v{t0+2}, v{t0+3}
        v_max_f32 v{t0}, v{t0+2}, v{t0+3}
        v_max_f32 v{t0+1}, v{t0+2}, v{t0+3}
        v_mov_b64 v[40:41], 0
        v_mov_b64 v[42:43], 0
        v_permlane32_swap_b32 v{t0}, v{t0+1}
        v_max3_f32 v{t0}, v{t0}, v{t0+1}, {vInf}
        v_mul_f32 v{t0}, s42, v{t0}
        """)
        regs = [X0, X0+1, X0+2, X0+3, X1, X1+1, X1+2, X1+3, M, M+1]
        for r in regs: a(f"v_fma_f32 v{r}, v{r}, s42, -v{t0}")
        for k, r in enumerate(regs[:9]):
            a(f"v_exp_f32 v{r}, v{r}")
            if k >= 2 and k % 2 == 0: a(cvt(PX + k//2 - 1, regs[k-2], regs[k-1]))
        stamp("pv")
        a(f"v_exp_f32 v{M+1}, v{M+1}")
        b5 = opt.get("b5", 2)
        F(b5, "s_barrier")
        D(b5, "vm", f"ds_read_b128 {vr(VM)}, {vMem0} offset:2048")
        def sw(d, x): return f"v_mov_b32_dpp v{d}, v{x} quad_perm:[2,3,0,1] row_mask:0xf bank_mask:0xf"
        F(0, sw(PXB, PX)); F(0, sw(PXB+1, PX+1)); F(1, sw(PXB+2, PX+2)); F(1, sw(PXB+3, PX+3))
        F(2, cvt(PM, M, M+1)); F(2, cvt(PM+3, M, M+1))
        F(3, f"v_mov_b32 v{PMB+1}, 0"); F(3, f"v_mov_b32 v{PMB+2}, 0")
        F(4, sw(PMB, PM)); F(4, sw(PMB+3, PM))
        if val:
            F(5, f"v_max3_u32 {vT}, v{VM}, v{VM+1}, v{VM+2}"); F(5, f"v_max_u32 {vT}, {vT}, v{VM+3}")
            F(6, f"v_cmp_eq_u32 vcc, -1, {vT}"); Z(6, 56, 58); Z(7, 58, 60); Z(8, 60, 62)
            F(9, f"s_cbranch_vccnz {P}_vredo\n{P}_vok:")
        else:
            Z(5, 56, 60); Z(6, 60, 62)
        for p in (0, 1, 6, 7): F(p, awr.pop(0))
        W(5, "vm")
        pv = [f"{MF} {vr(Lr)}, {vr(ONES)}, {vr(PX)}, 0"]
        pv += [f"{MF} {vr(O + 4*(f % 2))}, {vr(VX + 4*f)}, {vr((PX, PXB)[f//2])}, {vr(O + 4*(f % 2)) if f//2 else '0'}" for f in range(4)]
        pv += [f"{MF16} {vr(Lr)}, {vr(ONES, 2)}, {vr(PM, 2)}, {vr(Lr)}"]
        pv += [f"{MF16} {vr(O + 4*(f % 2))}, {vr(VM + 2*(f//2), 2)}, {vr((PM, PMB)[f//2] + 2*(f % 2), 2)}, {vr(O + 4*(f % 2))}" for f in (0, 2, 1, 3)]
        F(7, f"v_add_f32_dpp v{t0}, v{Lr}, v{Lr} quad_perm:[2,3,0,1] row_mask:0xf bank_mask:0xf")
        F(8, f"v_rcp_f32 v{t0}, v{t0}")
        for r in range(4): F(9, f"v_mul_f32 v{O+r}, v{O+r}, v{t0}")
        Z(9, 44, 48); Z(9, 62, 64)
        for n, x in enumerate(pv):
            a(x); run(n)
        stamp("p1")
        for r in (4, 6): a(f"v_pk_mul_f32 {vr(O + r, 2)}, {vr(O + r, 2)}, {vr(t0, 2)} op_sel_hi:[1,0]")
        for i in range(4): a(cvt(PKO + i, O + i, O + 4 + i))
        if opt.get("tst"): a("s_barrier\n s_nop 15\n s_nop 15\n s_nop 15")
        a(f"ds_write_b128 {vOw}, {vr(PKO)}")
        if not nw >> 6 & 1: zero(a, 24, 36)
        stamp("p2")
        wo_reg = lambda j: ar(128 + j*8, 8) if j < 12 else vr(KX + (j - 12)*8, 8)
    else:
        WB = [88, 96, 104, 112, 120, 16, 56, 64]
        WA, OA, PK = [28, 32, 36, 40, 44, 48, 52, 72], 76, [84, 24]
        def woh(j, h): return f"ds_read_b128 {vr(WB[j % 8] + 4*h)}, {vW} offset:{j*2048 + 1024*h}"
        nv = len(vs); sh = 32 - nv
        F(0, kfold[0]); F(0, kfold[1])
        for x in kfold[2:]: F(1, x)
        D(2, "wr", kwr)
        v4 = opt.get("v4", 8)
        bar(v4, 4)
        wl = [(k // 2, k % 2) for k in range(16)]
        if opt.get("pw", 1):
            pos = {2*t + t4 % 2: n for n, (t, t4) in enumerate(vs) if t4 >= 2}
            free_at = {5: 0, 6: 3, 1: pos[11], 2: pos[12], 3: pos[13], 4: pos[14]}
            slot = pos[10] + 2
            for jj in (5, 6, 1, 2, 3, 4):
                for hh in range(2):
                    slot = max(slot, free_at[jj])
                    if slot < nv - 1:
                        D(slot, "_", woh(jj, hh)); wl.remove((jj, hh)); slot += 1
        zl = [(r, "0") for r in range(28, 52, 2)]
        for i in range(3, nv - 2):
            if opt.get("zv", 0) and zl and i + sh > (zl[0][0] - MEMA) // 4 * 4 + 3:
                r, val = zl.pop(0); F(i, f"v_mov_b64 {vr(r, 2)}, {val}")
        F(nv-2, add(80)); F(nv-2, add(82)); F(nv-1, add(72)); F(nv-1, add(74)); F(nv-1, cvt(KV+6, 80, 82)); F(nv-1, cvt(KV+4, 72, 74))
        for n, (tau, t4) in enumerate(vs):
            if n + 1 < nv and vs[n+1][1] >= 2 and 2*vs[n+1][0] + vs[n+1][1] % 2 >= 5: W(n, ("w", 2*vs[n+1][0] + vs[n+1][1] % 2))
            smv(tau, t4)(); run(n); stamp("v%d" % n)
        assert not fill and not pend
        stamp("sc")
        for x in (add(84), add(86), cvt(KV+7, 84, 86), add(76), add(78), cvt(KV+5, 76, 78)): a(x)
        if opt.get("tst"): a(f"s_cmp_eq_u32 s6, 63\n s_cbranch_scc1 L_chain_done\n s_barrier\n s_nop 15\n s_nop 15\n s_nop 15")
        tk["wr"] = a.ds(f"ds_write_b128 {vMem0}, {vr(KV+4)}")
        a(f"s_cmp_eq_u32 s6, 63\n s_cbranch_scc1 L_chain_done")
        if nw >> 5 & 1 and not opt.get("tst"): a("s_barrier")
        zero(a, 52, 56); zero(a, 72, 76)
        for r, val in zl[:6]: a(f"v_mov_b64 {vr(r, 2)}, {val}")
        if not nw >> 5 & 1:
            a.wait_ds(tk["wr"]); a("s_barrier")
        stamp("pv")
        for r, val in zl[6:]: a(f"v_mov_b64 {vr(r, 2)}, {val}")
        for x in wl: a(woh(*x))
        busy(a, opt.get("bv", 0))
        wo_reg = lambda j: vr(WB[j % 8], 8)
    a("s_nop 0" if (A and opt.get("tst")) else "s_barrier" if (A and nw >> 6 & 1) else "s_waitcnt lgkmcnt(0)\n s_barrier")
    to = [a.ds(f"ds_read_b128 {vr(OA + 4*t)}, {vOr} offset:{t*1024}") for t in range(2)]
    if A and nw >> 6 & 1: zero(a, 24, 36)
    busy(a, opt.get("bo2", 0))
    stamp("wo")
    def wf(T, h): return add(WA[T] + 2*h)
    def wpk(T, h): return cvt(PK[T//4] + (T % 4)//2 + 2*h, WA[T] + 2*h, WA[T+1] + 2*h)
    def tag(T, h):
        r = PK[T//4] + (T % 4)//2 + 2*h
        return f"v_and_or_b32 v{r}, v{r}, -2, s97"
    def wst(hf): return f"buffer_store_dwordx4 {vr(PK[hf])}, {vPst}, {WS}, s{45+hf} offen {st}"
    post = {3: [wf(0, 0)], 4: [wf(0, 1)], 5: [wf(1, 0), wf(1, 1)], 6: [wpk(0, 0), wpk(0, 1)],
            7: [wf(2, 0), wf(2, 1)], 8: [tag(0, 0), tag(0, 1)], 9: [wf(3, 0), wf(3, 1), wpk(2, 0), wpk(2, 1), tag(2, 0), tag(2, 1)],
            11: [wf(4, 0)], 12: [wf(4, 1)], 13: [wf(5, 0), wf(5, 1)], 14: [wpk(4, 0), wpk(4, 1)], 15: [wf(6, 0), wf(6, 1), tag(4, 0), tag(4, 1)]}
    for j, xs in post.items():
        for x in xs: F(j, x)
    F(9, wst(0), 2)
    if val:
        F(5, f"v_cmp_u_f32 vcc, v{WA[0]}, v{WA[0]+2}")
        F(8, f"s_cbranch_vccnz {P}_oredo\n{P}_ook:")
    F(0, lambda: a.wait_ds(to[1]))
    if not A:
        for j in range(8, 16):
            D(j - 8 + (j - 8)//2, "_", woh(j, 0)); D(j - 8 + (j - 7)//2, ("o", j), woh(j, 1)); W(j - 1, ("o", j))
    a.wait_ds(to[0])
    a(f"{P}_wo:")
    for j in range(16):
        T, t = j // 2, j % 2
        a(f"{SM} {vr(WA[T])}, {vr(OA + 4*t)}, {wo_reg(j)}, {vIdx}")
        run(j)
        stamp("w%d" % j)
    if A and opt.get("ein"): a(inbox)
    for x in (wf(7, 0), wf(7, 1), wpk(6, 0), wpk(6, 1), tag(6, 0), tag(6, 1), wst(1)): a(x)
    a.drop = ()
    stamp("h1")
    c1, c2 = opt.get("c1", 2) if A else opt.get("c1v", 3), opt.get("c2", 2) if A else opt.get("c2v", 2)
    RD = LS
    nsp = opt.get("nsp", 0) >> (0 if A else 1) & 1
    work = [lambda: (zero(a, 28, 36, "s[98:99]"), zero(a, 36, 38, "-1"))]
    if A:
        work += [lambda: (a(f"ds_read_b128 v[120:123], {vKa}\n ds_read_b128 v[124:127], {vMem0} offset:2048"), zero(a, 24, 28, "-1")),
                 lambda: zero(a, ACQ, ACQ + 8), lambda: zero(a, ACK, ACK + 8)]
        work += [lambda: busy(a, 2)] * 4
    else:
        for j in range(5): work.append(lambda j=j: (a(wq_half(j, 0)), a(wq_half(j, 1)), zero(a, ACQ + 4*j, ACQ + 4*j + 4)))
        work += [lambda: (zero(a, 24, 28, "-1"), zero(a, ACQ + 20, ACQ + 24)), lambda: zero(a, ACQ + 24, ACQ + 32)]
    pm = opt.get("pe", 0x90) if A else opt.get("pl", 0x100)
    for k in range(9):
        if k == 8: busy(a, opt.get("de", 0) if A else opt.get("dl", 8))
        if pm >> k & 1: a(inbox)
        if k < 8: work[k]()
    if A: a("s_waitcnt lgkmcnt(0)")
    a(f"s_mov_b32 s96, 0\n s_cmp_lg_u32 s97, 0\n s_cbranch_scc1 {P}_r11")
    for ph in range(2):
        a(f"{P}_r1{ph}:")
        if free == 1: a("s_waitcnt vmcnt(0)")
        op3 = ("v_or3_b32 {0}, {1}, {2}, {3}", "v_bitop3_b32 {0}, {1}, {2}, {3} bitop3:0x80")[ph]
        for k in range(c1):
            a(op3.format("v45", "v28", "v29", "v30")); a(op3.format("v46", "v31", "v32", "v33")); a(op3.format("v45", "v45", "v34", "v35"))
            a(f"""
            v_bitop3_b32 v45, v45, v46, 1 bitop3:{('0xa8', '0x80')[ph]}
            v_cmp_ne_u32 vcc, {'v45' if free else ph}, v45
            """)
            if not nsp: a(f"{MF} {vr(RD)}, {vr(SEL)}, v[28:31], 0\n {MF} {vr(RD)}, {vr(SEL)}, v[32:35], {vr(RD)}")
            a(f"s_cbranch_vccz {P}_r1ok")
        a(f"s_mov_b64 exec, vcc\n {inbox}\n s_mov_b64 exec, -1")
        if prof: a("s_add_u32 s30, s30, 1")
        G.spin_tail(a, f"{P}_r1{ph}")
    a(f"{P}_r1ok:")
    stamp("r1")
    gath = f"buffer_load_dwordx4 v[24:27], {vLin}, {WS}, s49 offen sc1"
    if nsp: a(f"{MF} {vr(RD)}, {vr(SEL)}, v[28:31], 0\n {MF} {vr(RD)}, {vr(SEL)}, v[32:35], {vr(RD)}")
    else: a("s_nop 5")
    for k in (4, 8):
        for r in range(RD, RD + 4): a(f"v_add_f32_dpp v{r}, v{r}, v{r} row_ror:{k} row_mask:0xf bank_mask:0xf")
    a(cvt(RD, RD, RD+1)); a(cvt(RD+1, RD+2, RD+3))
    if not A and opt.get("gx"): a(gath)
    a(f"s_mov_b64 exec, s[58:59]\n buffer_store_dwordx2 {vr(RD, 2)}, {vPub}, {WS}, s48 offen {st}")
    stamp("h2")
    a(f"buffer_store_dwordx2 v[36:37], {vPub}, {WS}, s51 offen {st}\n s_mov_b64 exec, -1")
    if A:
        a("s_waitcnt vmcnt(10)")
        for r in range(16): a(f"v_accvgpr_read_b32 v{KX + r}, a{NK + r}")
    busy(a, opt.get("ge", 0) if A else opt.get("gl", 0))
    a(gath)
    addr_prep(a)
    if A:
        for r in range(16, 32): a(f"v_accvgpr_read_b32 v{KX + r}, a{NK + r}")
        next_seg(a, P)
    else: busy(a, opt.get("gv", 5))
    if opt.get("g2", 3) >> (0 if A else 1) & 1: a(gath)
    a(f"s_mov_b32 s80, s6\n s_add_u32 s6, s6, 1\n s_add_u32 s53, s53, 0x20000\n s_mov_b32 s96, 0\n v_mov_b32 {vT}, 0")
    ring_next(a)
    a("s_waitcnt lgkmcnt(0)")
    stamp("g1")
    a(f"{P}_r2:")
    if free == 1: a("s_waitcnt vmcnt(0)")
    for k in range(c2):
        a(f"v_max3_u32 {vT}, v24, v25, v26\n v_max_u32 {vT}, {vT}, v27\n v_cmp_eq_u32 vcc, -1, {'v0' if free else vT}")
        a(f"s_cbranch_vccz {P}_prof" if prof == 1 else f"s_cbranch_vccz {P}_loop")
    a(f"s_mov_b64 exec, vcc\n {gath}\n s_mov_b64 exec, -1")
    if prof: a("s_add_u32 s31, s31, 1")
    G.spin_tail(a, f"{P}_r2")
    if prof == 1:
        a(f"{P}_prof:")
        stamp("end")
        a("s_waitcnt lgkmcnt(0)")
        if opt.get("trace"):
            assert cnt[0] <= 8
            a("s_lshl_b32 s7, s3, 6\n s_add_u32 s7, s7, s6\n s_lshl_b32 s7, s7, 5\n v_lshrrev_b32 v46, 2, v0\n v_add_u32 v46, s7, v46")
            for k in range(cnt[0]): a(f"v_writelane_b32 v45, s{60+2*k}, {k}")
            a(f"s_mov_b64 exec, 0xff\n ds_write_b32 v46, v45\n s_mov_b64 exec, -1\n s_branch {P}_loop")
        a(f"s_cmp_lt_u32 s6, 5\n s_cbranch_scc1 {P}_loop")
        for k in range(cnt[0] - 1): a(f"s_sub_u32 s7, s{62+2*k}, s{60+2*k}\n s_add_u32 s{20+k}, s{20+k}, s7")
        a(f"s_branch {P}_loop")
    a(f"{P}_lretry:")
    a(f"s_mov_b64 exec, vcc\n buffer_load_dwordx4 {vr(LS)}, {vLin}, {WS}, s50 offen sc1\n s_mov_b64 exec, -1\n s_waitcnt vmcnt(0)")
    if prof: a("s_add_u32 s29, s29, 1")
    a(f"v_max3_u32 {vT}, v{LS}, v{LS+1}, v{LS+2}\n v_max_u32 {vT}, {vT}, v{LS+3}\n v_cmp_eq_u32 vcc, -1, {vT}\n ds_write_b128 {vMem0}, {vr(LS)} offset:4096\n s_waitcnt lgkmcnt(0)\n s_cbranch_vccz {P}_lok")
    G.spin_tail(a, f"{P}_lretry")
    if A: fb_wait(a, P)
    if val:
        def missing(b, n):
            a(f"v_max3_u32 {vT}, v{b}, v{b+1}, v{b+2}")
            for r in range(b + 3, b + n): a(f"v_max_u32 {vT}, {vT}, v{r}")
            a(f"v_cmp_eq_u32 vcc, -1, {vT}")
        if A:
            a(f"{P}_vredo:\n s_mov_b32 s96, 0\n{P}_vr1:\n ds_read_b128 {vr(VM)}, {vMem0} offset:2048\n s_waitcnt lgkmcnt(0)")
            missing(VM, 4)
            a(f"s_cbranch_vccz {P}_vr2")
            G.spin_tail(a, f"{P}_vr1")
            a(f"{P}_vr2:")
            if prof: a("s_add_u32 s28, s28, 64")
            for x in pv[1:5] + pv[6:]: a(x)
            a.fence()
            a(f"s_branch {P}_vok")
        a(f"{P}_oredo:")
        missing(OA, 8)
        a(f"s_cbranch_vccz {P}_ook\n s_mov_b32 s96, 0\n{P}_or1:")
        for t in range(2): a(f"ds_read_b128 {vr(OA + 4*t)}, {vOr} offset:{t*1024}")
        a("s_waitcnt lgkmcnt(0)")
        missing(OA, 8)
        a(f"s_cbranch_vccz {P}_or2")
        G.spin_tail(a, f"{P}_or1")
        a(f"{P}_or2:")
        if prof: a("s_add_u32 s27, s27, 64")
        for T in range(5): zero(a, WA[T], WA[T] + 4)
        if not A:
            for k in range(16): a(woh(k // 2, k % 2))
            a("s_waitcnt lgkmcnt(0)")
        a.fence()
        a(f"s_branch {P}_wo")

def role_chain(a, opt):
    startup(a, opt)
    loop(a, opt, "FA", "", True)
    loop(a, opt, "FV", "", False)
    loop(a, opt, "SA", "sc1", True)
    loop(a, opt, "SV", "sc1", False)
    a(f"L_chain_done:\n ds_read_b128 {vr(KV)}, {vKp}\n s_add_u32 s53, s53, 0x20000\n s_waitcnt lgkmcnt(0)")
    for k in range(2): a(f"buffer_store_dwordx4 {vr(KV + 4*k)}, {vLin}, {G.WS}, s53 offen offset:{2048*k} sc1")
    a("L_chain_end:\n s_waitcnt vmcnt(0)")
    G.tl(a, opt, 3)
    if opt.get("trace"):
        a(f"s_lshl_b32 s7, s3, 11\n v_add_u32 v24, s7, v0\n ds_read_b128 v[28:31], v24\n ds_read_b128 v[32:35], v24 offset:1024\n s_waitcnt lgkmcnt(0)")
        a(f"s_lshl_b32 s7, s4, 2\n s_add_u32 s7, s7, s3\n s_lshl_b32 s7, s7, 11\n s_add_u32 s7, s7, {G.PROF + 0x40000}")
        a(f"buffer_store_dwordx4 v[28:31], v0, {G.WS}, s7 offen sc1\n buffer_store_dwordx4 v[32:35], v0, {G.WS}, s7 offen offset:1024 sc1")
    if opt.get("prof"):
        a(f"s_lshl_b32 s7, s4, 2\n s_add_u32 s7, s7, s3\n s_lshl_b32 s7, s7, 6\n s_add_u32 s7, s7, {G.PROF}\n s_mov_b64 exec, 1")
        for k in range(12):
            a(f"v_mov_b32 v24, s{20+k}\n buffer_store_dword v24, off, {G.WS}, s7 offset:{4*k} sc1")
    a("s_waitcnt vmcnt(0)\n s_endpgm")
```

```python
import sys, math, struct
from asmlib2 import *

NAME = "gated_mix__memory_aug_recurrent_mem_tr__glu_gated_reglu__prompt"

FLG_FB  = 0x0000
FLG_FH  = 0x1000
FLG_FC  = 0x2000
FLG_FF  = 0x2800
MEMB = 0x10000
SCR  = 0x50000
PART = 0x100000
KVM  = 0x300000
KXV  = 0x1000000
CP   = 0x3000000
FP   = 0x7000000
PROF = 0x9000000
QXG  = 0xA000000
D_CH, D_INIT, D_WK, D_ERR, D_GO = 0, 64, 128, 192, 224
WSTR = 32784
L_KX, L_MX, L_QK, L_OB, L_KV, L_ROLE = 131200, 139392, 147584, 152704, 156800, 161792
XROW = 1040; XBUF = 32 * XROW
L_OX = 2 * XBUF; L_KM = L_OX + 8192; L_VM = L_KM + 2048
LDS_BYTES = 163840
SPIN = 1 << 17

X, WS, DBG, OUT, W1, W2, W3, W4 = ["s[%d:%d]" % (b, b + 3) for b in (8, 12, 16, 20, 24, 28, 32, 36)]
P_X, P_MEM0, P_WQ, P_WK, P_WV, P_WO, P_WG, P_WU, P_WD, P_GW, P_OUT, P_DBG, P_WS = 60, 62, 64, 66, 68, 70, 76, 78, 80, 82, 84, 86, 88

ROLES = (("B", 32, 96), ("C", 96, 160), ("F", 160, 188), ("R", 188, 252))
def f32bits(x): return struct.unpack("<I", struct.pack("<f", x))[0]
CSC = f32bits(128 ** -0.5 * math.log2(math.e))

def srd(a, base, ptr, size):
    a(f"s_mov_b32 s{base}, s{ptr}\n s_mov_b32 s{base+1}, s{ptr+1}\n s_mov_b32 s{base+2}, {size}\n s_mov_b32 s{base+3}, 0x20000")

def spin_tail(a, loop, sleep=0):
    if sleep: a(f"s_sleep {sleep}")
    a(f"s_add_u32 s96, s96, 1\n s_cmp_lt_u32 s96, {SPIN}\n s_cbranch_scc1 {loop}\n s_branch L_bail")

def wait_scalar(a, srdn, soff, need, dst, vt, sleep=1):
    lp = a.label("WS"); ok = a.label("WSOK")
    a(f"s_mov_b32 s96, 0\n{lp}:")
    a(f"buffer_load_dword {vt}, off, {srdn}, {soff} sc1\n s_waitcnt vmcnt(0)\n v_readfirstlane_b32 {dst}, {vt}")
    a(f"s_nop 3\n s_cmp_ge_u32 {dst}, {need}\n s_cbranch_scc1 {ok}")
    spin_tail(a, lp, sleep)
    a(f"{ok}:")

def wait_go(a, vt, sleep):
    a(f"s_mov_b32 s90, {D_GO}")
    wait_scalar(a, DBG, "s90", 1, "s7", vt, sleep)

def wait_lanes(a, vaddr, soff, nl, need, vt, sleep=1):
    lp = a.label("WL"); ok = a.label("WLOK")
    a(f"s_mov_b32 s96, 0\n s_mov_b32 exec_lo, {hex((1 << nl) - 1)}\n s_mov_b32 exec_hi, 0\n{lp}:")
    a(f"buffer_load_dword {vt}, {vaddr}, {WS}, {soff} offen sc1\n s_waitcnt vmcnt(0)\n v_cmp_gt_u32 vcc, {need}, {vt}\n s_cbranch_vccz {ok}")
    spin_tail(a, lp, sleep)
    a(f"{ok}:\n s_mov_b64 exec, -1")

def flag_store(a, soff, sval, vt):
    a(f"v_mov_b32 {vt}, {sval}\n s_mov_b64 exec, 1\n buffer_store_dword {vt}, off, {WS}, {soff} sc1\n s_mov_b64 exec, -1")

TL = PROF + 0x10000
def tl(a, opt, k, vt="v24"):
    if not opt.get("tl"): return
    sk = a.label("TL")
    a(f"s_cmp_lg_u32 s3, 0\n s_cbranch_scc1 {sk}\n s_memrealtime s[100:101]\n s_waitcnt lgkmcnt(0)\n v_mov_b32 {vt}, s100")
    a(f"s_lshl_b32 s100, s2, 5\n s_add_u32 s100, s100, {TL}\n s_mov_b64 exec, 1\n buffer_store_dword {vt}, off, {WS}, s100 offset:{4*k} sc1")
    if k in (2, 3):
        a(f"s_memtime s[98:99]\n s_waitcnt lgkmcnt(0) vmcnt(0)\n v_mov_b32 {vt}, s98\n buffer_store_dword {vt}, off, {WS}, s100 offset:{4*(k+3)} sc1")
    a(f"s_mov_b64 exec, -1\n{sk}:")

def wp(a, opt, k):
    if not opt.get("wprof"): return
    a(f"s_memtime s[100:101]\n s_waitcnt lgkmcnt(0)\n s_sub_u32 s99, s100, s98\n s_mov_b32 s98, s100")
    if k is not None: a(f"s_add_u32 s{76+k}, s{76+k}, s99")
def wp_init(a, opt):
    if not opt.get("wprof"): return
    for k in range(8): a(f"s_mov_b32 s{76+k}, 0")
    wp(a, opt, None)
def wp_dump(a, opt):
    if not opt.get("wprof"): return
    a(f"s_lshl_b32 s7, s2, 2\n s_add_u32 s7, s7, s3\n s_lshl_b32 s7, s7, 5\n s_add_u32 s7, s7, {PROF + 0x20000}\n s_mov_b64 exec, 1")
    for k in range(8): a(f"v_mov_b32 v24, s{76+k}\n buffer_store_dword v24, off, {WS}, s7 offset:{4*k} sc1")
    a("s_mov_b64 exec, -1")

def init_arrive(a, vt):
    sk = a.label("IA")
    a(f"s_barrier\n s_cmp_lg_u32 s3, 0\n s_cbranch_scc1 {sk}")
    a(f"v_mov_b32 {vt}, 1\n s_mov_b64 exec, 1\n buffer_atomic_add {vt}, off, {DBG}, 0 offset:{D_INIT}\n s_mov_b64 exec, -1\n{sk}:")
    a.vm_n -= 1

def load_stream(a, jobs, tmp=32, depth=12, out=128):
    units = [(job, u) for job in jobs for u in range(16)]
    n = len(units); tok = {}
    def issue(k):
        job, u = units[k]
        a(f"s_mov_b32 s7, {job['row'](u) * job['stride']}")
        r = tmp + 8 * (k % depth)
        a(f"buffer_load_dwordx4 {vr(r)}, {job['v0']}, {job['srd']}, s7 offen")
        if job['stride'] < 4096:
            tok[k] = a.vm(f"buffer_load_dwordx4 {vr(r+4)}, {job['v0']}, {job['srd']}, s7 offen offset:{job['stride']}")
        else:
            tok[k] = a.vm(f"buffer_load_dwordx4 {vr(r+4)}, {job['v1']}, {job['srd']}, s7 offen")
    for k in range(min(depth, n)): issue(k)
    for k in range(n):
        job, u = units[k]
        a.wait_vm(tok[k])
        r = tmp + 8 * (k % depth)
        for c in range(8):
            d = job['dst'](u, c) if (job['kind'] == 'reg' or c in job.get('regc', ())) else out + 4*c + u % 4
            a(f"v_perm_b32 v{d}, v{r+4+c//2}, v{r+c//2}, s{40 + c % 2}")
        if k + depth < n: issue(k + depth)
        if job.get('group'):
            if u % 4 == 3: job['group'](u // 4)
        elif job['kind'] == 'lds' and u % 4 == 3:
            for c in range(8):
                if c not in job.get('regc', ()): a(f"ds_write_b128 {job['vdst']}, {vr(out + 4*c)} offset:{job['imm'](u // 4, c)}")
        if u == 0 and job.get('first'): job['first']()
        if u == 15 and job.get('done'): job['done']()

def lds_to_regs(a, vsrc, dst, first=0):
    def done():
        a("s_waitcnt lgkmcnt(0)\n s_barrier")
        for f in range(first, 32): a(f"ds_read_b128 {dst(f)}, {vsrc} offset:{f*1024}")
        a("s_waitcnt lgkmcnt(0)\n s_barrier")
    return done

def w1_setup(a, stride, scol):
    a(f"""
    s_mov_b32 s90, {8*stride}
    v_mul_lo_u32 v24, v1, s90
    v_lshl_add_u32 v24, v2, 4, v24
    s_mul_i32 s7, s3, {128*stride}
    s_add_u32 s7, s7, {scol}
    v_add_u32 v24, s7, v24
    v_add_u32 v25, {stride}, v24
    v_lshrrev_b32 v26, 2, v2
    s_mov_b32 s90, {WSTR}
    v_mul_lo_u32 v26, v26, s90
    v_lshl_add_u32 v26, v1, 8, v26
    v_and_b32 v27, 3, v2
    v_lshl_add_u32 v26, v27, 6, v26
    s_lshl_b32 s7, s3, 13
    v_add_u32 v26, s7, v26
    s_mul_i32 s7, s3, {WSTR}
    v_add_u32 v27, s7, v0
    """)

def w1_job(a, srdn, stride, dst):
    return dict(kind='lds', srd=srdn, stride=stride, v0="v24", v1="v25", row=lambda u: 32*(u//4) + 2*(u%4), vdst="v26",
                imm=lambda grp, c: (grp*2 + c % 2)*1024 + (c//2)*16, done=lds_to_regs(a, "v27", dst))

def w2_job(a, srdn, sbase, row0=0, done=None):
    a(f"v_lshlrev_b32 v28, 13, v1\n v_lshl_add_u32 v28, v2, 4, v28\n s_lshl_b32 s7, s3, 8\n s_add_u32 s7, s7, {sbase}\n v_add_u32 v28, s7, v28")
    return dict(kind='reg', srd=srdn, stride=1024, v0="v28", row=lambda u: row0 + 32*(u//4) + 2*(u%4), done=done,
                dst=lambda u, T: 128 + (T*4 + u//4)*4 + u % 4)

def prologue(a, opt):
    a(f"""
    s_cmp_ge_u32 s2, 256
    s_cbranch_scc1 L_end
    s_load_dwordx16 s[60:75], s[0:1], 0
    s_load_dwordx8 s[76:83], s[0:1], 64
    s_load_dwordx4 s[84:87], s[0:1], 96
    s_load_dwordx2 s[88:89], s[0:1], 112
    v_lshrrev_b32 v1, 6, v0
    v_and_b32 v0, 63, v0
    v_readfirstlane_b32 s3, v1
    s_mov_b32 s40, 0x05040100
    s_mov_b32 s41, 0x07060302
    s_mov_b32 s42, {CSC}
    s_getreg_b32 s4, hwreg(HW_REG_XCC_ID)
    s_and_b32 s4, s4, 7
    """)
    if opt.get("force_slow"):
        a("s_lshr_b32 s7, s2, 6\n s_add_u32 s7, s7, 1\n s_cmp_lt_u32 s2, 20\n s_cselect_b32 s4, 0, s7")
    a("s_waitcnt lgkmcnt(0)")
    srd(a, 8, P_X, 0x200000); srd(a, 12, P_WS, 0x10000000); srd(a, 16, P_DBG, 256)
    a(f"""
    v_mov_b32 v3, {L_ROLE}
    """)
    tl(a, opt, 0)
    a(f"""
    s_cmp_lg_u32 s3, 0
    s_cbranch_scc1 L_role_wait
    v_lshlrev_b32 v4, 2, v0
    v_add_u32 v4, {D_WK}, v4
    v_cmp_eq_u32 vcc, 0, v0
    v_cndmask_b32 v4, v4, v0, vcc
    s_mov_b64 exec, 1
    s_lshl_b32 s7, s4, 2
    s_add_u32 s7, s7, {D_WK}
    s_cmp_eq_u32 s4, 0
    s_cselect_b32 s7, {D_CH}, s7
    v_mov_b32 v2, 1
    buffer_atomic_add v2, off, {DBG}, s7 sc0
    s_waitcnt vmcnt(0)
    v_readfirstlane_b32 s5, v2
    s_nop 3
    s_cmp_lt_u32 s5, 32
    s_cbranch_scc1 L_role_slot
    v_mov_b32 v2, 1
    buffer_atomic_add v2, off, {DBG}, 0 offset:{D_WK} sc0
    s_waitcnt vmcnt(0)
    v_readfirstlane_b32 s6, v2
    s_mov_b64 exec, 0xff
    s_mov_b32 s96, 0
    L_role_census:
    buffer_load_dword v2, v4, {DBG}, 0 offen sc1
    s_waitcnt vmcnt(0)
    """)
    for x in range(8): a(f"v_readlane_b32 s{44+x}, v2, {x}")
    a("s_nop 3\n s_mov_b32 s7, 0")
    for x in range(8): a(f"s_add_u32 s7, s7, s{44+x}")
    a("s_cmp_ge_u32 s7, 256\n s_cbranch_scc1 L_role_pick")
    spin_tail(a, "L_role_census", 4)
    a("L_role_pick:\n s_mov_b64 exec, 1")
    for x in range(8):
        a(f"s_min_u32 s7, s{44+x}, 32\n s_mov_b32 s4, {x}\n s_add_u32 s5, s7, s6\n s_cmp_lt_u32 s5, 32\n s_cbranch_scc1 L_role_slot\n s_sub_u32 s6, s5, 32")
    a(f"""
    s_branch L_bail
    L_role_slot:
    s_mul_i32 s7, s5, 7
    s_add_u32 s7, s7, s4
    s_add_u32 s7, s7, 31
    s_cmp_eq_u32 s4, 0
    s_cselect_b32 s5, s5, s7
    L_role_have:
    v_mov_b32 v2, s5
    ds_write_b32 v3, v2
    s_waitcnt lgkmcnt(0)
    s_mov_b64 exec, -1
    L_role_wait:
    s_barrier
    ds_read_b32 v2, v3
    s_waitcnt lgkmcnt(0)
    v_readfirstlane_b32 s4, v2
    v_lshrrev_b32 v1, 4, v0
    v_and_b32 v2, 15, v0
    s_nop 2
    s_and_b32 s4, s4, 255
    """)
    tl(a, opt, 1)
    if opt.get("tl"):
        a(f"v_mov_b32 v24, s4\n s_lshl_b32 s100, s2, 5\n s_add_u32 s100, s100, {TL}\n buffer_store_dword v24, off, {WS}, s100 offset:28 sc1")
    a(f"""
    s_cmp_lt_u32 s4, 32
    s_cbranch_scc1 L_chain
    s_cmp_lt_u32 s4, 96
    s_cbranch_scc1 L_B
    """)
    if not opt.get("nocfr"): a("""
    s_cmp_lt_u32 s4, 160
    s_cbranch_scc1 L_C
    s_cmp_lt_u32 s4, 188
    s_cbranch_scc1 L_F
    s_cmp_lt_u32 s4, 252
    s_cbranch_scc1 L_R
    """)
    init_arrive(a, "v3")
    a("s_cmp_lg_u32 s4, 252\n s_cbranch_scc1 L_end\n s_cmp_lg_u32 s3, 0\n s_cbranch_scc1 L_end")
    wait_scalar(a, DBG, D_INIT, 256, "s7", "v3", 12)
    a(f"""
    v_mov_b32 v3, 1
    s_mov_b64 exec, 1
    buffer_store_dword v3, off, {DBG}, 0 offset:{D_GO} sc1
    s_waitcnt vmcnt(0)
    s_endpgm
    L_bail:
    s_mov_b64 exec, 1
    v_mov_b32 v0, s4
    v_add_u32 v0, 0x100, v0
    buffer_store_dword v0, off, {DBG}, 0 offset:{D_ERR}
    s_waitcnt vmcnt(0)
    L_end:
    s_endpgm
    """)

def x_dma(a, sseg, sbuf):
    a(f"s_lshl_b32 s90, {sseg}, 15\n s_lshl_b32 s91, s3, 13\n s_add_u32 s90, s90, s91")
    a(f"s_mul_i32 s91, s3, {8*XROW}\n s_add_u32 s91, s91, {sbuf}")
    for r in range(8):
        a(f"s_add_u32 m0, s91, {r*XROW}")
        a(f"s_nop 0\n buffer_load_dwordx4 v0, {X}, s90 offen lds")
        if r < 7: a("s_add_u32 s90, s90, 1024")

def gemm1(a, vx, mats, fr, mid=None):
    tok = {}
    def rd(t):
        for rt in range(2):
            tok[t] = a.ds(f"ds_read_b128 {vr(fr + 8*(t%3) + 4*rt)}, {vx} offset:{rt*16*XROW + t*64}")
    rd(0); rd(1)
    for t in range(16):
        if t + 2 < 16: rd(t + 2)
        a.wait_ds(tok[t])
        for wreg, acc, wA in mats:
            for T in range(2):
                for rt in range(2):
                    xf = vr(fr + 8*(t%3) + 4*rt); d = vr(acc(T, rt)); c = d if t else "0"
                    A, B = (wreg(t, T), xf) if wA else (xf, wreg(t, T))
                    a(f"v_mfma_f32_16x16x32_bf16 {d}, {A}, {B}, {c}")
        if mid and t == mid[0]: mid[1]()

ST2 = 'sc1'
def stage2(a, vrd, vst, sdst, oa, acc, tmp, nt=4):
    tok = {}
    for rt in range(2):
        for t in range(nt):
            tok[(rt, t)] = a.ds(f"ds_read_b128 {oa(rt*nt+t)}, {vrd} offset:{(rt*nt+t)*1024}")
    def cv(rt, i, p):
        a(f"v_cvt_pk_bf16_f32 v{tmp + 4*(i%2) + p}, v{acc + (rt*8+2*p)*4 + i}, v{acc + (rt*8+2*p+1)*4 + i}")
    def st(rt, i):
        a(f"buffer_store_dwordx4 {vr(tmp + 4*(i%2))}, {vst}, {WS}, {'s7' if rt else sdst} offen offset:{i*1024} {ST2}")
    a(f"s_add_u32 s7, {sdst}, 16384")
    for rt in range(2):
        for t in range(nt):
            a.wait_ds(tok[(rt, t)])
            for T in range(8):
                d = vr(acc + (rt*8+T)*4)
                a(f"v_mfma_f32_16x16x32_bf16 {d}, {oa(rt*nt+t)}, {(vr, ar)[t//4](128 + (T*4 + t % 4)*4)}, {d if t else '0'}")
                if rt == 1 and t < 4 and 2 <= T < 6: cv(0, t, T - 2)
                if rt == 1 and t < 4 and T == 6: st(0, t)
    for i in range(4):
        for p in range(4): cv(1, i, p)
        st(1, i)

def worker_top(a, name, nst):
    a("s_waitcnt vmcnt(0)")
    a(f"{name}_loop:\n s_waitcnt vmcnt({nst})\n s_barrier")
    a(f"s_lshl_b32 s43, s6, 1\n s_add_u32 s43, s43, s5")
    a(f"s_add_u32 s44, s43, 2\n s_min_u32 s44, s44, 63\n s_sub_u32 s45, {XBUF}, s46")
    x_dma(a, "s44", "s45")
    a(f"v_add_u32 v4, s46, v3")

def worker_bot(a, name):
    a(f"s_sub_u32 s46, {XBUF}, s46\n s_add_u32 s6, s6, 1\n s_cmp_lt_u32 s6, 32")
    a.fence()
    a(f"s_cbranch_scc1 {name}_loop")

def worker_init(a, first, per):
    a(f"s_sub_u32 s4, s4, {first}\n s_cmp_ge_u32 s4, {per}\n s_cselect_b32 s5, 1, 0\n s_cselect_b32 s7, {per}, 0\n s_sub_u32 s4, s4, s7")
    a("s_mov_b32 s6, 0\n s_mov_b32 s46, 0")
    a(f"s_mov_b32 s7, {XROW}\n v_mul_lo_u32 v3, v2, s7\n v_lshl_add_u32 v3, v1, 4, v3\n v_lshlrev_b32 v0, 4, v0")

def wave_flag(a, base):
    a(f"s_lshl_b32 s47, s5, 2\n s_add_u32 s47, s47, s3\n s_lshl_b32 s47, s47, 7\n s_lshl_b32 s7, s4, 2\n s_add_u32 s47, s47, s7\n s_add_u32 s47, s47, {base}")
    flag_store(a, "s47", "0", "v24")

def worker_end(a, opt):
    wp_dump(a, opt)
    tl(a, opt, 3)
    a("s_waitcnt vmcnt(0)\n s_endpgm")

def role_B(a, opt):
    a("L_B:")
    worker_init(a, 32, 32)
    a(f"s_lshl_b32 s47, s4, 7\n s_lshl_b32 s7, s5, 2\n s_add_u32 s47, s47, s7\n s_add_u32 s47, s47, {FLG_FB}\n v_lshrrev_b32 v5, 1, v0")
    def flags(kv, q):
        a(f"v_mov_b32 v6, {q}\n v_writelane_b32 v6, {kv}, 0\n s_mov_b64 exec, 3\n buffer_store_dword v6, v5, {WS}, s47 offen sc1\n s_mov_b64 exec, -1")
    flags("0", "0")
    srd(a, 24, P_WK, 0x400000); srd(a, 28, P_WV, 0x400000); srd(a, 32, P_WQ, 0x400000)
    a("s_lshl_b32 s48, s4, 8")
    w1_setup(a, 8192, "s48")
    def publish():
        sk = a.label("BF")
        a(f"s_barrier\n s_cmp_lg_u32 s3, 0\n s_cbranch_scc1 {sk}\n s_max_u32 s7, s6, {opt.get('fkv', 0)}")
        flags("s7", "s6")
        a(f"{sk}:")
        a.vm_n -= 1
    mk = lambda acc: (lambda t, T: ar((t*2+T)*4), lambda T, rt: acc + (T*2+rt)*4, True)
    mv = lambda acc: (lambda t, T: ar(128 + (t*2+T)*4), lambda T, rt: acc + (T*2+rt)*4, False)
    def kv_out(ak, av, r0):
        a(f"s_lshl_b32 s52, s43, 5\n s_add_u32 s52, s52, s4\n s_lshl_b32 s48, s52, 14\n s_add_u32 s48, s48, {KXV}")
        a("s_lshl_b32 s7, s3, 10\n s_add_u32 s49, s48, s7\n s_add_u32 s50, s49, 4096")
        a(f"s_lshl_b32 s52, s52, 13\n s_add_u32 s52, s52, s7\n s_add_u32 s52, s52, {QXG}\n s_add_u32 s53, s52, 4096")
        a("s_lshl_b32 s7, s3, 11\n s_add_u32 s51, s48, s7\n s_add_u32 s51, s51, 8192")
        for rt in range(2):
            r = r0 + 4*rt
            for i in range(4): a(f"v_cvt_pk_bf16_f32 v{r+i}, v{ak + rt*4 + i}, v{ak + (2+rt)*4 + i}")
            a(f"buffer_store_dwordx4 {vr(r)}, v0, {WS}, s{49+rt} offen sc1")
        for T in range(2):
            r = r0 + 8 + 4*T; b = av + T*8
            for p in range(4): a(f"v_cvt_pk_bf16_f32 v{r+p}, v{b + 2*p}, v{b + 2*p + 1}")
            a(f"buffer_store_dwordx4 {vr(r)}, v0, {WS}, s51 offen offset:{T*1024} sc1")
    def reread():
        if opt.get("rr"):
            a(f"s_lshl_b32 s7, s3, 12\n s_add_u32 s7, s7, s48\n v_lshlrev_b32 v7, 2, v0\n buffer_load_dword v7, v7, {WS}, s7 offen sc1")
    jv = w1_job(a, W2, 8192, lambda f: ar(128 + 4*f))
    vdone = jv['done']
    def first_kv():
        vdone()
        x_dma(a, "s5", "s46")
        a("s_mov_b32 s43, s5\n s_waitcnt vmcnt(0)\n s_barrier")
        gemm1(a, "v3", [mk(192), mv(208)], 160)
        kv_out(192, 208, 224)
        a("s_waitcnt vmcnt(0)")
        publish()
    if opt.get("fkv", 0): jv['done'] = first_kv
    jk = w1_job(a, W1, 8192, lambda f: ar(4*f))
    jk['first'] = lambda: init_arrive(a, "v28")
    load_stream(a, [jk, jv, w1_job(a, W3, 8192, lambda f: vr(128 + 4*f))])
    x_dma(a, "s5", "s46")
    tl(a, opt, 2)
    wp_init(a, opt)
    worker_top(a, "B", 6)
    wp(a, opt, 0)
    gemm1(a, "v4", [mk(64), mv(80), (lambda t, T: vr(128 + (t*2+T)*4), lambda T, rt: 96 + (T*2+rt)*4, True)], 32,
          mid=(4, lambda: (a("s_waitcnt vmcnt(8)"), publish(), reread())))
    wp(a, opt, 1)
    kv_out(64, 80, 112)
    for rt in range(2):
        r = 56 + 4*rt
        for i in range(4): a(f"v_cvt_pk_bf16_f32 v{r+i}, v{96 + rt*4 + i}, v{96 + (2+rt)*4 + i}")
        a(f"buffer_store_dwordx4 {vr(r)}, v0, {WS}, s{52+rt} offen sc1")
    wp(a, opt, 7)
    if opt.get("p1", 1):
        a("s_cmp_lg_u32 s6, 0\n s_cbranch_scc1 B_later\n s_mov_b32 s6, 1\n s_waitcnt vmcnt(0)")
        publish()
        a("s_mov_b32 s6, 0\nB_later:")
    worker_bot(a, "B")
    a("s_waitcnt vmcnt(0)")
    publish()
    worker_end(a, opt)

def st2_addrs(a):
    a(f"v_add_u32 v6, {L_OX}, v0")
    a(f"v_lshlrev_b32 v7, 12, v1\n v_lshl_add_u32 v7, v2, 4, v7\n s_lshl_b32 s7, s3, 8\n v_add_u32 v7, s7, v7")

def role_F(a, opt):
    a("L_F:")
    worker_init(a, 160, 14)
    wave_flag(a, FLG_FF)
    a("s_waitcnt vmcnt(0)")
    init_arrive(a, "v24")
    if opt.get("hold", 3) & 1:
        wait_go(a, "v24", opt.get("si", 64))
        a(f"s_lshl_b32 s48, s4, 7\n s_add_u32 s48, s48, {FLG_FB + opt.get('hf', 8)}")
        if not opt.get("hi"): wait_scalar(a, WS, "s48", 1, "s7", "v24", 16)
    srd(a, 24, P_WG, 512*3584); srd(a, 28, P_WU, 512*3584); srd(a, 32, P_WD, 1792*1024)
    a("s_lshl_b32 s48, s4, 8")
    w1_setup(a, 3584, "s48")
    a("s_lshl_b32 s48, s4, 17")
    load_stream(a, [w1_job(a, W1, 3584, lambda f: ar(4*f)), w1_job(a, W2, 3584, lambda f: ar(128 + 4*f)), w2_job(a, W3, "s48")])
    x_dma(a, "s5", "s46")
    st2_addrs(a)
    a("s_lshl_b32 s7, s3, 10\n v_add_u32 v5, s7, v6")
    tl(a, opt, 2)
    wp_init(a, opt)
    worker_top(a, "F", 8)
    wp(a, opt, 0)
    gemm1(a, "v4", [(lambda t, T: ar((t*2+T)*4), lambda T, rt: 64 + (T*2+rt)*4, True),
                    (lambda t, T: ar(128 + (t*2+T)*4), lambda T, rt: 80 + (T*2+rt)*4, True)], 32,
          mid=(9, lambda: (a("s_waitcnt vmcnt(8)"), flag_store(a, "s47", "s6", "v24"))))
    wp(a, opt, 1)
    for r in range(16): a(f"v_max_f32 v{64+r}, 0, v{64+r}")
    for r in range(16): a(f"v_mul_f32 v{64+r}, v{64+r}, v{80+r}")
    for rt in range(2):
        r = 96 + 4*rt
        for i in range(4): a(f"v_cvt_pk_bf16_f32 v{r+i}, v{64 + rt*4 + i}, v{64 + (2+rt)*4 + i}")
        a(f"ds_write_b128 v5, {vr(r)} offset:{rt*4096}")
    a(f"s_lshl_b32 s48, s43, 4\n s_add_u32 s48, s48, s4\n s_lshl_b32 s48, s48, 15\n s_and_b32 s48, s48, {hex((opt.get('fring', 64) << 19) - 1)}\n s_add_u32 s48, s48, {FP}")
    a("s_waitcnt lgkmcnt(0)\n s_barrier")
    stage2(a, "v6", "v7", "s48", lambda f: vr(32 + 4*f), 64, 24)
    wp(a, opt, 7)
    if opt.get("zf"): a(f"s_sleep {opt['zf']}")
    worker_bot(a, "F")
    a("s_waitcnt vmcnt(0)")
    flag_store(a, "s47", "s6", "v24")
    worker_end(a, opt)

def softmax(a, X0, X1, M, t, pX, pM):
    a(f"""
    v_max3_f32 v{t}, v{X0}, v{X0+1}, v{X0+2}
    v_max3_f32 v{t+1}, v{X0+3}, v{X1}, v{X1+1}
    v_max3_f32 v{t}, v{t}, v{X1+2}, v{X1+3}
    v_max3_f32 v{t+1}, v{t+1}, v{M}, v{M+1}
    v_max_f32 v{t}, v{t}, v{t+1}
    v_max_f32 v{t+1}, v{t}, v{t+1}
    v_permlane16_swap_b32 v{t}, v{t+1}
    v_max_f32 v{t+2}, v{t}, v{t+1}
    v_max_f32 v{t+3}, v{t}, v{t+1}
    v_permlane32_swap_b32 v{t+2}, v{t+3}
    v_max_f32 v{t}, v{t+2}, v{t+3}
    v_mul_f32 v{t}, s42, v{t}
    """)
    regs = [X0, X0+1, X0+2, X0+3, X1, X1+1, X1+2, X1+3, M, M+1]
    for r in regs: a(f"v_fma_f32 v{r}, v{r}, s42, -v{t}")
    for k, r in enumerate(regs):
        a(f"v_exp_f32 v{r}, v{r}")
        if k >= 2 and k % 2 == 0: a(f"v_cvt_pk_bf16_f32 v{pX + k//2 - 1}, v{regs[k-2]}, v{regs[k-1]}")
    a(f"v_cvt_pk_bf16_f32 v{pM}, v{M}, v{M+1}\n v_cvt_pk_bf16_f32 v{pM+3}, v{M}, v{M+1}")

def role_C(a, opt):
    C_OX, C_KV = 49152, 65536
    a("L_C:")
    a("s_sub_u32 s4, s4, 96\n s_lshr_b32 s5, s4, 4\n s_and_b32 s4, s4, 15\n s_mov_b32 s6, 0\n v_lshlrev_b32 v0, 4, v0")
    wave_flag(a, FLG_FC)
    a(f"""
    s_lshr_b32 s52, s3, 1
    s_and_b32 s53, s3, 1
    s_lshl_b32 s58, s4, 1
    s_add_u32 s58, s58, s52
    s_lshl_b32 s55, s5, 5
    s_add_u32 s55, s55, s58
    s_lshl_b32 s55, s55, 12
    s_lshl_b32 s7, s53, 11
    s_add_u32 s55, s55, s7
    s_add_u32 s55, s55, {KVM}
    v_mov_b64 v[24:25], -1
    v_mov_b64 v[26:27], -1
    s_add_u32 s7, s55, {15*0x80000}
    buffer_store_dwordx4 v[24:27], v0, {WS}, s7 offen sc1
    buffer_store_dwordx4 v[24:27], v0, {WS}, s7 offen offset:1024 sc1
    s_lshl_b32 s50, s58, 7
    s_add_u32 s50, s50, {FLG_FH}
    v_lshrrev_b32 v9, 2, v0
    """)
    a("s_waitcnt vmcnt(0)")
    init_arrive(a, "v24")
    if opt.get("hold", 3) & 2:
        wait_go(a, "v24", opt.get("si", 64))
        a(f"s_lshl_b32 s48, s58, 7\n s_add_u32 s48, s48, {FLG_FB + opt.get('hc', 0)}")
        if not opt.get("hi"): wait_scalar(a, WS, "s48", 1, "s7", "v24", 16)
    srd(a, 28, P_WO, 0x400000)
    a("s_lshl_b32 s48, s4, 18")
    load_stream(a, [w2_job(a, W2, "s48", 128, lambda: [a(f"v_accvgpr_write_b32 a{r}, v{r}") for r in range(128, 256)]), w2_job(a, W2, "s48")])
    st2_addrs(a)
    a(f"""
    v_add_u32 v6, {C_OX}, v0
    s_mul_i32 s59, s52, 24576
    v_add_u32 v3, s59, v0
    s_lshl_b32 s7, s53, 12
    s_add_u32 s7, s7, 16384
    v_add_u32 v4, s7, v3
    s_lshl_b32 s7, s3, 11
    s_add_u32 s7, s7, {C_KV}
    v_add_u32 v8, s7, v0
    s_lshl_b32 s7, s52, 12
    s_add_u32 s90, s7, {C_KV + 2048}
    v_add_u32 v11, s90, v0
    v_lshrrev_b32 v24, 2, v2
    v_and_b32 v25, 1, v2
    v_lshl_add_u32 v10, v24, 1, v25
    v_lshlrev_b32 v10, 4, v10
    v_lshl_add_u32 v10, v1, 7, v10
    s_add_u32 s90, s7, {C_KV}
    v_add_u32 v10, s90, v10
    s_lshl_b32 s90, s53, 13
    s_add_u32 s90, s90, s7
    v_add_u32 v12, s90, v6
    s_lshl_b32 s7, s53, 4
    v_add_u32 v14, s7, v2
    v_lshlrev_b32 v15, 2, v1
    v_sub_u32 v14, v14, v15
    """)
    for k in range(8):
        a(f"v_cmp_le_i32 s[{60+2*k}:{61+2*k}], {k if k < 4 else 12 + k}, v14")
    a("v_mov_b32 v14, 0xf149f2ca")
    for r in range(16, 20): a(f"v_mov_b32 v{r}, 0x3f803f80")
    a("v_mov_b32 v21, 0\n v_mov_b32 v22, 0")
    a(f"s_lshl_b32 s54, s58, 7\n s_and_b32 s7, s5, 1\n s_lshl_b32 s7, s7, 2\n s_add_u32 s54, s54, s7\n s_add_u32 s54, s54, {FLG_FB + 8}\n s_mov_b32 s56, 0")
    wait_go(a, "v24", opt.get("si", 64))
    QB, KX, VX = 0, 16, 48
    def fetch(sidx):
        ok = a.label("CB")
        a(f"s_lshl_b32 s49, {sidx}, 2\n s_add_u32 s49, s49, s5\n s_lshr_b32 s57, s49, 1\n s_cmp_gt_u32 s56, s57\n s_cbranch_scc1 {ok}\n s_add_u32 s57, s57, 1")
        wait_scalar(a, WS, "s54", "s57", "s56", "v13", 4)
        a(f"{ok}:")
        a(f"s_lshl_b32 s49, s49, 5\n s_add_u32 s49, s49, s58")
        a(f"s_lshl_b32 s57, s49, 13\n s_lshl_b32 s7, s53, 12\n s_add_u32 s57, s57, s7\n s_add_u32 s57, s57, {QXG}\n s_add_u32 s7, s7, s59\n s_add_u32 m0, s7, 16384")
        a(f"s_lshl_b32 s49, s49, 14\n s_add_u32 s49, s49, {KXV}\n s_lshl_b32 s7, s53, 13\n s_add_u32 s49, s49, s7\n s_add_u32 s7, s7, s59")
        for f in range(4): a(f"buffer_load_dwordx4 v0, {WS}, s57 offen offset:{f*1024} sc1 lds")
        for hf in range(2):
            a(f"s_add_u32 m0, s7, {hf*4096}")
            if hf: a("s_add_u32 s49, s49, 4096")
            for f in range(4): a(f"buffer_load_dwordx4 v0, {WS}, s49 offen offset:{f*1024} sc1 lds")
    fetch("s6")
    tl(a, opt, 2)
    wp_init(a, opt)
    a("s_waitcnt vmcnt(0)\nC_loop:\n s_barrier")
    wp(a, opt, 0)
    for f in range(4): a(f"ds_read_b128 {ar(QB + 4*f)}, v4 offset:{f*1024}")
    for f in range(16): a(f"ds_read_b128 {ar(KX + 4*f)}, v3 offset:{f*1024}")
    a("s_waitcnt lgkmcnt(0)")
    KM, VM, X0, X1, M = 88, 104, 116, 120, 124
    for rt in range(2):
        d = vr(X0 + 4*rt)
        for t in range(4): a(f"v_mfma_f32_16x16x32_bf16 {d}, {ar(KX + (rt*4+t)*4)}, {ar(QB + 4*t)}, {d if t else '0'}")
    for k in range(8): a(f"v_cndmask_b32 v{X0+k}, v14, v{X0+k}, s[{60+2*k}:{61+2*k}]")
    wp(a, opt, 1)
    a("s_cmp_eq_u32 s6, 15\n s_cbranch_scc1 C_direct\n s_lshl_b32 s57, s6, 2\n s_add_u32 s57, s57, s5\n s_add_u32 s57, s57, 1")
    wait_lanes(a, "v9", "s50", 2, "s57", "v24", 8)
    a(f"""
    C_direct:
    s_mov_b32 s96, 0
    C_poll:
    buffer_load_dwordx4 v[24:27], v0, {WS}, s55 offen sc1
    buffer_load_dwordx4 v[28:31], v0, {WS}, s55 offen offset:1024 sc1
    s_waitcnt vmcnt(0)
    v_max3_u32 v32, v24, v25, v26
    v_max3_u32 v33, v27, v28, v29
    v_max3_u32 v32, v32, v30, v31
    v_max_u32 v32, v32, v33
    v_cmp_eq_u32 vcc, -1, v32
    s_cbranch_vccz C_have
    """)
    spin_tail(a, "C_poll", opt.get("slc", 1))
    a("C_have:")
    wp(a, opt, 3)
    a("ds_write_b128 v8, v[24:27]\n ds_write_b128 v8, v[28:31] offset:1024\n s_add_u32 s55, s55, 0x80000\n s_waitcnt lgkmcnt(0)\n s_barrier")
    tk = [a.ds(f"ds_read_b128 {vr(KM + 4*t)}, v10 offset:{t*512}") for t in range(4)]
    for f in range(2): a(f"ds_read_b128 {vr(VM + 4*f)}, v11 offset:{f*1024}")
    for t in range(4):
        a.wait_ds(tk[t])
        a(f"v_mfma_f32_16x16x32_bf16 {vr(M)}, {vr(KM + 4*t)}, {ar(QB + 4*t)}, {vr(M) if t else '0'}")
    wp(a, opt, 4)
    PX, PM, O, Lr = 24, 20, 32, 64
    softmax(a, X0, X1, M, 28, PX, PM)
    a("s_waitcnt lgkmcnt(0)")
    a(f"v_mfma_f32_16x16x32_bf16 {vr(Lr)}, v[16:19], {vr(PX)}, 0")
    for f in range(8): a(f"v_mfma_f32_16x16x32_bf16 {vr(O + 4*f)}, {ar(VX + 4*f)}, {vr(PX)}, 0")
    a(f"v_mfma_f32_16x16x16_bf16 {vr(Lr)}, v[16:17], {vr(PM, 2)}, {vr(Lr)}")
    for f in range(8):
        a(f"v_mfma_f32_16x16x16_bf16 {vr(O + 4*f)}, {vr(VM + 2*(f//2), 2)}, {vr(PM + 2*(f%2), 2)}, {vr(O + 4*f)}")
        if f == 2: a(f"v_rcp_f32 v28, v{Lr}")
        if f >= 3:
            for r in range(2): a(f"v_mul_f32 v{O + 2*(f-3) + r}, v{O + 2*(f-3) + r}, v28")
    for hw in range(4):
        r = 68 + 4*hw
        for q in range(max(10, 8*hw), 8*hw + 8, 2): a(f"v_pk_mul_f32 {vr(O + q, 2)}, {vr(O + q, 2)}, v[28:29] op_sel_hi:[1,0]")
        for i in range(4): a(f"v_cvt_pk_bf16_f32 v{r+i}, v{O + 8*hw + i}, v{O + 8*hw + 4 + i}")
        a(f"ds_write_b128 v12, {vr(r)} offset:{hw*1024}")
    wp(a, opt, 5)
    a("s_cmp_eq_u32 s6, 15\n s_cbranch_scc1 C_nofetch\n s_add_u32 s44, s6, 1")
    fetch("s44")
    a("C_nofetch:")
    a(f"s_lshl_b32 s48, s6, 2\n s_add_u32 s48, s48, s5\n s_lshl_b32 s48, s48, 4\n s_add_u32 s48, s48, s4\n s_lshl_b32 s48, s48, 15\n s_add_u32 s48, s48, {CP}")
    a("s_waitcnt lgkmcnt(0)\n s_barrier")
    wp(a, opt, 6)
    stage2(a, "v6", "v7", "s48", lambda f: ar(4*f), 64, 24, 8)
    wp(a, opt, 7)
    a("s_add_u32 s6, s6, 1\n s_waitcnt vmcnt(0)")
    flag_store(a, "s47", "s6", "v13")
    wp(a, opt, 2)
    a("s_cmp_lt_u32 s6, 16")
    a.fence()
    a("s_cbranch_scc1 C_loop")
    worker_end(a, opt)

def make_sel(a, b, t):
    a(f"v_and_b32 v{t}, 1, v2\n v_lshlrev_b32 v{t}, 4, v{t}\n v_mov_b32 v{t+1}, 0x3f80\n v_lshlrev_b32 v{t}, v{t}, v{t+1}")
    a(f"v_bfe_u32 v{t+1}, v2, 1, 2")
    for p in range(4):
        a(f"v_cmp_eq_u32 vcc, {p}, v{t+1}\n v_cndmask_b32 v{b+p}, 0, v{t}, vcc")

def role_R(a, opt):
    a("L_R:")
    a("s_sub_u32 s4, s4, 188\n s_lshr_b32 s5, s4, 5\n s_and_b32 s4, s4, 31")
    a(f"""
    v_lshlrev_b32 v4, 15, v1
    v_lshl_add_u32 v4, v2, 4, v4
    s_lshl_b32 s7, s4, 10
    s_lshl_b32 s43, s3, 8
    s_add_u32 s7, s7, s43
    v_add_u32 v4, s7, v4
    v_lshlrev_b32 v5, 3, v1
    v_lshl_add_u32 v5, v2, 4, v5
    v_add_u32 v5, s7, v5
    v_mov_b64 v[24:25], -1
    v_mov_b64 v[26:27], -1
    s_lshl_b32 s45, s5, 19
    s_add_u32 s45, s45, {CP + (62 << 19)}
    """)
    for u in range(4): a(f"buffer_store_dwordx4 v[24:27], v4, {WS}, s45 offen sc1\n s_add_u32 s45, s45, 0x20000")
    a("s_waitcnt vmcnt(0)")
    init_arrive(a, "v24")
    if opt.get("warm", 1):
        a("s_lshl_b32 s7, s5, 5\n s_add_u32 s7, s7, s4\n s_lshl_b32 s7, s7, 2\n s_add_u32 s7, s7, s3\n s_lshl_b32 s7, s7, 14\n v_lshlrev_b32 v24, 7, v0")
        for n, p in enumerate([(P_WQ, P_WV, P_WO), (P_WO,), (P_WK, P_WQ, P_WV, P_WO)][opt.get("warm", 1) - 1]):
            srd(a, 24, p, 0x400000)
            a(f"buffer_load_dword v{26+2*n}, v24, {W1}, s7 offen\n s_add_u32 s43, s7, 8192\n buffer_load_dword v{27+2*n}, v24, {W1}, s43 offen")
        a("s_waitcnt vmcnt(0)")
    srd(a, 20, P_OUT, 0x200000); srd(a, 24, P_GW, 1024)
    make_sel(a, 16, 24)
    a(f"""
    v_lshlrev_b32 v3, 2, v0
    v_lshlrev_b32 v0, 4, v0
    buffer_load_dwordx4 v[8:11], v0, {W1}, 0 offen
    s_lshl_b32 s7, s5, 2
    s_add_u32 s7, s7, s3
    s_lshl_b32 s7, s7, 7
    s_add_u32 s54, s7, {FLG_FC}
    s_add_u32 s55, s7, {FLG_FF}
    s_mov_b32 s6, 0
    s_mov_b32 s58, {f32bits(-math.log2(math.e))}
    """)
    for r in range(76, 80): a(f"v_mov_b32 v{r}, 0")
    wait_go(a, "v24", opt.get("si", 64))
    tl(a, opt, 2)
    wp_init(a, opt)
    a(f"""
    R_loop:
    s_lshl_b32 s43, s6, 1
    s_add_u32 s43, s43, s5
    s_add_u32 s57, s6, 1
    s_lshl_b32 s44, s43, 15
    s_lshl_b32 s7, s4, 10
    s_add_u32 s7, s7, s44
    buffer_load_dwordx4 v[12:15], v0, {X}, s7 offen
    """)
    wait_lanes(a, "v3", "s55", 14, "s57", "v24", 8)
    wp(a, opt, 0)
    a(f"s_lshl_b32 s45, s43, 19\n s_and_b32 s45, s45, {hex((opt.get('fring', 64) << 19) - 1)}\n s_add_u32 s45, s45, {FP}")
    for u in range(4):
        if u == 3: a("s_mov_b32 exec_hi, 0")
        a(f"buffer_load_dwordx4 {vr(64 + 4*u)}, v4, {WS}, s45 offen {['sc1', 'sc1 nt'][opt.get('rnt', 0)]}")
        if u < 3: a("s_add_u32 s45, s45, 0x20000")
    a("s_mov_b64 exec, -1")
    a("v_mov_b32 v24, 0")
    for p in range(4): a(f"v_dot2c_f32_bf16 v24, v{12+p}, v{8+p}")
    for k in (8, 4, 2, 1): a(f"v_add_f32_dpp v24, v24, v24 row_ror:{k} row_mask:0xf bank_mask:0xf")
    a("""
    v_mov_b32 v25, v24
    v_permlane16_swap_b32 v24, v25
    v_add_f32 v24, v24, v25
    v_mov_b32 v25, v24
    v_permlane32_swap_b32 v24, v25
    v_add_f32 v24, v24, v25
    v_mul_f32 v24, s58, v24
    v_exp_f32 v24, v24
    v_add_f32 v24, 1.0, v24
    v_rcp_f32 v6, v24
    v_sub_f32 v7, 1.0, v6
    s_waitcnt vmcnt(0)
    """)
    for u in range(4): a(f"v_mfma_f32_16x16x32_bf16 v[28:31], v[16:19], {vr(64 + 4*u)}, {'v[28:31]' if u else '0'}")
    for i in range(4): a(f"v_mul_f32 v{28+i}, v{28+i}, v7")
    wp(a, opt, 1)
    a("s_cmp_eq_u32 s6, 31\n s_cbranch_scc1 R_direct")
    a("s_and_b32 s7, s6, 1\n s_lshl_b32 s7, s7, 10\n s_add_u32 s46, s54, s7\n s_lshr_b32 s57, s6, 1\n s_add_u32 s57, s57, 1")
    wait_lanes(a, "v3", "s46", 16, "s57", "v24", opt.get("slr", 8))
    a("R_direct:\n s_mov_b32 s96, 0")
    wp(a, opt, 2)
    a(f"R_poll:\n s_lshl_b32 s45, s43, 19\n s_add_u32 s45, s45, {CP}")
    tok = []
    for u in range(4):
        tok.append(a.vm(f"buffer_load_dwordx4 {vr(32 + 4*u)}, v4, {WS}, s45 offen sc1"))
        if u < 3: a("s_add_u32 s45, s45, 0x20000")
    for u in range(4):
        a.wait_vm(tok[u])
        a(f"v_mfma_f32_16x16x32_bf16 v[24:27], v[16:19], {vr(32 + 4*u)}, {'v[24:27]' if u else '0'}")
        a(f"v_max3_u32 v{48+u}, v{32+4*u}, v{33+4*u}, v{34+4*u}\n v_max_u32 v{48+u}, v{48+u}, v{35+4*u}")
    a("v_max3_u32 v48, v48, v49, v50\n v_max_u32 v48, v48, v51\n v_cmp_eq_u32 vcc, -1, v48\n s_cbranch_vccz R_have")
    spin_tail(a, "R_poll", opt.get("sld", 2))
    a("R_have:\n s_nop 3")
    for i in range(4): a(f"v_fma_f32 v{24+i}, v{24+i}, v6, v{28+i}")
    a(f"""
    v_cvt_pk_bf16_f32 v24, v24, v25
    v_cvt_pk_bf16_f32 v25, v26, v27
    s_mov_b32 exec_hi, 0
    buffer_store_dwordx2 v[24:25], v5, {OUT}, s44 offen {['', 'sc1', 'nt', 'sc0 sc1'][opt.get('ost', 1)]}
    s_mov_b64 exec, -1
    """)
    wp(a, opt, 3)
    a("s_add_u32 s6, s6, 1\n s_cmp_lt_u32 s6, 32")
    a.fence()
    a("s_cbranch_scc1 R_loop\n s_waitcnt vmcnt(0)")
    wp_dump(a, opt)
    tl(a, opt, 3)
    a("s_waitcnt vmcnt(0)\n s_endpgm")

def build(opt):
    from chain import role_chain
    global ST2
    ST2 = ['sc1', 'sc1 nt', ''][opt.get('st2', 0)]
    a = Asm()
    prologue(a, opt)
    if not opt.get("nocfr"): role_R(a, opt)
    role_chain(a, opt)
    role_B(a, opt)
    if not opt.get("nocfr"):
        role_C(a, opt)
        role_F(a, opt)
    hdr = open("cdna_kernels/%s.s.ref" % NAME).read().split("; Override")[0] if opt.get("hdr", True) else ""
    k = NAME + "_kernel"
    return f"""{hdr}; @launch grid=(256,1,1) block=(256,1,1) lds={LDS_BYTES}
.amdgcn_target "amdgcn-amd-amdhsa--gfx950"
.text
.globl {k}
.p2align 8
.type {k},@function
{k}:
{a.text()}.section .rodata,"a"
.p2align 6
.amdhsa_kernel {k}
  .amdhsa_next_free_vgpr 512
  .amdhsa_next_free_sgpr 102
  .amdhsa_accum_offset 256
  .amdhsa_group_segment_fixed_size 0
  .amdhsa_kernarg_size 120
  .amdhsa_user_sgpr_count 2
  .amdhsa_user_sgpr_kernarg_segment_ptr 1
  .amdhsa_system_sgpr_workgroup_id_x 1
.end_amdhsa_kernel
"""

if __name__ == "__main__":
    opt = {}
    out = "cdna_kernels/%s.s" % NAME
    for arg in sys.argv[1:]:
        k, _, v = arg.partition("=")
        if k == "out": out = v
        elif k in ("stamps", "drop", "xp"): opt[k] = v.split(",")
        else: opt[k] = int(v, 0) if v else 1
    open(out, "w").write(build(opt))
    print("wrote", out)
```

```python
from asmlib2 import *
import gen as G

vLin, vPub, vT, vMem0, vIdx, vQw, vOr, vPst = ["v%d" % i for i in range(8)]
vQr, vOw, vInf, vJunk, vKa, vQq = "v8", "v9", "v20", "v21", "v22", "v23"
vW, vKp = "v8", "v9"
FB, SEL, ONES, KV = 10, 12, 16, 60
MEMA, ACQ, ACK = 24, 56, 64
LS = MEMA + 16
ACV, QBUF = 72, [88, 96, 104, 112, 120]
QS = 1280
L_MX, L_QK, L_AW, L_W = 0, 8192, 13312, 29696
L_OB = L_MX
SM = "v_smfmac_f32_16x16x64_bf16"
MF = "v_mfma_f32_16x16x32_bf16"
MF16 = "v_mfma_f32_16x16x16_bf16"

def zero(a, lo, hi, val="0"):
    for r in range(lo, hi, 2): a(f"v_mov_b64 {vr(r, 2)}, {val}")
def busy(a, n):
    for _ in range(n): a(f"v_mov_b32 {vT}, 0\n s_nop 2")
def wq_half(j, h): return f"ds_read_b128 {vr(QBUF[j % 5] + 4*h)}, {vW} offset:{G.WSTR + j*2048 + 1024*h}"
KX, VX = 72, 104
NK = 224
def kx_load(f, dst): return f"buffer_load_dwordx4 {dst}, {vLin}, {G.WS}, {('s52', 's87')[f // 4]} offen offset:{(f % 4)*1024} sc1"
def vx_load(f): return f"buffer_load_dwordx4 {vr(VX + 4*f)}, {vLin}, {G.WS}, s57 offen offset:{f*1024} sc1"
def addr_prep(a):
    for u in range(1, 4): a(f"v_add_u32 v{LS + 4*u}, s{80+u}, {vLin}")

def next_seg(a, P):
    a(f"""
    v_readfirstlane_b32 s84, v{FB}
    v_readfirstlane_b32 s85, v{FB+1}
    s_mov_b32 s57, s56
    s_add_u32 s90, s6, 2
    s_cmp_lt_u32 s90, 64
    s_cselect_b32 s7, 0x80000, 0
    s_add_u32 s52, s52, s7
    s_min_u32 s90, s90, 63
    s_lshr_b32 s91, s90, 1
    s_bitcmp1_b32 s90, 0
    s_cselect_b32 s7, s85, s84
    s_cmp_gt_u32 s7, s91
    s_cbranch_scc0 {P}_fbwait
    {P}_fbok:
    s_add_u32 s87, s52, 0x1000
    s_add_u32 s56, s52, s95
    s_lshl_b32 s94, s3, 13
    s_add_u32 s94, s94, s52
    """)

def ring_next(a):
    a(f"""
    s_mov_b32 s51, s48
    s_and_b32 s7, s6, 3
    s_lshl_b32 s48, s7, 13
    s_add_u32 s48, s48, {G.MEMB}
    s_lshr_b32 s97, s7, 1
    s_sub_u32 s98, s97, 1
    s_mov_b32 s99, s98
    s_and_b32 s7, s7, 1
    s_lshl_b32 s7, s7, 18
    s_add_u32 s45, s7, {G.PART}
    s_add_u32 s46, s45, 0x1000
    s_add_u32 s47, s44, s7
    """)

def fb_wait(a, P):
    a(f"{P}_fbwait:")
    a("s_and_b32 s92, s90, 1\n s_lshl_b32 s92, s92, 2\n s_add_u32 s92, s92, s55\n s_add_u32 s93, s91, 1")
    G.wait_scalar(a, G.WS, "s92", "s93", "s7", vT, 1)
    a(f"s_branch {P}_fbok")

def startup(a, opt):
    WS, DBG, WSTR = G.WS, G.DBG, G.WSTR
    a("L_chain:")
    G.srd(a, 20, G.P_MEM0, 8192); G.srd(a, 24, G.P_WQ, 0x400000); G.srd(a, 28, G.P_WK, 0x400000)
    G.srd(a, 32, G.P_WV, 0x400000); G.srd(a, 36, G.P_WO, 0x400000)
    G.make_sel(a, SEL, 20)
    a(f"""
    v_mov_b32 v22, v0
    v_lshlrev_b32 v0, 4, v0
    v_and_b32 v24, 1, v2
    v_lshrrev_b32 v25, 2, v2
    v_and_b32 v26, 3, v2
    v_lshrrev_b32 v28, 1, v2
    v_and_b32 v29, 1, v1
    v_lshrrev_b32 v23, 1, v1
    ; weight voffsets: rows 128w + 32(g/2) + 8(g%2), column bytes 256h + 16n
    v_lshlrev_b32 v27, 18, v23
    v_lshl_add_u32 v27, v29, 16, v27
    v_lshl_add_u32 v27, v2, 4, v27
    s_lshl_b32 s90, s4, 8
    s_lshl_b32 s91, s3, 20
    s_add_u32 s90, s90, s91
    v_add_u32 v30, s90, v27
    v_add_u32 v31, 8192, v30
    ; LDS scatter bases. q,k (v16): region swap(n/4), slot (w - n/4)%4 ; v (v17): region n/4, slot (w - 2 - n/8)%4
    v_lshlrev_b32 v18, 8, v1
    v_lshl_add_u32 v18, v26, 6, v18
    v_add_u32 v18, {L_W}, v18
    s_mov_b32 s90, {WSTR}
    v_lshrrev_b32 v27, 1, v25
    v_and_b32 v19, 1, v25
    v_lshl_add_u32 v19, v19, 1, v27
    v_mul_lo_u32 v16, v19, s90
    v_sub_u32 v19, s3, v25
    v_and_b32 v19, 3, v19
    v_lshl_add_u32 v16, v19, 12, v16
    v_add_u32 v16, v16, v18
    v_mul_lo_u32 v17, v25, s90
    v_sub_u32 v19, s3, v27
    v_add_u32 v19, 2, v19
    v_and_b32 v19, 3, v19
    v_lshl_add_u32 v17, v19, 12, v17
    v_add_u32 v17, v17, v18
    ; v18 = own pair of regions (2(w%2)), v19 = own q/k region
    s_and_b32 s91, s3, 1
    s_mul_i32 s91, s91, {2*WSTR}
    s_add_u32 s91, s91, {L_W}
    v_add_u32 v18, s91, {vLin}
    s_lshr_b32 s7, s3, 1
    s_mul_i32 s7, s7, {WSTR}
    v_add_u32 v19, s7, v18
    ; Wo voffset (v11): rows 16(g/2)+4(g%2), column bytes 256w + 16n, head base
    v_lshlrev_b32 v27, 14, v23
    v_lshl_add_u32 v27, v29, 12, v27
    v_lshl_add_u32 v27, v2, 4, v27
    s_lshl_b32 s90, s4, 17
    s_lshl_b32 s91, s3, 8
    s_add_u32 s90, s90, s91
    v_add_u32 v11, s90, v27
    v_mov_b32 v20, 0x4444
    v_mov_b32 v21, 0xeeee
    v_cmp_eq_u32 vcc, 0, v24
    v_cndmask_b32 {vIdx}, v21, v20, vcc
    s_lshl_b32 s86, s3, 10
    s_add_u32 s90, s86, {L_MX}
    v_add_u32 {vMem0}, s90, {vLin}
    ; q write: QK + w*QS + (n/4)*128 + 2g*16 + (n%4)*4
    v_lshlrev_b32 {vQw}, 7, v25
    v_lshl_add_u32 {vQw}, v1, 5, {vQw}
    v_lshl_add_u32 {vQw}, v26, 2, {vQw}
    s_mul_i32 s90, s3, {QS}
    s_add_u32 s90, s90, {L_QK}
    v_add_u32 {vQw}, s90, {vQw}
    ; v27 = g*128 + (2(n/4) + n%2)*16 ; lanes n%4 < 2 carry keys, the others queries
    v_lshl_add_u32 v27, v25, 1, v24
    v_lshlrev_b32 v27, 4, v27
    v_lshl_add_u32 v27, v1, 7, v27
    v_cmp_gt_u32 vcc, 2, v26
    v_mov_b32 v20, {L_QK}
    v_mov_b32 v21, {L_QK + 640}
    v_cndmask_b32 v20, v20, v21, vcc
    v_add_u32 {vQr}, v20, v27
    s_add_u32 s90, s86, {L_OB}
    v_add_u32 v20, s90, v27
    v_add_u32 v21, 512, v20
    v_cndmask_b32 {vOw}, v20, v21, vcc
    ; o read: OB + (2g + n%2)*128 + (n/2)*16
    v_lshl_add_u32 v27, v1, 1, v24
    v_lshlrev_b32 v27, 7, v27
    v_lshl_add_u32 v27, v28, 4, v27
    v_add_u32 {vOr}, {L_OB}, v27
    ; partial store: (8w + 2(n/4) + g/2)*8192 + (g%2)*2048 + 64h + 16(n%4)
    v_lshl_add_u32 v27, v25, 1, v23
    v_lshlrev_b32 v27, 13, v27
    v_lshl_add_u32 v27, v29, 11, v27
    v_lshl_add_u32 v27, v26, 4, v27
    s_lshl_b32 s90, s3, 16
    s_lshl_b32 s91, s4, 6
    s_add_u32 s90, s90, s91
    v_add_u32 {vPst}, s90, v27
    ; mem0 voffset (v25): (n/2)*1024 + 2*(128w + 32g + 16(n%2))
    v_lshlrev_b32 v25, 10, v28
    v_lshl_add_u32 v25, v1, 6, v25
    v_lshl_add_u32 v25, v24, 5, v25
    s_lshl_b32 s91, s3, 8
    v_add_u32 v25, s91, v25
    ; key image read (v24): QK + 640 + (2(w%2) + g/2)*QS + (lane%32)*16
    s_and_b32 s91, s3, 1
    s_mul_i32 s91, s91, {2*QS}
    s_add_u32 s91, s91, {L_QK + 640}
    v_mul_u32_u24 v24, {QS}, v23
    v_and_b32 v27, 31, v22
    v_lshl_add_u32 v24, v27, 4, v24
    v_add_u32 v24, s91, v24
    ; publish: (w/2)*4096 + h*128 + (w%2)*64 + g*32 + n*8   (lanes g<2, n<4)
    s_lshr_b32 s90, s3, 1
    s_lshl_b32 s90, s90, 12
    s_lshl_b32 s91, s4, 7
    s_add_u32 s90, s90, s91
    s_and_b32 s91, s3, 1
    s_lshl_b32 s91, s91, 6
    s_add_u32 s90, s90, s91
    v_lshlrev_b32 v27, 5, v29
    v_lshl_add_u32 v27, v26, 3, v27
    v_add_u32 {vPub}, s90, v27
    s_mov_b32 s58, 0x000f000f
    s_mov_b32 s59, 0
    s_lshl_b32 s44, s4, 2
    s_add_u32 s44, s44, s3
    s_lshl_b32 s44, s44, 11
    s_add_u32 s44, s44, {G.PART}
    s_lshl_b32 s55, s4, 7
    s_lshl_b32 s54, s3, 2
    s_add_u32 s54, s54, s55
    s_add_u32 s54, s54, {G.FLG_FH}
    s_add_u32 s55, s55, {G.FLG_FB}
    """)
    for u in range(1, 4):
        a(f"s_add_u32 s7, s3, {u}\n s_and_b32 s7, s7, 3\n s_lshl_b32 s7, s7, 10\n s_add_u32 s{80+u}, s7, {L_MX}")
    zero(a, 20, 24, "-1")
    for sl in range(2):
        a(f"s_add_u32 s7, s44, {sl*0x40000}")
        for o in (0, 1024): a(f"buffer_store_dwordx4 v[20:23], {vLin}, {WS}, s7 offen offset:{o} sc1")
    a("s_mov_b64 exec, s[58:59]")
    for sl in range(4):
        a(f"s_mov_b32 s7, {G.MEMB + sl*8192}\n buffer_store_dwordx2 v[20:21], {vPub}, {WS}, s7 offen sc1")
    a("s_mov_b64 exec, -1")
    G.flag_store(a, "s54", "0", "v27")
    def job(srdn, vdst, done):
        return dict(kind='lds', srd=srdn, stride=8192, v0="v30", v1="v31", vdst=vdst,
                    row=lambda u: 64*((u//4) % 2) + 16*(u % 2) + 4*(u//8) + 2*((u//2) % 2),
                    imm=lambda grp, c: (grp//2)*16384 + (c % 2)*2048 + (grp % 2)*1024 + (c//2)*16, done=done)
    def pick(fa, fv, after=None):
        def done():
            lv, le = a.label("PV"), a.label("PE")
            a(f"s_waitcnt lgkmcnt(0)\n s_barrier\n s_cmp_ge_u32 s3, 2\n s_cbranch_scc1 {lv}")
            fa()
            a(f"s_branch {le}\n{lv}:")
            fv()
            a(f"{le}:\n s_waitcnt lgkmcnt(0)\n s_barrier")
            if after: after()
        return done
    def rd(src, dst, off=0):
        return lambda: [a(f"ds_read_b128 {dst(f)}, {src} offset:{off + f*1024}") for f in range(32)]
    nothing = lambda: None
    def wo_group(grp):
        if grp == 2: a(f"buffer_load_dwordx2 v[30:31], off, {WS}, s55 sc1")
        lv, le = a.label("OV"), a.label("OE")
        a(f"s_cmp_ge_u32 s3, 2\n s_cbranch_scc1 {lv}")
        for c in range(6):
            for r in range(4): a(f"v_accvgpr_write_b32 a{128 + (c*2 + grp//2)*8 + (grp % 2)*4 + r}, v{32 + 4*c + r}")
        for c in (6, 7): a(f"ds_write_b128 {vMem0}, {vr(32 + 4*c)} offset:{L_AW + (((c - 6)*2 + grp//2)*2 + grp % 2)*2048}")
        a(f"s_branch {le}\n{lv}:")
        for c in range(8): a(f"ds_write_b128 v18, {vr(32 + 4*c)} offset:{(c*2 + grp//2)*2048 + (grp % 2)*1024}")
        a(f"{le}:")
    def early():
        for hf in range(2):
            for c in range(2):
                a(f"buffer_load_dwordx2 {vr((20, 26)[hf] + 2*c, 2)}, v25, {G.OUT}, 0 offen offset:{8*hf + 16*c}")
        a(f"buffer_load_dword v16, off, {DBG}, 0 offset:{G.D_GO} sc1\n buffer_load_dword v17, off, {DBG}, 0 sc1")
    kd = G.lds_to_regs(a, "v19", lambda f: ar(4*f))
    jobs = [dict(job(G.W2, "v16", kd), first=lambda: G.init_arrive(a, "v27")),
            job(G.W1, "v16", G.lds_to_regs(a, "v19", lambda f: vr(128 + 4*f))),
            job(G.W3, "v17", pick(nothing, rd("v18", lambda f: ar(128 + 4*f)), early)),
            dict(kind='lds', srd=G.W4, stride=1024, v0="v11", row=lambda u: 64*(u//8) + 32*((u//4) % 2) + 8*(u % 2) + 2*((u//2) % 2), group=wo_group)]
    G.load_stream(a, jobs, tmp=64, depth=8, out=32)
    a("s_waitcnt vmcnt(0)")
    G.tl(a, opt, 4, "v32")
    a(f"""
    v_mov_b32 v33, v24
    v_readfirstlane_b32 s7, v16
    v_readfirstlane_b32 s43, v17
    v_mov_b64 {vr(LS, 2)}, v[26:27]
    v_mov_b64 {vr(LS+2, 2)}, v[28:29]
    v_mov_b64 v[24:25], v[20:21]
    v_mov_b64 v[26:27], v[22:23]
    s_cmp_ge_u32 s7, 1
    s_cbranch_scc1 L_chain_up
    """)
    G.wait_go(a, vT, 2)
    G.wait_scalar(a, DBG, 0, 0, "s43", vT, 2)
    a(f"""
    buffer_load_dwordx2 v[30:31], off, {WS}, s55 sc1
    s_waitcnt vmcnt(0)
    L_chain_up:
    v_mov_b64 {vr(FB, 2)}, v[30:31]
    s_lshl_b32 s52, s4, 14
    s_add_u32 s52, s52, {G.KXV - 0x80000}
    s_and_b32 s7, s3, 1
    s_lshl_b32 s95, s7, 12
    s_add_u32 s95, s95, 0x2000
    s_mov_b32 s56, 0
    s_lshl_b32 s53, s4, 12
    s_add_u32 s53, s53, {G.KVM - 0x20000}
    s_lshl_b32 s7, s7, 10
    s_add_u32 s53, s53, s7
    """)
    a(f"""
    s_mov_b32 s50, {G.MEMB}
    s_mov_b32 s80, 0
    s_mov_b32 s78, {G.f32bits(float(opt.get("thr", 0)))}
    s_mov_b64 s[88:89], 0
    s_mov_b32 s48, {G.MEMB + 3*8192}
    s_waitcnt lgkmcnt(0)
    s_mov_b32 s6, -2
    """)
    next_seg(a, "C1")
    for f in range(8): a(kx_load(f, vr(KX + 4*f)))
    a(f"v_lshlrev_b32 v56, 2, {vLin}\n buffer_load_dword v56, v56, {WS}, s56 offen sc1\n s_mov_b32 s6, -1")
    next_seg(a, "C0")
    a("s_waitcnt vmcnt(0)")
    G.tl(a, opt, 2, "v56", True)
    a("s_mov_b32 s6, 0")
    ring_next(a)
    addr_prep(a)
    if opt.get("prof"):
        for k in range(20, 32): a(f"s_mov_b32 s{k}, 0")
    a("s_cmp_ge_u32 s3, 2\n s_cbranch_scc1 L_vstart")
    for r in range(4): a(f"v_mov_b32 v{ONES+r}, 0x3f803f80")
    zero(a, ACQ, ACQ + 16)
    a(f"v_mov_b32 {vKa}, v33")
    a(f"v_and_b32 {vQq}, 32, {vLin}\n v_mul_u32_u24 {vQq}, 20, {vQq}\n v_add_u32 {vQq}, {vQq}, {vQr}\n v_subrev_u32 {vQq}, 640, {vQq}")
    a(f"v_and_b32 {vInf}, 32, {vLin}\n v_lshlrev_b32 {vInf}, 26, {vInf}\n v_or_b32 {vInf}, 0x7f800000, {vInf}")
    a.fence()
    a("s_cmp_lt_u32 s43, 32\n s_cbranch_scc1 SA_loop\n s_branch FA_loop\nL_vstart:")
    a(f"v_mov_b32 {vW}, v18\n v_mov_b32 {vKp}, v33\n v_subrev_u32 v10, 2048, {vMem0}")
    zero(a, 16, 20, "-1")
    for j in range(5):
        for h in range(2): a(wq_half(j, h))
    zero(a, ACQ, ACQ + 32)
    a("s_waitcnt lgkmcnt(0)")
    a.fence()
    a("s_cmp_lt_u32 s43, 32\n s_cbranch_scc1 SV_loop\n s_branch FV_loop")
    fb_wait(a, "C0")
    fb_wait(a, "C1")

def loop(a, opt, P, st, A):
    WS = G.WS
    prof = opt.get("prof"); free = opt.get("free")
    cnt = [0]
    sel = opt.get("stamps")
    dflt = ("top", "end", "15", "31", "sc", "pv", "wo", "w9", "h1")
    def stamp(k):
        if prof == 1 and (k in ("top", "end") or str(k) in (sel or dflt)):
            i = cnt[0]; cnt[0] += 1
            assert i < 9
            a(f"s_mem{'real' if opt.get('trace') else ''}time s[{60+2*i}:{61+2*i}]")
    tk = {}
    fill = {}
    def F(i, x, cls=None):
        if cls is None: cls = 1 if (isinstance(x, str) and x.startswith("v_")) else 0
        fill.setdefault(i, []).append((cls, x if callable(x) else (lambda: a(x))))
    def D(i, key, text, cls=0): F(i, lambda: tk.__setitem__(key, a.ds(text)), cls)
    def W(i, key): F(i, lambda: a.wait_ds(tk[key]))
    def Z(i, lo, hi, val="0"):
        for r in range(lo, hi, 2): F(i, f"v_mov_b64 {vr(r, 2)}, {val}")
    def run(i):
        for cls, f in sorted(fill.pop(i, []), key=lambda e: e[0]): f()
    def mem_rd(i, tau): D(i, ("m", tau), f"ds_read_b128 {vr(MEMA + 4*tau)}, v{LS + 4*(tau % 4)} offset:{4096*(tau//4)}")
    nw = opt.get("nw", 0x60)
    val = opt.get("val", 1)
    def bar(i, bit=0):
        if not nw >> bit & 1: W(i, "wr")
        F(i, "s_barrier")
    def add(r): return f"v_add_f32 v{r}, v{r}, v{r+1}"
    def cvt(d, x, y): return f"v_cvt_pk_bf16_f32 v{d}, v{x}, v{y}"
    def smv(tau, t4):
        j = 2*tau + t4 % 2
        def emit():
            if t4 >= 2 and j >= 5: a.wait_ds(tk[("w", j)])
            a(f"{SM} {vr(ACV + 4*t4)}, {vr(MEMA + 4*tau)}, {ar(128 + j*8, 8) if t4 < 2 else vr(QBUF[j % 5], 8)}, {vIdx}")
            if pend:
                jp = pend.pop(); tk[("w", jp)] = a.ds(wq_half(jp, 1))
            if t4 >= 2 and j + 5 < 16:
                a.ds(wq_half(j + 5, 0)); pend.append(j + 5)
        return emit
    pend = []
    a(f"{P}_loop:")
    a.drop = tuple(opt.get("drop", ()))
    stamp("top")
    seq = [(m, tau, T) for tau in range(4) for T in range(2) for m in "qk"]
    ql = opt.get("ql", 1)
    if ql: seq += [(m, tau, T) for m in "qk" for tau in range(4, 8) for T in range(2)]
    else:
        seq += [(m, 4, T) for m in "qk" for T in range(2)]
        seq += [(m, tau, T) for m in "qk" for tau in range(5, 8) for T in range(2)]
    qpos = {2*t + T: i for i, (m, t, T) in enumerate(seq) if m == "q"}
    lc = opt.get("lc", 10); b2 = lc + opt.get("lb", 5)
    assert b2 <= 15 + 1
    lg = opt.get("lg", 2)
    lload = f"buffer_load_dwordx4 {vr(LS)}, {vLin}, {WS}, s50 offen sc1"
    F(lg, "s_mov_b64 exec, s[88:89]")
    F(lg, lambda: tk.__setitem__("L", a.vm(lload)))
    F(lg, "s_mov_b64 exec, -1")
    b1 = opt.get("b1", 3)
    bar(b1, 1)
    sp = opt.get("sp", 16)
    for u in range(1, 4): mem_rd(b1, u)
    def M_(i, key, text): F(i, lambda: tk.__setitem__(key, a.vm(text)))
    if A:
        xp = [int(p) for p in opt.get("xp", (3, 3, 3, 3, 5, 6, 7, 8, 9, 11, 12, 13, 14))]
        ta = opt.get("ta", 0)
        F(1, f"v_lshlrev_b32 {vJunk}, {3 if ta else 2}, {vLin}")
        if not opt.get("nopf"):
            for f in range(4): M_(xp[f], "vx", vx_load(f))
            F(xp[4], f"buffer_load_dword {vJunk}, {vJunk}, {WS}, {'s94' if ta else 's56'} offen sc1")
            for f in range(8): F(xp[5 + f], kx_load(f, ar(NK + 4*f)))
        F(sp, f"buffer_load_dwordx2 {vr(FB, 2)}, off, {WS}, s55 sc1")
        kvst = [f"buffer_store_dwordx4 {vr(120 + 4*k)}, {vLin}, {WS}, s53 offen offset:{2048*k} sc1" for k in range(2)]
        flst = f"s_mov_b64 exec, 1\n buffer_store_dword {vT}, off, {WS}, s54 sc1\n s_mov_b64 exec, -1"
        ks = opt.get("ks", 1)
        assert sp > lc + 3
        F(sp + 1, f"v_mov_b32 {vT}, s80")
        if not ks:
            for k in range(2): F(sp + 4 + k*opt.get("k2", 1), kvst[k])
            F(sp + 2, flst)
    else:
        nv0, nv1, nv2 = opt.get("nv0", 4), opt.get("nv1", 0), opt.get("nv2", 2)
        vs = [(tau, t4) for tau in range(6) for t4 in (2, 0, 3, 1)] + [(6, 2), (6, 0), (6, 3), (7, 2), (7, 3), (7, 0), (6, 1), (7, 1)]
        for k in range(nv0): F(3, smv(*vs.pop(0)))
        for k in range(nv1): F(lc, smv(*vs.pop(0)))
        for k in range(opt.get("nvb", 0)): F(b2, smv(*vs.pop(0)))
        for k in range(nv2): F(qpos[10] - 1, smv(*vs.pop(0)))
        for k in range(opt.get("nv3", 0)): F(opt.get("q3", 31), smv(*vs.pop(0)))
    W(3, ("m", 1)); W(7, ("m", 3))
    F(5, lambda: busy(a, opt.get("xe", 0)))
    F(lc, lambda: a.wait_vm(tk["L"]))
    D(lc, "wr", f"ds_write_b128 {vMem0}, {vr(LS)} offset:4096")
    F(lc+1, f"v_max3_u32 {vT}, v{LS}, v{LS+1}, v{LS+2}")
    F(lc+2, f"v_max_u32 {vT}, {vT}, v{LS+3}")
    F(lc+3, f"v_cmp_eq_u32 vcc, -1, {'v0' if free else vT}")
    assert lc + 3 < b2 or free
    F(min(b2, 15), f"s_cbranch_vccnz {P}_lretry\n{P}_lok:")
    bar(b2, 2); mem_rd(b2, 5); mem_rd(b2+1, 6); mem_rd(b2+1, 7)
    if A and val and opt.get("pa", 1):
        F(lc + 4, "v_mov_b64 v[24:25], -1"); F(b2 + 1, "v_mov_b64 v[26:27], -1")
        D(20, "_", f"ds_write_b128 {vMem0}, v[24:27]"); D(22, "_", f"ds_write_b128 {vMem0}, v[24:27] offset:2048")
    if not A and val and not opt.get("pa", 1):
        pp = opt.get("pp", 20)
        D(pp, "_", f"ds_write_b128 v10, v[16:19]"); D(pp + opt.get("pq", 2), "_", f"ds_write_b128 v10, v[16:19] offset:2048")
    W(qpos[10] - 1, ("m", 5)); W(qpos[12] - 1, ("m", 7))
    F(22, "s_add_u32 s49, s48, s86\n s_add_u32 s50, s49, 0x1000")
    F(21, "s_mov_b64 s[88:89], -1")
    qe = qpos[15]
    F(qe+1, add(56)); F(qe+1, add(58)); F(qe+2, add(60)); F(qe+2, add(62))
    F(qe+2, cvt(56, 56, 60)); F(qe+2, cvt(57, 58, 62))
    D(qe+3, "wr", f"ds_write2_b32 {vQw}, v56, v57 offset0:0 offset1:4")
    q3 = opt.get("q3", 31)
    bar(q3, 3)
    if A:
        for t in range(4): D(min(q3 + (t + 1)//2, 31), ("q", t), f"ds_read_b128 {vr(24 + 4*t)}, {vQq} offset:{t*QS}")
    tk["wr"] = a.ds(f"ds_write_b128 {vMem0}, {vr(MEMA)}")
    for i, (m, tau, T) in enumerate(seq):
        j = 2*tau + T
        B = vr(128 + j*8, 8) if m == "q" else ar(j*8, 8)
        a(f"{SM} {vr((ACQ if m == 'q' else ACK) + 4*T)}, {vr(MEMA + 4*tau)}, {B}, {vIdx}")
        run(i)
        stamp(i)
    assert not fill, fill.keys()
    kfold = [add(64), add(66), add(68), add(70), cvt(64, 64, 68), cvt(65, 66, 70)]
    kwr = f"ds_write2_b32 {vQw}, v64, v65 offset0:160 offset1:164"
    inbox = f"buffer_load_dwordx4 v[28:31], {vLin}, {WS}, s47 offen sc1\n buffer_load_dwordx4 v[32:35], {vLin}, {WS}, s47 offen offset:1024 sc1"
    if A:
        QB, KB, X0, X1, M, t0 = 24, 40, 56, 60, 120, 124
        PX, PM, PXB, PMB, VM, O, Lr, PKO = 48, 68, 52, 64, 24, 28, 44, 120
        WA, OA, PK = [56, 60, 28, 32, 24, 36, 40, 44], 120, [64, 68]
        xl = []
        tq = [tk[("q", t)] for t in range(4)]
        kf = opt.get("kf", 1)
        if kf:
            for x in kfold: a(x)
            tk["wr"] = a.ds(kwr)
        else:
            a(kfold[0]); a(kfold[1])
            for x in kfold[2:]: F(0, x)
            D(1, "wr", kwr)
        b4 = opt.get("b4", 4)
        ml = opt.get("ml", 0)
        if not ml:
            bar(b4, 4)
            for t in range(4): D(min(b4 + (t + 1)//2, 7), ("k", t), f"ds_read_b128 {vr(KB + 4*t)}, {vQr} offset:{t*QS}")
        if ks:
            F(1, kvst[1]); F(3, kvst[0]); F(7, flst)
        F(2, "v_mov_b32 v68, 0\n v_mov_b32 v70, 0")
        F(0, "v_mov_b32 v65, 0\n v_mov_b32 v67, 0")
        F(6, f"v_max3_f32 v{t0}, v{X0}, v{X0+1}, v{X0+2}")
        for p in (7, 8, 9, 10, 11, 11)[:opt.get("x1", 6)]:
            if xl: F(p, xl.pop(0))
        awr = [f"ds_read_b128 {vr(KX + 4*k)}, {vMem0} offset:{L_AW + k*2048}" for k in range(8)]
        aw = opt.get("aw", 2)
        if not aw:
            for p in (8, 9, 10, 11): F(p, awr.pop(0))
        chain = [f"v_max3_f32 v{t0+1}, v{X0+3}, v{X1}, v{X1+1}", f"v_max3_f32 v{t0}, v{t0}, v{X1+2}, v{X1+3}",
                 f"v_max_f32 v{t0+2}, v{t0}, v{t0+1}", f"v_max_f32 v{t0+3}, v{t0}, v{t0+1}"]
        ex = f"s_cmp_eq_u32 s6, 63\n s_cbranch_scc1 L_chain_end"
        if not ml:
            F(9, chain[0]); F(9, chain[1]); F(10, chain[2]); F(10, chain[3]); chain = []
            F(11, ex)
            for t in range(4): W(7 + t, ("k", t))
        if not opt.get("nopf"): F(5, lambda: a.wait_vm(tk["vx"]))
        for t in range(1, 4): F(t - 1, lambda t=t: a.wait_ds(tq[t]))
        def sc(n):
            t = n % 4
            d, Ao, Bo = ((X0, KX + 4*t, QB + 4*t), (X1, KX + 16 + 4*t, QB + 4*t), (M, KB + 4*t, QB + 4*t))[n // 4]
            return f"{MF} {vr(d)}, {vr(Ao)}, {vr(Bo)}, {vr(d) if t else '0'}"
        for n in range(8 if ml else 12):
            if n == 0: a.wait_ds(tq[0])
            a(sc(n))
            run(n)
            stamp("s%d" % n)
        stamp("sc")
        regs = [X0, X0+1, X0+2, X0+3, X1, X1+1, X1+2, X1+3]
        if ml: PX, PXB = 72, 76
        sm = chain + [f"v_permlane16_swap_b32 v{t0+2}, v{t0+3}", f"v_max_f32 v{t0}, v{t0+2}, v{t0+3}", f"v_max_f32 v{t0+1}, v{t0+2}, v{t0+3}"]
        if not ml: sm += ["v_mov_b64 v[40:41], 0", "v_mov_b64 v[42:43], 0"]
        sm += [f"v_permlane32_swap_b32 v{t0}, v{t0+1}", f"v_max3_f32 v{t0}, v{t0}, v{t0+1}, {vInf}", f"v_mul_f32 v{t0}, s42, v{t0}"]
        sm += [f"v_fma_f32 v{r}, v{r}, s42, -v{t0}" for r in regs]
        for k, r in enumerate(regs):
            sm.append(f"v_exp_f32 v{r}, v{r}")
            if k >= 2 and k % 2 == 0: sm.append(cvt(PX + k//2 - 1, regs[k-2], regs[k-1]))
        mb, m0 = opt.get("mb", 0), opt.get("m0", 12)
        for n, x in enumerate(sm):
            if ml and n == mb:
                a.wait_ds(tk["wr"]); a("s_barrier"); a(ex)
                tkk = [a.ds(f"ds_read_b128 {vr(KB + 4*t)}, {vQr} offset:{t*QS}") for t in range(4)]
            if ml and n >= m0 and (n - m0) % 2 == 0 and (n - m0) // 2 < 4:
                t = (n - m0) // 2
                a.wait_ds(tkk[min(t + 1, 3) if t == 0 else 3]); a(sc(8 + t))
            a(x)
        stamp("pv")
        busy(a, opt.get("xs", 0))
        a(f"v_fma_f32 v{M}, v{M}, s42, -v{t0}")
        a(cvt(PX + 3, regs[6], regs[7]))
        a(f"v_fma_f32 v{M+1}, v{M+1}, s42, -v{t0}\n v_exp_f32 v{M+2}, v{M}")
        b5 = opt.get("b5", 4)
        F(b5, "s_barrier")
        D(b5, "vm", f"ds_read_b128 {vr(VM)}, {vMem0} offset:2048")
        def sw(d, x): return f"v_mov_b32_dpp v{d}, v{x} quad_perm:[2,3,0,1] row_mask:0xf bank_mask:0xf"
        mpack = [cvt(64, M+2, M+3), cvt(69, M+2, M+3), sw(66, 64), sw(71, 64)]
        F(0, sw(PXB, PX)); F(0, sw(PXB+1, PX+1)); F(1, sw(PXB+2, PX+2)); F(1, sw(PXB+3, PX+3))
        F(2, f"v_exp_f32 v{M+3}, v{M+1}"); F(2, f"v_max_f32 v{t0+1}, v{M}, v{M+1}")
        F(3, f"v_cmp_lt_f32 s[90:91], s78, v{t0+1}"); F(3, mpack[0]); F(3, mpack[1])
        F(4, mpack[2]); F(4, mpack[3])
        F(4, f"s_cmp_lg_u64 s[90:91], 0\n s_cbranch_scc1 {P}_mfix\n{P}_mok:", 2)
        if not aw:
            for p in (0, 1, 6, 7): F(p, awr.pop(0))
        pv = [f"{MF} {vr(Lr)}, {vr(ONES)}, {vr(PX)}, 0"]
        pv += [f"{MF} {vr(O + 4*(f % 2))}, {vr(VX + 4*f)}, {vr((PX, PXB)[f//2])}, {vr(O + 4*(f % 2)) if f//2 else '0'}" for f in range(4)]
        pv += [f"{MF16} {vr(Lr)}, {vr(ONES, 2)}, v[64:65], {vr(Lr)}"]
        pv += [f"{MF} {vr(O + 4*T)}, {vr(VM)}, {vr(64 + 4*T)}, {vr(O + 4*T)}" for T in range(2)]
        Z(5, 56, 64)
        F(5, lambda: a.wait_ds(tk["vm"]), 2)
        if val:
            F(6, f"v_max3_u32 {vT}, v{VM}, v{VM+1}, v{VM+2}"); F(6, f"v_max_u32 {vT}, {vT}, v{VM+3}")
            F(7, f"v_cmp_eq_u32 vcc, -1, {vT}")
        F(7, f"v_add_f32_dpp v{t0}, v{Lr}, v{Lr} quad_perm:[2,3,0,1] row_mask:0xf bank_mask:0xf")
        F(7, f"v_rcp_f32 v{t0}, v{t0}")
        if val: F(7, f"s_cbranch_vccnz {P}_vredo\n{P}_vok:", 2)
        for n, x in enumerate(pv):
            a(x); run(n)
        for r in range(4): a(f"v_mul_f32 v{O+r}, v{O+r}, v{t0}")
        stamp("p1")
        for r in (4, 6): a(f"v_pk_mul_f32 {vr(O + r, 2)}, {vr(O + r, 2)}, {vr(t0, 2)} op_sel_hi:[1,0]")
        for i in range(4): a(cvt(PKO + i, O + i, O + 4 + i))
        if opt.get("tst"): a("s_barrier\n s_nop 15\n s_nop 15\n s_nop 15")
        a(f"ds_write_b128 {vOw}, {vr(PKO)}")
        if not nw >> 6 & 1: (zero(a, 24, 40), zero(a, 40 if opt.get('ml', 0) else 44, 48))
        stamp("p2")
        wo_reg = lambda j: ar(128 + j*8, 8) if j < 12 else vr(KX + (j - 12)*8, 8)
    else:
        WB = [88, 96, 104, 112, 120, 16, 56, 64]
        WA, OA, PK = [28, 32, 36, 40, 44, 48, 52, 72], 76, [84, 24]
        def woh(j, h): return f"ds_read_b128 {vr(WB[j % 8] + 4*h)}, {vW} offset:{j*2048 + 1024*h}"
        nv = len(vs); sh = 32 - nv
        if opt.get("fs", 0):
            for n, x in enumerate(kfold): F(n, x)
            D(6, "wr", kwr)
        else:
            F(0, kfold[0]); F(0, kfold[1])
            for x in kfold[2:]: F(1, x)
            D(2, "wr", kwr)
        v4 = opt.get("v4", 8)
        bar(v4, 4)
        wl = [(k // 2, k % 2) for k in range(16)]
        if opt.get("pw", 1):
            pos = {2*t + t4 % 2: n for n, (t, t4) in enumerate(vs) if t4 >= 2}
            free_at = {5: 0, 6: 3, 1: pos[11], 2: pos[12], 3: pos[13], 4: pos[14]}
            slot = pos[10] + 2
            for jj in (5, 6, 1, 2, 3, 4):
                for hh in range(2):
                    slot = max(slot, free_at[jj])
                    if slot < nv - 1:
                        D(slot, "_", woh(jj, hh)); wl.remove((jj, hh)); slot += 1
        zl = [(r, "0") for r in range(28, 52, 2)]
        for i in range(3, nv - 2):
            if opt.get("zv", 0) and zl and i + sh > (zl[0][0] - MEMA) // 4 * 4 + 3:
                r, val = zl.pop(0); F(i, f"v_mov_b64 {vr(r, 2)}, {val}")
        F(nv-3, add(80)); F(nv-3, add(82)); F(nv-2, add(84)); F(nv-2, add(86))
        for x in (cvt(KV+6, 80, 82), cvt(KV+7, 84, 86), add(72), add(74), cvt(KV+4, 72, 74)): F(nv-1, x)
        for n, (tau, t4) in enumerate(vs):
            if n + 1 < nv and vs[n+1][1] >= 2 and 2*vs[n+1][0] + vs[n+1][1] % 2 >= 5: W(n, ("w", 2*vs[n+1][0] + vs[n+1][1] % 2))
            smv(tau, t4)(); run(n); stamp("v%d" % n)
        assert not fill and not pend
        stamp("sc")
        busy(a, opt.get("xw", 0))
        for x in (add(76), add(78), cvt(KV+5, 76, 78)): a(x)
        if opt.get("tst"): a(f"s_cmp_eq_u32 s6, 63\n s_cbranch_scc1 L_chain_done\n s_barrier\n s_nop 15\n s_nop 15\n s_nop 15")
        tk["wr"] = a.ds(f"ds_write_b128 {vMem0}, {vr(KV+4)}")
        a(f"s_cmp_eq_u32 s6, 63\n s_cbranch_scc1 L_chain_done")
        if nw >> 5 & 1 and not opt.get("tst"): a("s_barrier")
        if not nw >> 5 & 1:
            a.wait_ds(tk["wr"]); a("s_barrier")
        stamp("pv")
        zl += [(52, "0"), (54, "0"), (72, "0"), (74, "0")]
        for n, (r, v_) in enumerate(zl):
            a(f"v_mov_b64 {vr(r, 2)}, {v_}")
            if n >= 2 and wl: a(woh(*wl.pop(0)))
        for x in wl: a(woh(*x))
        busy(a, opt.get("bv", 0))
        wo_reg = lambda j: vr(WB[j % 8], 8)
    a("s_nop 0" if (A and opt.get("tst")) else "s_barrier" if (nw >> 6 & 1) else "s_waitcnt lgkmcnt(0)\n s_barrier")
    to = [a.ds(f"ds_read_b128 {vr(OA + 4*t)}, {vOr} offset:{t*1024}") for t in range(2)]
    if A and nw >> 6 & 1: (zero(a, 24, 40), zero(a, 40 if opt.get('ml', 0) else 44, 48))
    busy(a, opt.get("bo2", 0))
    stamp("wo")
    def wf(T, h): return add(WA[T] + 2*h)
    def wpk(T, h): return cvt(PK[T//4] + (T % 4)//2 + 2*h, WA[T] + 2*h, WA[T+1] + 2*h)
    def tag(T, h):
        r = PK[T//4] + (T % 4)//2 + 2*h
        return f"v_and_or_b32 v{r}, v{r}, -2, s97"
    def wst(hf): return f"buffer_store_dwordx4 {vr(PK[hf])}, {vPst}, {WS}, s{45+hf} offen {st}"
    post = {3: [wf(0, 0)], 4: [wf(0, 1)], 5: [wf(1, 0), wf(1, 1)], 6: [wpk(0, 0), wpk(0, 1)],
            7: [wf(2, 0), wf(2, 1)], 8: [tag(0, 0), tag(0, 1)], 9: [wf(3, 0), wf(3, 1), wpk(2, 0), wpk(2, 1), tag(2, 0), tag(2, 1)],
            11: [wf(4, 0)], 12: [wf(4, 1)], 13: [wf(5, 0), wf(5, 1)], 14: [wpk(4, 0), wpk(4, 1)], 15: [wf(6, 0), wf(6, 1), tag(4, 0), tag(4, 1)]}
    for j, xs in post.items():
        for x in xs: F(j, x)
    F(9, wst(0), 2)
    if val:
        F(5, f"v_cmp_u_f32 vcc, v{WA[0]}, v{WA[0]+2}")
        F(8, f"s_cbranch_vccnz {P}_oredo\n{P}_ook:")
    F(0, lambda: a.wait_ds(to[1]))
    if A and aw:
        for k, x in enumerate(awr): D(k + aw - 1, "aw", x)
        W(11, "aw")
    if not A:
        for j in range(8, 16):
            p0, p1 = [(j - 8 + (j - 8)//2, j - 8 + (j - 7)//2), {8: (0, 1), 9: (2, 3), 10: (4, 5), 11: (6, 7), 12: (8, 8), 13: (9, 9), 14: (10, 10), 15: (11, 11)}[j]][opt.get("vs", 0)]
            D(p0, "_", woh(j, 0), 3 if p0 == 9 else 0); D(p1, ("o", j), woh(j, 1), 3 if p1 == 9 else 0); W(j - 1, ("o", j))
    a.wait_ds(to[0])
    a(f"{P}_wo:")
    for j in range(16):
        T, t = j // 2, j % 2
        a(f"{SM} {vr(WA[T])}, {vr(OA + 4*t)}, {wo_reg(j)}, {vIdx}")
        run(j)
        stamp("w%d" % j)
    if A and opt.get("ein"): a(inbox)
    for x in (wf(7, 0), wf(7, 1), wpk(6, 0), wpk(6, 1), tag(6, 0), tag(6, 1), wst(1)): a(x)
    a.drop = ()
    stamp("h1")
    c1, c2 = opt.get("c1", 2) if A else opt.get("c1v", 3), opt.get("c2", 2) if A else opt.get("c2v", 2)
    RD = LS
    nsp = opt.get("nsp", 0) >> (0 if A else 1) & 1
    work = [lambda: (zero(a, 28, 36, "s[98:99]"), zero(a, 36, 38, "-1"))]
    if A:
        work += [lambda: (a(f"ds_read_b128 v[120:123], {vKa}\n ds_read_b128 v[124:127], {vMem0} offset:2048"), zero(a, 24, 28, "-1")),
                 lambda: zero(a, ACQ, ACQ + 8), lambda: zero(a, ACK, ACK + 8)]
        work += [lambda: busy(a, 2)] * 4
    else:
        for j in range(5): work.append(lambda j=j: (a(wq_half(j, 0)), a(wq_half(j, 1)), zero(a, ACQ + 4*j, ACQ + 4*j + 4)))
        work += [lambda: (zero(a, 24, 28, "-1"), zero(a, ACQ + 20, ACQ + 24)), lambda: (zero(a, ACQ + 24, ACQ + 32), zero(a, 16, 20, "-1"))]
    pm = opt.get("pe", 0x90) if A else opt.get("pl", 0x100)
    for k in range(9):
        if k == 8: busy(a, opt.get("de", 0) if A else opt.get("dl", 8))
        if pm >> k & 1: a(inbox)
        if k < 8: work[k]()
    if A: a("s_waitcnt lgkmcnt(0)")
    a(f"s_mov_b32 s96, 0\n s_cmp_lg_u32 s97, 0\n s_cbranch_scc1 {P}_r11")
    for ph in range(2):
        a(f"{P}_r1{ph}:")
        if free == 1: a("s_waitcnt vmcnt(0)")
        op3 = ("v_or3_b32 {0}, {1}, {2}, {3}", "v_bitop3_b32 {0}, {1}, {2}, {3} bitop3:0x80")[ph]
        for k in range(c1):
            a(op3.format("v45", "v28", "v29", "v30")); a(op3.format("v46", "v31", "v32", "v33")); a(op3.format("v45", "v45", "v34", "v35"))
            a(f"""
            v_bitop3_b32 v45, v45, v46, 1 bitop3:{('0xa8', '0x80')[ph]}
            v_cmp_ne_u32 vcc, {'v45' if free else ph}, v45
            """)
            if not nsp: a(f"{MF} {vr(RD)}, {vr(SEL)}, v[28:31], 0\n {MF} {vr(RD)}, {vr(SEL)}, v[32:35], {vr(RD)}")
            a(f"s_cbranch_vccz {P}_r1ok")
        a(f"s_mov_b64 exec, vcc\n {inbox}\n s_mov_b64 exec, -1")
        if prof: a("s_add_u32 s30, s30, 1")
        G.spin_tail(a, f"{P}_r1{ph}")
    a(f"{P}_r1ok:")
    stamp("r1")
    gath = f"buffer_load_dwordx4 v[24:27], {vLin}, {WS}, s49 offen sc1"
    if nsp: a(f"{MF} {vr(RD)}, {vr(SEL)}, v[28:31], 0\n {MF} {vr(RD)}, {vr(SEL)}, v[32:35], {vr(RD)}")
    else: a("s_nop 5")
    for k in (4, 8):
        for r in range(RD, RD + 4): a(f"v_add_f32_dpp v{r}, v{r}, v{r} row_ror:{k} row_mask:0xf bank_mask:0xf")
    a(cvt(RD, RD, RD+1)); a(cvt(RD+1, RD+2, RD+3))
    busy(a, opt.get("xa", 0) if A else opt.get("xv", 0))
    if not A and opt.get("gx"): a(gath)
    a(f"s_mov_b64 exec, s[58:59]\n buffer_store_dwordx2 {vr(RD, 2)}, {vPub}, {WS}, s48 offen {st}")
    stamp("h2")
    a(f"buffer_store_dwordx2 v[36:37], {vPub}, {WS}, s51 offen {st}\n s_mov_b64 exec, -1")
    if A:
        a("s_waitcnt vmcnt(10)")
        for r in range(16): a(f"v_accvgpr_read_b32 v{KX + r}, a{NK + r}")
    busy(a, opt.get("ge", 0) if A else opt.get("gl", 0))
    a(gath)
    addr_prep(a)
    if A:
        for r in range(16, 32): a(f"v_accvgpr_read_b32 v{KX + r}, a{NK + r}")
        next_seg(a, P)
    else: busy(a, opt.get("gv", 5))
    if opt.get("g2", 3) >> (0 if A else 1) & 1: a(gath)
    a(f"s_mov_b32 s80, s6\n s_add_u32 s6, s6, 1\n s_add_u32 s53, s53, 0x20000\n s_mov_b32 s96, 0\n v_mov_b32 {vT}, 0")
    ring_next(a)
    a("s_waitcnt lgkmcnt(0)")
    stamp("g1")
    a(f"{P}_r2:")
    if free == 1: a("s_waitcnt vmcnt(0)")
    for k in range(c2):
        a(f"v_max3_u32 {vT}, v24, v25, v26\n v_max_u32 {vT}, {vT}, v27\n v_cmp_eq_u32 vcc, -1, {'v0' if free else vT}")
        a(f"s_cbranch_vccz {P}_prof" if prof == 1 else f"s_cbranch_vccz {P}_loop")
    a(f"s_mov_b64 exec, vcc\n {gath}\n s_mov_b64 exec, -1")
    if prof: a("s_add_u32 s31, s31, 1")
    G.spin_tail(a, f"{P}_r2")
    if prof == 1:
        a(f"{P}_prof:")
        stamp("end")
        a("s_waitcnt lgkmcnt(0)")
        if opt.get("trace"):
            assert cnt[0] <= 8
            a("s_lshl_b32 s7, s3, 6\n s_add_u32 s7, s7, s6\n s_lshl_b32 s7, s7, 5\n v_lshrrev_b32 v46, 2, v0\n v_add_u32 v46, s7, v46")
            for k in range(cnt[0]): a(f"v_writelane_b32 v45, s{60+2*k}, {k}")
            a(f"s_mov_b64 exec, 0xff\n ds_write_b32 v46, v45\n s_mov_b64 exec, -1\n s_branch {P}_loop")
        a(f"s_cmp_lt_u32 s6, 5\n s_cbranch_scc1 {P}_loop")
        for k in range(cnt[0] - 1): a(f"s_sub_u32 s7, s{62+2*k}, s{60+2*k}\n s_add_u32 s{20+k}, s{20+k}, s7")
        a(f"s_branch {P}_loop")
    a(f"{P}_lretry:")
    a(f"s_mov_b64 exec, vcc\n buffer_load_dwordx4 {vr(LS)}, {vLin}, {WS}, s50 offen sc1\n s_mov_b64 exec, -1\n s_waitcnt vmcnt(0)")
    if prof: a("s_add_u32 s29, s29, 1")
    a(f"v_max3_u32 {vT}, v{LS}, v{LS+1}, v{LS+2}\n v_max_u32 {vT}, {vT}, v{LS+3}\n v_cmp_eq_u32 vcc, -1, {vT}\n ds_write_b128 {vMem0}, {vr(LS)} offset:4096\n s_waitcnt lgkmcnt(0)\n s_cbranch_vccz {P}_lok")
    G.spin_tail(a, f"{P}_lretry")
    if A: fb_wait(a, P)
    if A:
        q = "quad_perm:[2,3,0,1] row_mask:0xf bank_mask:0xf"
        a(f"""
        {P}_mfix:
        v_max_f32 v{t0+1}, 0, v{t0+1}
        v_mov_b32 v{t0+2}, v{t0+1}
        v_permlane16_swap_b32 v{t0+1}, v{t0+2}
        v_max_f32 v{t0+1}, v{t0+1}, v{t0+2}
        v_mov_b32 v{t0+2}, v{t0+1}
        v_permlane32_swap_b32 v{t0+1}, v{t0+2}
        v_max_f32 v{t0+1}, v{t0+1}, v{t0+2}
        v_max_f32_dpp v{t0+1}, v{t0+1}, v{t0+1} {q}
        v_sub_f32 v{M}, v{M}, v{t0+1}
        v_sub_f32 v{M+1}, v{M+1}, v{t0+1}
        v_sub_f32 v{t0+1}, 0, v{t0+1}
        v_exp_f32 v{M+2}, v{M}
        v_exp_f32 v{M+3}, v{M+1}
        v_exp_f32 v{t0+1}, v{t0+1}
        """)
        for x in mpack: a(x)
        for k, r in enumerate(regs): a(f"v_mul_f32 v{r}, v{r}, v{t0+1}")
        for k in range(4): a(cvt(PX + k, regs[2*k], regs[2*k+1]))
        for k in range(4): a(sw(PXB + k, PX + k))
        for x in pv[:5]: a(x)
        if prof: a("s_add_u32 s26, s26, 64")
        a.fence()
        a(f"s_branch {P}_mok")
    if val:
        def missing(b, n):
            a(f"v_max3_u32 {vT}, v{b}, v{b+1}, v{b+2}")
            for r in range(b + 3, b + n): a(f"v_max_u32 {vT}, {vT}, v{r}")
            a(f"v_cmp_eq_u32 vcc, -1, {vT}")
        if A:
            a(f"{P}_vredo:\n s_mov_b32 s96, 0\n{P}_vr1:\n ds_read_b128 {vr(VM)}, {vMem0} offset:2048\n s_waitcnt lgkmcnt(0)")
            missing(VM, 4)
            a(f"s_cbranch_vccz {P}_vr2")
            G.spin_tail(a, f"{P}_vr1")
            a(f"{P}_vr2:")
            if prof: a("s_add_u32 s28, s28, 64")
            for x in pv[1:5] + pv[6:]: a(x)
            a.fence()
            a(f"s_branch {P}_vok")
        a(f"{P}_oredo:")
        missing(OA, 8)
        a(f"s_cbranch_vccz {P}_ook\n s_mov_b32 s96, 0\n{P}_or1:")
        for t in range(2): a(f"ds_read_b128 {vr(OA + 4*t)}, {vOr} offset:{t*1024}")
        a("s_waitcnt lgkmcnt(0)")
        missing(OA, 8)
        a(f"s_cbranch_vccz {P}_or2")
        G.spin_tail(a, f"{P}_or1")
        a(f"{P}_or2:")
        if prof: a("s_add_u32 s27, s27, 64")
        for T in range(5): zero(a, WA[T], WA[T] + 4)
        if not A:
            for k in range(16): a(woh(k // 2, k % 2))
            a("s_waitcnt lgkmcnt(0)")
        a.fence()
        a(f"s_branch {P}_wo")

def role_chain(a, opt):
    startup(a, opt)
    loop(a, opt, "FA", "", True)
    loop(a, opt, "FV", "", False)
    loop(a, opt, "SA", "sc1", True)
    loop(a, opt, "SV", "sc1", False)
    a(f"L_chain_done:\n ds_read_b128 {vr(KV)}, {vKp}\n s_add_u32 s53, s53, 0x20000\n s_waitcnt lgkmcnt(0)")
    for k in range(2): a(f"buffer_store_dwordx4 {vr(KV + 4*k)}, {vLin}, {G.WS}, s53 offen offset:{2048*k} sc1")
    a("L_chain_end:\n s_waitcnt vmcnt(0)")
    G.tl(a, opt, 3, "v24", True)
    if opt.get("trace"):
        a(f"s_lshl_b32 s7, s3, 11\n v_add_u32 v24, s7, v0\n ds_read_b128 v[28:31], v24\n ds_read_b128 v[32:35], v24 offset:1024\n s_waitcnt lgkmcnt(0)")
        a(f"s_lshl_b32 s7, s4, 2\n s_add_u32 s7, s7, s3\n s_lshl_b32 s7, s7, 11\n s_add_u32 s7, s7, {G.PROF + 0x40000}")
        a(f"buffer_store_dwordx4 v[28:31], v0, {G.WS}, s7 offen sc1\n buffer_store_dwordx4 v[32:35], v0, {G.WS}, s7 offen offset:1024 sc1")
    if opt.get("prof"):
        a(f"s_lshl_b32 s7, s4, 2\n s_add_u32 s7, s7, s3\n s_lshl_b32 s7, s7, 6\n s_add_u32 s7, s7, {G.PROF}\n s_mov_b64 exec, 1")
        for k in range(12):
            a(f"v_mov_b32 v24, s{20+k}\n buffer_store_dword v24, off, {G.WS}, s7 offset:{4*k} sc1")
    a("s_waitcnt vmcnt(0)\n s_endpgm")
```

```python
import sys, math, struct
from asmlib2 import *

NAME = "gated_mix__memory_aug_recurrent_mem_tr__glu_gated_reglu__prompt"

FLG_FB  = 0x0000
FLG_FH  = 0x1000
FLG_FC  = 0x2000
FLG_FF  = 0x2800
MEMB = 0x10000
SCR  = 0x50000
PART = 0x100000
KVM  = 0x300000
KXV  = 0x1000000
CP   = 0x3000000
FP   = 0x7000000
PROF = 0x9000000
QXG  = 0xA000000
D_CH, D_INIT, D_WK, D_ERR, D_GO = 0, 64, 128, 192, 224
WSTR = 32784
L_KX, L_MX, L_QK, L_OB, L_KV, L_ROLE = 131200, 139392, 147584, 152704, 156800, 161792
XROW = 1040; XBUF = 32 * XROW
L_OX = 2 * XBUF; L_KM = L_OX + 8192; L_VM = L_KM + 2048
LDS_BYTES = 163840
SPIN = 1 << 17

X, WS, DBG, OUT, W1, W2, W3, W4 = ["s[%d:%d]" % (b, b + 3) for b in (8, 12, 16, 20, 24, 28, 32, 36)]
P_X, P_MEM0, P_WQ, P_WK, P_WV, P_WO, P_WG, P_WU, P_WD, P_GW, P_OUT, P_DBG, P_WS = 60, 62, 64, 66, 68, 70, 76, 78, 80, 82, 84, 86, 88

ROLES = (("B", 32, 96), ("C", 96, 160), ("F", 160, 188), ("R", 188, 252))
def f32bits(x): return struct.unpack("<I", struct.pack("<f", x))[0]
CSC = f32bits(128 ** -0.5 * math.log2(math.e))

def srd(a, base, ptr, size):
    a(f"s_mov_b32 s{base}, s{ptr}\n s_mov_b32 s{base+1}, s{ptr+1}\n s_mov_b32 s{base+2}, {size}\n s_mov_b32 s{base+3}, 0x20000")

def spin_tail(a, loop, sleep=0):
    if sleep: a(f"s_sleep {sleep}")
    a(f"s_add_u32 s96, s96, 1\n s_cmp_lt_u32 s96, {SPIN}\n s_cbranch_scc1 {loop}\n s_branch L_bail")

def wait_scalar(a, srdn, soff, need, dst, vt, sleep=1):
    lp = a.label("WS"); ok = a.label("WSOK")
    a(f"s_mov_b32 s96, 0\n{lp}:")
    a(f"buffer_load_dword {vt}, off, {srdn}, {soff} sc1\n s_waitcnt vmcnt(0)\n v_readfirstlane_b32 {dst}, {vt}")
    a(f"s_nop 3\n s_cmp_ge_u32 {dst}, {need}\n s_cbranch_scc1 {ok}")
    spin_tail(a, lp, sleep)
    a(f"{ok}:")

def wait_go(a, vt, sleep):
    a(f"s_mov_b32 s90, {D_GO}")
    wait_scalar(a, DBG, "s90", 1, "s7", vt, sleep)

def wait_lanes(a, vaddr, soff, nl, need, vt, sleep=1):
    lp = a.label("WL"); ok = a.label("WLOK")
    a(f"s_mov_b32 s96, 0\n s_mov_b32 exec_lo, {hex((1 << nl) - 1)}\n s_mov_b32 exec_hi, 0\n{lp}:")
    a(f"buffer_load_dword {vt}, {vaddr}, {WS}, {soff} offen sc1\n s_waitcnt vmcnt(0)\n v_cmp_gt_u32 vcc, {need}, {vt}\n s_cbranch_vccz {ok}")
    spin_tail(a, lp, sleep)
    a(f"{ok}:\n s_mov_b64 exec, -1")

def flag_store(a, soff, sval, vt):
    a(f"v_mov_b32 {vt}, {sval}\n s_mov_b64 exec, 1\n buffer_store_dword {vt}, off, {WS}, {soff} sc1\n s_mov_b64 exec, -1")

TL = PROF + 0x10000
def tl(a, opt, k, vt="v24", chain=False):
    if opt.get("hd"):
        if k == 1: return
        sk = a.label("HD")
        slot = {0: 2, 2: 3, 3: 5, 4: 7}[k] + (1 if (chain and k in (2, 3)) else 0)
        cond = "s_and_b32 s100, s2, 63\n s_or_b32 s100, s100, s3\n s_cmp_lg_u32 s100, 0" if k == 0 else "s_cmp_lg_u32 s3, 0"
        if k == 2 and not chain: return
        a(f"{cond}\n s_cbranch_scc1 {sk}\n s_memrealtime s[100:101]\n s_waitcnt lgkmcnt(0)\n v_mov_b32 {vt}, s100")
        a(f"s_mov_b64 exec, 1\n buffer_atomic_umax {vt}, off, {DBG}, 0 offset:{4*slot}\n s_mov_b64 exec, -1\n{sk}:")
        return
    if not opt.get("tl"): return
    sk = a.label("TL")
    a(f"s_cmp_lg_u32 s3, 0\n s_cbranch_scc1 {sk}\n s_memrealtime s[100:101]\n s_waitcnt lgkmcnt(0)\n v_mov_b32 {vt}, s100")
    a(f"s_lshl_b32 s100, s2, 5\n s_add_u32 s100, s100, {TL}\n s_mov_b64 exec, 1\n buffer_store_dword {vt}, off, {WS}, s100 offset:{4*k} sc1")
    if k in (2, 3):
        a(f"s_memtime s[98:99]\n s_waitcnt lgkmcnt(0) vmcnt(0)\n v_mov_b32 {vt}, s98\n buffer_store_dword {vt}, off, {WS}, s100 offset:{4*(k+3)} sc1")
    a(f"s_mov_b64 exec, -1\n{sk}:")

def wp(a, opt, k):
    if not opt.get("wprof"): return
    a(f"s_memtime s[100:101]\n s_waitcnt lgkmcnt(0)\n s_sub_u32 s99, s100, s98\n s_mov_b32 s98, s100")
    if k is not None: a(f"s_add_u32 s{76+k}, s{76+k}, s99")
def wp_init(a, opt):
    if not opt.get("wprof"): return
    for k in range(8): a(f"s_mov_b32 s{76+k}, 0")
    wp(a, opt, None)
def wp_dump(a, opt):
    if not opt.get("wprof"): return
    a(f"s_lshl_b32 s7, s2, 2\n s_add_u32 s7, s7, s3\n s_lshl_b32 s7, s7, 5\n s_add_u32 s7, s7, {PROF + 0x20000}\n s_mov_b64 exec, 1")
    for k in range(8): a(f"v_mov_b32 v24, s{76+k}\n buffer_store_dword v24, off, {WS}, s7 offset:{4*k} sc1")
    a("s_mov_b64 exec, -1")

def init_arrive(a, vt):
    sk = a.label("IA")
    a(f"s_barrier\n s_cmp_lg_u32 s3, 0\n s_cbranch_scc1 {sk}")
    a(f"v_mov_b32 {vt}, 1\n s_mov_b64 exec, 1\n buffer_atomic_add {vt}, off, {DBG}, 0 offset:{D_INIT}\n s_mov_b64 exec, -1\n{sk}:")
    a.vm_n -= 1

def load_stream(a, jobs, tmp=32, depth=12, out=128):
    units = [(job, u) for job in jobs for u in range(16)]
    n = len(units); tok = {}
    def issue(k):
        job, u = units[k]
        a(f"s_mov_b32 s7, {job['row'](u) * job['stride']}")
        r = tmp + 8 * (k % depth)
        a(f"buffer_load_dwordx4 {vr(r)}, {job['v0']}, {job['srd']}, s7 offen")
        if job['stride'] < 4096:
            tok[k] = a.vm(f"buffer_load_dwordx4 {vr(r+4)}, {job['v0']}, {job['srd']}, s7 offen offset:{job['stride']}")
        else:
            tok[k] = a.vm(f"buffer_load_dwordx4 {vr(r+4)}, {job['v1']}, {job['srd']}, s7 offen")
    for k in range(min(depth, n)): issue(k)
    for k in range(n):
        job, u = units[k]
        a.wait_vm(tok[k])
        r = tmp + 8 * (k % depth)
        for c in range(8):
            d = job['dst'](u, c) if (job['kind'] == 'reg' or c in job.get('regc', ())) else out + 4*c + u % 4
            a(f"v_perm_b32 v{d}, v{r+4+c//2}, v{r+c//2}, s{40 + c % 2}")
        if k + depth < n: issue(k + depth)
        if job.get('group'):
            if u % 4 == 3: job['group'](u // 4)
        elif job['kind'] == 'lds' and u % 4 == 3:
            for c in range(8):
                if c not in job.get('regc', ()): a(f"ds_write_b128 {job['vdst']}, {vr(out + 4*c)} offset:{job['imm'](u // 4, c)}")
        if u == 0 and job.get('first'): job['first']()
        if u == 15 and job.get('done'): job['done']()

def lds_to_regs(a, vsrc, dst, first=0):
    def done():
        a("s_waitcnt lgkmcnt(0)\n s_barrier")
        for f in range(first, 32): a(f"ds_read_b128 {dst(f)}, {vsrc} offset:{f*1024}")
        a("s_waitcnt lgkmcnt(0)\n s_barrier")
    return done

def w1_setup(a, stride, scol):
    a(f"""
    s_mov_b32 s90, {8*stride}
    v_mul_lo_u32 v24, v1, s90
    v_lshl_add_u32 v24, v2, 4, v24
    s_mul_i32 s7, s3, {128*stride}
    s_add_u32 s7, s7, {scol}
    v_add_u32 v24, s7, v24
    v_add_u32 v25, {stride}, v24
    v_lshrrev_b32 v26, 2, v2
    s_mov_b32 s90, {WSTR}
    v_mul_lo_u32 v26, v26, s90
    v_lshl_add_u32 v26, v1, 8, v26
    v_and_b32 v27, 3, v2
    v_lshl_add_u32 v26, v27, 6, v26
    s_lshl_b32 s7, s3, 13
    v_add_u32 v26, s7, v26
    s_mul_i32 s7, s3, {WSTR}
    v_add_u32 v27, s7, v0
    """)

def w1_job(a, srdn, stride, dst):
    return dict(kind='lds', srd=srdn, stride=stride, v0="v24", v1="v25", row=lambda u: 32*(u//4) + 2*(u%4), vdst="v26",
                imm=lambda grp, c: (grp*2 + c % 2)*1024 + (c//2)*16, done=lds_to_regs(a, "v27", dst))

def w2_job(a, srdn, sbase, row0=0, done=None):
    a(f"v_lshlrev_b32 v28, 13, v1\n v_lshl_add_u32 v28, v2, 4, v28\n s_lshl_b32 s7, s3, 8\n s_add_u32 s7, s7, {sbase}\n v_add_u32 v28, s7, v28")
    return dict(kind='reg', srd=srdn, stride=1024, v0="v28", row=lambda u: row0 + 32*(u//4) + 2*(u%4), done=done,
                dst=lambda u, T: 128 + (T*4 + u//4)*4 + u % 4)

def prologue(a, opt):
    a(f"""
    s_cmp_ge_u32 s2, 256
    s_cbranch_scc1 L_end
    s_load_dwordx16 s[60:75], s[0:1], 0
    s_load_dwordx8 s[76:83], s[0:1], 64
    s_load_dwordx4 s[84:87], s[0:1], 96
    s_load_dwordx2 s[88:89], s[0:1], 112
    v_lshrrev_b32 v1, 6, v0
    v_and_b32 v0, 63, v0
    v_readfirstlane_b32 s3, v1
    s_mov_b32 s40, 0x05040100
    s_mov_b32 s41, 0x07060302
    s_mov_b32 s42, {CSC}
    s_getreg_b32 s4, hwreg(HW_REG_XCC_ID)
    s_and_b32 s4, s4, 7
    """)
    if opt.get("force_slow"):
        a("s_lshr_b32 s7, s2, 6\n s_add_u32 s7, s7, 1\n s_cmp_lt_u32 s2, 20\n s_cselect_b32 s4, 0, s7")
    a("s_waitcnt lgkmcnt(0)")
    srd(a, 8, P_X, 0x200000); srd(a, 12, P_WS, 0x10000000); srd(a, 16, P_DBG, 256)
    a(f"""
    v_mov_b32 v3, {L_ROLE}
    """)
    tl(a, opt, 0)
    a(f"""
    s_cmp_lg_u32 s3, 0
    s_cbranch_scc1 L_role_wait
    v_lshlrev_b32 v4, 2, v0
    v_add_u32 v4, {D_WK}, v4
    v_cmp_eq_u32 vcc, 0, v0
    v_cndmask_b32 v4, v4, v0, vcc
    s_mov_b64 exec, 1
    s_lshl_b32 s7, s4, 2
    s_add_u32 s7, s7, {D_WK}
    s_cmp_eq_u32 s4, 0
    s_cselect_b32 s7, {D_CH}, s7
    v_mov_b32 v2, 1
    buffer_atomic_add v2, off, {DBG}, s7 sc0
    s_waitcnt vmcnt(0)
    v_readfirstlane_b32 s5, v2
    s_nop 3
    s_cmp_lt_u32 s5, 32
    s_cbranch_scc1 L_role_slot
    v_mov_b32 v2, 1
    buffer_atomic_add v2, off, {DBG}, 0 offset:{D_WK} sc0
    s_waitcnt vmcnt(0)
    v_readfirstlane_b32 s6, v2
    s_mov_b64 exec, 0xff
    s_mov_b32 s96, 0
    L_role_census:
    buffer_load_dword v2, v4, {DBG}, 0 offen sc1
    s_waitcnt vmcnt(0)
    """)
    for x in range(8): a(f"v_readlane_b32 s{44+x}, v2, {x}")
    a("s_nop 3\n s_mov_b32 s7, 0")
    for x in range(8): a(f"s_add_u32 s7, s7, s{44+x}")
    a("s_cmp_ge_u32 s7, 256\n s_cbranch_scc1 L_role_pick")
    spin_tail(a, "L_role_census", 4)
    a("L_role_pick:\n s_mov_b64 exec, 1")
    for x in range(8):
        a(f"s_min_u32 s7, s{44+x}, 32\n s_mov_b32 s4, {x}\n s_add_u32 s5, s7, s6\n s_cmp_lt_u32 s5, 32\n s_cbranch_scc1 L_role_slot\n s_sub_u32 s6, s5, 32")
    a(f"""
    s_branch L_bail
    L_role_slot:
    s_mul_i32 s7, s5, 7
    s_add_u32 s7, s7, s4
    s_add_u32 s7, s7, 31
    s_cmp_eq_u32 s4, 0
    s_cselect_b32 s5, s5, s7
    L_role_have:
    v_mov_b32 v2, s5
    ds_write_b32 v3, v2
    s_waitcnt lgkmcnt(0)
    s_mov_b64 exec, -1
    L_role_wait:
    """)
    if opt.get("cw", 0):
        a(f"""
        s_cmp_lg_u32 s3, 1
        s_cbranch_scc1 L_code_done
        s_getpc_b64 s[44:45]
        L_code_base:
        s_mov_b32 s46, L_code_end-L_code_base
        s_mov_b32 s47, 0x20000
        v_lshlrev_b32 v4, 7, v0
        s_mov_b32 s7, 0
        s_nop 15
        s_nop 15
        """)
        for k in range(7): a(f"buffer_load_dword v{100+k}, v4, s[44:47], s7 offen\n s_add_u32 s7, s7, 8192")
        a("L_code_done:")
    a(f"""
    s_barrier
    ds_read_b32 v2, v3
    s_waitcnt lgkmcnt(0)
    v_readfirstlane_b32 s4, v2
    v_lshrrev_b32 v1, 4, v0
    v_and_b32 v2, 15, v0
    s_nop 2
    s_and_b32 s4, s4, 255
    """)
    tl(a, opt, 1)
    if opt.get("tl"):
        a(f"v_mov_b32 v24, s4\n s_lshl_b32 s100, s2, 5\n s_add_u32 s100, s100, {TL}\n buffer_store_dword v24, off, {WS}, s100 offset:28 sc1")
    a(f"""
    s_cmp_lt_u32 s4, 32
    s_cbranch_scc1 L_chain
    s_cmp_lt_u32 s4, 96
    s_cbranch_scc1 L_B
    """)
    if not opt.get("nocfr"): a("""
    s_cmp_lt_u32 s4, 160
    s_cbranch_scc1 L_C
    s_cmp_lt_u32 s4, 188
    s_cbranch_scc1 L_F
    s_cmp_lt_u32 s4, 252
    s_cbranch_scc1 L_R
    """)
    init_arrive(a, "v3")
    a("s_cmp_lg_u32 s4, 252\n s_cbranch_scc1 L_end\n s_cmp_lg_u32 s3, 0\n s_cbranch_scc1 L_end")
    wait_scalar(a, DBG, D_INIT, 256, "s7", "v3", 12)
    a(f"""
    v_mov_b32 v3, 1
    s_mov_b64 exec, 1
    buffer_store_dword v3, off, {DBG}, 0 offset:{D_GO} sc1
    s_waitcnt vmcnt(0)
    s_endpgm
    L_bail:
    s_mov_b64 exec, 1
    v_mov_b32 v0, s4
    v_add_u32 v0, 0x100, v0
    buffer_store_dword v0, off, {DBG}, 0 offset:{D_ERR}
    s_waitcnt vmcnt(0)
    L_end:
    s_endpgm
    """)

def x_dma(a, sseg, sbuf):
    a(f"s_lshl_b32 s90, {sseg}, 15\n s_lshl_b32 s91, s3, 13\n s_add_u32 s90, s90, s91")
    a(f"s_mul_i32 s91, s3, {8*XROW}\n s_add_u32 s91, s91, {sbuf}")
    for r in range(8):
        a(f"s_add_u32 m0, s91, {r*XROW}")
        a(f"s_nop 0\n buffer_load_dwordx4 v0, {X}, s90 offen lds")
        if r < 7: a("s_add_u32 s90, s90, 1024")

def gemm1(a, vx, mats, fr, mid=None):
    tok = {}
    def rd(t):
        for rt in range(2):
            tok[t] = a.ds(f"ds_read_b128 {vr(fr + 8*(t%3) + 4*rt)}, {vx} offset:{rt*16*XROW + t*64}")
    rd(0); rd(1)
    for t in range(16):
        if t + 2 < 16: rd(t + 2)
        a.wait_ds(tok[t])
        for wreg, acc, wA in mats:
            for T in range(2):
                for rt in range(2):
                    xf = vr(fr + 8*(t%3) + 4*rt); d = vr(acc(T, rt)); c = d if t else "0"
                    A, B = (wreg(t, T), xf) if wA else (xf, wreg(t, T))
                    a(f"v_mfma_f32_16x16x32_bf16 {d}, {A}, {B}, {c}")
        if mid and t == mid[0]: mid[1]()

ST2 = 'sc1'
def stage2(a, vrd, vst, sdst, oa, acc, tmp, nt=4):
    tok = {}
    for rt in range(2):
        for t in range(nt):
            tok[(rt, t)] = a.ds(f"ds_read_b128 {oa(rt*nt+t)}, {vrd} offset:{(rt*nt+t)*1024}")
    def cv(rt, i, p):
        a(f"v_cvt_pk_bf16_f32 v{tmp + 4*(i%2) + p}, v{acc + (rt*8+2*p)*4 + i}, v{acc + (rt*8+2*p+1)*4 + i}")
    def st(rt, i):
        a(f"buffer_store_dwordx4 {vr(tmp + 4*(i%2))}, {vst}, {WS}, {'s7' if rt else sdst} offen offset:{i*1024} {ST2}")
    a(f"s_add_u32 s7, {sdst}, 16384")
    for rt in range(2):
        for t in range(nt):
            a.wait_ds(tok[(rt, t)])
            for T in range(8):
                d = vr(acc + (rt*8+T)*4)
                a(f"v_mfma_f32_16x16x32_bf16 {d}, {oa(rt*nt+t)}, {(vr, ar)[t//4](128 + (T*4 + t % 4)*4)}, {d if t else '0'}")
                if rt == 1 and t < 4 and 2 <= T < 6: cv(0, t, T - 2)
                if rt == 1 and t < 4 and T == 6: st(0, t)
    for i in range(4):
        for p in range(4): cv(1, i, p)
        st(1, i)

def worker_top(a, name, nst):
    a("s_waitcnt vmcnt(0)")
    a(f"{name}_loop:\n s_waitcnt vmcnt({nst})\n s_barrier")
    a(f"s_lshl_b32 s43, s6, 1\n s_add_u32 s43, s43, s5")
    a(f"s_add_u32 s44, s43, 2\n s_min_u32 s44, s44, 63\n s_sub_u32 s45, {XBUF}, s46")
    x_dma(a, "s44", "s45")
    a(f"v_add_u32 v4, s46, v3")

def worker_bot(a, name):
    a(f"s_sub_u32 s46, {XBUF}, s46\n s_add_u32 s6, s6, 1\n s_cmp_lt_u32 s6, 32")
    a.fence()
    a(f"s_cbranch_scc1 {name}_loop")

def worker_init(a, first, per):
    a(f"s_sub_u32 s4, s4, {first}\n s_cmp_ge_u32 s4, {per}\n s_cselect_b32 s5, 1, 0\n s_cselect_b32 s7, {per}, 0\n s_sub_u32 s4, s4, s7")
    a("s_mov_b32 s6, 0\n s_mov_b32 s46, 0")
    a(f"s_mov_b32 s7, {XROW}\n v_mul_lo_u32 v3, v2, s7\n v_lshl_add_u32 v3, v1, 4, v3\n v_lshlrev_b32 v0, 4, v0")

def wave_flag(a, base):
    a(f"s_lshl_b32 s47, s5, 2\n s_add_u32 s47, s47, s3\n s_lshl_b32 s47, s47, 7\n s_lshl_b32 s7, s4, 2\n s_add_u32 s47, s47, s7\n s_add_u32 s47, s47, {base}")
    flag_store(a, "s47", "0", "v24")

def worker_end(a, opt):
    wp_dump(a, opt)
    tl(a, opt, 3)
    a("s_waitcnt vmcnt(0)\n s_endpgm")

def role_B(a, opt):
    a("L_B:")
    worker_init(a, 32, 32)
    a(f"s_lshl_b32 s47, s4, 7\n s_lshl_b32 s7, s5, 2\n s_add_u32 s47, s47, s7\n s_add_u32 s47, s47, {FLG_FB}\n v_lshrrev_b32 v5, 1, v0")
    def flags(kv, q):
        a(f"v_mov_b32 v6, {q}\n v_writelane_b32 v6, {kv}, 0\n s_mov_b64 exec, 3\n buffer_store_dword v6, v5, {WS}, s47 offen sc1\n s_mov_b64 exec, -1")
    flags("0", "0")
    srd(a, 24, P_WK, 0x400000); srd(a, 28, P_WV, 0x400000); srd(a, 32, P_WQ, 0x400000)
    a("s_lshl_b32 s48, s4, 8")
    w1_setup(a, 8192, "s48")
    def publish():
        sk = a.label("BF")
        a(f"s_barrier\n s_cmp_lg_u32 s3, 0\n s_cbranch_scc1 {sk}\n s_max_u32 s7, s6, {opt.get('fkv', 0)}")
        flags("s7", "s6")
        a(f"{sk}:")
        a.vm_n -= 1
    mk = lambda acc: (lambda t, T: ar((t*2+T)*4), lambda T, rt: acc + (T*2+rt)*4, True)
    mv = lambda acc: (lambda t, T: ar(128 + (t*2+T)*4), lambda T, rt: acc + (T*2+rt)*4, False)
    def kv_out(ak, av, r0):
        a(f"s_lshl_b32 s52, s43, 5\n s_add_u32 s52, s52, s4\n s_lshl_b32 s48, s52, 14\n s_add_u32 s48, s48, {KXV}")
        a("s_lshl_b32 s7, s3, 10\n s_add_u32 s49, s48, s7\n s_add_u32 s50, s49, 4096")
        a(f"s_lshl_b32 s52, s52, 13\n s_add_u32 s52, s52, s7\n s_add_u32 s52, s52, {QXG}\n s_add_u32 s53, s52, 4096")
        a("s_lshl_b32 s7, s3, 11\n s_add_u32 s51, s48, s7\n s_add_u32 s51, s51, 8192")
        for rt in range(2):
            r = r0 + 4*rt
            for i in range(4): a(f"v_cvt_pk_bf16_f32 v{r+i}, v{ak + rt*4 + i}, v{ak + (2+rt)*4 + i}")
            a(f"buffer_store_dwordx4 {vr(r)}, v0, {WS}, s{49+rt} offen sc1")
        for T in range(2):
            r = r0 + 8 + 4*T; b = av + T*8
            for p in range(4): a(f"v_cvt_pk_bf16_f32 v{r+p}, v{b + 2*p}, v{b + 2*p + 1}")
            a(f"buffer_store_dwordx4 {vr(r)}, v0, {WS}, s51 offen offset:{T*1024} sc1")
    def reread():
        if opt.get("rr"):
            a(f"s_lshl_b32 s7, s3, 12\n s_add_u32 s7, s7, s48\n v_lshlrev_b32 v7, 2, v0\n buffer_load_dword v7, v7, {WS}, s7 offen sc1")
    jv = w1_job(a, W2, 8192, lambda f: ar(128 + 4*f))
    vdone = jv['done']
    def first_kv():
        vdone()
        x_dma(a, "s5", "s46")
        a("s_mov_b32 s43, s5\n s_waitcnt vmcnt(0)\n s_barrier")
        gemm1(a, "v3", [mk(192), mv(208)], 160)
        kv_out(192, 208, 224)
        a("s_waitcnt vmcnt(0)")
        publish()
    if opt.get("fkv", 0): jv['done'] = first_kv
    jk = w1_job(a, W1, 8192, lambda f: ar(4*f))
    jk['first'] = lambda: init_arrive(a, "v28")
    load_stream(a, [jk, jv, w1_job(a, W3, 8192, lambda f: vr(128 + 4*f))])
    x_dma(a, "s5", "s46")
    tl(a, opt, 2)
    wp_init(a, opt)
    worker_top(a, "B", 6)
    wp(a, opt, 0)
    gemm1(a, "v4", [mk(64), mv(80), (lambda t, T: vr(128 + (t*2+T)*4), lambda T, rt: 96 + (T*2+rt)*4, True)], 32,
          mid=(4, lambda: (a("s_waitcnt vmcnt(8)"), publish(), reread())))
    wp(a, opt, 1)
    kv_out(64, 80, 112)
    for rt in range(2):
        r = 56 + 4*rt
        for i in range(4): a(f"v_cvt_pk_bf16_f32 v{r+i}, v{96 + rt*4 + i}, v{96 + (2+rt)*4 + i}")
        a(f"buffer_store_dwordx4 {vr(r)}, v0, {WS}, s{52+rt} offen sc1")
    wp(a, opt, 7)
    if opt.get("p1", 1):
        a(f"s_cmp_ge_u32 s6, {opt.get('p1', 2)}\n s_cbranch_scc1 B_later\n s_add_u32 s6, s6, 1\n s_waitcnt vmcnt(0)")
        publish()
        a("s_sub_u32 s6, s6, 1\nB_later:")
    worker_bot(a, "B")
    a("s_waitcnt vmcnt(0)")
    publish()
    worker_end(a, opt)

def st2_addrs(a):
    a(f"v_add_u32 v6, {L_OX}, v0")
    a(f"v_lshlrev_b32 v7, 12, v1\n v_lshl_add_u32 v7, v2, 4, v7\n s_lshl_b32 s7, s3, 8\n v_add_u32 v7, s7, v7")

def role_F(a, opt):
    a("L_F:")
    worker_init(a, 160, 14)
    wave_flag(a, FLG_FF)
    a("s_waitcnt vmcnt(0)")
    init_arrive(a, "v24")
    if opt.get("hold", 3) & 1:
        wait_go(a, "v24", opt.get("si", 64))
        a(f"s_lshl_b32 s48, s4, 7\n s_add_u32 s48, s48, {FLG_FB + opt.get('hf', 8)}")
        if not opt.get("hi"): wait_scalar(a, WS, "s48", 1, "s7", "v24", 16)
    srd(a, 24, P_WG, 512*3584); srd(a, 28, P_WU, 512*3584); srd(a, 32, P_WD, 1792*1024)
    a("s_lshl_b32 s48, s4, 8")
    w1_setup(a, 3584, "s48")
    a("s_lshl_b32 s48, s4, 17")
    load_stream(a, [w1_job(a, W1, 3584, lambda f: ar(4*f)), w1_job(a, W2, 3584, lambda f: ar(128 + 4*f)), w2_job(a, W3, "s48")])
    x_dma(a, "s5", "s46")
    st2_addrs(a)
    a("s_lshl_b32 s7, s3, 10\n v_add_u32 v5, s7, v6")
    tl(a, opt, 2)
    wp_init(a, opt)
    worker_top(a, "F", 8)
    wp(a, opt, 0)
    gemm1(a, "v4", [(lambda t, T: ar((t*2+T)*4), lambda T, rt: 64 + (T*2+rt)*4, True),
                    (lambda t, T: ar(128 + (t*2+T)*4), lambda T, rt: 80 + (T*2+rt)*4, True)], 32,
          mid=(9, lambda: (a("s_waitcnt vmcnt(8)"), flag_store(a, "s47", "s6", "v24"))))
    wp(a, opt, 1)
    for r in range(16): a(f"v_max_f32 v{64+r}, 0, v{64+r}")
    for r in range(16): a(f"v_mul_f32 v{64+r}, v{64+r}, v{80+r}")
    for rt in range(2):
        r = 96 + 4*rt
        for i in range(4): a(f"v_cvt_pk_bf16_f32 v{r+i}, v{64 + rt*4 + i}, v{64 + (2+rt)*4 + i}")
        a(f"ds_write_b128 v5, {vr(r)} offset:{rt*4096}")
    a(f"s_lshl_b32 s48, s43, 4\n s_add_u32 s48, s48, s4\n s_lshl_b32 s48, s48, 15\n s_and_b32 s48, s48, {hex((opt.get('fring', 64) << 19) - 1)}\n s_add_u32 s48, s48, {FP}")
    a("s_waitcnt lgkmcnt(0)\n s_barrier")
    stage2(a, "v6", "v7", "s48", lambda f: vr(32 + 4*f), 64, 24)
    wp(a, opt, 7)
    if opt.get("zf"): a(f"s_sleep {opt['zf']}")
    worker_bot(a, "F")
    a("s_waitcnt vmcnt(0)")
    flag_store(a, "s47", "s6", "v24")
    worker_end(a, opt)

def softmax(a, X0, X1, M, t, pX, pM):
    a(f"""
    v_max3_f32 v{t}, v{X0}, v{X0+1}, v{X0+2}
    v_max3_f32 v{t+1}, v{X0+3}, v{X1}, v{X1+1}
    v_max3_f32 v{t}, v{t}, v{X1+2}, v{X1+3}
    v_max3_f32 v{t+1}, v{t+1}, v{M}, v{M+1}
    v_max_f32 v{t}, v{t}, v{t+1}
    v_max_f32 v{t+1}, v{t}, v{t+1}
    v_permlane16_swap_b32 v{t}, v{t+1}
    v_max_f32 v{t+2}, v{t}, v{t+1}
    v_max_f32 v{t+3}, v{t}, v{t+1}
    v_permlane32_swap_b32 v{t+2}, v{t+3}
    v_max_f32 v{t}, v{t+2}, v{t+3}
    v_mul_f32 v{t}, s42, v{t}
    """)
    regs = [X0, X0+1, X0+2, X0+3, X1, X1+1, X1+2, X1+3, M, M+1]
    for r in regs: a(f"v_fma_f32 v{r}, v{r}, s42, -v{t}")
    for k, r in enumerate(regs):
        a(f"v_exp_f32 v{r}, v{r}")
        if k >= 2 and k % 2 == 0: a(f"v_cvt_pk_bf16_f32 v{pX + k//2 - 1}, v{regs[k-2]}, v{regs[k-1]}")
    a(f"v_cvt_pk_bf16_f32 v{pM}, v{M}, v{M+1}\n v_cvt_pk_bf16_f32 v{pM+3}, v{M}, v{M+1}")

def role_C(a, opt):
    C_OX, C_KV = 49152, 65536
    a("L_C:")
    a("s_sub_u32 s4, s4, 96\n s_lshr_b32 s5, s4, 4\n s_and_b32 s4, s4, 15\n s_mov_b32 s6, 0\n v_lshlrev_b32 v0, 4, v0")
    wave_flag(a, FLG_FC)
    a(f"""
    s_lshr_b32 s52, s3, 1
    s_and_b32 s53, s3, 1
    s_lshl_b32 s58, s4, 1
    s_add_u32 s58, s58, s52
    s_lshl_b32 s55, s5, 5
    s_add_u32 s55, s55, s58
    s_lshl_b32 s55, s55, 12
    s_lshl_b32 s7, s53, 11
    s_add_u32 s55, s55, s7
    s_add_u32 s55, s55, {KVM}
    v_mov_b64 v[24:25], -1
    v_mov_b64 v[26:27], -1
    s_add_u32 s7, s55, {15*0x80000}
    buffer_store_dwordx4 v[24:27], v0, {WS}, s7 offen sc1
    buffer_store_dwordx4 v[24:27], v0, {WS}, s7 offen offset:1024 sc1
    s_lshl_b32 s50, s58, 7
    s_add_u32 s50, s50, {FLG_FH}
    v_lshrrev_b32 v9, 2, v0
    """)
    a("s_waitcnt vmcnt(0)")
    init_arrive(a, "v24")
    if opt.get("hold", 3) & 2:
        wait_go(a, "v24", opt.get("si", 64))
        a(f"s_lshl_b32 s48, s58, 7\n s_add_u32 s48, s48, {FLG_FB + opt.get('hc', 0)}")
        if not opt.get("hi"): wait_scalar(a, WS, "s48", 1, "s7", "v24", 16)
    srd(a, 28, P_WO, 0x400000)
    a("s_lshl_b32 s48, s4, 18")
    load_stream(a, [w2_job(a, W2, "s48", 128, lambda: [a(f"v_accvgpr_write_b32 a{r}, v{r}") for r in range(128, 256)]), w2_job(a, W2, "s48")])
    st2_addrs(a)
    a(f"""
    v_add_u32 v6, {C_OX}, v0
    s_mul_i32 s59, s52, 24576
    v_add_u32 v3, s59, v0
    s_lshl_b32 s7, s53, 12
    s_add_u32 s7, s7, 16384
    v_add_u32 v4, s7, v3
    s_lshl_b32 s7, s3, 11
    s_add_u32 s7, s7, {C_KV}
    v_add_u32 v8, s7, v0
    s_lshl_b32 s7, s52, 12
    s_add_u32 s90, s7, {C_KV + 2048}
    v_add_u32 v11, s90, v0
    v_lshrrev_b32 v24, 2, v2
    v_and_b32 v25, 1, v2
    v_lshl_add_u32 v10, v24, 1, v25
    v_lshlrev_b32 v10, 4, v10
    v_lshl_add_u32 v10, v1, 7, v10
    s_add_u32 s90, s7, {C_KV}
    v_add_u32 v10, s90, v10
    s_lshl_b32 s90, s53, 13
    s_add_u32 s90, s90, s7
    v_add_u32 v12, s90, v6
    s_lshl_b32 s7, s53, 4
    v_add_u32 v14, s7, v2
    v_lshlrev_b32 v15, 2, v1
    v_sub_u32 v14, v14, v15
    """)
    for k in range(8):
        a(f"v_cmp_le_i32 s[{60+2*k}:{61+2*k}], {k if k < 4 else 12 + k}, v14")
    a("v_mov_b32 v14, 0xf149f2ca")
    for r in range(16, 20): a(f"v_mov_b32 v{r}, 0x3f803f80")
    a("v_mov_b32 v21, 0\n v_mov_b32 v22, 0")
    a(f"s_lshl_b32 s54, s58, 7\n s_and_b32 s7, s5, 1\n s_lshl_b32 s7, s7, 2\n s_add_u32 s54, s54, s7\n s_add_u32 s54, s54, {FLG_FB + 8}\n s_mov_b32 s56, 0")
    wait_go(a, "v24", opt.get("si", 64))
    QB, KX, VX = 0, 16, 48
    def fetch(sidx):
        ok = a.label("CB")
        a(f"s_lshl_b32 s49, {sidx}, 2\n s_add_u32 s49, s49, s5\n s_lshr_b32 s57, s49, 1\n s_cmp_gt_u32 s56, s57\n s_cbranch_scc1 {ok}\n s_add_u32 s57, s57, 1")
        wait_scalar(a, WS, "s54", "s57", "s56", "v13", 4)
        a(f"{ok}:")
        a(f"s_lshl_b32 s49, s49, 5\n s_add_u32 s49, s49, s58")
        a(f"s_lshl_b32 s57, s49, 13\n s_lshl_b32 s7, s53, 12\n s_add_u32 s57, s57, s7\n s_add_u32 s57, s57, {QXG}\n s_add_u32 s7, s7, s59\n s_add_u32 m0, s7, 16384")
        a(f"s_lshl_b32 s49, s49, 14\n s_add_u32 s49, s49, {KXV}\n s_lshl_b32 s7, s53, 13\n s_add_u32 s49, s49, s7\n s_add_u32 s7, s7, s59")
        for f in range(4): a(f"buffer_load_dwordx4 v0, {WS}, s57 offen offset:{f*1024} sc1 lds")
        for hf in range(2):
            a(f"s_add_u32 m0, s7, {hf*4096}")
            if hf: a("s_add_u32 s49, s49, 4096")
            for f in range(4): a(f"buffer_load_dwordx4 v0, {WS}, s49 offen offset:{f*1024} sc1 lds")
    fetch("s6")
    tl(a, opt, 2)
    wp_init(a, opt)
    a("s_waitcnt vmcnt(0)\nC_loop:\n s_barrier")
    wp(a, opt, 0)
    for f in range(4): a(f"ds_read_b128 {ar(QB + 4*f)}, v4 offset:{f*1024}")
    for f in range(16): a(f"ds_read_b128 {ar(KX + 4*f)}, v3 offset:{f*1024}")
    a("s_waitcnt lgkmcnt(0)")
    KM, VM, X0, X1, M = 88, 104, 116, 120, 124
    for rt in range(2):
        d = vr(X0 + 4*rt)
        for t in range(4): a(f"v_mfma_f32_16x16x32_bf16 {d}, {ar(KX + (rt*4+t)*4)}, {ar(QB + 4*t)}, {d if t else '0'}")
    for k in range(8): a(f"v_cndmask_b32 v{X0+k}, v14, v{X0+k}, s[{60+2*k}:{61+2*k}]")
    wp(a, opt, 1)
    a("s_cmp_eq_u32 s6, 15\n s_cbranch_scc1 C_direct\n s_lshl_b32 s57, s6, 2\n s_add_u32 s57, s57, s5\n s_add_u32 s57, s57, 1")
    wait_lanes(a, "v9", "s50", 2, "s57", "v24", 8)
    a(f"""
    C_direct:
    s_mov_b32 s96, 0
    C_poll:
    buffer_load_dwordx4 v[24:27], v0, {WS}, s55 offen sc1
    buffer_load_dwordx4 v[28:31], v0, {WS}, s55 offen offset:1024 sc1
    s_waitcnt vmcnt(0)
    v_max3_u32 v32, v24, v25, v26
    v_max3_u32 v33, v27, v28, v29
    v_max3_u32 v32, v32, v30, v31
    v_max_u32 v32, v32, v33
    v_cmp_eq_u32 vcc, -1, v32
    s_cbranch_vccz C_have
    """)
    spin_tail(a, "C_poll", opt.get("slc", 1))
    a("C_have:")
    wp(a, opt, 3)
    a("ds_write_b128 v8, v[24:27]\n ds_write_b128 v8, v[28:31] offset:1024\n s_add_u32 s55, s55, 0x80000\n s_waitcnt lgkmcnt(0)\n s_barrier")
    tk = [a.ds(f"ds_read_b128 {vr(KM + 4*t)}, v10 offset:{t*512}") for t in range(4)]
    for f in range(2): a(f"ds_read_b128 {vr(VM + 4*f)}, v11 offset:{f*1024}")
    for t in range(4):
        a.wait_ds(tk[t])
        a(f"v_mfma_f32_16x16x32_bf16 {vr(M)}, {vr(KM + 4*t)}, {ar(QB + 4*t)}, {vr(M) if t else '0'}")
    wp(a, opt, 4)
    PX, PM, O, Lr = 24, 20, 32, 64
    softmax(a, X0, X1, M, 28, PX, PM)
    a("s_waitcnt lgkmcnt(0)")
    a(f"v_mfma_f32_16x16x32_bf16 {vr(Lr)}, v[16:19], {vr(PX)}, 0")
    for f in range(8): a(f"v_mfma_f32_16x16x32_bf16 {vr(O + 4*f)}, {ar(VX + 4*f)}, {vr(PX)}, 0")
    a(f"v_mfma_f32_16x16x16_bf16 {vr(Lr)}, v[16:17], {vr(PM, 2)}, {vr(Lr)}")
    for f in range(8):
        a(f"v_mfma_f32_16x16x16_bf16 {vr(O + 4*f)}, {vr(VM + 2*(f//2), 2)}, {vr(PM + 2*(f%2), 2)}, {vr(O + 4*f)}")
        if f == 2: a(f"v_rcp_f32 v28, v{Lr}")
        if f >= 3:
            for r in range(2): a(f"v_mul_f32 v{O + 2*(f-3) + r}, v{O + 2*(f-3) + r}, v28")
    for hw in range(4):
        r = 68 + 4*hw
        for q in range(max(10, 8*hw), 8*hw + 8, 2): a(f"v_pk_mul_f32 {vr(O + q, 2)}, {vr(O + q, 2)}, v[28:29] op_sel_hi:[1,0]")
        for i in range(4): a(f"v_cvt_pk_bf16_f32 v{r+i}, v{O + 8*hw + i}, v{O + 8*hw + 4 + i}")
        a(f"ds_write_b128 v12, {vr(r)} offset:{hw*1024}")
    wp(a, opt, 5)
    a("s_cmp_eq_u32 s6, 15\n s_cbranch_scc1 C_nofetch\n s_add_u32 s44, s6, 1")
    fetch("s44")
    a("C_nofetch:")
    a(f"s_lshl_b32 s48, s6, 2\n s_add_u32 s48, s48, s5\n s_lshl_b32 s48, s48, 4\n s_add_u32 s48, s48, s4\n s_lshl_b32 s48, s48, 15\n s_add_u32 s48, s48, {CP}")
    a("s_waitcnt lgkmcnt(0)\n s_barrier")
    wp(a, opt, 6)
    stage2(a, "v6", "v7", "s48", lambda f: ar(4*f), 64, 24, 8)
    wp(a, opt, 7)
    a("s_add_u32 s6, s6, 1\n s_waitcnt vmcnt(0)")
    flag_store(a, "s47", "s6", "v13")
    wp(a, opt, 2)
    a("s_cmp_lt_u32 s6, 16")
    a.fence()
    a("s_cbranch_scc1 C_loop")
    worker_end(a, opt)

def make_sel(a, b, t):
    a(f"v_and_b32 v{t}, 1, v2\n v_lshlrev_b32 v{t}, 4, v{t}\n v_mov_b32 v{t+1}, 0x3f80\n v_lshlrev_b32 v{t}, v{t}, v{t+1}")
    a(f"v_bfe_u32 v{t+1}, v2, 1, 2")
    for p in range(4):
        a(f"v_cmp_eq_u32 vcc, {p}, v{t+1}\n v_cndmask_b32 v{b+p}, 0, v{t}, vcc")

def role_R(a, opt):
    a("L_R:")
    a("s_sub_u32 s4, s4, 188\n s_lshr_b32 s5, s4, 5\n s_and_b32 s4, s4, 31")
    a(f"""
    v_lshlrev_b32 v4, 15, v1
    v_lshl_add_u32 v4, v2, 4, v4
    s_lshl_b32 s7, s4, 10
    s_lshl_b32 s43, s3, 8
    s_add_u32 s7, s7, s43
    v_add_u32 v4, s7, v4
    v_lshlrev_b32 v5, 3, v1
    v_lshl_add_u32 v5, v2, 4, v5
    v_add_u32 v5, s7, v5
    v_mov_b64 v[24:25], -1
    v_mov_b64 v[26:27], -1
    s_lshl_b32 s45, s5, 19
    s_add_u32 s45, s45, {CP + (62 << 19)}
    """)
    for u in range(4): a(f"buffer_store_dwordx4 v[24:27], v4, {WS}, s45 offen sc1\n s_add_u32 s45, s45, 0x20000")
    a("s_waitcnt vmcnt(0)")
    init_arrive(a, "v24")
    if opt.get("warm", 1):
        a("s_lshl_b32 s7, s5, 5\n s_add_u32 s7, s7, s4\n s_lshl_b32 s7, s7, 2\n s_add_u32 s7, s7, s3\n s_lshl_b32 s7, s7, 14\n v_lshlrev_b32 v24, 7, v0")
        for n, p in enumerate([(P_WQ, P_WV, P_WO), (P_WO,), (P_WK, P_WQ, P_WV, P_WO)][opt.get("warm", 1) - 1]):
            srd(a, 24, p, 0x400000)
            a(f"buffer_load_dword v{26+2*n}, v24, {W1}, s7 offen\n s_add_u32 s43, s7, 8192\n buffer_load_dword v{27+2*n}, v24, {W1}, s43 offen")
        a("s_waitcnt vmcnt(0)")
    srd(a, 20, P_OUT, 0x200000); srd(a, 24, P_GW, 1024)
    make_sel(a, 16, 24)
    a(f"""
    v_lshlrev_b32 v3, 2, v0
    v_lshlrev_b32 v0, 4, v0
    buffer_load_dwordx4 v[8:11], v0, {W1}, 0 offen
    s_lshl_b32 s7, s5, 2
    s_add_u32 s7, s7, s3
    s_lshl_b32 s7, s7, 7
    s_add_u32 s54, s7, {FLG_FC}
    s_add_u32 s55, s7, {FLG_FF}
    s_mov_b32 s6, 0
    s_mov_b32 s58, {f32bits(-math.log2(math.e))}
    """)
    for r in range(76, 80): a(f"v_mov_b32 v{r}, 0")
    wait_go(a, "v24", opt.get("si", 64))
    tl(a, opt, 2)
    wp_init(a, opt)
    a(f"""
    R_loop:
    s_lshl_b32 s43, s6, 1
    s_add_u32 s43, s43, s5
    s_add_u32 s57, s6, 1
    s_lshl_b32 s44, s43, 15
    s_lshl_b32 s7, s4, 10
    s_add_u32 s7, s7, s44
    buffer_load_dwordx4 v[12:15], v0, {X}, s7 offen
    """)
    wait_lanes(a, "v3", "s55", 14, "s57", "v24", 8)
    wp(a, opt, 0)
    a(f"s_lshl_b32 s45, s43, 19\n s_and_b32 s45, s45, {hex((opt.get('fring', 64) << 19) - 1)}\n s_add_u32 s45, s45, {FP}")
    for u in range(4):
        if u == 3: a("s_mov_b32 exec_hi, 0")
        a(f"buffer_load_dwordx4 {vr(64 + 4*u)}, v4, {WS}, s45 offen {['sc1', 'sc1 nt'][opt.get('rnt', 0)]}")
        if u < 3: a("s_add_u32 s45, s45, 0x20000")
    a("s_mov_b64 exec, -1")
    a("v_mov_b32 v24, 0")
    for p in range(4): a(f"v_dot2c_f32_bf16 v24, v{12+p}, v{8+p}")
    for k in (8, 4, 2, 1): a(f"v_add_f32_dpp v24, v24, v24 row_ror:{k} row_mask:0xf bank_mask:0xf")
    a("""
    v_mov_b32 v25, v24
    v_permlane16_swap_b32 v24, v25
    v_add_f32 v24, v24, v25
    v_mov_b32 v25, v24
    v_permlane32_swap_b32 v24, v25
    v_add_f32 v24, v24, v25
    v_mul_f32 v24, s58, v24
    v_exp_f32 v24, v24
    v_add_f32 v24, 1.0, v24
    v_rcp_f32 v6, v24
    v_sub_f32 v7, 1.0, v6
    s_waitcnt vmcnt(0)
    """)
    for u in range(4): a(f"v_mfma_f32_16x16x32_bf16 v[28:31], v[16:19], {vr(64 + 4*u)}, {'v[28:31]' if u else '0'}")
    for i in range(4): a(f"v_mul_f32 v{28+i}, v{28+i}, v7")
    wp(a, opt, 1)
    a("s_cmp_eq_u32 s6, 31\n s_cbranch_scc1 R_direct")
    a("s_and_b32 s7, s6, 1\n s_lshl_b32 s7, s7, 10\n s_add_u32 s46, s54, s7\n s_lshr_b32 s57, s6, 1\n s_add_u32 s57, s57, 1")
    wait_lanes(a, "v3", "s46", 16, "s57", "v24", opt.get("slr", 8))
    a("R_direct:\n s_mov_b32 s96, 0")
    wp(a, opt, 2)
    a(f"R_poll:\n s_lshl_b32 s45, s43, 19\n s_add_u32 s45, s45, {CP}")
    tok = []
    for u in range(4):
        tok.append(a.vm(f"buffer_load_dwordx4 {vr(32 + 4*u)}, v4, {WS}, s45 offen sc1"))
        if u < 3: a("s_add_u32 s45, s45, 0x20000")
    for u in range(4):
        a.wait_vm(tok[u])
        a(f"v_mfma_f32_16x16x32_bf16 v[24:27], v[16:19], {vr(32 + 4*u)}, {'v[24:27]' if u else '0'}")
        a(f"v_max3_u32 v{48+u}, v{32+4*u}, v{33+4*u}, v{34+4*u}\n v_max_u32 v{48+u}, v{48+u}, v{35+4*u}")
    a("v_max3_u32 v48, v48, v49, v50\n v_max_u32 v48, v48, v51\n v_cmp_eq_u32 vcc, -1, v48\n s_cbranch_vccz R_have")
    spin_tail(a, "R_poll", opt.get("sld", 2))
    a("R_have:\n s_nop 3")
    for i in range(4): a(f"v_fma_f32 v{24+i}, v{24+i}, v6, v{28+i}")
    a(f"""
    v_cvt_pk_bf16_f32 v24, v24, v25
    v_cvt_pk_bf16_f32 v25, v26, v27
    s_mov_b32 exec_hi, 0
    buffer_store_dwordx2 v[24:25], v5, {OUT}, s44 offen {['', 'sc1', 'nt', 'sc0 sc1'][opt.get('ost', 1)]}
    s_mov_b64 exec, -1
    """)
    wp(a, opt, 3)
    a("s_add_u32 s6, s6, 1\n s_cmp_lt_u32 s6, 32")
    a.fence()
    a("s_cbranch_scc1 R_loop\n s_waitcnt vmcnt(0)")
    wp_dump(a, opt)
    tl(a, opt, 3)
    a("s_waitcnt vmcnt(0)\n s_endpgm")

def build(opt):
    from chain import role_chain
    global ST2
    ST2 = ['sc1', 'sc1 nt', ''][opt.get('st2', 0)]
    a = Asm()
    prologue(a, opt)
    if not opt.get("nocfr"): role_R(a, opt)
    role_chain(a, opt)
    role_B(a, opt)
    if not opt.get("nocfr"):
        role_C(a, opt)
        role_F(a, opt)
    a("L_code_end:")
    hdr = open("cdna_kernels/%s.s.ref" % NAME).read().split("; Override")[0] if opt.get("hdr", True) else ""
    k = NAME + "_kernel"
    return f"""{hdr}; @launch grid=(256,1,1) block=(256,1,1) lds={LDS_BYTES}
.amdgcn_target "amdgcn-amd-amdhsa--gfx950"
.text
.globl {k}
.p2align 8
.type {k},@function
{k}:
{a.text()}.section .rodata,"a"
.p2align 6
.amdhsa_kernel {k}
  .amdhsa_next_free_vgpr 512
  .amdhsa_next_free_sgpr 102
  .amdhsa_accum_offset 256
  .amdhsa_group_segment_fixed_size 0
  .amdhsa_kernarg_size 120
  .amdhsa_user_sgpr_count 2
  .amdhsa_user_sgpr_kernarg_segment_ptr 1
  .amdhsa_system_sgpr_workgroup_id_x 1
.end_amdhsa_kernel
"""

if __name__ == "__main__":
    opt = {}
    out = "cdna_kernels/%s.s" % NAME
    for arg in sys.argv[1:]:
        k, _, v = arg.partition("=")
        if k == "out": out = v
        elif k in ("stamps", "drop", "xp"): opt[k] = v.split(",")
        else: opt[k] = int(v, 0) if v else 1
    open(out, "w").write(build(opt))
    print("wrote", out)
```

```python
from asmlib2 import *
import gen as G

vLin, vPub, vT, vMem0, vIdx, vQw, vOr, vPst = ["v%d" % i for i in range(8)]
vQr, vOw, vInf, vJunk, vKa, vQq = "v8", "v9", "v20", "v21", "v22", "v23"
vW, vKp = "v8", "v9"
FB, SEL, ONES, KV = 10, 12, 16, 60
MEMA, ACQ, ACK = 24, 56, 64
LS = MEMA + 16
ACV, QBUF = 72, [88, 96, 104, 112, 120]
QS = 1280
L_MX, L_QK, L_AW, L_W = 0, 8192, 13312, 29696
L_OB = L_MX
SM = "v_smfmac_f32_16x16x64_bf16"
MF = "v_mfma_f32_16x16x32_bf16"
MF16 = "v_mfma_f32_16x16x16_bf16"

def zero(a, lo, hi, val="0"):
    for r in range(lo, hi, 2): a(f"v_mov_b64 {vr(r, 2)}, {val}")
def busy(a, n):
    for _ in range(n): a(f"v_mov_b32 {vT}, 0\n s_nop 2")
def wq_half(j, h): return f"ds_read_b128 {vr(QBUF[j % 5] + 4*h)}, {vW} offset:{G.WSTR + j*2048 + 1024*h}"
KX, VX = 72, 104
NK = 224
def kx_load(f, dst, fl="sc1"): return f"buffer_load_dwordx4 {dst}, {vLin}, {G.WS}, {('s52', 's87')[f // 4]} offen offset:{(f % 4)*1024} {fl}"
def vx_load(f, fl="sc1"): return f"buffer_load_dwordx4 {vr(VX + 4*f)}, {vLin}, {G.WS}, s57 offen offset:{f*1024} {fl}"
def addr_prep(a):
    for u in range(1, 4): a(f"v_add_u32 v{LS + 4*u}, s{80+u}, {vLin}")

def next_seg(a, P):
    a(f"""
    v_readfirstlane_b32 s84, v{FB}
    v_readfirstlane_b32 s85, v{FB+1}
    s_mov_b32 s57, s56
    s_add_u32 s90, s6, 2
    s_cmp_lt_u32 s90, 64
    s_cselect_b32 s7, 0x80000, 0
    s_add_u32 s52, s52, s7
    s_min_u32 s90, s90, 63
    s_lshr_b32 s91, s90, 1
    s_bitcmp1_b32 s90, 0
    s_cselect_b32 s7, s85, s84
    s_cmp_gt_u32 s7, s91
    s_cbranch_scc0 {P}_fbwait
    {P}_fbok:
    s_add_u32 s87, s52, 0x1000
    s_add_u32 s56, s52, s95
    s_lshl_b32 s94, s3, 13
    s_add_u32 s94, s94, s52
    """)

def ring_next(a):
    a(f"""
    s_mov_b32 s51, s48
    s_and_b32 s7, s6, 3
    s_lshl_b32 s48, s7, 13
    s_add_u32 s48, s48, {G.MEMB}
    s_lshr_b32 s97, s7, 1
    s_sub_u32 s98, s97, 1
    s_mov_b32 s99, s98
    s_and_b32 s7, s7, 1
    s_lshl_b32 s7, s7, 18
    s_add_u32 s45, s7, {G.PART}
    s_add_u32 s46, s45, 0x1000
    s_add_u32 s47, s44, s7
    """)

def fb_wait(a, P, prof=0):
    a(f"{P}_fbwait:")
    if prof: a("s_add_u32 s24, s24, 59")
    a("s_and_b32 s92, s90, 1\n s_lshl_b32 s92, s92, 2\n s_add_u32 s92, s92, s55\n s_add_u32 s93, s91, 1")
    G.wait_scalar(a, G.WS, "s92", "s93", "s7", vT, 1)
    a(f"s_branch {P}_fbok")

def startup(a, opt):
    WS, DBG, WSTR = G.WS, G.DBG, G.WSTR
    a("L_chain:")
    G.srd(a, 20, G.P_MEM0, 8192); G.srd(a, 24, G.P_WQ, 0x400000); G.srd(a, 28, G.P_WK, 0x400000)
    G.srd(a, 32, G.P_WV, 0x400000); G.srd(a, 36, G.P_WO, 0x400000)
    G.make_sel(a, SEL, 20)
    a(f"""
    v_mov_b32 v22, v0
    v_lshlrev_b32 v0, 4, v0
    v_and_b32 v24, 1, v2
    v_lshrrev_b32 v25, 2, v2
    v_and_b32 v26, 3, v2
    v_lshrrev_b32 v28, 1, v2
    v_and_b32 v29, 1, v1
    v_lshrrev_b32 v23, 1, v1
    ; weight voffsets: rows 128w + 32(g/2) + 8(g%2), column bytes 256h + 16n
    v_lshlrev_b32 v27, 18, v23
    v_lshl_add_u32 v27, v29, 16, v27
    v_lshl_add_u32 v27, v2, 4, v27
    s_lshl_b32 s90, s4, 8
    s_lshl_b32 s91, s3, 20
    s_add_u32 s90, s90, s91
    v_add_u32 v30, s90, v27
    v_add_u32 v31, 8192, v30
    ; LDS scatter bases. q,k (v16): region swap(n/4), slot (w - n/4)%4 ; v (v17): region n/4, slot (w - 2 - n/8)%4
    v_lshlrev_b32 v18, 8, v1
    v_lshl_add_u32 v18, v26, 6, v18
    v_add_u32 v18, {L_W}, v18
    s_mov_b32 s90, {WSTR}
    v_lshrrev_b32 v27, 1, v25
    v_and_b32 v19, 1, v25
    v_lshl_add_u32 v19, v19, 1, v27
    v_mul_lo_u32 v16, v19, s90
    v_sub_u32 v19, s3, v25
    v_and_b32 v19, 3, v19
    v_lshl_add_u32 v16, v19, 12, v16
    v_add_u32 v16, v16, v18
    v_mul_lo_u32 v17, v25, s90
    v_sub_u32 v19, s3, v27
    v_add_u32 v19, 2, v19
    v_and_b32 v19, 3, v19
    v_lshl_add_u32 v17, v19, 12, v17
    v_add_u32 v17, v17, v18
    ; v18 = own pair of regions (2(w%2)), v19 = own q/k region
    s_and_b32 s91, s3, 1
    s_mul_i32 s91, s91, {2*WSTR}
    s_add_u32 s91, s91, {L_W}
    v_add_u32 v18, s91, {vLin}
    s_lshr_b32 s7, s3, 1
    s_mul_i32 s7, s7, {WSTR}
    v_add_u32 v19, s7, v18
    ; Wo voffset (v11): rows 16(g/2)+4(g%2), column bytes 256w + 16n, head base
    v_lshlrev_b32 v27, 14, v23
    v_lshl_add_u32 v27, v29, 12, v27
    v_lshl_add_u32 v27, v2, 4, v27
    s_lshl_b32 s90, s4, 17
    s_lshl_b32 s91, s3, 8
    s_add_u32 s90, s90, s91
    v_add_u32 v11, s90, v27
    v_mov_b32 v20, 0x4444
    v_mov_b32 v21, 0xeeee
    v_cmp_eq_u32 vcc, 0, v24
    v_cndmask_b32 {vIdx}, v21, v20, vcc
    s_lshl_b32 s86, s3, 10
    s_add_u32 s90, s86, {L_MX}
    v_add_u32 {vMem0}, s90, {vLin}
    ; q write: QK + w*QS + (n/4)*128 + 2g*16 + (n%4)*4
    v_lshlrev_b32 {vQw}, 7, v25
    v_lshl_add_u32 {vQw}, v1, 5, {vQw}
    v_lshl_add_u32 {vQw}, v26, 2, {vQw}
    s_mul_i32 s90, s3, {QS}
    s_add_u32 s90, s90, {L_QK}
    v_add_u32 {vQw}, s90, {vQw}
    ; v27 = g*128 + (2(n/4) + n%2)*16 ; lanes n%4 < 2 carry keys, the others queries
    v_lshl_add_u32 v27, v25, 1, v24
    v_lshlrev_b32 v27, 4, v27
    v_lshl_add_u32 v27, v1, 7, v27
    v_cmp_gt_u32 vcc, 2, v26
    v_mov_b32 v20, {L_QK}
    v_mov_b32 v21, {L_QK + 640}
    v_cndmask_b32 v20, v20, v21, vcc
    v_add_u32 {vQr}, v20, v27
    s_add_u32 s90, s86, {L_OB}
    v_add_u32 v20, s90, v27
    v_add_u32 v21, 512, v20
    v_cndmask_b32 {vOw}, v20, v21, vcc
    ; o read: OB + (2g + n%2)*128 + (n/2)*16
    v_lshl_add_u32 v27, v1, 1, v24
    v_lshlrev_b32 v27, 7, v27
    v_lshl_add_u32 v27, v28, 4, v27
    v_add_u32 {vOr}, {L_OB}, v27
    ; partial store: (8w + 2(n/4) + g/2)*8192 + (g%2)*2048 + 64h + 16(n%4)
    v_lshl_add_u32 v27, v25, 1, v23
    v_lshlrev_b32 v27, 13, v27
    v_lshl_add_u32 v27, v29, 11, v27
    v_lshl_add_u32 v27, v26, 4, v27
    s_lshl_b32 s90, s3, 16
    s_lshl_b32 s91, s4, 6
    s_add_u32 s90, s90, s91
    v_add_u32 {vPst}, s90, v27
    ; mem0 voffset (v25): (n/2)*1024 + 2*(128w + 32g + 16(n%2))
    v_lshlrev_b32 v25, 10, v28
    v_lshl_add_u32 v25, v1, 6, v25
    v_lshl_add_u32 v25, v24, 5, v25
    s_lshl_b32 s91, s3, 8
    v_add_u32 v25, s91, v25
    ; key image read (v24): QK + 640 + (2(w%2) + g/2)*QS + (lane%32)*16
    s_and_b32 s91, s3, 1
    s_mul_i32 s91, s91, {2*QS}
    s_add_u32 s91, s91, {L_QK + 640}
    v_mul_u32_u24 v24, {QS}, v23
    v_and_b32 v27, 31, v22
    v_lshl_add_u32 v24, v27, 4, v24
    v_add_u32 v24, s91, v24
    ; publish: (w/2)*4096 + h*128 + (w%2)*64 + g*32 + n*8   (lanes g<2, n<4)
    s_lshr_b32 s90, s3, 1
    s_lshl_b32 s90, s90, 12
    s_lshl_b32 s91, s4, 7
    s_add_u32 s90, s90, s91
    s_and_b32 s91, s3, 1
    s_lshl_b32 s91, s91, 6
    s_add_u32 s90, s90, s91
    v_lshlrev_b32 v27, 5, v29
    v_lshl_add_u32 v27, v26, 3, v27
    v_add_u32 {vPub}, s90, v27
    s_mov_b32 s58, 0x000f000f
    s_mov_b32 s59, 0
    s_lshl_b32 s44, s4, 2
    s_add_u32 s44, s44, s3
    s_lshl_b32 s44, s44, 11
    s_add_u32 s44, s44, {G.PART}
    s_lshl_b32 s55, s4, 7
    s_lshl_b32 s54, s3, 2
    s_add_u32 s54, s54, s55
    s_add_u32 s54, s54, {G.FLG_FH}
    s_add_u32 s55, s55, {G.FLG_FB}
    """)
    for u in range(1, 4):
        a(f"s_add_u32 s7, s3, {u}\n s_and_b32 s7, s7, 3\n s_lshl_b32 s7, s7, 10\n s_add_u32 s{80+u}, s7, {L_MX}")
    zero(a, 20, 24, "-1")
    for sl in range(2):
        a(f"s_add_u32 s7, s44, {sl*0x40000}")
        for o in (0, 1024): a(f"buffer_store_dwordx4 v[20:23], {vLin}, {WS}, s7 offen offset:{o} sc1")
    a("s_mov_b64 exec, s[58:59]")
    for sl in range(4):
        a(f"s_mov_b32 s7, {G.MEMB + sl*8192}\n buffer_store_dwordx2 v[20:21], {vPub}, {WS}, s7 offen sc1")
    a("s_mov_b64 exec, -1")
    G.flag_store(a, "s54", "0", "v27")
    def job(srdn, vdst, done):
        return dict(kind='lds', srd=srdn, stride=8192, v0="v30", v1="v31", vdst=vdst,
                    row=lambda u: 64*((u//4) % 2) + 16*(u % 2) + 4*(u//8) + 2*((u//2) % 2),
                    imm=lambda grp, c: (grp//2)*16384 + (c % 2)*2048 + (grp % 2)*1024 + (c//2)*16, done=done)
    def pick(fa, fv, after=None):
        def done():
            lv, le = a.label("PV"), a.label("PE")
            a(f"s_waitcnt lgkmcnt(0)\n s_barrier\n s_cmp_ge_u32 s3, 2\n s_cbranch_scc1 {lv}")
            fa()
            a(f"s_branch {le}\n{lv}:")
            fv()
            a(f"{le}:\n s_waitcnt lgkmcnt(0)\n s_barrier")
            if after: after()
        return done
    def rd(src, dst, off=0):
        return lambda: [a(f"ds_read_b128 {dst(f)}, {src} offset:{off + f*1024}") for f in range(32)]
    nothing = lambda: None
    def wo_group(grp):
        if grp == 2: a(f"buffer_load_dwordx2 v[30:31], off, {WS}, s55 sc1")
        if grp == opt.get("wg", 2) and opt.get("wr", 1) & 1:
            a(f"v_lshlrev_b32 v64, 1, {vLin}\n v_lshlrev_b32 v65, 3, {vLin}\n s_add_u32 s7, s44, 0x40000\n s_lshl_b32 s90, s3, 13\n s_add_u32 s90, s90, {G.MEMB}")
            a(f"buffer_load_dword v66, v64, {WS}, s44 offen sc1\n buffer_load_dword v67, v64, {WS}, s7 offen sc1\n buffer_load_dword v68, v65, {WS}, s90 offen sc1")
        if grp == opt.get("wg", 2) and opt.get("wr", 1) & 2:
            a(f"""
            s_getpc_b64 s[60:61]
            L_pc0:
            s_add_u32 s60, s60, FA_loop-L_pc0
            s_addc_u32 s61, s61, 0
            s_mov_b32 s62, SA_loop-FA_loop
            s_mov_b32 s63, 0x20000
            v_lshlrev_b32 v69, 2, {vLin}
            s_lshl_b32 s7, s3, 12
            buffer_load_dword v69, v69, s[60:63], s7 offen
            """)
        lv, le = a.label("OV"), a.label("OE")
        a(f"s_cmp_ge_u32 s3, 2\n s_cbranch_scc1 {lv}")
        for c in range(6):
            for r in range(4): a(f"v_accvgpr_write_b32 a{128 + (c*2 + grp//2)*8 + (grp % 2)*4 + r}, v{32 + 4*c + r}")
        for c in (6, 7): a(f"ds_write_b128 {vMem0}, {vr(32 + 4*c)} offset:{L_AW + (((c - 6)*2 + grp//2)*2 + grp % 2)*2048}")
        a(f"s_branch {le}\n{lv}:")
        for c in range(8): a(f"ds_write_b128 v18, {vr(32 + 4*c)} offset:{(c*2 + grp//2)*2048 + (grp % 2)*1024}")
        a(f"{le}:")
    def early():
        for hf in range(2):
            for c in range(2):
                a(f"buffer_load_dwordx2 {vr((20, 26)[hf] + 2*c, 2)}, v25, {G.OUT}, 0 offen offset:{8*hf + 16*c}")
        a(f"buffer_load_dword v16, off, {DBG}, 0 offset:{G.D_GO} sc1\n buffer_load_dword v17, off, {DBG}, 0 sc1")
    kd = G.lds_to_regs(a, "v19", lambda f: ar(4*f))
    jobs = [dict(job(G.W2, "v16", kd), first=lambda: G.init_arrive(a, "v27")),
            job(G.W1, "v16", G.lds_to_regs(a, "v19", lambda f: vr(128 + 4*f))),
            job(G.W3, "v17", pick(nothing, rd("v18", lambda f: ar(128 + 4*f)), early)),
            dict(kind='lds', srd=G.W4, stride=1024, v0="v11", row=lambda u: 64*(u//8) + 32*((u//4) % 2) + 8*(u % 2) + 2*((u//2) % 2), group=wo_group)]
    G.load_stream(a, jobs, tmp=64, depth=8, out=32)
    a("s_waitcnt vmcnt(0)")
    G.tl(a, opt, 4, "v32")
    a(f"""
    v_mov_b32 v33, v24
    v_readfirstlane_b32 s7, v16
    v_readfirstlane_b32 s43, v17
    v_mov_b64 {vr(LS, 2)}, v[26:27]
    v_mov_b64 {vr(LS+2, 2)}, v[28:29]
    v_mov_b64 v[24:25], v[20:21]
    v_mov_b64 v[26:27], v[22:23]
    s_cmp_ge_u32 s7, 1
    s_cbranch_scc1 L_chain_up
    """)
    G.wait_go(a, vT, 2)
    G.wait_scalar(a, DBG, 0, 0, "s43", vT, 2)
    a(f"""
    buffer_load_dwordx2 v[30:31], off, {WS}, s55 sc1
    s_waitcnt vmcnt(0)
    L_chain_up:
    v_mov_b64 {vr(FB, 2)}, v[30:31]
    s_lshl_b32 s52, s4, 14
    s_add_u32 s52, s52, {G.KXV - 0x80000}
    s_and_b32 s7, s3, 1
    s_lshl_b32 s95, s7, 12
    s_add_u32 s95, s95, 0x2000
    s_mov_b32 s56, 0
    s_lshl_b32 s53, s4, 12
    s_add_u32 s53, s53, {G.KVM - 0x20000}
    s_lshl_b32 s7, s7, 10
    s_add_u32 s53, s53, s7
    """)
    a(f"""
    s_mov_b32 s50, {G.MEMB}
    s_mov_b32 s80, 0
    s_mov_b32 s78, {G.f32bits(float(opt.get("thr", 12)))}
    s_mov_b64 s[88:89], 0
    s_mov_b32 s48, {G.MEMB + 3*8192}
    s_waitcnt lgkmcnt(0)
    s_mov_b32 s6, -2
    """)
    next_seg(a, "C1")
    for f in range(8): a(kx_load(f, vr(KX + 4*f)))
    a(f"v_lshlrev_b32 v56, 2, {vLin}\n buffer_load_dword v56, v56, {WS}, s56 offen sc1\n s_mov_b32 s6, -1")
    next_seg(a, "C0")
    a("s_waitcnt vmcnt(0)")
    G.tl(a, opt, 2, "v56", True)
    a("s_mov_b32 s6, 0")
    ring_next(a)
    addr_prep(a)
    if opt.get("prof"):
        for k in range(20, 32): a(f"s_mov_b32 s{k}, 0")
    a("s_cmp_ge_u32 s3, 2\n s_cbranch_scc1 L_vstart")
    for r in range(4): a(f"v_mov_b32 v{ONES+r}, 0x3f803f80")
    zero(a, ACQ, ACQ + 16)
    a(f"v_mov_b32 {vKa}, v33")
    a(f"v_and_b32 {vQq}, 32, {vLin}\n v_mul_u32_u24 {vQq}, 20, {vQq}\n v_add_u32 {vQq}, {vQq}, {vQr}\n v_subrev_u32 {vQq}, 640, {vQq}")
    a(f"v_and_b32 {vInf}, 32, {vLin}\n v_lshlrev_b32 {vInf}, 26, {vInf}\n v_or_b32 {vInf}, 0x7f800000, {vInf}")
    a.fence()
    a("s_cmp_lt_u32 s43, 32\n s_cbranch_scc1 SA_loop\n s_branch FA_loop\nL_vstart:")
    a(f"v_mov_b32 {vW}, v18\n v_mov_b32 {vKp}, v33\n v_subrev_u32 v10, 2048, {vMem0}")
    zero(a, 16, 20, "-1")
    for j in range(5):
        for h in range(2): a(wq_half(j, h))
    zero(a, ACQ, ACQ + 32)
    a("s_waitcnt lgkmcnt(0)")
    a.fence()
    a("s_cmp_lt_u32 s43, 32\n s_cbranch_scc1 SV_loop\n s_branch FV_loop")
    fb_wait(a, "C0")
    fb_wait(a, "C1")

def loop(a, opt, P, st, A):
    WS = G.WS
    prof = opt.get("prof"); free = opt.get("free")
    cnt = [0]
    sel = opt.get("stamps")
    dflt = ("top", "end", "15", "31", "sc", "pv", "wo", "w9", "h1")
    def stamp(k):
        if prof == 1 and (k in ("top", "end") or str(k) in (sel or dflt)):
            i = cnt[0]; cnt[0] += 1
            assert i < 9
            a(f"s_mem{'real' if opt.get('trace') else ''}time s[{60+2*i}:{61+2*i}]")
    tk = {}
    fill = {}
    def F(i, x, cls=None):
        if cls is None: cls = 1 if (isinstance(x, str) and x.startswith("v_")) else 0
        fill.setdefault(i, []).append((cls, x if callable(x) else (lambda: a(x))))
    def D(i, key, text, cls=0): F(i, lambda: tk.__setitem__(key, a.ds(text)), cls)
    def W(i, key): F(i, lambda: a.wait_ds(tk[key]))
    def Z(i, lo, hi, val="0"):
        for r in range(lo, hi, 2): F(i, f"v_mov_b64 {vr(r, 2)}, {val}")
    def run(i):
        for cls, f in sorted(fill.pop(i, []), key=lambda e: e[0]): f()
    def mem_rd(i, tau): D(i, ("m", tau), f"ds_read_b128 {vr(MEMA + 4*tau)}, v{LS + 4*(tau % 4)} offset:{4096*(tau//4)}")
    nw = opt.get("nw", 0x60)
    val = opt.get("val", 1)
    def bar(i, bit=0):
        if not nw >> bit & 1: W(i, "wr")
        F(i, "s_barrier")
    def add(r): return f"v_add_f32 v{r}, v{r}, v{r+1}"
    def cvt(d, x, y): return f"v_cvt_pk_bf16_f32 v{d}, v{x}, v{y}"
    def smv(tau, t4):
        j = 2*tau + t4 % 2
        def emit():
            if t4 >= 2 and j >= 5: a.wait_ds(tk[("w", j)])
            a(f"{SM} {vr(ACV + 4*t4)}, {vr(MEMA + 4*tau)}, {ar(128 + j*8, 8) if t4 < 2 else vr(QBUF[j % 5], 8)}, {vIdx}")
            if pend:
                jp = pend.pop(); tk[("w", jp)] = a.ds(wq_half(jp, 1))
            if t4 >= 2 and j + 5 < 16:
                a.ds(wq_half(j + 5, 0)); pend.append(j + 5)
        return emit
    pend = []
    a(".p2align 6")
    for _ in range(opt.get("ala", 4) if A else opt.get("alv", 1)): a.lines.append("    s_nop 0")
    a(f"{P}_loop:")
    a.drop = tuple(opt.get("drop", ()))
    stamp("top")
    nk = opt.get("nk", 6)
    ke = [("k", tau, T) for tau in range(1, 4) for T in range(2)]
    seq = [(m, 0, T) for T in range(2) for m in "qk"] + [("q", tau, T) for tau in range(1, 4) for T in range(2)] + ke[:nk]
    seq += [("q", tau, T) for tau in range(4, 8) for T in range(2)] + ke[nk:] + [("k", tau, T) for tau in range(4, 8) for T in range(2)]
    qpos = {2*t + T: i for i, (m, t, T) in enumerate(seq) if m == "q"}
    qe = qpos[15]
    q3 = min(qe + opt.get("q3", 8), 31)
    lc = opt.get("lc", 10); b2 = lc + opt.get("lb", 5)
    lw = opt.get("lw", 1)
    assert b2 <= qpos[8]
    lg = opt.get("lg", 2)
    lload = f"buffer_load_dwordx4 {vr(LS)}, {vLin}, {WS}, s50 offen sc1"
    F(lg, "s_mov_b64 exec, s[88:89]")
    F(lg, lambda: tk.__setitem__("L", a.vm(lload)))
    F(lg, "s_mov_b64 exec, -1")
    if opt.get("wm", 1) & 1:
        for u in range(1, 4): F(u - 1, f"v_add_u32 v{LS + 4*u}, s{80+u}, {vLin}")
    b1 = opt.get("b1", 3)
    bar(b1, 1)
    sp = opt.get("sp", 16)
    for u in range(1, 4): mem_rd(b1, u)
    def M_(i, key, text): F(i, lambda: tk.__setitem__(key, a.vm(text)))
    if A:
        xp = [int(p) for p in opt.get("xp", (3, 3, 3, 3, 5, 6, 7, 8, 9, 11, 12, 13, 14))]
        ta = opt.get("ta", 0)
        kf_, vf_, th = ["sc1", ""][opt.get("kp", 1)], ["sc1", ""][opt.get("vp", 1)], opt.get("th", 0)
        F(4, f"v_lshlrev_b32 {vJunk}, {3 if th else 2}, {vLin}")
        np_ = opt.get("nopf", 0)
        if not np_ & 1:
            for f in range(4): M_(xp[f], "vx", vx_load(f, vf_))
        tch = f"buffer_load_dword {vJunk}, {vJunk}, {WS}, s56 offen {vf_}"
        if not np_ & 2: F(xp[4], f"s_mov_b32 exec_hi, 0\n {tch}\n s_mov_b32 exec_hi, -1" if th else tch)
        if not np_ & 4:
            for f in range(8): F(xp[5 + f], kx_load(f, ar(NK + 4*f), kf_))
        F(sp, f"buffer_load_dwordx2 {vr(FB, 2)}, off, {WS}, s55 sc1")
        kvst = [f"buffer_store_dwordx4 {vr(120 + 4*k)}, {vLin}, {WS}, s53 offen offset:{2048*k} sc1" for k in range(2)]
        flst = f"s_mov_b64 exec, 1\n buffer_store_dword {vT}, off, {WS}, s54 sc1\n s_mov_b64 exec, -1"
        ks = opt.get("ks", 1)
        if opt.get("nokvm"): kvst = ["s_nop 0", "s_nop 0"]; flst = "s_nop 0"
        assert sp >= b2
        F(sp + 1, f"v_mov_b32 {vT}, s80")
        if not ks:
            for k in range(2): F(sp + 4 + k*opt.get("k2", 1), kvst[k])
            F(sp + 2, flst)
    else:
        nv0, nv1, nv2 = opt.get("nv0", 4), opt.get("nv1", 0), opt.get("nv2", 1)
        vs = [(tau, t4) for tau in range(6) for t4 in (2, 0, 3, 1)] + [(6, 2), (6, 0), (6, 3), (7, 2), (7, 3), (7, 0), (6, 1), (7, 1)]
        for k in range(nv0): F(3, smv(*vs.pop(0)))
        for k in range(nv1): F(lc, smv(*vs.pop(0)))
        for k in range(opt.get("nvb", 0)): F(b2, smv(*vs.pop(0)))
        for k in range(nv2): F(qpos[10] - 1, smv(*vs.pop(0)))
        for k in range(opt.get("nv3", 0)): F(q3, smv(*vs.pop(0)))
    W(3, ("m", 1)); W(5, ("m", 3))
    F(5, lambda: busy(a, opt.get("xe", 0)))
    lwr = f"ds_write_b128 {vMem0}, {vr(LS)} offset:4096"
    if lw:
        F(lc, lambda: a.wait_vm(tk["L"]))
        D(lc, "wr", lwr)
        F(lc+1, f"v_max3_u32 {vT}, v{LS}, v{LS+1}, v{LS+2}")
        F(lc+2, f"v_max_u32 {vT}, {vT}, v{LS+3}")
        F(lc+3, f"v_cmp_eq_u32 vcc, -1, {'v0' if free else vT}")
    else:
        F(lc-1, f"v_max3_u32 {vT}, v{LS}, v{LS+1}, v{LS+2}", 2)
        F(lc-1, f"v_max_u32 {vT}, {vT}, v{LS+3}", 2)
        D(lc, "wr", lwr)
        F(lc, f"v_cmp_eq_u32 vcc, -1, {'v0' if free else vT}")
        if not A: F(q3 - 1, "s_waitcnt vmcnt(0)")
    assert lc + 3 < b2 or free
    F(min(b2, qpos[8] - 1), lambda: (tk.__setitem__("Ln", a.vm_n - tk["L"]), a(f"s_cbranch_vccnz {P}_lretry\n{P}_lok:")))
    bar(b2, 2); mem_rd(b2, 5); mem_rd(b2+1, 6); mem_rd(b2+1, 7)
    if A and val and opt.get("pa", 1):
        if not lw: F(qe - 5, lambda: a.wait_vm(tk["L"]))
        F(qe - 5, "v_mov_b64 v[24:25], -1"); F(qe - 4, "v_mov_b64 v[26:27], -1")
        D(qe - 3, "_", f"ds_write_b128 {vMem0}, v[24:27]"); D(qe - 1, "_", f"ds_write_b128 {vMem0}, v[24:27] offset:2048")
    if not A and val and not opt.get("pa", 1):
        pp = opt.get("pp", 20)
        D(pp, "_", f"ds_write_b128 v10, v[16:19]"); D(pp + opt.get("pq", 2), "_", f"ds_write_b128 v10, v[16:19] offset:2048")
    W(qpos[10] - 1, ("m", 5)); W(qpos[12] - 1, ("m", 7))
    F(28, "s_add_u32 s49, s48, s86\n s_add_u32 s50, s49, 0x1000")
    F(29, "s_mov_b64 s[88:89], -1")
    F(qe+1, add(56)); F(qe+1, add(58)); F(qe+2, add(60)); F(qe+2, add(62))
    F(qe+2, cvt(56, 56, 60)); F(qe+2, cvt(57, 58, 62))
    D(qe+3, "wr", f"ds_write2_b32 {vQw}, v56, v57 offset0:0 offset1:4")
    bar(q3, 3)
    if A:
        for t in range(4): D(min(q3 + (t + 1)//2, 31), ("q", t), f"ds_read_b128 {vr(24 + 4*t)}, {vQq} offset:{t*QS}")
    if not A: F(0, {0: "s_nop 0\n s_nop 0", 1: "s_memrealtime s[60:61]", 2: "s_memtime s[60:61]"}[opt.get("per", 0)])
    cl_ = "a" if A else "v"
    def pad(key, slots):
        for k in range(opt.get(key + cl_, 0)): F(slots[k % len(slots)], "s_nop 0")
    pad("p1", (0, 1, 0, 1, 4, 6, 8) if A else (0, 1, 4, 6, 7, 8, 9))
    pad("p2", (19, 21, 23, 19, 21, 23, 14) if A else (18, 20, 21, 22, 23, 14, 20))
    pad("p3", (27, 30, 27, 30, 29, 27, 30))
    tk["wr"] = a.ds(f"ds_write_b128 {vMem0}, {vr(MEMA)}")
    for i, (m, tau, T) in enumerate(seq):
        j = 2*tau + T
        B = vr(128 + j*8, 8) if m == "q" else ar(j*8, 8)
        a(f"{SM} {vr((ACQ if m == 'q' else ACK) + 4*T)}, {vr(MEMA + 4*tau)}, {B}, {vIdx}")
        run(i)
        stamp(i)
    assert not fill, fill.keys()
    kfold = [add(64), add(66), add(68), add(70), cvt(64, 64, 68), cvt(65, 66, 70)]
    kwr = f"ds_write2_b32 {vQw}, v64, v65 offset0:160 offset1:164"
    inbox = f"buffer_load_dwordx4 v[28:31], {vLin}, {WS}, s47 offen sc1\n buffer_load_dwordx4 v[32:35], {vLin}, {WS}, s47 offen offset:1024 sc1"
    if A:
        QB, KB, X0, X1, M, t0 = 24, 40, 56, 60, 120, 124
        PX, PM, PXB, PMB, VM, O, Lr, PKO = 48, 68, 52, 64, 24, 28, 44, 120
        WA, OA, PK = [56, 60, 28, 32, 24, 36, 40, 44], 120, [64, 68]
        xl = []
        tq = [tk[("q", t)] for t in range(4)]
        kf = opt.get("kf", 1)
        if kf:
            for x in kfold: a(x)
            tk["wr"] = a.ds(kwr)
        else:
            a(kfold[0]); a(kfold[1])
            for x in kfold[2:]: F(0, x)
            D(1, "wr", kwr)
        b4 = opt.get("b4", 4)
        ml = opt.get("ml", 0)
        if not ml:
            bar(b4, 4)
            for t in range(4): D(min(b4 + (t + 1)//2, 7), ("k", t), f"ds_read_b128 {vr(KB + 4*t)}, {vQr} offset:{t*QS}")
        if ks:
            F(1, kvst[1]); F(3, kvst[0]); F(7, flst)
        F(2, "v_mov_b32 v68, 0\n v_mov_b32 v70, 0")
        F(0, "v_mov_b32 v65, 0\n v_mov_b32 v67, 0")
        F(6, f"v_max3_f32 v{t0}, v{X0}, v{X0+1}, v{X0+2}")
        for p in (7, 8, 9, 10, 11, 11)[:opt.get("x1", 6)]:
            if xl: F(p, xl.pop(0))
        awr = [f"ds_read_b128 {vr(KX + 4*k)}, {vMem0} offset:{L_AW + k*2048}" for k in range(8)]
        aw = opt.get("aw", 3)
        if not aw:
            for p in (8, 9, 10, 11): F(p, awr.pop(0))
        chain = [f"v_max3_f32 v{t0+1}, v{X0+3}, v{X1}, v{X1+1}", f"v_max3_f32 v{t0}, v{t0}, v{X1+2}, v{X1+3}",
                 f"v_max_f32 v{t0+2}, v{t0}, v{t0+1}", f"v_max_f32 v{t0+3}, v{t0}, v{t0+1}"]
        pad("p4", (8, 8, 6, 9, 10, 3, 1))
        ex = f"s_cmp_eq_u32 s6, 63\n s_cbranch_scc1 L_chain_end"
        if not ml:
            F(9, chain[0]); F(9, chain[1]); F(10, chain[2]); F(10, chain[3]); chain = []
            F(11, ex)
            for t in range(4): W(7 + t, ("k", t))
        if not opt.get("nopf", 0) & 1: F(5, lambda: a.wait_vm(tk["vx"]))
        for t in range(1, 4): F(t - 1, lambda t=t: a.wait_ds(tq[t]))
        def sc(n):
            t = n % 4
            d, Ao, Bo = ((X0, KX + 4*t, QB + 4*t), (X1, KX + 16 + 4*t, QB + 4*t), (M, KB + 4*t, QB + 4*t))[n // 4]
            return f"{MF} {vr(d)}, {vr(Ao)}, {vr(Bo)}, {vr(d) if t else '0'}"
        for n in range(8 if ml else 12):
            if n == 0: a.wait_ds(tq[0])
            a(sc(n))
            run(n)
            stamp("s%d" % n)
        stamp("sc")
        regs = [X0, X0+1, X0+2, X0+3, X1, X1+1, X1+2, X1+3]
        if ml: PX, PXB = 72, 76
        sm = chain + [f"v_permlane16_swap_b32 v{t0+2}, v{t0+3}", f"v_max_f32 v{t0}, v{t0+2}, v{t0+3}", f"v_max_f32 v{t0+1}, v{t0+2}, v{t0+3}"]
        if not ml: sm += ["v_mov_b64 v[40:41], 0", "v_mov_b64 v[42:43], 0"]
        sm += [f"v_permlane32_swap_b32 v{t0}, v{t0+1}", f"v_max3_f32 v{t0}, v{t0}, v{t0+1}, {vInf}", f"v_mul_f32 v{t0}, s42, v{t0}"]
        sm += [f"v_fma_f32 v{r}, v{r}, s42, -v{t0}" for r in regs]
        for k, r in enumerate(regs):
            sm.append(f"v_exp_f32 v{r}, v{r}")
            if k >= 2 and k % 2 == 0: sm.append(cvt(PX + k//2 - 1, regs[k-2], regs[k-1]))
        mb, m0 = opt.get("mb", 0), opt.get("m0", 12)
        for n, x in enumerate(sm):
            if ml and n == mb:
                a.wait_ds(tk["wr"]); a("s_barrier"); a(ex)
                tkk = [a.ds(f"ds_read_b128 {vr(KB + 4*t)}, {vQr} offset:{t*QS}") for t in range(4)]
            if ml and n >= m0 and (n - m0) % 2 == 0 and (n - m0) // 2 < 4:
                t = (n - m0) // 2
                a.wait_ds(tkk[min(t + 1, 3) if t == 0 else 3]); a(sc(8 + t))
            a(x)
        stamp("pv")
        busy(a, opt.get("xs", 0))
        a(f"v_fma_f32 v{M}, v{M}, s42, -v{t0}")
        a(cvt(PX + 3, regs[6], regs[7]))
        a(f"v_fma_f32 v{M+1}, v{M+1}, s42, -v{t0}\n v_exp_f32 v{M+2}, v{M}")
        b5 = opt.get("b5", 3)
        F(b5, "s_barrier")
        D(b5, "vm", f"ds_read_b128 {vr(VM)}, {vMem0} offset:2048")
        def sw(d, x): return f"v_mov_b32_dpp v{d}, v{x} quad_perm:[2,3,0,1] row_mask:0xf bank_mask:0xf"
        mpack = [cvt(64, M+2, M+3), cvt(69, M+2, M+3), sw(66, 64), sw(71, 64)]
        F(0, sw(PXB, PX)); F(0, sw(PXB+1, PX+1)); F(1, sw(PXB+2, PX+2)); F(1, sw(PXB+3, PX+3))
        F(2, f"v_exp_f32 v{M+3}, v{M+1}"); F(2, f"v_max_f32 v{t0+1}, v{M}, v{M+1}")
        F(3, f"v_cmp_lt_f32 s[90:91], s78, v{t0+1}"); F(3, mpack[0]); F(3, mpack[1])
        F(4, mpack[2]); F(4, mpack[3])
        F(4, f"s_cmp_lg_u64 s[90:91], 0\n s_cbranch_scc1 {P}_mfix\n{P}_mok:", 2)
        if not aw:
            for p in (0, 1, 6, 7): F(p, awr.pop(0))
        pv = [f"{MF} {vr(Lr)}, {vr(ONES)}, {vr(PX)}, 0"]
        pv += [f"{MF} {vr(O + 4*(f % 2))}, {vr(VX + 4*f)}, {vr((PX, PXB)[f//2])}, {vr(O + 4*(f % 2)) if f//2 else '0'}" for f in range(4)]
        pv += [f"{MF16} {vr(Lr)}, {vr(ONES, 2)}, v[64:65], {vr(Lr)}"]
        pv += [f"{MF} {vr(O + 4*T)}, {vr(VM)}, {vr(64 + 4*T)}, {vr(O + 4*T)}" for T in range(2)]
        Z(5, 56, 64)
        F(5, lambda: a.wait_ds(tk["vm"]), 2)
        if val:
            F(6, f"v_max3_u32 {vT}, v{VM}, v{VM+1}, v{VM+2}"); F(6, f"v_max_u32 {vT}, {vT}, v{VM+3}")
            F(7, f"v_cmp_eq_u32 vcc, -1, {vT}")
        F(7, f"v_add_f32_dpp v{t0}, v{Lr}, v{Lr} quad_perm:[2,3,0,1] row_mask:0xf bank_mask:0xf")
        F(7, f"v_rcp_f32 v{t0}, v{t0}")
        if val: F(7, f"s_cbranch_vccnz {P}_vredo\n{P}_vok:", 2)
        for n, x in enumerate(pv):
            a(x); run(n)
        for r in range(4): a(f"v_mul_f32 v{O+r}, v{O+r}, v{t0}")
        stamp("p1")
        for r in (4, 6): a(f"v_pk_mul_f32 {vr(O + r, 2)}, {vr(O + r, 2)}, {vr(t0, 2)} op_sel_hi:[1,0]")
        for i in range(4): a(cvt(PKO + i, O + i, O + 4 + i))
        if opt.get("tst"): a("s_barrier\n s_nop 15\n s_nop 15\n s_nop 15")
        a(f"ds_write_b128 {vOw}, {vr(PKO)}")
        if not nw >> 6 & 1: (zero(a, 24, 40), zero(a, 40 if opt.get('ml', 0) else 44, 48))
        stamp("p2")
        wo_reg = lambda j: ar(128 + j*8, 8) if j < 12 else vr(KX + (j - 12)*8, 8)
    else:
        WB = [88, 96, 104, 112, 120, 16, 56, 64]
        WA, OA, PK = [28, 32, 36, 40, 44, 48, 52, 72], 76, [84, 24]
        def woh(j, h): return f"ds_read_b128 {vr(WB[j % 8] + 4*h)}, {vW} offset:{j*2048 + 1024*h}"
        nv = len(vs); sh = 32 - nv
        if opt.get("fs", 0):
            for n, x in enumerate(kfold): F(n, x)
            D(6, "wr", kwr)
        else:
            F(0, kfold[0]); F(0, kfold[1])
            for x in kfold[2:]: F(1, x)
            D(2, "wr", kwr)
        v4 = opt.get("v4", 8)
        bar(v4, 4)
        wl = [(k // 2, k % 2) for k in range(16)]
        if opt.get("pw", 1):
            pos = {2*t + t4 % 2: n for n, (t, t4) in enumerate(vs) if t4 >= 2}
            free_at = {5: 0, 6: 3, 1: pos[11], 2: pos[12], 3: pos[13], 4: pos[14]}
            slot = pos[10] + 2
            for jj in (5, 6, 1, 2, 3, 4):
                for hh in range(2):
                    slot = max(slot, free_at[jj])
                    if slot < nv - 1:
                        D(slot, "_", woh(jj, hh)); wl.remove((jj, hh)); slot += 1
        pad("p4", (4, 6, 10, 12, 14, 16, 18))
        zl = [(r, "0") for r in range(28, 52, 2)]
        for i in range(3, nv - 2):
            if opt.get("zv", 0) and zl and i + sh > (zl[0][0] - MEMA) // 4 * 4 + 3:
                r, val = zl.pop(0); F(i, f"v_mov_b64 {vr(r, 2)}, {val}")
        F(nv-3, add(80)); F(nv-3, add(82)); F(nv-2, add(84)); F(nv-2, add(86))
        for x in (cvt(KV+6, 80, 82), cvt(KV+7, 84, 86), add(72), add(74), cvt(KV+4, 72, 74)): F(nv-1, x)
        for n, (tau, t4) in enumerate(vs):
            if n + 1 < nv and vs[n+1][1] >= 2 and 2*vs[n+1][0] + vs[n+1][1] % 2 >= 5: W(n, ("w", 2*vs[n+1][0] + vs[n+1][1] % 2))
            smv(tau, t4)(); run(n); stamp("v%d" % n)
        assert not fill and not pend
        stamp("sc")
        busy(a, opt.get("xw", 0))
        for x in (add(76), add(78), cvt(KV+5, 76, 78)): a(x)
        if opt.get("tst"): a(f"s_cmp_eq_u32 s6, 63\n s_cbranch_scc1 L_chain_done\n s_barrier\n s_nop 15\n s_nop 15\n s_nop 15")
        tk["wr"] = a.ds(f"ds_write_b128 {vMem0}, {vr(KV+4)}")
        a(f"s_cmp_eq_u32 s6, 63\n s_cbranch_scc1 L_chain_done")
        if nw >> 5 & 1 and not opt.get("tst"): a("s_barrier")
        if not nw >> 5 & 1:
            a.wait_ds(tk["wr"]); a("s_barrier")
        stamp("pv")
        zl += [(52, "0"), (54, "0"), (72, "0"), (74, "0")]
        for n, (r, v_) in enumerate(zl):
            a(f"v_mov_b64 {vr(r, 2)}, {v_}")
            if n >= 2 and wl: a(woh(*wl.pop(0)))
        for x in wl: a(woh(*x))
        busy(a, opt.get("bv", 0))
        wo_reg = lambda j: vr(WB[j % 8], 8)
    a("s_nop 0" if (A and opt.get("tst")) else "s_barrier" if (nw >> 6 & 1) else "s_waitcnt lgkmcnt(0)\n s_barrier")
    to = [a.ds(f"ds_read_b128 {vr(OA + 4*t)}, {vOr} offset:{t*1024}") for t in range(2)]
    if A and nw >> 6 & 1: (zero(a, 24, 40), zero(a, 40 if opt.get('ml', 0) else 44, 48))
    busy(a, opt.get("bo2", 0))
    stamp("wo")
    def wf(T, h): return add(WA[T] + 2*h)
    def wpk(T, h): return cvt(PK[T//4] + (T % 4)//2 + 2*h, WA[T] + 2*h, WA[T+1] + 2*h)
    def tag(T, h):
        r = PK[T//4] + (T % 4)//2 + 2*h
        return f"v_and_or_b32 v{r}, v{r}, -2, s97"
    def wst(hf): return f"buffer_store_dwordx4 {vr(PK[hf])}, {vPst}, {WS}, s{45+hf} offen {st}"
    post = {3: [wf(0, 0)], 4: [wf(0, 1)], 5: [wf(1, 0), wf(1, 1)], 6: [wpk(0, 0), wpk(0, 1)],
            7: [wf(2, 0), wf(2, 1)], 8: [tag(0, 0), tag(0, 1)], 9: [wf(3, 0), wf(3, 1), wpk(2, 0), wpk(2, 1), tag(2, 0), tag(2, 1)],
            11: [wf(4, 0)], 12: [wf(4, 1)], 13: [wf(5, 0), wf(5, 1)], 14: [wpk(4, 0), wpk(4, 1)], 15: [wf(6, 0), wf(6, 1), tag(4, 0), tag(4, 1)]}
    for j, xs in post.items():
        for x in xs: F(j, x)
    pad("p5", (1, 2, 1, 3, 4, 2, 0))
    pad("p6", (10, 12, 10, 13, 14, 12, 11))
    F(9, wst(0), 2)
    if val:
        F(5, f"v_cmp_u_f32 vcc, v{WA[0]}, v{WA[0]+2}")
        F(8, f"s_cbranch_vccnz {P}_oredo\n{P}_ook:")
    F(0, lambda: a.wait_ds(to[1]))
    if A and aw:
        for k, x in enumerate(awr): D(k + aw - 1, "aw", x)
        W(11, "aw")
    if not A:
        for j in range(8, 16):
            p0, p1 = [(j - 8 + (j - 8)//2, j - 8 + (j - 7)//2), {8: (0, 1), 9: (2, 3), 10: (4, 5), 11: (6, 7), 12: (8, 8), 13: (9, 9), 14: (10, 10), 15: (11, 11)}[j]][opt.get("vs", 0)]
            D(p0, "_", woh(j, 0), 3 if p0 == 9 else 0); D(p1, ("o", j), woh(j, 1), 3 if p1 == 9 else 0); W(j - 1, ("o", j))
    a.wait_ds(to[0])
    a(f"{P}_wo:")
    for j in range(16):
        T, t = j // 2, j % 2
        a(f"{SM} {vr(WA[T])}, {vr(OA + 4*t)}, {wo_reg(j)}, {vIdx}")
        run(j)
        stamp("w%d" % j)
    ein = opt.get("ein", 0) if A else 0
    if ein == 1: a(inbox)
    for x in (wf(7, 0), wf(7, 1), wpk(6, 0), wpk(6, 1), tag(6, 0), tag(6, 1)): a(x)
    if ein == 2: a(inbox)
    a(wst(1))
    a.drop = ()
    stamp("h1")
    c1, c2 = opt.get("c1", 2) if A else opt.get("c1v", 3), opt.get("c2", 2) if A else opt.get("c2v", 2)
    RD = LS
    nsp = opt.get("nsp", 0) >> (0 if A else 1) & 1
    work = [lambda: (zero(a, 28, 36, "s[98:99]"), zero(a, 36, 38, "-1"))]
    if A:
        work += [lambda: (a(f"ds_read_b128 v[120:123], {vKa}\n ds_read_b128 v[124:127], {vMem0} offset:2048"), zero(a, 24, 28, "-1")),
                 lambda: zero(a, ACQ, ACQ + 8), lambda: zero(a, ACK, ACK + 8)]
        work += [lambda: busy(a, 2)] * 4
    else:
        for j in range(5): work.append(lambda j=j: (a(wq_half(j, 0)), a(wq_half(j, 1)), zero(a, ACQ + 4*j, ACQ + 4*j + 4)))
        work += [lambda: (zero(a, 24, 28, "-1"), zero(a, ACQ + 20, ACQ + 24)), lambda: (zero(a, ACQ + 24, ACQ + 32), zero(a, 16, 20, "-1"))]
    wm = opt.get("wm", 1)
    gath = f"buffer_load_dwordx4 v[24:27], {vLin}, {WS}, s49 offen sc1"
    if wm & 1:
        SETS = (28, 48)
        def req(b): return f"buffer_load_dwordx4 {vr(b)}, {vLin}, {WS}, s47 offen sc1\n buffer_load_dwordx4 {vr(b+4)}, {vLin}, {WS}, s47 offen offset:1024 sc1"
        def exam(b):
            a(f"{MF} {vr(RD)}, {vr(SEL)}, {vr(b)}, 0")
            a(f"v_bitop3_b32 v44, v{b}, v{b+1}, s98 bitop3:0xbd\n v_bitop3_b32 v45, v{b+2}, v{b+3}, s98 bitop3:0xbd")
            a(f"{MF} {vr(RD)}, {vr(SEL)}, {vr(b+4)}, {vr(RD)}")
            a(f"v_bitop3_b32 v46, v{b+4}, v{b+5}, s98 bitop3:0xbd\n v_bitop3_b32 v47, v{b+6}, v{b+7}, s98 bitop3:0xbd")
            a("v_or3_b32 v44, v44, v45, v46\n v_bitop3_b32 v44, v44, v47, 1 bitop3:0xa8\n v_cmp_ne_u32 vcc, 0, v44")
        work[0] = lambda: zero(a, 36, 38, "-1")
        for w_ in (work[:4] if A else work): w_()
        w0, w1, w2 = (opt.get("a0", 2), opt.get("a1", 6), opt.get("a2", 2)) if A else (opt.get("v0", 8), opt.get("v1", 8), opt.get("v2", 4))
        if not ein: busy(a, w0); a(req(SETS[0]))
        busy(a, w1); a(req(SETS[1]))
        if A:
            next_seg(a, P)
            a("s_waitcnt lgkmcnt(0)")
        a("s_mov_b32 s96, 0")
        busy(a, w2)
        for k in range(opt.get("p7" + cl_, 0)): a("s_nop 0")
        a(f"s_waitcnt vmcnt({3 if ein else 2})\n{P}_r10:")
        exam(SETS[0])
        for r in range(RD, RD + 4): a(f"v_add_f32_dpp v{r}, v{r}, v{r} row_ror:4 row_mask:0xf bank_mask:0xf")
        a(f"s_cbranch_vccnz {P}_r11\n{P}_r1ok:")
        stamp("r1")
    else:
        pm = opt.get("pe", 0x90) if A else opt.get("pl", 0x100)
        for k in range(9):
            if k == 8: busy(a, opt.get("de", 1) if A else opt.get("dl", 8))
            if pm >> k & 1: a(inbox)
            if k < 8: work[k]()
        if A: a("s_waitcnt lgkmcnt(0)")
        a(f"s_mov_b32 s96, 0\n s_cmp_lg_u32 s97, 0\n s_cbranch_scc1 {P}_r11")
        for ph in range(2):
            a(f"{P}_r1{ph}:")
            if free == 1: a("s_waitcnt vmcnt(0)")
            op3 = ("v_or3_b32 {0}, {1}, {2}, {3}", "v_bitop3_b32 {0}, {1}, {2}, {3} bitop3:0x80")[ph]
            for k in range(c1):
                a(op3.format("v45", "v28", "v29", "v30")); a(op3.format("v46", "v31", "v32", "v33")); a(op3.format("v45", "v45", "v34", "v35"))
                a(f"""
                v_bitop3_b32 v45, v45, v46, 1 bitop3:{('0xa8', '0x80')[ph]}
                v_cmp_ne_u32 vcc, {'v45' if free else ph}, v45
                """)
                if not nsp: a(f"{MF} {vr(RD)}, {vr(SEL)}, v[28:31], 0\n {MF} {vr(RD)}, {vr(SEL)}, v[32:35], {vr(RD)}")
                a(f"s_cbranch_vccz {P}_r1ok")
            a(f"s_mov_b64 exec, vcc\n {inbox}\n s_mov_b64 exec, -1")
            if prof: a("s_add_u32 s30, s30, 1")
            G.spin_tail(a, f"{P}_r1{ph}")
        a(f"{P}_r1ok:")
        stamp("r1")
        gath = f"buffer_load_dwordx4 v[24:27], {vLin}, {WS}, s49 offen sc1"
        if nsp: a(f"{MF} {vr(RD)}, {vr(SEL)}, v[28:31], 0\n {MF} {vr(RD)}, {vr(SEL)}, v[32:35], {vr(RD)}")
        else: a("s_nop 5")
    for k in ((8,) if wm & 1 else (4, 8)):
        for r in range(RD, RD + 4): a(f"v_add_f32_dpp v{r}, v{r}, v{r} row_ror:{k} row_mask:0xf bank_mask:0xf")
    a(cvt(RD, RD, RD+1)); a(cvt(RD+1, RD+2, RD+3))
    busy(a, opt.get("xa", 0) if A else opt.get("xv", 0))
    if not A and opt.get("gx"): a(gath)
    a(f"s_mov_b64 exec, s[58:59]\n buffer_store_dwordx2 {vr(RD, 2)}, {vPub}, {WS}, s48 offen {st}")
    stamp("h2")
    a(f"buffer_store_dwordx2 v[36:37], {vPub}, {WS}, s51 offen {st}\n s_mov_b64 exec, -1")
    if not lw: zero(a, LS, LS + 4, "-1")
    lr = 0 if lw else opt.get("lr", 1) if A else opt.get("lrv", 1)
    book = lambda: (a(f"s_mov_b32 s80, s6\n s_add_u32 s6, s6, 1\n s_add_u32 s53, s53, 0x20000\n s_mov_b32 s96, 0\n v_mov_b32 {vT}, 0"), ring_next(a))
    if A:
        a("s_waitcnt vmcnt(10)")
        items = [lambda k=k: [a(f"v_accvgpr_read_b32 v{KX + r}, a{NK + r}") for r in range(8*k, 8*k + 8)] for k in range(4)]
        items += [book] + ([] if wm & 1 else [lambda: addr_prep(a)]) + [lambda: busy(a, 2)] * opt.get("gb", 0)
        ga = opt.get("ga", 0x24)
        for k in range(len(items) + 1):
            if ga >> k & 1: a(gath)
            if k < len(items): items[k]()
        assert 0 < ga < 2 << len(items)
    else:
        busy(a, opt.get("gl", 0))
        a(gath)
        if not wm & 1: addr_prep(a)
        busy(a, opt.get("gv", 5))
        if opt.get("g2", 3) & 2: a(gath)
        book()
    a("s_waitcnt lgkmcnt(0)")
    if not A: a("s_sub_u32 s7, s6, 1\n s_mov_b32 m0, s7\n v_writelane_b32 v11, s60, m0" if opt.get("per") else "s_nop 0\n s_nop 0\n v_mov_b32_e64 v11, 0")
    if lr & 2: a(lload)
    for k in range(opt.get("p8" + cl_, 0)): a("s_nop 0")
    stamp("g1")
    if wm & 2:
        c2 = 1
        assert opt.get("g2", 3) == 3
        busy(a, opt.get("a3", 0) if A else opt.get("v3", 2))
    a(f"{P}_r2:")
    if wm & 2: a("s_waitcnt vmcnt(1)")
    if free == 1: a("s_waitcnt vmcnt(0)")
    for k in range(c2):
        a(f"v_max3_u32 {vT}, v24, v25, v26\n v_max_u32 {vT}, {vT}, v27\n v_cmp_eq_u32 vcc, -1, {'v0' if free else vT}")
        a(f"s_cbranch_vccz {P}_prof" if prof == 1 else f"s_cbranch_vccz {P}_loop")
    a(f"s_mov_b64 exec, vcc\n {gath}\n s_mov_b64 exec, -1")
    if lr & 1: a(lload)
    if prof: a("s_add_u32 s31, s31, 1")
    G.spin_tail(a, f"{P}_r2")
    if prof == 1:
        a(f"{P}_prof:")
        stamp("end")
        a("s_waitcnt lgkmcnt(0)")
        if opt.get("trace"):
            assert cnt[0] <= 8
            a("s_lshl_b32 s7, s3, 6\n s_add_u32 s7, s7, s6\n s_lshl_b32 s7, s7, 5\n v_lshrrev_b32 v46, 2, v0\n v_add_u32 v46, s7, v46")
            for k in range(cnt[0]): a(f"v_writelane_b32 v45, s{60+2*k}, {k}")
            a(f"s_mov_b64 exec, 0xff\n ds_write_b32 v46, v45\n s_mov_b64 exec, -1\n s_branch {P}_loop")
        a(f"s_cmp_lt_u32 s6, 5\n s_cbranch_scc1 {P}_loop")
        for k in range(cnt[0] - 1): a(f"s_sub_u32 s7, s{62+2*k}, s{60+2*k}\n s_add_u32 s{20+k}, s{20+k}, s7")
        a(f"s_branch {P}_loop")
    if wm & 1:
        a(f"{P}_r11:\n s_mov_b64 exec, vcc\n {req(SETS[0])}\n s_mov_b64 exec, -1")
        if prof: a("s_add_u32 s30, s30, 1")
        a("s_waitcnt vmcnt(2)")
        exam(SETS[1])
        for r in range(RD, RD + 4): a(f"v_add_f32_dpp v{r}, v{r}, v{r} row_ror:4 row_mask:0xf bank_mask:0xf")
        a(f"s_cbranch_vccz {P}_r1ok\n s_mov_b64 exec, vcc\n {req(SETS[1])}\n s_mov_b64 exec, -1\n s_waitcnt vmcnt(2)")
        if prof: a("s_add_u32 s30, s30, 1")
        G.spin_tail(a, f"{P}_r10")
    lchk = f"v_max3_u32 {vT}, v{LS}, v{LS+1}, v{LS+2}\n v_max_u32 {vT}, {vT}, v{LS+3}\n v_cmp_eq_u32 vcc, -1, {vT}\n {lwr}\n s_waitcnt lgkmcnt(0)\n s_cbranch_vccz {P}_lok"
    a(f"{P}_lretry:")
    if not lw:
        if prof: a("s_add_u32 s25, s25, 100")
        a(f"s_waitcnt vmcnt({tk['Ln']})"); a(lchk)
    a(f"{P}_lr2:")
    a(f"s_mov_b64 exec, vcc\n {lload}\n s_mov_b64 exec, -1\n s_waitcnt vmcnt(0)")
    if prof: a("s_add_u32 s29, s29, 1")
    a(lchk)
    G.spin_tail(a, f"{P}_lr2")
    if A: fb_wait(a, P, prof)
    if A:
        q = "quad_perm:[2,3,0,1] row_mask:0xf bank_mask:0xf"
        a(f"""
        {P}_mfix:
        v_max_f32 v{t0+1}, 0, v{t0+1}
        v_mov_b32 v{t0+2}, v{t0+1}
        v_permlane16_swap_b32 v{t0+1}, v{t0+2}
        v_max_f32 v{t0+1}, v{t0+1}, v{t0+2}
        v_mov_b32 v{t0+2}, v{t0+1}
        v_permlane32_swap_b32 v{t0+1}, v{t0+2}
        v_max_f32 v{t0+1}, v{t0+1}, v{t0+2}
        v_max_f32_dpp v{t0+1}, v{t0+1}, v{t0+1} {q}
        v_sub_f32 v{M}, v{M}, v{t0+1}
        v_sub_f32 v{M+1}, v{M+1}, v{t0+1}
        v_sub_f32 v{t0+1}, 0, v{t0+1}
        v_exp_f32 v{M+2}, v{M}
        v_exp_f32 v{M+3}, v{M+1}
        v_exp_f32 v{t0+1}, v{t0+1}
        """)
        for x in mpack: a(x)
        for k, r in enumerate(regs): a(f"v_mul_f32 v{r}, v{r}, v{t0+1}")
        for k in range(4): a(cvt(PX + k, regs[2*k], regs[2*k+1]))
        for k in range(4): a(sw(PXB + k, PX + k))
        for x in pv[:5]: a(x)
        if prof: a("s_add_u32 s26, s26, 64")
        a.fence()
        a(f"s_branch {P}_mok")
    if val:
        def missing(b, n):
            a(f"v_max3_u32 {vT}, v{b}, v{b+1}, v{b+2}")
            for r in range(b + 3, b + n): a(f"v_max_u32 {vT}, {vT}, v{r}")
            a(f"v_cmp_eq_u32 vcc, -1, {vT}")
        if A:
            a(f"{P}_vredo:\n s_mov_b32 s96, 0\n{P}_vr1:\n ds_read_b128 {vr(VM)}, {vMem0} offset:2048\n s_waitcnt lgkmcnt(0)")
            missing(VM, 4)
            a(f"s_cbranch_vccz {P}_vr2")
            G.spin_tail(a, f"{P}_vr1")
            a(f"{P}_vr2:")
            if prof: a("s_add_u32 s28, s28, 64")
            for x in pv[1:5] + pv[6:]: a(x)
            a.fence()
            a(f"s_branch {P}_vok")
        a(f"{P}_oredo:")
        missing(OA, 8)
        a(f"s_cbranch_vccz {P}_ook\n s_mov_b32 s96, 0\n{P}_or1:")
        for t in range(2): a(f"ds_read_b128 {vr(OA + 4*t)}, {vOr} offset:{t*1024}")
        a("s_waitcnt lgkmcnt(0)")
        missing(OA, 8)
        a(f"s_cbranch_vccz {P}_or2")
        G.spin_tail(a, f"{P}_or1")
        a(f"{P}_or2:")
        if prof: a("s_add_u32 s27, s27, 64")
        for T in range(5): zero(a, WA[T], WA[T] + 4)
        if not A:
            for k in range(16): a(woh(k // 2, k % 2))
            a("s_waitcnt lgkmcnt(0)")
        a.fence()
        a(f"s_branch {P}_wo")

def role_chain(a, opt):
    startup(a, opt)
    loop(a, opt, "FA", "", True)
    loop(a, opt, "FV", "", False)
    loop(a, opt, "SA", "sc1", True)
    loop(a, opt, "SV", "sc1", False)
    a(f"L_chain_done:\n ds_read_b128 {vr(KV)}, {vKp}\n s_add_u32 s53, s53, 0x20000\n s_waitcnt lgkmcnt(0)")
    for k in range(2): a(f"buffer_store_dwordx4 {vr(KV + 4*k)}, {vLin}, {G.WS}, s53 offen offset:{2048*k} sc1")
    if opt.get("per"):
        a(f"s_lshl_b32 s7, s4, 2\n s_add_u32 s7, s7, s3\n s_lshl_b32 s7, s7, 8\n s_add_u32 s7, s7, {G.PROF + 0x40000}\n v_lshrrev_b32 v24, 2, v0\n buffer_store_dword v11, v24, {G.WS}, s7 offen sc1")
    a("L_chain_end:\n s_waitcnt vmcnt(0)")
    G.tl(a, opt, 3, "v24", True)
    if opt.get("trace"):
        a(f"s_lshl_b32 s7, s3, 11\n v_add_u32 v24, s7, v0\n ds_read_b128 v[28:31], v24\n ds_read_b128 v[32:35], v24 offset:1024\n s_waitcnt lgkmcnt(0)")
        a(f"s_lshl_b32 s7, s4, 2\n s_add_u32 s7, s7, s3\n s_lshl_b32 s7, s7, 11\n s_add_u32 s7, s7, {G.PROF + 0x40000}")
        a(f"buffer_store_dwordx4 v[28:31], v0, {G.WS}, s7 offen sc1\n buffer_store_dwordx4 v[32:35], v0, {G.WS}, s7 offen offset:1024 sc1")
    if opt.get("prof"):
        a(f"s_lshl_b32 s7, s4, 2\n s_add_u32 s7, s7, s3\n s_lshl_b32 s7, s7, 6\n s_add_u32 s7, s7, {G.PROF}\n s_mov_b64 exec, 1")
        for k in range(12):
            a(f"v_mov_b32 v24, s{20+k}\n buffer_store_dword v24, off, {G.WS}, s7 offset:{4*k} sc1")
    a("s_waitcnt vmcnt(0)\n s_endpgm")
```

```python
from asmlib2 import *
import gen as G

vLin, vPub, vT, vMem0, vIdx, vQw, vOr, vPst = ["v%d" % i for i in range(8)]
vQr, vOw, vInf, vJunk, vKa, vQq = "v8", "v9", "v20", "v21", "v22", "v23"
vW, vKp = "v8", "v9"
FB, SEL, ONES, KV = 10, 12, 16, 60
MEMA, ACQ, ACK = 24, 56, 64
LS = MEMA + 16
ACV, QBUF = 72, [88, 96, 104, 112, 120]
QS = 1280
L_MX, L_QK, L_AW, L_W = 0, 8192, 13312, 29696
L_OB = L_MX
SM = "v_smfmac_f32_16x16x64_bf16"
MF = "v_mfma_f32_16x16x32_bf16"
MF16 = "v_mfma_f32_16x16x16_bf16"

def zero(a, lo, hi, val="0"):
    for r in range(lo, hi, 2): a(f"v_mov_b64 {vr(r, 2)}, {val}")
def busy(a, n):
    for _ in range(n): a(f"v_mov_b32 {vT}, 0\n s_nop 2")
def wq_half(j, h): return f"ds_read_b128 {vr(QBUF[j % 5] + 4*h)}, {vW} offset:{G.WSTR + j*2048 + 1024*h}"
KX, VX = 72, 104
NK = 224
def kx_load(f, dst, fl="sc1"): return f"buffer_load_dwordx4 {dst}, {vLin}, {G.WS}, {('s52', 's87')[f // 4]} offen offset:{(f % 4)*1024} {fl}"
def vx_load(f, fl="sc1"): return f"buffer_load_dwordx4 {vr(VX + 4*f)}, {vLin}, {G.WS}, s57 offen offset:{f*1024} {fl}"
def addr_prep(a):
    for u in range(1, 4): a(f"v_add_u32 v{LS + 4*u}, s{80+u}, {vLin}")

def next_seg(a, P):
    a(f"""
    v_readfirstlane_b32 s84, v{FB}
    v_readfirstlane_b32 s85, v{FB+1}
    s_mov_b32 s57, s56
    s_add_u32 s90, s6, 2
    s_cmp_lt_u32 s90, 64
    s_cselect_b32 s7, 0x80000, 0
    s_add_u32 s52, s52, s7
    s_min_u32 s90, s90, 63
    s_lshr_b32 s91, s90, 1
    s_bitcmp1_b32 s90, 0
    s_cselect_b32 s7, s85, s84
    s_cmp_gt_u32 s7, s91
    s_cbranch_scc0 {P}_fbwait
    {P}_fbok:
    s_add_u32 s87, s52, 0x1000
    s_add_u32 s56, s52, s95
    s_lshl_b32 s94, s3, 13
    s_add_u32 s94, s94, s52
    """)

def ring_next(a):
    a(f"""
    s_mov_b32 s51, s48
    s_and_b32 s7, s6, 3
    s_lshl_b32 s48, s7, 13
    s_add_u32 s48, s48, {G.MEMB}
    s_lshr_b32 s97, s7, 1
    s_sub_u32 s98, s97, 1
    s_mov_b32 s99, s98
    s_and_b32 s7, s7, 1
    s_lshl_b32 s7, s7, 18
    s_add_u32 s45, s7, {G.PART}
    s_add_u32 s46, s45, 0x1000
    s_add_u32 s47, s44, s7
    """)

def fb_wait(a, P, prof=0):
    a(f"{P}_fbwait:")
    if prof: a("s_add_u32 s24, s24, 59")
    a("s_and_b32 s92, s90, 1\n s_lshl_b32 s92, s92, 2\n s_add_u32 s92, s92, s55\n s_add_u32 s93, s91, 1")
    G.wait_scalar(a, G.WS, "s92", "s93", "s7", vT, 1)
    a(f"s_branch {P}_fbok")

def startup(a, opt):
    WS, DBG, WSTR = G.WS, G.DBG, G.WSTR
    a("L_chain:")
    G.srd(a, 20, G.P_MEM0, 8192); G.srd(a, 24, G.P_WQ, 0x400000); G.srd(a, 28, G.P_WK, 0x400000)
    G.srd(a, 32, G.P_WV, 0x400000); G.srd(a, 36, G.P_WO, 0x400000)
    G.make_sel(a, SEL, 20)
    a(f"""
    v_mov_b32 v22, v0
    v_lshlrev_b32 v0, 4, v0
    v_and_b32 v24, 1, v2
    v_lshrrev_b32 v25, 2, v2
    v_and_b32 v26, 3, v2
    v_lshrrev_b32 v28, 1, v2
    v_and_b32 v29, 1, v1
    v_lshrrev_b32 v23, 1, v1
    ; weight voffsets: rows 128w + 32(g/2) + 8(g%2), column bytes 256h + 16n
    v_lshlrev_b32 v27, 18, v23
    v_lshl_add_u32 v27, v29, 16, v27
    v_lshl_add_u32 v27, v2, 4, v27
    s_lshl_b32 s90, s4, 8
    s_lshl_b32 s91, s3, 20
    s_add_u32 s90, s90, s91
    v_add_u32 v30, s90, v27
    v_add_u32 v31, 8192, v30
    ; LDS scatter bases. q,k (v16): region swap(n/4), slot (w - n/4)%4 ; v (v17): region n/4, slot (w - 2 - n/8)%4
    v_lshlrev_b32 v18, 8, v1
    v_lshl_add_u32 v18, v26, 6, v18
    v_add_u32 v18, {L_W}, v18
    s_mov_b32 s90, {WSTR}
    v_lshrrev_b32 v27, 1, v25
    v_and_b32 v19, 1, v25
    v_lshl_add_u32 v19, v19, 1, v27
    v_mul_lo_u32 v16, v19, s90
    v_sub_u32 v19, s3, v25
    v_and_b32 v19, 3, v19
    v_lshl_add_u32 v16, v19, 12, v16
    v_add_u32 v16, v16, v18
    v_mul_lo_u32 v17, v25, s90
    v_sub_u32 v19, s3, v27
    v_add_u32 v19, 2, v19
    v_and_b32 v19, 3, v19
    v_lshl_add_u32 v17, v19, 12, v17
    v_add_u32 v17, v17, v18
    ; v18 = own pair of regions (2(w%2)), v19 = own q/k region
    s_and_b32 s91, s3, 1
    s_mul_i32 s91, s91, {2*WSTR}
    s_add_u32 s91, s91, {L_W}
    v_add_u32 v18, s91, {vLin}
    s_lshr_b32 s7, s3, 1
    s_mul_i32 s7, s7, {WSTR}
    v_add_u32 v19, s7, v18
    ; Wo voffset (v11): rows 16(g/2)+4(g%2), column bytes 256w + 16n, head base
    v_lshlrev_b32 v27, 14, v23
    v_lshl_add_u32 v27, v29, 12, v27
    v_lshl_add_u32 v27, v2, 4, v27
    s_lshl_b32 s90, s4, 17
    s_lshl_b32 s91, s3, 8
    s_add_u32 s90, s90, s91
    v_add_u32 v11, s90, v27
    v_mov_b32 v20, 0x4444
    v_mov_b32 v21, 0xeeee
    v_cmp_eq_u32 vcc, 0, v24
    v_cndmask_b32 {vIdx}, v21, v20, vcc
    s_lshl_b32 s86, s3, 10
    s_add_u32 s90, s86, {L_MX}
    v_add_u32 {vMem0}, s90, {vLin}
    ; q write: QK + w*QS + (n/4)*128 + 2g*16 + (n%4)*4
    v_lshlrev_b32 {vQw}, 7, v25
    v_lshl_add_u32 {vQw}, v1, 5, {vQw}
    v_lshl_add_u32 {vQw}, v26, 2, {vQw}
    s_mul_i32 s90, s3, {QS}
    s_add_u32 s90, s90, {L_QK}
    v_add_u32 {vQw}, s90, {vQw}
    ; v27 = g*128 + (2(n/4) + n%2)*16 ; lanes n%4 < 2 carry keys, the others queries
    v_lshl_add_u32 v27, v25, 1, v24
    v_lshlrev_b32 v27, 4, v27
    v_lshl_add_u32 v27, v1, 7, v27
    v_cmp_gt_u32 vcc, 2, v26
    v_mov_b32 v20, {L_QK}
    v_mov_b32 v21, {L_QK + 640}
    v_cndmask_b32 v20, v20, v21, vcc
    v_add_u32 {vQr}, v20, v27
    s_add_u32 s90, s86, {L_OB}
    v_add_u32 v20, s90, v27
    v_add_u32 v21, 512, v20
    v_cndmask_b32 {vOw}, v20, v21, vcc
    ; o read: OB + (2g + n%2)*128 + (n/2)*16
    v_lshl_add_u32 v27, v1, 1, v24
    v_lshlrev_b32 v27, 7, v27
    v_lshl_add_u32 v27, v28, 4, v27
    v_add_u32 {vOr}, {L_OB}, v27
    ; partial store: (8w + 2(n/4) + g/2)*8192 + (g%2)*2048 + 64h + 16(n%4)
    v_lshl_add_u32 v27, v25, 1, v23
    v_lshlrev_b32 v27, 13, v27
    v_lshl_add_u32 v27, v29, 11, v27
    v_lshl_add_u32 v27, v26, 4, v27
    s_lshl_b32 s90, s3, 16
    s_lshl_b32 s91, s4, 6
    s_add_u32 s90, s90, s91
    v_add_u32 {vPst}, s90, v27
    ; mem0 voffset (v25): (n/2)*1024 + 2*(128w + 32g + 16(n%2))
    v_lshlrev_b32 v25, 10, v28
    v_lshl_add_u32 v25, v1, 6, v25
    v_lshl_add_u32 v25, v24, 5, v25
    s_lshl_b32 s91, s3, 8
    v_add_u32 v25, s91, v25
    ; key image read (v24): QK + 640 + (2(w%2) + g/2)*QS + (lane%32)*16
    s_and_b32 s91, s3, 1
    s_mul_i32 s91, s91, {2*QS}
    s_add_u32 s91, s91, {L_QK + 640}
    v_mul_u32_u24 v24, {QS}, v23
    v_and_b32 v27, 31, v22
    v_lshl_add_u32 v24, v27, 4, v24
    v_add_u32 v24, s91, v24
    ; publish: (w/2)*4096 + h*128 + (w%2)*64 + g*32 + n*8   (lanes g<2, n<4)
    s_lshr_b32 s90, s3, 1
    s_lshl_b32 s90, s90, 12
    s_lshl_b32 s91, s4, 7
    s_add_u32 s90, s90, s91
    s_and_b32 s91, s3, 1
    s_lshl_b32 s91, s91, 6
    s_add_u32 s90, s90, s91
    v_lshlrev_b32 v27, 5, v29
    v_lshl_add_u32 v27, v26, 3, v27
    v_add_u32 {vPub}, s90, v27
    s_mov_b32 s58, 0x000f000f
    s_mov_b32 s59, 0
    s_lshl_b32 s44, s4, 2
    s_add_u32 s44, s44, s3
    s_lshl_b32 s44, s44, 11
    s_add_u32 s44, s44, {G.PART}
    s_lshl_b32 s55, s4, 7
    s_lshl_b32 s54, s4, 2
    s_add_u32 s54, s54, s3
    s_lshl_b32 s54, s54, 7
    s_add_u32 s54, s54, {G.FLG_FH}
    s_add_u32 s55, s55, {G.FLG_FB}
    """)
    for u in range(1, 4):
        a(f"s_add_u32 s7, s3, {u}\n s_and_b32 s7, s7, 3\n s_lshl_b32 s7, s7, 10\n s_add_u32 s{80+u}, s7, {L_MX}")
    zero(a, 20, 24, "-1")
    for sl in range(2):
        a(f"s_add_u32 s7, s44, {sl*0x40000}")
        for o in (0, 1024): a(f"buffer_store_dwordx4 v[20:23], {vLin}, {WS}, s7 offen offset:{o} sc1")
    a("s_mov_b64 exec, s[58:59]")
    for sl in range(4):
        a(f"s_mov_b32 s7, {G.MEMB + sl*8192}\n buffer_store_dwordx2 v[20:21], {vPub}, {WS}, s7 offen sc1")
    a("s_mov_b64 exec, -1")
    G.flag_store(a, "s54", "0", "v27")
    def job(srdn, vdst, done):
        return dict(kind='lds', srd=srdn, stride=8192, v0="v30", v1="v31", vdst=vdst,
                    row=lambda u: 64*((u//4) % 2) + 16*(u % 2) + 4*(u//8) + 2*((u//2) % 2),
                    imm=lambda grp, c: (grp//2)*16384 + (c % 2)*2048 + (grp % 2)*1024 + (c//2)*16, done=done)
    def pick(fa, fv, after=None):
        def done():
            lv, le = a.label("PV"), a.label("PE")
            a(f"s_waitcnt lgkmcnt(0)\n s_barrier\n s_cmp_ge_u32 s3, 2\n s_cbranch_scc1 {lv}")
            fa()
            a(f"s_branch {le}\n{lv}:")
            fv()
            a(f"{le}:\n s_waitcnt lgkmcnt(0)\n s_barrier")
            if after: after()
        return done
    def rd(src, dst, off=0):
        return lambda: [a(f"ds_read_b128 {dst(f)}, {src} offset:{off + f*1024}") for f in range(32)]
    nothing = lambda: None
    def wo_group(grp):
        if grp == 2: a(f"buffer_load_dwordx2 v[30:31], off, {WS}, s55 sc1")
        if grp == opt.get("wg", 2) and opt.get("wr", 1) & 1:
            a(f"v_lshlrev_b32 v64, 1, {vLin}\n v_lshlrev_b32 v65, 3, {vLin}\n s_add_u32 s7, s44, 0x40000\n s_lshl_b32 s90, s3, 13\n s_add_u32 s90, s90, {G.MEMB}")
            a(f"buffer_load_dword v66, v64, {WS}, s44 offen sc1\n buffer_load_dword v67, v64, {WS}, s7 offen sc1\n buffer_load_dword v68, v65, {WS}, s90 offen sc1")
        if grp == opt.get("wg", 2) and opt.get("wr", 1) & 2:
            a(f"""
            s_getpc_b64 s[60:61]
            L_pc0:
            s_add_u32 s60, s60, FA_loop-L_pc0
            s_addc_u32 s61, s61, 0
            s_mov_b32 s62, SA_loop-FA_loop
            s_mov_b32 s63, 0x20000
            v_lshlrev_b32 v69, 2, {vLin}
            s_lshl_b32 s7, s3, 12
            buffer_load_dword v69, v69, s[60:63], s7 offen
            """)
        lv, le = a.label("OV"), a.label("OE")
        a(f"s_cmp_ge_u32 s3, 2\n s_cbranch_scc1 {lv}")
        for c in range(6):
            for r in range(4): a(f"v_accvgpr_write_b32 a{128 + (c*2 + grp//2)*8 + (grp % 2)*4 + r}, v{32 + 4*c + r}")
        for c in (6, 7): a(f"ds_write_b128 {vMem0}, {vr(32 + 4*c)} offset:{L_AW + (((c - 6)*2 + grp//2)*2 + grp % 2)*2048}")
        a(f"s_branch {le}\n{lv}:")
        for c in range(8): a(f"ds_write_b128 v18, {vr(32 + 4*c)} offset:{(c*2 + grp//2)*2048 + (grp % 2)*1024}")
        a(f"{le}:")
    def early():
        for hf in range(2):
            for c in range(2):
                a(f"buffer_load_dwordx2 {vr((20, 26)[hf] + 2*c, 2)}, v25, {G.OUT}, 0 offen offset:{8*hf + 16*c}")
        a(f"buffer_load_dword v16, off, {DBG}, 0 offset:{G.D_GO} sc1\n buffer_load_dword v17, off, {DBG}, 0 sc1")
    kd = G.lds_to_regs(a, "v19", lambda f: ar(4*f))
    jobs = [dict(job(G.W2, "v16", kd), first=lambda: G.init_arrive(a, "v27")),
            job(G.W1, "v16", G.lds_to_regs(a, "v19", lambda f: vr(128 + 4*f))),
            job(G.W3, "v17", pick(nothing, rd("v18", lambda f: ar(128 + 4*f)), early)),
            dict(kind='lds', srd=G.W4, stride=1024, v0="v11", row=lambda u: 64*(u//8) + 32*((u//4) % 2) + 8*(u % 2) + 2*((u//2) % 2), group=wo_group)]
    G.load_stream(a, jobs, tmp=64, depth=8, out=32)
    a("s_waitcnt vmcnt(0)")
    G.tl(a, opt, 4, "v32")
    a(f"""
    v_mov_b32 v33, v24
    v_readfirstlane_b32 s7, v16
    v_readfirstlane_b32 s43, v17
    v_mov_b64 {vr(LS, 2)}, v[26:27]
    v_mov_b64 {vr(LS+2, 2)}, v[28:29]
    v_mov_b64 v[24:25], v[20:21]
    v_mov_b64 v[26:27], v[22:23]
    s_cmp_ge_u32 s7, 1
    s_cbranch_scc1 L_chain_up
    """)
    G.wait_go(a, vT, 2)
    G.wait_scalar(a, DBG, 0, 0, "s43", vT, 2)
    a(f"""
    buffer_load_dwordx2 v[30:31], off, {WS}, s55 sc1
    s_waitcnt vmcnt(0)
    L_chain_up:
    v_mov_b64 {vr(FB, 2)}, v[30:31]
    s_lshl_b32 s52, s4, 14
    s_add_u32 s52, s52, {G.KXV - 0x80000}
    s_and_b32 s7, s3, 1
    s_lshl_b32 s95, s7, 12
    s_add_u32 s95, s95, 0x2000
    s_mov_b32 s56, 0
    s_lshl_b32 s53, s4, 12
    s_add_u32 s53, s53, {G.KVM - 0x20000}
    s_lshl_b32 s7, s7, 10
    s_add_u32 s53, s53, s7
    """)
    a(f"""
    s_mov_b32 s50, {G.MEMB}
    s_mov_b32 s80, 0
    s_mov_b32 s78, {G.f32bits(float(opt.get("thr", 12)))}
    s_mov_b64 s[88:89], 0
    s_mov_b32 s48, {G.MEMB + 3*8192}
    s_waitcnt lgkmcnt(0)
    s_mov_b32 s6, -2
    """)
    a("s_cmp_ge_u32 s3, 2\n s_cbranch_scc1 L_nokx")
    next_seg(a, "C1")
    for f in range(8): a(kx_load(f, vr(KX + 4*f)))
    a("s_mov_b32 s6, -1")
    next_seg(a, "C0")
    if opt.get("sw", 0): a("s_waitcnt vmcnt(0)")
    a("L_nokx:")
    G.tl(a, opt, 2, "v56", True)
    a("s_mov_b32 s6, 0")
    ring_next(a)
    addr_prep(a)
    if opt.get("prof"):
        for k in range(20, 32): a(f"s_mov_b32 s{k}, 0")
    a("s_cmp_ge_u32 s3, 2\n s_cbranch_scc1 L_vstart")
    for r in range(4): a(f"v_mov_b32 v{ONES+r}, 0x3f803f80")
    zero(a, ACQ, ACQ + 16)
    a(f"v_mov_b32 {vKa}, v33")
    a(f"v_and_b32 {vQq}, 32, {vLin}\n v_mul_u32_u24 {vQq}, 20, {vQq}\n v_add_u32 {vQq}, {vQq}, {vQr}\n v_subrev_u32 {vQq}, 640, {vQq}")
    a(f"v_and_b32 {vInf}, 32, {vLin}\n v_lshlrev_b32 {vInf}, 26, {vInf}\n v_or_b32 {vInf}, 0x7f800000, {vInf}")
    a.fence()
    a("s_cmp_lt_u32 s43, 32\n s_cbranch_scc1 SA_loop\n s_branch FA_loop\nL_vstart:")
    a(f"v_mov_b32 {vW}, v18\n v_mov_b32 {vKp}, v33\n v_subrev_u32 v10, 2048, {vMem0}")
    zero(a, 16, 20, "-1")
    for j in range(5):
        for h in range(2): a(wq_half(j, h))
    zero(a, ACQ, ACQ + 32)
    a("s_waitcnt lgkmcnt(0)")
    a.fence()
    a("s_cmp_lt_u32 s43, 32\n s_cbranch_scc1 SV_loop\n s_branch FV_loop")
    fb_wait(a, "C0")
    fb_wait(a, "C1")

def loop(a, opt, P, st, A):
    WS = G.WS
    prof = opt.get("prof"); free = opt.get("free")
    cnt = [0]
    sel = opt.get("stamps")
    dflt = ("top", "end", "15", "31", "sc", "pv", "wo", "w9", "h1")
    def stamp(k):
        if prof == 1 and (k in ("top", "end") or str(k) in (sel or dflt)):
            i = cnt[0]; cnt[0] += 1
            assert i < 9
            a(f"s_mem{'real' if opt.get('trace') else ''}time s[{60+2*i}:{61+2*i}]")
    tk = {}
    fill = {}
    def F(i, x, cls=None):
        if cls is None: cls = 1 if (isinstance(x, str) and x.startswith("v_")) else 0
        fill.setdefault(i, []).append((cls, x if callable(x) else (lambda: a(x))))
    def D(i, key, text, cls=0): F(i, lambda: tk.__setitem__(key, a.ds(text)), cls)
    def W(i, key): F(i, lambda: a.wait_ds(tk[key]))
    def Z(i, lo, hi, val="0"):
        for r in range(lo, hi, 2): F(i, f"v_mov_b64 {vr(r, 2)}, {val}")
    def run(i):
        for cls, f in sorted(fill.pop(i, []), key=lambda e: e[0]): f()
    def mem_rd(i, tau): D(i, ("m", tau), f"ds_read_b128 {vr(MEMA + 4*tau)}, v{LS + 4*(tau % 4)} offset:{4096*(tau//4)}")
    nw = opt.get("nw", 0x60)
    val = opt.get("val", 1)
    def bar(i, bit=0):
        if not nw >> bit & 1: W(i, "wr")
        F(i, "s_barrier")
    def add(r): return f"v_add_f32 v{r}, v{r}, v{r+1}"
    def cvt(d, x, y): return f"v_cvt_pk_bf16_f32 v{d}, v{x}, v{y}"
    def smv(tau, t4):
        j = 2*tau + t4 % 2
        def emit():
            if t4 >= 2 and j >= 5: a.wait_ds(tk[("w", j)])
            a(f"{SM} {vr(ACV + 4*t4)}, {vr(MEMA + 4*tau)}, {ar(128 + j*8, 8) if t4 < 2 else vr(QBUF[j % 5], 8)}, {vIdx}")
            if pend:
                jp = pend.pop(); tk[("w", jp)] = a.ds(wq_half(jp, 1))
            if t4 >= 2 and j + 5 < 16:
                a.ds(wq_half(j + 5, 0)); pend.append(j + 5)
        return emit
    pend = []
    a(".p2align 6")
    for _ in range(opt.get("ala", 4) if A else opt.get("alv", 1)): a.lines.append("    s_nop 0")
    a(f"{P}_loop:")
    a.drop = tuple(opt.get("drop", ()))
    stamp("top")
    nk = opt.get("nk", 6)
    ke = [("k", tau, T) for tau in range(1, 4) for T in range(2)]
    seq = [(m, 0, T) for T in range(2) for m in "qk"] + [("q", tau, T) for tau in range(1, 4) for T in range(2)] + ke[:nk]
    seq += [("q", tau, T) for tau in range(4, 8) for T in range(2)] + ke[nk:] + [("k", tau, T) for tau in range(4, 8) for T in range(2)]
    qpos = {2*t + T: i for i, (m, t, T) in enumerate(seq) if m == "q"}
    qe = qpos[15]
    q3 = min(qe + opt.get("q3", 8), 31)
    lc = opt.get("lc", 10); b2 = lc + opt.get("lb", 5)
    lw = opt.get("lw", 1)
    assert b2 <= qpos[8]
    lg = opt.get("lg", 2)
    lload = f"buffer_load_dwordx4 {vr(LS)}, {vLin}, {WS}, s50 offen sc1"
    F(lg, "s_mov_b64 exec, s[88:89]")
    F(lg, lambda: tk.__setitem__("L", a.vm(lload)))
    F(lg, "s_mov_b64 exec, -1")
    if opt.get("wm", 1) & 1:
        for u in range(1, 4): F(u - 1, f"v_add_u32 v{LS + 4*u}, s{80+u}, {vLin}")
    b1 = opt.get("b1", 3)
    bar(b1, 1)
    sp = opt.get("sp", 16)
    for u in range(1, 4): mem_rd(b1, u)
    def M_(i, key, text): F(i, lambda: tk.__setitem__(key, a.vm(text)))
    if A:
        xp = [int(p) for p in opt.get("xp", (3, 3, 3, 3, 5, 6, 7, 8, 9, 11, 12, 13, 14))]
        ta = opt.get("ta", 0)
        kf_, vf_, th = ["sc1", ""][opt.get("kp", 1)], ["sc1", ""][opt.get("vp", 1)], opt.get("th", 0)
        F(4, f"v_lshlrev_b32 {vJunk}, {3 if th else 2}, {vLin}")
        np_ = opt.get("nopf", 0)
        if not np_ & 1:
            for f in range(4): M_(xp[f], "vx", vx_load(f, vf_))
        tch = f"buffer_load_dword {vJunk}, {vJunk}, {WS}, s56 offen {vf_}"
        if not np_ & 2: F(xp[4], f"s_mov_b32 exec_hi, 0\n {tch}\n s_mov_b32 exec_hi, -1" if th else tch)
        if not np_ & 4:
            for f in range(8): F(xp[5 + f], kx_load(f, ar(NK + 4*f), kf_))
        F(sp, f"buffer_load_dwordx2 {vr(FB, 2)}, off, {WS}, s55 sc1")
        kvst = [f"buffer_store_dwordx4 {vr(120 + 4*k)}, {vLin}, {WS}, s53 offen offset:{2048*k} sc1" for k in range(2)]
        flst = f"s_mov_b64 exec, 1\n buffer_store_dword {vT}, off, {WS}, s54 sc1\n s_mov_b64 exec, -1"
        ks = opt.get("ks", 1)
        if opt.get("nokvm"): kvst = ["s_nop 0", "s_nop 0"]; flst = "s_nop 0"
        assert sp >= b2
        F(sp + 1, f"v_mov_b32 {vT}, s80")
        if not ks:
            for k in range(2): F(sp + 4 + k*opt.get("k2", 1), kvst[k])
            F(sp + 2, flst)
    else:
        nv0, nv1, nv2 = opt.get("nv0", 4), opt.get("nv1", 0), opt.get("nv2", 1)
        vs = [(tau, t4) for tau in range(6) for t4 in (2, 0, 3, 1)] + [(6, 2), (6, 0), (6, 3), (7, 2), (7, 3), (7, 0), (6, 1), (7, 1)]
        for k in range(nv0): F(3, smv(*vs.pop(0)))
        for k in range(nv1): F(lc, smv(*vs.pop(0)))
        for k in range(opt.get("nvb", 0)): F(b2, smv(*vs.pop(0)))
        for k in range(nv2): F(qpos[10] - 1, smv(*vs.pop(0)))
        for k in range(opt.get("nv3", 0)): F(q3, smv(*vs.pop(0)))
    W(3, ("m", 1)); W(5, ("m", 3))
    F(5, lambda: busy(a, opt.get("xe", 0)))
    lwr = f"ds_write_b128 {vMem0}, {vr(LS)} offset:4096"
    if lw:
        F(lc, lambda: a.wait_vm(tk["L"]))
        D(lc, "wr", lwr)
        F(lc+1, f"v_max3_u32 {vT}, v{LS}, v{LS+1}, v{LS+2}")
        F(lc+2, f"v_max_u32 {vT}, {vT}, v{LS+3}")
        F(lc+3, f"v_cmp_eq_u32 vcc, -1, {'v0' if free else vT}")
    else:
        F(lc-1, f"v_max3_u32 {vT}, v{LS}, v{LS+1}, v{LS+2}", 2)
        F(lc-1, f"v_max_u32 {vT}, {vT}, v{LS+3}", 2)
        D(lc, "wr", lwr)
        F(lc, f"v_cmp_eq_u32 vcc, -1, {'v0' if free else vT}")
        if not A: F(q3 - 1, "s_waitcnt vmcnt(0)")
    assert lc + 3 < b2 or free
    F(min(b2, qpos[8] - 1), lambda: (tk.__setitem__("Ln", a.vm_n - tk["L"]), a(f"s_cbranch_vccnz {P}_lretry\n{P}_lok:")))
    bar(b2, 2); mem_rd(b2, 5); mem_rd(b2+1, 6); mem_rd(b2+1, 7)
    if A and val and opt.get("pa", 1):
        if not lw: F(qe - 5, lambda: a.wait_vm(tk["L"]))
        F(qe - 5, "v_mov_b64 v[24:25], -1"); F(qe - 4, "v_mov_b64 v[26:27], -1")
        D(qe - 3, "_", f"ds_write_b128 {vMem0}, v[24:27]"); D(qe - 1, "_", f"ds_write_b128 {vMem0}, v[24:27] offset:2048")
    if not A and val and not opt.get("pa", 1):
        pp = opt.get("pp", 20)
        D(pp, "_", f"ds_write_b128 v10, v[16:19]"); D(pp + opt.get("pq", 2), "_", f"ds_write_b128 v10, v[16:19] offset:2048")
    W(qpos[10] - 1, ("m", 5)); W(qpos[12] - 1, ("m", 7))
    F(28, "s_add_u32 s49, s48, s86\n s_add_u32 s50, s49, 0x1000")
    F(29, "s_mov_b64 s[88:89], -1")
    F(qe+1, add(56)); F(qe+1, add(58)); F(qe+2, add(60)); F(qe+2, add(62))
    F(qe+2, cvt(56, 56, 60)); F(qe+2, cvt(57, 58, 62))
    D(qe+3, "wr", f"ds_write2_b32 {vQw}, v56, v57 offset0:0 offset1:4")
    bar(q3, 3)
    if A:
        for t in range(4): D(min(q3 + (t + 1)//2, 31), ("q", t), f"ds_read_b128 {vr(24 + 4*t)}, {vQq} offset:{t*QS}")
    if not A: F(0, {0: "s_nop 0\n s_nop 0", 1: "s_memrealtime s[60:61]", 2: "s_memtime s[60:61]"}[opt.get("per", 0)])
    cl_ = "a" if A else "v"
    def pad(key, slots):
        for k in range(opt.get(key + cl_, 0)): F(slots[k % len(slots)], "s_nop 0")
    pad("p1", (0, 1, 0, 1, 4, 6, 8) if A else (0, 1, 4, 6, 7, 8, 9))
    pad("p2", (19, 21, 23, 19, 21, 23, 14) if A else (18, 20, 21, 22, 23, 14, 20))
    pad("p3", (27, 30, 27, 30, 29, 27, 30))
    tk["wr"] = a.ds(f"ds_write_b128 {vMem0}, {vr(MEMA)}")
    for i, (m, tau, T) in enumerate(seq):
        j = 2*tau + T
        B = vr(128 + j*8, 8) if m == "q" else ar(j*8, 8)
        a(f"{SM} {vr((ACQ if m == 'q' else ACK) + 4*T)}, {vr(MEMA + 4*tau)}, {B}, {vIdx}")
        run(i)
        stamp(i)
    assert not fill, fill.keys()
    kfold = [add(64), add(66), add(68), add(70), cvt(64, 64, 68), cvt(65, 66, 70)]
    kwr = f"ds_write2_b32 {vQw}, v64, v65 offset0:160 offset1:164"
    inbox = f"buffer_load_dwordx4 v[28:31], {vLin}, {WS}, s47 offen sc1\n buffer_load_dwordx4 v[32:35], {vLin}, {WS}, s47 offen offset:1024 sc1"
    if A:
        QB, KB, X0, X1, M, t0 = 24, 40, 56, 60, 120, 124
        PX, PM, PXB, PMB, VM, O, Lr, PKO = 48, 68, 52, 64, 24, 28, 44, 120
        WA, OA, PK = [56, 60, 28, 32, 24, 36, 40, 44], 120, [64, 68]
        xl = []
        tq = [tk[("q", t)] for t in range(4)]
        kf = opt.get("kf", 1)
        if kf:
            for x in kfold: a(x)
            tk["wr"] = a.ds(kwr)
        else:
            a(kfold[0]); a(kfold[1])
            for x in kfold[2:]: F(0, x)
            D(1, "wr", kwr)
        b4 = opt.get("b4", 4)
        ml = opt.get("ml", 0)
        if not ml:
            bar(b4, 4)
            for t in range(4): D(min(b4 + (t + 1)//2, 7), ("k", t), f"ds_read_b128 {vr(KB + 4*t)}, {vQr} offset:{t*QS}")
        if ks:
            F(1, kvst[1]); F(3, kvst[0]); F(7, flst)
        F(2, "v_mov_b32 v68, 0\n v_mov_b32 v70, 0")
        F(0, "v_mov_b32 v65, 0\n v_mov_b32 v67, 0")
        F(6, f"v_max3_f32 v{t0}, v{X0}, v{X0+1}, v{X0+2}")
        for p in (7, 8, 9, 10, 11, 11)[:opt.get("x1", 6)]:
            if xl: F(p, xl.pop(0))
        awr = [f"ds_read_b128 {vr(KX + 4*k)}, {vMem0} offset:{L_AW + k*2048}" for k in range(8)]
        aw = opt.get("aw", 3)
        if not aw:
            for p in (8, 9, 10, 11): F(p, awr.pop(0))
        chain = [f"v_max3_f32 v{t0+1}, v{X0+3}, v{X1}, v{X1+1}", f"v_max3_f32 v{t0}, v{t0}, v{X1+2}, v{X1+3}",
                 f"v_max_f32 v{t0+2}, v{t0}, v{t0+1}", f"v_max_f32 v{t0+3}, v{t0}, v{t0+1}"]
        pad("p4", (8, 8, 6, 9, 10, 3, 1))
        ex = f"s_cmp_eq_u32 s6, 63\n s_cbranch_scc1 L_chain_end"
        if not ml:
            F(9, chain[0]); F(9, chain[1]); F(10, chain[2]); F(10, chain[3]); chain = []
            F(11, ex)
            for t in range(4): W(7 + t, ("k", t))
        if not opt.get("nopf", 0) & 1: F(5, lambda: a.wait_vm(tk["vx"]))
        for t in range(1, 4): F(t - 1, lambda t=t: a.wait_ds(tq[t]))
        def sc(n):
            t = n % 4
            d, Ao, Bo = ((X0, KX + 4*t, QB + 4*t), (X1, KX + 16 + 4*t, QB + 4*t), (M, KB + 4*t, QB + 4*t))[n // 4]
            return f"{MF} {vr(d)}, {vr(Ao)}, {vr(Bo)}, {vr(d) if t else '0'}"
        for n in range(8 if ml else 12):
            if n == 0: a.wait_ds(tq[0])
            a(sc(n))
            run(n)
            stamp("s%d" % n)
        stamp("sc")
        regs = [X0, X0+1, X0+2, X0+3, X1, X1+1, X1+2, X1+3]
        if ml: PX, PXB = 72, 76
        sm = chain + [f"v_permlane16_swap_b32 v{t0+2}, v{t0+3}", f"v_max_f32 v{t0}, v{t0+2}, v{t0+3}", f"v_max_f32 v{t0+1}, v{t0+2}, v{t0+3}"]
        if not ml: sm += ["v_mov_b64 v[40:41], 0", "v_mov_b64 v[42:43], 0"]
        sm += [f"v_permlane32_swap_b32 v{t0}, v{t0+1}", f"v_max3_f32 v{t0}, v{t0}, v{t0+1}, {vInf}", f"v_mul_f32 v{t0}, s42, v{t0}"]
        sm += [f"v_fma_f32 v{r}, v{r}, s42, -v{t0}" for r in regs]
        for k, r in enumerate(regs):
            sm.append(f"v_exp_f32 v{r}, v{r}")
            if k >= 2 and k % 2 == 0: sm.append(cvt(PX + k//2 - 1, regs[k-2], regs[k-1]))
        mb, m0 = opt.get("mb", 0), opt.get("m0", 12)
        for n, x in enumerate(sm):
            if ml and n == mb:
                a.wait_ds(tk["wr"]); a("s_barrier"); a(ex)
                tkk = [a.ds(f"ds_read_b128 {vr(KB + 4*t)}, {vQr} offset:{t*QS}") for t in range(4)]
            if ml and n >= m0 and (n - m0) % 2 == 0 and (n - m0) // 2 < 4:
                t = (n - m0) // 2
                a.wait_ds(tkk[min(t + 1, 3) if t == 0 else 3]); a(sc(8 + t))
            a(x)
        stamp("pv")
        busy(a, opt.get("xs", 0))
        a(f"v_fma_f32 v{M}, v{M}, s42, -v{t0}")
        a(cvt(PX + 3, regs[6], regs[7]))
        a(f"v_fma_f32 v{M+1}, v{M+1}, s42, -v{t0}\n v_exp_f32 v{M+2}, v{M}")
        b5 = opt.get("b5", 3)
        F(b5, "s_barrier")
        D(b5, "vm", f"ds_read_b128 {vr(VM)}, {vMem0} offset:2048")
        def sw(d, x): return f"v_mov_b32_dpp v{d}, v{x} quad_perm:[2,3,0,1] row_mask:0xf bank_mask:0xf"
        mpack = [cvt(64, M+2, M+3), cvt(69, M+2, M+3), sw(66, 64), sw(71, 64)]
        F(0, sw(PXB, PX)); F(0, sw(PXB+1, PX+1)); F(1, sw(PXB+2, PX+2)); F(1, sw(PXB+3, PX+3))
        F(2, f"v_exp_f32 v{M+3}, v{M+1}"); F(2, f"v_max_f32 v{t0+1}, v{M}, v{M+1}")
        F(3, f"v_cmp_lt_f32 s[90:91], s78, v{t0+1}"); F(3, mpack[0]); F(3, mpack[1])
        F(4, mpack[2]); F(4, mpack[3])
        F(4, f"s_cmp_lg_u64 s[90:91], 0\n s_cbranch_scc1 {P}_mfix\n{P}_mok:", 2)
        if not aw:
            for p in (0, 1, 6, 7): F(p, awr.pop(0))
        pv = [f"{MF} {vr(Lr)}, {vr(ONES)}, {vr(PX)}, 0"]
        pv += [f"{MF} {vr(O + 4*(f % 2))}, {vr(VX + 4*f)}, {vr((PX, PXB)[f//2])}, {vr(O + 4*(f % 2)) if f//2 else '0'}" for f in range(4)]
        pv += [f"{MF16} {vr(Lr)}, {vr(ONES, 2)}, v[64:65], {vr(Lr)}"]
        pv += [f"{MF} {vr(O + 4*T)}, {vr(VM)}, {vr(64 + 4*T)}, {vr(O + 4*T)}" for T in range(2)]
        Z(5, 56, 64)
        F(5, lambda: a.wait_ds(tk["vm"]), 2)
        if val:
            F(6, f"v_max3_u32 {vT}, v{VM}, v{VM+1}, v{VM+2}"); F(6, f"v_max_u32 {vT}, {vT}, v{VM+3}")
            F(7, f"v_cmp_eq_u32 vcc, -1, {vT}")
        F(7, f"v_add_f32_dpp v{t0}, v{Lr}, v{Lr} quad_perm:[2,3,0,1] row_mask:0xf bank_mask:0xf")
        F(7, f"v_rcp_f32 v{t0}, v{t0}")
        if val: F(7, f"s_cbranch_vccnz {P}_vredo\n{P}_vok:", 2)
        for n, x in enumerate(pv):
            a(x); run(n)
        for r in range(4): a(f"v_mul_f32 v{O+r}, v{O+r}, v{t0}")
        stamp("p1")
        for r in (4, 6): a(f"v_pk_mul_f32 {vr(O + r, 2)}, {vr(O + r, 2)}, {vr(t0, 2)} op_sel_hi:[1,0]")
        for i in range(4): a(cvt(PKO + i, O + i, O + 4 + i))
        if opt.get("tst"): a("s_barrier\n s_nop 15\n s_nop 15\n s_nop 15")
        a(f"ds_write_b128 {vOw}, {vr(PKO)}")
        if not nw >> 6 & 1: (zero(a, 24, 40), zero(a, 40 if opt.get('ml', 0) else 44, 48))
        stamp("p2")
        wo_reg = lambda j: ar(128 + j*8, 8) if j < 12 else vr(KX + (j - 12)*8, 8)
    else:
        WB = [88, 96, 104, 112, 120, 16, 56, 64]
        WA, OA, PK = [28, 32, 36, 40, 44, 48, 52, 72], 76, [84, 24]
        def woh(j, h): return f"ds_read_b128 {vr(WB[j % 8] + 4*h)}, {vW} offset:{j*2048 + 1024*h}"
        nv = len(vs); sh = 32 - nv
        if opt.get("fs", 0):
            for n, x in enumerate(kfold): F(n, x)
            D(6, "wr", kwr)
        else:
            F(0, kfold[0]); F(0, kfold[1])
            for x in kfold[2:]: F(1, x)
            D(2, "wr", kwr)
        v4 = opt.get("v4", 8)
        bar(v4, 4)
        wl = [(k // 2, k % 2) for k in range(16)]
        if opt.get("pw", 1):
            pos = {2*t + t4 % 2: n for n, (t, t4) in enumerate(vs) if t4 >= 2}
            free_at = {5: 0, 6: 3, 1: pos[11], 2: pos[12], 3: pos[13], 4: pos[14]}
            slot = pos[10] + 2
            for jj in (5, 6, 1, 2, 3, 4):
                for hh in range(2):
                    slot = max(slot, free_at[jj])
                    if slot < nv - 1:
                        D(slot, "_", woh(jj, hh)); wl.remove((jj, hh)); slot += 1
        pad("p4", (4, 6, 10, 12, 14, 16, 18))
        zl = [(r, "0") for r in range(28, 52, 2)]
        for i in range(3, nv - 2):
            if opt.get("zv", 0) and zl and i + sh > (zl[0][0] - MEMA) // 4 * 4 + 3:
                r, val = zl.pop(0); F(i, f"v_mov_b64 {vr(r, 2)}, {val}")
        F(nv-3, add(80)); F(nv-3, add(82)); F(nv-2, add(84)); F(nv-2, add(86))
        for x in (cvt(KV+6, 80, 82), cvt(KV+7, 84, 86), add(72), add(74), cvt(KV+4, 72, 74)): F(nv-1, x)
        for n, (tau, t4) in enumerate(vs):
            if n + 1 < nv and vs[n+1][1] >= 2 and 2*vs[n+1][0] + vs[n+1][1] % 2 >= 5: W(n, ("w", 2*vs[n+1][0] + vs[n+1][1] % 2))
            smv(tau, t4)(); run(n); stamp("v%d" % n)
        assert not fill and not pend
        stamp("sc")
        busy(a, opt.get("xw", 0))
        for x in (add(76), add(78), cvt(KV+5, 76, 78)): a(x)
        if opt.get("tst"): a(f"s_cmp_eq_u32 s6, 63\n s_cbranch_scc1 L_chain_done\n s_barrier\n s_nop 15\n s_nop 15\n s_nop 15")
        tk["wr"] = a.ds(f"ds_write_b128 {vMem0}, {vr(KV+4)}")
        a(f"s_cmp_eq_u32 s6, 63\n s_cbranch_scc1 L_chain_done")
        if nw >> 5 & 1 and not opt.get("tst"): a("s_barrier")
        if not nw >> 5 & 1:
            a.wait_ds(tk["wr"]); a("s_barrier")
        stamp("pv")
        zl += [(52, "0"), (54, "0"), (72, "0"), (74, "0")]
        for n, (r, v_) in enumerate(zl):
            a(f"v_mov_b64 {vr(r, 2)}, {v_}")
            if n >= 2 and wl: a(woh(*wl.pop(0)))
        for x in wl: a(woh(*x))
        busy(a, opt.get("bv", 0))
        wo_reg = lambda j: vr(WB[j % 8], 8)
    a("s_nop 0" if (A and opt.get("tst")) else "s_barrier" if (nw >> 6 & 1) else "s_waitcnt lgkmcnt(0)\n s_barrier")
    to = [a.ds(f"ds_read_b128 {vr(OA + 4*t)}, {vOr} offset:{t*1024}") for t in range(2)]
    if A and nw >> 6 & 1: (zero(a, 24, 40), zero(a, 40 if opt.get('ml', 0) else 44, 48))
    busy(a, opt.get("bo2", 0))
    stamp("wo")
    def wf(T, h): return add(WA[T] + 2*h)
    def wpk(T, h): return cvt(PK[T//4] + (T % 4)//2 + 2*h, WA[T] + 2*h, WA[T+1] + 2*h)
    def tag(T, h):
        r = PK[T//4] + (T % 4)//2 + 2*h
        return f"v_and_or_b32 v{r}, v{r}, -2, s97"
    def wst(hf): return f"buffer_store_dwordx4 {vr(PK[hf])}, {vPst}, {WS}, s{45+hf} offen {st}"
    post = {3: [wf(0, 0)], 4: [wf(0, 1)], 5: [wf(1, 0), wf(1, 1)], 6: [wpk(0, 0), wpk(0, 1)],
            7: [wf(2, 0), wf(2, 1)], 8: [tag(0, 0), tag(0, 1)], 9: [wf(3, 0), wf(3, 1), wpk(2, 0), wpk(2, 1), tag(2, 0), tag(2, 1)],
            11: [wf(4, 0)], 12: [wf(4, 1)], 13: [wf(5, 0), wf(5, 1)], 14: [wpk(4, 0), wpk(4, 1)], 15: [wf(6, 0), wf(6, 1), tag(4, 0), tag(4, 1)]}
    for j, xs in post.items():
        for x in xs: F(j, x)
    pad("p5", (1, 2, 1, 3, 4, 2, 0))
    pad("p6", (10, 12, 10, 13, 14, 12, 11))
    F(9, wst(0), 2)
    if val:
        F(5, f"v_cmp_u_f32 vcc, v{WA[0]}, v{WA[0]+2}")
        F(8, f"s_cbranch_vccnz {P}_oredo\n{P}_ook:")
    F(0, lambda: a.wait_ds(to[1]))
    if A and aw:
        for k, x in enumerate(awr): D(k + aw - 1, "aw", x)
        W(11, "aw")
    if not A:
        for j in range(8, 16):
            p0, p1 = [(j - 8 + (j - 8)//2, j - 8 + (j - 7)//2), {8: (0, 1), 9: (2, 3), 10: (4, 5), 11: (6, 7), 12: (8, 8), 13: (9, 9), 14: (10, 10), 15: (11, 11)}[j]][opt.get("vs", 0)]
            D(p0, "_", woh(j, 0), 3 if p0 == 9 else 0); D(p1, ("o", j), woh(j, 1), 3 if p1 == 9 else 0); W(j - 1, ("o", j))
    a.wait_ds(to[0])
    a(f"{P}_wo:")
    for j in range(16):
        T, t = j // 2, j % 2
        a(f"{SM} {vr(WA[T])}, {vr(OA + 4*t)}, {wo_reg(j)}, {vIdx}")
        run(j)
        stamp("w%d" % j)
    ein = opt.get("ein", 0) if A else 0
    if ein == 1: a(inbox)
    for x in (wf(7, 0), wf(7, 1), wpk(6, 0), wpk(6, 1), tag(6, 0), tag(6, 1)): a(x)
    if ein == 2: a(inbox)
    a(wst(1))
    a.drop = ()
    stamp("h1")
    c1, c2 = opt.get("c1", 2) if A else opt.get("c1v", 3), opt.get("c2", 2) if A else opt.get("c2v", 2)
    RD = LS
    nsp = opt.get("nsp", 0) >> (0 if A else 1) & 1
    work = [lambda: (zero(a, 28, 36, "s[98:99]"), zero(a, 36, 38, "-1"))]
    if A:
        work += [lambda: (a(f"ds_read_b128 v[120:123], {vKa}\n ds_read_b128 v[124:127], {vMem0} offset:2048"), zero(a, 24, 28, "-1")),
                 lambda: zero(a, ACQ, ACQ + 8), lambda: zero(a, ACK, ACK + 8)]
        work += [lambda: busy(a, 2)] * 4
    else:
        for j in range(5): work.append(lambda j=j: (a(wq_half(j, 0)), a(wq_half(j, 1)), zero(a, ACQ + 4*j, ACQ + 4*j + 4)))
        work += [lambda: (zero(a, 24, 28, "-1"), zero(a, ACQ + 20, ACQ + 24)), lambda: (zero(a, ACQ + 24, ACQ + 32), zero(a, 16, 20, "-1"))]
    wm = opt.get("wm", 1)
    gath = f"buffer_load_dwordx4 v[24:27], {vLin}, {WS}, s49 offen sc1"
    if wm & 1:
        SETS = (28, 48)
        def req(b): return f"buffer_load_dwordx4 {vr(b)}, {vLin}, {WS}, s47 offen sc1\n buffer_load_dwordx4 {vr(b+4)}, {vLin}, {WS}, s47 offen offset:1024 sc1"
        def exam(b):
            a(f"{MF} {vr(RD)}, {vr(SEL)}, {vr(b)}, 0")
            a(f"v_bitop3_b32 v44, v{b}, v{b+1}, s98 bitop3:0xbd\n v_bitop3_b32 v45, v{b+2}, v{b+3}, s98 bitop3:0xbd")
            a(f"{MF} {vr(RD)}, {vr(SEL)}, {vr(b+4)}, {vr(RD)}")
            a(f"v_bitop3_b32 v46, v{b+4}, v{b+5}, s98 bitop3:0xbd\n v_bitop3_b32 v47, v{b+6}, v{b+7}, s98 bitop3:0xbd")
            a("v_or3_b32 v44, v44, v45, v46\n v_bitop3_b32 v44, v44, v47, 1 bitop3:0xa8\n v_cmp_ne_u32 vcc, 0, v44")
        work[0] = lambda: zero(a, 36, 38, "-1")
        for w_ in (work[:4] if A else work): w_()
        w0, w1, w2 = (opt.get("a0", 2), opt.get("a1", 6), opt.get("a2", 2)) if A else (opt.get("v0", 8), opt.get("v1", 8), opt.get("v2", 4))
        if not ein: busy(a, w0); a(req(SETS[0]))
        busy(a, w1); a(req(SETS[1]))
        if A:
            next_seg(a, P)
            a("s_waitcnt lgkmcnt(0)")
        a("s_mov_b32 s96, 0")
        busy(a, w2)
        for k in range(opt.get("p7" + cl_, 0)): a("s_nop 0")
        a(f"s_waitcnt vmcnt({3 if ein else 2})\n{P}_r10:")
        exam(SETS[0])
        for r in range(RD, RD + 4): a(f"v_add_f32_dpp v{r}, v{r}, v{r} row_ror:4 row_mask:0xf bank_mask:0xf")
        a(f"s_cbranch_vccnz {P}_r11\n{P}_r1ok:")
        stamp("r1")
    else:
        pm = opt.get("pe", 0x90) if A else opt.get("pl", 0x100)
        for k in range(9):
            if k == 8: busy(a, opt.get("de", 1) if A else opt.get("dl", 8))
            if pm >> k & 1: a(inbox)
            if k < 8: work[k]()
        if A: a("s_waitcnt lgkmcnt(0)")
        a(f"s_mov_b32 s96, 0\n s_cmp_lg_u32 s97, 0\n s_cbranch_scc1 {P}_r11")
        for ph in range(2):
            a(f"{P}_r1{ph}:")
            if free == 1: a("s_waitcnt vmcnt(0)")
            op3 = ("v_or3_b32 {0}, {1}, {2}, {3}", "v_bitop3_b32 {0}, {1}, {2}, {3} bitop3:0x80")[ph]
            for k in range(c1):
                a(op3.format("v45", "v28", "v29", "v30")); a(op3.format("v46", "v31", "v32", "v33")); a(op3.format("v45", "v45", "v34", "v35"))
                a(f"""
                v_bitop3_b32 v45, v45, v46, 1 bitop3:{('0xa8', '0x80')[ph]}
                v_cmp_ne_u32 vcc, {'v45' if free else ph}, v45
                """)
                if not nsp: a(f"{MF} {vr(RD)}, {vr(SEL)}, v[28:31], 0\n {MF} {vr(RD)}, {vr(SEL)}, v[32:35], {vr(RD)}")
                a(f"s_cbranch_vccz {P}_r1ok")
            a(f"s_mov_b64 exec, vcc\n {inbox}\n s_mov_b64 exec, -1")
            if prof: a("s_add_u32 s30, s30, 1")
            G.spin_tail(a, f"{P}_r1{ph}")
        a(f"{P}_r1ok:")
        stamp("r1")
        gath = f"buffer_load_dwordx4 v[24:27], {vLin}, {WS}, s49 offen sc1"
        if nsp: a(f"{MF} {vr(RD)}, {vr(SEL)}, v[28:31], 0\n {MF} {vr(RD)}, {vr(SEL)}, v[32:35], {vr(RD)}")
        else: a("s_nop 5")
    for k in ((8,) if wm & 1 else (4, 8)):
        for r in range(RD, RD + 4): a(f"v_add_f32_dpp v{r}, v{r}, v{r} row_ror:{k} row_mask:0xf bank_mask:0xf")
    a(cvt(RD, RD, RD+1)); a(cvt(RD+1, RD+2, RD+3))
    busy(a, opt.get("xa", 0) if A else opt.get("xv", 0))
    if not A and opt.get("gx"): a(gath)
    a(f"s_mov_b64 exec, s[58:59]\n buffer_store_dwordx2 {vr(RD, 2)}, {vPub}, {WS}, s48 offen {st}")
    stamp("h2")
    a(f"buffer_store_dwordx2 v[36:37], {vPub}, {WS}, s51 offen {st}\n s_mov_b64 exec, -1")
    if not lw: zero(a, LS, LS + 4, "-1")
    lr = 0 if lw else opt.get("lr", 1) if A else opt.get("lrv", 1)
    book = lambda: (a(f"s_mov_b32 s80, s6\n s_add_u32 s6, s6, 1\n s_add_u32 s53, s53, 0x20000\n s_mov_b32 s96, 0\n v_mov_b32 {vT}, 0"), ring_next(a))
    if A:
        a("s_waitcnt vmcnt(10)")
        items = [lambda k=k: [a(f"v_accvgpr_read_b32 v{KX + r}, a{NK + r}") for r in range(8*k, 8*k + 8)] for k in range(4)]
        items += [book] + ([] if wm & 1 else [lambda: addr_prep(a)]) + [lambda: busy(a, 2)] * opt.get("gb", 0)
        ga = opt.get("ga", 0x24)
        for k in range(len(items) + 1):
            if ga >> k & 1: a(gath)
            if k < len(items): items[k]()
        assert 0 < ga < 2 << len(items)
    else:
        busy(a, opt.get("gl", 0))
        a(gath)
        if not wm & 1: addr_prep(a)
        busy(a, opt.get("gv", 5))
        if opt.get("g2", 3) & 2: a(gath)
        book()
    a("s_waitcnt lgkmcnt(0)")
    if not A: a("s_sub_u32 s7, s6, 1\n s_mov_b32 m0, s7\n v_writelane_b32 v11, s60, m0" if opt.get("per") else "s_nop 0\n s_nop 0\n v_mov_b32_e64 v11, 0")
    if lr & 2: a(lload)
    for k in range(opt.get("p8" + cl_, 0)): a("s_nop 0")
    stamp("g1")
    if wm & 2:
        c2 = 1
        assert opt.get("g2", 3) == 3
        busy(a, opt.get("a3", 0) if A else opt.get("v3", 2))
    a(f"{P}_r2:")
    if wm & 2: a("s_waitcnt vmcnt(1)")
    if free == 1: a("s_waitcnt vmcnt(0)")
    for k in range(c2):
        a(f"v_max3_u32 {vT}, v24, v25, v26\n v_max_u32 {vT}, {vT}, v27\n v_cmp_eq_u32 vcc, -1, {'v0' if free else vT}")
        a(f"s_cbranch_vccz {P}_prof" if prof == 1 else f"s_cbranch_vccz {P}_loop")
    a(f"s_mov_b64 exec, vcc\n {gath}\n s_mov_b64 exec, -1")
    if lr & 1: a(lload)
    if prof: a("s_add_u32 s31, s31, 1")
    G.spin_tail(a, f"{P}_r2")
    if prof == 1:
        a(f"{P}_prof:")
        stamp("end")
        a("s_waitcnt lgkmcnt(0)")
        if opt.get("trace"):
            assert cnt[0] <= 8
            a("s_lshl_b32 s7, s3, 6\n s_add_u32 s7, s7, s6\n s_lshl_b32 s7, s7, 5\n v_lshrrev_b32 v46, 2, v0\n v_add_u32 v46, s7, v46")
            for k in range(cnt[0]): a(f"v_writelane_b32 v45, s{60+2*k}, {k}")
            a(f"s_mov_b64 exec, 0xff\n ds_write_b32 v46, v45\n s_mov_b64 exec, -1\n s_branch {P}_loop")
        a(f"s_cmp_lt_u32 s6, 5\n s_cbranch_scc1 {P}_loop")
        for k in range(cnt[0] - 1): a(f"s_sub_u32 s7, s{62+2*k}, s{60+2*k}\n s_add_u32 s{20+k}, s{20+k}, s7")
        a(f"s_branch {P}_loop")
    if wm & 1:
        a(f"{P}_r11:\n s_mov_b64 exec, vcc\n {req(SETS[0])}\n s_mov_b64 exec, -1")
        if prof: a("s_add_u32 s30, s30, 1")
        a("s_waitcnt vmcnt(2)")
        exam(SETS[1])
        for r in range(RD, RD + 4): a(f"v_add_f32_dpp v{r}, v{r}, v{r} row_ror:4 row_mask:0xf bank_mask:0xf")
        a(f"s_cbranch_vccz {P}_r1ok\n s_mov_b64 exec, vcc\n {req(SETS[1])}\n s_mov_b64 exec, -1\n s_waitcnt vmcnt(2)")
        if prof: a("s_add_u32 s30, s30, 1")
        G.spin_tail(a, f"{P}_r10")
    lchk = f"v_max3_u32 {vT}, v{LS}, v{LS+1}, v{LS+2}\n v_max_u32 {vT}, {vT}, v{LS+3}\n v_cmp_eq_u32 vcc, -1, {vT}\n {lwr}\n s_waitcnt lgkmcnt(0)\n s_cbranch_vccz {P}_lok"
    a(f"{P}_lretry:")
    if not lw:
        if prof: a("s_add_u32 s25, s25, 100")
        a(f"s_waitcnt vmcnt({tk['Ln']})"); a(lchk)
    a(f"{P}_lr2:")
    a(f"s_mov_b64 exec, vcc\n {lload}\n s_mov_b64 exec, -1\n s_waitcnt vmcnt(0)")
    if prof: a("s_add_u32 s29, s29, 1")
    a(lchk)
    G.spin_tail(a, f"{P}_lr2")
    if A: fb_wait(a, P, prof)
    if A:
        q = "quad_perm:[2,3,0,1] row_mask:0xf bank_mask:0xf"
        a(f"""
        {P}_mfix:
        v_max_f32 v{t0+1}, 0, v{t0+1}
        v_mov_b32 v{t0+2}, v{t0+1}
        v_permlane16_swap_b32 v{t0+1}, v{t0+2}
        v_max_f32 v{t0+1}, v{t0+1}, v{t0+2}
        v_mov_b32 v{t0+2}, v{t0+1}
        v_permlane32_swap_b32 v{t0+1}, v{t0+2}
        v_max_f32 v{t0+1}, v{t0+1}, v{t0+2}
        v_max_f32_dpp v{t0+1}, v{t0+1}, v{t0+1} {q}
        v_sub_f32 v{M}, v{M}, v{t0+1}
        v_sub_f32 v{M+1}, v{M+1}, v{t0+1}
        v_sub_f32 v{t0+1}, 0, v{t0+1}
        v_exp_f32 v{M+2}, v{M}
        v_exp_f32 v{M+3}, v{M+1}
        v_exp_f32 v{t0+1}, v{t0+1}
        """)
        for x in mpack: a(x)
        for k, r in enumerate(regs): a(f"v_mul_f32 v{r}, v{r}, v{t0+1}")
        for k in range(4): a(cvt(PX + k, regs[2*k], regs[2*k+1]))
        for k in range(4): a(sw(PXB + k, PX + k))
        for x in pv[:5]: a(x)
        if prof: a("s_add_u32 s26, s26, 64")
        a.fence()
        a(f"s_branch {P}_mok")
    if val:
        def missing(b, n):
            a(f"v_max3_u32 {vT}, v{b}, v{b+1}, v{b+2}")
            for r in range(b + 3, b + n): a(f"v_max_u32 {vT}, {vT}, v{r}")
            a(f"v_cmp_eq_u32 vcc, -1, {vT}")
        if A:
            a(f"{P}_vredo:\n s_mov_b32 s96, 0\n{P}_vr1:\n ds_read_b128 {vr(VM)}, {vMem0} offset:2048\n s_waitcnt lgkmcnt(0)")
            missing(VM, 4)
            a(f"s_cbranch_vccz {P}_vr2")
            G.spin_tail(a, f"{P}_vr1")
            a(f"{P}_vr2:")
            if prof: a("s_add_u32 s28, s28, 64")
            for x in pv[1:5] + pv[6:]: a(x)
            a.fence()
            a(f"s_branch {P}_vok")
        a(f"{P}_oredo:")
        missing(OA, 8)
        a(f"s_cbranch_vccz {P}_ook\n s_mov_b32 s96, 0\n{P}_or1:")
        for t in range(2): a(f"ds_read_b128 {vr(OA + 4*t)}, {vOr} offset:{t*1024}")
        a("s_waitcnt lgkmcnt(0)")
        missing(OA, 8)
        a(f"s_cbranch_vccz {P}_or2")
        G.spin_tail(a, f"{P}_or1")
        a(f"{P}_or2:")
        if prof: a("s_add_u32 s27, s27, 64")
        for T in range(5): zero(a, WA[T], WA[T] + 4)
        if not A:
            for k in range(16): a(woh(k // 2, k % 2))
            a("s_waitcnt lgkmcnt(0)")
        a.fence()
        a(f"s_branch {P}_wo")

def role_chain(a, opt):
    startup(a, opt)
    loop(a, opt, "FA", "", True)
    loop(a, opt, "FV", "", False)
    loop(a, opt, "SA", "sc1", True)
    loop(a, opt, "SV", "sc1", False)
    a(f"L_chain_done:\n ds_read_b128 {vr(KV)}, {vKp}\n s_add_u32 s53, s53, 0x20000\n s_waitcnt lgkmcnt(0)")
    for k in range(2): a(f"buffer_store_dwordx4 {vr(KV + 4*k)}, {vLin}, {G.WS}, s53 offen offset:{2048*k} sc1")
    if opt.get("per"):
        a(f"s_lshl_b32 s7, s4, 2\n s_add_u32 s7, s7, s3\n s_lshl_b32 s7, s7, 8\n s_add_u32 s7, s7, {G.PROF + 0x40000}\n v_lshrrev_b32 v24, 2, v0\n buffer_store_dword v11, v24, {G.WS}, s7 offen sc1")
    a("L_chain_end:\n s_waitcnt vmcnt(0)")
    G.tl(a, opt, 3, "v24", True)
    if opt.get("trace"):
        a(f"s_lshl_b32 s7, s3, 11\n v_add_u32 v24, s7, v0\n ds_read_b128 v[28:31], v24\n ds_read_b128 v[32:35], v24 offset:1024\n s_waitcnt lgkmcnt(0)")
        a(f"s_lshl_b32 s7, s4, 2\n s_add_u32 s7, s7, s3\n s_lshl_b32 s7, s7, 11\n s_add_u32 s7, s7, {G.PROF + 0x40000}")
        a(f"buffer_store_dwordx4 v[28:31], v0, {G.WS}, s7 offen sc1\n buffer_store_dwordx4 v[32:35], v0, {G.WS}, s7 offen offset:1024 sc1")
    if opt.get("prof"):
        a(f"s_lshl_b32 s7, s4, 2\n s_add_u32 s7, s7, s3\n s_lshl_b32 s7, s7, 6\n s_add_u32 s7, s7, {G.PROF}\n s_mov_b64 exec, 1")
        for k in range(12):
            a(f"v_mov_b32 v24, s{20+k}\n buffer_store_dword v24, off, {G.WS}, s7 offset:{4*k} sc1")
    a("s_waitcnt vmcnt(0)\n s_endpgm")
```

```python
import sys, math, struct
from asmlib2 import *

NAME = "gated_mix__memory_aug_recurrent_mem_tr__glu_gated_reglu__prompt"

FLG_FB  = 0x0000
FLG_FH  = 0x4000
FLG_FC  = 0x60000
FLG_FF  = 0x68000
MEMB = 0x10000
SCR  = 0x50000
PART = 0x100000
KVM  = 0x300000
KXV  = 0x1000000
CP   = 0x3000000
FP   = 0x7000000
PROF = 0x9000000
QXG  = 0xA000000
D_CH, D_INIT, D_WK, D_ERR, D_GO = 0, 64, 128, 192, 224
WSTR = 32784
L_KX, L_MX, L_QK, L_OB, L_KV, L_ROLE = 131200, 139392, 147584, 152704, 156800, 161792
XROW = 1040; XBUF = 32 * XROW
L_OX = 2 * XBUF; L_KM = L_OX + 8192; L_VM = L_KM + 2048
LDS_BYTES = 163840
SPIN = 1 << 17

X, WS, DBG, OUT, W1, W2, W3, W4 = ["s[%d:%d]" % (b, b + 3) for b in (8, 12, 16, 20, 24, 28, 32, 36)]
P_X, P_MEM0, P_WQ, P_WK, P_WV, P_WO, P_WG, P_WU, P_WD, P_GW, P_OUT, P_DBG, P_WS = 60, 62, 64, 66, 68, 70, 76, 78, 80, 82, 84, 86, 88

ROLES = (("B", 32, 96), ("C", 96, 160), ("F", 160, 188), ("R", 188, 252))
def f32bits(x): return struct.unpack("<I", struct.pack("<f", x))[0]
CSC = f32bits(128 ** -0.5 * math.log2(math.e))

def srd(a, base, ptr, size):
    a(f"s_mov_b32 s{base}, s{ptr}\n s_mov_b32 s{base+1}, s{ptr+1}\n s_mov_b32 s{base+2}, {size}\n s_mov_b32 s{base+3}, 0x20000")

def spin_tail(a, loop, sleep=0):
    if sleep: a(f"s_sleep {sleep}")
    a(f"s_add_u32 s96, s96, 1\n s_cmp_lt_u32 s96, {SPIN}\n s_cbranch_scc1 {loop}\n s_branch L_bail")

def wait_scalar(a, srdn, soff, need, dst, vt, sleep=1):
    lp = a.label("WS"); ok = a.label("WSOK")
    a(f"s_mov_b32 s96, 0\n{lp}:")
    a(f"buffer_load_dword {vt}, off, {srdn}, {soff} sc1\n s_waitcnt vmcnt(0)\n v_readfirstlane_b32 {dst}, {vt}")
    a(f"s_nop 3\n s_cmp_ge_u32 {dst}, {need}\n s_cbranch_scc1 {ok}")
    spin_tail(a, lp, sleep)
    a(f"{ok}:")

def wait_go(a, vt, sleep):
    a(f"s_mov_b32 s90, {D_GO}")
    wait_scalar(a, DBG, "s90", 1, "s7", vt, sleep)

def wait_lanes(a, vaddr, soff, nl, need, vt, sleep=1):
    lp = a.label("WL"); ok = a.label("WLOK")
    a(f"s_mov_b32 s96, 0\n s_mov_b32 exec_lo, {hex((1 << nl) - 1)}\n s_mov_b32 exec_hi, 0\n{lp}:")
    a(f"buffer_load_dword {vt}, {vaddr}, {WS}, {soff} offen sc1\n s_waitcnt vmcnt(0)\n v_cmp_gt_u32 vcc, {need}, {vt}\n s_cbranch_vccz {ok}")
    spin_tail(a, lp, sleep)
    a(f"{ok}:\n s_mov_b64 exec, -1")

def flag_store(a, soff, sval, vt):
    a(f"v_mov_b32 {vt}, {sval}\n s_mov_b64 exec, 1\n buffer_store_dword {vt}, off, {WS}, {soff} sc1\n s_mov_b64 exec, -1")

TL = PROF + 0x10000
def tl(a, opt, k, vt="v24", chain=False):
    if opt.get("hd"):
        if k == 1: return
        sk = a.label("HD")
        slot = {0: 2, 2: 3, 3: 5, 4: 7}[k] + (1 if (chain and k in (2, 3)) else 0)
        cond = "s_and_b32 s100, s2, 63\n s_or_b32 s100, s100, s3\n s_cmp_lg_u32 s100, 0" if k == 0 else "s_cmp_lg_u32 s3, 0"
        if k == 2 and not chain: return
        a(f"{cond}\n s_cbranch_scc1 {sk}\n s_memrealtime s[100:101]\n s_waitcnt lgkmcnt(0)\n v_mov_b32 {vt}, s100")
        a(f"s_mov_b64 exec, 1\n buffer_atomic_umax {vt}, off, {DBG}, 0 offset:{4*slot}\n s_mov_b64 exec, -1\n{sk}:")
        return
    if not opt.get("tl"): return
    sk = a.label("TL")
    a(f"s_cmp_lg_u32 s3, 0\n s_cbranch_scc1 {sk}\n s_memrealtime s[100:101]\n s_waitcnt lgkmcnt(0)\n v_mov_b32 {vt}, s100")
    a(f"s_lshl_b32 s100, s2, 5\n s_add_u32 s100, s100, {TL}\n s_mov_b64 exec, 1\n buffer_store_dword {vt}, off, {WS}, s100 offset:{4*k} sc1")
    if k in (2, 3):
        a(f"s_memtime s[98:99]\n s_waitcnt lgkmcnt(0) vmcnt(0)\n v_mov_b32 {vt}, s98\n buffer_store_dword {vt}, off, {WS}, s100 offset:{4*(k+3)} sc1")
    a(f"s_mov_b64 exec, -1\n{sk}:")

def wp(a, opt, k):
    if not opt.get("wprof"): return
    a(f"s_memtime s[100:101]\n s_waitcnt lgkmcnt(0)\n s_sub_u32 s99, s100, s98\n s_mov_b32 s98, s100")
    if k is not None: a(f"s_add_u32 s{76+k}, s{76+k}, s99")
def wp_init(a, opt):
    if not opt.get("wprof"): return
    for k in range(8): a(f"s_mov_b32 s{76+k}, 0")
    wp(a, opt, None)
def wp_dump(a, opt):
    if not opt.get("wprof"): return
    a(f"s_lshl_b32 s7, s2, 2\n s_add_u32 s7, s7, s3\n s_lshl_b32 s7, s7, 5\n s_add_u32 s7, s7, {PROF + 0x20000}\n s_mov_b64 exec, 1")
    for k in range(8): a(f"v_mov_b32 v24, s{76+k}\n buffer_store_dword v24, off, {WS}, s7 offset:{4*k} sc1")
    a("s_mov_b64 exec, -1")

def init_arrive(a, vt):
    sk = a.label("IA")
    a(f"s_barrier\n s_cmp_lg_u32 s3, 0\n s_cbranch_scc1 {sk}")
    a(f"v_mov_b32 {vt}, 1\n s_mov_b64 exec, 1\n buffer_atomic_add {vt}, off, {DBG}, 0 offset:{D_INIT}\n s_mov_b64 exec, -1\n{sk}:")
    a.vm_n -= 1

def load_stream(a, jobs, tmp=32, depth=12, out=128):
    units = [(job, u) for job in jobs for u in range(16)]
    n = len(units); tok = {}
    def issue(k):
        job, u = units[k]
        a(f"s_mov_b32 s7, {job['row'](u) * job['stride']}")
        r = tmp + 8 * (k % depth)
        a(f"buffer_load_dwordx4 {vr(r)}, {job['v0']}, {job['srd']}, s7 offen")
        if job['stride'] < 4096:
            tok[k] = a.vm(f"buffer_load_dwordx4 {vr(r+4)}, {job['v0']}, {job['srd']}, s7 offen offset:{job['stride']}")
        else:
            tok[k] = a.vm(f"buffer_load_dwordx4 {vr(r+4)}, {job['v1']}, {job['srd']}, s7 offen")
    for k in range(min(depth, n)): issue(k)
    for k in range(n):
        job, u = units[k]
        a.wait_vm(tok[k])
        r = tmp + 8 * (k % depth)
        for c in range(8):
            d = job['dst'](u, c) if (job['kind'] == 'reg' or c in job.get('regc', ())) else out + 4*c + u % 4
            a(f"v_perm_b32 v{d}, v{r+4+c//2}, v{r+c//2}, s{40 + c % 2}")
        if k + depth < n: issue(k + depth)
        if job.get('group'):
            if u % 4 == 3: job['group'](u // 4)
        elif job['kind'] == 'lds' and u % 4 == 3:
            for c in range(8):
                if c not in job.get('regc', ()): a(f"ds_write_b128 {job['vdst']}, {vr(out + 4*c)} offset:{job['imm'](u // 4, c)}")
        if u == 0 and job.get('first'): job['first']()
        if u == 15 and job.get('done'): job['done']()

def lds_to_regs(a, vsrc, dst, first=0):
    def done():
        a("s_waitcnt lgkmcnt(0)\n s_barrier")
        for f in range(first, 32): a(f"ds_read_b128 {dst(f)}, {vsrc} offset:{f*1024}")
        a("s_waitcnt lgkmcnt(0)\n s_barrier")
    return done

def w1_setup(a, stride, scol):
    a(f"""
    s_mov_b32 s90, {8*stride}
    v_mul_lo_u32 v24, v1, s90
    v_lshl_add_u32 v24, v2, 4, v24
    s_mul_i32 s7, s3, {128*stride}
    s_add_u32 s7, s7, {scol}
    v_add_u32 v24, s7, v24
    v_add_u32 v25, {stride}, v24
    v_lshrrev_b32 v26, 2, v2
    s_mov_b32 s90, {WSTR}
    v_mul_lo_u32 v26, v26, s90
    v_lshl_add_u32 v26, v1, 8, v26
    v_and_b32 v27, 3, v2
    v_lshl_add_u32 v26, v27, 6, v26
    s_lshl_b32 s7, s3, 13
    v_add_u32 v26, s7, v26
    s_mul_i32 s7, s3, {WSTR}
    v_add_u32 v27, s7, v0
    """)

def w1_job(a, srdn, stride, dst):
    return dict(kind='lds', srd=srdn, stride=stride, v0="v24", v1="v25", row=lambda u: 32*(u//4) + 2*(u%4), vdst="v26",
                imm=lambda grp, c: (grp*2 + c % 2)*1024 + (c//2)*16, done=lds_to_regs(a, "v27", dst))

def w2_job(a, srdn, sbase, row0=0, done=None):
    a(f"v_lshlrev_b32 v28, 13, v1\n v_lshl_add_u32 v28, v2, 4, v28\n s_lshl_b32 s7, s3, 8\n s_add_u32 s7, s7, {sbase}\n v_add_u32 v28, s7, v28")
    return dict(kind='reg', srd=srdn, stride=1024, v0="v28", row=lambda u: row0 + 32*(u//4) + 2*(u%4), done=done,
                dst=lambda u, T: 128 + (T*4 + u//4)*4 + u % 4)

def prologue(a, opt):
    a(f"""
    s_cmp_ge_u32 s2, 256
    s_cbranch_scc1 L_end
    s_load_dwordx16 s[60:75], s[0:1], 0
    s_load_dwordx8 s[76:83], s[0:1], 64
    s_load_dwordx4 s[84:87], s[0:1], 96
    s_load_dwordx2 s[88:89], s[0:1], 112
    v_lshrrev_b32 v1, 6, v0
    v_and_b32 v0, 63, v0
    v_readfirstlane_b32 s3, v1
    s_mov_b32 s40, 0x05040100
    s_mov_b32 s41, 0x07060302
    s_mov_b32 s42, {CSC}
    s_getreg_b32 s4, hwreg(HW_REG_XCC_ID)
    s_and_b32 s4, s4, 7
    """)
    if opt.get("force_slow"):
        a("s_lshr_b32 s7, s2, 6\n s_add_u32 s7, s7, 1\n s_cmp_lt_u32 s2, 20\n s_cselect_b32 s4, 0, s7")
    a("s_waitcnt lgkmcnt(0)")
    srd(a, 8, P_X, 0x200000); srd(a, 12, P_WS, 0x10000000); srd(a, 16, P_DBG, 256)
    a(f"""
    v_mov_b32 v3, {L_ROLE}
    """)
    tl(a, opt, 0)
    a(f"""
    s_cmp_lg_u32 s3, 0
    s_cbranch_scc1 L_role_wait
    v_lshlrev_b32 v4, 2, v0
    v_add_u32 v4, {D_WK}, v4
    v_cmp_eq_u32 vcc, 0, v0
    v_cndmask_b32 v4, v4, v0, vcc
    s_mov_b64 exec, 1
    s_lshl_b32 s7, s4, 2
    s_add_u32 s7, s7, {D_WK}
    s_cmp_eq_u32 s4, 0
    s_cselect_b32 s7, {D_CH}, s7
    v_mov_b32 v2, 1
    buffer_atomic_add v2, off, {DBG}, s7 sc0
    s_waitcnt vmcnt(0)
    v_readfirstlane_b32 s5, v2
    s_nop 3
    s_cmp_lt_u32 s5, 32
    s_cbranch_scc1 L_role_slot
    ; more than 32 workgroups on this die: take one of the places another die left empty
    v_mov_b32 v2, 1
    buffer_atomic_add v2, off, {DBG}, 0 offset:{D_WK} sc0
    s_waitcnt vmcnt(0)
    v_readfirstlane_b32 s6, v2
    s_mov_b64 exec, 0xff
    s_mov_b32 s96, 0
    L_role_census:
    buffer_load_dword v2, v4, {DBG}, 0 offen sc1
    s_waitcnt vmcnt(0)
    """)
    for x in range(8): a(f"v_readlane_b32 s{44+x}, v2, {x}")
    a("s_nop 3\n s_mov_b32 s7, 0")
    for x in range(8): a(f"s_add_u32 s7, s7, s{44+x}")
    a("s_cmp_ge_u32 s7, 256\n s_cbranch_scc1 L_role_pick")
    spin_tail(a, "L_role_census", 4)
    a("L_role_pick:\n s_mov_b64 exec, 1")
    for x in range(8):
        a(f"s_min_u32 s7, s{44+x}, 32\n s_mov_b32 s4, {x}\n s_add_u32 s5, s7, s6\n s_cmp_lt_u32 s5, 32\n s_cbranch_scc1 L_role_slot\n s_sub_u32 s6, s5, 32")
    a(f"""
    s_branch L_bail
    L_role_slot:
    s_mul_i32 s7, s5, 7
    s_add_u32 s7, s7, s4
    s_add_u32 s7, s7, 31
    s_cmp_eq_u32 s4, 0
    s_cselect_b32 s5, s5, s7
    L_role_have:
    v_mov_b32 v2, s5
    ds_write_b32 v3, v2
    s_waitcnt lgkmcnt(0)
    s_mov_b64 exec, -1
    L_role_wait:
    """)
    if opt.get("pt", 1):
        srd(a, 24, P_WK, 0x400000)
        a(f"""
        s_cmp_eq_u32 s3, 0
        s_cbranch_scc1 L_pt_done
        s_cmp_lg_u32 s4, 0
        s_cbranch_scc1 L_pt_done
        s_lshr_b32 s7, s2, 3
        s_and_b32 s43, s7, 7
        s_lshl_b32 s43, s43, 16
        s_lshr_b32 s7, s7, 3
        s_lshl_b32 s7, s7, 20
        s_add_u32 s7, s7, s43
        s_sub_u32 s43, s3, 1
        s_mul_i32 s43, s43, {0x80000 if opt.get("pt", 1) == 2 else 0x4000}
        s_add_u32 s7, s7, s43
        v_lshlrev_b32 v4, 7, v0
        s_nop 15
        """)
        for k in range(4 if opt.get("pt", 1) == 2 else 2): a(f"buffer_load_dword v{100+k}, v4, {W1}, s7 offen\n s_add_u32 s7, s7, 8192")
        a("L_pt_done:")
    if opt.get("cw", 0):
        a(f"""
        s_cmp_lg_u32 s3, 1
        s_cbranch_scc1 L_code_done
        s_getpc_b64 s[44:45]
        L_code_base:
        s_mov_b32 s46, L_code_end-L_code_base
        s_mov_b32 s47, 0x20000
        v_lshlrev_b32 v4, 7, v0
        s_mov_b32 s7, 0
        s_nop 15
        s_nop 15
        """)
        for k in range(7): a(f"buffer_load_dword v{100+k}, v4, s[44:47], s7 offen\n s_add_u32 s7, s7, 8192")
        a("L_code_done:")
    a(f"""
    s_barrier
    ds_read_b32 v2, v3
    s_waitcnt lgkmcnt(0)
    v_readfirstlane_b32 s4, v2
    v_lshrrev_b32 v1, 4, v0
    v_and_b32 v2, 15, v0
    s_nop 2
    s_and_b32 s4, s4, 255
    """)
    tl(a, opt, 1)
    if opt.get("tl"):
        a(f"v_mov_b32 v24, s4\n s_lshl_b32 s100, s2, 5\n s_add_u32 s100, s100, {TL}\n buffer_store_dword v24, off, {WS}, s100 offset:28 sc1")
    a(f"""
    s_cmp_lt_u32 s4, 32
    s_cbranch_scc1 L_chain
    s_cmp_lt_u32 s4, 96
    s_cbranch_scc1 L_B
    """)
    if not opt.get("nocfr"): a("""
    s_cmp_lt_u32 s4, 160
    s_cbranch_scc1 L_C
    s_cmp_lt_u32 s4, 188
    s_cbranch_scc1 L_F
    s_cmp_lt_u32 s4, 252
    s_cbranch_scc1 L_R
    """)
    init_arrive(a, "v3")
    a("s_cmp_lg_u32 s4, 252\n s_cbranch_scc1 L_end\n s_cmp_lg_u32 s3, 0\n s_cbranch_scc1 L_end")
    wait_scalar(a, DBG, D_INIT, 256, "s7", "v3", 12)
    a(f"""
    v_mov_b32 v3, 1
    s_mov_b64 exec, 1
    buffer_store_dword v3, off, {DBG}, 0 offset:{D_GO} sc1
    s_waitcnt vmcnt(0)
    s_endpgm
    L_bail:
    s_mov_b64 exec, 1
    v_mov_b32 v0, s4
    v_add_u32 v0, 0x100, v0
    buffer_store_dword v0, off, {DBG}, 0 offset:{D_ERR}
    s_waitcnt vmcnt(0)
    L_end:
    s_endpgm
    """)

def x_dma(a, sseg, sbuf):
    a(f"s_lshl_b32 s90, {sseg}, 15\n s_lshl_b32 s91, s3, 13\n s_add_u32 s90, s90, s91")
    a(f"s_mul_i32 s91, s3, {8*XROW}\n s_add_u32 s91, s91, {sbuf}")
    for r in range(8):
        a(f"s_add_u32 m0, s91, {r*XROW}")
        a(f"s_nop 0\n buffer_load_dwordx4 v0, {X}, s90 offen lds")
        if r < 7: a("s_add_u32 s90, s90, 1024")

def gemm1(a, vx, mats, fr, mid=None):
    tok = {}
    def rd(t):
        for rt in range(2):
            tok[t] = a.ds(f"ds_read_b128 {vr(fr + 8*(t%3) + 4*rt)}, {vx} offset:{rt*16*XROW + t*64}")
    rd(0); rd(1)
    for t in range(16):
        if t + 2 < 16: rd(t + 2)
        a.wait_ds(tok[t])
        for wreg, acc, wA in mats:
            for T in range(2):
                for rt in range(2):
                    xf = vr(fr + 8*(t%3) + 4*rt); d = vr(acc(T, rt)); c = d if t else "0"
                    A, B = (wreg(t, T), xf) if wA else (xf, wreg(t, T))
                    a(f"v_mfma_f32_16x16x32_bf16 {d}, {A}, {B}, {c}")
        if mid and t == mid[0]: mid[1]()

ST2 = 'sc1'
def stage2(a, vrd, vst, sdst, oa, acc, tmp, nt=4, hook=None):
    tok = {}
    for rt in range(2):
        for t in range(nt):
            tok[(rt, t)] = a.ds(f"ds_read_b128 {oa(rt*nt+t)}, {vrd} offset:{(rt*nt+t)*1024}")
    def cv(rt, i, p):
        a(f"v_cvt_pk_bf16_f32 v{tmp + 4*(i%2) + p}, v{acc + (rt*8+2*p)*4 + i}, v{acc + (rt*8+2*p+1)*4 + i}")
    def st(rt, i):
        a(f"buffer_store_dwordx4 {vr(tmp + 4*(i%2))}, {vst}, {WS}, {'s7' if rt else sdst} offen offset:{i*1024} {ST2}")
    a(f"s_add_u32 s7, {sdst}, 16384")
    for rt in range(2):
        for t in range(nt):
            a.wait_ds(tok[(rt, t)])
            for T in range(8):
                d = vr(acc + (rt*8+T)*4)
                a(f"v_mfma_f32_16x16x32_bf16 {d}, {oa(rt*nt+t)}, {(vr, ar)[t//4](128 + (T*4 + t % 4)*4)}, {d if t else '0'}")
                if rt == 1 and t < 4 and 2 <= T < 6: cv(0, t, T - 2)
                if rt == 1 and t < 4 and T == 6: st(0, t)
            if hook and (rt, t) == hook[0]: hook[1]()
    for i in range(4):
        for p in range(4): cv(1, i, p)
        st(1, i)

def worker_top(a, name, nst):
    a("s_waitcnt vmcnt(0)")
    a(f"{name}_loop:\n s_waitcnt vmcnt({nst})\n s_barrier")
    a(f"s_lshl_b32 s43, s6, 1\n s_add_u32 s43, s43, s5")
    a(f"s_add_u32 s44, s43, 2\n s_min_u32 s44, s44, 63\n s_sub_u32 s45, {XBUF}, s46")
    x_dma(a, "s44", "s45")
    a(f"v_add_u32 v4, s46, v3")

def worker_bot(a, name):
    a(f"s_sub_u32 s46, {XBUF}, s46\n s_add_u32 s6, s6, 1\n s_cmp_lt_u32 s6, 32")
    a.fence()
    a(f"s_cbranch_scc1 {name}_loop")

def worker_init(a, first, per):
    a(f"s_sub_u32 s4, s4, {first}\n s_cmp_ge_u32 s4, {per}\n s_cselect_b32 s5, 1, 0\n s_cselect_b32 s7, {per}, 0\n s_sub_u32 s4, s4, s7")
    a("s_mov_b32 s6, 0\n s_mov_b32 s46, 0")
    a(f"s_mov_b32 s7, {XROW}\n v_mul_lo_u32 v3, v2, s7\n v_lshl_add_u32 v3, v1, 4, v3\n v_lshlrev_b32 v0, 4, v0")

def wave_flag(a, base):
    a(f"s_lshl_b32 s47, s5, 2\n s_add_u32 s47, s47, s3\n s_lshl_b32 s47, s47, 11\n s_lshl_b32 s7, s4, 7\n s_add_u32 s47, s47, s7\n s_add_u32 s47, s47, {base}")
    flag_store(a, "s47", "0", "v24")

def worker_end(a, opt):
    wp_dump(a, opt)
    tl(a, opt, 3)
    a("s_waitcnt vmcnt(0)\n s_endpgm")

def role_B(a, opt):
    a("L_B:")
    worker_init(a, 32, 32)
    a(f"s_lshl_b32 s47, s4, 7\n s_lshl_b32 s7, s5, 2\n s_add_u32 s47, s47, s7\n s_add_u32 s47, s47, {FLG_FB}\n v_lshrrev_b32 v5, 1, v0")
    def flags(kv, q):
        a(f"v_mov_b32 v6, {q}\n v_writelane_b32 v6, {kv}, 0\n s_mov_b64 exec, 3\n buffer_store_dword v6, v5, {WS}, s47 offen sc1\n s_mov_b64 exec, -1")
    flags("0", "0")
    srd(a, 24, P_WK, 0x400000); srd(a, 28, P_WV, 0x400000); srd(a, 32, P_WQ, 0x400000)
    a("s_lshl_b32 s48, s4, 8")
    w1_setup(a, 8192, "s48")
    def publish():
        sk = a.label("BF")
        a(f"s_barrier\n s_cmp_lg_u32 s3, 0\n s_cbranch_scc1 {sk}\n s_max_u32 s7, s6, {opt.get('fkv', 0)}")
        flags("s7", "s6")
        a(f"{sk}:")
        a.vm_n -= 1
    mk = lambda acc: (lambda t, T: ar((t*2+T)*4), lambda T, rt: acc + (T*2+rt)*4, True)
    mv = lambda acc: (lambda t, T: ar(128 + (t*2+T)*4), lambda T, rt: acc + (T*2+rt)*4, False)
    def kv_out(ak, av, r0):
        a(f"s_lshl_b32 s52, s43, 5\n s_add_u32 s52, s52, s4\n s_lshl_b32 s48, s52, 14\n s_add_u32 s48, s48, {KXV}")
        a("s_lshl_b32 s7, s3, 10\n s_add_u32 s49, s48, s7\n s_add_u32 s50, s49, 4096")
        a(f"s_lshl_b32 s52, s52, 13\n s_add_u32 s52, s52, s7\n s_add_u32 s52, s52, {QXG}\n s_add_u32 s53, s52, 4096")
        a("s_lshl_b32 s7, s3, 11\n s_add_u32 s51, s48, s7\n s_add_u32 s51, s51, 8192")
        for rt in range(2):
            r = r0 + 4*rt
            for i in range(4): a(f"v_cvt_pk_bf16_f32 v{r+i}, v{ak + rt*4 + i}, v{ak + (2+rt)*4 + i}")
            a(f"buffer_store_dwordx4 {vr(r)}, v0, {WS}, s{49+rt} offen sc1")
        for T in range(2):
            r = r0 + 8 + 4*T; b = av + T*8
            for p in range(4): a(f"v_cvt_pk_bf16_f32 v{r+p}, v{b + 2*p}, v{b + 2*p + 1}")
            a(f"buffer_store_dwordx4 {vr(r)}, v0, {WS}, s51 offen offset:{T*1024} sc1")
    def reread():
        if opt.get("rr"):
            a(f"s_lshl_b32 s7, s3, 12\n s_add_u32 s7, s7, s48\n v_lshlrev_b32 v7, 2, v0\n buffer_load_dword v7, v7, {WS}, s7 offen sc1")
    jv = w1_job(a, W2, 8192, lambda f: ar(128 + 4*f))
    vdone = jv['done']
    def first_kv():
        vdone()
        x_dma(a, "s5", "s46")
        a("s_mov_b32 s43, s5\n s_waitcnt vmcnt(0)\n s_barrier")
        gemm1(a, "v3", [mk(192), mv(208)], 160)
        kv_out(192, 208, 224)
        a("s_waitcnt vmcnt(0)")
        publish()
    if opt.get("fkv", 0): jv['done'] = first_kv
    jk = w1_job(a, W1, 8192, lambda f: ar(4*f))
    jk['first'] = lambda: init_arrive(a, "v28")
    load_stream(a, [jk, jv, w1_job(a, W3, 8192, lambda f: vr(128 + 4*f))])
    x_dma(a, "s5", "s46")
    tl(a, opt, 2)
    wp_init(a, opt)
    worker_top(a, "B", 6)
    wp(a, opt, 0)
    gemm1(a, "v4", [mk(64), mv(80), (lambda t, T: vr(128 + (t*2+T)*4), lambda T, rt: 96 + (T*2+rt)*4, True)], 32,
          mid=(4, lambda: (a("s_waitcnt vmcnt(8)"), publish(), reread())))
    wp(a, opt, 1)
    kv_out(64, 80, 112)
    for rt in range(2):
        r = 56 + 4*rt
        for i in range(4): a(f"v_cvt_pk_bf16_f32 v{r+i}, v{96 + rt*4 + i}, v{96 + (2+rt)*4 + i}")
        a(f"buffer_store_dwordx4 {vr(r)}, v0, {WS}, s{52+rt} offen sc1")
    wp(a, opt, 7)
    if opt.get("p1", 1):
        a(f"s_cmp_ge_u32 s6, {opt.get('p1', 2)}\n s_cbranch_scc1 B_later\n s_add_u32 s6, s6, 1\n s_waitcnt vmcnt(0)")
        publish()
        a("s_sub_u32 s6, s6, 1\nB_later:")
    worker_bot(a, "B")
    a("s_waitcnt vmcnt(0)")
    publish()
    worker_end(a, opt)

def st2_addrs(a):
    a(f"v_add_u32 v6, {L_OX}, v0")
    a(f"v_lshlrev_b32 v7, 12, v1\n v_lshl_add_u32 v7, v2, 4, v7\n s_lshl_b32 s7, s3, 8\n v_add_u32 v7, s7, v7")

def role_F(a, opt):
    a("L_F:")
    worker_init(a, 160, 14)
    wave_flag(a, FLG_FF)
    a("s_waitcnt vmcnt(0)")
    init_arrive(a, "v24")
    if opt.get("hold", 3) & 1:
        wait_go(a, "v24", opt.get("si", 64))
        a(f"s_lshl_b32 s48, s4, 7\n s_add_u32 s48, s48, {FLG_FB + opt.get('hf', 8)}")
        if not opt.get("hi", 1) & 1: wait_scalar(a, WS, "s48", 1, "s7", "v24", 16)
    srd(a, 24, P_WG, 512*3584); srd(a, 28, P_WU, 512*3584); srd(a, 32, P_WD, 1792*1024)
    a("s_lshl_b32 s48, s4, 8")
    w1_setup(a, 3584, "s48")
    a("s_lshl_b32 s48, s4, 17")
    load_stream(a, [w1_job(a, W1, 3584, lambda f: ar(4*f)), w1_job(a, W2, 3584, lambda f: ar(128 + 4*f)), w2_job(a, W3, "s48")])
    x_dma(a, "s5", "s46")
    st2_addrs(a)
    a("s_lshl_b32 s7, s3, 10\n v_add_u32 v5, s7, v6")
    tl(a, opt, 2)
    wp_init(a, opt)
    worker_top(a, "F", 8)
    wp(a, opt, 0)
    gemm1(a, "v4", [(lambda t, T: ar((t*2+T)*4), lambda T, rt: 64 + (T*2+rt)*4, True),
                    (lambda t, T: ar(128 + (t*2+T)*4), lambda T, rt: 80 + (T*2+rt)*4, True)], 32,
          mid=(9, lambda: (a("s_waitcnt vmcnt(8)"), flag_store(a, "s47", "s6", "v24"))))
    wp(a, opt, 1)
    for r in range(16): a(f"v_max_f32 v{64+r}, 0, v{64+r}")
    for r in range(16): a(f"v_mul_f32 v{64+r}, v{64+r}, v{80+r}")
    for rt in range(2):
        r = 96 + 4*rt
        for i in range(4): a(f"v_cvt_pk_bf16_f32 v{r+i}, v{64 + rt*4 + i}, v{64 + (2+rt)*4 + i}")
        a(f"ds_write_b128 v5, {vr(r)} offset:{rt*4096}")
    a(f"s_lshl_b32 s48, s43, 4\n s_add_u32 s48, s48, s4\n s_lshl_b32 s48, s48, 15\n s_and_b32 s48, s48, {hex((opt.get('fring', 64) << 19) - 1)}\n s_add_u32 s48, s48, {FP}")
    a("s_waitcnt lgkmcnt(0)\n s_barrier")
    stage2(a, "v6", "v7", "s48", lambda f: vr(32 + 4*f), 64, 24)
    wp(a, opt, 7)
    if opt.get("zf"): a(f"s_sleep {opt['zf']}")
    worker_bot(a, "F")
    a("s_waitcnt vmcnt(0)")
    flag_store(a, "s47", "s6", "v24")
    worker_end(a, opt)

def softmax(a, X0, X1, M, t, pX, pM):
    a(f"""
    v_max3_f32 v{t}, v{X0}, v{X0+1}, v{X0+2}
    v_max3_f32 v{t+1}, v{X0+3}, v{X1}, v{X1+1}
    v_max3_f32 v{t}, v{t}, v{X1+2}, v{X1+3}
    v_max3_f32 v{t+1}, v{t+1}, v{M}, v{M+1}
    v_max_f32 v{t}, v{t}, v{t+1}
    v_max_f32 v{t+1}, v{t}, v{t+1}
    v_permlane16_swap_b32 v{t}, v{t+1}
    v_max_f32 v{t+2}, v{t}, v{t+1}
    v_max_f32 v{t+3}, v{t}, v{t+1}
    v_permlane32_swap_b32 v{t+2}, v{t+3}
    v_max_f32 v{t}, v{t+2}, v{t+3}
    v_mul_f32 v{t}, s42, v{t}
    """)
    regs = [X0, X0+1, X0+2, X0+3, X1, X1+1, X1+2, X1+3, M, M+1]
    for r in regs: a(f"v_fma_f32 v{r}, v{r}, s42, -v{t}")
    for k, r in enumerate(regs):
        a(f"v_exp_f32 v{r}, v{r}")
        if k >= 2 and k % 2 == 0: a(f"v_cvt_pk_bf16_f32 v{pX + k//2 - 1}, v{regs[k-2]}, v{regs[k-1]}")
    a(f"v_cvt_pk_bf16_f32 v{pM}, v{M}, v{M+1}\n v_cvt_pk_bf16_f32 v{pM+3}, v{M}, v{M+1}")

def role_C(a, opt):
    C_OX, C_KV = 49152, 65536
    a("L_C:")
    a("s_sub_u32 s4, s4, 96\n s_lshr_b32 s5, s4, 4\n s_and_b32 s4, s4, 15\n s_mov_b32 s6, 0\n v_lshlrev_b32 v0, 4, v0")
    wave_flag(a, FLG_FC)
    a(f"""
    s_lshr_b32 s52, s3, 1
    s_and_b32 s53, s3, 1
    s_lshl_b32 s58, s4, 1
    s_add_u32 s58, s58, s52
    s_lshl_b32 s55, s5, 5
    s_add_u32 s55, s55, s58
    s_lshl_b32 s55, s55, 12
    s_lshl_b32 s7, s53, 11
    s_add_u32 s55, s55, s7
    s_add_u32 s55, s55, {KVM}
    v_mov_b64 v[24:25], -1
    v_mov_b64 v[26:27], -1
    s_add_u32 s7, s55, {15*0x80000}
    buffer_store_dwordx4 v[24:27], v0, {WS}, s7 offen sc1
    buffer_store_dwordx4 v[24:27], v0, {WS}, s7 offen offset:1024 sc1
    s_lshl_b32 s50, s58, 9
    s_add_u32 s50, s50, {FLG_FH}
    v_lshlrev_b32 v9, 3, v0
    """)
    a("s_waitcnt vmcnt(0)")
    init_arrive(a, "v24")
    if opt.get("hold", 3) & 2:
        wait_go(a, "v24", opt.get("si", 64))
        a(f"s_lshl_b32 s48, s58, 7\n s_add_u32 s48, s48, {FLG_FB + opt.get('hc', 0)}")
        if not opt.get("hi", 1) & 2: wait_scalar(a, WS, "s48", 1, "s7", "v24", 16)
    srd(a, 28, P_WO, 0x400000)
    a("s_lshl_b32 s48, s4, 18")
    load_stream(a, [w2_job(a, W2, "s48", 128, lambda: [a(f"v_accvgpr_write_b32 a{r}, v{r}") for r in range(128, 256)]), w2_job(a, W2, "s48")])
    st2_addrs(a)
    a(f"""
    v_add_u32 v6, {C_OX}, v0
    s_mul_i32 s59, s52, 24576
    v_add_u32 v3, s59, v0
    s_lshl_b32 s7, s53, 12
    s_add_u32 s7, s7, 16384
    v_add_u32 v4, s7, v3
    s_lshl_b32 s7, s3, 11
    s_add_u32 s7, s7, {C_KV}
    v_add_u32 v8, s7, v0
    s_lshl_b32 s7, s52, 12
    s_add_u32 s90, s7, {C_KV + 2048}
    v_add_u32 v11, s90, v0
    v_lshrrev_b32 v24, 2, v2
    v_and_b32 v25, 1, v2
    v_lshl_add_u32 v10, v24, 1, v25
    v_lshlrev_b32 v10, 4, v10
    v_lshl_add_u32 v10, v1, 7, v10
    s_add_u32 s90, s7, {C_KV}
    v_add_u32 v10, s90, v10
    s_lshl_b32 s90, s53, 13
    s_add_u32 s90, s90, s7
    v_add_u32 v12, s90, v6
    s_lshl_b32 s7, s53, 4
    v_add_u32 v14, s7, v2
    v_lshlrev_b32 v15, 2, v1
    v_sub_u32 v14, v14, v15
    """)
    for k in range(8):
        a(f"v_cmp_le_i32 s[{60+2*k}:{61+2*k}], {k if k < 4 else 12 + k}, v14")
    a("v_mov_b32 v14, 0xf149f2ca")
    for r in range(16, 20): a(f"v_mov_b32 v{r}, 0x3f803f80")
    a("v_mov_b32 v21, 0\n v_mov_b32 v22, 0")
    a(f"s_lshl_b32 s54, s58, 7\n s_and_b32 s7, s5, 1\n s_lshl_b32 s7, s7, 2\n s_add_u32 s54, s54, s7\n s_add_u32 s54, s54, {FLG_FB + 8}\n s_mov_b32 s56, 0")
    wait_go(a, "v24", opt.get("si", 64))
    QB, KX, VX = 0, 16, 48
    def fetch(sidx):
        ok = a.label("CB")
        a(f"s_lshl_b32 s49, {sidx}, 2\n s_add_u32 s49, s49, s5\n s_lshr_b32 s57, s49, 1\n s_cmp_gt_u32 s56, s57\n s_cbranch_scc1 {ok}\n s_add_u32 s57, s57, 1")
        wait_scalar(a, WS, "s54", "s57", "s56", "v13", 4)
        a(f"{ok}:")
        a(f"s_lshl_b32 s49, s49, 5\n s_add_u32 s49, s49, s58")
        a(f"s_lshl_b32 s57, s49, 13\n s_lshl_b32 s7, s53, 12\n s_add_u32 s57, s57, s7\n s_add_u32 s57, s57, {QXG}\n s_add_u32 s7, s7, s59\n s_add_u32 m0, s7, 16384")
        a(f"s_lshl_b32 s49, s49, 14\n s_add_u32 s49, s49, {KXV}\n s_lshl_b32 s7, s53, 13\n s_add_u32 s49, s49, s7\n s_add_u32 s7, s7, s59")
        for f in range(4): a(f"buffer_load_dwordx4 v0, {WS}, s57 offen offset:{f*1024} sc1 lds")
        for hf in range(2):
            a(f"s_add_u32 m0, s7, {hf*4096}")
            if hf: a("s_add_u32 s49, s49, 4096")
            for f in range(4): a(f"buffer_load_dwordx4 v0, {WS}, s49 offen offset:{f*1024} sc1 lds")
    fetch("s6")
    tl(a, opt, 2)
    wp_init(a, opt)
    a("s_waitcnt vmcnt(0)\nC_loop:\n s_barrier")
    wp(a, opt, 0)
    for f in range(4): a(f"ds_read_b128 {ar(QB + 4*f)}, v4 offset:{f*1024}")
    for f in range(16): a(f"ds_read_b128 {ar(KX + 4*f)}, v3 offset:{f*1024}")
    a("s_waitcnt lgkmcnt(0)")
    KM, VM, X0, X1, M = 88, 104, 116, 120, 124
    for rt in range(2):
        d = vr(X0 + 4*rt)
        for t in range(4): a(f"v_mfma_f32_16x16x32_bf16 {d}, {ar(KX + (rt*4+t)*4)}, {ar(QB + 4*t)}, {d if t else '0'}")
    for k in range(8): a(f"v_cndmask_b32 v{X0+k}, v14, v{X0+k}, s[{60+2*k}:{61+2*k}]")
    wp(a, opt, 1)
    a("s_cmp_eq_u32 s6, 15\n s_cbranch_scc1 C_direct\n s_lshl_b32 s57, s6, 2\n s_add_u32 s57, s57, s5\n s_add_u32 s57, s57, 1")
    wait_lanes(a, "v9", "s50", 2, "s57", "v24", opt.get("slh", 4))
    a(f"""
    C_direct:
    s_mov_b32 s96, 0
    C_poll:
    buffer_load_dwordx4 v[24:27], v0, {WS}, s55 offen sc1
    buffer_load_dwordx4 v[28:31], v0, {WS}, s55 offen offset:1024 sc1
    s_waitcnt vmcnt(0)
    v_max3_u32 v32, v24, v25, v26
    v_max3_u32 v33, v27, v28, v29
    v_max3_u32 v32, v32, v30, v31
    v_max_u32 v32, v32, v33
    v_cmp_eq_u32 vcc, -1, v32
    s_cbranch_vccz C_have
    """)
    spin_tail(a, "C_poll", opt.get("slc", 1))
    a("C_have:")
    wp(a, opt, 3)
    a("ds_write_b128 v8, v[24:27]\n ds_write_b128 v8, v[28:31] offset:1024\n s_add_u32 s55, s55, 0x80000\n s_waitcnt lgkmcnt(0)\n s_barrier")
    tk = [a.ds(f"ds_read_b128 {vr(KM + 4*t)}, v10 offset:{t*512}") for t in range(4)]
    for f in range(2): a(f"ds_read_b128 {vr(VM + 4*f)}, v11 offset:{f*1024}")
    for t in range(4):
        a.wait_ds(tk[t])
        a(f"v_mfma_f32_16x16x32_bf16 {vr(M)}, {vr(KM + 4*t)}, {ar(QB + 4*t)}, {vr(M) if t else '0'}")
    wp(a, opt, 4)
    PX, PM, O, Lr = 24, 20, 32, 64
    softmax(a, X0, X1, M, 28, PX, PM)
    a("s_waitcnt lgkmcnt(0)")
    a(f"v_mfma_f32_16x16x32_bf16 {vr(Lr)}, v[16:19], {vr(PX)}, 0")
    for f in range(8): a(f"v_mfma_f32_16x16x32_bf16 {vr(O + 4*f)}, {ar(VX + 4*f)}, {vr(PX)}, 0")
    a(f"v_mfma_f32_16x16x16_bf16 {vr(Lr)}, v[16:17], {vr(PM, 2)}, {vr(Lr)}")
    for f in range(8):
        a(f"v_mfma_f32_16x16x16_bf16 {vr(O + 4*f)}, {vr(VM + 2*(f//2), 2)}, {vr(PM + 2*(f%2), 2)}, {vr(O + 4*f)}")
        if f == 2: a(f"v_rcp_f32 v28, v{Lr}")
        if f >= 3:
            for r in range(2): a(f"v_mul_f32 v{O + 2*(f-3) + r}, v{O + 2*(f-3) + r}, v28")
    for hw in range(4):
        r = 68 + 4*hw
        for q in range(max(10, 8*hw), 8*hw + 8, 2): a(f"v_pk_mul_f32 {vr(O + q, 2)}, {vr(O + q, 2)}, v[28:29] op_sel_hi:[1,0]")
        for i in range(4): a(f"v_cvt_pk_bf16_f32 v{r+i}, v{O + 8*hw + i}, v{O + 8*hw + 4 + i}")
        a(f"ds_write_b128 v12, {vr(r)} offset:{hw*1024}")
    wp(a, opt, 5)
    a("s_cmp_eq_u32 s6, 15\n s_cbranch_scc1 C_nofetch\n s_add_u32 s44, s6, 1")
    fetch("s44")
    a("C_nofetch:")
    a(f"s_lshl_b32 s48, s6, 2\n s_add_u32 s48, s48, s5\n s_lshl_b32 s48, s48, 4\n s_add_u32 s48, s48, s4\n s_lshl_b32 s48, s48, 15\n s_add_u32 s48, s48, {CP}")
    a("s_waitcnt lgkmcnt(0)\n s_barrier")
    wp(a, opt, 6)
    def announce():
        a("s_cmp_lg_u32 s6, 15\n s_cbranch_scc1 C_noann\n s_cmp_lt_u32 s5, 2\n s_cbranch_scc1 C_noann")
        flag_store(a, "s47", "16", "v13")
        a("C_noann:")
    stage2(a, "v6", "v7", "s48", lambda f: ar(4*f), 64, 24, 8, ((1, opt.get("an", 6)), announce) if opt.get("rd", 1) == 2 else None)
    wp(a, opt, 7)
    a("s_add_u32 s6, s6, 1\n s_waitcnt vmcnt(0)")
    flag_store(a, "s47", "s6", "v13")
    wp(a, opt, 2)
    a("s_cmp_lt_u32 s6, 16")
    a.fence()
    a("s_cbranch_scc1 C_loop")
    worker_end(a, opt)

def make_sel(a, b, t):
    a(f"v_and_b32 v{t}, 1, v2\n v_lshlrev_b32 v{t}, 4, v{t}\n v_mov_b32 v{t+1}, 0x3f80\n v_lshlrev_b32 v{t}, v{t}, v{t+1}")
    a(f"v_bfe_u32 v{t+1}, v2, 1, 2")
    for p in range(4):
        a(f"v_cmp_eq_u32 vcc, {p}, v{t+1}\n v_cndmask_b32 v{b+p}, 0, v{t}, vcc")

def role_R(a, opt):
    a("L_R:")
    if opt.get("noR"):
        init_arrive(a, "v24"); a("s_waitcnt vmcnt(0)\n s_endpgm")
    a("s_sub_u32 s4, s4, 188\n s_lshr_b32 s5, s4, 5\n s_and_b32 s4, s4, 31")
    a(f"""
    v_lshlrev_b32 v4, 15, v1
    v_lshl_add_u32 v4, v2, 4, v4
    s_lshl_b32 s7, s4, 10
    s_lshl_b32 s43, s3, 8
    s_add_u32 s7, s7, s43
    v_add_u32 v4, s7, v4
    v_lshlrev_b32 v5, 3, v1
    v_lshl_add_u32 v5, v2, 4, v5
    v_add_u32 v5, s7, v5
    v_mov_b64 v[24:25], -1
    v_mov_b64 v[26:27], -1
    s_lshl_b32 s45, s5, 19
    s_add_u32 s45, s45, {CP + (62 << 19)}
    """)
    for u in range(4): a(f"buffer_store_dwordx4 v[24:27], v4, {WS}, s45 offen sc1\n s_add_u32 s45, s45, 0x20000")
    a("s_waitcnt vmcnt(0)")
    init_arrive(a, "v24")
    if opt.get("warm", 1):
        a("s_lshl_b32 s7, s5, 5\n s_add_u32 s7, s7, s4\n s_lshl_b32 s7, s7, 2\n s_add_u32 s7, s7, s3\n s_lshl_b32 s7, s7, 14\n v_lshlrev_b32 v24, 7, v0")
        for n, p in enumerate([(P_WQ, P_WV, P_WO), (P_WO,), (P_WK, P_WQ, P_WV, P_WO)][opt.get("warm", 1) - 1]):
            srd(a, 24, p, 0x400000)
            a(f"buffer_load_dword v{26+2*n}, v24, {W1}, s7 offen\n s_add_u32 s43, s7, 8192\n buffer_load_dword v{27+2*n}, v24, {W1}, s43 offen")
        a("s_waitcnt vmcnt(0)")
    srd(a, 20, P_OUT, 0x200000); srd(a, 24, P_GW, 1024)
    make_sel(a, 16, 24)
    a(f"""
    v_lshlrev_b32 v3, 7, v0
    v_lshlrev_b32 v0, 4, v0
    buffer_load_dwordx4 v[8:11], v0, {W1}, 0 offen
    s_lshl_b32 s7, s5, 2
    s_add_u32 s7, s7, s3
    s_lshl_b32 s7, s7, 11
    s_add_u32 s54, s7, {FLG_FC}
    s_add_u32 s55, s7, {FLG_FF}
    s_mov_b32 s6, 0
    s_mov_b32 s58, {f32bits(-math.log2(math.e))}
    """)
    for r in range(76, 80): a(f"v_mov_b32 v{r}, 0")
    wait_go(a, "v24", opt.get("si", 64))
    tl(a, opt, 2)
    wp_init(a, opt)
    a(f"""
    R_loop:
    s_lshl_b32 s43, s6, 1
    s_add_u32 s43, s43, s5
    s_add_u32 s57, s6, 1
    s_lshl_b32 s44, s43, 15
    s_lshl_b32 s7, s4, 10
    s_add_u32 s7, s7, s44
    buffer_load_dwordx4 v[12:15], v0, {X}, s7 offen
    """)
    wait_lanes(a, "v3", "s55", 14, "s57", "v24", opt.get("slr", 2))
    wp(a, opt, 0)
    a(f"s_lshl_b32 s45, s43, 19\n s_and_b32 s45, s45, {hex((opt.get('fring', 64) << 19) - 1)}\n s_add_u32 s45, s45, {FP}")
    for u in range(4):
        if u == 3: a("s_mov_b32 exec_hi, 0")
        a(f"buffer_load_dwordx4 {vr(64 + 4*u)}, v4, {WS}, s45 offen {['sc1', 'sc1 nt'][opt.get('rnt', 0)]}")
        if u < 3: a("s_add_u32 s45, s45, 0x20000")
    a("s_mov_b64 exec, -1")
    a("v_mov_b32 v24, 0")
    for p in range(4): a(f"v_dot2c_f32_bf16 v24, v{12+p}, v{8+p}")
    for k in (8, 4, 2, 1): a(f"v_add_f32_dpp v24, v24, v24 row_ror:{k} row_mask:0xf bank_mask:0xf")
    a("""
    v_mov_b32 v25, v24
    v_permlane16_swap_b32 v24, v25
    v_add_f32 v24, v24, v25
    v_mov_b32 v25, v24
    v_permlane32_swap_b32 v24, v25
    v_add_f32 v24, v24, v25
    v_mul_f32 v24, s58, v24
    v_exp_f32 v24, v24
    v_add_f32 v24, 1.0, v24
    v_rcp_f32 v6, v24
    v_sub_f32 v7, 1.0, v6
    s_waitcnt vmcnt(0)
    """)
    for u in range(4): a(f"v_mfma_f32_16x16x32_bf16 v[28:31], v[16:19], {vr(64 + 4*u)}, {'v[28:31]' if u else '0'}")
    for i in range(4): a(f"v_mul_f32 v{28+i}, v{28+i}, v7")
    wp(a, opt, 1)
    rd = opt.get("rd", 1)
    if rd == 1: a("s_cmp_eq_u32 s6, 31\n s_cbranch_scc1 R_direct")
    if rd == 3: a("s_cmp_eq_u32 s6, 31\n s_cbranch_scc1 R_watch")
    a("s_and_b32 s7, s6, 1\n s_lshl_b32 s7, s7, 14\n s_add_u32 s46, s54, s7\n s_lshr_b32 s57, s6, 1\n s_add_u32 s57, s57, 1")
    wait_lanes(a, "v3", "s46", 16, "s57", "v24", opt.get("slr", 2))
    if rd == 3:
        a(f"""
        s_branch R_direct
        R_watch:
        s_lshl_b32 s45, s43, 4
        s_and_b32 s7, s4, 15
        s_add_u32 s45, s45, s7
        s_lshl_b32 s45, s45, 15
        s_add_u32 s45, s45, {CP}
        s_mov_b32 s96, 0
        s_mov_b64 exec, 1
        R_w1:
        buffer_load_dword v24, v4, {WS}, s45 offen sc1
        s_waitcnt vmcnt(0)
        v_cmp_eq_u32 vcc, -1, v24
        s_cbranch_vccz R_w2
        """)
        spin_tail(a, "R_w1", opt.get("slw", 1))
        a("R_w2:\n s_mov_b64 exec, -1")
        if opt.get("rw"): a(f"s_sleep {opt['rw']}")
    a("R_direct:\n s_mov_b32 s96, 0")
    wp(a, opt, 2)
    a(f"R_poll:\n s_lshl_b32 s45, s43, 19\n s_add_u32 s45, s45, {CP}")
    tok = []
    for u in range(4):
        tok.append(a.vm(f"buffer_load_dwordx4 {vr(32 + 4*u)}, v4, {WS}, s45 offen sc1"))
        if u < 3: a("s_add_u32 s45, s45, 0x20000")
    for u in range(4):
        a.wait_vm(tok[u])
        a(f"v_mfma_f32_16x16x32_bf16 v[24:27], v[16:19], {vr(32 + 4*u)}, {'v[24:27]' if u else '0'}")
        a(f"v_max3_u32 v{48+u}, v{32+4*u}, v{33+4*u}, v{34+4*u}\n v_max_u32 v{48+u}, v{48+u}, v{35+4*u}")
    a("v_max3_u32 v48, v48, v49, v50\n v_max_u32 v48, v48, v51\n v_cmp_eq_u32 vcc, -1, v48\n s_cbranch_vccz R_have")
    spin_tail(a, "R_poll", opt.get("sld", 2))
    a("R_have:\n s_nop 3")
    for i in range(4): a(f"v_fma_f32 v{24+i}, v{24+i}, v6, v{28+i}")
    a(f"""
    v_cvt_pk_bf16_f32 v24, v24, v25
    v_cvt_pk_bf16_f32 v25, v26, v27
    s_mov_b32 exec_hi, 0
    buffer_store_dwordx2 v[24:25], v5, {OUT}, s44 offen {['', 'sc1', 'nt', 'sc0 sc1'][opt.get('ost', 1)]}
    s_mov_b64 exec, -1
    """)
    wp(a, opt, 3)
    a("s_add_u32 s6, s6, 1\n s_cmp_lt_u32 s6, 32")
    a.fence()
    a("s_cbranch_scc1 R_loop\n s_waitcnt vmcnt(0)")
    wp_dump(a, opt)
    tl(a, opt, 3)
    a("s_waitcnt vmcnt(0)\n s_endpgm")

def build(opt):
    from chain import role_chain
    global ST2
    ST2 = ['sc1', 'sc1 nt', ''][opt.get('st2', 0)]
    a = Asm()
    prologue(a, opt)
    if not opt.get("nocfr"): role_R(a, opt)
    role_chain(a, opt)
    role_B(a, opt)
    if not opt.get("nocfr"):
        role_C(a, opt)
        role_F(a, opt)
    a("L_code_end:")
    hdr = open("cdna_kernels/%s.s.ref" % NAME).read().split("; Override")[0] if opt.get("hdr", True) else ""
    k = NAME + "_kernel"
    return f"""{hdr}; @launch grid=(256,1,1) block=(256,1,1) lds={LDS_BYTES}
.amdgcn_target "amdgcn-amd-amdhsa--gfx950"
.text
.globl {k}
.p2align 8
.type {k},@function
{k}:
{a.text()}.section .rodata,"a"
.p2align 6
.amdhsa_kernel {k}
  .amdhsa_next_free_vgpr 512
  .amdhsa_next_free_sgpr 102
  .amdhsa_accum_offset 256
  .amdhsa_group_segment_fixed_size 0
  .amdhsa_kernarg_size 120
  .amdhsa_user_sgpr_count 2
  .amdhsa_user_sgpr_kernarg_segment_ptr 1
  .amdhsa_system_sgpr_workgroup_id_x 1
.end_amdhsa_kernel
"""

if __name__ == "__main__":
    opt = {}
    out = "cdna_kernels/%s.s" % NAME
    for arg in sys.argv[1:]:
        k, _, v = arg.partition("=")
        if k == "out": out = v
        elif k in ("stamps", "drop", "xp"): opt[k] = v.split(",")
        else: opt[k] = int(v, 0) if v else 1
    open(out, "w").write(build(opt))
    print("wrote", out)
```

```python
from asmlib2 import *
import gen as G

vLin, vPub, vT, vMem0, vIdx, vQw, vOr, vPst = ["v%d" % i for i in range(8)]
vQr, vOw, vInf, vJunk, vKa, vQq = "v8", "v9", "v20", "v21", "v22", "v23"
vW, vKp = "v8", "v9"
FB, SEL, ONES, KV = 10, 12, 16, 60
MEMA, ACQ, ACK = 24, 56, 64
LS = MEMA + 16
ACV, QBUF = 72, [88, 96, 104, 112, 120]
QS = 1280
L_MX, L_QK, L_AW, L_W = 0, 8192, 13312, 29696
L_OB = L_MX
SM = "v_smfmac_f32_16x16x64_bf16"
MF = "v_mfma_f32_16x16x32_bf16"
MF16 = "v_mfma_f32_16x16x16_bf16"

def zero(a, lo, hi, val="0"):
    for r in range(lo, hi, 2): a(f"v_mov_b64 {vr(r, 2)}, {val}")
def busy(a, n):
    for _ in range(n): a(f"v_mov_b32 {vT}, 0\n s_nop 2")
def wq_half(j, h): return f"ds_read_b128 {vr(QBUF[j % 5] + 4*h)}, {vW} offset:{G.WSTR + j*2048 + 1024*h}"
KX, VX = 72, 104
NK = 224
def kx_load(f, dst, fl="sc1"): return f"buffer_load_dwordx4 {dst}, {vLin}, {G.WS}, {('s52', 's87')[f // 4]} offen offset:{(f % 4)*1024} {fl}"
def vx_load(f, fl="sc1"): return f"buffer_load_dwordx4 {vr(VX + 4*f)}, {vLin}, {G.WS}, s57 offen offset:{f*1024} {fl}"
def addr_prep(a):
    for u in range(1, 4): a(f"v_add_u32 v{LS + 4*u}, s{80+u}, {vLin}")

def next_seg(a, P):
    a(f"""
    v_readfirstlane_b32 s84, v{FB}
    v_readfirstlane_b32 s85, v{FB+1}
    s_mov_b32 s57, s56
    s_add_u32 s90, s6, 2
    s_cmp_lt_u32 s90, 64
    s_cselect_b32 s7, 0x80000, 0
    s_add_u32 s52, s52, s7
    s_min_u32 s90, s90, 63
    s_lshr_b32 s91, s90, 1
    s_bitcmp1_b32 s90, 0
    s_cselect_b32 s7, s85, s84
    s_cmp_gt_u32 s7, s91
    s_cbranch_scc0 {P}_fbwait
    {P}_fbok:
    s_add_u32 s87, s52, 0x1000
    s_add_u32 s56, s52, s95
    s_lshl_b32 s94, s3, 13
    s_add_u32 s94, s94, s52
    """)

def ring_next(a):
    a(f"""
    s_mov_b32 s51, s48
    s_and_b32 s7, s6, 3
    s_lshl_b32 s48, s7, 13
    s_add_u32 s48, s48, {G.MEMB}
    s_lshr_b32 s97, s7, 1
    s_sub_u32 s98, s97, 1
    s_mov_b32 s99, s98
    s_and_b32 s7, s7, 1
    s_lshl_b32 s7, s7, 18
    s_add_u32 s45, s7, {G.PART}
    s_add_u32 s46, s45, 0x1000
    s_add_u32 s47, s44, s7
    """)

def fb_wait(a, P, prof=0):
    a(f"{P}_fbwait:")
    if prof: a("s_add_u32 s24, s24, 59")
    a("s_and_b32 s92, s90, 1\n s_lshl_b32 s92, s92, 2\n s_add_u32 s92, s92, s55\n s_add_u32 s93, s91, 1")
    G.wait_scalar(a, G.WS, "s92", "s93", "s7", vT, 1)
    a(f"s_branch {P}_fbok")

def startup(a, opt):
    WS, DBG, WSTR = G.WS, G.DBG, G.WSTR
    a("L_chain:")
    G.srd(a, 20, G.P_MEM0, 8192); G.srd(a, 24, G.P_WQ, 0x400000); G.srd(a, 28, G.P_WK, 0x400000)
    G.srd(a, 32, G.P_WV, 0x400000); G.srd(a, 36, G.P_WO, 0x400000)
    G.make_sel(a, SEL, 20)
    a(f"""
    v_mov_b32 v22, v0
    v_lshlrev_b32 v0, 4, v0
    v_and_b32 v24, 1, v2
    v_lshrrev_b32 v25, 2, v2
    v_and_b32 v26, 3, v2
    v_lshrrev_b32 v28, 1, v2
    v_and_b32 v29, 1, v1
    v_lshrrev_b32 v23, 1, v1
    ; weight voffsets: rows 128w + 32(g/2) + 8(g%2), column bytes 256h + 16n
    v_lshlrev_b32 v27, 18, v23
    v_lshl_add_u32 v27, v29, 16, v27
    v_lshl_add_u32 v27, v2, 4, v27
    s_lshl_b32 s90, s4, 8
    s_lshl_b32 s91, s3, 20
    s_add_u32 s90, s90, s91
    v_add_u32 v30, s90, v27
    v_add_u32 v31, 8192, v30
    ; LDS scatter bases. q,k (v16): region swap(n/4), slot (w - n/4)%4 ; v (v17): region n/4, slot (w - 2 - n/8)%4
    v_lshlrev_b32 v18, 8, v1
    v_lshl_add_u32 v18, v26, 6, v18
    v_add_u32 v18, {L_W}, v18
    s_mov_b32 s90, {WSTR}
    v_lshrrev_b32 v27, 1, v25
    v_and_b32 v19, 1, v25
    v_lshl_add_u32 v19, v19, 1, v27
    v_mul_lo_u32 v16, v19, s90
    v_sub_u32 v19, s3, v25
    v_and_b32 v19, 3, v19
    v_lshl_add_u32 v16, v19, 12, v16
    v_add_u32 v16, v16, v18
    v_mul_lo_u32 v17, v25, s90
    v_sub_u32 v19, s3, v27
    v_add_u32 v19, 2, v19
    v_and_b32 v19, 3, v19
    v_lshl_add_u32 v17, v19, 12, v17
    v_add_u32 v17, v17, v18
    ; v18 = own pair of regions (2(w%2)), v19 = own q/k region
    s_and_b32 s91, s3, 1
    s_mul_i32 s91, s91, {2*WSTR}
    s_add_u32 s91, s91, {L_W}
    v_add_u32 v18, s91, {vLin}
    s_lshr_b32 s7, s3, 1
    s_mul_i32 s7, s7, {WSTR}
    v_add_u32 v19, s7, v18
    ; Wo voffset (v11): rows 16(g/2)+4(g%2), column bytes 256w + 16n, head base
    v_lshlrev_b32 v27, 14, v23
    v_lshl_add_u32 v27, v29, 12, v27
    v_lshl_add_u32 v27, v2, 4, v27
    s_lshl_b32 s90, s4, 17
    s_lshl_b32 s91, s3, 8
    s_add_u32 s90, s90, s91
    v_add_u32 v11, s90, v27
    v_mov_b32 v20, 0x4444
    v_mov_b32 v21, 0xeeee
    v_cmp_eq_u32 vcc, 0, v24
    v_cndmask_b32 {vIdx}, v21, v20, vcc
    s_lshl_b32 s86, s3, 10
    s_add_u32 s90, s86, {L_MX}
    v_add_u32 {vMem0}, s90, {vLin}
    ; q write: QK + w*QS + (n/4)*128 + 2g*16 + (n%4)*4
    v_lshlrev_b32 {vQw}, 7, v25
    v_lshl_add_u32 {vQw}, v1, 5, {vQw}
    v_lshl_add_u32 {vQw}, v26, 2, {vQw}
    s_mul_i32 s90, s3, {QS}
    s_add_u32 s90, s90, {L_QK}
    v_add_u32 {vQw}, s90, {vQw}
    ; v27 = g*128 + (2(n/4) + n%2)*16 ; lanes n%4 < 2 carry keys, the others queries
    v_lshl_add_u32 v27, v25, 1, v24
    v_lshlrev_b32 v27, 4, v27
    v_lshl_add_u32 v27, v1, 7, v27
    v_cmp_gt_u32 vcc, 2, v26
    v_mov_b32 v20, {L_QK}
    v_mov_b32 v21, {L_QK + 640}
    v_cndmask_b32 v20, v20, v21, vcc
    v_add_u32 {vQr}, v20, v27
    s_add_u32 s90, s86, {L_OB}
    v_add_u32 v20, s90, v27
    v_add_u32 v21, 512, v20
    v_cndmask_b32 {vOw}, v20, v21, vcc
    ; o read: OB + (2g + n%2)*128 + (n/2)*16
    v_lshl_add_u32 v27, v1, 1, v24
    v_lshlrev_b32 v27, 7, v27
    v_lshl_add_u32 v27, v28, 4, v27
    v_add_u32 {vOr}, {L_OB}, v27
    ; partial store: (8w + 2(n/4) + g/2)*8192 + (g%2)*2048 + 64h + 16(n%4)
    v_lshl_add_u32 v27, v25, 1, v23
    v_lshlrev_b32 v27, 13, v27
    v_lshl_add_u32 v27, v29, 11, v27
    v_lshl_add_u32 v27, v26, 4, v27
    s_lshl_b32 s90, s3, 16
    s_lshl_b32 s91, s4, 6
    s_add_u32 s90, s90, s91
    v_add_u32 {vPst}, s90, v27
    ; mem0 voffset (v25): (n/2)*1024 + 2*(128w + 32g + 16(n%2))
    v_lshlrev_b32 v25, 10, v28
    v_lshl_add_u32 v25, v1, 6, v25
    v_lshl_add_u32 v25, v24, 5, v25
    s_lshl_b32 s91, s3, 8
    v_add_u32 v25, s91, v25
    ; key image read (v24): QK + 640 + (2(w%2) + g/2)*QS + (lane%32)*16
    s_and_b32 s91, s3, 1
    s_mul_i32 s91, s91, {2*QS}
    s_add_u32 s91, s91, {L_QK + 640}
    v_mul_u32_u24 v24, {QS}, v23
    v_and_b32 v27, 31, v22
    v_lshl_add_u32 v24, v27, 4, v24
    v_add_u32 v24, s91, v24
    ; publish: (w/2)*4096 + h*128 + (w%2)*64 + g*32 + (n%4)*8 + (n/4)*4   (lanes g<2, n<8)
    s_lshr_b32 s90, s3, 1
    s_lshl_b32 s90, s90, 12
    s_lshl_b32 s91, s4, 7
    s_add_u32 s90, s90, s91
    s_and_b32 s91, s3, 1
    s_lshl_b32 s91, s91, 6
    s_add_u32 s90, s90, s91
    v_lshlrev_b32 v27, 5, v29
    v_lshl_add_u32 v27, v26, 3, v27
    v_and_b32 v20, 4, v2
    v_add_u32 v27, v27, v20
    v_add_u32 {vPub}, s90, v27
    s_mov_b32 s58, 0x00ff00ff
    s_mov_b32 s59, 0
    s_lshl_b32 s44, s4, 2
    s_add_u32 s44, s44, s3
    s_lshl_b32 s44, s44, 11
    s_add_u32 s44, s44, {G.PART}
    s_lshl_b32 s55, s4, 7
    s_lshl_b32 s54, s4, 2
    s_add_u32 s54, s54, s3
    s_lshl_b32 s54, s54, 7
    s_add_u32 s54, s54, {G.FLG_FH}
    s_add_u32 s55, s55, {G.FLG_FB}
    """)
    for u in range(1, 4):
        a(f"s_add_u32 s7, s3, {u}\n s_and_b32 s7, s7, 3\n s_lshl_b32 s7, s7, 10\n s_add_u32 s{80+u}, s7, {L_MX}")
    zero(a, 20, 24, "-1")
    for sl in range(2):
        a(f"s_add_u32 s7, s44, {sl*0x40000}")
        for o in (0, 1024): a(f"buffer_store_dwordx4 v[20:23], {vLin}, {WS}, s7 offen offset:{o} sc1")
    a("s_mov_b64 exec, s[58:59]")
    for sl in range(4):
        a(f"s_mov_b32 s7, {G.MEMB + sl*8192}\n buffer_store_dword v20, {vPub}, {WS}, s7 offen sc1")
    a("s_mov_b64 exec, -1")
    G.flag_store(a, "s54", "0", "v27")
    def job(srdn, vdst, done):
        return dict(kind='lds', srd=srdn, stride=8192, v0="v30", v1="v31", vdst=vdst,
                    row=lambda u: 64*((u//4) % 2) + 16*(u % 2) + 4*(u//8) + 2*((u//2) % 2),
                    imm=lambda grp, c: (grp//2)*16384 + (c % 2)*2048 + (grp % 2)*1024 + (c//2)*16, done=done)
    def pick(fa, fv, after=None):
        def done():
            lv, le = a.label("PV"), a.label("PE")
            a(f"s_waitcnt lgkmcnt(0)\n s_barrier\n s_cmp_ge_u32 s3, 2\n s_cbranch_scc1 {lv}")
            fa()
            a(f"s_branch {le}\n{lv}:")
            fv()
            a(f"{le}:\n s_waitcnt lgkmcnt(0)\n s_barrier")
            if after: after()
        return done
    def rd(src, dst, off=0):
        return lambda: [a(f"ds_read_b128 {dst(f)}, {src} offset:{off + f*1024}") for f in range(32)]
    nothing = lambda: None
    def wo_group(grp):
        if grp == 2: a(f"buffer_load_dwordx2 v[30:31], off, {WS}, s55 sc1")
        if grp == opt.get("wg", 2) and opt.get("wr", 1) & 1:
            a(f"v_lshlrev_b32 v64, 1, {vLin}\n v_lshlrev_b32 v65, 3, {vLin}\n s_add_u32 s7, s44, 0x40000\n s_lshl_b32 s90, s3, 13\n s_add_u32 s90, s90, {G.MEMB}")
            a(f"buffer_load_dword v66, v64, {WS}, s44 offen sc1\n buffer_load_dword v67, v64, {WS}, s7 offen sc1\n buffer_load_dword v68, v65, {WS}, s90 offen sc1")
        if grp == opt.get("wg", 2) and opt.get("wr", 1) & 2:
            a(f"""
            s_getpc_b64 s[60:61]
            L_pc0:
            s_add_u32 s60, s60, FA_loop-L_pc0
            s_addc_u32 s61, s61, 0
            s_mov_b32 s62, SA_loop-FA_loop
            s_mov_b32 s63, 0x20000
            v_lshlrev_b32 v69, 2, {vLin}
            s_lshl_b32 s7, s3, 12
            buffer_load_dword v69, v69, s[60:63], s7 offen
            """)
        lv, le = a.label("OV"), a.label("OE")
        a(f"s_cmp_ge_u32 s3, 2\n s_cbranch_scc1 {lv}")
        for c in range(6):
            for r in range(4): a(f"v_accvgpr_write_b32 a{128 + (c*2 + grp//2)*8 + (grp % 2)*4 + r}, v{32 + 4*c + r}")
        for c in (6, 7): a(f"ds_write_b128 {vMem0}, {vr(32 + 4*c)} offset:{L_AW + (((c - 6)*2 + grp//2)*2 + grp % 2)*2048}")
        a(f"s_branch {le}\n{lv}:")
        for c in range(8): a(f"ds_write_b128 v18, {vr(32 + 4*c)} offset:{(c*2 + grp//2)*2048 + (grp % 2)*1024}")
        a(f"{le}:")
    def early():
        for hf in range(2):
            for c in range(2):
                a(f"buffer_load_dwordx2 {vr((20, 26)[hf] + 2*c, 2)}, v25, {G.OUT}, 0 offen offset:{8*hf + 16*c}")
        a(f"buffer_load_dword v16, off, {DBG}, 0 offset:{G.D_GO} sc1\n buffer_load_dword v17, off, {DBG}, 0 sc1")
    kd = G.lds_to_regs(a, "v19", lambda f: ar(4*f))
    jobs = [dict(job(G.W2, "v16", kd), first=lambda: G.init_arrive(a, "v27")),
            job(G.W1, "v16", G.lds_to_regs(a, "v19", lambda f: vr(128 + 4*f))),
            job(G.W3, "v17", pick(nothing, rd("v18", lambda f: ar(128 + 4*f)), early)),
            dict(kind='lds', srd=G.W4, stride=1024, v0="v11", row=lambda u: 64*(u//8) + 32*((u//4) % 2) + 8*(u % 2) + 2*((u//2) % 2), group=wo_group)]
    G.load_stream(a, jobs, tmp=64, depth=8, out=32, fl=['', 'nt', 'sc1'][opt.get('cnt', 0)])
    a("s_waitcnt vmcnt(0)")
    G.tl(a, opt, 4, "v32")
    a(f"""
    v_mov_b32 v33, v24
    v_readfirstlane_b32 s7, v16
    v_readfirstlane_b32 s43, v17
    v_mov_b64 {vr(LS, 2)}, v[26:27]
    v_mov_b64 {vr(LS+2, 2)}, v[28:29]
    v_mov_b64 v[24:25], v[20:21]
    v_mov_b64 v[26:27], v[22:23]
    s_cmp_ge_u32 s7, 1
    s_cbranch_scc1 L_chain_up
    """)
    G.wait_go(a, vT, 2)
    G.wait_scalar(a, DBG, 0, 0, "s43", vT, 2)
    a(f"""
    buffer_load_dwordx2 v[30:31], off, {WS}, s55 sc1
    s_waitcnt vmcnt(0)
    L_chain_up:
    v_mov_b64 {vr(FB, 2)}, v[30:31]
    s_lshl_b32 s52, s4, 14
    s_add_u32 s52, s52, {G.KXV - 0x80000}
    s_and_b32 s7, s3, 1
    s_lshl_b32 s95, s7, 12
    s_add_u32 s95, s95, 0x2000
    s_mov_b32 s56, 0
    s_lshl_b32 s53, s4, 12
    s_add_u32 s53, s53, {G.KVM - 0x20000}
    s_lshl_b32 s7, s7, 10
    s_add_u32 s53, s53, s7
    """)
    a(f"""
    s_mov_b32 s50, {G.MEMB}
    s_mov_b32 s80, 0
    s_mov_b32 s78, {G.f32bits(float(opt.get("thr", 12)))}
    s_mov_b64 s[88:89], 0
    s_mov_b32 s48, {G.MEMB + 3*8192}
    s_waitcnt lgkmcnt(0)
    s_mov_b32 s6, -2
    """)
    a("s_cmp_ge_u32 s3, 2\n s_cbranch_scc1 L_nokx")
    next_seg(a, "C1")
    for f in range(8): a(kx_load(f, vr(KX + 4*f)))
    a("s_mov_b32 s6, -1")
    next_seg(a, "C0")
    if opt.get("sw", 0): a("s_waitcnt vmcnt(0)")
    a("L_nokx:")
    G.tl(a, opt, 2, "v56", True)
    a("s_mov_b32 s6, 0")
    ring_next(a)
    addr_prep(a)
    if opt.get("prof"):
        for k in range(20, 32): a(f"s_mov_b32 s{k}, 0")
    a("s_cmp_ge_u32 s3, 2\n s_cbranch_scc1 L_vstart")
    for r in range(4): a(f"v_mov_b32 v{ONES+r}, 0x3f803f80")
    zero(a, ACQ, ACQ + 16)
    a(f"v_mov_b32 {vKa}, v33")
    a(f"v_and_b32 {vQq}, 32, {vLin}\n v_mul_u32_u24 {vQq}, 20, {vQq}\n v_add_u32 {vQq}, {vQq}, {vQr}\n v_subrev_u32 {vQq}, 640, {vQq}")
    a(f"v_and_b32 {vInf}, 32, {vLin}\n v_lshlrev_b32 {vInf}, 26, {vInf}\n v_or_b32 {vInf}, 0x7f800000, {vInf}")
    a.fence()
    a("s_cmp_lt_u32 s43, 32\n s_cbranch_scc1 SA_loop\n s_branch FA_loop\nL_vstart:")
    a(f"v_mov_b32 {vW}, v18\n v_mov_b32 {vKp}, v33\n v_subrev_u32 v10, 2048, {vMem0}")
    zero(a, 16, 20, "-1")
    for j in range(5):
        for h in range(2): a(wq_half(j, h))
    zero(a, ACQ, ACQ + 32)
    a("s_waitcnt lgkmcnt(0)")
    a.fence()
    a("s_cmp_lt_u32 s43, 32\n s_cbranch_scc1 SV_loop\n s_branch FV_loop")
    fb_wait(a, "C0")
    fb_wait(a, "C1")

def loop(a, opt, P, st, A):
    WS = G.WS
    prof = opt.get("prof"); free = opt.get("free")
    cnt = [0]
    sel = opt.get("stamps")
    dflt = ("top", "end", "15", "31", "sc", "pv", "wo", "w9", "h1")
    def stamp(k):
        if prof == 1 and (k in ("top", "end") or str(k) in (sel or dflt)):
            i = cnt[0]; cnt[0] += 1
            assert i < 9
            a(f"s_mem{'real' if opt.get('trace') else ''}time s[{60+2*i}:{61+2*i}]")
    tk = {}
    fill = {}
    def F(i, x, cls=None):
        if cls is None: cls = 1 if (isinstance(x, str) and x.startswith("v_")) else 0
        fill.setdefault(i, []).append((cls, x if callable(x) else (lambda: a(x))))
    def D(i, key, text, cls=0): F(i, lambda: tk.__setitem__(key, a.ds(text)), cls)
    def W(i, key): F(i, lambda: a.wait_ds(tk[key]))
    def Z(i, lo, hi, val="0"):
        for r in range(lo, hi, 2): F(i, f"v_mov_b64 {vr(r, 2)}, {val}")
    def run(i):
        for cls, f in sorted(fill.pop(i, []), key=lambda e: e[0]): f()
    def mem_rd(i, tau): D(i, ("m", tau), f"ds_read_b128 {vr(MEMA + 4*tau)}, v{LS + 4*(tau % 4)} offset:{4096*(tau//4)}")
    nw = opt.get("nw", 0x60)
    val = opt.get("val", 1)
    def bar(i, bit=0):
        if not nw >> bit & 1: W(i, "wr")
        F(i, "s_barrier")
    def add(r): return f"v_add_f32 v{r}, v{r}, v{r+1}"
    def cvt(d, x, y): return f"v_cvt_pk_bf16_f32 v{d}, v{x}, v{y}"
    def smv(tau, t4):
        j = 2*tau + t4 % 2
        def emit():
            if t4 >= 2 and j >= 5: a.wait_ds(tk[("w", j)])
            a(f"{SM} {vr(ACV + 4*t4)}, {vr(MEMA + 4*tau)}, {ar(128 + j*8, 8) if t4 < 2 else vr(QBUF[j % 5], 8)}, {vIdx}")
            if pend:
                jp = pend.pop(); tk[("w", jp)] = a.ds(wq_half(jp, 1))
            if t4 >= 2 and j + 5 < 16:
                a.ds(wq_half(j + 5, 0)); pend.append(j + 5)
        return emit
    pend = []
    a(".p2align 6")
    for _ in range(opt.get("ala", 4) if A else opt.get("alv", 1)): a.lines.append("    s_nop 0")
    a(f"{P}_loop:")
    a.drop = tuple(opt.get("drop", ()))
    stamp("top")
    nk = opt.get("nk", 6)
    ke = [("k", tau, T) for tau in range(1, 4) for T in range(2)]
    seq = [(m, 0, T) for T in range(2) for m in "qk"] + [("q", tau, T) for tau in range(1, 4) for T in range(2)] + ke[:nk]
    seq += [("q", tau, T) for tau in range(4, 8) for T in range(2)] + ke[nk:] + [("k", tau, T) for tau in range(4, 8) for T in range(2)]
    qpos = {2*t + T: i for i, (m, t, T) in enumerate(seq) if m == "q"}
    qe = qpos[15]
    q3 = min(qe + opt.get("q3", 8), 31)
    lc = opt.get("lc", 10); b2 = lc + opt.get("lb", 5)
    lw = opt.get("lw", 1)
    assert b2 <= qpos[8]
    lg = opt.get("lg", 2)
    lload = f"buffer_load_dwordx4 {vr(LS)}, {vLin}, {WS}, s50 offen sc1"
    F(lg, "s_mov_b64 exec, s[88:89]")
    F(lg, lambda: tk.__setitem__("L", a.vm(lload)))
    F(lg, "s_mov_b64 exec, -1")
    if opt.get("wm", 1) & 1:
        for u in range(1, 4): F(u - 1, f"v_add_u32 v{LS + 4*u}, s{80+u}, {vLin}")
    b1 = opt.get("b1", 3)
    bar(b1, 1)
    sp = opt.get("sp", 16)
    for u in range(1, 4): mem_rd(b1, u)
    def M_(i, key, text): F(i, lambda: tk.__setitem__(key, a.vm(text)))
    if A:
        xp = [int(p) for p in opt.get("xp", (3, 3, 3, 3, 5, 6, 7, 8, 9, 11, 12, 13, 14))]
        ta = opt.get("ta", 0)
        kf_, vf_, th = ["sc1", ""][opt.get("kp", 1)], ["sc1", ""][opt.get("vp", 1)], opt.get("th", 0)
        F(4, f"v_lshlrev_b32 {vJunk}, {3 if th else 2}, {vLin}")
        np_ = opt.get("nopf", 0)
        if not np_ & 1:
            for f in range(4): M_(xp[f], "vx", vx_load(f, vf_))
        tch = f"buffer_load_dword {vJunk}, {vJunk}, {WS}, s56 offen {vf_}"
        if not np_ & 2: F(xp[4], f"s_mov_b32 exec_hi, 0\n {tch}\n s_mov_b32 exec_hi, -1" if th else tch)
        if not np_ & 4:
            for f in range(8): F(xp[5 + f], kx_load(f, ar(NK + 4*f), kf_))
        F(sp, f"buffer_load_dwordx2 {vr(FB, 2)}, off, {WS}, s55 sc1")
        kvst = [f"buffer_store_dwordx4 {vr(120 + 4*k)}, {vLin}, {WS}, s53 offen offset:{2048*k} sc1" for k in range(2)]
        flst = f"s_mov_b64 exec, 1\n buffer_store_dword {vT}, off, {WS}, s54 sc1\n s_mov_b64 exec, -1"
        ks = opt.get("ks", 1)
        if opt.get("nokvm"): kvst = ["s_nop 0", "s_nop 0"]; flst = "s_nop 0"
        assert sp >= b2
        F(sp + 1, f"v_mov_b32 {vT}, s80")
        if not ks:
            for k in range(2): F(sp + 4 + k*opt.get("k2", 1), kvst[k])
            F(sp + 2, flst)
    else:
        nv0, nv1, nv2 = opt.get("nv0", 4), opt.get("nv1", 0), opt.get("nv2", 1)
        vs = [(tau, t4) for tau in range(6) for t4 in (2, 0, 3, 1)] + [(6, 2), (6, 0), (6, 3), (7, 2), (7, 3), (7, 0), (6, 1), (7, 1)]
        for k in range(nv0): F(3, smv(*vs.pop(0)))
        for k in range(nv1): F(lc, smv(*vs.pop(0)))
        for k in range(opt.get("nvb", 0)): F(b2, smv(*vs.pop(0)))
        for k in range(nv2): F(qpos[10] - 1, smv(*vs.pop(0)))
        for k in range(opt.get("nv3", 0)): F(q3, smv(*vs.pop(0)))
    W(3, ("m", 1)); W(5, ("m", 3))
    F(5, lambda: busy(a, opt.get("xe", 0)))
    lwr = f"ds_write_b128 {vMem0}, {vr(LS)} offset:4096"
    if lw:
        F(lc, lambda: a.wait_vm(tk["L"]))
        D(lc, "wr", lwr)
        F(lc+1, f"v_max3_u32 {vT}, v{LS}, v{LS+1}, v{LS+2}")
        F(lc+2, f"v_max_u32 {vT}, {vT}, v{LS+3}")
        F(lc+3, f"v_cmp_eq_u32 vcc, -1, {'v0' if free else vT}")
    else:
        F(lc-1, f"v_max3_u32 {vT}, v{LS}, v{LS+1}, v{LS+2}", 2)
        F(lc-1, f"v_max_u32 {vT}, {vT}, v{LS+3}", 2)
        D(lc, "wr", lwr)
        F(lc, f"v_cmp_eq_u32 vcc, -1, {'v0' if free else vT}")
        if not A: F(q3 - 1, "s_waitcnt vmcnt(0)")
    assert lc + 3 < b2 or free
    F(min(b2, qpos[8] - 1), lambda: (tk.__setitem__("Ln", a.vm_n - tk["L"]), a(f"s_cbranch_vccnz {P}_lretry\n{P}_lok:")))
    bar(b2, 2); mem_rd(b2, 5); mem_rd(b2+1, 6); mem_rd(b2+1, 7)
    if A and val and opt.get("pa", 1):
        if not lw: F(qe - 5, lambda: a.wait_vm(tk["L"]))
        F(qe - 5, "v_mov_b64 v[24:25], -1"); F(qe - 4, "v_mov_b64 v[26:27], -1")
        D(qe - 3, "_", f"ds_write_b128 {vMem0}, v[24:27]"); D(qe - 1, "_", f"ds_write_b128 {vMem0}, v[24:27] offset:2048")
    if not A and val and not opt.get("pa", 1):
        pp = opt.get("pp", 20)
        D(pp, "_", f"ds_write_b128 v10, v[16:19]"); D(pp + opt.get("pq", 2), "_", f"ds_write_b128 v10, v[16:19] offset:2048")
    W(qpos[10] - 1, ("m", 5)); W(qpos[12] - 1, ("m", 7))
    F(28, "s_add_u32 s49, s48, s86\n s_add_u32 s50, s49, 0x1000")
    F(29, "s_mov_b64 s[88:89], -1")
    qs = opt.get("qs", 0)
    F(qe+1, add(56)); F(qe+1, add(58)); F(qe+2, add(60)); F(qe+2, add(62))
    if qs:
        for r in (56, 58): F(qe+1, f"v_mul_f32 v{r}, s42, v{r}")
        for r in (60, 62): F(qe+2, f"v_mul_f32 v{r}, s42, v{r}")
    F(qe+2, cvt(56, 56, 60)); F(qe+2, cvt(57, 58, 62))
    D(qe+3, "wr", f"ds_write2_b32 {vQw}, v56, v57 offset0:0 offset1:4")
    bar(q3, 3)
    if A:
        for t in range(4): D(min(q3 + (t + 1)//2, 31), ("q", t), f"ds_read_b128 {vr(24 + 4*t)}, {vQq} offset:{t*QS}")
    if not A: F(0, {0: "s_nop 0\n s_nop 0", 1: "s_memrealtime s[60:61]", 2: "s_memtime s[60:61]"}[opt.get("per", 0)])
    cl_ = "a" if A else "v"
    def pad(key, slots):
        for k in range(opt.get(key + cl_, 0)): F(slots[k % len(slots)], "s_nop 0")
    pad("p1", (0, 1, 0, 1, 4, 6, 8) if A else (0, 1, 4, 6, 7, 8, 9))
    pad("p2", (19, 21, 23, 19, 21, 23, 14) if A else (18, 20, 21, 22, 23, 14, 20))
    pad("p3", (27, 30, 27, 30, 29, 27, 30))
    tk["wr"] = a.ds(f"ds_write_b128 {vMem0}, {vr(MEMA)}")
    for i, (m, tau, T) in enumerate(seq):
        j = 2*tau + T
        B = vr(128 + j*8, 8) if m == "q" else ar(j*8, 8)
        a(f"{SM} {vr((ACQ if m == 'q' else ACK) + 4*T)}, {vr(MEMA + 4*tau)}, {B}, {vIdx}")
        run(i)
        stamp(i)
    assert not fill, fill.keys()
    kfold = [add(64), add(66), add(68), add(70), cvt(64, 64, 68), cvt(65, 66, 70)]
    kwr = f"ds_write2_b32 {vQw}, v64, v65 offset0:160 offset1:164"
    inbox = f"buffer_load_dwordx4 v[28:31], {vLin}, {WS}, s47 offen sc1\n buffer_load_dwordx4 v[32:35], {vLin}, {WS}, s47 offen offset:1024 sc1"
    if A:
        QB, KB, X0, X1, M, t0 = 24, 40, 56, 60, 120, 124
        PX, PM, PXB, PMB, VM, O, Lr, PKO = 48, 68, 52, 64, 24, 28, 44, 120
        WA, OA, PK = [56, 60, 28, 32, 24, 36, 40, 44], 120, [64, 68]
        xl = []
        tq = [tk[("q", t)] for t in range(4)]
        kf = opt.get("kf", 1)
        if kf:
            for x in kfold: a(x)
            tk["wr"] = a.ds(kwr)
        else:
            a(kfold[0]); a(kfold[1])
            for x in kfold[2:]: F(0, x)
            D(1, "wr", kwr)
        b4 = opt.get("b4", 4)
        ml = opt.get("ml", 0)
        if not ml:
            bar(b4, 4)
            for t in range(4): D(min(b4 + (t + 1)//2, 7), ("k", t), f"ds_read_b128 {vr(KB + 4*t)}, {vQr} offset:{t*QS}")
        if ks:
            F(1, kvst[1]); F(3, kvst[0]); F(7, flst)
        F(2, "v_mov_b32 v68, 0\n v_mov_b32 v70, 0")
        F(0, "v_mov_b32 v65, 0\n v_mov_b32 v67, 0")
        F(6, f"v_max3_f32 v{t0}, v{X0}, v{X0+1}, v{X0+2}")
        for p in (7, 8, 9, 10, 11, 11)[:opt.get("x1", 6)]:
            if xl: F(p, xl.pop(0))
        awr = [f"ds_read_b128 {vr(KX + 4*k)}, {vMem0} offset:{L_AW + k*2048}" for k in range(8)]
        aw = opt.get("aw", 3)
        if not aw:
            for p in (8, 9, 10, 11): F(p, awr.pop(0))
        chain = [f"v_max3_f32 v{t0+1}, v{X0+3}, v{X1}, v{X1+1}", f"v_max3_f32 v{t0}, v{t0}, v{X1+2}, v{X1+3}",
                 f"v_max_f32 v{t0+2}, v{t0}, v{t0+1}", f"v_max_f32 v{t0+3}, v{t0}, v{t0+1}"]
        pad("p4", (8, 8, 6, 9, 10, 3, 1))
        ex = f"s_cmp_eq_u32 s6, 63\n s_cbranch_scc1 L_chain_end"
        if not ml:
            F(9, chain[0]); F(9, chain[1]); F(10, chain[2]); F(10, chain[3]); chain = []
            F(11, ex)
            for t in range(4): W(7 + t, ("k", t))
        if not opt.get("nopf", 0) & 1: F(5, lambda: a.wait_vm(tk["vx"]))
        for t in range(1, 4): F(t - 1, lambda t=t: a.wait_ds(tq[t]))
        def sc(n):
            t = n % 4
            d, Ao, Bo = ((X0, KX + 4*t, QB + 4*t), (X1, KX + 16 + 4*t, QB + 4*t), (M, KB + 4*t, QB + 4*t))[n // 4]
            return f"{MF} {vr(d)}, {vr(Ao)}, {vr(Bo)}, {vr(d) if t else '0'}"
        for n in range(8 if ml else 12):
            if n == 0: a.wait_ds(tq[0])
            a(sc(n))
            run(n)
            stamp("s%d" % n)
        stamp("sc")
        regs = [X0, X0+1, X0+2, X0+3, X1, X1+1, X1+2, X1+3]
        if ml: PX, PXB = 72, 76
        sm = chain + [f"v_permlane16_swap_b32 v{t0+2}, v{t0+3}", f"v_max_f32 v{t0}, v{t0+2}, v{t0+3}", f"v_max_f32 v{t0+1}, v{t0+2}, v{t0+3}"]
        if not ml: sm += ["v_mov_b64 v[40:41], 0", "v_mov_b64 v[42:43], 0"]
        sm += [f"v_permlane32_swap_b32 v{t0}, v{t0+1}", f"v_max3_f32 v{t0}, v{t0}, v{t0+1}, {vInf}"]
        if not qs: sm.append(f"v_mul_f32 v{t0}, s42, v{t0}")
        def arg(r): return f"v_sub_f32 v{r}, v{r}, v{t0}" if qs else f"v_fma_f32 v{r}, v{r}, s42, -v{t0}"
        sm += [arg(r) for r in regs]
        for k, r in enumerate(regs):
            sm.append(f"v_exp_f32 v{r}, v{r}")
            if k >= 2 and k % 2 == 0: sm.append(cvt(PX + k//2 - 1, regs[k-2], regs[k-1]))
        mb, m0 = opt.get("mb", 0), opt.get("m0", 12)
        for n, x in enumerate(sm):
            if ml and n == mb:
                a.wait_ds(tk["wr"]); a("s_barrier"); a(ex)
                tkk = [a.ds(f"ds_read_b128 {vr(KB + 4*t)}, {vQr} offset:{t*QS}") for t in range(4)]
            if ml and n >= m0 and (n - m0) % 2 == 0 and (n - m0) // 2 < 4:
                t = (n - m0) // 2
                a.wait_ds(tkk[min(t + 1, 3) if t == 0 else 3]); a(sc(8 + t))
            a(x)
        stamp("pv")
        busy(a, opt.get("xs", 0))
        a(arg(M))
        a(cvt(PX + 3, regs[6], regs[7]))
        a(arg(M+1)); a(f"v_exp_f32 v{M+2}, v{M}")
        b5 = opt.get("b5", 3)
        F(b5, "s_barrier")
        D(b5, "vm", f"ds_read_b128 {vr(VM)}, {vMem0} offset:2048")
        def sw(d, x): return f"v_mov_b32_dpp v{d}, v{x} quad_perm:[2,3,0,1] row_mask:0xf bank_mask:0xf"
        mpack = [cvt(64, M+2, M+3), cvt(69, M+2, M+3), sw(66, 64), sw(71, 64)]
        F(0, sw(PXB, PX)); F(0, sw(PXB+1, PX+1)); F(1, sw(PXB+2, PX+2)); F(1, sw(PXB+3, PX+3))
        F(2, f"v_exp_f32 v{M+3}, v{M+1}"); F(2, f"v_max_f32 v{t0+1}, v{M}, v{M+1}")
        F(3, f"v_cmp_lt_f32 s[90:91], s78, v{t0+1}"); F(3, mpack[0]); F(3, mpack[1])
        F(4, mpack[2]); F(4, mpack[3])
        F(4, f"s_cmp_lg_u64 s[90:91], 0\n s_cbranch_scc1 {P}_mfix\n{P}_mok:", 2)
        if not aw:
            for p in (0, 1, 6, 7): F(p, awr.pop(0))
        pv = [f"{MF} {vr(Lr)}, {vr(ONES)}, {vr(PX)}, 0"]
        pv += [f"{MF} {vr(O + 4*(f % 2))}, {vr(VX + 4*f)}, {vr((PX, PXB)[f//2])}, {vr(O + 4*(f % 2)) if f//2 else '0'}" for f in range(4)]
        pv += [f"{MF16} {vr(Lr)}, {vr(ONES, 2)}, v[64:65], {vr(Lr)}"]
        pv += [f"{MF} {vr(O + 4*T)}, {vr(VM)}, {vr(64 + 4*T)}, {vr(O + 4*T)}" for T in range(2)]
        Z(5, 56, 64)
        F(5, lambda: a.wait_ds(tk["vm"]), 2)
        if val:
            F(6, f"v_max3_u32 {vT}, v{VM}, v{VM+1}, v{VM+2}"); F(6, f"v_max_u32 {vT}, {vT}, v{VM+3}")
            F(7, f"v_cmp_eq_u32 vcc, -1, {vT}")
        F(7, f"v_add_f32_dpp v{t0}, v{Lr}, v{Lr} quad_perm:[2,3,0,1] row_mask:0xf bank_mask:0xf")
        F(7, f"v_rcp_f32 v{t0}, v{t0}")
        if val: F(7, f"s_cbranch_vccnz {P}_vredo\n{P}_vok:", 2)
        for n, x in enumerate(pv):
            a(x); run(n)
        for r in range(4): a(f"v_mul_f32 v{O+r}, v{O+r}, v{t0}")
        stamp("p1")
        for r in (4, 6): a(f"v_pk_mul_f32 {vr(O + r, 2)}, {vr(O + r, 2)}, {vr(t0, 2)} op_sel_hi:[1,0]")
        for i in range(4): a(cvt(PKO + i, O + i, O + 4 + i))
        if opt.get("tst"): a("s_barrier\n s_nop 15\n s_nop 15\n s_nop 15")
        a(f"ds_write_b128 {vOw}, {vr(PKO)}")
        if not nw >> 6 & 1: (zero(a, 24, 40), zero(a, 40 if opt.get('ml', 0) else 44, 48))
        stamp("p2")
        wo_reg = lambda j: ar(128 + j*8, 8) if j < 12 else vr(KX + (j - 12)*8, 8)
    else:
        WB = [88, 96, 104, 112, 120, 16, 56, 64]
        WA, OA, PK = [28, 32, 36, 40, 44, 48, 52, 72], 76, [84, 24]
        def woh(j, h): return f"ds_read_b128 {vr(WB[j % 8] + 4*h)}, {vW} offset:{j*2048 + 1024*h}"
        nv = len(vs); sh = 32 - nv
        if opt.get("fs", 0):
            for n, x in enumerate(kfold): F(n, x)
            D(6, "wr", kwr)
        else:
            F(0, kfold[0]); F(0, kfold[1])
            for x in kfold[2:]: F(1, x)
            D(2, "wr", kwr)
        v4 = opt.get("v4", 8)
        bar(v4, 4)
        wl = [(k // 2, k % 2) for k in range(16)]
        if opt.get("pw", 1):
            pos = {2*t + t4 % 2: n for n, (t, t4) in enumerate(vs) if t4 >= 2}
            free_at = {5: 0, 6: 3, 1: pos[11], 2: pos[12], 3: pos[13], 4: pos[14]}
            slot = pos[10] + 2
            for jj in (5, 6, 1, 2, 3, 4):
                for hh in range(2):
                    slot = max(slot, free_at[jj])
                    if slot < nv - 1:
                        D(slot, "_", woh(jj, hh)); wl.remove((jj, hh)); slot += 1
        pad("p4", (4, 6, 10, 12, 14, 16, 18))
        zl = [(r, "0") for r in range(28, 52, 2)]
        for i in range(3, nv - 2):
            if opt.get("zv", 0) and zl and i + sh > (zl[0][0] - MEMA) // 4 * 4 + 3:
                r, val = zl.pop(0); F(i, f"v_mov_b64 {vr(r, 2)}, {val}")
        F(nv-3, add(80)); F(nv-3, add(82)); F(nv-2, add(84)); F(nv-2, add(86))
        for x in (cvt(KV+6, 80, 82), cvt(KV+7, 84, 86), add(72), add(74), cvt(KV+4, 72, 74)): F(nv-1, x)
        for n, (tau, t4) in enumerate(vs):
            if n + 1 < nv and vs[n+1][1] >= 2 and 2*vs[n+1][0] + vs[n+1][1] % 2 >= 5: W(n, ("w", 2*vs[n+1][0] + vs[n+1][1] % 2))
            smv(tau, t4)(); run(n); stamp("v%d" % n)
        assert not fill and not pend
        stamp("sc")
        busy(a, opt.get("xw", 0))
        for x in (add(76), add(78), cvt(KV+5, 76, 78)): a(x)
        if opt.get("tst"): a(f"s_cmp_eq_u32 s6, 63\n s_cbranch_scc1 L_chain_done\n s_barrier\n s_nop 15\n s_nop 15\n s_nop 15")
        tk["wr"] = a.ds(f"ds_write_b128 {vMem0}, {vr(KV+4)}")
        a(f"s_cmp_eq_u32 s6, 63\n s_cbranch_scc1 L_chain_done")
        if nw >> 5 & 1 and not opt.get("tst"): a("s_barrier")
        if not nw >> 5 & 1:
            a.wait_ds(tk["wr"]); a("s_barrier")
        stamp("pv")
        zl += [(52, "0"), (54, "0"), (72, "0"), (74, "0")]
        for n, (r, v_) in enumerate(zl):
            a(f"v_mov_b64 {vr(r, 2)}, {v_}")
            if n >= 2 and wl: a(woh(*wl.pop(0)))
        for x in wl: a(woh(*x))
        busy(a, opt.get("bv", 0))
        wo_reg = lambda j: vr(WB[j % 8], 8)
    a("s_nop 0" if (A and opt.get("tst")) else "s_barrier" if (nw >> 6 & 1) else "s_waitcnt lgkmcnt(0)\n s_barrier")
    to = [a.ds(f"ds_read_b128 {vr(OA + 4*t)}, {vOr} offset:{t*1024}") for t in range(2)]
    if A and nw >> 6 & 1: (zero(a, 24, 40), zero(a, 40 if opt.get('ml', 0) else 44, 48))
    busy(a, opt.get("bo2", 0))
    stamp("wo")
    def wf(T, h): return add(WA[T] + 2*h)
    def wpk(T, h): return cvt(PK[T//4] + (T % 4)//2 + 2*h, WA[T] + 2*h, WA[T+1] + 2*h)
    def tag(T, h):
        r = PK[T//4] + (T % 4)//2 + 2*h
        return f"v_and_or_b32 v{r}, v{r}, -2, s97"
    def wst(hf): return f"buffer_store_dwordx4 {vr(PK[hf])}, {vPst}, {WS}, s{45+hf} offen {st}"
    post = {3: [wf(0, 0)], 4: [wf(0, 1)], 5: [wf(1, 0), wf(1, 1)], 6: [wpk(0, 0), wpk(0, 1)],
            7: [wf(2, 0), wf(2, 1)], 8: [tag(0, 0), tag(0, 1)], 9: [wf(3, 0), wf(3, 1), wpk(2, 0), wpk(2, 1), tag(2, 0), tag(2, 1)],
            11: [wf(4, 0)], 12: [wf(4, 1)], 13: [wf(5, 0), wf(5, 1)], 14: [wpk(4, 0), wpk(4, 1)], 15: [wf(6, 0), wf(6, 1), tag(4, 0), tag(4, 1)]}
    for j, xs in post.items():
        for x in xs: F(j, x)
    pad("p5", (1, 2, 1, 3, 4, 2, 0))
    pad("p6", (10, 12, 10, 13, 14, 12, 11))
    F(9, wst(0), 2)
    if val:
        F(5, f"v_cmp_u_f32 vcc, v{WA[0]}, v{WA[0]+2}")
        F(8, f"s_cbranch_vccnz {P}_oredo\n{P}_ook:")
    F(0, lambda: a.wait_ds(to[1]))
    if A and aw:
        for k, x in enumerate(awr): D(k + aw - 1, "aw", x)
        W(11, "aw")
    if not A:
        for j in range(8, 16):
            p0, p1 = [(j - 8 + (j - 8)//2, j - 8 + (j - 7)//2), {8: (0, 1), 9: (2, 3), 10: (4, 5), 11: (6, 7), 12: (8, 8), 13: (9, 9), 14: (10, 10), 15: (11, 11)}[j]][opt.get("vs", 0)]
            D(p0, "_", woh(j, 0), 3 if p0 == 9 else 0); D(p1, ("o", j), woh(j, 1), 3 if p1 == 9 else 0); W(j - 1, ("o", j))
    a.wait_ds(to[0])
    a(f"{P}_wo:")
    for j in range(16):
        T, t = j // 2, j % 2
        a(f"{SM} {vr(WA[T])}, {vr(OA + 4*t)}, {wo_reg(j)}, {vIdx}")
        run(j)
        stamp("w%d" % j)
    ein = opt.get("ein", 0) if A else 0
    if ein == 1: a(inbox)
    for x in (wf(7, 0), wf(7, 1), wpk(6, 0), wpk(6, 1), tag(6, 0), tag(6, 1)): a(x)
    if ein == 2: a(inbox)
    a(wst(1))
    a.drop = ()
    stamp("h1")
    c1, c2 = opt.get("c1", 2) if A else opt.get("c1v", 3), opt.get("c2", 2) if A else opt.get("c2v", 2)
    RD = LS
    nsp = opt.get("nsp", 0) >> (0 if A else 1) & 1
    work = [lambda: (zero(a, 28, 36, "s[98:99]"), zero(a, 36, 38, "-1"))]
    if A:
        work += [lambda: (a(f"ds_read_b128 v[120:123], {vKa}\n ds_read_b128 v[124:127], {vMem0} offset:2048"), zero(a, 24, 28, "-1")),
                 lambda: zero(a, ACQ, ACQ + 8), lambda: zero(a, ACK, ACK + 8)]
        work += [lambda: busy(a, 2)] * 4
    else:
        for j in range(5): work.append(lambda j=j: (a(wq_half(j, 0)), a(wq_half(j, 1)), zero(a, ACQ + 4*j, ACQ + 4*j + 4)))
        work += [lambda: (zero(a, 24, 28, "-1"), zero(a, ACQ + 20, ACQ + 24)), lambda: (zero(a, ACQ + 24, ACQ + 32), zero(a, 16, 20, "-1"))]
    wm = opt.get("wm", 1)
    gath = f"buffer_load_dwordx4 v[24:27], {vLin}, {WS}, s49 offen sc1"
    if wm & 1:
        SETS = (28, 48)
        def req(b): return f"buffer_load_dwordx4 {vr(b)}, {vLin}, {WS}, s47 offen sc1\n buffer_load_dwordx4 {vr(b+4)}, {vLin}, {WS}, s47 offen offset:1024 sc1"
        def exam(b):
            a(f"{MF} {vr(RD)}, {vr(SEL)}, {vr(b)}, 0")
            a(f"v_bitop3_b32 v44, v{b}, v{b+1}, s98 bitop3:0xbd\n v_bitop3_b32 v45, v{b+2}, v{b+3}, s98 bitop3:0xbd")
            a(f"{MF} {vr(RD)}, {vr(SEL)}, {vr(b+4)}, {vr(RD)}")
            a(f"v_bitop3_b32 v46, v{b+4}, v{b+5}, s98 bitop3:0xbd\n v_bitop3_b32 v47, v{b+6}, v{b+7}, s98 bitop3:0xbd")
            a("v_or3_b32 v44, v44, v45, v46\n v_bitop3_b32 v44, v44, v47, 1 bitop3:0xa8\n v_cmp_ne_u32 vcc, 0, v44")
        def fold4():
            for k in range(2): a(f"v_add_f32_dpp v{38+k}, v{RD+k}, v{RD+k} row_ror:4 row_mask:0xf bank_mask:0x5")
            for k in range(2): a(f"v_add_f32_dpp v{38+k}, v{RD+2+k}, v{RD+2+k} row_ror:4 row_mask:0xf bank_mask:0xa")
        work[0] = lambda: zero(a, 36, 38, "-1")
        for w_ in (work[:4] if A else work): w_()
        w0, w1, w2 = (opt.get("a0", 2), opt.get("a1", 6), opt.get("a2", 2)) if A else (opt.get("v0", 8), opt.get("v1", 8), opt.get("v2", 4))
        if not ein: busy(a, w0); a(req(SETS[0]))
        busy(a, w1); a(req(SETS[1]))
        if A:
            next_seg(a, P)
            a("s_waitcnt lgkmcnt(0)")
        a("s_mov_b32 s96, 0")
        busy(a, w2)
        for k in range(opt.get("p7" + cl_, 0)): a("s_nop 0")
        a(f"s_waitcnt vmcnt({3 if ein else 2})\n{P}_r10:")
        exam(SETS[0])
        fold4()
        a(f"s_cbranch_vccnz {P}_r11\n{P}_r1ok:")
        stamp("r1")
    else:
        pm = opt.get("pe", 0x90) if A else opt.get("pl", 0x100)
        for k in range(9):
            if k == 8: busy(a, opt.get("de", 1) if A else opt.get("dl", 8))
            if pm >> k & 1: a(inbox)
            if k < 8: work[k]()
        if A: a("s_waitcnt lgkmcnt(0)")
        a(f"s_mov_b32 s96, 0\n s_cmp_lg_u32 s97, 0\n s_cbranch_scc1 {P}_r11")
        for ph in range(2):
            a(f"{P}_r1{ph}:")
            if free == 1: a("s_waitcnt vmcnt(0)")
            op3 = ("v_or3_b32 {0}, {1}, {2}, {3}", "v_bitop3_b32 {0}, {1}, {2}, {3} bitop3:0x80")[ph]
            for k in range(c1):
                a(op3.format("v45", "v28", "v29", "v30")); a(op3.format("v46", "v31", "v32", "v33")); a(op3.format("v45", "v45", "v34", "v35"))
                a(f"""
                v_bitop3_b32 v45, v45, v46, 1 bitop3:{('0xa8', '0x80')[ph]}
                v_cmp_ne_u32 vcc, {'v45' if free else ph}, v45
                """)
                if not nsp: a(f"{MF} {vr(RD)}, {vr(SEL)}, v[28:31], 0\n {MF} {vr(RD)}, {vr(SEL)}, v[32:35], {vr(RD)}")
                a(f"s_cbranch_vccz {P}_r1ok")
            a(f"s_mov_b64 exec, vcc\n {inbox}\n s_mov_b64 exec, -1")
            if prof: a("s_add_u32 s30, s30, 1")
            G.spin_tail(a, f"{P}_r1{ph}")
        a(f"{P}_r1ok:")
        stamp("r1")
        gath = f"buffer_load_dwordx4 v[24:27], {vLin}, {WS}, s49 offen sc1"
        if nsp: a(f"{MF} {vr(RD)}, {vr(SEL)}, v[28:31], 0\n {MF} {vr(RD)}, {vr(SEL)}, v[32:35], {vr(RD)}")
        else: a("s_nop 5")
    assert wm & 1
    for k in range(2): a(f"v_add_f32_dpp v{38+k}, v{38+k}, v{38+k} row_ror:8 row_mask:0xf bank_mask:0xf")
    a("s_mov_b64 exec, s[58:59]")
    a(cvt(38, 38, 39))
    a(f"buffer_store_dword v38, {vPub}, {WS}, s48 offen {st}")
    stamp("h2")
    a(f"buffer_store_dword v36, {vPub}, {WS}, s51 offen {st}\n s_mov_b64 exec, -1")
    if not lw: zero(a, LS, LS + 4, "-1")
    lr = 0 if lw else opt.get("lr", 1) if A else opt.get("lrv", 1)
    book = lambda: (a(f"s_mov_b32 s80, s6\n s_add_u32 s6, s6, 1\n s_add_u32 s53, s53, 0x20000\n s_mov_b32 s96, 0\n v_mov_b32 {vT}, 0"), ring_next(a))
    if A:
        a("s_waitcnt vmcnt(10)")
        items = [lambda k=k: [a(f"v_accvgpr_read_b32 v{KX + r}, a{NK + r}") for r in range(8*k, 8*k + 8)] for k in range(4)]
        items += [book] + ([] if wm & 1 else [lambda: addr_prep(a)]) + [lambda: busy(a, 2)] * opt.get("gb", 0)
        ga = opt.get("ga", 0x24)
        for k in range(len(items) + 1):
            if ga >> k & 1: a(gath)
            if k < len(items): items[k]()
        assert 0 < ga < 2 << len(items)
    else:
        busy(a, opt.get("gl", 0))
        a(gath)
        if not wm & 1: addr_prep(a)
        busy(a, opt.get("gv", 5))
        if opt.get("g2", 3) & 2: a(gath)
        book()
    a("s_waitcnt lgkmcnt(0)")
    if not A: a("s_sub_u32 s7, s6, 1\n s_mov_b32 m0, s7\n v_writelane_b32 v11, s60, m0" if opt.get("per") else "s_nop 0\n s_nop 0\n v_mov_b32_e64 v11, 0")
    if lr & 2: a(lload)
    for k in range(opt.get("p8" + cl_, 0)): a("s_nop 0")
    stamp("g1")
    if wm & 2:
        c2 = 1
        assert opt.get("g2", 3) == 3
        busy(a, opt.get("a3", 0) if A else opt.get("v3", 2))
    a(f"{P}_r2:")
    if wm & 2: a("s_waitcnt vmcnt(1)")
    if free == 1: a("s_waitcnt vmcnt(0)")
    for k in range(c2):
        a(f"v_max3_u32 {vT}, v24, v25, v26\n v_max_u32 {vT}, {vT}, v27\n v_cmp_eq_u32 vcc, -1, {'v0' if free else vT}")
        a(f"s_cbranch_vccz {P}_prof" if prof == 1 else f"s_cbranch_vccz {P}_loop")
    a(f"s_mov_b64 exec, vcc\n {gath}\n s_mov_b64 exec, -1")
    if lr & 1: a(lload)
    if prof: a("s_add_u32 s31, s31, 1")
    G.spin_tail(a, f"{P}_r2")
    if prof == 1:
        a(f"{P}_prof:")
        stamp("end")
        a("s_waitcnt lgkmcnt(0)")
        if opt.get("trace"):
            assert cnt[0] <= 8
            a("s_lshl_b32 s7, s3, 6\n s_add_u32 s7, s7, s6\n s_lshl_b32 s7, s7, 5\n v_lshrrev_b32 v46, 2, v0\n v_add_u32 v46, s7, v46")
            for k in range(cnt[0]): a(f"v_writelane_b32 v45, s{60+2*k}, {k}")
            a(f"s_mov_b64 exec, 0xff\n ds_write_b32 v46, v45\n s_mov_b64 exec, -1\n s_branch {P}_loop")
        a(f"s_cmp_lt_u32 s6, 5\n s_cbranch_scc1 {P}_loop")
        for k in range(cnt[0] - 1): a(f"s_sub_u32 s7, s{62+2*k}, s{60+2*k}\n s_add_u32 s{20+k}, s{20+k}, s7")
        a(f"s_branch {P}_loop")
    if wm & 1:
        a(f"{P}_r11:\n s_mov_b64 exec, vcc\n {req(SETS[0])}\n s_mov_b64 exec, -1")
        if prof: a("s_add_u32 s30, s30, 1")
        a("s_waitcnt vmcnt(2)")
        exam(SETS[1])
        fold4()
        a(f"s_cbranch_vccz {P}_r1ok\n s_mov_b64 exec, vcc\n {req(SETS[1])}\n s_mov_b64 exec, -1\n s_waitcnt vmcnt(2)")
        if prof: a("s_add_u32 s30, s30, 1")
        G.spin_tail(a, f"{P}_r10")
    lchk = f"v_max3_u32 {vT}, v{LS}, v{LS+1}, v{LS+2}\n v_max_u32 {vT}, {vT}, v{LS+3}\n v_cmp_eq_u32 vcc, -1, {vT}\n {lwr}\n s_waitcnt lgkmcnt(0)\n s_cbranch_vccz {P}_lok"
    a(f"{P}_lretry:")
    if not lw:
        if prof: a("s_add_u32 s25, s25, 100")
        a(f"s_waitcnt vmcnt({tk['Ln']})"); a(lchk)
    a(f"{P}_lr2:")
    a(f"s_mov_b64 exec, vcc\n {lload}\n s_mov_b64 exec, -1\n s_waitcnt vmcnt(0)")
    if prof: a("s_add_u32 s29, s29, 1")
    a(lchk)
    G.spin_tail(a, f"{P}_lr2")
    if A: fb_wait(a, P, prof)
    if A:
        q = "quad_perm:[2,3,0,1] row_mask:0xf bank_mask:0xf"
        a(f"""
        {P}_mfix:
        v_max_f32 v{t0+1}, 0, v{t0+1}
        v_mov_b32 v{t0+2}, v{t0+1}
        v_permlane16_swap_b32 v{t0+1}, v{t0+2}
        v_max_f32 v{t0+1}, v{t0+1}, v{t0+2}
        v_mov_b32 v{t0+2}, v{t0+1}
        v_permlane32_swap_b32 v{t0+1}, v{t0+2}
        v_max_f32 v{t0+1}, v{t0+1}, v{t0+2}
        v_max_f32_dpp v{t0+1}, v{t0+1}, v{t0+1} {q}
        v_sub_f32 v{M}, v{M}, v{t0+1}
        v_sub_f32 v{M+1}, v{M+1}, v{t0+1}
        v_sub_f32 v{t0+1}, 0, v{t0+1}
        v_exp_f32 v{M+2}, v{M}
        v_exp_f32 v{M+3}, v{M+1}
        v_exp_f32 v{t0+1}, v{t0+1}
        """)
        for x in mpack: a(x)
        for k, r in enumerate(regs): a(f"v_mul_f32 v{r}, v{r}, v{t0+1}")
        for k in range(4): a(cvt(PX + k, regs[2*k], regs[2*k+1]))
        for k in range(4): a(sw(PXB + k, PX + k))
        for x in pv[:5]: a(x)
        if prof: a("s_add_u32 s26, s26, 64")
        a.fence()
        a(f"s_branch {P}_mok")
    if val:
        def missing(b, n):
            a(f"v_max3_u32 {vT}, v{b}, v{b+1}, v{b+2}")
            for r in range(b + 3, b + n): a(f"v_max_u32 {vT}, {vT}, v{r}")
            a(f"v_cmp_eq_u32 vcc, -1, {vT}")
        if A:
            a(f"{P}_vredo:\n s_mov_b32 s96, 0\n{P}_vr1:\n ds_read_b128 {vr(VM)}, {vMem0} offset:2048\n s_waitcnt lgkmcnt(0)")
            missing(VM, 4)
            a(f"s_cbranch_vccz {P}_vr2")
            G.spin_tail(a, f"{P}_vr1")
            a(f"{P}_vr2:")
            if prof: a("s_add_u32 s28, s28, 64")
            for x in pv[1:5] + pv[6:]: a(x)
            a.fence()
            a(f"s_branch {P}_vok")
        a(f"{P}_oredo:")
        missing(OA, 8)
        a(f"s_cbranch_vccz {P}_ook\n s_mov_b32 s96, 0\n{P}_or1:")
        for t in range(2): a(f"ds_read_b128 {vr(OA + 4*t)}, {vOr} offset:{t*1024}")
        a("s_waitcnt lgkmcnt(0)")
        missing(OA, 8)
        a(f"s_cbranch_vccz {P}_or2")
        G.spin_tail(a, f"{P}_or1")
        a(f"{P}_or2:")
        if prof: a("s_add_u32 s27, s27, 64")
        for T in range(5): zero(a, WA[T], WA[T] + 4)
        if not A:
            for k in range(16): a(woh(k // 2, k % 2))
            a("s_waitcnt lgkmcnt(0)")
        a.fence()
        a(f"s_branch {P}_wo")

def role_chain(a, opt):
    startup(a, opt)
    loop(a, opt, "FA", "", True)
    loop(a, opt, "FV", "", False)
    loop(a, opt, "SA", "sc1", True)
    loop(a, opt, "SV", "sc1", False)
    a(f"L_chain_done:\n ds_read_b128 {vr(KV)}, {vKp}\n s_add_u32 s53, s53, 0x20000\n s_waitcnt lgkmcnt(0)")
    for k in range(2): a(f"buffer_store_dwordx4 {vr(KV + 4*k)}, {vLin}, {G.WS}, s53 offen offset:{2048*k} sc1")
    if opt.get("per"):
        a(f"s_lshl_b32 s7, s4, 2\n s_add_u32 s7, s7, s3\n s_lshl_b32 s7, s7, 8\n s_add_u32 s7, s7, {G.PROF + 0x40000}\n v_lshrrev_b32 v24, 2, v0\n buffer_store_dword v11, v24, {G.WS}, s7 offen sc1")
    a("L_chain_end:\n s_waitcnt vmcnt(0)")
    G.tl(a, opt, 3, "v24", True)
    if opt.get("trace"):
        a(f"s_lshl_b32 s7, s3, 11\n v_add_u32 v24, s7, v0\n ds_read_b128 v[28:31], v24\n ds_read_b128 v[32:35], v24 offset:1024\n s_waitcnt lgkmcnt(0)")
        a(f"s_lshl_b32 s7, s4, 2\n s_add_u32 s7, s7, s3\n s_lshl_b32 s7, s7, 11\n s_add_u32 s7, s7, {G.PROF + 0x40000}")
        a(f"buffer_store_dwordx4 v[28:31], v0, {G.WS}, s7 offen sc1\n buffer_store_dwordx4 v[32:35], v0, {G.WS}, s7 offen offset:1024 sc1")
    if opt.get("prof"):
        a(f"s_lshl_b32 s7, s4, 2\n s_add_u32 s7, s7, s3\n s_lshl_b32 s7, s7, 6\n s_add_u32 s7, s7, {G.PROF}\n s_mov_b64 exec, 1")
        for k in range(12):
            a(f"v_mov_b32 v24, s{20+k}\n buffer_store_dword v24, off, {G.WS}, s7 offset:{4*k} sc1")
    a("s_waitcnt vmcnt(0)\n s_endpgm")
```

```python
import sys, math, struct
from asmlib2 import *

NAME = "gated_mix__memory_aug_recurrent_mem_tr__glu_gated_reglu__prompt"

FLG_FB  = 0x0000
FLG_FH  = 0x4000
FLG_FC  = 0x60000
FLG_FF  = 0x68000
MEMB = 0x10000
SCR  = 0x50000
PART = 0x100000
KVM  = 0x300000
KXV  = 0x1000000
CP   = 0x3000000
FP   = 0x7000000
PROF = 0x9000000
QXG  = 0xA000000
D_CH, D_INIT, D_WK, D_ERR, D_GO = 0, 64, 128, 192, 224
WSTR = 32784
L_KX, L_MX, L_QK, L_OB, L_KV, L_ROLE = 131200, 139392, 147584, 152704, 156800, 161792
XROW = 1040; XBUF = 32 * XROW
L_OX = 2 * XBUF; L_KM = L_OX + 8192; L_VM = L_KM + 2048
LDS_BYTES = 163840
SPIN = 200_000_000

X, WS, DBG, OUT, W1, W2, W3, W4 = ["s[%d:%d]" % (b, b + 3) for b in (8, 12, 16, 20, 24, 28, 32, 36)]
P_X, P_MEM0, P_WQ, P_WK, P_WV, P_WO, P_WG, P_WU, P_WD, P_GW, P_OUT, P_DBG, P_WS = 60, 62, 64, 66, 68, 70, 76, 78, 80, 82, 84, 86, 88

ROLES = (("B", 32, 96), ("C", 96, 160), ("F", 160, 188), ("R", 188, 252))
def f32bits(x): return struct.unpack("<I", struct.pack("<f", x))[0]
CSC = f32bits(128 ** -0.5 * math.log2(math.e))

def srd(a, base, ptr, size):
    a(f"s_mov_b32 s{base}, s{ptr}\n s_mov_b32 s{base+1}, s{ptr+1}\n s_mov_b32 s{base+2}, {size}\n s_mov_b32 s{base+3}, 0x20000")

def spin_tail(a, loop, sleep=0):
    if sleep: a(f"s_sleep {sleep}")
    limit = SPIN // (150 + 64 * sleep + (200 if sleep else 0))
    a(f"s_add_u32 s96, s96, 1\n s_cmp_lt_u32 s96, {limit}\n s_cbranch_scc1 {loop}\n s_branch L_bail")

def wait_scalar(a, srdn, soff, need, dst, vt, sleep=1):
    lp = a.label("WS"); ok = a.label("WSOK")
    a(f"s_mov_b32 s96, 0\n{lp}:")
    a(f"buffer_load_dword {vt}, off, {srdn}, {soff} sc1\n s_waitcnt vmcnt(0)\n v_readfirstlane_b32 {dst}, {vt}")
    a(f"s_nop 3\n s_cmp_ge_u32 {dst}, {need}\n s_cbranch_scc1 {ok}")
    spin_tail(a, lp, sleep)
    a(f"{ok}:")

def wait_go(a, vt, sleep):
    a(f"s_mov_b32 s90, {D_GO}")
    wait_scalar(a, DBG, "s90", 1, "s7", vt, sleep)

def wait_lanes(a, vaddr, soff, nl, need, vt, sleep=1):
    lp = a.label("WL"); ok = a.label("WLOK")
    a(f"s_mov_b32 s96, 0\n s_mov_b32 exec_lo, {hex((1 << nl) - 1)}\n s_mov_b32 exec_hi, 0\n{lp}:")
    a(f"buffer_load_dword {vt}, {vaddr}, {WS}, {soff} offen sc1\n s_waitcnt vmcnt(0)\n v_cmp_gt_u32 vcc, {need}, {vt}\n s_cbranch_vccz {ok}")
    spin_tail(a, lp, sleep)
    a(f"{ok}:\n s_mov_b64 exec, -1")

def flag_store(a, soff, sval, vt):
    a(f"v_mov_b32 {vt}, {sval}\n s_mov_b64 exec, 1\n buffer_store_dword {vt}, off, {WS}, {soff} sc1\n s_mov_b64 exec, -1")

TL = PROF + 0x10000
def tl(a, opt, k, vt="v24", chain=False):
    if opt.get("hd"):
        if k == 1: return
        sk = a.label("HD")
        slot = {0: 2, 2: 3, 3: 5, 4: 7}[k] + (1 if (chain and k in (2, 3)) else 0)
        cond = "s_and_b32 s100, s2, 63\n s_or_b32 s100, s100, s3\n s_cmp_lg_u32 s100, 0" if k == 0 else "s_cmp_lg_u32 s3, 0"
        if k == 2 and not chain: return
        a(f"{cond}\n s_cbranch_scc1 {sk}\n s_memrealtime s[100:101]\n s_waitcnt lgkmcnt(0)\n v_mov_b32 {vt}, s100")
        a(f"s_mov_b64 exec, 1\n buffer_atomic_umax {vt}, off, {DBG}, 0 offset:{4*slot}\n s_mov_b64 exec, -1\n{sk}:")
        return
    if not opt.get("tl"): return
    sk = a.label("TL")
    a(f"s_cmp_lg_u32 s3, 0\n s_cbranch_scc1 {sk}\n s_memrealtime s[100:101]\n s_waitcnt lgkmcnt(0)\n v_mov_b32 {vt}, s100")
    a(f"s_lshl_b32 s100, s2, 5\n s_add_u32 s100, s100, {TL}\n s_mov_b64 exec, 1\n buffer_store_dword {vt}, off, {WS}, s100 offset:{4*k} sc1")
    if k in (2, 3):
        a(f"s_memtime s[98:99]\n s_waitcnt lgkmcnt(0) vmcnt(0)\n v_mov_b32 {vt}, s98\n buffer_store_dword {vt}, off, {WS}, s100 offset:{4*(k+3)} sc1")
    a(f"s_mov_b64 exec, -1\n{sk}:")

def wp(a, opt, k):
    if not opt.get("wprof"): return
    a(f"s_memtime s[100:101]\n s_waitcnt lgkmcnt(0)\n s_sub_u32 s99, s100, s98\n s_mov_b32 s98, s100")
    if k is not None: a(f"s_add_u32 s{76+k}, s{76+k}, s99")
def wp_init(a, opt):
    if not opt.get("wprof"): return
    for k in range(8): a(f"s_mov_b32 s{76+k}, 0")
    wp(a, opt, None)
def wp_dump(a, opt):
    if not opt.get("wprof"): return
    a(f"s_lshl_b32 s7, s2, 2\n s_add_u32 s7, s7, s3\n s_lshl_b32 s7, s7, 5\n s_add_u32 s7, s7, {PROF + 0x20000}\n s_mov_b64 exec, 1")
    for k in range(8): a(f"v_mov_b32 v24, s{76+k}\n buffer_store_dword v24, off, {WS}, s7 offset:{4*k} sc1")
    a("s_mov_b64 exec, -1")

def init_arrive(a, vt):
    sk = a.label("IA")
    a(f"s_barrier\n s_cmp_lg_u32 s3, 0\n s_cbranch_scc1 {sk}")
    a(f"v_mov_b32 {vt}, 1\n s_mov_b64 exec, 1\n buffer_atomic_add {vt}, off, {DBG}, 0 offset:{D_INIT}\n s_mov_b64 exec, -1\n{sk}:")
    a.vm_n -= 1

def load_stream(a, jobs, tmp=32, depth=12, out=128, fl=''):
    units = [(job, u) for job in jobs for u in range(16)]
    n = len(units); tok = {}
    def issue(k):
        job, u = units[k]
        a(f"s_mov_b32 s7, {job['row'](u) * job['stride']}")
        r = tmp + 8 * (k % depth)
        a(f"buffer_load_dwordx4 {vr(r)}, {job['v0']}, {job['srd']}, s7 offen {fl}")
        if job['stride'] < 4096:
            tok[k] = a.vm(f"buffer_load_dwordx4 {vr(r+4)}, {job['v0']}, {job['srd']}, s7 offen offset:{job['stride']} {fl}")
        else:
            tok[k] = a.vm(f"buffer_load_dwordx4 {vr(r+4)}, {job['v1']}, {job['srd']}, s7 offen {fl}")
    for k in range(min(depth, n)): issue(k)
    for k in range(n):
        job, u = units[k]
        a.wait_vm(tok[k])
        r = tmp + 8 * (k % depth)
        for c in range(8):
            d = job['dst'](u, c) if (job['kind'] == 'reg' or c in job.get('regc', ())) else out + 4*c + u % 4
            a(f"v_perm_b32 v{d}, v{r+4+c//2}, v{r+c//2}, s{40 + c % 2}")
        if k + depth < n: issue(k + depth)
        if job.get('group'):
            if u % 4 == 3: job['group'](u // 4)
        elif job['kind'] == 'lds' and u % 4 == 3:
            for c in range(8):
                if c not in job.get('regc', ()): a(f"ds_write_b128 {job['vdst']}, {vr(out + 4*c)} offset:{job['imm'](u // 4, c)}")
        if u == 0 and job.get('first'): job['first']()
        if u == 15 and job.get('done'): job['done']()

def lds_to_regs(a, vsrc, dst, first=0):
    def done():
        a("s_waitcnt lgkmcnt(0)\n s_barrier")
        for f in range(first, 32): a(f"ds_read_b128 {dst(f)}, {vsrc} offset:{f*1024}")
        a("s_waitcnt lgkmcnt(0)\n s_barrier")
    return done

def w1_setup(a, stride, scol):
    a(f"""
    s_mov_b32 s90, {8*stride}
    v_mul_lo_u32 v24, v1, s90
    v_lshl_add_u32 v24, v2, 4, v24
    s_mul_i32 s7, s3, {128*stride}
    s_add_u32 s7, s7, {scol}
    v_add_u32 v24, s7, v24
    v_add_u32 v25, {stride}, v24
    v_lshrrev_b32 v26, 2, v2
    s_mov_b32 s90, {WSTR}
    v_mul_lo_u32 v26, v26, s90
    v_lshl_add_u32 v26, v1, 8, v26
    v_and_b32 v27, 3, v2
    v_lshl_add_u32 v26, v27, 6, v26
    s_lshl_b32 s7, s3, 13
    v_add_u32 v26, s7, v26
    s_mul_i32 s7, s3, {WSTR}
    v_add_u32 v27, s7, v0
    """)

def w1_job(a, srdn, stride, dst):
    return dict(kind='lds', srd=srdn, stride=stride, v0="v24", v1="v25", row=lambda u: 32*(u//4) + 2*(u%4), vdst="v26",
                imm=lambda grp, c: (grp*2 + c % 2)*1024 + (c//2)*16, done=lds_to_regs(a, "v27", dst))

def w2_job(a, srdn, sbase, row0=0, done=None):
    a(f"v_lshlrev_b32 v28, 13, v1\n v_lshl_add_u32 v28, v2, 4, v28\n s_lshl_b32 s7, s3, 8\n s_add_u32 s7, s7, {sbase}\n v_add_u32 v28, s7, v28")
    return dict(kind='reg', srd=srdn, stride=1024, v0="v28", row=lambda u: row0 + 32*(u//4) + 2*(u%4), done=done,
                dst=lambda u, T: 128 + (T*4 + u//4)*4 + u % 4)

def prologue(a, opt):
    a(f"""
    s_cmp_ge_u32 s2, 256
    s_cbranch_scc1 L_end
    s_load_dwordx16 s[60:75], s[0:1], 0
    s_load_dwordx8 s[76:83], s[0:1], 64
    s_load_dwordx4 s[84:87], s[0:1], 96
    s_load_dwordx2 s[88:89], s[0:1], 112
    v_lshrrev_b32 v1, 6, v0
    v_and_b32 v0, 63, v0
    v_readfirstlane_b32 s3, v1
    s_mov_b32 s40, 0x05040100
    s_mov_b32 s41, 0x07060302
    s_mov_b32 s42, {CSC}
    s_getreg_b32 s4, hwreg(HW_REG_XCC_ID)
    s_and_b32 s4, s4, 7
    """)
    if opt.get("force_slow"):
        a("s_lshr_b32 s7, s2, 6\n s_add_u32 s7, s7, 1\n s_cmp_lt_u32 s2, 20\n s_cselect_b32 s4, 0, s7")
    a("s_waitcnt lgkmcnt(0)")
    srd(a, 8, P_X, 0x200000); srd(a, 12, P_WS, 0x10000000); srd(a, 16, P_DBG, 256)
    a(f"""
    v_mov_b32 v3, {L_ROLE}
    """)
    tl(a, opt, 0)
    a(f"""
    s_cmp_lg_u32 s3, 0
    s_cbranch_scc1 L_role_wait
    v_lshlrev_b32 v4, 2, v0
    v_add_u32 v4, {D_WK}, v4
    v_cmp_eq_u32 vcc, 0, v0
    v_cndmask_b32 v4, v4, v0, vcc
    s_mov_b64 exec, 1
    s_lshl_b32 s7, s4, 2
    s_add_u32 s7, s7, {D_WK}
    s_cmp_eq_u32 s4, 0
    s_cselect_b32 s7, {D_CH}, s7
    v_mov_b32 v2, 1
    buffer_atomic_add v2, off, {DBG}, s7 sc0
    s_waitcnt vmcnt(0)
    v_readfirstlane_b32 s5, v2
    s_nop 3
    s_cmp_lt_u32 s5, 32
    s_cbranch_scc1 L_role_slot
    ; more than 32 workgroups on this die: take one of the places another die left empty
    v_mov_b32 v2, 1
    buffer_atomic_add v2, off, {DBG}, 0 offset:{D_WK} sc0
    s_waitcnt vmcnt(0)
    v_readfirstlane_b32 s6, v2
    s_mov_b64 exec, 0xff
    s_mov_b32 s96, 0
    L_role_census:
    buffer_load_dword v2, v4, {DBG}, 0 offen sc1
    s_waitcnt vmcnt(0)
    """)
    for x in range(8): a(f"v_readlane_b32 s{44+x}, v2, {x}")
    a("s_nop 3\n s_mov_b32 s7, 0")
    for x in range(8): a(f"s_add_u32 s7, s7, s{44+x}")
    a("s_cmp_ge_u32 s7, 256\n s_cbranch_scc1 L_role_pick")
    spin_tail(a, "L_role_census", 4)
    a("L_role_pick:\n s_mov_b64 exec, 1")
    for x in range(8):
        a(f"s_min_u32 s7, s{44+x}, 32\n s_mov_b32 s4, {x}\n s_add_u32 s5, s7, s6\n s_cmp_lt_u32 s5, 32\n s_cbranch_scc1 L_role_slot\n s_sub_u32 s6, s5, 32")
    a(f"""
    s_branch L_bail
    L_role_slot:
    s_mul_i32 s7, s5, 7
    s_add_u32 s7, s7, s4
    s_add_u32 s7, s7, 31
    s_cmp_eq_u32 s4, 0
    s_cselect_b32 s5, s5, s7
    L_role_have:
    v_mov_b32 v2, s5
    ds_write_b32 v3, v2
    s_waitcnt lgkmcnt(0)
    s_mov_b64 exec, -1
    L_role_wait:
    """)
    if opt.get("pt", 1):
        srd(a, 24, P_WK, 0x400000)
        a(f"""
        s_cmp_eq_u32 s3, 0
        s_cbranch_scc1 L_pt_done
        s_cmp_lg_u32 s4, 0
        s_cbranch_scc1 L_pt_done
        s_lshr_b32 s7, s2, 3
        s_and_b32 s43, s7, 7
        s_lshl_b32 s43, s43, 16
        s_lshr_b32 s7, s7, 3
        s_lshl_b32 s7, s7, 20
        s_add_u32 s7, s7, s43
        s_sub_u32 s43, s3, 1
        s_mul_i32 s43, s43, {0x80000 if opt.get("pt", 1) == 2 else 0x4000}
        s_add_u32 s7, s7, s43
        v_lshlrev_b32 v4, 7, v0
        s_nop 15
        """)
        for k in range(4 if opt.get("pt", 1) == 2 else 2): a(f"buffer_load_dword v{100+k}, v4, {W1}, s7 offen\n s_add_u32 s7, s7, 8192")
        a("L_pt_done:")
    if opt.get("cw", 0):
        a(f"""
        s_cmp_lg_u32 s3, 1
        s_cbranch_scc1 L_code_done
        s_getpc_b64 s[44:45]
        L_code_base:
        s_mov_b32 s46, L_code_end-L_code_base
        s_mov_b32 s47, 0x20000
        v_lshlrev_b32 v4, 7, v0
        s_mov_b32 s7, 0
        s_nop 15
        s_nop 15
        """)
        for k in range(7): a(f"buffer_load_dword v{100+k}, v4, s[44:47], s7 offen\n s_add_u32 s7, s7, 8192")
        a("L_code_done:")
    a(f"""
    s_barrier
    ds_read_b32 v2, v3
    s_waitcnt lgkmcnt(0)
    v_readfirstlane_b32 s4, v2
    v_lshrrev_b32 v1, 4, v0
    v_and_b32 v2, 15, v0
    s_nop 2
    s_and_b32 s4, s4, 255
    """)
    tl(a, opt, 1)
    if opt.get("tl"):
        a(f"v_mov_b32 v24, s4\n s_lshl_b32 s100, s2, 5\n s_add_u32 s100, s100, {TL}\n buffer_store_dword v24, off, {WS}, s100 offset:28 sc1")
    a(f"""
    s_cmp_lt_u32 s4, 32
    s_cbranch_scc1 L_chain
    s_cmp_lt_u32 s4, 96
    s_cbranch_scc1 L_B
    """)
    if not opt.get("nocfr"): a("""
    s_cmp_lt_u32 s4, 160
    s_cbranch_scc1 L_C
    s_cmp_lt_u32 s4, 188
    s_cbranch_scc1 L_F
    s_cmp_lt_u32 s4, 252
    s_cbranch_scc1 L_R
    """)
    init_arrive(a, "v3")
    a("s_cmp_lg_u32 s4, 252\n s_cbranch_scc1 L_end\n s_cmp_lg_u32 s3, 0\n s_cbranch_scc1 L_end")
    wait_scalar(a, DBG, D_INIT, 256, "s7", "v3", 12)
    a(f"""
    v_mov_b32 v3, 1
    s_mov_b64 exec, 1
    buffer_store_dword v3, off, {DBG}, 0 offset:{D_GO} sc1
    s_waitcnt vmcnt(0)
    s_endpgm
    L_bail:
    s_mov_b64 exec, 1
    v_mov_b32 v0, s4
    v_add_u32 v0, 0x100, v0
    buffer_store_dword v0, off, {DBG}, 0 offset:{D_ERR}
    s_waitcnt vmcnt(0)
    L_end:
    s_endpgm
    """)

def x_dma(a, sseg, sbuf):
    a(f"s_lshl_b32 s90, {sseg}, 15\n s_lshl_b32 s91, s3, 13\n s_add_u32 s90, s90, s91")
    a(f"s_mul_i32 s91, s3, {8*XROW}\n s_add_u32 s91, s91, {sbuf}")
    for r in range(8):
        a(f"s_add_u32 m0, s91, {r*XROW}")
        a(f"s_nop 0\n buffer_load_dwordx4 v0, {X}, s90 offen lds")
        if r < 7: a("s_add_u32 s90, s90, 1024")

def gemm1(a, vx, mats, fr, mid=None):
    tok = {}
    def rd(t):
        for rt in range(2):
            tok[t] = a.ds(f"ds_read_b128 {vr(fr + 8*(t%3) + 4*rt)}, {vx} offset:{rt*16*XROW + t*64}")
    rd(0); rd(1)
    for t in range(16):
        if t + 2 < 16: rd(t + 2)
        a.wait_ds(tok[t])
        for wreg, acc, wA in mats:
            for T in range(2):
                for rt in range(2):
                    xf = vr(fr + 8*(t%3) + 4*rt); d = vr(acc(T, rt)); c = d if t else "0"
                    A, B = (wreg(t, T), xf) if wA else (xf, wreg(t, T))
                    a(f"v_mfma_f32_16x16x32_bf16 {d}, {A}, {B}, {c}")
        if mid and t == mid[0]: mid[1]()

ST2 = 'sc1'
def stage2(a, vrd, vst, sdst, oa, acc, tmp, nt=4, hook=None):
    tok = {}
    for rt in range(2):
        for t in range(nt):
            tok[(rt, t)] = a.ds(f"ds_read_b128 {oa(rt*nt+t)}, {vrd} offset:{(rt*nt+t)*1024}")
    def cv(rt, i, p):
        a(f"v_cvt_pk_bf16_f32 v{tmp + 4*(i%2) + p}, v{acc + (rt*8+2*p)*4 + i}, v{acc + (rt*8+2*p+1)*4 + i}")
    def st(rt, i):
        a(f"buffer_store_dwordx4 {vr(tmp + 4*(i%2))}, {vst}, {WS}, {'s7' if rt else sdst} offen offset:{i*1024} {ST2}")
    a(f"s_add_u32 s7, {sdst}, 16384")
    for rt in range(2):
        for t in range(nt):
            a.wait_ds(tok[(rt, t)])
            for T in range(8):
                d = vr(acc + (rt*8+T)*4)
                a(f"v_mfma_f32_16x16x32_bf16 {d}, {oa(rt*nt+t)}, {(vr, ar)[t//4](128 + (T*4 + t % 4)*4)}, {d if t else '0'}")
                if rt == 1 and t < 4 and 2 <= T < 6: cv(0, t, T - 2)
                if rt == 1 and t < 4 and T == 6: st(0, t)
            if hook and (rt, t) == hook[0]: hook[1]()
    for i in range(4):
        for p in range(4): cv(1, i, p)
        st(1, i)

def worker_top(a, name, nst):
    a("s_waitcnt vmcnt(0)")
    a(f"{name}_loop:\n s_waitcnt vmcnt({nst})\n s_barrier")
    a(f"s_lshl_b32 s43, s6, 1\n s_add_u32 s43, s43, s5")
    a(f"s_add_u32 s44, s43, 2\n s_min_u32 s44, s44, 63\n s_sub_u32 s45, {XBUF}, s46")
    x_dma(a, "s44", "s45")
    a(f"v_add_u32 v4, s46, v3")

def worker_bot(a, name):
    a(f"s_sub_u32 s46, {XBUF}, s46\n s_add_u32 s6, s6, 1\n s_cmp_lt_u32 s6, 32")
    a.fence()
    a(f"s_cbranch_scc1 {name}_loop")

def worker_init(a, first, per):
    a(f"s_sub_u32 s4, s4, {first}\n s_cmp_ge_u32 s4, {per}\n s_cselect_b32 s5, 1, 0\n s_cselect_b32 s7, {per}, 0\n s_sub_u32 s4, s4, s7")
    a("s_mov_b32 s6, 0\n s_mov_b32 s46, 0")
    a(f"s_mov_b32 s7, {XROW}\n v_mul_lo_u32 v3, v2, s7\n v_lshl_add_u32 v3, v1, 4, v3\n v_lshlrev_b32 v0, 4, v0")

def wave_flag(a, base):
    a(f"s_lshl_b32 s47, s5, 2\n s_add_u32 s47, s47, s3\n s_lshl_b32 s47, s47, 11\n s_lshl_b32 s7, s4, 7\n s_add_u32 s47, s47, s7\n s_add_u32 s47, s47, {base}")
    flag_store(a, "s47", "0", "v24")

def worker_end(a, opt):
    wp_dump(a, opt)
    tl(a, opt, 3)
    a("s_waitcnt vmcnt(0)\n s_endpgm")

def role_B(a, opt):
    a("L_B:")
    worker_init(a, 32, 32)
    a(f"s_lshl_b32 s47, s4, 7\n s_lshl_b32 s7, s5, 2\n s_add_u32 s47, s47, s7\n s_add_u32 s47, s47, {FLG_FB}\n v_lshrrev_b32 v5, 1, v0")
    def flags(kv, q):
        a(f"v_mov_b32 v6, {q}\n v_writelane_b32 v6, {kv}, 0\n s_mov_b64 exec, 3\n buffer_store_dword v6, v5, {WS}, s47 offen sc1\n s_mov_b64 exec, -1")
    flags("0", "0")
    srd(a, 24, P_WK, 0x400000); srd(a, 28, P_WV, 0x400000); srd(a, 32, P_WQ, 0x400000)
    a("s_lshl_b32 s48, s4, 8")
    w1_setup(a, 8192, "s48")
    def publish():
        sk = a.label("BF")
        a(f"s_barrier\n s_cmp_lg_u32 s3, 0\n s_cbranch_scc1 {sk}\n s_max_u32 s7, s6, {opt.get('fkv', 0)}")
        flags("s7", "s6")
        a(f"{sk}:")
        a.vm_n -= 1
    mk = lambda acc: (lambda t, T: ar((t*2+T)*4), lambda T, rt: acc + (T*2+rt)*4, True)
    mv = lambda acc: (lambda t, T: ar(128 + (t*2+T)*4), lambda T, rt: acc + (T*2+rt)*4, False)
    def kv_out(ak, av, r0):
        a(f"s_lshl_b32 s52, s43, 5\n s_add_u32 s52, s52, s4\n s_lshl_b32 s48, s52, 14\n s_add_u32 s48, s48, {KXV}")
        a("s_lshl_b32 s7, s3, 10\n s_add_u32 s49, s48, s7\n s_add_u32 s50, s49, 4096")
        a(f"s_lshl_b32 s52, s52, 13\n s_add_u32 s52, s52, s7\n s_add_u32 s52, s52, {QXG}\n s_add_u32 s53, s52, 4096")
        a("s_lshl_b32 s7, s3, 11\n s_add_u32 s51, s48, s7\n s_add_u32 s51, s51, 8192")
        for rt in range(2):
            r = r0 + 4*rt
            for i in range(4): a(f"v_cvt_pk_bf16_f32 v{r+i}, v{ak + rt*4 + i}, v{ak + (2+rt)*4 + i}")
            a(f"buffer_store_dwordx4 {vr(r)}, v0, {WS}, s{49+rt} offen sc1")
        for T in range(2):
            r = r0 + 8 + 4*T; b = av + T*8
            for p in range(4): a(f"v_cvt_pk_bf16_f32 v{r+p}, v{b + 2*p}, v{b + 2*p + 1}")
            a(f"buffer_store_dwordx4 {vr(r)}, v0, {WS}, s51 offen offset:{T*1024} sc1")
    def reread():
        if opt.get("rr"):
            a(f"s_lshl_b32 s7, s3, 12\n s_add_u32 s7, s7, s48\n v_lshlrev_b32 v7, 2, v0\n buffer_load_dword v7, v7, {WS}, s7 offen sc1")
    jv = w1_job(a, W2, 8192, lambda f: ar(128 + 4*f))
    vdone = jv['done']
    def first_kv():
        vdone()
        x_dma(a, "s5", "s46")
        a("s_mov_b32 s43, s5\n s_waitcnt vmcnt(0)\n s_barrier")
        gemm1(a, "v3", [mk(192), mv(208)], 160)
        kv_out(192, 208, 224)
        a("s_waitcnt vmcnt(0)")
        publish()
    if opt.get("fkv", 0): jv['done'] = first_kv
    jk = w1_job(a, W1, 8192, lambda f: ar(4*f))
    jk['first'] = lambda: init_arrive(a, "v28")
    load_stream(a, [jk, jv, w1_job(a, W3, 8192, lambda f: vr(128 + 4*f))], fl=['', 'nt', 'sc1'][opt.get('bnt', 0)])
    x_dma(a, "s5", "s46")
    tl(a, opt, 2)
    wp_init(a, opt)
    worker_top(a, "B", 6)
    wp(a, opt, 0)
    gemm1(a, "v4", [mk(64), mv(80), (lambda t, T: vr(128 + (t*2+T)*4), lambda T, rt: 96 + (T*2+rt)*4, True)], 32,
          mid=(4, lambda: (a("s_waitcnt vmcnt(8)"), publish(), reread())))
    wp(a, opt, 1)
    kv_out(64, 80, 112)
    for rt in range(2):
        r = 56 + 4*rt
        for i in range(4): a(f"v_cvt_pk_bf16_f32 v{r+i}, v{96 + rt*4 + i}, v{96 + (2+rt)*4 + i}")
        a(f"buffer_store_dwordx4 {vr(r)}, v0, {WS}, s{52+rt} offen sc1")
    wp(a, opt, 7)
    if opt.get("p1", 1):
        a(f"s_cmp_ge_u32 s6, {opt.get('p1', 2)}\n s_cbranch_scc1 B_later\n s_add_u32 s6, s6, 1\n s_waitcnt vmcnt(0)")
        publish()
        a("s_sub_u32 s6, s6, 1\nB_later:")
    worker_bot(a, "B")
    a("s_waitcnt vmcnt(0)")
    publish()
    worker_end(a, opt)

def st2_addrs(a):
    a(f"v_add_u32 v6, {L_OX}, v0")
    a(f"v_lshlrev_b32 v7, 12, v1\n v_lshl_add_u32 v7, v2, 4, v7\n s_lshl_b32 s7, s3, 8\n v_add_u32 v7, s7, v7")

def role_F(a, opt):
    a("L_F:")
    worker_init(a, 160, 14)
    wave_flag(a, FLG_FF)
    a("s_waitcnt vmcnt(0)")
    init_arrive(a, "v24")
    if opt.get("hold", 3) & 1:
        wait_go(a, "v24", opt.get("si", 64))
        a(f"s_lshl_b32 s48, s4, 7\n s_add_u32 s48, s48, {FLG_FB + opt.get('hf', 8)}")
        if not opt.get("hi", 1) & 1: wait_scalar(a, WS, "s48", 1, "s7", "v24", 16)
    srd(a, 24, P_WG, 512*3584); srd(a, 28, P_WU, 512*3584); srd(a, 32, P_WD, 1792*1024)
    a("s_lshl_b32 s48, s4, 8")
    w1_setup(a, 3584, "s48")
    a("s_lshl_b32 s48, s4, 17")
    load_stream(a, [w1_job(a, W1, 3584, lambda f: ar(4*f)), w1_job(a, W2, 3584, lambda f: ar(128 + 4*f)), w2_job(a, W3, "s48")])
    x_dma(a, "s5", "s46")
    st2_addrs(a)
    a("s_lshl_b32 s7, s3, 10\n v_add_u32 v5, s7, v6")
    tl(a, opt, 2)
    wp_init(a, opt)
    worker_top(a, "F", 8)
    wp(a, opt, 0)
    gemm1(a, "v4", [(lambda t, T: ar((t*2+T)*4), lambda T, rt: 64 + (T*2+rt)*4, True),
                    (lambda t, T: ar(128 + (t*2+T)*4), lambda T, rt: 80 + (T*2+rt)*4, True)], 32,
          mid=(9, lambda: (a("s_waitcnt vmcnt(8)"), flag_store(a, "s47", "s6", "v24"))))
    wp(a, opt, 1)
    for r in range(16): a(f"v_max_f32 v{64+r}, 0, v{64+r}")
    for r in range(16): a(f"v_mul_f32 v{64+r}, v{64+r}, v{80+r}")
    for rt in range(2):
        r = 96 + 4*rt
        for i in range(4): a(f"v_cvt_pk_bf16_f32 v{r+i}, v{64 + rt*4 + i}, v{64 + (2+rt)*4 + i}")
        a(f"ds_write_b128 v5, {vr(r)} offset:{rt*4096}")
    a(f"s_lshl_b32 s48, s43, 4\n s_add_u32 s48, s48, s4\n s_lshl_b32 s48, s48, 15\n s_and_b32 s48, s48, {hex((opt.get('fring', 64) << 19) - 1)}\n s_add_u32 s48, s48, {FP}")
    a("s_waitcnt lgkmcnt(0)\n s_barrier")
    stage2(a, "v6", "v7", "s48", lambda f: vr(32 + 4*f), 64, 24)
    wp(a, opt, 7)
    if opt.get("zf"): a(f"s_sleep {opt['zf']}")
    worker_bot(a, "F")
    a("s_waitcnt vmcnt(0)")
    flag_store(a, "s47", "s6", "v24")
    worker_end(a, opt)

def softmax(a, X0, X1, M, t, pX, pM):
    a(f"""
    v_max3_f32 v{t}, v{X0}, v{X0+1}, v{X0+2}
    v_max3_f32 v{t+1}, v{X0+3}, v{X1}, v{X1+1}
    v_max3_f32 v{t}, v{t}, v{X1+2}, v{X1+3}
    v_max3_f32 v{t+1}, v{t+1}, v{M}, v{M+1}
    v_max_f32 v{t}, v{t}, v{t+1}
    v_max_f32 v{t+1}, v{t}, v{t+1}
    v_permlane16_swap_b32 v{t}, v{t+1}
    v_max_f32 v{t+2}, v{t}, v{t+1}
    v_max_f32 v{t+3}, v{t}, v{t+1}
    v_permlane32_swap_b32 v{t+2}, v{t+3}
    v_max_f32 v{t}, v{t+2}, v{t+3}
    v_mul_f32 v{t}, s42, v{t}
    """)
    regs = [X0, X0+1, X0+2, X0+3, X1, X1+1, X1+2, X1+3, M, M+1]
    for r in regs: a(f"v_fma_f32 v{r}, v{r}, s42, -v{t}")
    for k, r in enumerate(regs):
        a(f"v_exp_f32 v{r}, v{r}")
        if k >= 2 and k % 2 == 0: a(f"v_cvt_pk_bf16_f32 v{pX + k//2 - 1}, v{regs[k-2]}, v{regs[k-1]}")
    a(f"v_cvt_pk_bf16_f32 v{pM}, v{M}, v{M+1}\n v_cvt_pk_bf16_f32 v{pM+3}, v{M}, v{M+1}")

def role_C(a, opt):
    C_OX, C_KV = 49152, 65536
    a("L_C:")
    a("s_sub_u32 s4, s4, 96\n s_lshr_b32 s5, s4, 4\n s_and_b32 s4, s4, 15\n s_mov_b32 s6, 0\n v_lshlrev_b32 v0, 4, v0")
    wave_flag(a, FLG_FC)
    a(f"""
    s_lshr_b32 s52, s3, 1
    s_and_b32 s53, s3, 1
    s_lshl_b32 s58, s4, 1
    s_add_u32 s58, s58, s52
    s_lshl_b32 s55, s5, 5
    s_add_u32 s55, s55, s58
    s_lshl_b32 s55, s55, 12
    s_lshl_b32 s7, s53, 11
    s_add_u32 s55, s55, s7
    s_add_u32 s55, s55, {KVM}
    v_mov_b64 v[24:25], -1
    v_mov_b64 v[26:27], -1
    s_add_u32 s7, s55, {15*0x80000}
    buffer_store_dwordx4 v[24:27], v0, {WS}, s7 offen sc1
    buffer_store_dwordx4 v[24:27], v0, {WS}, s7 offen offset:1024 sc1
    s_lshl_b32 s50, s58, 9
    s_add_u32 s50, s50, {FLG_FH}
    v_lshlrev_b32 v9, 3, v0
    """)
    a("s_waitcnt vmcnt(0)")
    init_arrive(a, "v24")
    if opt.get("hold", 3) & 2:
        wait_go(a, "v24", opt.get("si", 64))
        a(f"s_lshl_b32 s48, s58, 7\n s_add_u32 s48, s48, {FLG_FB + opt.get('hc', 0)}")
        if not opt.get("hi", 1) & 2: wait_scalar(a, WS, "s48", 1, "s7", "v24", 16)
    srd(a, 28, P_WO, 0x400000)
    a("s_lshl_b32 s48, s4, 18")
    load_stream(a, [w2_job(a, W2, "s48", 128, lambda: [a(f"v_accvgpr_write_b32 a{r}, v{r}") for r in range(128, 256)]), w2_job(a, W2, "s48")])
    st2_addrs(a)
    a(f"""
    v_add_u32 v6, {C_OX}, v0
    s_mul_i32 s59, s52, 24576
    v_add_u32 v3, s59, v0
    s_lshl_b32 s7, s53, 12
    s_add_u32 s7, s7, 16384
    v_add_u32 v4, s7, v3
    s_lshl_b32 s7, s3, 11
    s_add_u32 s7, s7, {C_KV}
    v_add_u32 v8, s7, v0
    s_lshl_b32 s7, s52, 12
    s_add_u32 s90, s7, {C_KV + 2048}
    v_add_u32 v11, s90, v0
    v_lshrrev_b32 v24, 2, v2
    v_and_b32 v25, 1, v2
    v_lshl_add_u32 v10, v24, 1, v25
    v_lshlrev_b32 v10, 4, v10
    v_lshl_add_u32 v10, v1, 7, v10
    s_add_u32 s90, s7, {C_KV}
    v_add_u32 v10, s90, v10
    s_lshl_b32 s90, s53, 13
    s_add_u32 s90, s90, s7
    v_add_u32 v12, s90, v6
    s_lshl_b32 s7, s53, 4
    v_add_u32 v14, s7, v2
    v_lshlrev_b32 v15, 2, v1
    v_sub_u32 v14, v14, v15
    """)
    for k in range(8):
        a(f"v_cmp_le_i32 s[{60+2*k}:{61+2*k}], {k if k < 4 else 12 + k}, v14")
    a("v_mov_b32 v14, 0xf149f2ca")
    for r in range(16, 20): a(f"v_mov_b32 v{r}, 0x3f803f80")
    a("v_mov_b32 v21, 0\n v_mov_b32 v22, 0")
    a(f"s_lshl_b32 s54, s58, 7\n s_and_b32 s7, s5, 1\n s_lshl_b32 s7, s7, 2\n s_add_u32 s54, s54, s7\n s_add_u32 s54, s54, {FLG_FB + 8}\n s_mov_b32 s56, 0")
    wait_go(a, "v24", opt.get("si", 64))
    QB, KX, VX = 0, 16, 48
    def fetch(sidx):
        ok = a.label("CB")
        a(f"s_lshl_b32 s49, {sidx}, 2\n s_add_u32 s49, s49, s5\n s_lshr_b32 s57, s49, 1\n s_cmp_gt_u32 s56, s57\n s_cbranch_scc1 {ok}\n s_add_u32 s57, s57, 1")
        wait_scalar(a, WS, "s54", "s57", "s56", "v13", 4)
        a(f"{ok}:")
        a(f"s_lshl_b32 s49, s49, 5\n s_add_u32 s49, s49, s58")
        a(f"s_lshl_b32 s57, s49, 13\n s_lshl_b32 s7, s53, 12\n s_add_u32 s57, s57, s7\n s_add_u32 s57, s57, {QXG}\n s_add_u32 s7, s7, s59\n s_add_u32 m0, s7, 16384")
        a(f"s_lshl_b32 s49, s49, 14\n s_add_u32 s49, s49, {KXV}\n s_lshl_b32 s7, s53, 13\n s_add_u32 s49, s49, s7\n s_add_u32 s7, s7, s59")
        for f in range(4): a(f"buffer_load_dwordx4 v0, {WS}, s57 offen offset:{f*1024} sc1 lds")
        for hf in range(2):
            a(f"s_add_u32 m0, s7, {hf*4096}")
            if hf: a("s_add_u32 s49, s49, 4096")
            for f in range(4): a(f"buffer_load_dwordx4 v0, {WS}, s49 offen offset:{f*1024} sc1 lds")
    fetch("s6")
    tl(a, opt, 2)
    wp_init(a, opt)
    a("s_waitcnt vmcnt(0)\nC_loop:\n s_barrier")
    wp(a, opt, 0)
    for f in range(4): a(f"ds_read_b128 {ar(QB + 4*f)}, v4 offset:{f*1024}")
    for f in range(16): a(f"ds_read_b128 {ar(KX + 4*f)}, v3 offset:{f*1024}")
    a("s_waitcnt lgkmcnt(0)")
    KM, VM, X0, X1, M = 88, 104, 116, 120, 124
    for rt in range(2):
        d = vr(X0 + 4*rt)
        for t in range(4): a(f"v_mfma_f32_16x16x32_bf16 {d}, {ar(KX + (rt*4+t)*4)}, {ar(QB + 4*t)}, {d if t else '0'}")
    for k in range(8): a(f"v_cndmask_b32 v{X0+k}, v14, v{X0+k}, s[{60+2*k}:{61+2*k}]")
    wp(a, opt, 1)
    a("s_cmp_eq_u32 s6, 15\n s_cbranch_scc1 C_direct\n s_lshl_b32 s57, s6, 2\n s_add_u32 s57, s57, s5\n s_add_u32 s57, s57, 1")
    wait_lanes(a, "v9", "s50", 2, "s57", "v24", opt.get("slh", 4))
    a(f"""
    C_direct:
    s_mov_b32 s96, 0
    C_poll:
    buffer_load_dwordx4 v[24:27], v0, {WS}, s55 offen sc1
    buffer_load_dwordx4 v[28:31], v0, {WS}, s55 offen offset:1024 sc1
    s_waitcnt vmcnt(0)
    v_max3_u32 v32, v24, v25, v26
    v_max3_u32 v33, v27, v28, v29
    v_max3_u32 v32, v32, v30, v31
    v_max_u32 v32, v32, v33
    v_cmp_eq_u32 vcc, -1, v32
    s_cbranch_vccz C_have
    """)
    spin_tail(a, "C_poll", opt.get("slc", 1))
    a("C_have:")
    wp(a, opt, 3)
    a("ds_write_b128 v8, v[24:27]\n ds_write_b128 v8, v[28:31] offset:1024\n s_add_u32 s55, s55, 0x80000\n s_waitcnt lgkmcnt(0)\n s_barrier")
    tk = [a.ds(f"ds_read_b128 {vr(KM + 4*t)}, v10 offset:{t*512}") for t in range(4)]
    for f in range(2): a(f"ds_read_b128 {vr(VM + 4*f)}, v11 offset:{f*1024}")
    for t in range(4):
        a.wait_ds(tk[t])
        a(f"v_mfma_f32_16x16x32_bf16 {vr(M)}, {vr(KM + 4*t)}, {ar(QB + 4*t)}, {vr(M) if t else '0'}")
    wp(a, opt, 4)
    PX, PM, O, Lr = 24, 20, 32, 64
    softmax(a, X0, X1, M, 28, PX, PM)
    a("s_waitcnt lgkmcnt(0)")
    a(f"v_mfma_f32_16x16x32_bf16 {vr(Lr)}, v[16:19], {vr(PX)}, 0")
    for f in range(8): a(f"v_mfma_f32_16x16x32_bf16 {vr(O + 4*f)}, {ar(VX + 4*f)}, {vr(PX)}, 0")
    a(f"v_mfma_f32_16x16x16_bf16 {vr(Lr)}, v[16:17], {vr(PM, 2)}, {vr(Lr)}")
    for f in range(8):
        a(f"v_mfma_f32_16x16x16_bf16 {vr(O + 4*f)}, {vr(VM + 2*(f//2), 2)}, {vr(PM + 2*(f%2), 2)}, {vr(O + 4*f)}")
        if f == 2: a(f"v_rcp_f32 v28, v{Lr}")
        if f >= 3:
            for r in range(2): a(f"v_mul_f32 v{O + 2*(f-3) + r}, v{O + 2*(f-3) + r}, v28")
    for hw in range(4):
        r = 68 + 4*hw
        for q in range(max(10, 8*hw), 8*hw + 8, 2): a(f"v_pk_mul_f32 {vr(O + q, 2)}, {vr(O + q, 2)}, v[28:29] op_sel_hi:[1,0]")
        for i in range(4): a(f"v_cvt_pk_bf16_f32 v{r+i}, v{O + 8*hw + i}, v{O + 8*hw + 4 + i}")
        a(f"ds_write_b128 v12, {vr(r)} offset:{hw*1024}")
    wp(a, opt, 5)
    a("s_cmp_eq_u32 s6, 15\n s_cbranch_scc1 C_nofetch\n s_add_u32 s44, s6, 1")
    fetch("s44")
    a("C_nofetch:")
    a(f"s_lshl_b32 s48, s6, 2\n s_add_u32 s48, s48, s5\n s_lshl_b32 s48, s48, 4\n s_add_u32 s48, s48, s4\n s_lshl_b32 s48, s48, 15\n s_add_u32 s48, s48, {CP}")
    a("s_waitcnt lgkmcnt(0)\n s_barrier")
    wp(a, opt, 6)
    def announce():
        a("s_cmp_lg_u32 s6, 15\n s_cbranch_scc1 C_noann\n s_cmp_lt_u32 s5, 2\n s_cbranch_scc1 C_noann")
        flag_store(a, "s47", "16", "v13")
        a("C_noann:")
    stage2(a, "v6", "v7", "s48", lambda f: ar(4*f), 64, 24, 8, ((1, opt.get("an", 6)), announce) if opt.get("rd", 1) == 2 else None)
    wp(a, opt, 7)
    a("s_add_u32 s6, s6, 1\n s_waitcnt vmcnt(0)")
    flag_store(a, "s47", "s6", "v13")
    wp(a, opt, 2)
    a("s_cmp_lt_u32 s6, 16")
    a.fence()
    a("s_cbranch_scc1 C_loop")
    worker_end(a, opt)

def make_sel(a, b, t):
    a(f"v_and_b32 v{t}, 1, v2\n v_lshlrev_b32 v{t}, 4, v{t}\n v_mov_b32 v{t+1}, 0x3f80\n v_lshlrev_b32 v{t}, v{t}, v{t+1}")
    a(f"v_bfe_u32 v{t+1}, v2, 1, 2")
    for p in range(4):
        a(f"v_cmp_eq_u32 vcc, {p}, v{t+1}\n v_cndmask_b32 v{b+p}, 0, v{t}, vcc")

def role_R(a, opt):
    a("L_R:")
    if opt.get("noR"):
        init_arrive(a, "v24"); a("s_waitcnt vmcnt(0)\n s_endpgm")
    a("s_sub_u32 s4, s4, 188\n s_lshr_b32 s5, s4, 5\n s_and_b32 s4, s4, 31")
    a(f"""
    v_lshlrev_b32 v4, 15, v1
    v_lshl_add_u32 v4, v2, 4, v4
    s_lshl_b32 s7, s4, 10
    s_lshl_b32 s43, s3, 8
    s_add_u32 s7, s7, s43
    v_add_u32 v4, s7, v4
    v_lshlrev_b32 v5, 3, v1
    v_lshl_add_u32 v5, v2, 4, v5
    v_add_u32 v5, s7, v5
    v_mov_b64 v[24:25], -1
    v_mov_b64 v[26:27], -1
    s_lshl_b32 s45, s5, 19
    s_add_u32 s45, s45, {CP + (62 << 19)}
    """)
    for u in range(4): a(f"buffer_store_dwordx4 v[24:27], v4, {WS}, s45 offen sc1\n s_add_u32 s45, s45, 0x20000")
    a("s_waitcnt vmcnt(0)")
    init_arrive(a, "v24")
    if opt.get("warm", 1):
        a("s_lshl_b32 s7, s5, 5\n s_add_u32 s7, s7, s4\n s_lshl_b32 s7, s7, 2\n s_add_u32 s7, s7, s3\n s_lshl_b32 s7, s7, 14\n v_lshlrev_b32 v24, 7, v0")
        for n, p in enumerate([(P_WQ, P_WV, P_WO), (P_WO,), (P_WK, P_WQ, P_WV, P_WO)][opt.get("warm", 1) - 1]):
            srd(a, 24, p, 0x400000)
            a(f"buffer_load_dword v{26+2*n}, v24, {W1}, s7 offen\n s_add_u32 s43, s7, 8192\n buffer_load_dword v{27+2*n}, v24, {W1}, s43 offen")
        a("s_waitcnt vmcnt(0)")
    srd(a, 20, P_OUT, 0x200000); srd(a, 24, P_GW, 1024)
    make_sel(a, 16, 24)
    a(f"""
    v_lshlrev_b32 v3, 7, v0
    v_lshlrev_b32 v0, 4, v0
    buffer_load_dwordx4 v[8:11], v0, {W1}, 0 offen
    s_lshl_b32 s7, s5, 2
    s_add_u32 s7, s7, s3
    s_lshl_b32 s7, s7, 11
    s_add_u32 s54, s7, {FLG_FC}
    s_add_u32 s55, s7, {FLG_FF}
    s_mov_b32 s6, 0
    s_mov_b32 s58, {f32bits(-math.log2(math.e))}
    """)
    for r in range(76, 80): a(f"v_mov_b32 v{r}, 0")
    wait_go(a, "v24", opt.get("si", 64))
    tl(a, opt, 2)
    wp_init(a, opt)
    a(f"""
    R_loop:
    s_lshl_b32 s43, s6, 1
    s_add_u32 s43, s43, s5
    s_add_u32 s57, s6, 1
    s_lshl_b32 s44, s43, 15
    s_lshl_b32 s7, s4, 10
    s_add_u32 s7, s7, s44
    buffer_load_dwordx4 v[12:15], v0, {X}, s7 offen
    """)
    wait_lanes(a, "v3", "s55", 14, "s57", "v24", opt.get("slr", 2))
    wp(a, opt, 0)
    a(f"s_lshl_b32 s45, s43, 19\n s_and_b32 s45, s45, {hex((opt.get('fring', 64) << 19) - 1)}\n s_add_u32 s45, s45, {FP}")
    for u in range(4):
        if u == 3: a("s_mov_b32 exec_hi, 0")
        a(f"buffer_load_dwordx4 {vr(64 + 4*u)}, v4, {WS}, s45 offen {['sc1', 'sc1 nt'][opt.get('rnt', 0)]}")
        if u < 3: a("s_add_u32 s45, s45, 0x20000")
    a("s_mov_b64 exec, -1")
    a("v_mov_b32 v24, 0")
    for p in range(4): a(f"v_dot2c_f32_bf16 v24, v{12+p}, v{8+p}")
    for k in (8, 4, 2, 1): a(f"v_add_f32_dpp v24, v24, v24 row_ror:{k} row_mask:0xf bank_mask:0xf")
    a("""
    v_mov_b32 v25, v24
    v_permlane16_swap_b32 v24, v25
    v_add_f32 v24, v24, v25
    v_mov_b32 v25, v24
    v_permlane32_swap_b32 v24, v25
    v_add_f32 v24, v24, v25
    v_mul_f32 v24, s58, v24
    v_exp_f32 v24, v24
    v_add_f32 v24, 1.0, v24
    v_rcp_f32 v6, v24
    v_sub_f32 v7, 1.0, v6
    s_waitcnt vmcnt(0)
    """)
    for u in range(4): a(f"v_mfma_f32_16x16x32_bf16 v[28:31], v[16:19], {vr(64 + 4*u)}, {'v[28:31]' if u else '0'}")
    for i in range(4): a(f"v_mul_f32 v{28+i}, v{28+i}, v7")
    wp(a, opt, 1)
    rd = opt.get("rd", 1)
    if rd == 1: a("s_cmp_eq_u32 s6, 31\n s_cbranch_scc1 R_direct")
    if rd == 3: a("s_cmp_eq_u32 s6, 31\n s_cbranch_scc1 R_watch")
    a("s_and_b32 s7, s6, 1\n s_lshl_b32 s7, s7, 14\n s_add_u32 s46, s54, s7\n s_lshr_b32 s57, s6, 1\n s_add_u32 s57, s57, 1")
    wait_lanes(a, "v3", "s46", 16, "s57", "v24", opt.get("slr", 2))
    if rd == 3:
        a(f"""
        s_branch R_direct
        R_watch:
        s_lshl_b32 s45, s43, 4
        s_and_b32 s7, s4, 15
        s_add_u32 s45, s45, s7
        s_lshl_b32 s45, s45, 15
        s_add_u32 s45, s45, {CP}
        s_mov_b32 s96, 0
        s_mov_b64 exec, 1
        R_w1:
        buffer_load_dword v24, v4, {WS}, s45 offen sc1
        s_waitcnt vmcnt(0)
        v_cmp_eq_u32 vcc, -1, v24
        s_cbranch_vccz R_w2
        """)
        spin_tail(a, "R_w1", opt.get("slw", 1))
        a("R_w2:\n s_mov_b64 exec, -1")
        if opt.get("rw"): a(f"s_sleep {opt['rw']}")
    a("R_direct:\n s_mov_b32 s96, 0")
    wp(a, opt, 2)
    a(f"R_poll:\n s_lshl_b32 s45, s43, 19\n s_add_u32 s45, s45, {CP}")
    tok = []
    for u in range(4):
        tok.append(a.vm(f"buffer_load_dwordx4 {vr(32 + 4*u)}, v4, {WS}, s45 offen sc1"))
        if u < 3: a("s_add_u32 s45, s45, 0x20000")
    for u in range(4):
        a.wait_vm(tok[u])
        a(f"v_mfma_f32_16x16x32_bf16 v[24:27], v[16:19], {vr(32 + 4*u)}, {'v[24:27]' if u else '0'}")
        a(f"v_max3_u32 v{48+u}, v{32+4*u}, v{33+4*u}, v{34+4*u}\n v_max_u32 v{48+u}, v{48+u}, v{35+4*u}")
    a("v_max3_u32 v48, v48, v49, v50\n v_max_u32 v48, v48, v51\n v_cmp_eq_u32 vcc, -1, v48\n s_cbranch_vccz R_have")
    spin_tail(a, "R_poll", opt.get("sld", 2))
    a("R_have:\n s_nop 3")
    for i in range(4): a(f"v_fma_f32 v{24+i}, v{24+i}, v6, v{28+i}")
    a(f"""
    v_cvt_pk_bf16_f32 v24, v24, v25
    v_cvt_pk_bf16_f32 v25, v26, v27
    s_mov_b32 exec_hi, 0
    buffer_store_dwordx2 v[24:25], v5, {OUT}, s44 offen {['', 'sc1', 'nt', 'sc0 sc1'][opt.get('ost', 1)]}
    s_mov_b64 exec, -1
    """)
    wp(a, opt, 3)
    a("s_add_u32 s6, s6, 1\n s_cmp_lt_u32 s6, 32")
    a.fence()
    a("s_cbranch_scc1 R_loop\n s_waitcnt vmcnt(0)")
    wp_dump(a, opt)
    tl(a, opt, 3)
    a("s_waitcnt vmcnt(0)\n s_endpgm")

def build(opt):
    from chain import role_chain
    global ST2
    ST2 = ['sc1', 'sc1 nt', ''][opt.get('st2', 0)]
    a = Asm()
    prologue(a, opt)
    if not opt.get("nocfr"): role_R(a, opt)
    role_chain(a, opt)
    role_B(a, opt)
    if not opt.get("nocfr"):
        role_C(a, opt)
        role_F(a, opt)
    a("L_code_end:")
    hdr = open("cdna_kernels/%s.s.ref" % NAME).read().split("; Override")[0] if opt.get("hdr", True) else ""
    k = NAME + "_kernel"
    return f"""{hdr}; @launch grid=(256,1,1) block=(256,1,1) lds={LDS_BYTES}
.amdgcn_target "amdgcn-amd-amdhsa--gfx950"
.text
.globl {k}
.p2align 8
.type {k},@function
{k}:
{a.text()}.section .rodata,"a"
.p2align 6
.amdhsa_kernel {k}
  .amdhsa_next_free_vgpr 512
  .amdhsa_next_free_sgpr 102
  .amdhsa_accum_offset 256
  .amdhsa_group_segment_fixed_size 0
  .amdhsa_kernarg_size 120
  .amdhsa_user_sgpr_count 2
  .amdhsa_user_sgpr_kernarg_segment_ptr 1
  .amdhsa_system_sgpr_workgroup_id_x 1
.end_amdhsa_kernel
"""

if __name__ == "__main__":
    opt = {}
    out = "cdna_kernels/%s.s" % NAME
    for arg in sys.argv[1:]:
        k, _, v = arg.partition("=")
        if k == "out": out = v
        elif k in ("stamps", "drop", "xp"): opt[k] = v.split(",")
        else: opt[k] = int(v, 0) if v else 1
    open(out, "w").write(build(opt))
    print("wrote", out)
```

```python
from asmlib2 import *
import gen as G

vLin, vPub, vT, vMem0, vIdx, vQw, vOr, vPst = ["v%d" % i for i in range(8)]
vQr, vOw, vInf, vJunk, vKa, vQq = "v8", "v9", "v20", "v21", "v22", "v23"
vW, vKp = "v8", "v9"
FB, SEL, ONES, KV = 10, 12, 16, 60
MEMA, ACQ, ACK = 24, 56, 64
LS = MEMA + 16
ACV, QBUF = 72, [88, 96, 104, 112, 120]
QS = 1024
L_MX, L_QK, L_OB, L_AW, L_W = 0, 8192, 12288, 16384, 32768
L_VM = L_OB + 2048
WSTR = 32768
SM = "v_smfmac_f32_16x16x64_bf16"
MF = "v_mfma_f32_16x16x32_bf16"
MF16 = "v_mfma_f32_16x16x16_bf16"

def zero(a, lo, hi, val="0"):
    for r in range(lo, hi, 2): a(f"v_mov_b64 {vr(r, 2)}, {val}")
def busy(a, n):
    for _ in range(n): a(f"v_mov_b32 {vT}, 0\n s_nop 2")
def wq_half(j, h): return f"ds_read_b128 {vr(QBUF[j % 5] + 4*h)}, {vW} offset:{WSTR + j*2048 + 1024*h}"
KX, VX = 72, 104
NK = 224
def kx_load(f, dst, fl="sc1"): return f"buffer_load_dwordx4 {dst}, {vLin}, {G.WS}, {('s52', 's87')[f // 4]} offen offset:{(f % 4)*1024} {fl}"
def vx_load(f, fl="sc1"): return f"buffer_load_dwordx4 {vr(VX + 4*f)}, {vLin}, {G.WS}, s57 offen offset:{f*1024} {fl}"
def addr_prep(a):
    for u in range(1, 4): a(f"v_add_u32 v{LS + 4*u}, s{80+u}, {vLin}")

def next_seg(a, P):
    a(f"""
    v_readfirstlane_b32 s84, v{FB}
    v_readfirstlane_b32 s85, v{FB+1}
    s_mov_b32 s57, s56
    s_add_u32 s90, s6, 2
    s_cmp_lt_u32 s90, 64
    s_cselect_b32 s7, {G.KSEG}, 0
    s_add_u32 s52, s52, s7
    s_min_u32 s90, s90, 63
    s_lshr_b32 s91, s90, 1
    s_bitcmp1_b32 s90, 0
    s_cselect_b32 s7, s85, s84
    s_cmp_gt_u32 s7, s91
    s_cbranch_scc0 {P}_fbwait
    {P}_fbok:
    s_add_u32 s87, s52, 0x1000
    s_add_u32 s56, s52, s95
    """)

def ring_next(a):
    a(f"""
    s_mov_b32 s51, s48
    s_and_b32 s7, s6, 3
    s_lshl_b32 s48, s7, 13
    s_add_u32 s48, s48, {G.MEMB}
    s_lshr_b32 s97, s7, 1
    s_sub_u32 s98, s97, 1
    s_mov_b32 s99, s98
    s_and_b32 s7, s7, 1
    s_lshl_b32 s7, s7, 18
    s_add_u32 s45, s7, {G.PART}
    s_add_u32 s46, s45, 0x1000
    s_add_u32 s47, s44, s7
    """)

def fb_wait(a, P, prof=0):
    a(f"{P}_fbwait:")
    if prof: a("s_add_u32 s24, s24, 59")
    a("s_and_b32 s92, s90, 1\n s_lshl_b32 s92, s92, 2\n s_add_u32 s92, s92, s55\n s_add_u32 s93, s91, 1")
    G.wait_scalar(a, G.WS, "s92", "s93", "s7", vT, 1)
    a(f"s_branch {P}_fbok")

def startup(a, opt):
    WS, DBG = G.WS, G.DBG
    a.note("""chain workgroup (one head): Wq/Wk/Wv/Wo of the head stay in registers + LDS for all 64 steps.
waves 0,1 (A): share of q,k, attention of the 8 memory rows, share of Wo; waves 2,3 (V): share of q,k, all of v, share of Wo.
The 8-row products use the 2:4 sparse matrix op: even rows take the first two of every four k, odd rows the other two.""")
    a("L_chain:")
    G.srd(a, 20, G.P_MEM0, 8192); G.srd(a, 24, G.P_WQ, 0x400000); G.srd(a, 28, G.P_WK, 0x400000)
    G.srd(a, 32, G.P_WV, 0x400000); G.srd(a, 36, G.P_WO, 0x400000)
    G.make_sel(a, SEL, 20)
    a(f"""
    v_mov_b32 v22, v0
    v_lshlrev_b32 v0, 4, v0
    v_and_b32 v24, 1, v2
    v_lshrrev_b32 v25, 2, v2
    v_and_b32 v26, 3, v2
    v_lshrrev_b32 v28, 1, v2
    v_and_b32 v29, 1, v1
    v_lshrrev_b32 v23, 1, v1
    ; weight voffsets: rows 128w + 32(g/2) + 8(g%2), column bytes 256h + 16n
    v_lshlrev_b32 v27, 18, v23
    v_lshl_add_u32 v27, v29, 16, v27
    v_lshl_add_u32 v27, v2, 4, v27
    s_lshl_b32 s90, s4, 8
    s_lshl_b32 s91, s3, 20
    s_add_u32 s90, s90, s91
    v_add_u32 v30, s90, v27
    v_add_u32 v31, 8192, v30
    ; LDS scatter bases. q,k (v16): region swap(n/4), slot (w - n/4)%4 ; v (v17): region n/4, slot (w - 2 - n/8)%4
    v_lshlrev_b32 v18, 8, v1
    v_lshl_add_u32 v18, v26, 6, v18
    v_add_u32 v18, {L_W}, v18
    s_mov_b32 s90, {WSTR}
    v_lshrrev_b32 v27, 1, v25
    v_and_b32 v19, 1, v25
    v_lshl_add_u32 v19, v19, 1, v27
    v_mul_lo_u32 v16, v19, s90
    v_sub_u32 v19, s3, v25
    v_and_b32 v19, 3, v19
    v_lshl_add_u32 v16, v19, 12, v16
    v_add_u32 v16, v16, v18
    v_mul_lo_u32 v17, v25, s90
    v_sub_u32 v19, s3, v27
    v_add_u32 v19, 2, v19
    v_and_b32 v19, 3, v19
    v_lshl_add_u32 v17, v19, 12, v17
    v_add_u32 v17, v17, v18
    ; v18 = own pair of regions (2(w%2)), v19 = own q/k region
    s_and_b32 s91, s3, 1
    s_mul_i32 s91, s91, {2*WSTR}
    s_add_u32 s91, s91, {L_W}
    v_add_u32 v18, s91, {vLin}
    s_lshr_b32 s7, s3, 1
    s_mul_i32 s7, s7, {WSTR}
    v_add_u32 v19, s7, v18
    ; Wo voffset (v11): rows 16(g/2)+4(g%2), column bytes 256w + 16n, head base
    v_lshlrev_b32 v27, 14, v23
    v_lshl_add_u32 v27, v29, 12, v27
    v_lshl_add_u32 v27, v2, 4, v27
    s_lshl_b32 s90, s4, 17
    s_lshl_b32 s91, s3, 8
    s_add_u32 s90, s90, s91
    v_add_u32 v11, s90, v27
    v_mov_b32 v20, 0x4444
    v_mov_b32 v21, 0xeeee
    v_cmp_eq_u32 vcc, 0, v24
    v_cndmask_b32 {vIdx}, v21, v20, vcc
    s_lshl_b32 s86, s3, 10
    s_add_u32 s90, s86, {L_MX}
    v_add_u32 {vMem0}, s90, {vLin}
    ; q write: QK + w*QS + (n/4)*128 + 2g*16 + (n%4)*4
    v_lshlrev_b32 {vQw}, 7, v25
    v_lshl_add_u32 {vQw}, v1, 5, {vQw}
    v_lshl_add_u32 {vQw}, v26, 2, {vQw}
    s_mul_i32 s90, s3, {QS}
    s_add_u32 s90, s90, {L_QK}
    v_add_u32 {vQw}, s90, {vQw}
    ; v27 = g*128 + (2(n/4) + n%2)*16 ; lanes n%4 < 2 carry keys, the others queries
    v_lshl_add_u32 v27, v25, 1, v24
    v_lshlrev_b32 v27, 4, v27
    v_lshl_add_u32 v27, v1, 7, v27
    v_cmp_gt_u32 vcc, 2, v26
    v_add_u32 {vQr}, {L_QK}, v27
    s_add_u32 s90, s86, {L_OB}
    v_add_u32 v20, s90, v27
    v_add_u32 v21, 512, v20
    v_cndmask_b32 {vOw}, v20, v21, vcc
    ; o read: OB + (2g + n%2)*128 + (n/2)*16
    v_lshl_add_u32 v27, v1, 1, v24
    v_lshlrev_b32 v27, 7, v27
    v_lshl_add_u32 v27, v28, 4, v27
    v_add_u32 {vOr}, {L_OB}, v27
    ; partial store: (8w + 2(n/4) + g/2)*8192 + (g%2)*2048 + 64h + 16(n%4)
    v_lshl_add_u32 v27, v25, 1, v23
    v_lshlrev_b32 v27, 13, v27
    v_lshl_add_u32 v27, v29, 11, v27
    v_lshl_add_u32 v27, v26, 4, v27
    s_lshl_b32 s90, s3, 16
    s_lshl_b32 s91, s4, 6
    s_add_u32 s90, s90, s91
    v_add_u32 {vPst}, s90, v27
    ; mem0 voffset (v25): (n/2)*1024 + 2*(128w + 32g + 16(n%2))
    v_lshlrev_b32 v25, 10, v28
    v_lshl_add_u32 v25, v1, 6, v25
    v_lshl_add_u32 v25, v24, 5, v25
    s_lshl_b32 s91, s3, 8
    v_add_u32 v25, s91, v25
    ; key image read (v24): QK + 512 + (2(w%2) + g/2)*QS + (lane%32)*16
    s_and_b32 s91, s3, 1
    s_mul_i32 s91, s91, {2*QS}
    s_add_u32 s91, s91, {L_QK + 512}
    v_mul_u32_u24 v24, {QS}, v23
    v_and_b32 v27, 31, v22
    v_lshl_add_u32 v24, v27, 4, v24
    v_add_u32 v24, s91, v24
    ; publish: (w/2)*4096 + h*128 + (w%2)*64 + g*32 + (n%4)*8 + (n/4)*4   (lanes g<2, n<8)
    s_lshr_b32 s90, s3, 1
    s_lshl_b32 s90, s90, 12
    s_lshl_b32 s91, s4, 7
    s_add_u32 s90, s90, s91
    s_and_b32 s91, s3, 1
    s_lshl_b32 s91, s91, 6
    s_add_u32 s90, s90, s91
    v_lshlrev_b32 v27, 5, v29
    v_lshl_add_u32 v27, v26, 3, v27
    v_and_b32 v20, 4, v2
    v_add_u32 v27, v27, v20
    v_add_u32 {vPub}, s90, v27
    s_mov_b32 s58, 0x00ff00ff
    s_mov_b32 s59, 0
    s_lshl_b32 s44, s4, 2
    s_add_u32 s44, s44, s3
    s_lshl_b32 s44, s44, 11
    s_add_u32 s44, s44, {G.PART}
    s_lshl_b32 s55, s4, 7
    s_lshl_b32 s54, s4, 2
    s_add_u32 s54, s54, s3
    s_lshl_b32 s54, s54, 7
    s_add_u32 s54, s54, {G.FLG_FH}
    s_add_u32 s55, s55, {G.FLG_FB}
    """)
    for u in range(1, 4):
        a(f"s_add_u32 s7, s3, {u}\n s_and_b32 s7, s7, 3\n s_lshl_b32 s7, s7, 10\n s_add_u32 s{80+u}, s7, {L_MX}")
    zero(a, 20, 24, "-1")
    for sl in range(2):
        a(f"s_add_u32 s7, s44, {sl*0x40000}")
        for o in (0, 1024): a(f"buffer_store_dwordx4 v[20:23], {vLin}, {WS}, s7 offen offset:{o} sc1")
    a("s_mov_b64 exec, s[58:59]")
    for sl in range(4):
        a(f"s_mov_b32 s7, {G.MEMB + sl*8192}\n buffer_store_dword v20, {vPub}, {WS}, s7 offen sc1")
    a("s_mov_b64 exec, -1")
    G.flag_store(a, "s54", "0", "v27")
    def job(srdn, vdst, done):
        return dict(kind='lds', srd=srdn, stride=8192, v0="v30", v1="v31", vdst=vdst,
                    row=lambda u: 64*((u//4) % 2) + 16*(u % 2) + 4*(u//8) + 2*((u//2) % 2),
                    imm=lambda grp, c: (grp//2)*16384 + (c % 2)*2048 + (grp % 2)*1024 + (c//2)*16, done=done)
    def pick(fa, fv, after=None):
        def done():
            lv, le = a.label("PV"), a.label("PE")
            a(f"s_waitcnt lgkmcnt(0)\n s_barrier\n s_cmp_ge_u32 s3, 2\n s_cbranch_scc1 {lv}")
            fa()
            a(f"s_branch {le}\n{lv}:")
            fv()
            a(f"{le}:\n s_waitcnt lgkmcnt(0)\n s_barrier")
            if after: after()
        return done
    def rd(src, dst, off=0):
        return lambda: [a(f"ds_read_b128 {dst(f)}, {src} offset:{off + f*1024}") for f in range(32)]
    nothing = lambda: None
    def wo_group(grp):
        if grp == 2: a(f"buffer_load_dwordx2 v[30:31], off, {WS}, s55 sc1")
        if grp == opt.get("wg", 2) and opt.get("wr", 1) & 1:
            a(f"v_lshlrev_b32 v64, 1, {vLin}\n v_lshlrev_b32 v65, 3, {vLin}\n s_add_u32 s7, s44, 0x40000\n s_lshl_b32 s90, s3, 13\n s_add_u32 s90, s90, {G.MEMB}")
            a(f"buffer_load_dword v66, v64, {WS}, s44 offen sc1\n buffer_load_dword v67, v64, {WS}, s7 offen sc1\n buffer_load_dword v68, v65, {WS}, s90 offen sc1")
        if grp == opt.get("wg", 2) and opt.get("tw", 0):
            a(f"v_lshrrev_b32 v69, 4, {vLin}\n v_mul_u32_u24 v70, {G.KSEG}, v69\n s_mov_b32 s7, {G.KXV + 32*16384}\n buffer_load_dword v70, v70, {WS}, s7 offen sc1")
        if grp == opt.get("wg", 2) and opt.get("wr", 1) & 2:
            a(f"""
            s_getpc_b64 s[60:61]
            L_pc0:
            s_add_u32 s60, s60, FA_loop-L_pc0
            s_addc_u32 s61, s61, 0
            s_mov_b32 s62, SA_loop-FA_loop
            s_mov_b32 s63, 0x20000
            v_lshlrev_b32 v69, 2, {vLin}
            s_lshl_b32 s7, s3, 12
            buffer_load_dword v69, v69, s[60:63], s7 offen
            """)
        if grp == opt.get("hg", 2) and opt.get("hp", 0):
            sk = a.label("HP")
            a(f"s_cmp_eq_u32 s3, 0\n s_cbranch_scc1 {sk}\n v_lshlrev_b32 v71, 3, {vLin}\n s_xor_b32 s7, s4, s3\n s_lshl_b32 s7, s7, 17")
            a(f"s_mul_i32 s90, s3, {5*8192}\n s_add_u32 s7, s7, s90\n s_sub_u32 s7, s7, {4*8192}")
            for k in range(5): a(f"buffer_load_dword v{72 + k}, v71, {G.W4}, s7 offen\n s_add_u32 s7, s7, 8192")
            a(f"{sk}:")
            a.vm_n -= 5
        lv, le = a.label("OV"), a.label("OE")
        a(f"s_cmp_ge_u32 s3, 2\n s_cbranch_scc1 {lv}")
        for c in range(6):
            for r in range(4): a(f"v_accvgpr_write_b32 a{128 + (c*2 + grp//2)*8 + (grp % 2)*4 + r}, v{32 + 4*c + r}")
        for c in (6, 7): a(f"ds_write_b128 {vMem0}, {vr(32 + 4*c)} offset:{L_AW + (((c - 6)*2 + grp//2)*2 + grp % 2)*2048}")
        a(f"s_branch {le}\n{lv}:")
        for c in range(8): a(f"ds_write_b128 v18, {vr(32 + 4*c)} offset:{(c*2 + grp//2)*2048 + (grp % 2)*1024}")
        a(f"{le}:")
    def early():
        for hf in range(2):
            for c in range(2):
                a(f"buffer_load_dwordx2 {vr((20, 26)[hf] + 2*c, 2)}, v25, {G.OUT}, 0 offen offset:{8*hf + 16*c}")
        a(f"buffer_load_dword v16, off, {DBG}, 0 offset:{G.D_GO} sc1\n buffer_load_dword v17, off, {DBG}, 0 sc1")
    kd = G.lds_to_regs(a, "v19", lambda f: ar(4*f))
    jobs = [dict(job(G.W2, "v16", kd), first=lambda: G.init_arrive(a, "v27")),
            job(G.W1, "v16", G.lds_to_regs(a, "v19", lambda f: vr(128 + 4*f))),
            job(G.W3, "v17", pick(nothing, rd("v18", lambda f: ar(128 + 4*f)), early)),
            dict(kind='lds', srd=G.W4, stride=1024, v0="v11", row=lambda u: 64*(u//8) + 32*((u//4) % 2) + 8*(u % 2) + 2*((u//2) % 2), group=wo_group)]
    if "tj" in opt:
        d0 = jobs[opt["tj"]]["done"]
        def dd():
            d0(); n0 = a.vm_n; G.tl(a, opt, 4, "v27"); a.vm_n = n0
        jobs[opt["tj"]]["done"] = dd
    if opt.get("jo"): jobs[0], jobs[1] = dict(jobs[1], first=jobs[0]["first"]), dict(jobs[0], first=None)
    G.load_stream(a, jobs, tmp=64, depth=8, out=32, fl=['', 'nt', 'sc1'][opt.get('cnt', 0)], ahead=opt.get('ah', 0))
    a("s_waitcnt vmcnt(0)")
    if "tj" not in opt: G.tl(a, opt, 4, "v32")
    a(f"""
    v_mov_b32 v33, v24
    v_readfirstlane_b32 s7, v16
    v_readfirstlane_b32 s43, v17
    v_mov_b64 {vr(LS, 2)}, v[26:27]
    v_mov_b64 {vr(LS+2, 2)}, v[28:29]
    v_mov_b64 v[24:25], v[20:21]
    v_mov_b64 v[26:27], v[22:23]
    s_cmp_ge_u32 s7, 1
    s_cbranch_scc1 L_chain_up
    """)
    G.wait_go(a, vT, 2)
    G.wait_scalar(a, DBG, 0, 0, "s43", vT, 2)
    a(f"""
    buffer_load_dwordx2 v[30:31], off, {WS}, s55 sc1
    s_waitcnt vmcnt(0)
    L_chain_up:
    v_mov_b64 {vr(FB, 2)}, v[30:31]
    s_lshl_b32 s52, s4, 14
    s_add_u32 s52, s52, {G.KXV - G.KSEG}
    s_and_b32 s7, s3, 1
    s_lshl_b32 s95, s7, 12
    s_add_u32 s95, s95, 0x2000
    s_mov_b32 s56, 0
    s_lshl_b32 s53, s4, 12
    s_add_u32 s53, s53, {G.KVM - 0x20000}
    s_lshl_b32 s7, s7, 10
    s_add_u32 s53, s53, s7
    """)
    a(f"""
    s_mov_b32 s50, {G.MEMB}
    s_mov_b32 s80, 0
    s_mov_b32 s78, {G.f32bits(float(opt.get("thr", 12)))}
    s_mov_b64 s[88:89], 0
    s_mov_b32 s48, {G.MEMB + 3*8192}
    s_waitcnt lgkmcnt(0)
    s_mov_b32 s6, -2
    """)
    a("s_cmp_ge_u32 s3, 2\n s_cbranch_scc1 L_nokx")
    next_seg(a, "C1")
    for f in range(8): a(kx_load(f, vr(KX + 4*f)))
    a("s_mov_b32 s6, -1")
    next_seg(a, "C0")
    if opt.get("sw", 0): a("s_waitcnt vmcnt(0)")
    a("L_nokx:")
    G.tl(a, opt, 2, "v56", True)
    a("s_mov_b32 s6, 0")
    ring_next(a)
    addr_prep(a)
    if opt.get("prof"):
        for k in range(20, 32): a(f"s_mov_b32 s{k}, 0")
    a("s_cmp_ge_u32 s3, 2\n s_cbranch_scc1 L_vstart")
    for r in range(4): a(f"v_mov_b32 v{ONES+r}, 0x3f803f80")
    zero(a, ACQ, ACQ + 16)
    a(f"v_mov_b32 {vKa}, v33")
    zero(a, 120, 124, "-1")
    a(f"ds_write_b128 {vMem0}, v[120:123] offset:{L_VM}\n s_waitcnt lgkmcnt(0)")
    a(f"v_and_b32 {vInf}, 32, {vLin}\n v_lshlrev_b32 {vInf}, 26, {vInf}\n v_or_b32 {vInf}, 0x7f800000, {vInf}")
    a.fence()
    a("s_cmp_lt_u32 s43, 32\n s_cbranch_scc1 SA_loop\n s_branch FA_loop\nL_vstart:")
    a(f"v_mov_b32 {vW}, v18\n v_mov_b32 {vKp}, v33")
    zero(a, 16, 20, "-1")
    for j in range(5):
        for h in range(2): a(wq_half(j, h))
    zero(a, ACQ, ACQ + 32)
    a("s_waitcnt lgkmcnt(0)")
    a.fence()
    a("s_cmp_lt_u32 s43, 32\n s_cbranch_scc1 SV_loop\n s_branch FV_loop")
    fb_wait(a, "C0")
    fb_wait(a, "C1")

def loop(a, opt, P, st, A):
    WS = G.WS
    prof = opt.get("prof"); free = opt.get("free")
    cnt = [0]
    sel = opt.get("stamps")
    dflt = ("top", "end", "15", "31", "sc", "pv", "wo", "w9", "h1")
    jn = [0]
    def stamp(k):
        if opt.get("jit", 0) % 10 and opt["jit"] < 10 and str(k) in ("top", "2", "9", "14", "20", "30", "s2", "s9", "pv", "p2", "wo", "w5", "w12", "h1", "h2", "g1", "v3", "v12", "sc"):
            jn[0] += 1
            sk = a.label("JT")
            a(f"s_cselect_b32 s70, 1, 0\n s_mul_i32 s71, s6, {7 + 2*jn[0]}\n s_mul_i32 s72, s4, {13 + 6*jn[0]}\n s_add_u32 s71, s71, s72\n s_mul_i32 s72, s3, {29 + opt['jit']}\n s_xor_b32 s71, s71, s72")
            a(f"s_and_b32 s71, s71, 15\n s_cmp_lg_u32 s71, {jn[0] % 16}\n s_cbranch_scc1 {sk}\n s_sleep {(5, 17, 40)[jn[0] % 3]}\n{sk}:\n s_cmp_lg_u32 s70, 0")
        if prof == 1 and (k in ("top", "end") or str(k) in (sel or dflt)):
            i = cnt[0]; cnt[0] += 1
            assert i < 9
            a(f"s_mem{'real' if opt.get('trace') else ''}time s[{60+2*i}:{61+2*i}]")
    tk = {}
    fill = {}
    def F(i, x, cls=None):
        if cls is None: cls = 1 if (isinstance(x, str) and x.startswith("v_")) else 0
        fill.setdefault(i, []).append((cls, x if callable(x) else (lambda: a(x))))
    def D(i, key, text, cls=0): F(i, lambda: tk.__setitem__(key, a.ds(text)), cls)
    def W(i, key): F(i, lambda: a.wait_ds(tk[key]))
    def Z(i, lo, hi, val="0"):
        for r in range(lo, hi, 2): F(i, f"v_mov_b64 {vr(r, 2)}, {val}")
    def run(i):
        for cls, f in sorted(fill.pop(i, []), key=lambda e: e[0]): f()
    def mem_rd(i, tau): D(i, ("m", tau), f"ds_read_b128 {vr(MEMA + 4*tau)}, v{LS + 4*(tau % 4)} offset:{4096*(tau//4)}")
    nw = opt.get("nw", 0x60)
    val = opt.get("val", 1)
    def bar(i, bit=0):
        if not nw >> bit & 1: W(i, "wr")
        F(i, "s_barrier")
    def add(r): return f"v_add_f32 v{r}, v{r}, v{r+1}"
    def cvt(d, x, y): return f"v_cvt_pk_bf16_f32 v{d}, v{x}, v{y}"
    def smv(tau, t4):
        j = 2*tau + t4 % 2
        def emit():
            if t4 >= 2 and j >= 5: a.wait_ds(tk[("w", j)])
            a(f"{SM} {vr(ACV + 4*t4)}, {vr(MEMA + 4*tau)}, {ar(128 + j*8, 8) if t4 < 2 else vr(QBUF[j % 5], 8)}, {vIdx}")
            if pend:
                jp = pend.pop(); tk[("w", jp)] = a.ds(wq_half(jp, 1))
            if t4 >= 2 and j + 5 < 16:
                a.ds(wq_half(j + 5, 0)); pend.append(j + 5)
        return emit
    pend = []
    a(".p2align 6")
    for _ in range(opt.get("ala", 4) if A else opt.get("alv", 1)): a.lines.append("    s_nop 0")
    rot = opt.get("rot", 0)
    nfl = opt.get("na", 1) if A else opt.get("nv_", 1)
    if rot: a(f"{P}_head:\n s_waitcnt vmcnt({nfl})")
    a(f"{P}_loop:")
    if rot: a(f"v_max3_u32 {vT}, v24, v25, v26\n v_max_u32 {vT}, {vT}, v27")
    a.drop = tuple(opt.get("drop", ()))
    stamp("top")
    nk = opt.get("nk", 6)
    ke = [("k", tau, T) for tau in range(1, 4) for T in range(2)]
    seq = [(m, 0, T) for T in range(2) for m in "qk"] + [("q", tau, T) for tau in range(1, 4) for T in range(2)] + ke[:nk]
    seq += [("q", tau, T) for tau in range(4, 8) for T in range(2)] + ke[nk:] + [("k", tau, T) for tau in range(4, 8) for T in range(2)]
    qpos = {2*t + T: i for i, (m, t, T) in enumerate(seq) if m == "q"}
    qe = qpos[15]
    q3 = min(qe + opt.get("q3", 8), 31)
    lc = opt.get("lc", 10); b2 = lc + opt.get("lb", 5)
    lw = opt.get("lw", 1)
    assert b2 <= qpos[8] + 1
    lg = opt.get("lg", 2)
    lload = f"buffer_load_dwordx4 {vr(LS)}, {vLin}, {WS}, s50 offen sc1"
    F(lg, "s_mov_b64 exec, s[88:89]")
    F(lg, lambda: tk.__setitem__("L", a.vm(lload)))
    F(lg, "s_mov_b64 exec, -1")
    if opt.get("wm", 1) & 1:
        for u in range(1, 4): F(u - 1, f"v_add_u32 v{LS + 4*u}, s{80+u}, {vLin}")
    b1 = opt.get("b1", 3)
    bar(b1, 1)
    sp = opt.get("sp", 16)
    for u in range(1, 4): mem_rd(b1, u)
    def M_(i, key, text): F(i, lambda: tk.__setitem__(key, a.vm(text)))
    if A:
        xp = [int(p) for p in opt.get("xp", (3, 3, 3, 3, 5, 6, 7, 8, 9, 11, 12, 13, 14))]
        if opt.get("xm"):
            xp = xp[:4] + [p for p in range(b2 + opt["xm"], 31) if p not in (qe + 1, qe + 2, qe + 3)][:9]
        if lg > 3:
            x0 = lg + opt.get("xo", 1); xs_ = opt.get("xs_", 2)
            xp = [x0 + k // xs_ for k in range(4)]
            xp += [xp[-1] + 2 + k for k in range(9)]
        ta = opt.get("ta", 0)
        kf_, vf_, th = ["sc1", ""][opt.get("kp", 1)], ["sc1", ""][opt.get("vp", 1)], opt.get("th", 0)
        F(4, f"v_lshlrev_b32 {vJunk}, {3 if th else 2}, {vLin}")
        if opt.get("tl3", 0): F(4, f"v_writelane_b32 {vJunk}, s79, 63")
        np_ = opt.get("nopf", 0)
        if not np_ & 1:
            for f in range(4): M_(xp[f], "vx", vx_load(f, vf_))
        tch = f"buffer_load_dword {vJunk}, {vJunk}, {WS}, s56 offen {vf_}"
        if not np_ & 2: F(xp[4], f"s_mov_b32 exec_hi, 0\n {tch}\n s_mov_b32 exec_hi, -1" if th else tch)
        if not np_ & 4:
            for f in range(8): F(xp[5 + f], kx_load(f, ar(NK + 4*f), kf_))
        F(sp, f"buffer_load_dwordx2 {vr(FB, 2)}, off, {WS}, s55 sc1")
        kvst = [f"buffer_store_dwordx4 {vr(120 + 4*k)}, {vLin}, {WS}, s53 offen offset:{2048*k} sc1" for k in range(2)]
        flst = f"s_mov_b64 exec, 1\n buffer_store_dword {vT}, off, {WS}, s54 sc1\n s_mov_b64 exec, -1"
        ks = opt.get("ks", 1)
        if opt.get("nokvm"): kvst = ["s_nop 0", "s_nop 0"]; flst = "s_nop 0"
        sp = max(sp, b2)
        F(sp + 1, f"v_mov_b32 {vT}, s80")
        if not ks:
            for k in range(2): F(sp + 4 + k*opt.get("k2", 1), kvst[k])
            F(sp + 2, flst)
    else:
        nv0, nv1, nv2 = opt.get("nv0", 4), opt.get("nv1", 0), opt.get("nv2", 1)
        vs = [(tau, t4) for tau in range(6) for t4 in (2, 0, 3, 1)] + [(6, 2), (6, 0), (6, 3), (7, 2), (7, 3), (7, 0), (6, 1), (7, 1)]
        for k in range(nv0): F(3, smv(*vs.pop(0)))
        for k in range(nv1): F(lc, smv(*vs.pop(0)))
        for k in range(opt.get("nvb", 0)): F(b2, smv(*vs.pop(0)))
        for k in range(nv2): F(qpos[10] - 1, smv(*vs.pop(0)))
        for k in range(opt.get("nv3", 0)): F(q3, smv(*vs.pop(0)))
    F(3, lambda: a.wait_ds(tk[("m", 1)]), 0.5); W(5, ("m", 3))
    F(5, lambda: busy(a, opt.get("xe", 0)))
    lwr = f"ds_write_b128 {vMem0}, {vr(LS)} offset:4096"
    if lw:
        F(lc, lambda: a.wait_vm(tk["L"]))
        D(lc, "wr", lwr)
        F(lc+1, f"v_max3_u32 {vT}, v{LS}, v{LS+1}, v{LS+2}")
        F(lc+2, f"v_max_u32 {vT}, {vT}, v{LS+3}")
        F(lc+3, f"v_cmp_eq_u32 vcc, -1, {'v0' if free else vT}")
    else:
        F(lc-1, f"v_max3_u32 {vT}, v{LS}, v{LS+1}, v{LS+2}", 2)
        F(lc-1, f"v_max_u32 {vT}, {vT}, v{LS+3}", 2)
        D(lc, "wr", lwr)
        F(lc, f"v_cmp_eq_u32 vcc, -1, {'v0' if free else vT}")
        if not A: F(q3 - 1, "s_waitcnt vmcnt(0)")
    assert lc + 3 < b2 or free
    assert lc + 3 < min(b2, qpos[8] - 1)
    F(min(b2, qpos[8] - 1), lambda: (tk.__setitem__("Ln", a.vm_n - tk["L"]), a(f"s_cbranch_vccnz {P}_lretry\n{P}_lok:")))
    bar(b2, 2); mem_rd(b2, 5); mem_rd(b2+1, 6); mem_rd(b2+1, 7)
    pa = opt.get("pa", 3)
    if val:
        pp, pq = opt.get("pp", 20), opt.get("pq", 2)
        assert lc + 2 < pp and pp + pq < qe + 3
        pe_ = opt.get("pe_", 0)
        if A and pe_:
            for k, off in enumerate((L_OB, L_VM)): D(opt.get("pe%d" % k, 3), "_", f"ds_write_b128 {vMem0}, v[120:123] offset:{off}")
            D(pp, "_", f"ds_read_b128 v[120:123], {vKa}")
        elif A and pa:
            F(pp - 2, "v_mov_b64 v[24:25], -1"); F(pp - 1, "v_mov_b64 v[26:27], -1")
            if pa & 1: D(pp, "_", f"ds_write_b128 {vMem0}, v[24:27] offset:{L_OB}")
            if pa & 2 and not opt.get("vw", 0): D(pp + pq, "_", f"ds_write_b128 {vMem0}, v[24:27] offset:{L_VM}")
        if not A:
            pv_ = opt.get("pv_", 6)
            if not pa & 1: D(pv_, "_", f"ds_write_b128 {vMem0}, v[16:19] offset:{L_OB - 2048}")
            if not pa & 2: D(pv_ + 2, "_", f"ds_write_b128 {vMem0}, v[16:19] offset:{L_VM - 2048}")
    W(qpos[10] - 1, ("m", 5)); W(qpos[12] - 1, ("m", 7))
    F(28, "s_add_u32 s49, s48, s86\n s_add_u32 s50, s49, 0x1000")
    F(29, "s_mov_b64 s[88:89], -1")
    qs = opt.get("qs", 0)
    F(qe+1, add(56)); F(qe+1, add(58)); F(qe+2, add(60)); F(qe+2, add(62))
    if qs:
        for r in (56, 58): F(qe+1, f"v_mul_f32 v{r}, s42, v{r}")
        for r in (60, 62): F(qe+2, f"v_mul_f32 v{r}, s42, v{r}")
    F(qe+2, cvt(56, 56, 60)); F(qe+2, cvt(57, 58, 62))
    D(qe+3, "wr", f"ds_write2_b32 {vQw}, v56, v57 offset0:0 offset1:4")
    bar(q3, 3)
    if A:
        for t in range(4): D(min(q3 + (t + 1)//2, 31), ("q", t), f"ds_read_b128 {vr(24 + 4*t)}, {vQr} offset:{t*QS}")
    if not A: F(0, {0: "s_nop 0\n s_nop 0", 1: "s_memrealtime s[60:61]", 2: "s_memtime s[60:61]"}[opt.get("per", 0)])
    cl_ = "a" if A else "v"
    def pad(key, slots):
        for k in range(opt.get(key + cl_, 0)): F(slots[k % len(slots)], "s_nop 0")
    pad("p1", (0, 1, 0, 1, 4, 6, 8) if A else (0, 1, 4, 6, 7, 8, 9))
    pad("p2", (19, 21, 23, 19, 21, 23, 14) if A else (18, 20, 21, 22, 23, 14, 20))
    pad("p3", (27, 30, 27, 30, 29, 27, 30))
    tk["wr"] = a.ds(f"ds_write_b128 {vMem0}, {vr(MEMA)}")
    if rot:
        a(f"v_cmp_eq_u32 vcc, -1, {vT}")
        assert lg >= 2
        F(1, f"s_cbranch_vccnz {P}_gretry", -1)
    for i, (m, tau, T) in enumerate(seq):
        j = 2*tau + T
        B = vr(128 + j*8, 8) if m == "q" else ar(j*8, 8)
        a(f"{SM} {vr((ACQ if m == 'q' else ACK) + 4*T)}, {vr(MEMA + 4*tau)}, {B}, {vIdx}")
        run(i)
        stamp(i)
    assert not fill, fill.keys()
    kfold = [add(64), add(66), add(68), add(70), cvt(64, 64, 68), cvt(65, 66, 70)]
    kwr = f"ds_write2_b32 {vQw}, v64, v65 offset0:128 offset1:132"
    inbox = f"buffer_load_dwordx4 v[28:31], {vLin}, {WS}, s47 offen sc1\n buffer_load_dwordx4 v[32:35], {vLin}, {WS}, s47 offen offset:1024 sc1"
    if A:
        QB, KB, X0, X1, M, t0 = 24, 40, 56, 60, 120, 124
        PX, PM, PXB, PMB, VM, O, Lr, PKO = 48, 68, 52, 64, 24, 28, 44, 120
        WA, OA, PK = [56, 60, 28, 32, 24, 36, 40, 44], 120, [64, 68]
        xl = []
        tq = [tk[("q", t)] for t in range(4)]
        kf = opt.get("kf", 1)
        if kf:
            for x in kfold: a(x)
            tk["wr"] = a.ds(kwr)
        else:
            a(kfold[0]); a(kfold[1])
            for x in kfold[2:]: F(0, x)
            D(1, "wr", kwr)
        b4 = opt.get("b4", 4)
        ml = opt.get("ml", 0)
        if not ml:
            bar(b4, 4)
            for t in range(4): D(min(b4 + (t + 1)//2, 7), ("k", t), f"ds_read_b128 {vr(KB + 4*t)}, {vQr} offset:{t*QS + 512}")
        if ks:
            F(1, kvst[1]); F(3, kvst[0]); F(7, flst)
        F(2, "v_mov_b32 v68, 0\n v_mov_b32 v70, 0")
        F(0, "v_mov_b32 v65, 0\n v_mov_b32 v67, 0")
        F(6, f"v_max3_f32 v{t0}, v{X0}, v{X0+1}, v{X0+2}")
        for p in (7, 8, 9, 10, 11, 11)[:opt.get("x1", 6)]:
            if xl: F(p, xl.pop(0))
        awr = [f"ds_read_b128 {vr(KX + 4*k)}, {vMem0} offset:{L_AW + k*2048}" for k in range(8)]
        aw = opt.get("aw", 3)
        if not aw:
            for p in (8, 9, 10, 11): F(p, awr.pop(0))
        chain = [f"v_max3_f32 v{t0+1}, v{X0+3}, v{X1}, v{X1+1}", f"v_max3_f32 v{t0}, v{t0}, v{X1+2}, v{X1+3}",
                 f"v_max_f32 v{t0+2}, v{t0}, v{t0+1}", f"v_max_f32 v{t0+3}, v{t0}, v{t0+1}"]
        pad("p4", (8, 8, 6, 9, 10, 3, 1))
        ex = f"s_cmp_eq_u32 s6, 63\n s_cbranch_scc1 L_chain_end"
        if not ml:
            F(9, chain[0]); F(9, chain[1]); F(10, chain[2]); F(10, chain[3]); chain = []
            F(11, ex)
            for t in range(4): W(7 + t, ("k", t))
        if not opt.get("nopf", 0) & 1: F(5, lambda: a.wait_vm(tk["vx"]))
        for t in range(1, 4): F(t - 1, lambda t=t: a.wait_ds(tq[t]))
        def sc(n):
            t = n % 4
            d, Ao, Bo = ((X0, KX + 4*t, QB + 4*t), (X1, KX + 16 + 4*t, QB + 4*t), (M, KB + 4*t, QB + 4*t))[n // 4]
            return f"{MF} {vr(d)}, {vr(Ao)}, {vr(Bo)}, {vr(d) if t else '0'}"
        for n in range(8 if ml else 12):
            if n == 0: a.wait_ds(tq[0])
            a(sc(n))
            run(n)
            stamp("s%d" % n)
        stamp("sc")
        regs = [X0, X0+1, X0+2, X0+3, X1, X1+1, X1+2, X1+3]
        if ml: PX, PXB = 72, 76
        sm = chain + [f"v_permlane16_swap_b32 v{t0+2}, v{t0+3}", f"v_max_f32 v{t0}, v{t0+2}, v{t0+3}", f"v_max_f32 v{t0+1}, v{t0+2}, v{t0+3}"]
        if not ml: sm += ["v_mov_b64 v[40:41], 0", "v_mov_b64 v[42:43], 0"]
        sm += [f"v_permlane32_swap_b32 v{t0}, v{t0+1}", f"v_max3_f32 v{t0}, v{t0}, v{t0+1}, {vInf}"]
        if not qs: sm.append(f"v_mul_f32 v{t0}, s42, v{t0}")
        def arg(r): return f"v_sub_f32 v{r}, v{r}, v{t0}" if qs else f"v_fma_f32 v{r}, v{r}, s42, -v{t0}"
        sm += [arg(r) for r in regs]
        for k, r in enumerate(regs):
            sm.append(f"v_exp_f32 v{r}, v{r}")
            if k >= 2 and k % 2 == 0: sm.append(cvt(PX + k//2 - 1, regs[k-2], regs[k-1]))
        mb, m0 = opt.get("mb", 0), opt.get("m0", 12)
        for n, x in enumerate(sm):
            if ml and n == mb:
                a.wait_ds(tk["wr"]); a("s_barrier"); a(ex)
                tkk = [a.ds(f"ds_read_b128 {vr(KB + 4*t)}, {vQr} offset:{t*QS + 512}") for t in range(4)]
            if ml and n >= m0 and (n - m0) % 2 == 0 and (n - m0) // 2 < 4:
                t = (n - m0) // 2
                a.wait_ds(tkk[min(t + 1, 3) if t == 0 else 3]); a(sc(8 + t))
            a(x)
        stamp("pv")
        busy(a, opt.get("xs", 0))
        a(arg(M))
        a(cvt(PX + 3, regs[6], regs[7]))
        a(arg(M+1)); a(f"v_exp_f32 v{M+2}, v{M}")
        b5 = opt.get("b5", 3)
        F(b5, "s_barrier")
        D(b5, "vm", f"ds_read_b128 {vr(VM)}, {vMem0} offset:{L_VM}")
        def sw(d, x): return f"v_mov_b32_dpp v{d}, v{x} quad_perm:[2,3,0,1] row_mask:0xf bank_mask:0xf"
        mpack = [cvt(64, M+2, M+3), cvt(69, M+2, M+3), sw(66, 64), sw(71, 64)]
        F(0, sw(PXB, PX)); F(0, sw(PXB+1, PX+1)); F(1, sw(PXB+2, PX+2)); F(1, sw(PXB+3, PX+3))
        F(2, f"v_exp_f32 v{M+3}, v{M+1}"); F(2, f"v_max_f32 v{t0+1}, v{M}, v{M+1}")
        F(3, f"v_cmp_lt_f32 s[90:91], s78, v{t0+1}"); F(3, mpack[0]); F(3, mpack[1])
        F(4, mpack[2]); F(4, mpack[3])
        F(4, f"s_cmp_lg_u64 s[90:91], 0\n s_cbranch_scc1 {P}_mfix\n{P}_mok:", 2)
        if not aw:
            for p in (0, 1, 6, 7): F(p, awr.pop(0))
        pv = [f"{MF} {vr(Lr)}, {vr(ONES)}, {vr(PX)}, 0"]
        pv += [f"{MF} {vr(O + 4*(f % 2))}, {vr(VX + 4*f)}, {vr((PX, PXB)[f//2])}, {vr(O + 4*(f % 2)) if f//2 else '0'}" for f in range(4)]
        pv += [f"{MF16} {vr(Lr)}, {vr(ONES, 2)}, v[64:65], {vr(Lr)}"]
        pv += [f"{MF} {vr(O + 4*T)}, {vr(VM)}, {vr(64 + 4*T)}, {vr(O + 4*T)}" for T in range(2)]
        Z(5, 56, 64)
        F(5, lambda: a.wait_ds(tk["vm"]), 2)
        if val:
            F(6, f"v_max3_u32 {vT}, v{VM}, v{VM+1}, v{VM+2}"); F(6, f"v_max_u32 {vT}, {vT}, v{VM+3}")
            F(7, f"v_cmp_eq_u32 vcc, -1, {vT}")
        F(7, f"v_add_f32_dpp v{t0}, v{Lr}, v{Lr} quad_perm:[2,3,0,1] row_mask:0xf bank_mask:0xf")
        F(7, f"v_rcp_f32 v{t0}, v{t0}")
        if val: F(7, f"s_cbranch_vccnz {P}_vredo\n{P}_vok:", 2)
        for n, x in enumerate(pv):
            a(x); run(n)
        for r in range(4): a(f"v_mul_f32 v{O+r}, v{O+r}, v{t0}")
        stamp("p1")
        for r in (4, 6): a(f"v_pk_mul_f32 {vr(O + r, 2)}, {vr(O + r, 2)}, {vr(t0, 2)} op_sel_hi:[1,0]")
        for i in range(4): a(cvt(PKO + i, O + i, O + 4 + i))
        if opt.get("tst"): a("s_barrier\n s_nop 15\n s_nop 15\n s_nop 15")
        a(f"ds_write_b128 {vOw}, {vr(PKO)}")
        if not nw >> 6 & 1: (zero(a, 24, 40), zero(a, 40 if opt.get('ml', 0) else 44, 48))
        stamp("p2")
        wo_reg = lambda j: ar(128 + j*8, 8) if j < 12 else vr(KX + (j - 12)*8, 8)
    else:
        WB = [88, 96, 104, 112, 120, 16, 56, 64]
        WA, OA, PK = [28, 32, 36, 40, 44, 48, 52, 72], 76, [84, 24]
        def woh(j, h): return f"ds_read_b128 {vr(WB[j % 8] + 4*h)}, {vW} offset:{j*2048 + 1024*h}"
        nv = len(vs); sh = 32 - nv
        if opt.get("fs", 0):
            for n, x in enumerate(kfold): F(n, x)
            D(6, "wr", kwr)
        else:
            F(0, kfold[0]); F(0, kfold[1])
            for x in kfold[2:]: F(1, x)
            D(2, "wr", kwr)
        v4 = opt.get("v4", 8)
        bar(v4, 4)
        wl = [(k // 2, k % 2) for k in range(16)]
        if opt.get("pw", 1):
            pos = {2*t + t4 % 2: n for n, (t, t4) in enumerate(vs) if t4 >= 2}
            free_at = {5: 0, 6: 3, 1: pos[11], 2: pos[12], 3: pos[13], 4: pos[14]}
            slot = pos[10] + 2
            for jj in (5, 6, 1, 2, 3, 4):
                for hh in range(2):
                    slot = max(slot, free_at[jj])
                    if slot < nv - 1:
                        D(slot, "_", woh(jj, hh)); wl.remove((jj, hh)); slot += 1
        pad("p4", (4, 6, 10, 12, 14, 16, 18))
        zl = [(r, "0") for r in range(28, 52, 2)]
        for i in range(3, nv - 2):
            if opt.get("zv", 0) and zl and i + sh > (zl[0][0] - MEMA) // 4 * 4 + 3:
                r, val = zl.pop(0); F(i, f"v_mov_b64 {vr(r, 2)}, {val}")
        F(nv-3, add(80)); F(nv-3, add(82)); F(nv-2, add(84)); F(nv-2, add(86))
        for x in (cvt(KV+6, 80, 82), cvt(KV+7, 84, 86), add(72), add(74), cvt(KV+4, 72, 74)): F(nv-1, x)
        for n, (tau, t4) in enumerate(vs):
            if n + 1 < nv and vs[n+1][1] >= 2 and 2*vs[n+1][0] + vs[n+1][1] % 2 >= 5: W(n, ("w", 2*vs[n+1][0] + vs[n+1][1] % 2))
            smv(tau, t4)(); run(n); stamp("v%d" % n)
        assert not fill and not pend
        stamp("sc")
        busy(a, opt.get("xw", 0))
        for x in (add(76), add(78), cvt(KV+5, 76, 78)): a(x)
        if opt.get("tst"): a(f"s_cmp_eq_u32 s6, 63\n s_cbranch_scc1 L_chain_done\n s_barrier\n s_nop 15\n s_nop 15\n s_nop 15")
        tk["wr"] = a.ds(f"ds_write_b128 {vMem0}, {vr(KV+4)} offset:{L_VM - 2048}")
        a(f"s_cmp_eq_u32 s6, 63\n s_cbranch_scc1 L_chain_done")
        if nw >> 5 & 1 and not opt.get("tst"): a("s_barrier")
        if not nw >> 5 & 1:
            a.wait_ds(tk["wr"]); a("s_barrier")
        stamp("pv")
        zl += [(52, "0"), (54, "0"), (72, "0"), (74, "0")]
        for n, (r, v_) in enumerate(zl):
            a(f"v_mov_b64 {vr(r, 2)}, {v_}")
            if n >= 2 and wl: a(woh(*wl.pop(0)))
        for x in wl: a(woh(*x))
        busy(a, opt.get("bv", 0))
        wo_reg = lambda j: vr(WB[j % 8], 8)
    a("s_nop 0" if (A and opt.get("tst")) else "s_barrier" if (nw >> 6 & 1) else "s_waitcnt lgkmcnt(0)\n s_barrier")
    to = [a.ds(f"ds_read_b128 {vr(OA + 4*t)}, {vOr} offset:{t*1024}") for t in range(2)]
    if A and nw >> 6 & 1: (zero(a, 24, 40), zero(a, 40 if opt.get('ml', 0) else 44, 48))
    busy(a, opt.get("bo2", 0))
    stamp("wo")
    def wf(T, h): return add(WA[T] + 2*h)
    def wpk(T, h): return cvt(PK[T//4] + (T % 4)//2 + 2*h, WA[T] + 2*h, WA[T+1] + 2*h)
    def tag(T, h):
        r = PK[T//4] + (T % 4)//2 + 2*h
        return f"v_and_or_b32 v{r}, v{r}, -2, s97"
    def wst(hf): return f"buffer_store_dwordx4 {vr(PK[hf])}, {vPst}, {WS}, s{45+hf} offen {st}"
    post = {3: [wf(0, 0)], 4: [wf(0, 1)], 5: [wf(1, 0), wf(1, 1)], 6: [wpk(0, 0), wpk(0, 1)],
            7: [wf(2, 0), wf(2, 1)], 8: [tag(0, 0), tag(0, 1)], 9: [wf(3, 0), wf(3, 1), wpk(2, 0), wpk(2, 1), tag(2, 0), tag(2, 1)],
            11: [wf(4, 0)], 12: [wf(4, 1)], 13: [wf(5, 0), wf(5, 1)], 14: [wpk(4, 0), wpk(4, 1)], 15: [wf(6, 0), wf(6, 1), tag(4, 0), tag(4, 1)]}
    for j, xs in post.items():
        for x in xs: F(j, x)
    pad("p5", (1, 2, 1, 3, 4, 2, 0))
    pad("p6", (10, 12, 10, 13, 14, 12, 11))
    F(9, wst(0), 2)
    if val:
        F(5, f"v_cmp_u_f32 vcc, v{WA[0]}, v{WA[0]+2}")
        F(8, f"s_cbranch_vccnz {P}_oredo\n{P}_ook:")
    F(0, lambda: a.wait_ds(to[1]))
    if A and aw:
        for k, x in enumerate(awr): D(k + aw - 1, "aw", x)
        W(11, "aw")
    if not A:
        for j in range(8, 16):
            p0, p1 = [(j - 8 + (j - 8)//2, j - 8 + (j - 7)//2), {8: (0, 1), 9: (2, 3), 10: (4, 5), 11: (6, 7), 12: (8, 8), 13: (9, 9), 14: (10, 10), 15: (11, 11)}[j]][opt.get("vs", 0)]
            D(p0, "_", woh(j, 0), 3 if p0 == 9 else 0); D(p1, ("o", j), woh(j, 1), 3 if p1 == 9 else 0); W(j - 1, ("o", j))
    a.wait_ds(to[0])
    a(f"{P}_wo:")
    for j in range(16):
        T, t = j // 2, j % 2
        a(f"{SM} {vr(WA[T])}, {vr(OA + 4*t)}, {wo_reg(j)}, {vIdx}")
        run(j)
        stamp("w%d" % j)
    ein = opt.get("ein", 0) if A else 0
    if ein == 1: a(inbox)
    for x in (wf(7, 0), wf(7, 1), wpk(6, 0), wpk(6, 1), tag(6, 0), tag(6, 1)): a(x)
    if ein == 2: a(inbox)
    a(wst(1))
    a.drop = ()
    stamp("h1")
    c1, c2 = opt.get("c1", 2) if A else opt.get("c1v", 3), opt.get("c2", 2) if A else opt.get("c2v", 2)
    RD = LS
    nsp = opt.get("nsp", 0) >> (0 if A else 1) & 1
    work = [lambda: (zero(a, 28, 36, "s[98:99]"), zero(a, 36, 38, "-1"))]
    if A:
        work += [lambda: (zero(a, 120, 124, "-1") if opt.get("pe_") else a(f"ds_read_b128 v[120:123], {vKa}"),
                          a(f"ds_read_b128 v[124:127], {vMem0} offset:{L_VM}"), zero(a, 24, 28, "-1"),
                          a(f"ds_write_b128 {vMem0}, v[24:27] offset:{L_VM}") if opt.get("vw", 0) else None),
                 lambda: zero(a, ACQ, ACQ + 8), lambda: zero(a, ACK, ACK + 8)]
        work += [lambda: busy(a, 2)] * 4
    else:
        for j in range(5): work.append(lambda j=j: (a(wq_half(j, 0)), a(wq_half(j, 1)), zero(a, ACQ + 4*j, ACQ + 4*j + 4)))
        work += [lambda: (zero(a, 24, 28, "-1"), zero(a, ACQ + 20, ACQ + 24)), lambda: (zero(a, ACQ + 24, ACQ + 32), zero(a, 16, 20, "-1"))]
    wm = opt.get("wm", 1)
    gath = f"buffer_load_dwordx4 v[24:27], {vLin}, {WS}, s49 offen sc1"
    if wm & 1:
        SETS = (28, 48)
        def req(b): return f"buffer_load_dwordx4 {vr(b)}, {vLin}, {WS}, s47 offen sc1\n buffer_load_dwordx4 {vr(b+4)}, {vLin}, {WS}, s47 offen offset:1024 sc1"
        def exam(b):
            a(f"{MF} {vr(RD)}, {vr(SEL)}, {vr(b)}, 0")
            a(f"v_bitop3_b32 v44, v{b}, v{b+1}, s98 bitop3:0xbd\n v_bitop3_b32 v45, v{b+2}, v{b+3}, s98 bitop3:0xbd")
            a(f"{MF} {vr(RD)}, {vr(SEL)}, {vr(b+4)}, {vr(RD)}")
            a(f"v_bitop3_b32 v46, v{b+4}, v{b+5}, s98 bitop3:0xbd\n v_bitop3_b32 v47, v{b+6}, v{b+7}, s98 bitop3:0xbd")
            a("v_or3_b32 v44, v44, v45, v46\n v_bitop3_b32 v44, v44, v47, 1 bitop3:0xa8\n v_cmp_ne_u32 vcc, 0, v44")
        def fold4():
            for k in range(2): a(f"v_add_f32_dpp v{38+k}, v{RD+k}, v{RD+k} row_ror:4 row_mask:0xf bank_mask:0x5")
            for k in range(2): a(f"v_add_f32_dpp v{38+k}, v{RD+2+k}, v{RD+2+k} row_ror:4 row_mask:0xf bank_mask:0xa")
        work[0] = lambda: zero(a, 36, 38, "-1")
        for w_ in (work[:4] if A else work): w_()
        w0, w1, w2 = (opt.get("a0", 2), opt.get("a1", 6), opt.get("a2", 2)) if A else (opt.get("v0", 8), opt.get("v1", 8), opt.get("v2", 4))
        if not ein: busy(a, w0); a(req(SETS[0]))
        busy(a, w1); a(req(SETS[1]))
        if A:
            next_seg(a, P)
            a("s_waitcnt lgkmcnt(0)")
        a("s_mov_b32 s96, 0")
        busy(a, w2)
        for k in range(opt.get("p7" + cl_, 0)): a("s_nop 0")
        a(f"s_waitcnt vmcnt({3 if ein else 2})\n{P}_r10:")
        exam(SETS[0])
        fold4()
        a(f"s_cbranch_vccnz {P}_r11\n{P}_r1ok:")
        stamp("r1")
    else:
        pm = opt.get("pe", 0x90) if A else opt.get("pl", 0x100)
        for k in range(9):
            if k == 8: busy(a, opt.get("de", 1) if A else opt.get("dl", 8))
            if pm >> k & 1: a(inbox)
            if k < 8: work[k]()
        if A: a("s_waitcnt lgkmcnt(0)")
        a(f"s_mov_b32 s96, 0\n s_cmp_lg_u32 s97, 0\n s_cbranch_scc1 {P}_r11")
        for ph in range(2):
            a(f"{P}_r1{ph}:")
            if free == 1: a("s_waitcnt vmcnt(0)")
            op3 = ("v_or3_b32 {0}, {1}, {2}, {3}", "v_bitop3_b32 {0}, {1}, {2}, {3} bitop3:0x80")[ph]
            for k in range(c1):
                a(op3.format("v45", "v28", "v29", "v30")); a(op3.format("v46", "v31", "v32", "v33")); a(op3.format("v45", "v45", "v34", "v35"))
                a(f"""
                v_bitop3_b32 v45, v45, v46, 1 bitop3:{('0xa8', '0x80')[ph]}
                v_cmp_ne_u32 vcc, {'v45' if free else ph}, v45
                """)
                if not nsp: a(f"{MF} {vr(RD)}, {vr(SEL)}, v[28:31], 0\n {MF} {vr(RD)}, {vr(SEL)}, v[32:35], {vr(RD)}")
                a(f"s_cbranch_vccz {P}_r1ok")
            a(f"s_mov_b64 exec, vcc\n {inbox}\n s_mov_b64 exec, -1")
            if prof: a("s_add_u32 s30, s30, 1")
            G.spin_tail(a, f"{P}_r1{ph}")
        a(f"{P}_r1ok:")
        stamp("r1")
        gath = f"buffer_load_dwordx4 v[24:27], {vLin}, {WS}, s49 offen sc1"
        if nsp: a(f"{MF} {vr(RD)}, {vr(SEL)}, v[28:31], 0\n {MF} {vr(RD)}, {vr(SEL)}, v[32:35], {vr(RD)}")
        else: a("s_nop 5")
    assert wm & 1
    for k in range(2): a(f"v_add_f32_dpp v{38+k}, v{38+k}, v{38+k} row_ror:8 row_mask:0xf bank_mask:0xf")
    a("s_mov_b64 exec, s[58:59]")
    a(cvt(38, 38, 39))
    a(f"buffer_store_dword v38, {vPub}, {WS}, s48 offen {st}")
    stamp("h2")
    a(f"buffer_store_dword v36, {vPub}, {WS}, s51 offen {st}\n s_mov_b64 exec, -1")
    if not lw: zero(a, LS, LS + 4, "-1")
    lr = 0 if lw else opt.get("lr", 1) if A else opt.get("lrv", 1)
    book = lambda: (a(f"s_mov_b32 s80, s6\n s_add_u32 s6, s6, 1\n s_add_u32 s53, s53, 0x20000\n s_mov_b32 s96, 0\n v_mov_b32 {vT}, 0"), ring_next(a))
    if A:
        a("s_waitcnt vmcnt(10)")
        items = [lambda k=k: [a(f"v_accvgpr_read_b32 v{KX + r}, a{NK + r}") for r in range(8*k, 8*k + 8)] for k in range(4)]
        items += [book] + ([] if wm & 1 else [lambda: addr_prep(a)]) + [lambda: busy(a, 2)] * opt.get("gb", 0)
        ga = opt.get("ga", 0x24)
        for k in range(len(items) + 1):
            if ga >> k & 1: a(gath)
            if k < len(items): items[k]()
        assert 0 < ga < 2 << len(items)
    else:
        busy(a, opt.get("gl", 0))
        a(gath)
        if not wm & 1: addr_prep(a)
        busy(a, opt.get("gv", 5))
        if opt.get("g2", 3) & 2: a(gath)
        book()
    a("s_waitcnt lgkmcnt(0)")
    if not A: a("s_sub_u32 s7, s6, 1\n s_mov_b32 m0, s7\n v_writelane_b32 v11, s60, m0" if opt.get("per") else "s_nop 0\n s_nop 0\n v_mov_b32_e64 v11, 0")
    if lr & 2: a(lload)
    for k in range(opt.get("p8" + cl_, 0)): a("s_nop 0")
    stamp("g1")
    if rot:
        assert prof != 1
        busy(a, opt.get("a3", 4) if A else opt.get("v3", 4))
        a(f"s_branch {P}_head\n{P}_gretry:")
        a(f"s_mov_b64 exec, vcc\n {gath}\n s_mov_b64 exec, -1")
        if prof: a("s_add_u32 s31, s31, 1")
        a("s_nop 7")
        zero(a, ACQ, ACQ + 4); zero(a, ACK, ACK + 4)
        G.spin_tail(a, f"{P}_head")
    else:
        if wm & 2:
            c2 = 1
            assert opt.get("g2", 3) == 3
            busy(a, opt.get("a3", 0) if A else opt.get("v3", 2))
        a(f"{P}_r2:")
        if wm & 2: a("s_waitcnt vmcnt(1)")
        if free == 1: a("s_waitcnt vmcnt(0)")
        for k in range(c2):
            a(f"v_max3_u32 {vT}, v24, v25, v26\n v_max_u32 {vT}, {vT}, v27\n v_cmp_eq_u32 vcc, -1, {'v0' if free else vT}")
            a(f"s_cbranch_vccz {P}_prof" if prof == 1 else f"s_cbranch_vccz {P}_loop")
        a(f"s_mov_b64 exec, vcc\n {gath}\n s_mov_b64 exec, -1")
        if lr & 1: a(lload)
        if prof: a("s_add_u32 s31, s31, 1")
        G.spin_tail(a, f"{P}_r2")
    if prof == 1:
        a(f"{P}_prof:")
        stamp("end")
        a("s_waitcnt lgkmcnt(0)")
        if opt.get("trace"):
            assert cnt[0] <= 8
            a("s_lshl_b32 s7, s3, 6\n s_add_u32 s7, s7, s6\n s_lshl_b32 s7, s7, 5\n v_lshrrev_b32 v46, 2, v0\n v_add_u32 v46, s7, v46")
            for k in range(cnt[0]): a(f"v_writelane_b32 v45, s{60+2*k}, {k}")
            a(f"s_mov_b64 exec, 0xff\n ds_write_b32 v46, v45\n s_mov_b64 exec, -1\n s_branch {P}_loop")
        a(f"s_cmp_lt_u32 s6, 5\n s_cbranch_scc1 {P}_loop")
        for k in range(cnt[0] - 1): a(f"s_sub_u32 s7, s{62+2*k}, s{60+2*k}\n s_add_u32 s{20+k}, s{20+k}, s7")
        a(f"s_branch {P}_loop")
    if wm & 1:
        a(f"{P}_r11:\n s_mov_b64 exec, vcc\n {req(SETS[0])}\n s_mov_b64 exec, -1")
        if prof: a("s_add_u32 s30, s30, 1")
        a("s_waitcnt vmcnt(2)")
        exam(SETS[1])
        fold4()
        a(f"s_cbranch_vccz {P}_r1ok\n s_mov_b64 exec, vcc\n {req(SETS[1])}\n s_mov_b64 exec, -1\n s_waitcnt vmcnt(2)")
        if prof: a("s_add_u32 s30, s30, 1")
        G.spin_tail(a, f"{P}_r10")
    lchk = f"v_max3_u32 {vT}, v{LS}, v{LS+1}, v{LS+2}\n v_max_u32 {vT}, {vT}, v{LS+3}\n v_cmp_eq_u32 vcc, -1, {vT}\n {lwr}\n s_waitcnt lgkmcnt(0)\n s_cbranch_vccz {P}_lok"
    a(f"{P}_lretry:")
    if not lw:
        if prof: a("s_add_u32 s25, s25, 100")
        a(f"s_waitcnt vmcnt({tk['Ln']})"); a(lchk)
    a(f"{P}_lr2:")
    a(f"s_mov_b64 exec, vcc\n {lload}\n s_mov_b64 exec, -1\n s_waitcnt vmcnt(0)")
    if prof: a("s_add_u32 s29, s29, 1")
    a(lchk)
    G.spin_tail(a, f"{P}_lr2")
    if A: fb_wait(a, P, prof)
    if A:
        q = "quad_perm:[2,3,0,1] row_mask:0xf bank_mask:0xf"
        a(f"""
        {P}_mfix:
        v_max_f32 v{t0+1}, 0, v{t0+1}
        v_mov_b32 v{t0+2}, v{t0+1}
        v_permlane16_swap_b32 v{t0+1}, v{t0+2}
        v_max_f32 v{t0+1}, v{t0+1}, v{t0+2}
        v_mov_b32 v{t0+2}, v{t0+1}
        v_permlane32_swap_b32 v{t0+1}, v{t0+2}
        v_max_f32 v{t0+1}, v{t0+1}, v{t0+2}
        v_max_f32_dpp v{t0+1}, v{t0+1}, v{t0+1} {q}
        v_sub_f32 v{M}, v{M}, v{t0+1}
        v_sub_f32 v{M+1}, v{M+1}, v{t0+1}
        v_sub_f32 v{t0+1}, 0, v{t0+1}
        v_exp_f32 v{M+2}, v{M}
        v_exp_f32 v{M+3}, v{M+1}
        v_exp_f32 v{t0+1}, v{t0+1}
        """)
        for x in mpack: a(x)
        for k, r in enumerate(regs): a(f"v_mul_f32 v{r}, v{r}, v{t0+1}")
        for k in range(4): a(cvt(PX + k, regs[2*k], regs[2*k+1]))
        for k in range(4): a(sw(PXB + k, PX + k))
        for x in pv[:5]: a(x)
        if prof: a("s_add_u32 s26, s26, 64")
        a.fence()
        a(f"s_branch {P}_mok")
    if val:
        def missing(b, n):
            a(f"v_max3_u32 {vT}, v{b}, v{b+1}, v{b+2}")
            for r in range(b + 3, b + n): a(f"v_max_u32 {vT}, {vT}, v{r}")
            a(f"v_cmp_eq_u32 vcc, -1, {vT}")
        if A:
            a(f"{P}_vredo:\n s_mov_b32 s96, 0\n{P}_vr1:\n ds_read_b128 {vr(VM)}, {vMem0} offset:{L_VM}\n s_waitcnt lgkmcnt(0)")
            missing(VM, 4)
            a(f"s_cbranch_vccz {P}_vr2")
            G.spin_tail(a, f"{P}_vr1")
            a(f"{P}_vr2:")
            if prof: a("s_add_u32 s28, s28, 64")
            for x in pv[1:5] + pv[6:]: a(x)
            a.fence()
            a(f"s_branch {P}_vok")
        a(f"{P}_oredo:")
        missing(OA, 8)
        a(f"s_cbranch_vccz {P}_ook\n s_mov_b32 s96, 0\n{P}_or1:")
        for t in range(2): a(f"ds_read_b128 {vr(OA + 4*t)}, {vOr} offset:{t*1024}")
        a("s_waitcnt lgkmcnt(0)")
        missing(OA, 8)
        a(f"s_cbranch_vccz {P}_or2")
        G.spin_tail(a, f"{P}_or1")
        a(f"{P}_or2:")
        if prof: a("s_add_u32 s27, s27, 64")
        for T in range(5): zero(a, WA[T], WA[T] + 4)
        if not A:
            for k in range(16): a(woh(k // 2, k % 2))
            a("s_waitcnt lgkmcnt(0)")
        a.fence()
        a(f"s_branch {P}_wo")

def role_chain(a, opt):
    startup(a, opt)
    loop(a, opt, "FA", "", True)
    loop(a, opt, "FV", "", False)
    loop(a, opt, "SA", "sc1", True)
    loop(a, opt, "SV", "sc1", False)
    a(f"L_chain_done:\n ds_read_b128 {vr(KV)}, {vKp}\n s_add_u32 s53, s53, 0x20000\n s_waitcnt lgkmcnt(0)")
    for k in range(2): a(f"buffer_store_dwordx4 {vr(KV + 4*k)}, {vLin}, {G.WS}, s53 offen offset:{2048*k} sc1")
    if opt.get("per"):
        a(f"s_lshl_b32 s7, s4, 2\n s_add_u32 s7, s7, s3\n s_lshl_b32 s7, s7, 8\n s_add_u32 s7, s7, {G.PROF + 0x40000}\n v_lshrrev_b32 v24, 2, v0\n buffer_store_dword v11, v24, {G.WS}, s7 offen sc1")
    a("L_chain_end:\n s_waitcnt vmcnt(0)")
    G.tl(a, opt, 3, "v24", True)
    if opt.get("trace"):
        a(f"s_lshl_b32 s7, s3, 11\n v_add_u32 v24, s7, v0\n ds_read_b128 v[28:31], v24\n ds_read_b128 v[32:35], v24 offset:1024\n s_waitcnt lgkmcnt(0)")
        a(f"s_lshl_b32 s7, s4, 2\n s_add_u32 s7, s7, s3\n s_lshl_b32 s7, s7, 11\n s_add_u32 s7, s7, {G.PROF + 0x40000}")
        a(f"buffer_store_dwordx4 v[28:31], v0, {G.WS}, s7 offen sc1\n buffer_store_dwordx4 v[32:35], v0, {G.WS}, s7 offen offset:1024 sc1")
    if opt.get("prof"):
        a(f"s_lshl_b32 s7, s4, 2\n s_add_u32 s7, s7, s3\n s_lshl_b32 s7, s7, 6\n s_add_u32 s7, s7, {G.PROF}\n s_mov_b64 exec, 1")
        for k in range(12):
            a(f"v_mov_b32 v24, s{20+k}\n buffer_store_dword v24, off, {G.WS}, s7 offset:{4*k} sc1")
    a("s_waitcnt vmcnt(0)\n s_endpgm")
```

```python
import sys, math, struct
from asmlib2 import *

NAME = "gated_mix__memory_aug_recurrent_mem_tr__glu_gated_reglu__prompt"

FLG_FB  = 0x0000
FLG_FH  = 0x4000
FLG_FC  = 0x60000
FLG_FF  = 0x68000
MEMB = 0x10000
SCR  = 0x50000
PART = 0x100000
KVM  = 0x300000
KXV  = 0x1000000
KSEG = 33 * 16384
CP   = 0x3200000
FP   = 0x7000000
PROF = 0x9000000
QXG  = 0xA000000
D_CH, D_INIT, D_WK, D_ERR, D_GO = 0, 64, 128, 192, 224
WSTR = 32784
L_KX, L_MX, L_QK, L_OB, L_KV, L_ROLE = 131200, 139392, 147584, 152704, 156800, 161792
XROW = 1040; XBUF = 32 * XROW
L_OX = 2 * XBUF; L_KM = L_OX + 8192; L_VM = L_KM + 2048
LDS_BYTES = 163840
SPIN = 200_000_000

X, WS, DBG, OUT, W1, W2, W3, W4 = ["s[%d:%d]" % (b, b + 3) for b in (8, 12, 16, 20, 24, 28, 32, 36)]
P_X, P_MEM0, P_WQ, P_WK, P_WV, P_WO, P_WG, P_WU, P_WD, P_GW, P_OUT, P_DBG, P_WS = 60, 62, 64, 66, 68, 70, 76, 78, 80, 82, 84, 86, 88

ROLES = (("B", 32, 96), ("C", 96, 160), ("F", 160, 188), ("R", 188, 252))
def f32bits(x): return struct.unpack("<I", struct.pack("<f", x))[0]
CSC = f32bits(128 ** -0.5 * math.log2(math.e))

def srd(a, base, ptr, size):
    a(f"s_mov_b32 s{base}, s{ptr}\n s_mov_b32 s{base+1}, s{ptr+1}\n s_mov_b32 s{base+2}, {size}\n s_mov_b32 s{base+3}, 0x20000")

def spin_tail(a, loop, sleep=0):
    if sleep: a(f"s_sleep {sleep}")
    limit = SPIN // (150 + 64 * sleep + (200 if sleep else 0))
    a(f"s_add_u32 s96, s96, 1\n s_cmp_lt_u32 s96, {limit}\n s_cbranch_scc1 {loop}\n s_branch L_bail")

def wait_scalar(a, srdn, soff, need, dst, vt, sleep=1):
    lp = a.label("WS"); ok = a.label("WSOK")
    a(f"s_mov_b32 s96, 0\n{lp}:")
    a(f"buffer_load_dword {vt}, off, {srdn}, {soff} sc1\n s_waitcnt vmcnt(0)\n v_readfirstlane_b32 {dst}, {vt}")
    a(f"s_nop 3\n s_cmp_ge_u32 {dst}, {need}\n s_cbranch_scc1 {ok}")
    spin_tail(a, lp, sleep)
    a(f"{ok}:")

def wait_go(a, vt, sleep):
    a(f"s_mov_b32 s90, {D_GO}")
    wait_scalar(a, DBG, "s90", 1, "s7", vt, sleep)

def wait_lanes(a, vaddr, soff, nl, need, vt, sleep=1):
    lp = a.label("WL"); ok = a.label("WLOK")
    a(f"s_mov_b32 s96, 0\n s_mov_b32 exec_lo, {hex((1 << nl) - 1)}\n s_mov_b32 exec_hi, 0\n{lp}:")
    a(f"buffer_load_dword {vt}, {vaddr}, {WS}, {soff} offen sc1\n s_waitcnt vmcnt(0)\n v_cmp_gt_u32 vcc, {need}, {vt}\n s_cbranch_vccz {ok}")
    spin_tail(a, lp, sleep)
    a(f"{ok}:\n s_mov_b64 exec, -1")

def flag_store(a, soff, sval, vt):
    a(f"v_mov_b32 {vt}, {sval}\n s_mov_b64 exec, 1\n buffer_store_dword {vt}, off, {WS}, {soff} sc1\n s_mov_b64 exec, -1")

TL = PROF + 0x10000
def tl(a, opt, k, vt="v24", chain=False):
    if opt.get("hd"):
        if k == 1: return
        sk = a.label("HD")
        slot = {0: 2, 2: 3, 3: 5, 4: 7}[k] + (1 if (chain and k in (2, 3)) else 0)
        cond = "s_and_b32 s100, s2, 63\n s_or_b32 s100, s100, s3\n s_cmp_lg_u32 s100, 0" if k == 0 else "s_cmp_lg_u32 s3, 0"
        if k == 2 and not chain: return
        a(f"{cond}\n s_cbranch_scc1 {sk}\n s_memrealtime s[100:101]\n s_waitcnt lgkmcnt(0)\n v_mov_b32 {vt}, s100")
        a(f"s_mov_b64 exec, 1\n buffer_atomic_umax {vt}, off, {DBG}, 0 offset:{4*slot}\n s_mov_b64 exec, -1\n{sk}:")
        return
    if not opt.get("tl"): return
    sk = a.label("TL")
    a(f"s_cmp_lg_u32 s3, 0\n s_cbranch_scc1 {sk}\n s_memrealtime s[100:101]\n s_waitcnt lgkmcnt(0)\n v_mov_b32 {vt}, s100")
    a(f"s_lshl_b32 s100, s2, 5\n s_add_u32 s100, s100, {TL}\n s_mov_b64 exec, 1\n buffer_store_dword {vt}, off, {WS}, s100 offset:{4*k} sc1")
    if k in (2, 3):
        a(f"s_memtime s[98:99]\n s_waitcnt lgkmcnt(0) vmcnt(0)\n v_mov_b32 {vt}, s98\n buffer_store_dword {vt}, off, {WS}, s100 offset:{4*(k+3)} sc1")
    a(f"s_mov_b64 exec, -1\n{sk}:")

def wp(a, opt, k):
    if opt.get("jit") and k is not None:
        sk = a.label("JW")
        a(f"s_mul_i32 s98, s6, {5 + 2*k}\n s_mul_i32 s99, s2, {11 + 4*k}\n s_add_u32 s98, s98, s99\n s_mul_i32 s99, s3, {23 + opt['jit']}\n s_xor_b32 s98, s98, s99")
        a(f"s_and_b32 s98, s98, 7\n s_cmp_lg_u32 s98, {k % 8}\n s_cbranch_scc1 {sk}\n s_sleep {(20, 60, 120)[(k + opt['jit']) % 3]}\n{sk}:")
    if not opt.get("wprof"): return
    a(f"s_memtime s[100:101]\n s_waitcnt lgkmcnt(0)\n s_sub_u32 s99, s100, s98\n s_mov_b32 s98, s100")
    if k is not None: a(f"s_add_u32 s{76+k}, s{76+k}, s99")
def wp_init(a, opt):
    if not opt.get("wprof"): return
    for k in range(8): a(f"s_mov_b32 s{76+k}, 0")
    wp(a, opt, None)
def wp_dump(a, opt):
    if not opt.get("wprof"): return
    a(f"s_lshl_b32 s7, s2, 2\n s_add_u32 s7, s7, s3\n s_lshl_b32 s7, s7, 5\n s_add_u32 s7, s7, {PROF + 0x20000}\n s_mov_b64 exec, 1")
    for k in range(8): a(f"v_mov_b32 v24, s{76+k}\n buffer_store_dword v24, off, {WS}, s7 offset:{4*k} sc1")
    a("s_mov_b64 exec, -1")

def init_arrive(a, vt):
    sk = a.label("IA")
    a(f"s_barrier\n s_cmp_lg_u32 s3, 0\n s_cbranch_scc1 {sk}")
    a(f"v_mov_b32 {vt}, 1\n s_mov_b64 exec, 1\n buffer_atomic_add {vt}, off, {DBG}, 0 offset:{D_INIT}\n s_mov_b64 exec, -1\n{sk}:")
    a.vm_n -= 1

def load_stream(a, jobs, tmp=32, depth=12, out=128, fl='', ahead=0):
    units = [(job, u) for job in jobs for u in range(16)]
    n = len(units); tok = {}
    def touch(k):
        if ahead and k < n and k % 4 == 0 and units[k][0].get('touch'): units[k][0]['touch'](units[k][1] // 4)
    def issue(k):
        touch(k + ahead)
        job, u = units[k]
        a(f"s_mov_b32 s7, {job['row'](u) * job['stride']}")
        r = tmp + 8 * (k % depth)
        a(f"buffer_load_dwordx4 {vr(r)}, {job['v0']}, {job['srd']}, s7 offen {fl}")
        if job['stride'] < 4096:
            tok[k] = a.vm(f"buffer_load_dwordx4 {vr(r+4)}, {job['v0']}, {job['srd']}, s7 offen offset:{job['stride']} {fl}")
        else:
            tok[k] = a.vm(f"buffer_load_dwordx4 {vr(r+4)}, {job['v1']}, {job['srd']}, s7 offen {fl}")
    for k in range(ahead): touch(k)
    for k in range(min(depth, n)): issue(k)
    for k in range(n):
        job, u = units[k]
        a.wait_vm(tok[k])
        r = tmp + 8 * (k % depth)
        for c in range(8):
            d = job['dst'](u, c) if (job['kind'] == 'reg' or c in job.get('regc', ())) else out + 4*c + u % 4
            a(f"v_perm_b32 v{d}, v{r+4+c//2}, v{r+c//2}, s{40 + c % 2}")
        if k + depth < n: issue(k + depth)
        if job.get('group'):
            if u % 4 == 3: job['group'](u // 4)
        elif job['kind'] == 'lds' and u % 4 == 3:
            for c in range(8):
                if c not in job.get('regc', ()): a(f"ds_write_b128 {job['vdst']}, {vr(out + 4*c)} offset:{job['imm'](u // 4, c)}")
        if u == 0 and job.get('first'): job['first']()
        if u == 15 and job.get('done'): job['done']()

def lds_to_regs(a, vsrc, dst, first=0):
    def done():
        a("s_waitcnt lgkmcnt(0)\n s_barrier")
        for f in range(first, 32): a(f"ds_read_b128 {dst(f)}, {vsrc} offset:{f*1024}")
        a("s_waitcnt lgkmcnt(0)\n s_barrier")
    return done

def w1_setup(a, stride, scol):
    a(f"""
    s_mov_b32 s90, {8*stride}
    v_mul_lo_u32 v24, v1, s90
    v_lshl_add_u32 v24, v2, 4, v24
    s_mul_i32 s7, s3, {128*stride}
    s_add_u32 s7, s7, {scol}
    v_add_u32 v24, s7, v24
    v_add_u32 v25, {stride}, v24
    v_lshrrev_b32 v26, 2, v2
    s_mov_b32 s90, {WSTR}
    v_mul_lo_u32 v26, v26, s90
    v_lshl_add_u32 v26, v1, 8, v26
    v_and_b32 v27, 3, v2
    v_lshl_add_u32 v26, v27, 6, v26
    s_lshl_b32 s7, s3, 13
    v_add_u32 v26, s7, v26
    s_mul_i32 s7, s3, {WSTR}
    v_add_u32 v27, s7, v0
    """)

def w1_job(a, srdn, stride, dst):
    return dict(kind='lds', srd=srdn, stride=stride, v0="v24", v1="v25", row=lambda u: 32*(u//4) + 2*(u%4), vdst="v26",
                imm=lambda grp, c: (grp*2 + c % 2)*1024 + (c//2)*16, done=lds_to_regs(a, "v27", dst))

def w2_job(a, srdn, sbase, row0=0, done=None):
    a(f"v_lshlrev_b32 v28, 13, v1\n v_lshl_add_u32 v28, v2, 4, v28\n s_lshl_b32 s7, s3, 8\n s_add_u32 s7, s7, {sbase}\n v_add_u32 v28, s7, v28")
    return dict(kind='reg', srd=srdn, stride=1024, v0="v28", row=lambda u: row0 + 32*(u//4) + 2*(u%4), done=done,
                dst=lambda u, T: 128 + (T*4 + u//4)*4 + u % 4)

def prologue(a, opt):
    a.note("""One persistent workgroup per CU. Roles are handed out by (die, arrival rank): die 0 runs the 64-step recurrence,
the other dies run producer/consumer stages around it; surplus workgroups fill places other dies left empty.""")
    a(f"""
    s_cmp_ge_u32 s2, 256
    s_cbranch_scc1 L_end
    s_load_dwordx16 s[60:75], s[0:1], 0
    s_load_dwordx8 s[76:83], s[0:1], 64
    s_load_dwordx4 s[84:87], s[0:1], 96
    s_load_dwordx2 s[88:89], s[0:1], 112
    v_lshrrev_b32 v1, 6, v0
    v_and_b32 v0, 63, v0
    v_readfirstlane_b32 s3, v1
    s_mov_b32 s40, 0x05040100
    s_mov_b32 s41, 0x07060302
    s_mov_b32 s42, {CSC}
    s_getreg_b32 s4, hwreg(HW_REG_XCC_ID)
    s_and_b32 s4, s4, 7
    """)
    if opt.get("force_slow"):
        a("s_lshr_b32 s7, s2, 6\n s_add_u32 s7, s7, 1\n s_cmp_lt_u32 s2, 20\n s_cselect_b32 s4, 0, s7")
    a("s_waitcnt lgkmcnt(0)")
    srd(a, 8, P_X, 0x200000); srd(a, 12, P_WS, 0x10000000); srd(a, 16, P_DBG, 256)
    a(f"""
    v_mov_b32 v3, {L_ROLE}
    """)
    tl(a, opt, 0)
    a(f"""
    s_cmp_lg_u32 s3, 0
    s_cbranch_scc1 L_role_wait
    v_lshlrev_b32 v4, 2, v0
    v_add_u32 v4, {D_WK}, v4
    v_cmp_eq_u32 vcc, 0, v0
    v_cndmask_b32 v4, v4, v0, vcc
    s_mov_b64 exec, 1
    s_lshl_b32 s7, s4, 2
    s_add_u32 s7, s7, {D_WK}
    s_cmp_eq_u32 s4, 0
    s_cselect_b32 s7, {D_CH}, s7
    v_mov_b32 v2, 1
    buffer_atomic_add v2, off, {DBG}, s7 sc0
    s_waitcnt vmcnt(0)
    v_readfirstlane_b32 s5, v2
    s_nop 3
    s_cmp_lt_u32 s5, 32
    s_cbranch_scc1 L_role_slot
    ; more than 32 workgroups on this die: take one of the places another die left empty
    v_mov_b32 v2, 1
    buffer_atomic_add v2, off, {DBG}, 0 offset:{D_WK} sc0
    s_waitcnt vmcnt(0)
    v_readfirstlane_b32 s6, v2
    s_mov_b64 exec, 0xff
    s_mov_b32 s96, 0
    L_role_census:
    buffer_load_dword v2, v4, {DBG}, 0 offen sc1
    s_waitcnt vmcnt(0)
    """)
    for x in range(8): a(f"v_readlane_b32 s{44+x}, v2, {x}")
    a("s_nop 3\n s_mov_b32 s7, 0")
    for x in range(8): a(f"s_add_u32 s7, s7, s{44+x}")
    a("s_cmp_ge_u32 s7, 256\n s_cbranch_scc1 L_role_pick")
    spin_tail(a, "L_role_census", 4)
    a("L_role_pick:\n s_mov_b64 exec, 1")
    for x in range(8):
        a(f"s_min_u32 s7, s{44+x}, 32\n s_mov_b32 s4, {x}\n s_add_u32 s5, s7, s6\n s_cmp_lt_u32 s5, 32\n s_cbranch_scc1 L_role_slot\n s_sub_u32 s6, s5, 32")
    a(f"""
    s_mov_b32 s5, 255
    s_branch L_role_have
    L_role_slot:
    s_mul_i32 s7, s5, 7
    s_add_u32 s7, s7, s4
    s_add_u32 s7, s7, 31
    s_cmp_eq_u32 s4, 0
    s_cselect_b32 s5, s5, s7
    L_role_have:
    v_mov_b32 v2, s5
    ds_write_b32 v3, v2
    s_waitcnt lgkmcnt(0)
    s_mov_b64 exec, -1
    L_role_wait:
    """)
    if opt.get("pt", 1):
        srd(a, 24, P_WK, 0x400000)
        a(f"""
        s_cmp_eq_u32 s3, 0
        s_cbranch_scc1 L_pt_done
        s_cmp_lg_u32 s4, 0
        s_cbranch_scc1 L_pt_done
        s_lshr_b32 s7, s2, 3
        s_and_b32 s43, s7, 7
        s_lshl_b32 s43, s43, 16
        s_lshr_b32 s7, s7, 3
        s_lshl_b32 s7, s7, 20
        s_add_u32 s7, s7, s43
        s_sub_u32 s43, s3, 1
        s_mul_i32 s43, s43, {0x80000 if opt.get("pt", 1) == 2 else 0x4000}
        s_add_u32 s7, s7, s43
        v_lshlrev_b32 v4, 7, v0
        s_nop 15
        """)
        for k in range(4 if opt.get("pt", 1) == 2 else 2): a(f"buffer_load_dword v{100+k}, v4, {W1}, s7 offen\n s_add_u32 s7, s7, 8192")
        a("L_pt_done:")
    if opt.get("w0", 0):
        order = [(P_WK, P_WO), (P_WQ,), (P_WV,)]
        a(f"""
        s_cmp_eq_u32 s3, 0
        s_cbranch_scc1 L_w0_done
        s_cmp_eq_u32 s4, 0
        s_cbranch_scc1 L_w0_done
        s_lshr_b32 s7, s2, 3
        s_mul_i32 s7, s7, 7
        s_add_u32 s7, s7, s4
        s_sub_u32 s7, s7, 1
        s_mul_i32 s7, s7, {147*128}
        s_add_u32 s43, s7, 8192
        s_add_u32 s44, s7, 16384
        v_lshlrev_b32 v4, 7, v0
        s_nop 15
        """)
        for w, ps in enumerate(order):
            nx = a.label("W0")
            a(f"s_cmp_lg_u32 s3, {w+1}\n s_cbranch_scc1 {nx}")
            for n, p in enumerate(ps):
                srd(a, 24, p, 0x400000)
                a(f"buffer_load_dword v{100+3*n}, v4, {W1}, s7 offen\n buffer_load_dword v{101+3*n}, v4, {W1}, s43 offen")
                a(f"s_mov_b64 exec, 0x7ffff\n buffer_load_dword v{102+3*n}, v4, {W1}, s44 offen\n s_mov_b64 exec, -1")
            a(f"{nx}:")
        a("L_w0_done:")
    if opt.get("cw", 0):
        a(f"""
        s_cmp_lg_u32 s3, 1
        s_cbranch_scc1 L_code_done
        s_getpc_b64 s[44:45]
        L_code_base:
        s_mov_b32 s46, L_code_end-L_code_base
        s_mov_b32 s47, 0x20000
        v_lshlrev_b32 v4, 7, v0
        s_mov_b32 s7, 0
        s_nop 15
        s_nop 15
        """)
        for k in range(7): a(f"buffer_load_dword v{100+k}, v4, s[44:47], s7 offen\n s_add_u32 s7, s7, 8192")
        a("L_code_done:")
    a(f"""
    s_barrier
    ds_read_b32 v2, v3
    s_waitcnt lgkmcnt(0)
    v_readfirstlane_b32 s4, v2
    v_lshrrev_b32 v1, 4, v0
    v_and_b32 v2, 15, v0
    s_nop 2
    s_and_b32 s4, s4, 255
    """)
    tl(a, opt, 1)
    if opt.get("tl"):
        a(f"v_mov_b32 v24, s4\n s_lshl_b32 s100, s2, 5\n s_add_u32 s100, s100, {TL}\n buffer_store_dword v24, off, {WS}, s100 offset:28 sc1")
    a(f"""
    s_cmp_lt_u32 s4, 32
    s_cbranch_scc1 L_chain
    s_cmp_lt_u32 s4, 96
    s_cbranch_scc1 L_B
    """)
    if not opt.get("nocfr"): a("""
    s_cmp_lt_u32 s4, 160
    s_cbranch_scc1 L_C
    s_cmp_lt_u32 s4, 188
    s_cbranch_scc1 L_F
    s_cmp_lt_u32 s4, 252
    s_cbranch_scc1 L_R
    """)
    init_arrive(a, "v3")
    a("s_cmp_lg_u32 s4, 252\n s_cbranch_scc1 L_end\n s_cmp_lg_u32 s3, 0\n s_cbranch_scc1 L_end")
    wait_scalar(a, DBG, D_INIT, 256, "s7", "v3", 12)
    a(f"""
    v_mov_b32 v3, 1
    s_mov_b64 exec, 1
    buffer_store_dword v3, off, {DBG}, 0 offset:{D_GO} sc1
    s_waitcnt vmcnt(0)
    s_endpgm
    L_bail:
    s_mov_b64 exec, 1
    v_mov_b32 v0, s4
    v_add_u32 v0, 0x100, v0
    buffer_store_dword v0, off, {DBG}, 0 offset:{D_ERR}
    s_waitcnt vmcnt(0)
    L_end:
    s_endpgm
    """)

def x_dma(a, sseg, sbuf):
    a(f"s_lshl_b32 s90, {sseg}, 15\n s_lshl_b32 s91, s3, 13\n s_add_u32 s90, s90, s91")
    a(f"s_mul_i32 s91, s3, {8*XROW}\n s_add_u32 s91, s91, {sbuf}")
    for r in range(8):
        a(f"s_add_u32 m0, s91, {r*XROW}")
        a(f"s_nop 0\n buffer_load_dwordx4 v0, {X}, s90 offen lds")
        if r < 7: a("s_add_u32 s90, s90, 1024")

def gemm1(a, vx, mats, fr, mid=None):
    tok = {}
    def rd(t):
        for rt in range(2):
            tok[t] = a.ds(f"ds_read_b128 {vr(fr + 8*(t%3) + 4*rt)}, {vx} offset:{rt*16*XROW + t*64}")
    rd(0); rd(1)
    for t in range(16):
        if t + 2 < 16: rd(t + 2)
        a.wait_ds(tok[t])
        for wreg, acc, wA in mats:
            for T in range(2):
                for rt in range(2):
                    xf = vr(fr + 8*(t%3) + 4*rt); d = vr(acc(T, rt)); c = d if t else "0"
                    A, B = (wreg(t, T), xf) if wA else (xf, wreg(t, T))
                    a(f"v_mfma_f32_16x16x32_bf16 {d}, {A}, {B}, {c}")
        if mid and t == mid[0]: mid[1]()

ST2 = 'sc1'
def stage2(a, vrd, vst, sdst, oa, acc, tmp, nt=4, hook=None):
    tok = {}
    for rt in range(2):
        for t in range(nt):
            tok[(rt, t)] = a.ds(f"ds_read_b128 {oa(rt*nt+t)}, {vrd} offset:{(rt*nt+t)*1024}")
    def cv(rt, i, p):
        a(f"v_cvt_pk_bf16_f32 v{tmp + 4*(i%2) + p}, v{acc + (rt*8+2*p)*4 + i}, v{acc + (rt*8+2*p+1)*4 + i}")
    def st(rt, i):
        a(f"buffer_store_dwordx4 {vr(tmp + 4*(i%2))}, {vst}, {WS}, {'s7' if rt else sdst} offen offset:{i*1024} {ST2}")
    a(f"s_add_u32 s7, {sdst}, 16384")
    for rt in range(2):
        for t in range(nt):
            a.wait_ds(tok[(rt, t)])
            for T in range(8):
                d = vr(acc + (rt*8+T)*4)
                a(f"v_mfma_f32_16x16x32_bf16 {d}, {oa(rt*nt+t)}, {(vr, ar)[t//4](128 + (T*4 + t % 4)*4)}, {d if t else '0'}")
                if rt == 1 and t < 4 and 2 <= T < 6: cv(0, t, T - 2)
                if rt == 1 and t < 4 and T == 6: st(0, t)
            if hook and (rt, t) == hook[0]: hook[1]()
    for i in range(4):
        for p in range(4): cv(1, i, p)
        st(1, i)

def worker_top(a, name, nst):
    a("s_waitcnt vmcnt(0)")
    a(f"{name}_loop:\n s_waitcnt vmcnt({nst})\n s_barrier")
    a(f"s_lshl_b32 s43, s6, 1\n s_add_u32 s43, s43, s5")
    a(f"s_add_u32 s44, s43, 2\n s_min_u32 s44, s44, 63\n s_sub_u32 s45, {XBUF}, s46")
    x_dma(a, "s44", "s45")
    a(f"v_add_u32 v4, s46, v3")

def worker_bot(a, name):
    a(f"s_sub_u32 s46, {XBUF}, s46\n s_add_u32 s6, s6, 1\n s_cmp_lt_u32 s6, 32")
    a.fence()
    a(f"s_cbranch_scc1 {name}_loop")

def worker_init(a, first, per):
    a(f"s_sub_u32 s4, s4, {first}\n s_cmp_ge_u32 s4, {per}\n s_cselect_b32 s5, 1, 0\n s_cselect_b32 s7, {per}, 0\n s_sub_u32 s4, s4, s7")
    a("s_mov_b32 s6, 0\n s_mov_b32 s46, 0")
    a(f"s_mov_b32 s7, {XROW}\n v_mul_lo_u32 v3, v2, s7\n v_lshl_add_u32 v3, v1, 4, v3\n v_lshlrev_b32 v0, 4, v0")

def wave_flag(a, base):
    a(f"s_lshl_b32 s47, s5, 2\n s_add_u32 s47, s47, s3\n s_lshl_b32 s47, s47, 11\n s_lshl_b32 s7, s4, 7\n s_add_u32 s47, s47, s7\n s_add_u32 s47, s47, {base}")
    flag_store(a, "s47", "0", "v24")

def worker_end(a, opt):
    wp_dump(a, opt)
    tl(a, opt, 3)
    a("s_waitcnt vmcnt(0)\n s_endpgm")

def role_B(a, opt):
    a.note('B: q,k,v of the x rows for one head, every second segment (weights resident)')
    a("L_B:")
    worker_init(a, 32, 32)
    a(f"s_lshl_b32 s47, s4, 7\n s_lshl_b32 s7, s5, 2\n s_add_u32 s47, s47, s7\n s_add_u32 s47, s47, {FLG_FB}\n v_lshrrev_b32 v5, 1, v0")
    def flags(kv, q):
        a(f"v_mov_b32 v6, {q}\n v_writelane_b32 v6, {kv}, 0\n s_mov_b64 exec, 3\n buffer_store_dword v6, v5, {WS}, s47 offen sc1\n s_mov_b64 exec, -1")
    flags("0", "0")
    srd(a, 24, P_WK, 0x400000); srd(a, 28, P_WV, 0x400000); srd(a, 32, P_WQ, 0x400000)
    a("s_lshl_b32 s48, s4, 8")
    w1_setup(a, 8192, "s48")
    def publish():
        sk = a.label("BF")
        a(f"s_barrier\n s_cmp_lg_u32 s3, 0\n s_cbranch_scc1 {sk}\n s_max_u32 s7, s6, {opt.get('fkv', 0)}")
        flags("s7", "s6")
        a(f"{sk}:")
        a.vm_n -= 1
    mk = lambda acc: (lambda t, T: ar((t*2+T)*4), lambda T, rt: acc + (T*2+rt)*4, True)
    mv = lambda acc: (lambda t, T: ar(128 + (t*2+T)*4), lambda T, rt: acc + (T*2+rt)*4, False)
    def kv_out(ak, av, r0):
        a(f"s_lshl_b32 s52, s43, 5\n s_add_u32 s52, s52, s4\n s_add_u32 s48, s52, s43\n s_lshl_b32 s48, s48, 14\n s_add_u32 s48, s48, {KXV}")
        a("s_lshl_b32 s7, s3, 10\n s_add_u32 s49, s48, s7\n s_add_u32 s50, s49, 4096")
        a(f"s_lshl_b32 s52, s52, 13\n s_add_u32 s52, s52, s7\n s_add_u32 s52, s52, {QXG}\n s_add_u32 s53, s52, 4096")
        a("s_lshl_b32 s7, s3, 11\n s_add_u32 s51, s48, s7\n s_add_u32 s51, s51, 8192")
        for rt in range(2):
            r = r0 + 4*rt
            for i in range(4): a(f"v_cvt_pk_bf16_f32 v{r+i}, v{ak + rt*4 + i}, v{ak + (2+rt)*4 + i}")
            a(f"buffer_store_dwordx4 {vr(r)}, v0, {WS}, s{49+rt} offen sc1")
        for T in range(2):
            r = r0 + 8 + 4*T; b = av + T*8
            for p in range(4): a(f"v_cvt_pk_bf16_f32 v{r+p}, v{b + 2*p}, v{b + 2*p + 1}")
            a(f"buffer_store_dwordx4 {vr(r)}, v0, {WS}, s51 offen offset:{T*1024} sc1")
    def reread():
        if opt.get("rr"):
            a(f"s_lshl_b32 s7, s3, 12\n s_add_u32 s7, s7, s48\n v_lshlrev_b32 v7, 2, v0\n buffer_load_dword v7, v7, {WS}, s7 offen sc1")
    jv = w1_job(a, W2, 8192, lambda f: ar(128 + 4*f))
    vdone = jv['done']
    def first_kv():
        vdone()
        x_dma(a, "s5", "s46")
        a("s_mov_b32 s43, s5\n s_waitcnt vmcnt(0)\n s_barrier")
        gemm1(a, "v3", [mk(192), mv(208)], 160)
        kv_out(192, 208, 224)
        a("s_waitcnt vmcnt(0)")
        publish()
    if opt.get("fkv", 0): jv['done'] = first_kv
    jk = w1_job(a, W1, 8192, lambda f: ar(4*f))
    jk['first'] = lambda: init_arrive(a, "v28")
    jq = w1_job(a, W3, 8192, lambda f: vr(128 + 4*f))
    if opt.get("bo", 1): load_stream(a, [jk, jq, jv], tmp=64, depth=8, out=32)
    else: load_stream(a, [jk, jv, jq])
    x_dma(a, "s5", "s46")
    tl(a, opt, 2)
    wp_init(a, opt)
    worker_top(a, "B", 6)
    wp(a, opt, 0)
    gemm1(a, "v4", [mk(64), mv(80), (lambda t, T: vr(128 + (t*2+T)*4), lambda T, rt: 96 + (T*2+rt)*4, True)], 32,
          mid=(4, lambda: (a("s_waitcnt vmcnt(8)"), publish(), reread())))
    wp(a, opt, 1)
    kv_out(64, 80, 112)
    for rt in range(2):
        r = 56 + 4*rt
        for i in range(4): a(f"v_cvt_pk_bf16_f32 v{r+i}, v{96 + rt*4 + i}, v{96 + (2+rt)*4 + i}")
        a(f"buffer_store_dwordx4 {vr(r)}, v0, {WS}, s{52+rt} offen sc1")
    wp(a, opt, 7)
    if opt.get("p1", 1):
        a(f"s_cmp_ge_u32 s6, {opt.get('p1', 2)}\n s_cbranch_scc1 B_later\n s_add_u32 s6, s6, 1\n s_waitcnt vmcnt(0)")
        publish()
        a("s_sub_u32 s6, s6, 1\nB_later:")
    worker_bot(a, "B")
    a("s_waitcnt vmcnt(0)")
    publish()
    worker_end(a, opt)

def st2_addrs(a):
    a(f"v_add_u32 v6, {L_OX}, v0")
    a(f"v_lshlrev_b32 v7, 12, v1\n v_lshl_add_u32 v7, v2, 4, v7\n s_lshl_b32 s7, s3, 8\n v_add_u32 v7, s7, v7")

def role_F(a, opt):
    a.note('F: 128 hidden columns of the gated FFN, every second segment -> partial output')
    a("L_F:")
    worker_init(a, 160, 14)
    wave_flag(a, FLG_FF)
    a("s_waitcnt vmcnt(0)")
    init_arrive(a, "v24")
    if opt.get("hold", 3) & 1:
        wait_go(a, "v24", opt.get("si", 64))
        a(f"s_lshl_b32 s48, s4, 7\n s_add_u32 s48, s48, {FLG_FB + opt.get('hf', 8)}")
        if not opt.get("hi", 1) & 1: wait_scalar(a, WS, "s48", 1, "s7", "v24", 16)
    srd(a, 24, P_WG, 512*3584); srd(a, 28, P_WU, 512*3584); srd(a, 32, P_WD, 1792*1024)
    a("s_lshl_b32 s48, s4, 8")
    w1_setup(a, 3584, "s48")
    a("s_lshl_b32 s48, s4, 17")
    load_stream(a, [w1_job(a, W1, 3584, lambda f: ar(4*f)), w1_job(a, W2, 3584, lambda f: ar(128 + 4*f)), w2_job(a, W3, "s48")])
    x_dma(a, "s5", "s46")
    st2_addrs(a)
    a("s_lshl_b32 s7, s3, 10\n v_add_u32 v5, s7, v6")
    tl(a, opt, 2)
    wp_init(a, opt)
    worker_top(a, "F", 8)
    wp(a, opt, 0)
    gemm1(a, "v4", [(lambda t, T: ar((t*2+T)*4), lambda T, rt: 64 + (T*2+rt)*4, True),
                    (lambda t, T: ar(128 + (t*2+T)*4), lambda T, rt: 80 + (T*2+rt)*4, True)], 32,
          mid=(9, lambda: (a("s_waitcnt vmcnt(8)"), flag_store(a, "s47", "s6", "v24"))))
    wp(a, opt, 1)
    for r in range(16): a(f"v_max_f32 v{64+r}, 0, v{64+r}")
    for r in range(16): a(f"v_mul_f32 v{64+r}, v{64+r}, v{80+r}")
    for rt in range(2):
        r = 96 + 4*rt
        for i in range(4): a(f"v_cvt_pk_bf16_f32 v{r+i}, v{64 + rt*4 + i}, v{64 + (2+rt)*4 + i}")
        a(f"ds_write_b128 v5, {vr(r)} offset:{rt*4096}")
    a(f"s_lshl_b32 s48, s43, 4\n s_add_u32 s48, s48, s4\n s_lshl_b32 s48, s48, 15\n s_and_b32 s48, s48, {hex((opt.get('fring', 64) << 19) - 1)}\n s_add_u32 s48, s48, {FP}")
    a("s_waitcnt lgkmcnt(0)\n s_barrier")
    stage2(a, "v6", "v7", "s48", lambda f: vr(32 + 4*f), 64, 24)
    wp(a, opt, 7)
    if opt.get("zf"): a(f"s_sleep {opt['zf']}")
    worker_bot(a, "F")
    a("s_waitcnt vmcnt(0)")
    flag_store(a, "s47", "s6", "v24")
    worker_end(a, opt)

def softmax(a, X0, X1, M, t, pX, pM):
    a(f"""
    v_max3_f32 v{t}, v{X0}, v{X0+1}, v{X0+2}
    v_max3_f32 v{t+1}, v{X0+3}, v{X1}, v{X1+1}
    v_max3_f32 v{t}, v{t}, v{X1+2}, v{X1+3}
    v_max3_f32 v{t+1}, v{t+1}, v{M}, v{M+1}
    v_max_f32 v{t}, v{t}, v{t+1}
    v_max_f32 v{t+1}, v{t}, v{t+1}
    v_permlane16_swap_b32 v{t}, v{t+1}
    v_max_f32 v{t+2}, v{t}, v{t+1}
    v_max_f32 v{t+3}, v{t}, v{t+1}
    v_permlane32_swap_b32 v{t+2}, v{t+3}
    v_max_f32 v{t}, v{t+2}, v{t+3}
    v_mul_f32 v{t}, s42, v{t}
    """)
    regs = [X0, X0+1, X0+2, X0+3, X1, X1+1, X1+2, X1+3, M, M+1]
    for r in regs: a(f"v_fma_f32 v{r}, v{r}, s42, -v{t}")
    for k, r in enumerate(regs):
        a(f"v_exp_f32 v{r}, v{r}")
        if k >= 2 and k % 2 == 0: a(f"v_cvt_pk_bf16_f32 v{pX + k//2 - 1}, v{regs[k-2]}, v{regs[k-1]}")
    a(f"v_cvt_pk_bf16_f32 v{pM}, v{M}, v{M+1}\n v_cvt_pk_bf16_f32 v{pM+3}, v{M}, v{M+1}")

def role_C(a, opt):
    C_OX, C_KV = 49152, 65536
    a("L_C:")
    a("s_sub_u32 s4, s4, 96\n s_lshr_b32 s5, s4, 4\n s_and_b32 s4, s4, 15\n s_mov_b32 s6, 0\n v_lshlrev_b32 v0, 4, v0")
    wave_flag(a, FLG_FC)
    a(f"""
    s_lshr_b32 s52, s3, 1
    s_and_b32 s53, s3, 1
    s_lshl_b32 s58, s4, 1
    s_add_u32 s58, s58, s52
    s_lshl_b32 s55, s5, 5
    s_add_u32 s55, s55, s58
    s_lshl_b32 s55, s55, 12
    s_lshl_b32 s7, s53, 11
    s_add_u32 s55, s55, s7
    s_add_u32 s55, s55, {KVM}
    v_mov_b64 v[24:25], -1
    v_mov_b64 v[26:27], -1
    s_add_u32 s7, s55, {15*0x80000}
    buffer_store_dwordx4 v[24:27], v0, {WS}, s7 offen sc1
    buffer_store_dwordx4 v[24:27], v0, {WS}, s7 offen offset:1024 sc1
    s_lshl_b32 s50, s58, 9
    s_add_u32 s50, s50, {FLG_FH}
    v_lshlrev_b32 v9, 3, v0
    """)
    a("s_waitcnt vmcnt(0)")
    init_arrive(a, "v24")
    if opt.get("hold", 3) & 2:
        wait_go(a, "v24", opt.get("si", 64))
        a(f"s_lshl_b32 s48, s58, 7\n s_add_u32 s48, s48, {FLG_FB + opt.get('hc', 0)}")
        if not opt.get("hi", 1) & 2: wait_scalar(a, WS, "s48", 1, "s7", "v24", 16)
    srd(a, 28, P_WO, 0x400000)
    a("s_lshl_b32 s48, s4, 18")
    load_stream(a, [w2_job(a, W2, "s48", 128, lambda: [a(f"v_accvgpr_write_b32 a{r}, v{r}") for r in range(128, 256)]), w2_job(a, W2, "s48")])
    st2_addrs(a)
    a(f"""
    v_add_u32 v6, {C_OX}, v0
    s_mul_i32 s59, s52, 24576
    v_add_u32 v3, s59, v0
    s_lshl_b32 s7, s53, 12
    s_add_u32 s7, s7, 16384
    v_add_u32 v4, s7, v3
    s_lshl_b32 s7, s3, 11
    s_add_u32 s7, s7, {C_KV}
    v_add_u32 v8, s7, v0
    s_lshl_b32 s7, s52, 12
    s_add_u32 s90, s7, {C_KV + 2048}
    v_add_u32 v11, s90, v0
    v_lshrrev_b32 v24, 2, v2
    v_and_b32 v25, 1, v2
    v_lshl_add_u32 v10, v24, 1, v25
    v_lshlrev_b32 v10, 4, v10
    v_lshl_add_u32 v10, v1, 7, v10
    s_add_u32 s90, s7, {C_KV}
    v_add_u32 v10, s90, v10
    s_lshl_b32 s90, s53, 13
    s_add_u32 s90, s90, s7
    v_add_u32 v12, s90, v6
    s_lshl_b32 s7, s53, 4
    v_add_u32 v14, s7, v2
    v_lshlrev_b32 v15, 2, v1
    v_sub_u32 v14, v14, v15
    """)
    for k in range(8):
        a(f"v_cmp_le_i32 s[{60+2*k}:{61+2*k}], {k if k < 4 else 12 + k}, v14")
    a("v_mov_b32 v14, 0xf149f2ca")
    for r in range(16, 20): a(f"v_mov_b32 v{r}, 0x3f803f80")
    a("v_mov_b32 v21, 0\n v_mov_b32 v22, 0")
    a(f"s_lshl_b32 s54, s58, 7\n s_and_b32 s7, s5, 1\n s_lshl_b32 s7, s7, 2\n s_add_u32 s54, s54, s7\n s_add_u32 s54, s54, {FLG_FB + 8}\n s_mov_b32 s56, 0")
    wait_go(a, "v24", opt.get("si", 64))
    QB, KX, VX = 0, 16, 48
    def fetch(sidx):
        ok = a.label("CB")
        a(f"s_lshl_b32 s49, {sidx}, 2\n s_add_u32 s49, s49, s5\n s_lshr_b32 s57, s49, 1\n s_cmp_gt_u32 s56, s57\n s_cbranch_scc1 {ok}\n s_add_u32 s57, s57, 1")
        wait_scalar(a, WS, "s54", "s57", "s56", "v13", 4)
        a(f"{ok}:")
        a(f"s_lshl_b32 s49, s49, 5\n s_add_u32 s49, s49, s58")
        a(f"s_lshl_b32 s57, s49, 13\n s_lshl_b32 s7, s53, 12\n s_add_u32 s57, s57, s7\n s_add_u32 s57, s57, {QXG}\n s_add_u32 s7, s7, s59\n s_add_u32 m0, s7, 16384")
        a(f"s_lshr_b32 s7, s49, 5\n s_add_u32 s49, s49, s7\n s_lshl_b32 s49, s49, 14\n s_add_u32 s49, s49, {KXV}\n s_lshl_b32 s7, s53, 13\n s_add_u32 s49, s49, s7\n s_add_u32 s7, s7, s59")
        for f in range(4): a(f"buffer_load_dwordx4 v0, {WS}, s57 offen offset:{f*1024} sc1 lds")
        for hf in range(2):
            a(f"s_add_u32 m0, s7, {hf*4096}")
            if hf: a("s_add_u32 s49, s49, 4096")
            for f in range(4): a(f"buffer_load_dwordx4 v0, {WS}, s49 offen offset:{f*1024} sc1 lds")
    fetch("s6")
    tl(a, opt, 2)
    wp_init(a, opt)
    a("s_waitcnt vmcnt(0)\nC_loop:\n s_barrier")
    wp(a, opt, 0)
    for f in range(4): a(f"ds_read_b128 {ar(QB + 4*f)}, v4 offset:{f*1024}")
    for f in range(16): a(f"ds_read_b128 {ar(KX + 4*f)}, v3 offset:{f*1024}")
    a("s_waitcnt lgkmcnt(0)")
    KM, VM, X0, X1, M = 88, 104, 116, 120, 124
    for rt in range(2):
        d = vr(X0 + 4*rt)
        for t in range(4): a(f"v_mfma_f32_16x16x32_bf16 {d}, {ar(KX + (rt*4+t)*4)}, {ar(QB + 4*t)}, {d if t else '0'}")
    for k in range(8): a(f"v_cndmask_b32 v{X0+k}, v14, v{X0+k}, s[{60+2*k}:{61+2*k}]")
    wp(a, opt, 1)
    a("s_cmp_eq_u32 s6, 15\n s_cbranch_scc1 C_direct\n s_lshl_b32 s57, s6, 2\n s_add_u32 s57, s57, s5\n s_add_u32 s57, s57, 1")
    wait_lanes(a, "v9", "s50", 2, "s57", "v24", opt.get("slh", 4))
    a(f"""
    C_direct:
    s_mov_b32 s96, 0
    C_poll:
    buffer_load_dwordx4 v[24:27], v0, {WS}, s55 offen sc1
    buffer_load_dwordx4 v[28:31], v0, {WS}, s55 offen offset:1024 sc1
    s_waitcnt vmcnt(0)
    v_max3_u32 v32, v24, v25, v26
    v_max3_u32 v33, v27, v28, v29
    v_max3_u32 v32, v32, v30, v31
    v_max_u32 v32, v32, v33
    v_cmp_eq_u32 vcc, -1, v32
    s_cbranch_vccz C_have
    """)
    spin_tail(a, "C_poll", opt.get("slc", 1))
    a("C_have:")
    wp(a, opt, 3)
    a("ds_write_b128 v8, v[24:27]\n ds_write_b128 v8, v[28:31] offset:1024\n s_add_u32 s55, s55, 0x80000\n s_waitcnt lgkmcnt(0)\n s_barrier")
    tk = [a.ds(f"ds_read_b128 {vr(KM + 4*t)}, v10 offset:{t*512}") for t in range(4)]
    for f in range(2): a(f"ds_read_b128 {vr(VM + 4*f)}, v11 offset:{f*1024}")
    for t in range(4):
        a.wait_ds(tk[t])
        a(f"v_mfma_f32_16x16x32_bf16 {vr(M)}, {vr(KM + 4*t)}, {ar(QB + 4*t)}, {vr(M) if t else '0'}")
    wp(a, opt, 4)
    PX, PM, O, Lr = 24, 20, 32, 64
    softmax(a, X0, X1, M, 28, PX, PM)
    a("s_waitcnt lgkmcnt(0)")
    a(f"v_mfma_f32_16x16x32_bf16 {vr(Lr)}, v[16:19], {vr(PX)}, 0")
    for f in range(8): a(f"v_mfma_f32_16x16x32_bf16 {vr(O + 4*f)}, {ar(VX + 4*f)}, {vr(PX)}, 0")
    a(f"v_mfma_f32_16x16x16_bf16 {vr(Lr)}, v[16:17], {vr(PM, 2)}, {vr(Lr)}")
    for f in range(8):
        a(f"v_mfma_f32_16x16x16_bf16 {vr(O + 4*f)}, {vr(VM + 2*(f//2), 2)}, {vr(PM + 2*(f%2), 2)}, {vr(O + 4*f)}")
        if f == 2: a(f"v_rcp_f32 v28, v{Lr}")
        if f >= 3:
            for r in range(2): a(f"v_mul_f32 v{O + 2*(f-3) + r}, v{O + 2*(f-3) + r}, v28")
    for hw in range(4):
        r = 68 + 4*hw
        for q in range(max(10, 8*hw), 8*hw + 8, 2): a(f"v_pk_mul_f32 {vr(O + q, 2)}, {vr(O + q, 2)}, v[28:29] op_sel_hi:[1,0]")
        for i in range(4): a(f"v_cvt_pk_bf16_f32 v{r+i}, v{O + 8*hw + i}, v{O + 8*hw + 4 + i}")
        a(f"ds_write_b128 v12, {vr(r)} offset:{hw*1024}")
    wp(a, opt, 5)
    a("s_cmp_eq_u32 s6, 15\n s_cbranch_scc1 C_nofetch\n s_add_u32 s44, s6, 1")
    fetch("s44")
    a("C_nofetch:")
    a(f"s_lshl_b32 s48, s6, 2\n s_add_u32 s48, s48, s5\n s_lshl_b32 s48, s48, 4\n s_add_u32 s48, s48, s4\n s_lshl_b32 s48, s48, 15\n s_add_u32 s48, s48, {CP}")
    a("s_waitcnt lgkmcnt(0)\n s_barrier")
    wp(a, opt, 6)
    def announce():
        a("s_cmp_lg_u32 s6, 15\n s_cbranch_scc1 C_noann\n s_cmp_lt_u32 s5, 2\n s_cbranch_scc1 C_noann")
        flag_store(a, "s47", "16", "v13")
        a("C_noann:")
    stage2(a, "v6", "v7", "s48", lambda f: ar(4*f), 64, 24, 8, ((1, opt.get("an", 6)), announce) if opt.get("rd", 1) == 2 else None)
    wp(a, opt, 7)
    a("s_add_u32 s6, s6, 1\n s_waitcnt vmcnt(0)")
    flag_store(a, "s47", "s6", "v13")
    wp(a, opt, 2)
    a("s_cmp_lt_u32 s6, 16")
    a.fence()
    a("s_cbranch_scc1 C_loop")
    worker_end(a, opt)

def make_sel(a, b, t):
    a(f"v_and_b32 v{t}, 1, v2\n v_lshlrev_b32 v{t}, 4, v{t}\n v_mov_b32 v{t+1}, 0x3f80\n v_lshlrev_b32 v{t}, v{t}, v{t+1}")
    a(f"v_bfe_u32 v{t+1}, v2, 1, 2")
    for p in range(4):
        a(f"v_cmp_eq_u32 vcc, {p}, v{t+1}\n v_cndmask_b32 v{b+p}, 0, v{t}, vcc")

def role_R(a, opt):
    a.note('R: one row of every second segment: sums the partial outputs, gate, blend, store')
    a("L_R:")
    if opt.get("noR"):
        init_arrive(a, "v24"); a("s_waitcnt vmcnt(0)\n s_endpgm")
    a("s_sub_u32 s4, s4, 188\n s_lshr_b32 s5, s4, 5\n s_and_b32 s4, s4, 31")
    a(f"""
    v_lshlrev_b32 v4, 15, v1
    v_lshl_add_u32 v4, v2, 4, v4
    s_lshl_b32 s7, s4, 10
    s_lshl_b32 s43, s3, 8
    s_add_u32 s7, s7, s43
    v_add_u32 v4, s7, v4
    v_lshlrev_b32 v5, 3, v1
    v_lshl_add_u32 v5, v2, 4, v5
    v_add_u32 v5, s7, v5
    v_mov_b64 v[24:25], -1
    v_mov_b64 v[26:27], -1
    s_lshl_b32 s45, s5, 19
    s_add_u32 s45, s45, {CP + (62 << 19)}
    """)
    for u in range(4): a(f"buffer_store_dwordx4 v[24:27], v4, {WS}, s45 offen sc1\n s_add_u32 s45, s45, 0x20000")
    a("s_waitcnt vmcnt(0)")
    init_arrive(a, "v24")
    if opt.get("warm", 1):
        a("s_lshl_b32 s7, s5, 5\n s_add_u32 s7, s7, s4\n s_lshl_b32 s7, s7, 2\n s_add_u32 s7, s7, s3\n s_lshl_b32 s7, s7, 14\n v_lshlrev_b32 v24, 7, v0")
        for n, p in enumerate([(P_WQ, P_WV, P_WO), (P_WO,), (P_WK, P_WQ, P_WV, P_WO), (P_WQ, P_WO), (P_WV, P_WO)][opt.get("warm", 1) - 1]):
            srd(a, 24, p, 0x400000)
            a(f"buffer_load_dword v{26+2*n}, v24, {W1}, s7 offen\n s_add_u32 s43, s7, 8192\n buffer_load_dword v{27+2*n}, v24, {W1}, s43 offen")
            if opt.get("wseq"): a("s_waitcnt vmcnt(0)")
        a("s_waitcnt vmcnt(0)")
    srd(a, 20, P_OUT, 0x200000); srd(a, 24, P_GW, 1024)
    make_sel(a, 16, 24)
    a(f"""
    v_lshlrev_b32 v3, 7, v0
    v_lshlrev_b32 v0, 4, v0
    buffer_load_dwordx4 v[8:11], v0, {W1}, 0 offen
    s_lshl_b32 s7, s5, 2
    s_add_u32 s7, s7, s3
    s_lshl_b32 s7, s7, 11
    s_add_u32 s54, s7, {FLG_FC}
    s_add_u32 s55, s7, {FLG_FF}
    s_mov_b32 s6, 0
    s_mov_b32 s58, {f32bits(-math.log2(math.e))}
    """)
    for r in range(76, 80): a(f"v_mov_b32 v{r}, 0")
    wait_go(a, "v24", opt.get("si", 64))
    tl(a, opt, 2)
    wp_init(a, opt)
    a(f"""
    R_loop:
    s_lshl_b32 s43, s6, 1
    s_add_u32 s43, s43, s5
    s_add_u32 s57, s6, 1
    s_lshl_b32 s44, s43, 15
    s_lshl_b32 s7, s4, 10
    s_add_u32 s7, s7, s44
    buffer_load_dwordx4 v[12:15], v0, {X}, s7 offen
    """)
    wait_lanes(a, "v3", "s55", 14, "s57", "v24", opt.get("slr", 2))
    wp(a, opt, 0)
    a(f"s_lshl_b32 s45, s43, 19\n s_and_b32 s45, s45, {hex((opt.get('fring', 64) << 19) - 1)}\n s_add_u32 s45, s45, {FP}")
    for u in range(4):
        if u == 3: a("s_mov_b32 exec_hi, 0")
        a(f"buffer_load_dwordx4 {vr(64 + 4*u)}, v4, {WS}, s45 offen {['sc1', 'sc1 nt'][opt.get('rnt', 0)]}")
        if u < 3: a("s_add_u32 s45, s45, 0x20000")
    a("s_mov_b64 exec, -1")
    a("v_mov_b32 v24, 0")
    for p in range(4): a(f"v_dot2c_f32_bf16 v24, v{12+p}, v{8+p}")
    for k in (8, 4, 2, 1): a(f"v_add_f32_dpp v24, v24, v24 row_ror:{k} row_mask:0xf bank_mask:0xf")
    a("""
    v_mov_b32 v25, v24
    v_permlane16_swap_b32 v24, v25
    v_add_f32 v24, v24, v25
    v_mov_b32 v25, v24
    v_permlane32_swap_b32 v24, v25
    v_add_f32 v24, v24, v25
    v_mul_f32 v24, s58, v24
    v_exp_f32 v24, v24
    v_add_f32 v24, 1.0, v24
    v_rcp_f32 v6, v24
    v_sub_f32 v7, 1.0, v6
    s_waitcnt vmcnt(0)
    """)
    for u in range(4): a(f"v_mfma_f32_16x16x32_bf16 v[28:31], v[16:19], {vr(64 + 4*u)}, {'v[28:31]' if u else '0'}")
    for i in range(4): a(f"v_mul_f32 v{28+i}, v{28+i}, v7")
    wp(a, opt, 1)
    rd = opt.get("rd", 1)
    if rd == 1: a("s_cmp_eq_u32 s6, 31\n s_cbranch_scc1 R_direct")
    if rd == 3: a("s_cmp_eq_u32 s6, 31\n s_cbranch_scc1 R_watch")
    a("s_and_b32 s7, s6, 1\n s_lshl_b32 s7, s7, 14\n s_add_u32 s46, s54, s7\n s_lshr_b32 s57, s6, 1\n s_add_u32 s57, s57, 1")
    wait_lanes(a, "v3", "s46", 16, "s57", "v24", opt.get("slr", 2))
    if rd == 3:
        a(f"""
        s_branch R_direct
        R_watch:
        s_lshl_b32 s45, s43, 4
        s_and_b32 s7, s4, 15
        s_add_u32 s45, s45, s7
        s_lshl_b32 s45, s45, 15
        s_add_u32 s45, s45, {CP}
        s_mov_b32 s96, 0
        s_mov_b64 exec, 1
        R_w1:
        buffer_load_dword v24, v4, {WS}, s45 offen sc1
        s_waitcnt vmcnt(0)
        v_cmp_eq_u32 vcc, -1, v24
        s_cbranch_vccz R_w2
        """)
        spin_tail(a, "R_w1", opt.get("slw", 1))
        a("R_w2:\n s_mov_b64 exec, -1")
        if opt.get("rw"): a(f"s_sleep {opt['rw']}")
    a("R_direct:\n s_mov_b32 s96, 0")
    wp(a, opt, 2)
    a(f"R_poll:\n s_lshl_b32 s45, s43, 19\n s_add_u32 s45, s45, {CP}")
    tok = []
    for u in range(4):
        tok.append(a.vm(f"buffer_load_dwordx4 {vr(32 + 4*u)}, v4, {WS}, s45 offen sc1"))
        if u < 3: a("s_add_u32 s45, s45, 0x20000")
    for u in range(4):
        a.wait_vm(tok[u])
        a(f"v_mfma_f32_16x16x32_bf16 v[24:27], v[16:19], {vr(32 + 4*u)}, {'v[24:27]' if u else '0'}")
        a(f"v_max3_u32 v{48+u}, v{32+4*u}, v{33+4*u}, v{34+4*u}\n v_max_u32 v{48+u}, v{48+u}, v{35+4*u}")
    a("v_max3_u32 v48, v48, v49, v50\n v_max_u32 v48, v48, v51\n v_cmp_eq_u32 vcc, -1, v48\n s_cbranch_vccz R_have")
    spin_tail(a, "R_poll", opt.get("sld", 2))
    a("R_have:\n s_nop 3")
    for i in range(4): a(f"v_fma_f32 v{24+i}, v{24+i}, v6, v{28+i}")
    a(f"""
    v_cvt_pk_bf16_f32 v24, v24, v25
    v_cvt_pk_bf16_f32 v25, v26, v27
    s_mov_b32 exec_hi, 0
    buffer_store_dwordx2 v[24:25], v5, {OUT}, s44 offen {['', 'sc1', 'nt', 'sc0 sc1'][opt.get('ost', 1)]}
    s_mov_b64 exec, -1
    """)
    wp(a, opt, 3)
    a("s_add_u32 s6, s6, 1\n s_cmp_lt_u32 s6, 32")
    a.fence()
    a("s_cbranch_scc1 R_loop\n s_waitcnt vmcnt(0)")
    wp_dump(a, opt)
    tl(a, opt, 3)
    a("s_waitcnt vmcnt(0)\n s_endpgm")

TUNED = dict(fq=18, a1=9, nv3=2, p2v=1, p3a=7, p3v=5, p4a=2, p4v=1, p5a=4, p5v=2, p6a=3, p7a=7, p7v=7, p8a=1, p8v=1, v0=7, vs=2)
def build(opt):
    opt = dict(TUNED, **opt)
    from chain import role_chain
    global ST2
    ST2 = ['sc1', 'sc1 nt', ''][opt.get('st2', 0)]
    a = Asm()
    prologue(a, opt)
    if not opt.get("nocfr"): role_R(a, opt)
    role_chain(a, opt)
    role_B(a, opt)
    if not opt.get("nocfr"):
        role_C(a, opt)
        role_F(a, opt)
    a("L_code_end:")
    hdr = open("cdna_kernels/%s.s.ref" % NAME).read().split("; Override")[0] if opt.get("hdr", True) else ""
    k = NAME + "_kernel"
    return f"""{hdr}; @launch grid=(256,1,1) block=(256,1,1) lds={LDS_BYTES}
.amdgcn_target "amdgcn-amd-amdhsa--gfx950"
.text
.globl {k}
.p2align 8
.type {k},@function
{k}:
{a.text()}.section .rodata,"a"
.p2align 6
.amdhsa_kernel {k}
  .amdhsa_next_free_vgpr 512
  .amdhsa_next_free_sgpr 102
  .amdhsa_accum_offset 256
  .amdhsa_group_segment_fixed_size 0
  .amdhsa_kernarg_size 120
  .amdhsa_user_sgpr_count 2
  .amdhsa_user_sgpr_kernarg_segment_ptr 1
  .amdhsa_system_sgpr_workgroup_id_x 1
.end_amdhsa_kernel
"""

if __name__ == "__main__":
    opt = {}
    out = "cdna_kernels/%s.s" % NAME
    for arg in sys.argv[1:]:
        k, _, v = arg.partition("=")
        if k == "out": out = v
        elif k in ("stamps", "drop", "xp"): opt[k] = v.split(",")
        else: opt[k] = int(v, 0) if v else 1
    open(out, "w").write(build(opt))
    print("wrote", out)
```

```python
from asmlib2 import *
import gen as G

vLin, vPub, vT, vMem0, vIdx, vQw, vOr, vPst = ["v%d" % i for i in range(8)]
vQr, vOw, vInf, vJunk, vKa, vQq = "v8", "v9", "v20", "v21", "v22", "v23"
vW, vKp = "v8", "v9"
FB, SEL, ONES, KV = 10, 12, 16, 60
MEMA, ACQ, ACK = 24, 56, 64
LS = MEMA + 16
ACV, QBUF = 72, [88, 96, 104, 112, 120]
QS = 1024
L_MX, L_QK, L_OB, L_AW, L_W = 0, 8192, 12288, 16384, 32768
L_VM = L_OB + 2048
WSTR = 32768
SM = "v_smfmac_f32_16x16x64_bf16"
MF = "v_mfma_f32_16x16x32_bf16"
MF16 = "v_mfma_f32_16x16x16_bf16"

def zero(a, lo, hi, val="0"):
    for r in range(lo, hi, 2): a(f"v_mov_b64 {vr(r, 2)}, {val}")
def busy(a, n):
    for _ in range(n): a(f"v_mov_b32 {vT}, 0\n s_nop 2")
def wq_half(j, h): return f"ds_read_b128 {vr(QBUF[j % 5] + 4*h)}, {vW} offset:{WSTR + j*2048 + 1024*h}"
KX, VX = 72, 104
NK = 224
def kx_load(f, dst, fl="sc1"): return f"buffer_load_dwordx4 {dst}, {vLin}, {G.WS}, {('s52', 's87')[f // 4]} offen offset:{(f % 4)*1024} {fl}"
def vx_load(f, fl="sc1"): return f"buffer_load_dwordx4 {vr(VX + 4*f)}, {vLin}, {G.WS}, s57 offen offset:{f*1024} {fl}"
def addr_prep(a):
    for u in range(1, 4): a(f"v_add_u32 v{LS + 4*u}, s{80+u}, {vLin}")

def next_seg(a, P):
    a(f"""
    v_readfirstlane_b32 s84, v{FB}
    v_readfirstlane_b32 s85, v{FB+1}
    s_mov_b32 s57, s56
    s_add_u32 s90, s6, 2
    s_cmp_lt_u32 s90, 64
    s_cselect_b32 s7, {G.KSEG}, 0
    s_add_u32 s52, s52, s7
    s_min_u32 s90, s90, 63
    s_lshr_b32 s91, s90, 1
    s_bitcmp1_b32 s90, 0
    s_cselect_b32 s7, s85, s84
    s_cmp_gt_u32 s7, s91
    s_cbranch_scc0 {P}_fbwait
    {P}_fbok:
    s_add_u32 s87, s52, 0x1000
    s_add_u32 s56, s52, s95
    """)

def ring_next(a):
    a(f"""
    s_mov_b32 s51, s48
    s_and_b32 s7, s6, 3
    s_lshl_b32 s48, s7, 13
    s_add_u32 s48, s48, {G.MEMB}
    s_lshr_b32 s97, s7, 1
    s_sub_u32 s98, s97, 1
    s_mov_b32 s99, s98
    s_and_b32 s7, s7, 1
    s_lshl_b32 s7, s7, 18
    s_add_u32 s45, s7, {G.PART}
    s_add_u32 s46, s45, 0x1000
    s_add_u32 s47, s44, s7
    """)

def fb_wait(a, P, prof=0):
    a(f"{P}_fbwait:")
    if prof: a("s_add_u32 s24, s24, 59")
    a("s_and_b32 s92, s90, 1\n s_lshl_b32 s92, s92, 2\n s_add_u32 s92, s92, s55\n s_add_u32 s93, s91, 1")
    G.wait_scalar(a, G.WS, "s92", "s93", "s7", vT, 1)
    a(f"s_branch {P}_fbok")

def startup(a, opt):
    WS, DBG = G.WS, G.DBG
    a.note("""chain workgroup (one head): Wq/Wk/Wv/Wo of the head stay in registers + LDS for all 64 steps.
waves 0,1 (A): share of q,k, attention of the 8 memory rows, share of Wo; waves 2,3 (V): share of q,k, all of v, share of Wo.
The 8-row products use the 2:4 sparse matrix op: even rows take the first two of every four k, odd rows the other two.""")
    a("L_chain:")
    G.srd(a, 20, G.P_MEM0, 8192); G.srd(a, 24, G.P_WQ, 0x400000); G.srd(a, 28, G.P_WK, 0x400000)
    G.srd(a, 32, G.P_WV, 0x400000); G.srd(a, 36, G.P_WO, 0x400000)
    G.make_sel(a, SEL, 20)
    a(f"""
    v_mov_b32 v22, v0
    v_lshlrev_b32 v0, 4, v0
    v_and_b32 v24, 1, v2
    v_lshrrev_b32 v25, 2, v2
    v_and_b32 v26, 3, v2
    v_lshrrev_b32 v28, 1, v2
    v_and_b32 v29, 1, v1
    v_lshrrev_b32 v23, 1, v1
    ; weight voffsets: rows 128w + 32(g/2) + 8(g%2), column bytes 256h + 16n
    v_lshlrev_b32 v27, 18, v23
    v_lshl_add_u32 v27, v29, 16, v27
    v_lshl_add_u32 v27, v2, 4, v27
    s_lshl_b32 s90, s4, 8
    s_lshl_b32 s91, s3, 20
    s_add_u32 s90, s90, s91
    v_add_u32 v30, s90, v27
    v_add_u32 v31, 8192, v30
    ; LDS scatter bases. q,k (v16): region swap(n/4), slot (w - n/4)%4 ; v (v17): region n/4, slot (w - 2 - n/8)%4
    v_lshlrev_b32 v18, 8, v1
    v_lshl_add_u32 v18, v26, 6, v18
    v_add_u32 v18, {L_W}, v18
    s_mov_b32 s90, {WSTR}
    v_lshrrev_b32 v27, 1, v25
    v_and_b32 v19, 1, v25
    v_lshl_add_u32 v19, v19, 1, v27
    v_mul_lo_u32 v16, v19, s90
    v_sub_u32 v19, s3, v25
    v_and_b32 v19, 3, v19
    v_lshl_add_u32 v16, v19, 12, v16
    v_add_u32 v16, v16, v18
    v_mul_lo_u32 v17, v25, s90
    v_sub_u32 v19, s3, v27
    v_add_u32 v19, 2, v19
    v_and_b32 v19, 3, v19
    v_lshl_add_u32 v17, v19, 12, v17
    v_add_u32 v17, v17, v18
    ; v18 = own pair of regions (2(w%2)), v19 = own q/k region
    s_and_b32 s91, s3, 1
    s_mul_i32 s91, s91, {2*WSTR}
    s_add_u32 s91, s91, {L_W}
    v_add_u32 v18, s91, {vLin}
    s_lshr_b32 s7, s3, 1
    s_mul_i32 s7, s7, {WSTR}
    v_add_u32 v19, s7, v18
    ; Wo voffset (v11): rows 16(g/2)+4(g%2), column bytes 256w + 16n, head base
    v_lshlrev_b32 v27, 14, v23
    v_lshl_add_u32 v27, v29, 12, v27
    v_lshl_add_u32 v27, v2, 4, v27
    s_lshl_b32 s90, s4, 17
    s_lshl_b32 s91, s3, 8
    s_add_u32 s90, s90, s91
    v_add_u32 v11, s90, v27
    v_mov_b32 v20, 0x4444
    v_mov_b32 v21, 0xeeee
    v_cmp_eq_u32 vcc, 0, v24
    v_cndmask_b32 {vIdx}, v21, v20, vcc
    s_lshl_b32 s86, s3, 10
    s_add_u32 s90, s86, {L_MX}
    v_add_u32 {vMem0}, s90, {vLin}
    ; q write: QK + w*QS + (n/4)*128 + 2g*16 + (n%4)*4
    v_lshlrev_b32 {vQw}, 7, v25
    v_lshl_add_u32 {vQw}, v1, 5, {vQw}
    v_lshl_add_u32 {vQw}, v26, 2, {vQw}
    s_mul_i32 s90, s3, {QS}
    s_add_u32 s90, s90, {L_QK}
    v_add_u32 {vQw}, s90, {vQw}
    ; v27 = g*128 + (2(n/4) + n%2)*16 ; lanes n%4 < 2 carry keys, the others queries
    v_lshl_add_u32 v27, v25, 1, v24
    v_lshlrev_b32 v27, 4, v27
    v_lshl_add_u32 v27, v1, 7, v27
    v_cmp_gt_u32 vcc, 2, v26
    v_add_u32 {vQr}, {L_QK}, v27
    s_add_u32 s90, s86, {L_OB}
    v_add_u32 v20, s90, v27
    v_add_u32 v21, 512, v20
    v_cndmask_b32 {vOw}, v20, v21, vcc
    ; o read: OB + (2g + n%2)*128 + (n/2)*16
    v_lshl_add_u32 v27, v1, 1, v24
    v_lshlrev_b32 v27, 7, v27
    v_lshl_add_u32 v27, v28, 4, v27
    v_add_u32 {vOr}, {L_OB}, v27
    ; partial store: (8w + 2(n/4) + g/2)*8192 + (g%2)*2048 + 64h + 16(n%4)
    v_lshl_add_u32 v27, v25, 1, v23
    v_lshlrev_b32 v27, 13, v27
    v_lshl_add_u32 v27, v29, 11, v27
    v_lshl_add_u32 v27, v26, 4, v27
    s_lshl_b32 s90, s3, 16
    s_lshl_b32 s91, s4, 6
    s_add_u32 s90, s90, s91
    v_add_u32 {vPst}, s90, v27
    ; mem0 voffset (v25): (n/2)*1024 + 2*(128w + 32g + 16(n%2))
    v_lshlrev_b32 v25, 10, v28
    v_lshl_add_u32 v25, v1, 6, v25
    v_lshl_add_u32 v25, v24, 5, v25
    s_lshl_b32 s91, s3, 8
    v_add_u32 v25, s91, v25
    ; key image read (v24): QK + 512 + (2(w%2) + g/2)*QS + (lane%32)*16
    s_and_b32 s91, s3, 1
    s_mul_i32 s91, s91, {2*QS}
    s_add_u32 s91, s91, {L_QK + 512}
    v_mul_u32_u24 v24, {QS}, v23
    v_and_b32 v27, 31, v22
    v_lshl_add_u32 v24, v27, 4, v24
    v_add_u32 v24, s91, v24
    ; publish: (w/2)*4096 + h*128 + (w%2)*64 + g*32 + (n%4)*8 + (n/4)*4   (lanes g<2, n<8)
    s_lshr_b32 s90, s3, 1
    s_lshl_b32 s90, s90, 12
    s_lshl_b32 s91, s4, 7
    s_add_u32 s90, s90, s91
    s_and_b32 s91, s3, 1
    s_lshl_b32 s91, s91, 6
    s_add_u32 s90, s90, s91
    v_lshlrev_b32 v27, 5, v29
    v_lshl_add_u32 v27, v26, 3, v27
    v_and_b32 v20, 4, v2
    v_add_u32 v27, v27, v20
    v_add_u32 {vPub}, s90, v27
    s_mov_b32 s58, 0x00ff00ff
    s_mov_b32 s59, 0
    s_lshl_b32 s44, s4, 2
    s_add_u32 s44, s44, s3
    s_lshl_b32 s44, s44, 11
    s_add_u32 s44, s44, {G.PART}
    s_lshl_b32 s55, s4, 7
    s_lshl_b32 s54, s4, 2
    s_add_u32 s54, s54, s3
    s_lshl_b32 s54, s54, 7
    s_add_u32 s54, s54, {G.FLG_FH}
    s_add_u32 s55, s55, {G.FLG_FB}
    """)
    for u in range(1, 4):
        a(f"s_add_u32 s7, s3, {u}\n s_and_b32 s7, s7, 3\n s_lshl_b32 s7, s7, 10\n s_add_u32 s{80+u}, s7, {L_MX}")
    zero(a, 20, 24, "-1")
    for sl in range(2):
        a(f"s_add_u32 s7, s44, {sl*0x40000}")
        for o in (0, 1024): a(f"buffer_store_dwordx4 v[20:23], {vLin}, {WS}, s7 offen offset:{o} sc1")
    a("s_mov_b64 exec, s[58:59]")
    for sl in range(4):
        a(f"s_mov_b32 s7, {G.MEMB + sl*8192}\n buffer_store_dword v20, {vPub}, {WS}, s7 offen sc1")
    a("s_mov_b64 exec, -1")
    G.flag_store(a, "s54", "0", "v27")
    def job(srdn, vdst, done):
        return dict(kind='lds', srd=srdn, stride=8192, v0="v30", v1="v31", vdst=vdst,
                    row=lambda u: 64*((u//4) % 2) + 16*(u % 2) + 4*(u//8) + 2*((u//2) % 2),
                    imm=lambda grp, c: (grp//2)*16384 + (c % 2)*2048 + (grp % 2)*1024 + (c//2)*16, done=done)
    def pick(fa, fv, after=None):
        def done():
            lv, le = a.label("PV"), a.label("PE")
            a(f"s_waitcnt lgkmcnt(0)\n s_barrier\n s_cmp_ge_u32 s3, 2\n s_cbranch_scc1 {lv}")
            fa()
            a(f"s_branch {le}\n{lv}:")
            fv()
            a(f"{le}:\n s_waitcnt lgkmcnt(0)\n s_barrier")
            if after: after()
        return done
    def rd(src, dst, off=0):
        return lambda: [a(f"ds_read_b128 {dst(f)}, {src} offset:{off + f*1024}") for f in range(32)]
    nothing = lambda: None
    def wo_group(grp):
        if grp == 2: a(f"buffer_load_dwordx2 v[30:31], off, {WS}, s55 sc1")
        if grp == opt.get("wg", 2) and opt.get("wr", 1) & 1:
            a(f"v_lshlrev_b32 v64, 1, {vLin}\n v_lshlrev_b32 v65, 3, {vLin}\n s_add_u32 s7, s44, 0x40000\n s_lshl_b32 s90, s3, 13\n s_add_u32 s90, s90, {G.MEMB}")
            a(f"buffer_load_dword v66, v64, {WS}, s44 offen sc1\n buffer_load_dword v67, v64, {WS}, s7 offen sc1\n buffer_load_dword v68, v65, {WS}, s90 offen sc1")
        if grp == opt.get("wg", 2) and opt.get("tw", 0):
            a(f"v_lshrrev_b32 v69, 4, {vLin}\n v_mul_u32_u24 v70, {G.KSEG}, v69\n s_mov_b32 s7, {G.KXV + 32*16384}\n buffer_load_dword v70, v70, {WS}, s7 offen sc1")
        if grp == opt.get("wg", 2) and opt.get("wr", 1) & 2:
            a(f"""
            s_getpc_b64 s[60:61]
            L_pc0:
            s_add_u32 s60, s60, FA_loop-L_pc0
            s_addc_u32 s61, s61, 0
            s_mov_b32 s62, SA_loop-FA_loop
            s_mov_b32 s63, 0x20000
            v_lshlrev_b32 v69, 2, {vLin}
            s_lshl_b32 s7, s3, 12
            buffer_load_dword v69, v69, s[60:63], s7 offen
            """)
        if grp == opt.get("hg", 2) and opt.get("hp", 0):
            sk = a.label("HP")
            a(f"s_cmp_eq_u32 s3, 0\n s_cbranch_scc1 {sk}\n v_lshlrev_b32 v71, 3, {vLin}\n s_xor_b32 s7, s4, s3\n s_lshl_b32 s7, s7, 17")
            a(f"s_mul_i32 s90, s3, {5*8192}\n s_add_u32 s7, s7, s90\n s_sub_u32 s7, s7, {4*8192}")
            for k in range(5): a(f"buffer_load_dword v{72 + k}, v71, {G.W4}, s7 offen\n s_add_u32 s7, s7, 8192")
            a(f"{sk}:")
            a.vm_n -= 5
        lv, le = a.label("OV"), a.label("OE")
        a(f"s_cmp_ge_u32 s3, 2\n s_cbranch_scc1 {lv}")
        for c in range(6):
            for r in range(4): a(f"v_accvgpr_write_b32 a{128 + (c*2 + grp//2)*8 + (grp % 2)*4 + r}, v{32 + 4*c + r}")
        for c in (6, 7): a(f"ds_write_b128 {vMem0}, {vr(32 + 4*c)} offset:{L_AW + (((c - 6)*2 + grp//2)*2 + grp % 2)*2048}")
        a(f"s_branch {le}\n{lv}:")
        for c in range(8): a(f"ds_write_b128 v18, {vr(32 + 4*c)} offset:{(c*2 + grp//2)*2048 + (grp % 2)*1024}")
        a(f"{le}:")
    def early():
        for hf in range(2):
            for c in range(2):
                a(f"buffer_load_dwordx2 {vr((20, 26)[hf] + 2*c, 2)}, v25, {G.OUT}, 0 offen offset:{8*hf + 16*c}")
        a(f"buffer_load_dword v16, off, {DBG}, 0 offset:{G.D_GO} sc1\n buffer_load_dword v17, off, {DBG}, 0 sc1")
    kd = G.lds_to_regs(a, "v19", lambda f: ar(4*f))
    jobs = [dict(job(G.W2, "v16", kd), first=lambda: G.init_arrive(a, "v27")),
            job(G.W1, "v16", G.lds_to_regs(a, "v19", lambda f: vr(128 + 4*f))),
            job(G.W3, "v17", pick(nothing, rd("v18", lambda f: ar(128 + 4*f)), early)),
            dict(kind='lds', srd=G.W4, stride=1024, v0="v11", row=lambda u: 64*(u//8) + 32*((u//4) % 2) + 8*(u % 2) + 2*((u//2) % 2), group=wo_group)]
    if "tj" in opt:
        d0 = jobs[opt["tj"]]["done"]
        def dd():
            d0(); n0 = a.vm_n; G.tl(a, opt, 4, "v27"); a.vm_n = n0
        jobs[opt["tj"]]["done"] = dd
    if opt.get("jo"): jobs[0], jobs[1] = dict(jobs[1], first=jobs[0]["first"]), dict(jobs[0], first=None)
    G.load_stream(a, jobs, tmp=64, depth=8, out=32, fl=['', 'nt', 'sc1'][opt.get('cnt', 0)], ahead=opt.get('ah', 0))
    a("s_waitcnt vmcnt(0)")
    if "tj" not in opt: G.tl(a, opt, 4, "v32")
    a(f"""
    v_mov_b32 v33, v24
    v_readfirstlane_b32 s7, v16
    v_readfirstlane_b32 s43, v17
    v_mov_b64 {vr(LS, 2)}, v[26:27]
    v_mov_b64 {vr(LS+2, 2)}, v[28:29]
    v_mov_b64 v[24:25], v[20:21]
    v_mov_b64 v[26:27], v[22:23]
    s_cmp_ge_u32 s7, 1
    s_cbranch_scc1 L_chain_up
    """)
    G.wait_go(a, vT, 2)
    G.wait_scalar(a, DBG, 0, 0, "s43", vT, 2)
    a(f"""
    buffer_load_dwordx2 v[30:31], off, {WS}, s55 sc1
    s_waitcnt vmcnt(0)
    L_chain_up:
    v_mov_b64 {vr(FB, 2)}, v[30:31]
    s_lshl_b32 s52, s4, 14
    s_add_u32 s52, s52, {G.KXV - G.KSEG}
    s_and_b32 s7, s3, 1
    s_lshl_b32 s95, s7, 12
    s_add_u32 s95, s95, 0x2000
    s_mov_b32 s56, 0
    s_lshl_b32 s53, s4, 12
    s_add_u32 s53, s53, {G.KVM - 0x20000}
    s_lshl_b32 s7, s7, 10
    s_add_u32 s53, s53, s7
    """)
    a(f"""
    s_mov_b32 s50, {G.MEMB}
    s_mov_b32 s80, 0
    s_mov_b32 s78, {G.f32bits(float(opt.get("thr", 12)))}
    s_mov_b64 s[88:89], 0
    s_mov_b32 s48, {G.MEMB + 3*8192}
    s_waitcnt lgkmcnt(0)
    s_mov_b32 s6, -2
    """)
    a("s_cmp_ge_u32 s3, 2\n s_cbranch_scc1 L_nokx")
    next_seg(a, "C1")
    for f in range(8): a(kx_load(f, vr(KX + 4*f)))
    a("s_mov_b32 s6, -1")
    next_seg(a, "C0")
    if opt.get("sw", 0): a("s_waitcnt vmcnt(0)")
    a("L_nokx:")
    G.tl(a, opt, 2, "v56", True)
    a("s_mov_b32 s6, 0")
    ring_next(a)
    addr_prep(a)
    if opt.get("prof"):
        for k in range(20, 32): a(f"s_mov_b32 s{k}, 0")
    a("s_cmp_ge_u32 s3, 2\n s_cbranch_scc1 L_vstart")
    for r in range(4): a(f"v_mov_b32 v{ONES+r}, 0x3f803f80")
    zero(a, ACQ, ACQ + 16)
    a(f"v_mov_b32 {vKa}, v33")
    zero(a, 120, 124, "-1")
    a(f"ds_write_b128 {vMem0}, v[120:123] offset:{L_VM}\n s_waitcnt lgkmcnt(0)")
    a(f"v_and_b32 {vInf}, 32, {vLin}\n v_lshlrev_b32 {vInf}, 26, {vInf}\n v_or_b32 {vInf}, 0x7f800000, {vInf}")
    a.fence()
    a("s_cmp_lt_u32 s43, 32\n s_cbranch_scc1 SA_loop\n s_branch FA_loop\nL_vstart:")
    a(f"v_mov_b32 {vW}, v18\n v_mov_b32 {vKp}, v33")
    zero(a, 16, 20, "-1")
    for j in range(5):
        for h in range(2): a(wq_half(j, h))
    zero(a, ACQ, ACQ + 32)
    a("s_waitcnt lgkmcnt(0)")
    a.fence()
    a("s_cmp_lt_u32 s43, 32\n s_cbranch_scc1 SV_loop\n s_branch FV_loop")
    fb_wait(a, "C0")
    fb_wait(a, "C1")

def loop(a, opt, P, st, A):
    WS = G.WS
    prof = opt.get("prof"); free = opt.get("free")
    cnt = [0]
    sel = opt.get("stamps")
    dflt = ("top", "end", "15", "31", "sc", "pv", "wo", "w9", "h1")
    jn = [0]
    def stamp(k):
        if opt.get("jit", 0) % 10 and opt["jit"] < 10 and str(k) in ("top", "2", "9", "14", "20", "30", "s2", "s9", "pv", "p2", "wo", "w5", "w12", "h1", "h2", "g1", "v3", "v12", "sc"):
            jn[0] += 1
            sk = a.label("JT")
            a(f"s_cselect_b32 s70, 1, 0\n s_mul_i32 s71, s6, {7 + 2*jn[0]}\n s_mul_i32 s72, s4, {13 + 6*jn[0]}\n s_add_u32 s71, s71, s72\n s_mul_i32 s72, s3, {29 + opt['jit']}\n s_xor_b32 s71, s71, s72")
            a(f"s_and_b32 s71, s71, 15\n s_cmp_lg_u32 s71, {jn[0] % 16}\n s_cbranch_scc1 {sk}\n s_sleep {(5, 17, 40)[jn[0] % 3]}\n{sk}:\n s_cmp_lg_u32 s70, 0")
        if prof == 1 and (k in ("top", "end") or str(k) in (sel or dflt)):
            i = cnt[0]; cnt[0] += 1
            assert i < 9
            a(f"s_mem{'real' if opt.get('trace') else ''}time s[{60+2*i}:{61+2*i}]")
    tk = {}
    fill = {}
    def F(i, x, cls=None):
        if cls is None: cls = 1 if (isinstance(x, str) and x.startswith("v_")) else 0
        fill.setdefault(i, []).append((cls, x if callable(x) else (lambda: a(x))))
    def D(i, key, text, cls=0): F(i, lambda: tk.__setitem__(key, a.ds(text)), cls)
    def W(i, key): F(i, lambda: a.wait_ds(tk[key]))
    def Z(i, lo, hi, val="0"):
        for r in range(lo, hi, 2): F(i, f"v_mov_b64 {vr(r, 2)}, {val}")
    def run(i):
        for cls, f in sorted(fill.pop(i, []), key=lambda e: e[0]): f()
    def mem_rd(i, tau): D(i, ("m", tau), f"ds_read_b128 {vr(MEMA + 4*tau)}, v{LS + 4*(tau % 4)} offset:{4096*(tau//4)}")
    nw = opt.get("nw", 0x60)
    val = opt.get("val", 1)
    def bar(i, bit=0):
        if not nw >> bit & 1: W(i, "wr")
        F(i, "s_barrier")
    def add(r): return f"v_add_f32 v{r}, v{r}, v{r+1}"
    def cvt(d, x, y): return f"v_cvt_pk_bf16_f32 v{d}, v{x}, v{y}"
    def smv(tau, t4):
        j = 2*tau + t4 % 2
        def emit():
            if t4 >= 2 and j >= 5: a.wait_ds(tk[("w", j)])
            a(f"{SM} {vr(ACV + 4*t4)}, {vr(MEMA + 4*tau)}, {ar(128 + j*8, 8) if t4 < 2 else vr(QBUF[j % 5], 8)}, {vIdx}")
            if pend:
                jp = pend.pop(); tk[("w", jp)] = a.ds(wq_half(jp, 1))
            if t4 >= 2 and j + 5 < 16:
                a.ds(wq_half(j + 5, 0)); pend.append(j + 5)
        return emit
    pend = []
    a(".p2align 6")
    for _ in range(opt.get("ala", 4) if A else opt.get("alv", 1)): a.lines.append("    s_nop 0")
    rot = opt.get("rot", 0)
    nfl = opt.get("na", 1) if A else opt.get("nv_", 1)
    if rot: a(f"{P}_head:\n s_waitcnt vmcnt({nfl})")
    a(f"{P}_loop:")
    if rot: a(f"v_max3_u32 {vT}, v24, v25, v26\n v_max_u32 {vT}, {vT}, v27")
    a.drop = tuple(opt.get("drop", ()))
    stamp("top")
    nk = opt.get("nk", 6)
    ke = [("k", tau, T) for tau in range(1, 4) for T in range(2)]
    seq = [(m, 0, T) for T in range(2) for m in "qk"] + [("q", tau, T) for tau in range(1, 4) for T in range(2)] + ke[:nk]
    seq += [("q", tau, T) for tau in range(4, 8) for T in range(2)] + ke[nk:] + [("k", tau, T) for tau in range(4, 8) for T in range(2)]
    qpos = {2*t + T: i for i, (m, t, T) in enumerate(seq) if m == "q"}
    qe = qpos[15]
    q3 = min(qe + opt.get("q3", 8), 31)
    lc = opt.get("lc", 10); b2 = lc + opt.get("lb", 5)
    lw = opt.get("lw", 1)
    assert b2 <= qpos[8] + 1
    lg = opt.get("lg", 2)
    lload = f"buffer_load_dwordx4 {vr(LS)}, {vLin}, {WS}, s50 offen sc1"
    F(lg, "s_mov_b64 exec, s[88:89]")
    F(lg, lambda: tk.__setitem__("L", a.vm(lload)))
    F(lg, "s_mov_b64 exec, -1")
    if opt.get("wm", 1) & 1:
        for u in range(1, 4): F(u - 1, f"v_add_u32 v{LS + 4*u}, s{80+u}, {vLin}")
    b1 = opt.get("b1", 3)
    bar(b1, 1)
    sp = opt.get("sp", 16)
    for u in range(1, 4): mem_rd(b1, u)
    def M_(i, key, text): F(i, lambda: tk.__setitem__(key, a.vm(text)))
    if A:
        xp = [int(p) for p in opt.get("xp", (3, 3, 3, 3, 5, 6, 7, 8, 9, 11, 12, 13, 14))]
        if opt.get("xm"):
            xp = xp[:4] + [p for p in range(b2 + opt["xm"], 31) if p not in (qe + 1, qe + 2, qe + 3)][:9]
        if lg > 3:
            x0 = lg + opt.get("xo", 1); xs_ = opt.get("xs_", 2)
            xp = [x0 + k // xs_ for k in range(4)]
            xp += [xp[-1] + 2 + k for k in range(9)]
        ta = opt.get("ta", 0)
        kf_, vf_, th = ["sc1", ""][opt.get("kp", 1)], ["sc1", ""][opt.get("vp", 1)], opt.get("th", 0)
        F(4, f"v_lshlrev_b32 {vJunk}, {3 if th else 2}, {vLin}")
        if opt.get("tl3", 0): F(4, f"v_writelane_b32 {vJunk}, s79, 63")
        np_ = opt.get("nopf", 0)
        if not np_ & 1:
            for f in range(4): M_(xp[f], "vx", vx_load(f, vf_))
        tch = f"buffer_load_dword {vJunk}, {vJunk}, {WS}, s56 offen {vf_}"
        if not np_ & 2: F(xp[4], f"s_mov_b32 exec_hi, 0\n {tch}\n s_mov_b32 exec_hi, -1" if th else tch)
        if not np_ & 4:
            for f in range(8): F(xp[5 + f], kx_load(f, ar(NK + 4*f), kf_))
        F(sp, f"buffer_load_dwordx2 {vr(FB, 2)}, off, {WS}, s55 sc1")
        kvst = [f"buffer_store_dwordx4 {vr(120 + 4*k)}, {vLin}, {WS}, s53 offen offset:{2048*k} sc1" for k in range(2)]
        flst = f"s_mov_b64 exec, 1\n buffer_store_dword {vT}, off, {WS}, s54 sc1\n s_mov_b64 exec, -1"
        ks = opt.get("ks", 1)
        if opt.get("nokvm"): kvst = ["s_nop 0", "s_nop 0"]; flst = "s_nop 0"
        sp = max(sp, b2)
        F(sp + 1, f"v_mov_b32 {vT}, s80")
        if not ks:
            for k in range(2): F(sp + 4 + k*opt.get("k2", 1), kvst[k])
            F(sp + 2, flst)
    else:
        nv0, nv1, nv2 = opt.get("nv0", 4), opt.get("nv1", 0), opt.get("nv2", 1)
        vs = [(tau, t4) for tau in range(6) for t4 in (2, 0, 3, 1)] + [(6, 2), (6, 0), (6, 3), (7, 2), (7, 3), (7, 0), (6, 1), (7, 1)]
        for k in range(nv0): F(3, smv(*vs.pop(0)))
        for k in range(nv1): F(lc, smv(*vs.pop(0)))
        for k in range(opt.get("nvb", 0)): F(b2, smv(*vs.pop(0)))
        for k in range(nv2): F(qpos[10] - 1, smv(*vs.pop(0)))
        for k in range(opt.get("nv3", 0)): F(q3, smv(*vs.pop(0)))
    F(3, lambda: a.wait_ds(tk[("m", 1)]), 0.5); W(5, ("m", 3))
    F(5, lambda: busy(a, opt.get("xe", 0)))
    lwr = f"ds_write_b128 {vMem0}, {vr(LS)} offset:4096"
    if lw:
        F(lc, lambda: a.wait_vm(tk["L"]))
        D(lc, "wr", lwr)
        F(lc+1, f"v_max3_u32 {vT}, v{LS}, v{LS+1}, v{LS+2}")
        F(lc+2, f"v_max_u32 {vT}, {vT}, v{LS+3}")
        F(lc+3, f"v_cmp_eq_u32 vcc, -1, {'v0' if free else vT}")
    else:
        F(lc-1, f"v_max3_u32 {vT}, v{LS}, v{LS+1}, v{LS+2}", 2)
        F(lc-1, f"v_max_u32 {vT}, {vT}, v{LS+3}", 2)
        D(lc, "wr", lwr)
        F(lc, f"v_cmp_eq_u32 vcc, -1, {'v0' if free else vT}")
        if not A: F(q3 - 1, "s_waitcnt vmcnt(0)")
    assert lc + 3 < b2 or free
    assert lc + 3 < min(b2, qpos[8] - 1)
    F(min(b2, qpos[8] - 1), lambda: (tk.__setitem__("Ln", a.vm_n - tk["L"]), a(f"s_cbranch_vccnz {P}_lretry\n{P}_lok:")))
    bar(b2, 2); mem_rd(b2, 5); mem_rd(b2+1, 6); mem_rd(b2+1, 7)
    pa = opt.get("pa", 3)
    if val:
        pp, pq = opt.get("pp", 20), opt.get("pq", 2)
        assert lc + 2 < pp and pp + pq < qe + 3
        pe_ = opt.get("pe_", 0)
        if A and pe_:
            for k, off in enumerate((L_OB, L_VM)): D(opt.get("pe%d" % k, 3), "_", f"ds_write_b128 {vMem0}, v[120:123] offset:{off}")
            D(pp, "_", f"ds_read_b128 v[120:123], {vKa}")
        elif A and pa:
            F(pp - 2, "v_mov_b64 v[24:25], -1"); F(pp - 1, "v_mov_b64 v[26:27], -1")
            if pa & 1: D(pp, "_", f"ds_write_b128 {vMem0}, v[24:27] offset:{L_OB}")
            if pa & 2 and not opt.get("vw", 0): D(pp + pq, "_", f"ds_write_b128 {vMem0}, v[24:27] offset:{L_VM}")
        if not A:
            pv_ = opt.get("pv_", 6)
            if not pa & 1: D(pv_, "_", f"ds_write_b128 {vMem0}, v[16:19] offset:{L_OB - 2048}")
            if not pa & 2: D(pv_ + 2, "_", f"ds_write_b128 {vMem0}, v[16:19] offset:{L_VM - 2048}")
    W(qpos[10] - 1, ("m", 5)); W(qpos[12] - 1, ("m", 7))
    F(28, "s_add_u32 s49, s48, s86\n s_add_u32 s50, s49, 0x1000")
    F(29, "s_mov_b64 s[88:89], -1")
    qs = opt.get("qs", 0)
    F(qe+1, add(56)); F(qe+1, add(58)); F(qe+2, add(60)); F(qe+2, add(62))
    if qs:
        for r in (56, 58): F(qe+1, f"v_mul_f32 v{r}, s42, v{r}")
        for r in (60, 62): F(qe+2, f"v_mul_f32 v{r}, s42, v{r}")
    F(qe+2, cvt(56, 56, 60)); F(qe+2, cvt(57, 58, 62))
    D(qe+3, "wr", f"ds_write2_b32 {vQw}, v56, v57 offset0:0 offset1:4")
    bar(q3, 3)
    if A:
        for t in range(4): D(min(q3 + (t + 1)//2, 31), ("q", t), f"ds_read_b128 {vr(24 + 4*t)}, {vQr} offset:{t*QS}")
    if not A: F(0, {0: "s_nop 0\n s_nop 0", 1: "s_memrealtime s[60:61]", 2: "s_memtime s[60:61]"}[opt.get("per", 0)])
    cl_ = "a" if A else "v"
    def pad(key, slots):
        for k in range(opt.get(key + cl_, 0)): F(slots[k % len(slots)], "s_nop 0")
    pad("p1", (0, 1, 0, 1, 4, 6, 8) if A else (0, 1, 4, 6, 7, 8, 9))
    pad("p2", (19, 21, 23, 19, 21, 23, 14) if A else (18, 20, 21, 22, 23, 14, 20))
    pad("p3", (27, 30, 27, 30, 29, 27, 30))
    tk["wr"] = a.ds(f"ds_write_b128 {vMem0}, {vr(MEMA)}")
    if rot:
        a(f"v_cmp_eq_u32 vcc, -1, {vT}")
        assert lg >= 2
        F(1, f"s_cbranch_vccnz {P}_gretry", -1)
    for i, (m, tau, T) in enumerate(seq):
        j = 2*tau + T
        B = vr(128 + j*8, 8) if m == "q" else ar(j*8, 8)
        a(f"{SM} {vr((ACQ if m == 'q' else ACK) + 4*T)}, {vr(MEMA + 4*tau)}, {B}, {vIdx}")
        run(i)
        stamp(i)
    assert not fill, fill.keys()
    kfold = [add(64), add(66), add(68), add(70), cvt(64, 64, 68), cvt(65, 66, 70)]
    kwr = f"ds_write2_b32 {vQw}, v64, v65 offset0:128 offset1:132"
    inbox = f"buffer_load_dwordx4 v[28:31], {vLin}, {WS}, s47 offen sc1\n buffer_load_dwordx4 v[32:35], {vLin}, {WS}, s47 offen offset:1024 sc1"
    if A:
        QB, KB, X0, X1, M, t0 = 24, 40, 56, 60, 120, 124
        PX, PM, PXB, PMB, VM, O, Lr, PKO = 48, 68, 52, 64, 24, 28, 44, 120
        WA, OA, PK = [56, 60, 28, 32, 24, 36, 40, 44], 120, [64, 68]
        xl = []
        tq = [tk[("q", t)] for t in range(4)]
        kf = opt.get("kf", 1)
        if kf:
            for x in kfold: a(x)
            tk["wr"] = a.ds(kwr)
        else:
            a(kfold[0]); a(kfold[1])
            for x in kfold[2:]: F(0, x)
            D(1, "wr", kwr)
        b4 = opt.get("b4", 4)
        ml = opt.get("ml", 0)
        if not ml:
            bar(b4, 4)
            for t in range(4): D(min(b4 + (t + 1)//2, 7), ("k", t), f"ds_read_b128 {vr(KB + 4*t)}, {vQr} offset:{t*QS + 512}")
        if ks:
            F(1, kvst[1]); F(3, kvst[0]); F(7, flst)
        F(2, "v_mov_b32 v68, 0\n v_mov_b32 v70, 0")
        F(0, "v_mov_b32 v65, 0\n v_mov_b32 v67, 0")
        F(6, f"v_max3_f32 v{t0}, v{X0}, v{X0+1}, v{X0+2}")
        for p in (7, 8, 9, 10, 11, 11)[:opt.get("x1", 6)]:
            if xl: F(p, xl.pop(0))
        awr = [f"ds_read_b128 {vr(KX + 4*k)}, {vMem0} offset:{L_AW + k*2048}" for k in range(8)]
        aw = opt.get("aw", 3)
        if not aw:
            for p in (8, 9, 10, 11): F(p, awr.pop(0))
        chain = [f"v_max3_f32 v{t0+1}, v{X0+3}, v{X1}, v{X1+1}", f"v_max3_f32 v{t0}, v{t0}, v{X1+2}, v{X1+3}",
                 f"v_max_f32 v{t0+2}, v{t0}, v{t0+1}", f"v_max_f32 v{t0+3}, v{t0}, v{t0+1}"]
        pad("p4", (8, 8, 6, 9, 10, 3, 1))
        ex = f"s_cmp_eq_u32 s6, 63\n s_cbranch_scc1 L_chain_end"
        if not ml:
            F(9, chain[0]); F(9, chain[1]); F(10, chain[2]); F(10, chain[3]); chain = []
            F(11, ex)
            for t in range(4): W(7 + t, ("k", t))
        if not opt.get("nopf", 0) & 1: F(5, lambda: a.wait_vm(tk["vx"]))
        for t in range(1, 4): F(t - 1, lambda t=t: a.wait_ds(tq[t]))
        def sc(n):
            t = n % 4
            d, Ao, Bo = ((X0, KX + 4*t, QB + 4*t), (X1, KX + 16 + 4*t, QB + 4*t), (M, KB + 4*t, QB + 4*t))[n // 4]
            return f"{MF} {vr(d)}, {vr(Ao)}, {vr(Bo)}, {vr(d) if t else '0'}"
        for n in range(8 if ml else 12):
            if n == 0: a.wait_ds(tq[0])
            a(sc(n))
            run(n)
            stamp("s%d" % n)
        stamp("sc")
        regs = [X0, X0+1, X0+2, X0+3, X1, X1+1, X1+2, X1+3]
        if ml: PX, PXB = 72, 76
        sm = chain + [f"v_permlane16_swap_b32 v{t0+2}, v{t0+3}", f"v_max_f32 v{t0}, v{t0+2}, v{t0+3}", f"v_max_f32 v{t0+1}, v{t0+2}, v{t0+3}"]
        if not ml: sm += ["v_mov_b64 v[40:41], 0", "v_mov_b64 v[42:43], 0"]
        sm += [f"v_permlane32_swap_b32 v{t0}, v{t0+1}", f"v_max3_f32 v{t0}, v{t0}, v{t0+1}, {vInf}"]
        if not qs: sm.append(f"v_mul_f32 v{t0}, s42, v{t0}")
        def arg(r): return f"v_sub_f32 v{r}, v{r}, v{t0}" if qs else f"v_fma_f32 v{r}, v{r}, s42, -v{t0}"
        sm += [arg(r) for r in regs]
        for k, r in enumerate(regs):
            sm.append(f"v_exp_f32 v{r}, v{r}")
            if k >= 2 and k % 2 == 0: sm.append(cvt(PX + k//2 - 1, regs[k-2], regs[k-1]))
        mb, m0 = opt.get("mb", 0), opt.get("m0", 12)
        for n, x in enumerate(sm):
            if ml and n == mb:
                a.wait_ds(tk["wr"]); a("s_barrier"); a(ex)
                tkk = [a.ds(f"ds_read_b128 {vr(KB + 4*t)}, {vQr} offset:{t*QS + 512}") for t in range(4)]
            if ml and n >= m0 and (n - m0) % 2 == 0 and (n - m0) // 2 < 4:
                t = (n - m0) // 2
                a.wait_ds(tkk[min(t + 1, 3) if t == 0 else 3]); a(sc(8 + t))
            a(x)
        stamp("pv")
        busy(a, opt.get("xs", 0))
        a(arg(M))
        a(cvt(PX + 3, regs[6], regs[7]))
        a(arg(M+1)); a(f"v_exp_f32 v{M+2}, v{M}")
        b5 = opt.get("b5", 3)
        F(b5, "s_barrier")
        D(b5, "vm", f"ds_read_b128 {vr(VM)}, {vMem0} offset:{L_VM}")
        def sw(d, x): return f"v_mov_b32_dpp v{d}, v{x} quad_perm:[2,3,0,1] row_mask:0xf bank_mask:0xf"
        mpack = [cvt(64, M+2, M+3), cvt(69, M+2, M+3), sw(66, 64), sw(71, 64)]
        F(0, sw(PXB, PX)); F(0, sw(PXB+1, PX+1)); F(1, sw(PXB+2, PX+2)); F(1, sw(PXB+3, PX+3))
        F(2, f"v_exp_f32 v{M+3}, v{M+1}"); F(2, f"v_max_f32 v{t0+1}, v{M}, v{M+1}")
        F(3, f"v_cmp_lt_f32 s[90:91], s78, v{t0+1}"); F(3, mpack[0]); F(3, mpack[1])
        F(4, mpack[2]); F(4, mpack[3])
        F(4, f"s_cmp_lg_u64 s[90:91], 0\n s_cbranch_scc1 {P}_mfix\n{P}_mok:", 2)
        if not aw:
            for p in (0, 1, 6, 7): F(p, awr.pop(0))
        pv = [f"{MF} {vr(Lr)}, {vr(ONES)}, {vr(PX)}, 0"]
        pv += [f"{MF} {vr(O + 4*(f % 2))}, {vr(VX + 4*f)}, {vr((PX, PXB)[f//2])}, {vr(O + 4*(f % 2)) if f//2 else '0'}" for f in range(4)]
        pv += [f"{MF16} {vr(Lr)}, {vr(ONES, 2)}, v[64:65], {vr(Lr)}"]
        pv += [f"{MF} {vr(O + 4*T)}, {vr(VM)}, {vr(64 + 4*T)}, {vr(O + 4*T)}" for T in range(2)]
        Z(5, 56, 64)
        F(5, lambda: a.wait_ds(tk["vm"]), 2)
        if val:
            F(6, f"v_max3_u32 {vT}, v{VM}, v{VM+1}, v{VM+2}"); F(6, f"v_max_u32 {vT}, {vT}, v{VM+3}")
            F(7, f"v_cmp_eq_u32 vcc, -1, {vT}")
        F(7, f"v_add_f32_dpp v{t0}, v{Lr}, v{Lr} quad_perm:[2,3,0,1] row_mask:0xf bank_mask:0xf")
        F(7, f"v_rcp_f32 v{t0}, v{t0}")
        if val: F(7, f"s_cbranch_vccnz {P}_vredo\n{P}_vok:", 2)
        for n, x in enumerate(pv):
            a(x); run(n)
        for r in range(4): a(f"v_mul_f32 v{O+r}, v{O+r}, v{t0}")
        stamp("p1")
        for r in (4, 6): a(f"v_pk_mul_f32 {vr(O + r, 2)}, {vr(O + r, 2)}, {vr(t0, 2)} op_sel_hi:[1,0]")
        for i in range(4): a(cvt(PKO + i, O + i, O + 4 + i))
        if opt.get("tst"): a("s_barrier\n s_nop 15\n s_nop 15\n s_nop 15")
        a(f"ds_write_b128 {vOw}, {vr(PKO)}")
        if not nw >> 6 & 1: (zero(a, 24, 40), zero(a, 40 if opt.get('ml', 0) else 44, 48))
        stamp("p2")
        wo_reg = lambda j: ar(128 + j*8, 8) if j < 12 else vr(KX + (j - 12)*8, 8)
    else:
        WB = [88, 96, 104, 112, 120, 16, 56, 64]
        WA, OA, PK = [28, 32, 36, 40, 44, 48, 52, 72], 76, [84, 24]
        def woh(j, h): return f"ds_read_b128 {vr(WB[j % 8] + 4*h)}, {vW} offset:{j*2048 + 1024*h}"
        nv = len(vs); sh = 32 - nv
        if opt.get("fs", 0):
            for n, x in enumerate(kfold): F(n, x)
            D(6, "wr", kwr)
        else:
            F(0, kfold[0]); F(0, kfold[1])
            for x in kfold[2:]: F(1, x)
            D(2, "wr", kwr)
        v4 = opt.get("v4", 8)
        bar(v4, 4)
        wl = [(k // 2, k % 2) for k in range(16)]
        if opt.get("pw", 1):
            pos = {2*t + t4 % 2: n for n, (t, t4) in enumerate(vs) if t4 >= 2}
            free_at = {5: 0, 6: 3, 1: pos[11], 2: pos[12], 3: pos[13], 4: pos[14]}
            slot = pos[10] + 2
            for jj in (5, 6, 1, 2, 3, 4):
                for hh in range(2):
                    slot = max(slot, free_at[jj])
                    if slot < nv - 1:
                        D(slot, "_", woh(jj, hh)); wl.remove((jj, hh)); slot += 1
        pad("p4", (4, 6, 10, 12, 14, 16, 18))
        zl = [(r, "0") for r in range(28, 52, 2)]
        for i in range(3, nv - 2):
            if opt.get("zv", 0) and zl and i + sh > (zl[0][0] - MEMA) // 4 * 4 + 3:
                r, val = zl.pop(0); F(i, f"v_mov_b64 {vr(r, 2)}, {val}")
        F(nv-3, add(80)); F(nv-3, add(82)); F(nv-2, add(84)); F(nv-2, add(86))
        for x in (cvt(KV+6, 80, 82), cvt(KV+7, 84, 86), add(72), add(74), cvt(KV+4, 72, 74)): F(nv-1, x)
        for n, (tau, t4) in enumerate(vs):
            if n + 1 < nv and vs[n+1][1] >= 2 and 2*vs[n+1][0] + vs[n+1][1] % 2 >= 5: W(n, ("w", 2*vs[n+1][0] + vs[n+1][1] % 2))
            smv(tau, t4)(); run(n); stamp("v%d" % n)
        assert not fill and not pend
        stamp("sc")
        busy(a, opt.get("xw", 0))
        for x in (add(76), add(78), cvt(KV+5, 76, 78)): a(x)
        if opt.get("tst"): a(f"s_cmp_eq_u32 s6, 63\n s_cbranch_scc1 L_chain_done\n s_barrier\n s_nop 15\n s_nop 15\n s_nop 15")
        tk["wr"] = a.ds(f"ds_write_b128 {vMem0}, {vr(KV+4)} offset:{L_VM - 2048}")
        a(f"s_cmp_eq_u32 s6, 63\n s_cbranch_scc1 L_chain_done")
        if nw >> 5 & 1 and not opt.get("tst"): a("s_barrier")
        if not nw >> 5 & 1:
            a.wait_ds(tk["wr"]); a("s_barrier")
        stamp("pv")
        zl += [(52, "0"), (54, "0"), (72, "0"), (74, "0")]
        for n, (r, v_) in enumerate(zl):
            a(f"v_mov_b64 {vr(r, 2)}, {v_}")
            if n >= 2 and wl: a(woh(*wl.pop(0)))
        for x in wl: a(woh(*x))
        busy(a, opt.get("bv", 0))
        wo_reg = lambda j: vr(WB[j % 8], 8)
    a("s_nop 0" if (A and opt.get("tst")) else "s_barrier" if (nw >> 6 & 1) else "s_waitcnt lgkmcnt(0)\n s_barrier")
    to = [a.ds(f"ds_read_b128 {vr(OA + 4*t)}, {vOr} offset:{t*1024}") for t in range(2)]
    if A and nw >> 6 & 1: (zero(a, 24, 40), zero(a, 40 if opt.get('ml', 0) else 44, 48))
    busy(a, opt.get("bo2", 0))
    stamp("wo")
    def wf(T, h): return add(WA[T] + 2*h)
    def wpk(T, h): return cvt(PK[T//4] + (T % 4)//2 + 2*h, WA[T] + 2*h, WA[T+1] + 2*h)
    def tag(T, h):
        r = PK[T//4] + (T % 4)//2 + 2*h
        return f"v_and_or_b32 v{r}, v{r}, -2, s97"
    def wst(hf): return f"buffer_store_dwordx4 {vr(PK[hf])}, {vPst}, {WS}, s{45+hf} offen {st}"
    post = {3: [wf(0, 0)], 4: [wf(0, 1)], 5: [wf(1, 0), wf(1, 1)], 6: [wpk(0, 0), wpk(0, 1)],
            7: [wf(2, 0), wf(2, 1)], 8: [tag(0, 0), tag(0, 1)], 9: [wf(3, 0), wf(3, 1), wpk(2, 0), wpk(2, 1), tag(2, 0), tag(2, 1)],
            11: [wf(4, 0)], 12: [wf(4, 1)], 13: [wf(5, 0), wf(5, 1)], 14: [wpk(4, 0), wpk(4, 1)], 15: [wf(6, 0), wf(6, 1), tag(4, 0), tag(4, 1)]}
    for j, xs in post.items():
        for x in xs: F(j, x)
    pad("p5", (1, 2, 1, 3, 4, 2, 0))
    pad("p6", (10, 12, 10, 13, 14, 12, 11))
    F(9, wst(0), 2)
    if val:
        F(5, f"v_cmp_u_f32 vcc, v{WA[0]}, v{WA[0]+2}")
        F(8, f"s_cbranch_vccnz {P}_oredo\n{P}_ook:")
    F(0, lambda: a.wait_ds(to[1]))
    if A and aw:
        for k, x in enumerate(awr): D(k + aw - 1, "aw", x)
        W(11, "aw")
    if not A:
        for j in range(8, 16):
            p0, p1 = [(j - 8 + (j - 8)//2, j - 8 + (j - 7)//2), {8: (0, 1), 9: (2, 3), 10: (4, 5), 11: (6, 7), 12: (8, 8), 13: (9, 9), 14: (10, 10), 15: (11, 11)}[j]][opt.get("vs", 0)]
            D(p0, "_", woh(j, 0), 3 if p0 == 9 else 0); D(p1, ("o", j), woh(j, 1), 3 if p1 == 9 else 0); W(j - 1, ("o", j))
    a.wait_ds(to[0])
    a(f"{P}_wo:")
    for j in range(16):
        T, t = j // 2, j % 2
        a(f"{SM} {vr(WA[T])}, {vr(OA + 4*t)}, {wo_reg(j)}, {vIdx}")
        run(j)
        stamp("w%d" % j)
    ein = opt.get("ein", 0) if A else 0
    if ein == 1: a(inbox)
    for x in (wf(7, 0), wf(7, 1), wpk(6, 0), wpk(6, 1), tag(6, 0), tag(6, 1)): a(x)
    if ein == 2: a(inbox)
    a(wst(1))
    a.drop = ()
    stamp("h1")
    c1, c2 = opt.get("c1", 2) if A else opt.get("c1v", 3), opt.get("c2", 2) if A else opt.get("c2v", 2)
    RD = LS
    nsp = opt.get("nsp", 0) >> (0 if A else 1) & 1
    work = [lambda: (zero(a, 28, 36, "s[98:99]"), zero(a, 36, 38, "-1"))]
    if A:
        work += [lambda: (zero(a, 120, 124, "-1") if opt.get("pe_") else a(f"ds_read_b128 v[120:123], {vKa}"),
                          a(f"ds_read_b128 v[124:127], {vMem0} offset:{L_VM}"), zero(a, 24, 28, "-1"),
                          a(f"ds_write_b128 {vMem0}, v[24:27] offset:{L_VM}") if opt.get("vw", 0) else None),
                 lambda: zero(a, ACQ, ACQ + 8), lambda: zero(a, ACK, ACK + 8)]
        work += [lambda: busy(a, 2)] * 4
    else:
        for j in range(5): work.append(lambda j=j: (a(wq_half(j, 0)), a(wq_half(j, 1)), zero(a, ACQ + 4*j, ACQ + 4*j + 4)))
        work += [lambda: (zero(a, 24, 28, "-1"), zero(a, ACQ + 20, ACQ + 24)), lambda: (zero(a, ACQ + 24, ACQ + 32), zero(a, 16, 20, "-1"))]
    wm = opt.get("wm", 1)
    gath = f"buffer_load_dwordx4 v[24:27], {vLin}, {WS}, s49 offen sc1"
    if wm & 1:
        SETS = (28, 48)
        def req(b): return f"buffer_load_dwordx4 {vr(b)}, {vLin}, {WS}, s47 offen sc1\n buffer_load_dwordx4 {vr(b+4)}, {vLin}, {WS}, s47 offen offset:1024 sc1"
        def exam(b):
            a(f"{MF} {vr(RD)}, {vr(SEL)}, {vr(b)}, 0")
            a(f"v_bitop3_b32 v44, v{b}, v{b+1}, s98 bitop3:0xbd\n v_bitop3_b32 v45, v{b+2}, v{b+3}, s98 bitop3:0xbd")
            a(f"{MF} {vr(RD)}, {vr(SEL)}, {vr(b+4)}, {vr(RD)}")
            a(f"v_bitop3_b32 v46, v{b+4}, v{b+5}, s98 bitop3:0xbd\n v_bitop3_b32 v47, v{b+6}, v{b+7}, s98 bitop3:0xbd")
            a("v_or3_b32 v44, v44, v45, v46\n v_bitop3_b32 v44, v44, v47, 1 bitop3:0xa8\n v_cmp_ne_u32 vcc, 0, v44")
        def fold4():
            for k in range(2): a(f"v_add_f32_dpp v{38+k}, v{RD+k}, v{RD+k} row_ror:4 row_mask:0xf bank_mask:0x5")
            for k in range(2): a(f"v_add_f32_dpp v{38+k}, v{RD+2+k}, v{RD+2+k} row_ror:4 row_mask:0xf bank_mask:0xa")
        work[0] = lambda: zero(a, 36, 38, "-1")
        for w_ in (work[:4] if A else work): w_()
        w0, w1, w2 = (opt.get("a0", 2), opt.get("a1", 8), opt.get("a2", 0)) if A else (opt.get("v0", 8), opt.get("v1", 9), opt.get("v2", 4))
        if not ein: busy(a, w0); a(req(SETS[0]))
        two = opt.get("sa", 1) if A else opt.get("sv", 1)
        busy(a, w1)
        if two: a(req(SETS[1]))
        if A:
            next_seg(a, P)
            a("s_waitcnt lgkmcnt(0)")
        a("s_mov_b32 s96, 0")
        busy(a, w2)
        for k in range(opt.get("p7" + cl_, 0)): a("s_nop 0")
        a(f"s_waitcnt vmcnt({(1 if ein else 0) + (2 if two else 0)})\n{P}_r10:")
        exam(SETS[0])
        fold4()
        a(f"s_cbranch_vccnz {P}_r11\n{P}_r1ok:")
        stamp("r1")
    else:
        pm = opt.get("pe", 0x90) if A else opt.get("pl", 0x100)
        for k in range(9):
            if k == 8: busy(a, opt.get("de", 1) if A else opt.get("dl", 8))
            if pm >> k & 1: a(inbox)
            if k < 8: work[k]()
        if A: a("s_waitcnt lgkmcnt(0)")
        a(f"s_mov_b32 s96, 0\n s_cmp_lg_u32 s97, 0\n s_cbranch_scc1 {P}_r11")
        for ph in range(2):
            a(f"{P}_r1{ph}:")
            if free == 1: a("s_waitcnt vmcnt(0)")
            op3 = ("v_or3_b32 {0}, {1}, {2}, {3}", "v_bitop3_b32 {0}, {1}, {2}, {3} bitop3:0x80")[ph]
            for k in range(c1):
                a(op3.format("v45", "v28", "v29", "v30")); a(op3.format("v46", "v31", "v32", "v33")); a(op3.format("v45", "v45", "v34", "v35"))
                a(f"""
                v_bitop3_b32 v45, v45, v46, 1 bitop3:{('0xa8', '0x80')[ph]}
                v_cmp_ne_u32 vcc, {'v45' if free else ph}, v45
                """)
                if not nsp: a(f"{MF} {vr(RD)}, {vr(SEL)}, v[28:31], 0\n {MF} {vr(RD)}, {vr(SEL)}, v[32:35], {vr(RD)}")
                a(f"s_cbranch_vccz {P}_r1ok")
            a(f"s_mov_b64 exec, vcc\n {inbox}\n s_mov_b64 exec, -1")
            if prof: a("s_add_u32 s30, s30, 1")
            G.spin_tail(a, f"{P}_r1{ph}")
        a(f"{P}_r1ok:")
        stamp("r1")
        gath = f"buffer_load_dwordx4 v[24:27], {vLin}, {WS}, s49 offen sc1"
        if nsp: a(f"{MF} {vr(RD)}, {vr(SEL)}, v[28:31], 0\n {MF} {vr(RD)}, {vr(SEL)}, v[32:35], {vr(RD)}")
        else: a("s_nop 5")
    assert wm & 1
    for k in range(2): a(f"v_add_f32_dpp v{38+k}, v{38+k}, v{38+k} row_ror:8 row_mask:0xf bank_mask:0xf")
    a("s_mov_b64 exec, s[58:59]")
    a(cvt(38, 38, 39))
    a(f"buffer_store_dword v38, {vPub}, {WS}, s48 offen {st}")
    stamp("h2")
    a(f"buffer_store_dword v36, {vPub}, {WS}, s51 offen {st}\n s_mov_b64 exec, -1")
    if not lw: zero(a, LS, LS + 4, "-1")
    lr = 0 if lw else opt.get("lr", 1) if A else opt.get("lrv", 1)
    book = lambda: (a(f"s_mov_b32 s80, s6\n s_add_u32 s6, s6, 1\n s_add_u32 s53, s53, 0x20000\n s_mov_b32 s96, 0\n v_mov_b32 {vT}, 0"), ring_next(a))
    if A:
        a("s_waitcnt vmcnt(9)")
        items = [lambda k=k: [a(f"v_accvgpr_read_b32 v{KX + r}, a{NK + r}") for r in range(8*k, 8*k + 8)] for k in range(4)]
        items += [book] + ([] if wm & 1 else [lambda: addr_prep(a)]) + [lambda: busy(a, 2)] * opt.get("gb", 0)
        ga = opt.get("ga", 0x28)
        for k in range(len(items) + 1):
            if ga >> k & 1: a(gath)
            if k < len(items): items[k]()
        assert 0 < ga < 2 << len(items)
    else:
        busy(a, opt.get("gl", 0))
        a(gath)
        if not wm & 1: addr_prep(a)
        busy(a, opt.get("gv", 3))
        if opt.get("g2", 3) & 2: a(gath)
        book()
    a("s_waitcnt lgkmcnt(0)")
    if not A: a("s_sub_u32 s7, s6, 1\n s_mov_b32 m0, s7\n v_writelane_b32 v11, s60, m0" if opt.get("per") else "s_nop 0\n s_nop 0\n v_mov_b32_e64 v11, 0")
    if lr & 2: a(lload)
    for k in range(opt.get("p8" + cl_, 0)): a("s_nop 0")
    stamp("g1")
    if rot:
        assert prof != 1
        busy(a, opt.get("a3", 4) if A else opt.get("v3", 4))
        a(f"s_branch {P}_head\n{P}_gretry:")
        a(f"s_mov_b64 exec, vcc\n {gath}\n s_mov_b64 exec, -1")
        if prof: a("s_add_u32 s31, s31, 1")
        a("s_nop 7")
        zero(a, ACQ, ACQ + 4); zero(a, ACK, ACK + 4)
        G.spin_tail(a, f"{P}_head")
    else:
        if wm & 2:
            c2 = 1
            assert opt.get("g2", 3) == 3
            busy(a, opt.get("a3", 0) if A else opt.get("v3", 2))
        a(f"{P}_r2:")
        if wm & 2: a("s_waitcnt vmcnt(1)")
        if free == 1: a("s_waitcnt vmcnt(0)")
        for k in range(c2):
            a(f"v_max3_u32 {vT}, v24, v25, v26\n v_max_u32 {vT}, {vT}, v27\n v_cmp_eq_u32 vcc, -1, {'v0' if free else vT}")
            a(f"s_cbranch_vccz {P}_prof" if prof == 1 else f"s_cbranch_vccz {P}_loop")
        a(f"s_mov_b64 exec, vcc\n {gath}\n s_mov_b64 exec, -1")
        if lr & 1: a(lload)
        if prof: a("s_add_u32 s31, s31, 1")
        G.spin_tail(a, f"{P}_r2")
    if prof == 1:
        a(f"{P}_prof:")
        stamp("end")
        a("s_waitcnt lgkmcnt(0)")
        if opt.get("trace"):
            assert cnt[0] <= 8
            a("s_lshl_b32 s7, s3, 6\n s_add_u32 s7, s7, s6\n s_lshl_b32 s7, s7, 5\n v_lshrrev_b32 v46, 2, v0\n v_add_u32 v46, s7, v46")
            for k in range(cnt[0]): a(f"v_writelane_b32 v45, s{60+2*k}, {k}")
            a(f"s_mov_b64 exec, 0xff\n ds_write_b32 v46, v45\n s_mov_b64 exec, -1\n s_branch {P}_loop")
        a(f"s_cmp_lt_u32 s6, 5\n s_cbranch_scc1 {P}_loop")
        for k in range(cnt[0] - 1): a(f"s_sub_u32 s7, s{62+2*k}, s{60+2*k}\n s_add_u32 s{20+k}, s{20+k}, s7")
        a(f"s_branch {P}_loop")
    if wm & 1:
        a(f"{P}_r11:")
        if not two: a(f"s_cmp_lg_u32 s96, 0\n s_cbranch_scc1 {P}_r12\n {req(SETS[1])}\n{P}_r12:")
        a(f"s_mov_b64 exec, vcc\n {req(SETS[0])}\n s_mov_b64 exec, -1")
        if prof: a("s_add_u32 s30, s30, 1")
        a("s_waitcnt vmcnt(2)")
        exam(SETS[1])
        fold4()
        a(f"s_cbranch_vccz {P}_r1ok\n s_mov_b64 exec, vcc\n {req(SETS[1])}\n s_mov_b64 exec, -1\n s_waitcnt vmcnt(2)")
        if prof: a("s_add_u32 s30, s30, 1")
        G.spin_tail(a, f"{P}_r10")
    lchk = f"v_max3_u32 {vT}, v{LS}, v{LS+1}, v{LS+2}\n v_max_u32 {vT}, {vT}, v{LS+3}\n v_cmp_eq_u32 vcc, -1, {vT}\n {lwr}\n s_waitcnt lgkmcnt(0)\n s_cbranch_vccz {P}_lok"
    a(f"{P}_lretry:")
    if not lw:
        if prof: a("s_add_u32 s25, s25, 100")
        a(f"s_waitcnt vmcnt({tk['Ln']})"); a(lchk)
    a(f"{P}_lr2:")
    a(f"s_mov_b64 exec, vcc\n {lload}\n s_mov_b64 exec, -1\n s_waitcnt vmcnt(0)")
    if prof: a("s_add_u32 s29, s29, 1")
    a(lchk)
    G.spin_tail(a, f"{P}_lr2")
    if A: fb_wait(a, P, prof)
    if A:
        q = "quad_perm:[2,3,0,1] row_mask:0xf bank_mask:0xf"
        a(f"""
        {P}_mfix:
        v_max_f32 v{t0+1}, 0, v{t0+1}
        v_mov_b32 v{t0+2}, v{t0+1}
        v_permlane16_swap_b32 v{t0+1}, v{t0+2}
        v_max_f32 v{t0+1}, v{t0+1}, v{t0+2}
        v_mov_b32 v{t0+2}, v{t0+1}
        v_permlane32_swap_b32 v{t0+1}, v{t0+2}
        v_max_f32 v{t0+1}, v{t0+1}, v{t0+2}
        v_max_f32_dpp v{t0+1}, v{t0+1}, v{t0+1} {q}
        v_sub_f32 v{M}, v{M}, v{t0+1}
        v_sub_f32 v{M+1}, v{M+1}, v{t0+1}
        v_sub_f32 v{t0+1}, 0, v{t0+1}
        v_exp_f32 v{M+2}, v{M}
        v_exp_f32 v{M+3}, v{M+1}
        v_exp_f32 v{t0+1}, v{t0+1}
        """)
        for x in mpack: a(x)
        for k, r in enumerate(regs): a(f"v_mul_f32 v{r}, v{r}, v{t0+1}")
        for k in range(4): a(cvt(PX + k, regs[2*k], regs[2*k+1]))
        for k in range(4): a(sw(PXB + k, PX + k))
        for x in pv[:5]: a(x)
        if prof: a("s_add_u32 s26, s26, 64")
        a.fence()
        a(f"s_branch {P}_mok")
    if val:
        def missing(b, n):
            a(f"v_max3_u32 {vT}, v{b}, v{b+1}, v{b+2}")
            for r in range(b + 3, b + n): a(f"v_max_u32 {vT}, {vT}, v{r}")
            a(f"v_cmp_eq_u32 vcc, -1, {vT}")
        if A:
            a(f"{P}_vredo:\n s_mov_b32 s96, 0\n{P}_vr1:\n ds_read_b128 {vr(VM)}, {vMem0} offset:{L_VM}\n s_waitcnt lgkmcnt(0)")
            missing(VM, 4)
            a(f"s_cbranch_vccz {P}_vr2")
            G.spin_tail(a, f"{P}_vr1")
            a(f"{P}_vr2:")
            if prof: a("s_add_u32 s28, s28, 64")
            for x in pv[1:5] + pv[6:]: a(x)
            a.fence()
            a(f"s_branch {P}_vok")
        a(f"{P}_oredo:")
        missing(OA, 8)
        a(f"s_cbranch_vccz {P}_ook\n s_mov_b32 s96, 0\n{P}_or1:")
        for t in range(2): a(f"ds_read_b128 {vr(OA + 4*t)}, {vOr} offset:{t*1024}")
        a("s_waitcnt lgkmcnt(0)")
        missing(OA, 8)
        a(f"s_cbranch_vccz {P}_or2")
        G.spin_tail(a, f"{P}_or1")
        a(f"{P}_or2:")
        if prof: a("s_add_u32 s27, s27, 64")
        for T in range(5): zero(a, WA[T], WA[T] + 4)
        if not A:
            for k in range(16): a(woh(k // 2, k % 2))
            a("s_waitcnt lgkmcnt(0)")
        a.fence()
        a(f"s_branch {P}_wo")

def role_chain(a, opt):
    startup(a, opt)
    loop(a, opt, "FA", "", True)
    loop(a, opt, "FV", "", False)
    loop(a, opt, "SA", "sc1", True)
    loop(a, opt, "SV", "sc1", False)
    a(f"L_chain_done:\n ds_read_b128 {vr(KV)}, {vKp}\n s_add_u32 s53, s53, 0x20000\n s_waitcnt lgkmcnt(0)")
    for k in range(2): a(f"buffer_store_dwordx4 {vr(KV + 4*k)}, {vLin}, {G.WS}, s53 offen offset:{2048*k} sc1")
    if opt.get("per"):
        a(f"s_lshl_b32 s7, s4, 2\n s_add_u32 s7, s7, s3\n s_lshl_b32 s7, s7, 8\n s_add_u32 s7, s7, {G.PROF + 0x40000}\n v_lshrrev_b32 v24, 2, v0\n buffer_store_dword v11, v24, {G.WS}, s7 offen sc1")
    a("L_chain_end:\n s_waitcnt vmcnt(0)")
    G.tl(a, opt, 3, "v24", True)
    if opt.get("trace"):
        a(f"s_lshl_b32 s7, s3, 11\n v_add_u32 v24, s7, v0\n ds_read_b128 v[28:31], v24\n ds_read_b128 v[32:35], v24 offset:1024\n s_waitcnt lgkmcnt(0)")
        a(f"s_lshl_b32 s7, s4, 2\n s_add_u32 s7, s7, s3\n s_lshl_b32 s7, s7, 11\n s_add_u32 s7, s7, {G.PROF + 0x40000}")
        a(f"buffer_store_dwordx4 v[28:31], v0, {G.WS}, s7 offen sc1\n buffer_store_dwordx4 v[32:35], v0, {G.WS}, s7 offen offset:1024 sc1")
    if opt.get("prof"):
        a(f"s_lshl_b32 s7, s4, 2\n s_add_u32 s7, s7, s3\n s_lshl_b32 s7, s7, 6\n s_add_u32 s7, s7, {G.PROF}\n s_mov_b64 exec, 1")
        for k in range(12):
            a(f"v_mov_b32 v24, s{20+k}\n buffer_store_dword v24, off, {G.WS}, s7 offset:{4*k} sc1")
    a("s_waitcnt vmcnt(0)\n s_endpgm")
```

```python
from asmlib2 import *
import gen as G

vLin, vPub, vT, vMem0, vIdx, vQw, vOr, vPst = ["v%d" % i for i in range(8)]
vQr, vOw, vInf, vJunk, vKa, vQq = "v8", "v9", "v20", "v21", "v22", "v23"
vW, vKp = "v8", "v9"
FB, SEL, ONES, KV = 10, 12, 16, 60
MEMA, ACQ, ACK = 24, 56, 64
LS = MEMA + 16
ACV, QBUF = 72, [88, 96, 104, 112, 120]
QS = 1024
L_MX, L_QK, L_OB, L_AW, L_W = 0, 8192, 12288, 16384, 32768
L_VM = L_OB + 2048
WSTR = 32768
SM = "v_smfmac_f32_16x16x64_bf16"
MF = "v_mfma_f32_16x16x32_bf16"
MF16 = "v_mfma_f32_16x16x16_bf16"

def zero(a, lo, hi, val="0"):
    for r in range(lo, hi, 2): a(f"v_mov_b64 {vr(r, 2)}, {val}")
def busy(a, n):
    for _ in range(n): a(f"v_mov_b32 {vT}, 0\n s_nop 2")
def wq_half(j, h): return f"ds_read_b128 {vr(QBUF[j % 5] + 4*h)}, {vW} offset:{WSTR + j*2048 + 1024*h}"
KX, VX = 72, 104
NK = 224
def kx_load(f, dst, fl="sc1"): return f"buffer_load_dwordx4 {dst}, {vLin}, {G.WS}, {('s52', 's87')[f // 4]} offen offset:{(f % 4)*1024} {fl}"
def vx_load(f, fl="sc1"): return f"buffer_load_dwordx4 {vr(VX + 4*f)}, {vLin}, {G.WS}, s57 offen offset:{f*1024} {fl}"
def addr_prep(a):
    for u in range(1, 4): a(f"v_add_u32 v{LS + 4*u}, s{80+u}, {vLin}")

def next_seg(a, P):
    a(f"""
    v_readfirstlane_b32 s84, v{FB}
    v_readfirstlane_b32 s85, v{FB+1}
    s_mov_b32 s57, s56
    s_add_u32 s90, s6, 2
    s_cmp_lt_u32 s90, 64
    s_cselect_b32 s7, {G.KSEG}, 0
    s_add_u32 s52, s52, s7
    s_min_u32 s90, s90, 63
    s_lshr_b32 s91, s90, 1
    s_bitcmp1_b32 s90, 0
    s_cselect_b32 s7, s85, s84
    s_cmp_gt_u32 s7, s91
    s_cbranch_scc0 {P}_fbwait
    {P}_fbok:
    s_add_u32 s87, s52, 0x1000
    s_add_u32 s56, s52, s95
    """)

def ring_next(a):
    a(f"""
    s_mov_b32 s51, s48
    s_and_b32 s7, s6, 3
    s_lshl_b32 s48, s7, 13
    s_add_u32 s48, s48, {G.MEMB}
    s_lshr_b32 s97, s7, 1
    s_sub_u32 s98, s97, 1
    s_mov_b32 s99, s98
    s_and_b32 s7, s7, 1
    s_lshl_b32 s7, s7, 18
    s_add_u32 s45, s7, {G.PART}
    s_add_u32 s46, s45, 0x1000
    s_add_u32 s47, s44, s7
    """)

def fb_wait(a, P, prof=0):
    a(f"{P}_fbwait:")
    if prof: a("s_add_u32 s24, s24, 59")
    a("s_and_b32 s92, s90, 1\n s_lshl_b32 s92, s92, 2\n s_add_u32 s92, s92, s55\n s_add_u32 s93, s91, 1")
    G.wait_scalar(a, G.WS, "s92", "s93", "s7", vT, 1)
    a(f"s_branch {P}_fbok")

def startup(a, opt):
    WS, DBG = G.WS, G.DBG
    a.note("""chain workgroup (one head): Wq/Wk/Wv/Wo of the head stay in registers + LDS for all 64 steps.
waves 0,1 (A): share of q,k, attention of the 8 memory rows, share of Wo; waves 2,3 (V): share of q,k, all of v, share of Wo.
The 8-row products use the 2:4 sparse matrix op: even rows take the first two of every four k, odd rows the other two.""")
    a("L_chain:")
    G.srd(a, 20, G.P_MEM0, 8192); G.srd(a, 24, G.P_WQ, 0x400000); G.srd(a, 28, G.P_WK, 0x400000)
    G.srd(a, 32, G.P_WV, 0x400000); G.srd(a, 36, G.P_WO, 0x400000)
    G.make_sel(a, SEL, 20)
    a(f"""
    v_mov_b32 v22, v0
    v_lshlrev_b32 v0, 4, v0
    v_and_b32 v24, 1, v2
    v_lshrrev_b32 v25, 2, v2
    v_and_b32 v26, 3, v2
    v_lshrrev_b32 v28, 1, v2
    v_and_b32 v29, 1, v1
    v_lshrrev_b32 v23, 1, v1
    ; weight voffsets: rows 128w + 32(g/2) + 8(g%2), column bytes 256h + 16n
    v_lshlrev_b32 v27, 18, v23
    v_lshl_add_u32 v27, v29, 16, v27
    v_lshl_add_u32 v27, v2, 4, v27
    s_lshl_b32 s90, s4, 8
    s_lshl_b32 s91, s3, 20
    s_add_u32 s90, s90, s91
    v_add_u32 v30, s90, v27
    v_add_u32 v31, 8192, v30
    ; LDS scatter bases. q,k (v16): region swap(n/4), slot (w - n/4)%4 ; v (v17): region n/4, slot (w - 2 - n/8)%4
    v_lshlrev_b32 v18, 8, v1
    v_lshl_add_u32 v18, v26, 6, v18
    v_add_u32 v18, {L_W}, v18
    s_mov_b32 s90, {WSTR}
    v_lshrrev_b32 v27, 1, v25
    v_and_b32 v19, 1, v25
    v_lshl_add_u32 v19, v19, 1, v27
    v_mul_lo_u32 v16, v19, s90
    v_sub_u32 v19, s3, v25
    v_and_b32 v19, 3, v19
    v_lshl_add_u32 v16, v19, 12, v16
    v_add_u32 v16, v16, v18
    v_mul_lo_u32 v17, v25, s90
    v_sub_u32 v19, s3, v27
    v_add_u32 v19, 2, v19
    v_and_b32 v19, 3, v19
    v_lshl_add_u32 v17, v19, 12, v17
    v_add_u32 v17, v17, v18
    ; v18 = own pair of regions (2(w%2)), v19 = own q/k region
    s_and_b32 s91, s3, 1
    s_mul_i32 s91, s91, {2*WSTR}
    s_add_u32 s91, s91, {L_W}
    v_add_u32 v18, s91, {vLin}
    s_lshr_b32 s7, s3, 1
    s_mul_i32 s7, s7, {WSTR}
    v_add_u32 v19, s7, v18
    ; Wo voffset (v11): rows 16(g/2)+4(g%2), column bytes 256w + 16n, head base
    v_lshlrev_b32 v27, 14, v23
    v_lshl_add_u32 v27, v29, 12, v27
    v_lshl_add_u32 v27, v2, 4, v27
    s_lshl_b32 s90, s4, 17
    s_lshl_b32 s91, s3, 8
    s_add_u32 s90, s90, s91
    v_add_u32 v11, s90, v27
    v_mov_b32 v20, 0x4444
    v_mov_b32 v21, 0xeeee
    v_cmp_eq_u32 vcc, 0, v24
    v_cndmask_b32 {vIdx}, v21, v20, vcc
    s_lshl_b32 s86, s3, 10
    s_add_u32 s90, s86, {L_MX}
    v_add_u32 {vMem0}, s90, {vLin}
    ; q write: QK + w*QS + (n/4)*128 + 2g*16 + (n%4)*4
    v_lshlrev_b32 {vQw}, 7, v25
    v_lshl_add_u32 {vQw}, v1, 5, {vQw}
    v_lshl_add_u32 {vQw}, v26, 2, {vQw}
    s_mul_i32 s90, s3, {QS}
    s_add_u32 s90, s90, {L_QK}
    v_add_u32 {vQw}, s90, {vQw}
    ; v27 = g*128 + (2(n/4) + n%2)*16 ; lanes n%4 < 2 carry keys, the others queries
    v_lshl_add_u32 v27, v25, 1, v24
    v_lshlrev_b32 v27, 4, v27
    v_lshl_add_u32 v27, v1, 7, v27
    v_cmp_gt_u32 vcc, 2, v26
    v_add_u32 {vQr}, {L_QK}, v27
    s_add_u32 s90, s86, {L_OB}
    v_add_u32 v20, s90, v27
    v_xor_b32 v21, 64, v20
    v_add_u32 v21, 512, v21
    v_cndmask_b32 {vOw}, v20, v21, vcc
    ; o read: OB + (2g + n%2)*128 + (n/2)*16
    v_lshl_add_u32 v27, v1, 1, v24
    v_lshlrev_b32 v27, 7, v27
    v_lshl_add_u32 v27, v28, 4, v27
    v_lshlrev_b32 v20, 6, v23
    v_xor_b32 v27, v27, v20
    v_add_u32 {vOr}, {L_OB}, v27
    ; partial store: (8w + 2(n/4) + g/2)*8192 + (g%2)*2048 + 64h + 16(n%4)
    v_lshl_add_u32 v27, v25, 1, v23
    v_lshlrev_b32 v27, 13, v27
    v_lshl_add_u32 v27, v29, 11, v27
    v_lshl_add_u32 v27, v26, 4, v27
    s_lshl_b32 s90, s3, 16
    s_lshl_b32 s91, s4, 6
    s_add_u32 s90, s90, s91
    v_add_u32 {vPst}, s90, v27
    ; mem0 voffset (v25): (n/2)*1024 + 2*(128w + 32g + 16(n%2))
    v_lshlrev_b32 v25, 10, v28
    v_lshl_add_u32 v25, v1, 6, v25
    v_lshl_add_u32 v25, v24, 5, v25
    s_lshl_b32 s91, s3, 8
    v_add_u32 v25, s91, v25
    ; key image read (v24): QK + 512 + (2(w%2) + g/2)*QS + (lane%32)*16
    s_and_b32 s91, s3, 1
    s_mul_i32 s91, s91, {2*QS}
    s_add_u32 s91, s91, {L_QK + 512}
    v_mul_u32_u24 v24, {QS}, v23
    v_and_b32 v27, 31, v22
    v_lshl_add_u32 v24, v27, 4, v24
    v_add_u32 v24, s91, v24
    ; publish: (w/2)*4096 + h*128 + (w%2)*64 + g*32 + (n%4)*8 + (n/4)*4   (lanes g<2, n<8)
    s_lshr_b32 s90, s3, 1
    s_lshl_b32 s90, s90, 12
    s_lshl_b32 s91, s4, 7
    s_add_u32 s90, s90, s91
    s_and_b32 s91, s3, 1
    s_lshl_b32 s91, s91, 6
    s_add_u32 s90, s90, s91
    v_lshlrev_b32 v27, 5, v29
    v_lshl_add_u32 v27, v26, 3, v27
    v_and_b32 v20, 4, v2
    v_add_u32 v27, v27, v20
    v_add_u32 {vPub}, s90, v27
    s_mov_b32 s58, 0x00ff00ff
    s_mov_b32 s59, 0
    s_lshl_b32 s44, s4, 2
    s_add_u32 s44, s44, s3
    s_lshl_b32 s44, s44, 11
    s_add_u32 s44, s44, {G.PART}
    s_lshl_b32 s55, s4, 7
    s_lshl_b32 s54, s4, 2
    s_add_u32 s54, s54, s3
    s_lshl_b32 s54, s54, 7
    s_add_u32 s54, s54, {G.FLG_FH}
    s_add_u32 s55, s55, {G.FLG_FB}
    """)
    for u in range(1, 4):
        a(f"s_add_u32 s7, s3, {u}\n s_and_b32 s7, s7, 3\n s_lshl_b32 s7, s7, 10\n s_add_u32 s{80+u}, s7, {L_MX}")
    zero(a, 20, 24, "-1")
    for sl in range(2):
        a(f"s_add_u32 s7, s44, {sl*0x40000}")
        for o in (0, 1024): a(f"buffer_store_dwordx4 v[20:23], {vLin}, {WS}, s7 offen offset:{o} sc1")
    a("s_mov_b64 exec, s[58:59]")
    for sl in range(4):
        a(f"s_mov_b32 s7, {G.MEMB + sl*8192}\n buffer_store_dword v20, {vPub}, {WS}, s7 offen sc1")
    a("s_mov_b64 exec, -1")
    G.flag_store(a, "s54", "0", "v27")
    def job(srdn, vdst, done):
        return dict(kind='lds', srd=srdn, stride=8192, v0="v30", v1="v31", vdst=vdst,
                    row=lambda u: 64*((u//4) % 2) + 16*(u % 2) + 4*(u//8) + 2*((u//2) % 2),
                    imm=lambda grp, c: (grp//2)*16384 + (c % 2)*2048 + (grp % 2)*1024 + (c//2)*16, done=done)
    def pick(fa, fv, after=None):
        def done():
            lv, le = a.label("PV"), a.label("PE")
            a(f"s_waitcnt lgkmcnt(0)\n s_barrier\n s_cmp_ge_u32 s3, 2\n s_cbranch_scc1 {lv}")
            fa()
            a(f"s_branch {le}\n{lv}:")
            fv()
            a(f"{le}:\n s_waitcnt lgkmcnt(0)\n s_barrier")
            if after: after()
        return done
    def rd(src, dst, off=0):
        return lambda: [a(f"ds_read_b128 {dst(f)}, {src} offset:{off + f*1024}") for f in range(32)]
    nothing = lambda: None
    def wo_group(grp):
        if grp == 2: a(f"buffer_load_dwordx2 v[30:31], off, {WS}, s55 sc1")
        if grp == opt.get("wg", 2) and opt.get("wr", 1) & 1:
            a(f"v_lshlrev_b32 v64, 1, {vLin}\n v_lshlrev_b32 v65, 3, {vLin}\n s_add_u32 s7, s44, 0x40000\n s_lshl_b32 s90, s3, 13\n s_add_u32 s90, s90, {G.MEMB}")
            a(f"buffer_load_dword v66, v64, {WS}, s44 offen sc1\n buffer_load_dword v67, v64, {WS}, s7 offen sc1\n buffer_load_dword v68, v65, {WS}, s90 offen sc1")
        if grp == opt.get("wg", 2) and opt.get("tw", 0):
            a(f"v_lshrrev_b32 v69, 4, {vLin}\n v_mul_u32_u24 v70, {G.KSEG}, v69\n s_mov_b32 s7, {G.KXV + 32*16384}\n buffer_load_dword v70, v70, {WS}, s7 offen sc1")
        if grp == opt.get("wg", 2) and opt.get("wr", 1) & 2:
            a(f"""
            s_getpc_b64 s[60:61]
            L_pc0:
            s_add_u32 s60, s60, FA_loop-L_pc0
            s_addc_u32 s61, s61, 0
            s_mov_b32 s62, SA_loop-FA_loop
            s_mov_b32 s63, 0x20000
            v_lshlrev_b32 v69, 2, {vLin}
            s_lshl_b32 s7, s3, 12
            buffer_load_dword v69, v69, s[60:63], s7 offen
            """)
        if grp == opt.get("hg", 2) and opt.get("hp", 0):
            sk = a.label("HP")
            a(f"s_cmp_eq_u32 s3, 0\n s_cbranch_scc1 {sk}\n v_lshlrev_b32 v71, 3, {vLin}\n s_xor_b32 s7, s4, s3\n s_lshl_b32 s7, s7, 17")
            a(f"s_mul_i32 s90, s3, {5*8192}\n s_add_u32 s7, s7, s90\n s_sub_u32 s7, s7, {4*8192}")
            for k in range(5): a(f"buffer_load_dword v{72 + k}, v71, {G.W4}, s7 offen\n s_add_u32 s7, s7, 8192")
            a(f"{sk}:")
            a.vm_n -= 5
        lv, le = a.label("OV"), a.label("OE")
        a(f"s_cmp_ge_u32 s3, 2\n s_cbranch_scc1 {lv}")
        for c in range(6):
            for r in range(4): a(f"v_accvgpr_write_b32 a{128 + (c*2 + grp//2)*8 + (grp % 2)*4 + r}, v{32 + 4*c + r}")
        for c in (6, 7): a(f"ds_write_b128 {vMem0}, {vr(32 + 4*c)} offset:{L_AW + (((c - 6)*2 + grp//2)*2 + grp % 2)*2048}")
        a(f"s_branch {le}\n{lv}:")
        for c in range(8): a(f"ds_write_b128 v18, {vr(32 + 4*c)} offset:{(c*2 + grp//2)*2048 + (grp % 2)*1024}")
        a(f"{le}:")
    def early():
        for hf in range(2):
            for c in range(2):
                a(f"buffer_load_dwordx2 {vr((20, 26)[hf] + 2*c, 2)}, v25, {G.OUT}, 0 offen offset:{8*hf + 16*c}")
        a(f"buffer_load_dword v16, off, {DBG}, 0 offset:{G.D_GO} sc1\n buffer_load_dword v17, off, {DBG}, 0 sc1")
    kd = G.lds_to_regs(a, "v19", lambda f: ar(4*f))
    jobs = [dict(job(G.W2, "v16", kd), first=lambda: G.init_arrive(a, "v27")),
            job(G.W1, "v16", G.lds_to_regs(a, "v19", lambda f: vr(128 + 4*f))),
            job(G.W3, "v17", pick(nothing, rd("v18", lambda f: ar(128 + 4*f)), early)),
            dict(kind='lds', srd=G.W4, stride=1024, v0="v11", row=lambda u: 64*(u//8) + 32*((u//4) % 2) + 8*(u % 2) + 2*((u//2) % 2), group=wo_group)]
    if "tj" in opt:
        d0 = jobs[opt["tj"]]["done"]
        def dd():
            d0(); n0 = a.vm_n; G.tl(a, opt, 4, "v27"); a.vm_n = n0
        jobs[opt["tj"]]["done"] = dd
    if opt.get("jo"): jobs[0], jobs[1] = dict(jobs[1], first=jobs[0]["first"]), dict(jobs[0], first=None)
    G.load_stream(a, jobs, tmp=64, depth=8, out=32, fl=['', 'nt', 'sc1'][opt.get('cnt', 0)], ahead=opt.get('ah', 0))
    a("s_waitcnt vmcnt(0)")
    if "tj" not in opt: G.tl(a, opt, 4, "v32")
    a(f"""
    v_mov_b32 v33, v24
    v_readfirstlane_b32 s7, v16
    v_readfirstlane_b32 s43, v17
    v_mov_b64 {vr(LS, 2)}, v[26:27]
    v_mov_b64 {vr(LS+2, 2)}, v[28:29]
    v_mov_b64 v[24:25], v[20:21]
    v_mov_b64 v[26:27], v[22:23]
    s_cmp_ge_u32 s7, 1
    s_cbranch_scc1 L_chain_up
    """)
    G.wait_go(a, vT, 2)
    G.wait_scalar(a, DBG, 0, 0, "s43", vT, 2)
    a(f"""
    buffer_load_dwordx2 v[30:31], off, {WS}, s55 sc1
    s_waitcnt vmcnt(0)
    L_chain_up:
    v_mov_b64 {vr(FB, 2)}, v[30:31]
    s_lshl_b32 s52, s4, 14
    s_add_u32 s52, s52, {G.KXV - G.KSEG}
    s_and_b32 s7, s3, 1
    s_lshl_b32 s95, s7, 12
    s_add_u32 s95, s95, 0x2000
    s_mov_b32 s56, 0
    s_lshl_b32 s53, s4, 12
    s_add_u32 s53, s53, {G.KVM - 0x20000}
    s_lshl_b32 s7, s7, 10
    s_add_u32 s53, s53, s7
    """)
    a(f"""
    s_mov_b32 s50, {G.MEMB}
    s_mov_b32 s80, 0
    s_mov_b32 s78, {G.f32bits(float(opt.get("thr", 12)))}
    s_mov_b64 s[88:89], 0
    s_mov_b32 s48, {G.MEMB + 3*8192}
    s_waitcnt lgkmcnt(0)
    s_mov_b32 s6, -2
    """)
    a("s_cmp_ge_u32 s3, 2\n s_cbranch_scc1 L_nokx")
    next_seg(a, "C1")
    for f in range(8): a(kx_load(f, vr(KX + 4*f)))
    a("s_mov_b32 s6, -1")
    next_seg(a, "C0")
    if opt.get("sw", 0): a("s_waitcnt vmcnt(0)")
    a("L_nokx:")
    G.tl(a, opt, 2, "v56", True)
    a("s_mov_b32 s6, 0")
    ring_next(a)
    addr_prep(a)
    if opt.get("prof"):
        for k in range(20, 32): a(f"s_mov_b32 s{k}, 0")
    a("s_cmp_ge_u32 s3, 2\n s_cbranch_scc1 L_vstart")
    for r in range(4): a(f"v_mov_b32 v{ONES+r}, 0x3f803f80")
    zero(a, ACQ, ACQ + 16)
    a(f"v_mov_b32 {vKa}, v33\n v_mov_b32 v23, -1")
    zero(a, 120, 124, "-1")
    a(f"ds_write_b128 {vMem0}, v[120:123] offset:{L_VM}\n s_waitcnt lgkmcnt(0)")
    a(f"v_and_b32 {vInf}, 32, {vLin}\n v_lshlrev_b32 {vInf}, 26, {vInf}\n v_or_b32 {vInf}, 0x7f800000, {vInf}")
    a.fence()
    a("s_cmp_lt_u32 s43, 32\n s_cbranch_scc1 SA_loop\n s_branch FA_loop\nL_vstart:")
    a(f"v_mov_b32 {vW}, v18\n v_mov_b32 {vKp}, v33")
    zero(a, 16, 20, "-1")
    for j in range(5):
        for h in range(2): a(wq_half(j, h))
    zero(a, ACQ, ACQ + 32)
    a("s_waitcnt lgkmcnt(0)")
    a.fence()
    a("s_cmp_lt_u32 s43, 32\n s_cbranch_scc1 SV_loop\n s_branch FV_loop")
    fb_wait(a, "C0")
    fb_wait(a, "C1")

def loop(a, opt, P, st, A):
    WS = G.WS
    prof = opt.get("prof"); free = opt.get("free")
    cnt = [0]
    sel = opt.get("stamps")
    dflt = ("top", "end", "15", "31", "sc", "pv", "wo", "w9", "h1")
    jn = [0]
    def stamp(k):
        if opt.get("jit", 0) % 10 and opt["jit"] < 10 and str(k) in ("top", "2", "9", "14", "20", "30", "s2", "s9", "pv", "p2", "wo", "w5", "w12", "h1", "h2", "g1", "v3", "v12", "sc"):
            jn[0] += 1
            sk = a.label("JT")
            a(f"s_cselect_b32 s70, 1, 0\n s_mul_i32 s71, s6, {7 + 2*jn[0]}\n s_mul_i32 s72, s4, {13 + 6*jn[0]}\n s_add_u32 s71, s71, s72\n s_mul_i32 s72, s3, {29 + opt['jit']}\n s_xor_b32 s71, s71, s72")
            a(f"s_and_b32 s71, s71, 15\n s_cmp_lg_u32 s71, {jn[0] % 16}\n s_cbranch_scc1 {sk}\n s_sleep {(5, 17, 40)[jn[0] % 3]}\n{sk}:\n s_cmp_lg_u32 s70, 0")
        if prof == 1 and (k in ("top", "end") or str(k) in (sel or dflt)):
            i = cnt[0]; cnt[0] += 1
            assert i < 9
            a(f"s_mem{'real' if opt.get('trace') else ''}time s[{60+2*i}:{61+2*i}]")
    tk = {}
    fill = {}
    def F(i, x, cls=None):
        if cls is None: cls = 1 if (isinstance(x, str) and x.startswith("v_")) else 0
        fill.setdefault(i, []).append((cls, x if callable(x) else (lambda: a(x))))
    def D(i, key, text, cls=0): F(i, lambda: tk.__setitem__(key, a.ds(text)), cls)
    def W(i, key): F(i, lambda: a.wait_ds(tk[key]))
    def Z(i, lo, hi, val="0"):
        for r in range(lo, hi, 2): F(i, f"v_mov_b64 {vr(r, 2)}, {val}")
    def run(i):
        for cls, f in sorted(fill.pop(i, []), key=lambda e: e[0]): f()
    def mem_rd(i, tau): D(i, ("m", tau), f"ds_read_b128 {vr(MEMA + 4*tau)}, v{LS + 4*(tau % 4)} offset:{4096*(tau//4)}")
    nw = opt.get("nw", 0x60)
    val = opt.get("val", 1)
    nb = opt.get("nb", 0)
    def bar(i, bit=0):
        if nb and bit in (3, 4): return
        if not nw >> bit & 1: W(i, "wr")
        F(i, "s_barrier")
    def add(r): return f"v_add_f32 v{r}, v{r}, v{r+1}"
    def cvt(d, x, y): return f"v_cvt_pk_bf16_f32 v{d}, v{x}, v{y}"
    def smv(tau, t4):
        j = 2*tau + t4 % 2
        def emit():
            if t4 >= 2 and j >= 5: a.wait_ds(tk[("w", j)])
            a(f"{SM} {vr(ACV + 4*t4)}, {vr(MEMA + 4*tau)}, {ar(128 + j*8, 8) if t4 < 2 else vr(QBUF[j % 5], 8)}, {vIdx}")
            if pend:
                jp = pend.pop(); tk[("w", jp)] = a.ds(wq_half(jp, 1))
            if t4 >= 2 and j + 5 < 16:
                a.ds(wq_half(j + 5, 0)); pend.append(j + 5)
        return emit
    pend = []
    a(".p2align 6")
    for _ in range(opt.get("ala", 4) if A else opt.get("alv", 1)): a.lines.append("    s_nop 0")
    rot = opt.get("rot", 0)
    nfl = opt.get("na", 1) if A else opt.get("nv_", 1)
    if rot: a(f"{P}_head:\n s_waitcnt vmcnt({nfl})")
    a(f"{P}_loop:")
    if rot: a(f"v_max3_u32 {vT}, v24, v25, v26\n v_max_u32 {vT}, {vT}, v27")
    a.drop = tuple(opt.get("drop", ()))
    stamp("top")
    nk = opt.get("nk", 6)
    ke = [("k", tau, T) for tau in range(1, 4) for T in range(2)]
    seq = [(m, 0, T) for T in range(2) for m in "qk"] + [("q", tau, T) for tau in range(1, 4) for T in range(2)] + ke[:nk]
    seq += [("q", tau, T) for tau in range(4, 8) for T in range(2)] + ke[nk:] + [("k", tau, T) for tau in range(4, 8) for T in range(2)]
    qpos = {2*t + T: i for i, (m, t, T) in enumerate(seq) if m == "q"}
    qe = qpos[15]
    q3 = min(qe + opt.get("q3", 8), 31)
    lc = opt.get("lc", 10); b2 = lc + opt.get("lb", 5)
    lw = opt.get("lw", 1)
    assert b2 <= qpos[8] + 1
    lg = opt.get("lg", 2)
    lload = f"buffer_load_dwordx4 {vr(LS)}, {vLin}, {WS}, s50 offen sc1"
    F(lg, "s_mov_b64 exec, s[88:89]")
    F(lg, lambda: tk.__setitem__("L", a.vm(lload)))
    F(lg, "s_mov_b64 exec, -1")
    if opt.get("wm", 1) & 1:
        for u in range(1, 4): F(u - 1, f"v_add_u32 v{LS + 4*u}, s{80+u}, {vLin}")
    b1 = opt.get("b1", 3)
    bar(b1, 1)
    sp = opt.get("sp", 16)
    for u in range(1, 4): mem_rd(b1, u)
    def M_(i, key, text): F(i, lambda: tk.__setitem__(key, a.vm(text)))
    if A:
        xp = [int(p) for p in opt.get("xp", (3, 3, 3, 3, 5, 6, 7, 8, 9, 11, 12, 13, 14))]
        if opt.get("xm"):
            xp = xp[:4] + [p for p in range(b2 + opt["xm"], 31) if p not in (qe + 1, qe + 2, qe + 3)][:9]
        if lg > 3:
            x0 = lg + opt.get("xo", 1); xs_ = opt.get("xs_", 2)
            xp = [x0 + k // xs_ for k in range(4)]
            xp += [xp[-1] + 2 + k for k in range(9)]
        ta = opt.get("ta", 0)
        kf_, vf_, th = ["sc1", ""][opt.get("kp", 1)], ["sc1", ""][opt.get("vp", 1)], opt.get("th", 0)
        F(4, f"v_lshlrev_b32 {vJunk}, {3 if th else 2}, {vLin}")
        if opt.get("tl3", 0): F(4, f"v_writelane_b32 {vJunk}, s79, 63")
        np_ = opt.get("nopf", 0)
        if not np_ & 1:
            for f in range(4): M_(xp[f], "vx", vx_load(f, vf_))
        tch = f"buffer_load_dword {vJunk}, {vJunk}, {WS}, s56 offen {vf_}"
        if not np_ & 2: F(xp[4], f"s_mov_b32 exec_hi, 0\n {tch}\n s_mov_b32 exec_hi, -1" if th else tch)
        if not np_ & 4:
            for f in range(8): F(xp[5 + f], kx_load(f, ar(NK + 4*f), kf_))
        F(sp, f"buffer_load_dwordx2 {vr(FB, 2)}, off, {WS}, s55 sc1")
        kvst = [f"buffer_store_dwordx4 {vr(120 + 4*k)}, {vLin}, {WS}, s53 offen offset:{2048*k} sc1" for k in range(2)]
        flst = f"s_mov_b64 exec, 1\n buffer_store_dword {vT}, off, {WS}, s54 sc1\n s_mov_b64 exec, -1"
        ks = opt.get("ks", 1)
        if opt.get("nokvm"): kvst = ["s_nop 0", "s_nop 0"]; flst = "s_nop 0"
        sp = max(sp, b2)
        F(sp + 1, f"v_mov_b32 {vT}, s80")
        if ks and opt.get("fq", 0): F(opt["fq"], flst)
        if not ks:
            for k in range(2): F(sp + 4 + k*opt.get("k2", 1), kvst[k])
            F(sp + 2, flst)
    else:
        nv0, nv1, nv2 = opt.get("nv0", 4), opt.get("nv1", 0), opt.get("nv2", 1)
        vs = [(tau, t4) for tau in range(6) for t4 in (2, 0, 3, 1)] + [(6, 2), (6, 0), (6, 3), (7, 2), (7, 3), (7, 0), (6, 1), (7, 1)]
        for k in range(nv0): F(3, smv(*vs.pop(0)))
        for k in range(nv1): F(lc, smv(*vs.pop(0)))
        for k in range(opt.get("nvb", 0)): F(b2, smv(*vs.pop(0)))
        for k in range(nv2): F(qpos[10] - 1, smv(*vs.pop(0)))
        for k in range(opt.get("nv3", 0)): F(q3, smv(*vs.pop(0)))
    F(3, lambda: a.wait_ds(tk[("m", 1)]), 0.5); W(5, ("m", 3))
    F(5, lambda: busy(a, opt.get("xe", 0)))
    lwr = f"ds_write_b128 {vMem0}, {vr(LS)} offset:4096"
    if lw:
        F(lc, lambda: a.wait_vm(tk["L"]))
        D(lc, "wr", lwr)
        F(lc+1, f"v_max3_u32 {vT}, v{LS}, v{LS+1}, v{LS+2}")
        F(lc+2, f"v_max_u32 {vT}, {vT}, v{LS+3}")
        F(lc+3, f"v_cmp_eq_u32 vcc, -1, {'v0' if free else vT}")
    else:
        F(lc-1, f"v_max3_u32 {vT}, v{LS}, v{LS+1}, v{LS+2}", 2)
        F(lc-1, f"v_max_u32 {vT}, {vT}, v{LS+3}", 2)
        D(lc, "wr", lwr)
        F(lc, f"v_cmp_eq_u32 vcc, -1, {'v0' if free else vT}")
        if not A: F(q3 - 1, "s_waitcnt vmcnt(0)")
    assert lc + 3 < b2 or free
    assert lc + 3 < min(b2, qpos[8] - 1)
    F(min(b2, qpos[8] - 1), lambda: (tk.__setitem__("Ln", a.vm_n - tk["L"]), a(f"s_cbranch_vccnz {P}_lretry\n{P}_lok:")))
    bar(b2, 2); mem_rd(b2, 5); mem_rd(b2+1, 6); mem_rd(b2+1, 7)
    pa = opt.get("pa", 3)
    if val:
        pp, pq = opt.get("pp", 20), opt.get("pq", 2)
        assert lc + 2 < pp and pp + pq < qe + 3
        pe_ = opt.get("pe_", 0)
        if A and pe_:
            for k, off in enumerate((L_OB, L_VM)): D(opt.get("pe%d" % k, 3), "_", f"ds_write_b128 {vMem0}, v[120:123] offset:{off}")
            D(pp, "_", f"ds_read_b128 v[120:123], {vKa}")
        elif A and pa:
            F(pp - 2, "v_mov_b64 v[24:25], -1"); F(pp - 1, "v_mov_b64 v[26:27], -1")
            if pa & 1: D(pp, "_", f"ds_write_b128 {vMem0}, v[24:27] offset:{L_OB}")
            if pa & 2 and not (opt.get("vw", 0) or opt.get("nb", 0)): D(pp + pq, "_", f"ds_write_b128 {vMem0}, v[24:27] offset:{L_VM}")
        if not A:
            pv_ = opt.get("pv_", 6)
            if not pa & 1: D(pv_, "_", f"ds_write_b128 {vMem0}, v[16:19] offset:{L_OB - 2048}")
            if not pa & 2: D(pv_ + 2, "_", f"ds_write_b128 {vMem0}, v[16:19] offset:{L_VM - 2048}")
    W(qpos[10] - 1, ("m", 5)); W(qpos[12] - 1, ("m", 7))
    F(28, "s_add_u32 s49, s48, s86\n s_add_u32 s50, s49, 0x1000")
    F(29, "s_mov_b64 s[88:89], -1")
    qs = opt.get("qs", 0)
    F(qe+1, add(56)); F(qe+1, add(58)); F(qe+2, add(60)); F(qe+2, add(62))
    if qs:
        for r in (56, 58): F(qe+1, f"v_mul_f32 v{r}, s42, v{r}")
        for r in (60, 62): F(qe+2, f"v_mul_f32 v{r}, s42, v{r}")
    F(qe+2, cvt(56, 56, 60)); F(qe+2, cvt(57, 58, 62))
    D(qe+3, "wr", f"ds_write2_b32 {vQw}, v56, v57 offset0:0 offset1:4")
    bar(q3, 3)
    if A:
        for t in range(4): D(min(q3 + (t + 1)//2, 31), ("q", t), f"ds_read_b128 {vr(24 + 4*t)}, {vQr} offset:{t*QS}")
    if not A: F(0, {0: "s_nop 0\n s_nop 0", 1: "s_memrealtime s[60:61]", 2: "s_memtime s[60:61]"}[opt.get("per", 0)])
    cl_ = "a" if A else "v"
    def pad(key, slots):
        for k in range(opt.get(key + cl_, 0)): F(slots[k % len(slots)], "s_nop 0")
    pad("p1", (0, 1, 0, 1, 4, 6, 8) if A else (0, 1, 4, 6, 7, 8, 9))
    pad("p2", (19, 21, 23, 19, 21, 23, 14) if A else (18, 20, 21, 22, 23, 14, 20))
    pad("p3", (27, 30, 27, 30, 29, 27, 30))
    tk["wr"] = a.ds(f"ds_write_b128 {vMem0}, {vr(MEMA)}")
    if rot:
        a(f"v_cmp_eq_u32 vcc, -1, {vT}")
        assert lg >= 2
        F(1, f"s_cbranch_vccnz {P}_gretry", -1)
    for i, (m, tau, T) in enumerate(seq):
        j = 2*tau + T
        B = vr(128 + j*8, 8) if m == "q" else ar(j*8, 8)
        a(f"{SM} {vr((ACQ if m == 'q' else ACK) + 4*T)}, {vr(MEMA + 4*tau)}, {B}, {vIdx}")
        run(i)
        stamp(i)
    assert not fill, fill.keys()
    kfold = [add(64), add(66), add(68), add(70), cvt(64, 64, 68), cvt(65, 66, 70)]
    kwr = f"ds_write2_b32 {vQw}, v64, v65 offset0:128 offset1:132"
    inbox = f"buffer_load_dwordx4 v[28:31], {vLin}, {WS}, s47 offen sc1\n buffer_load_dwordx4 v[32:35], {vLin}, {WS}, s47 offen offset:1024 sc1"
    if A:
        QB, KB, X0, X1, M, t0 = 24, 40, 56, 60, 120, 124
        PX, PM, PXB, PMB, VM, O, Lr, PKO = 48, 68, 52, 64, 24, 28, 44, 120
        WA, OA, PK = [56, 60, 28, 32, 24, 36, 40, 44], 120, [64, 68]
        xl = []
        tq = [tk[("q", t)] for t in range(4)]
        kf = opt.get("kf", 1)
        if kf == 2:
            for n, x in enumerate(kfold): F(n // 2, x)
            D(3, "wr", kwr)
        elif kf:
            for x in kfold: a(x)
            tk["wr"] = a.ds(kwr)
        else:
            a(kfold[0]); a(kfold[1])
            for x in kfold[2:]: F(0, x)
            D(1, "wr", kwr)
        b4 = opt.get("b4", 4)
        ml = opt.get("ml", 0)
        if not ml:
            bar(b4, 4)
            for t in range(4): D(min(b4 + (t + 1)//2, 7), ("k", t), f"ds_read_b128 {vr(KB + 4*t)}, {vQr} offset:{t*QS + 512}")
        if ks:
            F(opt.get("k1", 1), kvst[1]); F(opt.get("k0", 3), kvst[0])
            if not opt.get("fq", 0): F(7, flst)
        F(3 if kf == 2 else 2, "v_mov_b32 v68, 0\n v_mov_b32 v70, 0")
        F(4 if kf == 2 else 0, "v_mov_b32 v65, 0\n v_mov_b32 v67, 0")
        F(6, f"v_max3_f32 v{t0}, v{X0}, v{X0+1}, v{X0+2}")
        for p in (7, 8, 9, 10, 11, 11)[:opt.get("x1", 6)]:
            if xl: F(p, xl.pop(0))
        awr = [f"ds_read_b128 {vr(KX + 4*k)}, {vMem0} offset:{L_AW + k*2048}" for k in range(8)]
        aw = opt.get("aw", 3)
        if not aw:
            for p in (8, 9, 10, 11): F(p, awr.pop(0))
        chain = [f"v_max3_f32 v{t0+1}, v{X0+3}, v{X1}, v{X1+1}", f"v_max3_f32 v{t0}, v{t0}, v{X1+2}, v{X1+3}",
                 f"v_max_f32 v{t0+2}, v{t0}, v{t0+1}", f"v_max_f32 v{t0+3}, v{t0}, v{t0+1}"]
        pad("p4", (8, 8, 6, 9, 10, 3, 1))
        ex = f"s_cmp_eq_u32 s6, 63\n s_cbranch_scc1 L_chain_end"
        if not ml:
            F(9, chain[0]); F(9, chain[1]); F(10, chain[2]); F(10, chain[3]); chain = []
            if opt.get("xq", 0): F(opt["xq"] - 1, "s_cmp_eq_u32 s6, 63"); F(opt["xq"], "s_cbranch_scc1 L_chain_end")
            else: F(11, ex)
            for t in range(4): W(7 + t, ("k", t))
        if not opt.get("nopf", 0) & 1: F(5, lambda: a.wait_vm(tk["vx"]))
        for t in range(1, 4): F(t - 1, lambda t=t: a.wait_ds(tq[t]))
        def sc(n):
            t = n % 4
            d, Ao, Bo = ((X0, KX + 4*t, QB + 4*t), (X1, KX + 16 + 4*t, QB + 4*t), (M, KB + 4*t, QB + 4*t))[n // 4]
            return f"{MF} {vr(d)}, {vr(Ao)}, {vr(Bo)}, {vr(d) if t else '0'}"
        for n in range(8 if ml else 12):
            if n == 0: a.wait_ds(tq[0])
            a(sc(n))
            run(n)
            stamp("s%d" % n)
        stamp("sc")
        regs = [X0, X0+1, X0+2, X0+3, X1, X1+1, X1+2, X1+3]
        if ml: PX, PXB = 72, 76
        sm = chain + [f"v_permlane16_swap_b32 v{t0+2}, v{t0+3}", f"v_max_f32 v{t0}, v{t0+2}, v{t0+3}", f"v_max_f32 v{t0+1}, v{t0+2}, v{t0+3}"]
        if not ml: sm += ["v_mov_b64 v[40:41], 0", "v_mov_b64 v[42:43], 0"]
        sm += [f"v_permlane32_swap_b32 v{t0}, v{t0+1}", f"v_max3_f32 v{t0}, v{t0}, v{t0+1}, {vInf}"]
        if not qs: sm.append(f"v_mul_f32 v{t0}, s42, v{t0}")
        def arg(r): return f"v_sub_f32 v{r}, v{r}, v{t0}" if qs else f"v_fma_f32 v{r}, v{r}, s42, -v{t0}"
        sm += [arg(r) for r in regs]
        for k, r in enumerate(regs):
            sm.append(f"v_exp_f32 v{r}, v{r}")
            if k >= 2 and k % 2 == 0: sm.append(cvt(PX + k//2 - 1, regs[k-2], regs[k-1]))
        mb, m0 = opt.get("mb", 0), opt.get("m0", 12)
        for n, x in enumerate(sm):
            if ml and n == mb:
                if not nb: a.wait_ds(tk["wr"]); a("s_barrier")
                a(ex)
                tkk = [a.ds(f"ds_read_b128 {vr(KB + 4*t)}, {vQr} offset:{t*QS + 512}") for t in range(4)]
            if ml and n >= m0 and (n - m0) % 2 == 0 and (n - m0) // 2 < 4:
                t = (n - m0) // 2
                a.wait_ds(tkk[min(t + 1, 3) if t == 0 else 3]); a(sc(8 + t))
            a(x)
        stamp("pv")
        busy(a, opt.get("xs", 0))
        a(arg(M))
        a(cvt(PX + 3, regs[6], regs[7]))
        a(arg(M+1)); a(f"v_exp_f32 v{M+2}, v{M}")
        b5 = opt.get("b5", 3)
        F(b5, "s_barrier")
        D(b5, "vm", f"ds_read_b128 {vr(VM)}, {vMem0} offset:{L_VM}")
        def sw(d, x): return f"v_mov_b32_dpp v{d}, v{x} quad_perm:[2,3,0,1] row_mask:0xf bank_mask:0xf"
        mpack = [cvt(64, M+2, M+3), cvt(69, M+2, M+3), sw(66, 64), sw(71, 64)]
        F(0, sw(PXB, PX)); F(0, sw(PXB+1, PX+1)); F(1, sw(PXB+2, PX+2)); F(1, sw(PXB+3, PX+3))
        F(2, f"v_exp_f32 v{M+3}, v{M+1}"); F(2, f"v_max_f32 v{t0+1}, v{M}, v{M+1}")
        F(3, mpack[0]); F(3, mpack[1])
        F(4, mpack[2]); F(4, mpack[3])
        F(5, f"v_cmp_lt_f32 vcc, s78, v{t0+1}"); Z(5, 36, 40); F(5, f"v_cndmask_b32 v{t0+2}, 0, v23, vcc")
        if not aw:
            for p in (0, 1, 6, 7): F(p, awr.pop(0))
        pv = [f"{MF} {vr(Lr)}, {vr(ONES)}, {vr(PX)}, 0"]
        pv += [f"{MF} {vr(O + 4*(f % 2))}, {vr(VX + 4*f)}, {vr((PX, PXB)[f//2])}, {vr(O + 4*(f % 2)) if f//2 else '0'}" for f in range(4)]
        pv += [f"{MF16} {vr(Lr)}, {vr(ONES, 2)}, v[64:65], {vr(Lr)}"]
        pv += [f"{MF} {vr(O + 4*T)}, {vr(VM)}, {vr(64 + 4*T)}, {vr(O + 4*T)}" for T in range(2)]
        assert val
        F(5, lambda: a.wait_ds(tk["vm"]), 2)
        F(6, f"v_max3_u32 {vT}, v{VM}, v{VM+1}, v{VM+2}"); F(6, f"v_max3_u32 {vT}, {vT}, v{VM+3}, v{t0+2}")
        F(7, f"v_cmp_eq_u32 vcc, -1, {vT}")
        inv = [f"v_add_f32_dpp v{t0}, v{Lr}, v{Lr} quad_perm:[2,3,0,1] row_mask:0xf bank_mask:0xf", f"v_rcp_f32 v{t0}, v{t0}"]
        for x in inv: F(7, x)
        F(7, f"s_cbranch_vccnz {P}_vredo\n{P}_vok:", 2)
        for n, x in enumerate(pv):
            a(x); run(n); stamp("n%d" % n)
        for r in range(4): a(f"v_mul_f32 v{O+r}, v{O+r}, v{t0}")
        stamp("p1")
        for r in (4, 6): a(f"v_pk_mul_f32 {vr(O + r, 2)}, {vr(O + r, 2)}, {vr(t0, 2)} op_sel_hi:[1,0]")
        for i in range(4): a(cvt(PKO + i, O + i, O + 4 + i))
        if opt.get("tst"): a("s_barrier\n s_nop 15\n s_nop 15\n s_nop 15")
        a(f"ds_write_b128 {vOw}, {vr(PKO)}")
        if not nw >> 6 & 1: (zero(a, 56, 64), zero(a, 28, 36 - 2*opt.get('zz', 0)))
        stamp("p2")
        wo_reg = lambda j: ar(128 + j*8, 8) if j < 12 else vr(KX + (j - 12)*8, 8)
    else:
        WB = [88, 96, 104, 112, 120, 16, 56, 64]
        WA, OA, PK = [28, 32, 36, 40, 44, 48, 52, 72], 76, [84, 24]
        def woh(j, h): return f"ds_read_b128 {vr(WB[j % 8] + 4*h)}, {vW} offset:{j*2048 + 1024*h}"
        nv = len(vs); sh = 32 - nv
        if opt.get("fs", 0):
            for n, x in enumerate(kfold): F(n, x)
            D(6, "wr", kwr)
        else:
            F(0, kfold[0]); F(0, kfold[1])
            for x in kfold[2:]: F(1, x)
            D(2, "wr", kwr)
        v4 = opt.get("v4", 8)
        bar(v4, 4)
        wl = [(k // 2, k % 2) for k in range(16)]
        if opt.get("pw", 1):
            pos = {2*t + t4 % 2: n for n, (t, t4) in enumerate(vs) if t4 >= 2}
            free_at = {5: 0, 6: 3, 1: pos[11], 2: pos[12], 3: pos[13], 4: pos[14]}
            slot = pos[10] + 2
            for jj in (5, 6, 1, 2, 3, 4):
                for hh in range(2):
                    slot = max(slot, free_at[jj])
                    if slot < nv - 1:
                        D(slot, "_", woh(jj, hh)); wl.remove((jj, hh)); slot += 1
        pad("p4", (4, 6, 10, 12, 14, 16, 18))
        zl = [(r, "0") for r in range(28, 52, 2)]
        for i in range(3, nv - 2):
            if opt.get("zv", 0) and zl and i + sh > (zl[0][0] - MEMA) // 4 * 4 + 3:
                r, val = zl.pop(0); F(i, f"v_mov_b64 {vr(r, 2)}, {val}")
        F(nv-3, add(80)); F(nv-3, add(82)); F(nv-2, add(84)); F(nv-2, add(86))
        for x in (cvt(KV+6, 80, 82), cvt(KV+7, 84, 86), add(72), add(74), cvt(KV+4, 72, 74)): F(nv-1, x)
        for n, (tau, t4) in enumerate(vs):
            if n + 1 < nv and vs[n+1][1] >= 2 and 2*vs[n+1][0] + vs[n+1][1] % 2 >= 5: W(n, ("w", 2*vs[n+1][0] + vs[n+1][1] % 2))
            smv(tau, t4)(); run(n); stamp("v%d" % n)
        assert not fill and not pend
        stamp("sc")
        busy(a, opt.get("xw", 0))
        for x in (add(76), add(78), cvt(KV+5, 76, 78)): a(x)
        if opt.get("tst"): a(f"s_cmp_eq_u32 s6, 63\n s_cbranch_scc1 L_chain_done\n s_barrier\n s_nop 15\n s_nop 15\n s_nop 15")
        tk["wr"] = a.ds(f"ds_write_b128 {vMem0}, {vr(KV+4)} offset:{L_VM - 2048}")
        a(f"s_cmp_eq_u32 s6, 63\n s_cbranch_scc1 L_chain_done")
        if nw >> 5 & 1 and not opt.get("tst"): a("s_barrier")
        if not nw >> 5 & 1:
            a.wait_ds(tk["wr"]); a("s_barrier")
        stamp("pv")
        zl += [(52, "0"), (54, "0"), (72, "0"), (74, "0")]
        for n, (r, v_) in enumerate(zl):
            a(f"v_mov_b64 {vr(r, 2)}, {v_}")
            if n >= 2 and wl: a(woh(*wl.pop(0)))
        for x in wl: a(woh(*x))
        busy(a, opt.get("bv", 0))
        stamp("p2")
        wo_reg = lambda j: vr(WB[j % 8], 8)
    a("s_nop 0" if (A and opt.get("tst")) else "s_barrier" if (nw >> 6 & 1) else "s_waitcnt lgkmcnt(0)\n s_barrier")
    stamp("b6")
    to = [a.ds(f"ds_read_b128 {vr(OA + 4*t)}, {vOr} offset:{t*1024}") for t in range(2)]
    if A and nw >> 6 & 1: (zero(a, 56, 64), zero(a, 28, 36 - 2*opt.get('zz', 0)))
    busy(a, opt.get("bo2", 0))
    stamp("wo")
    def wf(T, h): return add(WA[T] + 2*h)
    def wpk(T, h): return cvt(PK[T//4] + (T % 4)//2 + 2*h, WA[T] + 2*h, WA[T+1] + 2*h)
    def tag(T, h):
        r = PK[T//4] + (T % 4)//2 + 2*h
        return f"v_and_or_b32 v{r}, v{r}, -2, s97"
    def wst(hf): return f"buffer_store_dwordx4 {vr(PK[hf])}, {vPst}, {WS}, s{45+hf} offen {st}"
    post = {3: [wf(0, 0)], 4: [wf(0, 1)], 5: [wf(1, 0), wf(1, 1)], 6: [wpk(0, 0), wpk(0, 1)],
            7: [wf(2, 0), wf(2, 1)], 8: [tag(0, 0), tag(0, 1)], 9: [wf(3, 0), wf(3, 1), wpk(2, 0), wpk(2, 1), tag(2, 0), tag(2, 1)],
            11: [wf(4, 0)], 12: [wf(4, 1)], 13: [wf(5, 0), wf(5, 1)], 14: [wpk(4, 0), wpk(4, 1)], 15: [wf(6, 0), wf(6, 1), tag(4, 0), tag(4, 1)]}
    for j, xs in post.items():
        for x in xs: F(j, x)
    pad("p5", (1, 2, 1, 3, 4, 2, 0))
    pad("p6", (10, 12, 10, 13, 14, 12, 11))
    if A:
        assert not opt.get("ml")
        zs_ = [r for r in range(36 - 2*opt.get("zz", 0), 36, 2)] + [24, 26]
        for k, r in enumerate(zs_): Z(k % 3 if k < 3 else k, r, r + 2)
        Z(10, 44, 48) if len(zs_) > 2 else (Z(2, 44, 46), Z(10, 46, 48))
    F(9, wst(0), 2)
    if val:
        F(5, f"v_cmp_u_f32 vcc, v{WA[0]}, v{WA[0]+2}")
        F(8, f"s_cbranch_vccnz {P}_oredo\n{P}_ook:")
    F(0, lambda: a.wait_ds(to[1]))
    if A and aw:
        for k, x in enumerate(awr): D(k + aw - 1, "aw", x)
        W(11, "aw")
    if not A:
        for j in range(8, 16):
            p0, p1 = [(j - 8 + (j - 8)//2, j - 8 + (j - 7)//2), {8: (0, 1), 9: (2, 3), 10: (4, 5), 11: (6, 7), 12: (8, 8), 13: (9, 9), 14: (10, 10), 15: (11, 11)}[j],
                      {8: (0, 0), 9: (1, 1), 10: (2, 2), 11: (3, 4), 12: (5, 6), 13: (7, 8), 14: (9, 9), 15: (10, 10)}[j],
                      {8: (0, 0), 9: (1, 1), 10: (2, 2), 11: (3, 3), 12: (4, 5), 13: (6, 7), 14: (8, 9), 15: (9, 10)}[j]][opt.get("vs", 0)]
            D(p0, "_", woh(j, 0), 3 if p0 == 9 else 0); D(p1, ("o", j), woh(j, 1), 3 if p1 == 9 else 0); W(j - 1, ("o", j))
    a.wait_ds(to[0])
    a(f"{P}_wo:")
    for j in range(16):
        T, t = j // 2, j % 2
        a(f"{SM} {vr(WA[T])}, {vr(OA + 4*t)}, {wo_reg(j)}, {vIdx}")
        run(j)
        stamp("w%d" % j)
    ein = opt.get("ein", 0) if A else 0
    if ein == 1: a(inbox)
    for x in (wf(7, 0), wf(7, 1), wpk(6, 0), wpk(6, 1), tag(6, 0), tag(6, 1)): a(x)
    if ein == 2: a(inbox)
    a(wst(1))
    a.drop = ()
    stamp("h1")
    c1, c2 = opt.get("c1", 2) if A else opt.get("c1v", 3), opt.get("c2", 2) if A else opt.get("c2v", 2)
    RD = LS
    nsp = opt.get("nsp", 0) >> (0 if A else 1) & 1
    work = [lambda: (zero(a, 28, 36, "s[98:99]"), zero(a, 36, 38, "-1"))]
    if A:
        work += [lambda: (zero(a, 120, 124, "-1") if opt.get("pe_") else a(f"ds_read_b128 v[120:123], {vKa}"),
                          a(f"ds_read_b128 v[124:127], {vMem0} offset:{L_VM}"), zero(a, 24, 28, "-1"),
                          a(f"ds_write_b128 {vMem0}, v[24:27] offset:{L_VM}") if (opt.get("vw", 0) or opt.get("nb", 0)) else None),
                 lambda: zero(a, ACQ, ACQ + 8), lambda: zero(a, ACK, ACK + 8)]
        work += [lambda: busy(a, 2)] * 4
    else:
        for j in range(5): work.append(lambda j=j: (a(wq_half(j, 0)), a(wq_half(j, 1)), zero(a, ACQ + 4*j, ACQ + 4*j + 4)))
        work += [lambda: (zero(a, 24, 28, "-1"), zero(a, ACQ + 20, ACQ + 24)), lambda: (zero(a, ACQ + 24, ACQ + 32), zero(a, 16, 20, "-1"))]
    wm = opt.get("wm", 1)
    gath = f"buffer_load_dwordx4 v[24:27], {vLin}, {WS}, s49 offen sc1"
    if wm & 1:
        SETS = (28, 48)
        def req(b): return f"buffer_load_dwordx4 {vr(b)}, {vLin}, {WS}, s47 offen sc1\n buffer_load_dwordx4 {vr(b+4)}, {vLin}, {WS}, s47 offen offset:1024 sc1"
        def exam(b):
            a(f"{MF} {vr(RD)}, {vr(SEL)}, {vr(b)}, 0")
            a(f"v_bitop3_b32 v44, v{b}, v{b+1}, s98 bitop3:0xbd\n v_bitop3_b32 v45, v{b+2}, v{b+3}, s98 bitop3:0xbd")
            a(f"{MF} {vr(RD)}, {vr(SEL)}, {vr(b+4)}, {vr(RD)}")
            a(f"v_bitop3_b32 v46, v{b+4}, v{b+5}, s98 bitop3:0xbd\n v_bitop3_b32 v47, v{b+6}, v{b+7}, s98 bitop3:0xbd")
            a("v_or3_b32 v44, v44, v45, v46\n v_bitop3_b32 v44, v44, v47, 1 bitop3:0xa8\n v_cmp_ne_u32 vcc, 0, v44")
        def fold4():
            for k in range(2): a(f"v_add_f32_dpp v{38+k}, v{RD+k}, v{RD+k} row_ror:4 row_mask:0xf bank_mask:0x5")
            for k in range(2): a(f"v_add_f32_dpp v{38+k}, v{RD+2+k}, v{RD+2+k} row_ror:4 row_mask:0xf bank_mask:0xa")
        work[0] = lambda: zero(a, 36, 38, "-1")
        for w_ in (work[:4] if A else work): w_()
        w0, w1, w2 = (opt.get("a0", 2), opt.get("a1", 8), opt.get("a2", 0)) if A else (opt.get("v0", 8), opt.get("v1", 9), opt.get("v2", 4))
        if not ein: busy(a, w0); a(req(SETS[0]))
        two = opt.get("sa", 1) if A else opt.get("sv", 1)
        busy(a, w1)
        if two: a(req(SETS[1]))
        if A:
            next_seg(a, P)
            a("s_waitcnt lgkmcnt(0)")
        a("s_mov_b32 s96, 0")
        busy(a, w2)
        for k in range(opt.get("p7" + cl_, 0)): a("s_nop 0")
        a(f"s_waitcnt vmcnt({(1 if ein else 0) + (2 if two else 0)})\n{P}_r10:")
        exam(SETS[0])
        fold4()
        a(f"s_cbranch_vccnz {P}_r11\n{P}_r1ok:")
        stamp("r1")
    else:
        pm = opt.get("pe", 0x90) if A else opt.get("pl", 0x100)
        for k in range(9):
            if k == 8: busy(a, opt.get("de", 1) if A else opt.get("dl", 8))
            if pm >> k & 1: a(inbox)
            if k < 8: work[k]()
        if A: a("s_waitcnt lgkmcnt(0)")
        a(f"s_mov_b32 s96, 0\n s_cmp_lg_u32 s97, 0\n s_cbranch_scc1 {P}_r11")
        for ph in range(2):
            a(f"{P}_r1{ph}:")
            if free == 1: a("s_waitcnt vmcnt(0)")
            op3 = ("v_or3_b32 {0}, {1}, {2}, {3}", "v_bitop3_b32 {0}, {1}, {2}, {3} bitop3:0x80")[ph]
            for k in range(c1):
                a(op3.format("v45", "v28", "v29", "v30")); a(op3.format("v46", "v31", "v32", "v33")); a(op3.format("v45", "v45", "v34", "v35"))
                a(f"""
                v_bitop3_b32 v45, v45, v46, 1 bitop3:{('0xa8', '0x80')[ph]}
                v_cmp_ne_u32 vcc, {'v45' if free else ph}, v45
                """)
                if not nsp: a(f"{MF} {vr(RD)}, {vr(SEL)}, v[28:31], 0\n {MF} {vr(RD)}, {vr(SEL)}, v[32:35], {vr(RD)}")
                a(f"s_cbranch_vccz {P}_r1ok")
            a(f"s_mov_b64 exec, vcc\n {inbox}\n s_mov_b64 exec, -1")
            if prof: a("s_add_u32 s30, s30, 1")
            G.spin_tail(a, f"{P}_r1{ph}")
        a(f"{P}_r1ok:")
        stamp("r1")
        gath = f"buffer_load_dwordx4 v[24:27], {vLin}, {WS}, s49 offen sc1"
        if nsp: a(f"{MF} {vr(RD)}, {vr(SEL)}, v[28:31], 0\n {MF} {vr(RD)}, {vr(SEL)}, v[32:35], {vr(RD)}")
        else: a("s_nop 5")
    assert wm & 1
    for k in range(2): a(f"v_add_f32_dpp v{38+k}, v{38+k}, v{38+k} row_ror:8 row_mask:0xf bank_mask:0xf")
    a("s_mov_b64 exec, s[58:59]")
    a(cvt(38, 38, 39))
    a(f"buffer_store_dword v38, {vPub}, {WS}, s48 offen {st}")
    stamp("h2")
    a(f"buffer_store_dword v36, {vPub}, {WS}, s51 offen {st}\n s_mov_b64 exec, -1")
    if not lw: zero(a, LS, LS + 4, "-1")
    lr = 0 if lw else opt.get("lr", 1) if A else opt.get("lrv", 1)
    book = lambda: (a(f"s_mov_b32 s80, s6\n s_add_u32 s6, s6, 1\n s_add_u32 s53, s53, 0x20000\n s_mov_b32 s96, 0\n v_mov_b32 {vT}, 0"), ring_next(a))
    if A:
        a("s_waitcnt vmcnt(9)")
        items = [lambda k=k: [a(f"v_accvgpr_read_b32 v{KX + r}, a{NK + r}") for r in range(8*k, 8*k + 8)] for k in range(4)]
        items += [book] + ([] if wm & 1 else [lambda: addr_prep(a)]) + [lambda: busy(a, 2)] * opt.get("gb", 0)
        ga = opt.get("ga", 0x28)
        for k in range(len(items) + 1):
            if ga >> k & 1: a(gath)
            if k < len(items): items[k]()
        assert 0 < ga < 2 << len(items)
    else:
        busy(a, opt.get("gl", 0))
        a(gath)
        if not wm & 1: addr_prep(a)
        busy(a, opt.get("gv", 3))
        if opt.get("g2", 3) & 2: a(gath)
        book()
    a("s_waitcnt lgkmcnt(0)")
    if not A: a("s_sub_u32 s7, s6, 1\n s_mov_b32 m0, s7\n v_writelane_b32 v11, s60, m0" if opt.get("per") else "s_nop 0\n s_nop 0\n v_mov_b32_e64 v11, 0")
    if lr & 2: a(lload)
    for k in range(opt.get("p8" + cl_, 0)): a("s_nop 0")
    stamp("g1")
    if rot:
        assert prof != 1
        busy(a, opt.get("a3", 4) if A else opt.get("v3", 4))
        a(f"s_branch {P}_head\n{P}_gretry:")
        a(f"s_mov_b64 exec, vcc\n {gath}\n s_mov_b64 exec, -1")
        if prof: a("s_add_u32 s31, s31, 1")
        a("s_nop 7")
        zero(a, ACQ, ACQ + 4); zero(a, ACK, ACK + 4)
        G.spin_tail(a, f"{P}_head")
    else:
        if wm & 2:
            c2 = 1
            assert opt.get("g2", 3) == 3
            busy(a, opt.get("a3", 0) if A else opt.get("v3", 2))
        a(f"{P}_r2:")
        if wm & 2: a("s_waitcnt vmcnt(1)")
        if free == 1: a("s_waitcnt vmcnt(0)")
        for k in range(c2):
            a(f"v_max3_u32 {vT}, v24, v25, v26\n v_max_u32 {vT}, {vT}, v27\n v_cmp_eq_u32 vcc, -1, {'v0' if free else vT}")
            a(f"s_cbranch_vccz {P}_prof" if prof == 1 else f"s_cbranch_vccz {P}_loop")
        a(f"s_mov_b64 exec, vcc\n {gath}\n s_mov_b64 exec, -1")
        if lr & 1: a(lload)
        if prof: a("s_add_u32 s31, s31, 1")
        G.spin_tail(a, f"{P}_r2")
    if prof == 1:
        a(f"{P}_prof:")
        stamp("end")
        a("s_waitcnt lgkmcnt(0)")
        if opt.get("trace"):
            assert cnt[0] <= 8
            a("s_lshl_b32 s7, s3, 6\n s_add_u32 s7, s7, s6\n s_lshl_b32 s7, s7, 5\n v_lshrrev_b32 v46, 2, v0\n v_add_u32 v46, s7, v46")
            for k in range(cnt[0]): a(f"v_writelane_b32 v45, s{60+2*k}, {k}")
            a(f"s_mov_b64 exec, 0xff\n ds_write_b32 v46, v45\n s_mov_b64 exec, -1\n s_branch {P}_loop")
        a(f"s_cmp_lt_u32 s6, 5\n s_cbranch_scc1 {P}_loop")
        for k in range(cnt[0] - 1): a(f"s_sub_u32 s7, s{62+2*k}, s{60+2*k}\n s_add_u32 s{20+k}, s{20+k}, s7")
        a(f"s_branch {P}_loop")
    if wm & 1:
        a(f"{P}_r11:")
        if not two: a(f"s_cmp_lg_u32 s96, 0\n s_cbranch_scc1 {P}_r12\n {req(SETS[1])}\n{P}_r12:")
        a(f"s_mov_b64 exec, vcc\n {req(SETS[0])}\n s_mov_b64 exec, -1")
        if prof: a("s_add_u32 s30, s30, 1")
        a("s_waitcnt vmcnt(2)")
        exam(SETS[1])
        fold4()
        a(f"s_cbranch_vccz {P}_r1ok\n s_mov_b64 exec, vcc\n {req(SETS[1])}\n s_mov_b64 exec, -1\n s_waitcnt vmcnt(2)")
        if prof: a("s_add_u32 s30, s30, 1")
        G.spin_tail(a, f"{P}_r10")
    lchk = f"v_max3_u32 {vT}, v{LS}, v{LS+1}, v{LS+2}\n v_max_u32 {vT}, {vT}, v{LS+3}\n v_cmp_eq_u32 vcc, -1, {vT}\n {lwr}\n s_waitcnt lgkmcnt(0)\n s_cbranch_vccz {P}_lok"
    a(f"{P}_lretry:")
    if not lw:
        if prof: a("s_add_u32 s25, s25, 100")
        a(f"s_waitcnt vmcnt({tk['Ln']})"); a(lchk)
    a(f"{P}_lr2:")
    a(f"s_mov_b64 exec, vcc\n {lload}\n s_mov_b64 exec, -1\n s_waitcnt vmcnt(0)")
    if prof: a("s_add_u32 s29, s29, 1")
    a(lchk)
    G.spin_tail(a, f"{P}_lr2")
    if A: fb_wait(a, P, prof)
    if val:
        def missing(b, n):
            a(f"v_max3_u32 {vT}, v{b}, v{b+1}, v{b+2}")
            for r in range(b + 3, b + n): a(f"v_max_u32 {vT}, {vT}, v{r}")
            a(f"v_cmp_eq_u32 vcc, -1, {vT}")
        if A:
            q = "quad_perm:[2,3,0,1] row_mask:0xf bank_mask:0xf"
            a(f"{P}_vredo:\n s_mov_b32 s96, 0\n{P}_vr1:\n ds_read_b128 {vr(VM)}, {vMem0} offset:{L_VM}\n s_waitcnt lgkmcnt(0)")
            missing(VM, 4)
            a(f"s_cbranch_vccz {P}_vr2")
            G.spin_tail(a, f"{P}_vr1")
            a(f"""
            {P}_vr2:
            v_cmp_lt_f32 vcc, s78, v{t0+1}
            s_cbranch_vccz {P}_vr3
            v_max_f32 v{t0+1}, 0, v{t0+1}
            v_mov_b32 v{t0+2}, v{t0+1}
            v_permlane16_swap_b32 v{t0+1}, v{t0+2}
            v_max_f32 v{t0+1}, v{t0+1}, v{t0+2}
            v_mov_b32 v{t0+2}, v{t0+1}
            v_permlane32_swap_b32 v{t0+1}, v{t0+2}
            v_max_f32 v{t0+1}, v{t0+1}, v{t0+2}
            v_max_f32_dpp v{t0+1}, v{t0+1}, v{t0+1} {q}
            v_sub_f32 v{M}, v{M}, v{t0+1}
            v_sub_f32 v{M+1}, v{M+1}, v{t0+1}
            v_sub_f32 v{t0+1}, 0, v{t0+1}
            v_exp_f32 v{M+2}, v{M}
            v_exp_f32 v{M+3}, v{M+1}
            v_exp_f32 v{t0+1}, v{t0+1}
            """)
            for x in mpack: a(x)
            for k, r in enumerate(regs): a(f"v_mul_f32 v{r}, v{r}, v{t0+1}")
            for k in range(4): a(cvt(PX + k, regs[2*k], regs[2*k+1]))
            for k in range(4): a(sw(PXB + k, PX + k))
            if prof: a("s_add_u32 s26, s26, 64")
            a(f"{P}_vr3:")
            if prof: a("s_add_u32 s28, s28, 64")
            for x in pv + inv: a(x)
            a.fence()
            a(f"s_branch {P}_vok")
        a(f"{P}_oredo:")
        missing(OA, 8)
        a(f"s_cbranch_vccz {P}_ook\n s_mov_b32 s96, 0\n{P}_or1:")
        for t in range(2): a(f"ds_read_b128 {vr(OA + 4*t)}, {vOr} offset:{t*1024}")
        a("s_waitcnt lgkmcnt(0)")
        missing(OA, 8)
        a(f"s_cbranch_vccz {P}_or2")
        G.spin_tail(a, f"{P}_or1")
        a(f"{P}_or2:")
        if prof: a("s_add_u32 s27, s27, 64")
        for T in range(5): zero(a, WA[T], WA[T] + 4)
        if not A:
            for k in range(16): a(woh(k // 2, k % 2))
            a("s_waitcnt lgkmcnt(0)")
        a.fence()
        a(f"s_branch {P}_wo")

def role_chain(a, opt):
    startup(a, opt)
    loop(a, opt, "FA", "", True)
    loop(a, opt, "FV", "", False)
    loop(a, opt, "SA", "sc1", True)
    loop(a, opt, "SV", "sc1", False)
    if opt.get("nb"):
        a("L_chain_end:\n s_waitcnt lgkmcnt(0)\n s_barrier\n s_branch L_chain_fin")
    a(f"L_chain_done:")
    if opt.get("nb"): a("s_waitcnt lgkmcnt(0)\n s_barrier")
    a(f"ds_read_b128 {vr(KV)}, {vKp}\n s_add_u32 s53, s53, 0x20000\n s_waitcnt lgkmcnt(0)")
    for k in range(2): a(f"buffer_store_dwordx4 {vr(KV + 4*k)}, {vLin}, {G.WS}, s53 offen offset:{2048*k} sc1")
    if opt.get("per"):
        a(f"s_lshl_b32 s7, s4, 2\n s_add_u32 s7, s7, s3\n s_lshl_b32 s7, s7, 8\n s_add_u32 s7, s7, {G.PROF + 0x40000}\n v_lshrrev_b32 v24, 2, v0\n buffer_store_dword v11, v24, {G.WS}, s7 offen sc1")
    a(("L_chain_fin" if opt.get("nb") else "L_chain_end") + ":\n s_waitcnt vmcnt(0)")
    G.tl(a, opt, 3, "v24", True)
    if opt.get("trace"):
        a(f"s_lshl_b32 s7, s3, 11\n v_add_u32 v24, s7, v0\n ds_read_b128 v[28:31], v24\n ds_read_b128 v[32:35], v24 offset:1024\n s_waitcnt lgkmcnt(0)")
        a(f"s_lshl_b32 s7, s4, 2\n s_add_u32 s7, s7, s3\n s_lshl_b32 s7, s7, 11\n s_add_u32 s7, s7, {G.PROF + 0x40000}")
        a(f"buffer_store_dwordx4 v[28:31], v0, {G.WS}, s7 offen sc1\n buffer_store_dwordx4 v[32:35], v0, {G.WS}, s7 offen offset:1024 sc1")
    if opt.get("prof"):
        a(f"s_lshl_b32 s7, s4, 2\n s_add_u32 s7, s7, s3\n s_lshl_b32 s7, s7, 6\n s_add_u32 s7, s7, {G.PROF}\n s_mov_b64 exec, 1")
        for k in range(12):
            a(f"v_mov_b32 v24, s{20+k}\n buffer_store_dword v24, off, {G.WS}, s7 offset:{4*k} sc1")
    a("s_waitcnt vmcnt(0)\n s_endpgm")
```

```python
from asmlib2 import *
import gen as G

vLin, vPub, vT, vMem0, vIdx, vQw, vOr, vPst = ["v%d" % i for i in range(8)]
vQr, vOw, vInf, vJunk, vKa, vQq = "v8", "v9", "v20", "v21", "v22", "v23"
vW, vKp = "v8", "v9"
FB, SEL, ONES, KV = 10, 12, 16, 60
MEMA, ACQ, ACK = 24, 56, 64
LS = MEMA + 16
ACV, QBUF = 72, [88, 96, 104, 112, 120]
QS = 1024
L_MX, L_QK, L_OB, L_AW, L_W = 0, 8192, 12288, 16384, 32768
L_VM = L_OB + 2048
WSTR = 32768
SM = "v_smfmac_f32_16x16x64_bf16"
MF = "v_mfma_f32_16x16x32_bf16"
MF16 = "v_mfma_f32_16x16x16_bf16"

def zero(a, lo, hi, val="0"):
    for r in range(lo, hi, 2): a(f"v_mov_b64 {vr(r, 2)}, {val}")
def busy(a, n):
    for _ in range(n): a(f"v_mov_b32 {vT}, 0\n s_nop 2")
def wq_half(j, h): return f"ds_read_b128 {vr(QBUF[j % 5] + 4*h)}, {vW} offset:{WSTR + j*2048 + 1024*h}"
KX, VX = 72, 104
NK = 224
def kx_load(f, dst, fl="sc1"): return f"buffer_load_dwordx4 {dst}, {vLin}, {G.WS}, {('s52', 's87')[f // 4]} offen offset:{(f % 4)*1024} {fl}"
def vx_load(f, fl="sc1"): return f"buffer_load_dwordx4 {vr(VX + 4*f)}, {vLin}, {G.WS}, s57 offen offset:{f*1024} {fl}"
def addr_prep(a):
    for u in range(1, 4): a(f"v_add_u32 v{LS + 4*u}, s{80+u}, {vLin}")

def next_seg(a, P, la=0):
    a(f"""
    v_readfirstlane_b32 s84, v{FB}
    v_readfirstlane_b32 s85, v{FB+1}
    s_mov_b32 s57, s56
    s_add_u32 s90, s6, 2
    s_cmp_lt_u32 s90, 64
    s_cselect_b32 s7, {G.KSEG}, 0
    s_add_u32 s52, s52, s7
    s_min_u32 s90, s90, 63
    s_lshr_b32 s91, s90, 1
    s_bitcmp1_b32 s90, 0
    s_cselect_b32 s7, s85, s84
    s_cmp_gt_u32 s7, s91
    s_cbranch_scc0 {P}_fbwait
    {P}_fbok:
    s_add_u32 s87, s52, 0x1000
    s_add_u32 s56, s52, s95
    """)
    if la:
        a(f"s_add_u32 s92, s90, {la}\n s_lshr_b32 s93, s92, 1\n s_bitcmp1_b32 s92, 0\n s_cselect_b32 s7, s85, s84\n s_cmp_gt_u32 s7, s93\n s_cselect_b32 s79, {la*G.KSEG}, 0")

def ring_next(a):
    a(f"""
    s_mov_b32 s51, s48
    s_and_b32 s7, s6, 3
    s_lshl_b32 s48, s7, 13
    s_add_u32 s48, s48, {G.MEMB}
    s_lshr_b32 s97, s7, 1
    s_sub_u32 s98, s97, 1
    s_mov_b32 s99, s98
    s_and_b32 s7, s7, 1
    s_lshl_b32 s7, s7, 18
    s_add_u32 s45, s7, {G.PART}
    s_add_u32 s46, s45, 0x1000
    s_add_u32 s47, s44, s7
    """)

def fb_wait(a, P, prof=0):
    a(f"{P}_fbwait:")
    if prof: a("s_add_u32 s24, s24, 59")
    a("s_and_b32 s92, s90, 1\n s_lshl_b32 s92, s92, 2\n s_add_u32 s92, s92, s55\n s_add_u32 s93, s91, 1")
    G.wait_scalar(a, G.WS, "s92", "s93", "s7", vT, 1)
    a(f"s_branch {P}_fbok")

def startup(a, opt):
    WS, DBG = G.WS, G.DBG
    a.note("""chain workgroup (one head): Wq/Wk/Wv/Wo of the head stay in registers + LDS for all 64 steps.
waves 0,1 (A): share of q,k, attention of the 8 memory rows, share of Wo; waves 2,3 (V): share of q,k, all of v, share of Wo.
The 8-row products use the 2:4 sparse matrix op: even rows take the first two of every four k, odd rows the other two.""")
    a("L_chain:")
    G.srd(a, 20, G.P_MEM0, 8192); G.srd(a, 24, G.P_WQ, 0x400000); G.srd(a, 28, G.P_WK, 0x400000)
    G.srd(a, 32, G.P_WV, 0x400000); G.srd(a, 36, G.P_WO, 0x400000)
    G.make_sel(a, SEL, 20)
    a(f"""
    v_mov_b32 v22, v0
    v_lshlrev_b32 v0, 4, v0
    v_and_b32 v24, 1, v2
    v_lshrrev_b32 v25, 2, v2
    v_and_b32 v26, 3, v2
    v_lshrrev_b32 v28, 1, v2
    v_and_b32 v29, 1, v1
    v_lshrrev_b32 v23, 1, v1
    ; weight voffsets: rows 128w + 32(g/2) + 8(g%2), column bytes 256h + 16n
    v_lshlrev_b32 v27, 18, v23
    v_lshl_add_u32 v27, v29, 16, v27
    v_lshl_add_u32 v27, v2, 4, v27
    s_lshl_b32 s90, s4, 8
    s_lshl_b32 s91, s3, 20
    s_add_u32 s90, s90, s91
    v_add_u32 v30, s90, v27
    v_add_u32 v31, 8192, v30
    ; LDS scatter bases. q,k (v16): region swap(n/4), slot (w - n/4)%4 ; v (v17): region n/4, slot (w - 2 - n/8)%4
    v_lshlrev_b32 v18, 8, v1
    v_lshl_add_u32 v18, v26, 6, v18
    v_add_u32 v18, {L_W}, v18
    s_mov_b32 s90, {WSTR}
    v_lshrrev_b32 v27, 1, v25
    v_and_b32 v19, 1, v25
    v_lshl_add_u32 v19, v19, 1, v27
    v_mul_lo_u32 v16, v19, s90
    v_sub_u32 v19, s3, v25
    v_and_b32 v19, 3, v19
    v_lshl_add_u32 v16, v19, 12, v16
    v_add_u32 v16, v16, v18
    v_mul_lo_u32 v17, v25, s90
    v_sub_u32 v19, s3, v27
    v_add_u32 v19, 2, v19
    v_and_b32 v19, 3, v19
    v_lshl_add_u32 v17, v19, 12, v17
    v_add_u32 v17, v17, v18
    ; v18 = own pair of regions (2(w%2)), v19 = own q/k region
    s_and_b32 s91, s3, 1
    s_mul_i32 s91, s91, {2*WSTR}
    s_add_u32 s91, s91, {L_W}
    v_add_u32 v18, s91, {vLin}
    s_lshr_b32 s7, s3, 1
    s_mul_i32 s7, s7, {WSTR}
    v_add_u32 v19, s7, v18
    ; Wo voffset (v11): rows 16(g/2)+4(g%2), column bytes 256w + 16n, head base
    v_lshlrev_b32 v27, 14, v23
    v_lshl_add_u32 v27, v29, 12, v27
    v_lshl_add_u32 v27, v2, 4, v27
    s_lshl_b32 s90, s4, 17
    s_lshl_b32 s91, s3, 8
    s_add_u32 s90, s90, s91
    v_add_u32 v11, s90, v27
    v_mov_b32 v20, 0x4444
    v_mov_b32 v21, 0xeeee
    v_cmp_eq_u32 vcc, 0, v24
    v_cndmask_b32 {vIdx}, v21, v20, vcc
    s_lshl_b32 s86, s3, 10
    s_add_u32 s90, s86, {L_MX}
    v_add_u32 {vMem0}, s90, {vLin}
    ; q write: QK + w*QS + (n/4)*128 + 2g*16 + (n%4)*4
    v_lshlrev_b32 {vQw}, 7, v25
    v_lshl_add_u32 {vQw}, v1, 5, {vQw}
    v_lshl_add_u32 {vQw}, v26, 2, {vQw}
    s_mul_i32 s90, s3, {QS}
    s_add_u32 s90, s90, {L_QK}
    v_add_u32 {vQw}, s90, {vQw}
    ; v27 = g*128 + (2(n/4) + n%2)*16 ; lanes n%4 < 2 carry keys, the others queries
    v_lshl_add_u32 v27, v25, 1, v24
    v_lshlrev_b32 v27, 4, v27
    v_lshl_add_u32 v27, v1, 7, v27
    v_cmp_gt_u32 vcc, 2, v26
    v_add_u32 {vQr}, {L_QK}, v27
    s_add_u32 s90, s86, {L_OB}
    v_add_u32 v20, s90, v27
    v_xor_b32 v21, 64, v20
    v_add_u32 v21, 512, v21
    v_cndmask_b32 {vOw}, v20, v21, vcc
    ; o read: OB + (2g + n%2)*128 + (n/2)*16
    v_lshl_add_u32 v27, v1, 1, v24
    v_lshlrev_b32 v27, 7, v27
    v_lshl_add_u32 v27, v28, 4, v27
    v_lshlrev_b32 v20, 6, v23
    v_xor_b32 v27, v27, v20
    v_add_u32 {vOr}, {L_OB}, v27
    ; partial store: (8w + 2(n/4) + g/2)*8192 + (g%2)*2048 + 64h + 16(n%4)
    v_lshl_add_u32 v27, v25, 1, v23
    v_lshlrev_b32 v27, 13, v27
    v_lshl_add_u32 v27, v29, 11, v27
    v_lshl_add_u32 v27, v26, 4, v27
    s_lshl_b32 s90, s3, 16
    s_lshl_b32 s91, s4, 6
    s_add_u32 s90, s90, s91
    v_add_u32 {vPst}, s90, v27
    ; mem0 voffset (v25): (n/2)*1024 + 2*(128w + 32g + 16(n%2))
    v_lshlrev_b32 v25, 10, v28
    v_lshl_add_u32 v25, v1, 6, v25
    v_lshl_add_u32 v25, v24, 5, v25
    s_lshl_b32 s91, s3, 8
    v_add_u32 v25, s91, v25
    ; key image read (v24): QK + 512 + (2(w%2) + g/2)*QS + (lane%32)*16
    s_and_b32 s91, s3, 1
    s_mul_i32 s91, s91, {2*QS}
    s_add_u32 s91, s91, {L_QK + 512}
    v_mul_u32_u24 v24, {QS}, v23
    v_and_b32 v27, 31, v22
    v_lshl_add_u32 v24, v27, 4, v24
    v_add_u32 v24, s91, v24
    ; publish: (w/2)*4096 + h*128 + (w%2)*64 + g*32 + (n%4)*8 + (n/4)*4   (lanes g<2, n<8)
    s_lshr_b32 s90, s3, 1
    s_lshl_b32 s90, s90, 12
    s_lshl_b32 s91, s4, 7
    s_add_u32 s90, s90, s91
    s_and_b32 s91, s3, 1
    s_lshl_b32 s91, s91, 6
    s_add_u32 s90, s90, s91
    v_lshlrev_b32 v27, 5, v29
    v_lshl_add_u32 v27, v26, 3, v27
    v_and_b32 v20, 4, v2
    v_add_u32 v27, v27, v20
    v_add_u32 {vPub}, s90, v27
    s_mov_b32 s58, 0x00ff00ff
    s_mov_b32 s59, 0
    s_lshl_b32 s44, s4, 2
    s_add_u32 s44, s44, s3
    s_lshl_b32 s44, s44, 11
    s_add_u32 s44, s44, {G.PART}
    s_lshl_b32 s55, s4, 7
    s_lshl_b32 s54, s4, 2
    s_add_u32 s54, s54, s3
    s_lshl_b32 s54, s54, 7
    s_add_u32 s54, s54, {G.FLG_FH}
    s_add_u32 s55, s55, {G.FLG_FB}
    """)
    for u in range(1, 4):
        a(f"s_add_u32 s7, s3, {u}\n s_and_b32 s7, s7, 3\n s_lshl_b32 s7, s7, 10\n s_add_u32 s{80+u}, s7, {L_MX}")
    zero(a, 20, 24, "-1")
    for sl in range(2):
        a(f"s_add_u32 s7, s44, {sl*0x40000}")
        for o in (0, 1024): a(f"buffer_store_dwordx4 v[20:23], {vLin}, {WS}, s7 offen offset:{o} sc1")
    a("s_mov_b64 exec, s[58:59]")
    for sl in range(4):
        a(f"s_mov_b32 s7, {G.MEMB + sl*8192}\n buffer_store_dword v20, {vPub}, {WS}, s7 offen sc1")
    a("s_mov_b64 exec, -1")
    G.flag_store(a, "s54", "0", "v27")
    def job(srdn, vdst, done):
        return dict(kind='lds', srd=srdn, stride=8192, v0="v30", v1="v31", vdst=vdst,
                    row=lambda u: 64*((u//4) % 2) + 16*(u % 2) + 4*(u//8) + 2*((u//2) % 2),
                    imm=lambda grp, c: (grp//2)*16384 + (c % 2)*2048 + (grp % 2)*1024 + (c//2)*16, done=done)
    def pick(fa, fv, after=None):
        def done():
            lv, le = a.label("PV"), a.label("PE")
            a(f"s_waitcnt lgkmcnt(0)\n s_barrier\n s_cmp_ge_u32 s3, 2\n s_cbranch_scc1 {lv}")
            fa()
            a(f"s_branch {le}\n{lv}:")
            fv()
            a(f"{le}:\n s_waitcnt lgkmcnt(0)\n s_barrier")
            if after: after()
        return done
    def rd(src, dst, off=0):
        return lambda: [a(f"ds_read_b128 {dst(f)}, {src} offset:{off + f*1024}") for f in range(32)]
    nothing = lambda: None
    def wo_group(grp):
        if grp == 2: a(f"buffer_load_dwordx2 v[30:31], off, {WS}, s55 sc1")
        if grp == opt.get("wg", 2) and opt.get("wr", 1) & 1:
            a(f"v_lshlrev_b32 v64, 1, {vLin}\n v_lshlrev_b32 v65, 3, {vLin}\n s_add_u32 s7, s44, 0x40000\n s_lshl_b32 s90, s3, 13\n s_add_u32 s90, s90, {G.MEMB}")
            a(f"buffer_load_dword v66, v64, {WS}, s44 offen sc1\n buffer_load_dword v67, v64, {WS}, s7 offen sc1\n buffer_load_dword v68, v65, {WS}, s90 offen sc1")
        if grp == opt.get("wg", 2) and opt.get("tw", 0):
            a(f"v_lshrrev_b32 v69, 4, {vLin}\n v_mul_u32_u24 v70, {G.KSEG}, v69\n s_mov_b32 s7, {G.KXV + 32*16384}\n buffer_load_dword v70, v70, {WS}, s7 offen sc1")
        if grp == opt.get("wg", 2) and opt.get("wr", 1) & 2:
            a(f"""
            s_getpc_b64 s[60:61]
            L_pc0:
            s_add_u32 s60, s60, FA_loop-L_pc0
            s_addc_u32 s61, s61, 0
            s_mov_b32 s62, SA_loop-FA_loop
            s_mov_b32 s63, 0x20000
            v_lshlrev_b32 v69, 2, {vLin}
            s_lshl_b32 s7, s3, 12
            buffer_load_dword v69, v69, s[60:63], s7 offen
            """)
        if grp == opt.get("hg", 2) and opt.get("hp", 0):
            sk = a.label("HP")
            a(f"s_cmp_eq_u32 s3, 0\n s_cbranch_scc1 {sk}\n v_lshlrev_b32 v71, 3, {vLin}\n s_xor_b32 s7, s4, s3\n s_lshl_b32 s7, s7, 17")
            a(f"s_mul_i32 s90, s3, {5*8192}\n s_add_u32 s7, s7, s90\n s_sub_u32 s7, s7, {4*8192}")
            for k in range(5): a(f"buffer_load_dword v{72 + k}, v71, {G.W4}, s7 offen\n s_add_u32 s7, s7, 8192")
            a(f"{sk}:")
            a.vm_n -= 5
        lv, le = a.label("OV"), a.label("OE")
        a(f"s_cmp_ge_u32 s3, 2\n s_cbranch_scc1 {lv}")
        for c in range(6):
            for r in range(4): a(f"v_accvgpr_write_b32 a{128 + (c*2 + grp//2)*8 + (grp % 2)*4 + r}, v{32 + 4*c + r}")
        for c in (6, 7): a(f"ds_write_b128 {vMem0}, {vr(32 + 4*c)} offset:{L_AW + (((c - 6)*2 + grp//2)*2 + grp % 2)*2048}")
        a(f"s_branch {le}\n{lv}:")
        for c in range(8): a(f"ds_write_b128 v18, {vr(32 + 4*c)} offset:{(c*2 + grp//2)*2048 + (grp % 2)*1024}")
        a(f"{le}:")
    def early():
        for hf in range(2):
            for c in range(2):
                a(f"buffer_load_dwordx2 {vr((20, 26)[hf] + 2*c, 2)}, v25, {G.OUT}, 0 offen offset:{8*hf + 16*c}")
        a(f"buffer_load_dword v16, off, {DBG}, 0 offset:{G.D_GO} sc1\n buffer_load_dword v17, off, {DBG}, 0 sc1")
    kd = G.lds_to_regs(a, "v19", lambda f: ar(4*f))
    jobs = [dict(job(G.W2, "v16", kd), first=lambda: G.init_arrive(a, "v27")),
            job(G.W1, "v16", G.lds_to_regs(a, "v19", lambda f: vr(128 + 4*f))),
            job(G.W3, "v17", pick(nothing, rd("v18", lambda f: ar(128 + 4*f)), early)),
            dict(kind='lds', srd=G.W4, stride=1024, v0="v11", row=lambda u: 64*(u//8) + 32*((u//4) % 2) + 8*(u % 2) + 2*((u//2) % 2), group=wo_group)]
    if "tj" in opt:
        d0 = jobs[opt["tj"]]["done"]
        def dd():
            d0(); n0 = a.vm_n; G.tl(a, opt, 4, "v27"); a.vm_n = n0
        jobs[opt["tj"]]["done"] = dd
    if opt.get("jo"): jobs[0], jobs[1] = dict(jobs[1], first=jobs[0]["first"]), dict(jobs[0], first=None)
    G.load_stream(a, jobs, tmp=64, depth=8, out=32, fl=['', 'nt', 'sc1'][opt.get('cnt', 0)], ahead=opt.get('ah', 0))
    a("s_waitcnt vmcnt(0)")
    if "tj" not in opt: G.tl(a, opt, 4, "v32")
    a(f"""
    v_mov_b32 v33, v24
    v_readfirstlane_b32 s7, v16
    v_readfirstlane_b32 s43, v17
    v_mov_b64 {vr(LS, 2)}, v[26:27]
    v_mov_b64 {vr(LS+2, 2)}, v[28:29]
    v_mov_b64 v[24:25], v[20:21]
    v_mov_b64 v[26:27], v[22:23]
    s_cmp_ge_u32 s7, 1
    s_cbranch_scc1 L_chain_up
    """)
    G.wait_go(a, vT, 2)
    G.wait_scalar(a, DBG, 0, 0, "s43", vT, 2)
    a(f"""
    buffer_load_dwordx2 v[30:31], off, {WS}, s55 sc1
    s_waitcnt vmcnt(0)
    L_chain_up:
    v_mov_b64 {vr(FB, 2)}, v[30:31]
    s_lshl_b32 s52, s4, 14
    s_add_u32 s52, s52, {G.KXV - G.KSEG}
    s_and_b32 s7, s3, 1
    s_lshl_b32 s95, s7, 12
    s_add_u32 s95, s95, 0x2000
    s_mov_b32 s56, 0
    s_lshl_b32 s53, s4, 12
    s_add_u32 s53, s53, {G.KVM - 0x20000}
    s_lshl_b32 s7, s7, 10
    s_add_u32 s53, s53, s7
    """)
    a(f"""
    s_mov_b32 s50, {G.MEMB}
    s_mov_b32 s80, 0
    s_mov_b32 s78, {G.f32bits(float(opt.get("thr", 12)))}
    s_mov_b64 s[88:89], 0
    s_mov_b32 s48, {G.MEMB + 3*8192}
    s_waitcnt lgkmcnt(0)
    s_mov_b32 s6, -2
    """)
    a("s_cmp_ge_u32 s3, 2\n s_cbranch_scc1 L_nokx")
    next_seg(a, "C1")
    for f in range(8): a(kx_load(f, vr(KX + 4*f)))
    a("s_mov_b32 s6, -1")
    next_seg(a, "C0", opt.get("tl3", 0))
    if opt.get("sw", 0): a("s_waitcnt vmcnt(0)")
    a("L_nokx:")
    G.tl(a, opt, 2, "v56", True)
    a("s_mov_b32 s6, 0")
    ring_next(a)
    addr_prep(a)
    if opt.get("prof"):
        for k in range(20, 32): a(f"s_mov_b32 s{k}, 0")
    a("s_cmp_ge_u32 s3, 2\n s_cbranch_scc1 L_vstart")
    for r in range(4): a(f"v_mov_b32 v{ONES+r}, 0x3f803f80")
    zero(a, ACQ, ACQ + 16)
    a(f"v_mov_b32 {vKa}, v33\n v_mov_b32 v23, -1")
    zero(a, 120, 124, "-1")
    a(f"ds_write_b128 {vMem0}, v[120:123] offset:{L_VM}\n s_waitcnt lgkmcnt(0)")
    a(f"v_and_b32 {vInf}, 32, {vLin}\n v_lshlrev_b32 {vInf}, 26, {vInf}\n v_or_b32 {vInf}, 0x7f800000, {vInf}")
    a.fence()
    a("s_cmp_lt_u32 s43, 32\n s_cbranch_scc1 SA_loop\n s_branch FA_loop\nL_vstart:")
    a(f"v_mov_b32 {vW}, v18\n v_mov_b32 {vKp}, v33")
    zero(a, 16, 20, "-1")
    for j in range(5):
        for h in range(2): a(wq_half(j, h))
    zero(a, ACQ, ACQ + 32)
    a("s_waitcnt lgkmcnt(0)")
    a.fence()
    a("s_cmp_lt_u32 s43, 32\n s_cbranch_scc1 SV_loop\n s_branch FV_loop")
    fb_wait(a, "C0")
    fb_wait(a, "C1")

def loop(a, opt, P, st, A):
    WS = G.WS
    prof = opt.get("prof"); free = opt.get("free")
    cnt = [0]
    sel = opt.get("stamps")
    dflt = ("top", "end", "15", "31", "sc", "pv", "wo", "w9", "h1")
    jn = [0]
    def stamp(k):
        if opt.get("jit", 0) % 10 and opt["jit"] < 10 and str(k) in ("top", "2", "9", "14", "20", "30", "s2", "s9", "pv", "p2", "wo", "w5", "w12", "h1", "h2", "g1", "v3", "v12", "sc"):
            jn[0] += 1
            sk = a.label("JT")
            a(f"s_cselect_b32 s70, 1, 0\n s_mul_i32 s71, s6, {7 + 2*jn[0]}\n s_mul_i32 s72, s4, {13 + 6*jn[0]}\n s_add_u32 s71, s71, s72\n s_mul_i32 s72, s3, {29 + opt['jit']}\n s_xor_b32 s71, s71, s72")
            a(f"s_and_b32 s71, s71, 15\n s_cmp_lg_u32 s71, {jn[0] % 16}\n s_cbranch_scc1 {sk}\n s_sleep {(5, 17, 40)[jn[0] % 3]}\n{sk}:\n s_cmp_lg_u32 s70, 0")
        if prof == 1 and (k in ("top", "end") or str(k) in (sel or dflt)):
            i = cnt[0]; cnt[0] += 1
            assert i < 9
            a(f"s_mem{'real' if opt.get('trace') else ''}time s[{60+2*i}:{61+2*i}]")
    tk = {}
    fill = {}
    def F(i, x, cls=None):
        if cls is None: cls = 1 if (isinstance(x, str) and x.startswith("v_")) else 0
        fill.setdefault(i, []).append((cls, x if callable(x) else (lambda: a(x))))
    def D(i, key, text, cls=0): F(i, lambda: tk.__setitem__(key, a.ds(text)), cls)
    def W(i, key): F(i, lambda: a.wait_ds(tk[key]))
    def Z(i, lo, hi, val="0"):
        for r in range(lo, hi, 2): F(i, f"v_mov_b64 {vr(r, 2)}, {val}")
    def run(i):
        for cls, f in sorted(fill.pop(i, []), key=lambda e: e[0]): f()
    def mem_rd(i, tau): D(i, ("m", tau), f"ds_read_b128 {vr(MEMA + 4*tau)}, v{LS + 4*(tau % 4)} offset:{4096*(tau//4)}")
    nw = opt.get("nw", 0x60)
    val = opt.get("val", 1)
    nb = opt.get("nb", 0)
    def bar(i, bit=0):
        if nb and bit in (3, 4): return
        if not nw >> bit & 1: W(i, "wr")
        F(i, "s_barrier")
    def add(r): return f"v_add_f32 v{r}, v{r}, v{r+1}"
    def cvt(d, x, y): return f"v_cvt_pk_bf16_f32 v{d}, v{x}, v{y}"
    def smv(tau, t4):
        j = 2*tau + t4 % 2
        def emit():
            if t4 >= 2 and j >= 5: a.wait_ds(tk[("w", j)])
            a(f"{SM} {vr(ACV + 4*t4)}, {vr(MEMA + 4*tau)}, {ar(128 + j*8, 8) if t4 < 2 else vr(QBUF[j % 5], 8)}, {vIdx}")
            if pend:
                jp = pend.pop(); tk[("w", jp)] = a.ds(wq_half(jp, 1))
            if t4 >= 2 and j + 5 < 16:
                a.ds(wq_half(j + 5, 0)); pend.append(j + 5)
        return emit
    pend = []
    a(".p2align 6")
    for _ in range(opt.get("ala", 4) if A else opt.get("alv", 1)): a.lines.append("    s_nop 0")
    rot = opt.get("rot", 0)
    nfl = opt.get("na", 1) if A else opt.get("nv_", 1)
    if rot: a(f"{P}_head:\n s_waitcnt vmcnt({nfl})")
    a(f"{P}_loop:")
    if rot: a(f"v_max3_u32 {vT}, v24, v25, v26\n v_max_u32 {vT}, {vT}, v27")
    a.drop = tuple(opt.get("drop", ()))
    stamp("top")
    nk = opt.get("nk", 6)
    ke = [("k", tau, T) for tau in range(1, 4) for T in range(2)]
    seq = [(m, 0, T) for T in range(2) for m in "qk"] + [("q", tau, T) for tau in range(1, 4) for T in range(2)] + ke[:nk]
    seq += [("q", tau, T) for tau in range(4, 8) for T in range(2)] + ke[nk:] + [("k", tau, T) for tau in range(4, 8) for T in range(2)]
    qpos = {2*t + T: i for i, (m, t, T) in enumerate(seq) if m == "q"}
    qe = qpos[15]
    q3 = min(qe + opt.get("q3", 8), 31)
    lc = opt.get("lc", 10); b2 = lc + opt.get("lb", 5)
    lw = opt.get("lw", 1)
    assert b2 <= qpos[8] + 1
    lg = opt.get("lg", 2)
    lload = f"buffer_load_dwordx4 {vr(LS)}, {vLin}, {WS}, s50 offen sc1"
    F(lg, "s_mov_b64 exec, s[88:89]")
    F(lg, lambda: tk.__setitem__("L", a.vm(lload)))
    F(lg, "s_mov_b64 exec, -1")
    if opt.get("wm", 1) & 1:
        for u in range(1, 4): F(min(u - 1, opt.get("b1", 3) - 1), f"v_add_u32 v{LS + 4*u}, s{80+u}, {vLin}")
    b1 = opt.get("b1", 3)
    assert lg <= b1 or lg > 3
    bar(b1, 1)
    sp = opt.get("sp", 16)
    for u in range(1, 4): mem_rd(b1, u)
    def M_(i, key, text): F(i, lambda: tk.__setitem__(key, a.vm(text)))
    if A:
        xp = [int(p) for p in opt.get("xp", (3, 3, 3, 3, 5, 6, 7, 8, 9, 11, 12, 13, 14))]
        if opt.get("xm"):
            xp = xp[:4] + [p for p in range(b2 + opt["xm"], 31) if p not in (qe + 1, qe + 2, qe + 3)][:9]
        if lg > 3:
            x0 = lg + opt.get("xo", 1); xs_ = opt.get("xs_", 2)
            xp = [x0 + k // xs_ for k in range(4)]
            xp += [xp[-1] + 2 + k for k in range(9)]
        ta = opt.get("ta", 0)
        kf_, vf_, th = ["sc1", ""][opt.get("kp", 1)], ["sc1", ""][opt.get("vp", 1)], opt.get("th", 0)
        F(4, f"v_lshlrev_b32 {vJunk}, {3 if th else 2}, {vLin}")
        if opt.get("tl3", 0): F(4, f"v_writelane_b32 {vJunk}, s79, 63")
        np_ = opt.get("nopf", 0)
        if not np_ & 1:
            for f in range(4): M_(xp[f], "vx", vx_load(f, vf_))
        tch = f"buffer_load_dword {vJunk}, {vJunk}, {WS}, s56 offen {vf_}"
        if not np_ & 2: F(xp[4], f"s_mov_b32 exec_hi, 0\n {tch}\n s_mov_b32 exec_hi, -1" if th else tch)
        if not np_ & 4:
            for f in range(8): F(xp[5 + f], kx_load(f, ar(NK + 4*f), kf_))
        F(sp, f"buffer_load_dwordx2 {vr(FB, 2)}, off, {WS}, s55 sc1")
        kvst = [f"buffer_store_dwordx4 {vr(120 + 4*k)}, {vLin}, {WS}, s53 offen offset:{2048*k} sc1" for k in range(2)]
        flst = f"s_mov_b64 exec, 1\n buffer_store_dword {vT}, off, {WS}, s54 sc1\n s_mov_b64 exec, -1"
        ks = opt.get("ks", 1)
        if opt.get("nokvm"): kvst = ["s_nop 0", "s_nop 0"]; flst = "s_nop 0"
        sp = max(sp, b2)
        F(sp + 1, f"v_mov_b32 {vT}, s80")
        if ks and opt.get("fq", 0): F(opt["fq"], flst)
        if not ks:
            for k in range(2): F(sp + 4 + k*opt.get("k2", 1), kvst[k])
            F(sp + 2, flst)
    else:
        nv0, nv1, nv2 = opt.get("nv0", 4), opt.get("nv1", 0), opt.get("nv2", 1)
        vs = [(tau, t4) for tau in range(6) for t4 in (2, 0, 3, 1)] + [(6, 2), (6, 0), (6, 3), (7, 2), (7, 3), (7, 0), (6, 1), (7, 1)]
        for k in range(nv0): F(3, smv(*vs.pop(0)))
        for k in range(nv1): F(lc, smv(*vs.pop(0)))
        for k in range(opt.get("nvb", 0)): F(b2, smv(*vs.pop(0)))
        for k in range(nv2): F(qpos[10] - 1, smv(*vs.pop(0)))
        for k in range(opt.get("nv3", 0)): F(q3, smv(*vs.pop(0)))
    F(3, lambda: a.wait_ds(tk[("m", 1)]), 0.5); W(5, ("m", 3))
    F(5, lambda: busy(a, opt.get("xe", 0)))
    lwr = f"ds_write_b128 {vMem0}, {vr(LS)} offset:4096"
    if lw:
        F(lc, lambda: a.wait_vm(tk["L"]))
        D(lc, "wr", lwr)
        F(lc+1, f"v_max3_u32 {vT}, v{LS}, v{LS+1}, v{LS+2}")
        F(lc+2, f"v_max_u32 {vT}, {vT}, v{LS+3}")
        F(lc+3, f"v_cmp_eq_u32 vcc, -1, {'v0' if free else vT}")
    else:
        F(lc-1, f"v_max3_u32 {vT}, v{LS}, v{LS+1}, v{LS+2}", 2)
        F(lc-1, f"v_max_u32 {vT}, {vT}, v{LS+3}", 2)
        D(lc, "wr", lwr)
        F(lc, f"v_cmp_eq_u32 vcc, -1, {'v0' if free else vT}")
        if not A: F(q3 - 1, "s_waitcnt vmcnt(0)")
    assert lc + 3 < b2 or free
    assert lc + 3 < min(b2, qpos[8] - 1)
    F(min(b2, qpos[8] - 1), lambda: (tk.__setitem__("Ln", a.vm_n - tk["L"]), a(f"s_cbranch_vccnz {P}_lretry\n{P}_lok:")))
    bar(b2, 2); mem_rd(b2, 5); mem_rd(b2+1, 6); mem_rd(b2+1, 7)
    pa = opt.get("pa", 3)
    if val:
        pp, pq = opt.get("pp", 20), opt.get("pq", 2)
        assert lc + 2 < pp and pp + pq < qe + 3
        pe_ = opt.get("pe_", 0)
        if A and pe_:
            for k, off in enumerate((L_OB, L_VM)): D(opt.get("pe%d" % k, 3), "_", f"ds_write_b128 {vMem0}, v[120:123] offset:{off}")
            D(pp, "_", f"ds_read_b128 v[120:123], {vKa}")
        elif A and pa:
            F(pp - 2, "v_mov_b64 v[24:25], -1"); F(pp - 1, "v_mov_b64 v[26:27], -1")
            if pa & 1: D(pp, "_", f"ds_write_b128 {vMem0}, v[24:27] offset:{L_OB}")
            if pa & 2 and not (opt.get("vw", 0) or opt.get("nb", 0)): D(pp + pq, "_", f"ds_write_b128 {vMem0}, v[24:27] offset:{L_VM}")
        if not A:
            pv_ = opt.get("pv_", 6)
            if not pa & 1: D(pv_, "_", f"ds_write_b128 {vMem0}, v[16:19] offset:{L_OB - 2048}")
            if not pa & 2: D(pv_ + 2, "_", f"ds_write_b128 {vMem0}, v[16:19] offset:{L_VM - 2048}")
    W(qpos[10] - 1, ("m", 5)); W(qpos[12] - 1, ("m", 7))
    F(28, "s_add_u32 s49, s48, s86\n s_add_u32 s50, s49, 0x1000")
    F(29, "s_mov_b64 s[88:89], -1")
    qs = opt.get("qs", 0)
    F(qe+1, add(56)); F(qe+1, add(58)); F(qe+2, add(60)); F(qe+2, add(62))
    if qs:
        for r in (56, 58): F(qe+1, f"v_mul_f32 v{r}, s42, v{r}")
        for r in (60, 62): F(qe+2, f"v_mul_f32 v{r}, s42, v{r}")
    F(qe+2, cvt(56, 56, 60)); F(qe+2, cvt(57, 58, 62))
    D(qe+3, "wr", f"ds_write2_b32 {vQw}, v56, v57 offset0:0 offset1:4")
    bar(q3, 3)
    if A:
        for t in range(4): D(min(q3 + (t + 1)//2, 31), ("q", t), f"ds_read_b128 {vr(24 + 4*t)}, {vQr} offset:{t*QS}")
    if not A: F(0, {0: "s_nop 0\n s_nop 0", 1: "s_memrealtime s[60:61]", 2: "s_memtime s[60:61]"}[opt.get("per", 0)])
    cl_ = "a" if A else "v"
    def pad(key, slots):
        for k in range(opt.get(key + cl_, 0)): F(slots[k % len(slots)], "s_nop 0")
    pad("p1", (0, 1, 0, 1, 4, 6, 8) if A else (0, 1, 4, 6, 7, 8, 9))
    pad("p2", (19, 21, 23, 19, 21, 23, 14) if A else (18, 20, 21, 22, 23, 14, 20))
    pad("p3", (27, 30, 27, 30, 29, 27, 30))
    if opt.get("wf", 0): D(0, "wr", f"ds_write_b128 {vMem0}, {vr(MEMA)}", -2)
    else: tk["wr"] = a.ds(f"ds_write_b128 {vMem0}, {vr(MEMA)}")
    if rot:
        a(f"v_cmp_eq_u32 vcc, -1, {vT}")
        assert lg >= 2
        F(1, f"s_cbranch_vccnz {P}_gretry", -1)
    for i, (m, tau, T) in enumerate(seq):
        j = 2*tau + T
        B = vr(128 + j*8, 8) if m == "q" else ar(j*8, 8)
        a(f"{SM} {vr((ACQ if m == 'q' else ACK) + 4*T)}, {vr(MEMA + 4*tau)}, {B}, {vIdx}")
        run(i)
        stamp(i)
    assert not fill, fill.keys()
    kfold = [add(64), add(66), add(68), add(70), cvt(64, 64, 68), cvt(65, 66, 70)]
    kwr = f"ds_write2_b32 {vQw}, v64, v65 offset0:128 offset1:132"
    inbox = f"buffer_load_dwordx4 v[28:31], {vLin}, {WS}, s47 offen sc1\n buffer_load_dwordx4 v[32:35], {vLin}, {WS}, s47 offen offset:1024 sc1"
    if A:
        QB, KB, X0, X1, M, t0 = 24, 40, 56, 60, 120, 124
        PX, PM, PXB, PMB, VM, O, Lr, PKO = 48, 68, 52, 64, 24, 28, 44, 120
        WA, OA, PK = [56, 60, 28, 32, 24, 36, 40, 44], 120, [64, 68]
        xl = []
        tq = [tk[("q", t)] for t in range(4)]
        kf = opt.get("kf", 1)
        if kf == 2:
            for n, x in enumerate(kfold): F(n // 2, x)
            D(3, "wr", kwr)
        elif kf:
            for x in kfold: a(x)
            tk["wr"] = a.ds(kwr)
        else:
            a(kfold[0]); a(kfold[1])
            for x in kfold[2:]: F(0, x)
            D(1, "wr", kwr)
        b4 = opt.get("b4", 4)
        ml = opt.get("ml", 0)
        if not ml:
            bar(b4, 4)
            for t in range(4): D(min(b4 + (t + 1)//2, 7), ("k", t), f"ds_read_b128 {vr(KB + 4*t)}, {vQr} offset:{t*QS + 512}")
        if ks:
            F(opt.get("k1", 1), kvst[1]); F(opt.get("k0", 3), kvst[0])
            if not opt.get("fq", 0): F(7, flst)
        F(3 if kf == 2 else 2, "v_mov_b32 v68, 0\n v_mov_b32 v70, 0")
        F(4 if kf == 2 else 0, "v_mov_b32 v65, 0\n v_mov_b32 v67, 0")
        F(6, f"v_max3_f32 v{t0}, v{X0}, v{X0+1}, v{X0+2}")
        for p in (7, 8, 9, 10, 11, 11)[:opt.get("x1", 6)]:
            if xl: F(p, xl.pop(0))
        awr = [f"ds_read_b128 {vr(KX + 4*k)}, {vMem0} offset:{L_AW + k*2048}" for k in range(8)]
        aw = opt.get("aw", 3)
        if not aw:
            for p in (8, 9, 10, 11): F(p, awr.pop(0))
        chain = [f"v_max3_f32 v{t0+1}, v{X0+3}, v{X1}, v{X1+1}", f"v_max3_f32 v{t0}, v{t0}, v{X1+2}, v{X1+3}",
                 f"v_max_f32 v{t0+2}, v{t0}, v{t0+1}", f"v_max_f32 v{t0+3}, v{t0}, v{t0+1}"]
        pad("p4", (8, 8, 6, 9, 10, 3, 1))
        ex = f"s_cmp_eq_u32 s6, 63\n s_cbranch_scc1 L_chain_end"
        if not ml:
            F(9, chain[0]); F(9, chain[1]); F(10, chain[2]); F(10, chain[3]); chain = []
            if opt.get("xq", 0): F(opt["xq"] - 1, "s_cmp_eq_u32 s6, 63"); F(opt["xq"], "s_cbranch_scc1 L_chain_end")
            else: F(11, ex)
            for t in range(4): W(7 + t, ("k", t))
        if not opt.get("nopf", 0) & 1: F(5, lambda: a.wait_vm(tk["vx"]))
        for t in range(1, 4): F(t - 1, lambda t=t: a.wait_ds(tq[t]))
        def sc(n):
            t = n % 4
            d, Ao, Bo = ((X0, KX + 4*t, QB + 4*t), (X1, KX + 16 + 4*t, QB + 4*t), (M, KB + 4*t, QB + 4*t))[n // 4]
            return f"{MF} {vr(d)}, {vr(Ao)}, {vr(Bo)}, {vr(d) if t else '0'}"
        for n in range(8 if ml else 12):
            if n == 0: a.wait_ds(tq[0])
            a(sc(n))
            run(n)
            stamp("s%d" % n)
        stamp("sc")
        regs = [X0, X0+1, X0+2, X0+3, X1, X1+1, X1+2, X1+3]
        if ml: PX, PXB = 72, 76
        sm = chain + [f"v_permlane16_swap_b32 v{t0+2}, v{t0+3}", f"v_max_f32 v{t0}, v{t0+2}, v{t0+3}", f"v_max_f32 v{t0+1}, v{t0+2}, v{t0+3}"]
        if not ml: sm += ["v_mov_b64 v[40:41], 0", "v_mov_b64 v[42:43], 0"]
        sm += [f"v_permlane32_swap_b32 v{t0}, v{t0+1}", f"v_max3_f32 v{t0}, v{t0}, v{t0+1}, {vInf}"]
        if not qs: sm.append(f"v_mul_f32 v{t0}, s42, v{t0}")
        def arg(r): return f"v_sub_f32 v{r}, v{r}, v{t0}" if qs else f"v_fma_f32 v{r}, v{r}, s42, -v{t0}"
        sm += [arg(r) for r in regs]
        for k, r in enumerate(regs):
            sm.append(f"v_exp_f32 v{r}, v{r}")
            if k >= 2 and k % 2 == 0: sm.append(cvt(PX + k//2 - 1, regs[k-2], regs[k-1]))
        mb, m0 = opt.get("mb", 0), opt.get("m0", 12)
        for n, x in enumerate(sm):
            if ml and n == mb:
                if not nb: a.wait_ds(tk["wr"]); a("s_barrier")
                a(ex)
                tkk = [a.ds(f"ds_read_b128 {vr(KB + 4*t)}, {vQr} offset:{t*QS + 512}") for t in range(4)]
            if ml and n >= m0 and (n - m0) % 2 == 0 and (n - m0) // 2 < 4:
                t = (n - m0) // 2
                a.wait_ds(tkk[min(t + 1, 3) if t == 0 else 3]); a(sc(8 + t))
            a(x)
        stamp("pv")
        busy(a, opt.get("xs", 0))
        a(arg(M))
        a(cvt(PX + 3, regs[6], regs[7]))
        a(arg(M+1)); a(f"v_exp_f32 v{M+2}, v{M}")
        b5 = opt.get("b5", 3)
        F(b5, "s_barrier")
        D(b5, "vm", f"ds_read_b128 {vr(VM)}, {vMem0} offset:{L_VM}")
        def sw(d, x): return f"v_mov_b32_dpp v{d}, v{x} quad_perm:[2,3,0,1] row_mask:0xf bank_mask:0xf"
        mpack = [cvt(64, M+2, M+3), cvt(69, M+2, M+3), sw(66, 64), sw(71, 64)]
        F(0, sw(PXB, PX)); F(0, sw(PXB+1, PX+1)); F(1, sw(PXB+2, PX+2)); F(1, sw(PXB+3, PX+3))
        F(2, f"v_exp_f32 v{M+3}, v{M+1}"); F(2, f"v_max_f32 v{t0+1}, v{M}, v{M+1}")
        F(3, mpack[0]); F(3, mpack[1])
        F(4, mpack[2]); F(4, mpack[3])
        F(5, f"v_cmp_lt_f32 vcc, s78, v{t0+1}"); Z(5, 36, 40); F(5, f"v_cndmask_b32 v{t0+2}, 0, v23, vcc")
        if not aw:
            for p in (0, 1, 6, 7): F(p, awr.pop(0))
        pv = [f"{MF} {vr(Lr)}, {vr(ONES)}, {vr(PX)}, 0"]
        pv += [f"{MF} {vr(O + 4*(f % 2))}, {vr(VX + 4*f)}, {vr((PX, PXB)[f//2])}, {vr(O + 4*(f % 2)) if f//2 else '0'}" for f in range(4)]
        pv += [f"{MF16} {vr(Lr)}, {vr(ONES, 2)}, v[64:65], {vr(Lr)}"]
        pv += [f"{MF} {vr(O + 4*T)}, {vr(VM)}, {vr(64 + 4*T)}, {vr(O + 4*T)}" for T in range(2)]
        assert val
        F(5, lambda: a.wait_ds(tk["vm"]), 2)
        F(6, f"v_max3_u32 {vT}, v{VM}, v{VM+1}, v{VM+2}"); F(6, f"v_max3_u32 {vT}, {vT}, v{VM+3}, v{t0+2}")
        F(7, f"v_cmp_eq_u32 vcc, -1, {vT}")
        inv = [f"v_add_f32_dpp v{t0}, v{Lr}, v{Lr} quad_perm:[2,3,0,1] row_mask:0xf bank_mask:0xf", f"v_rcp_f32 v{t0}, v{t0}"]
        for x in inv: F(7, x)
        F(7, f"s_cbranch_vccnz {P}_vredo\n{P}_vok:", 2)
        for n, x in enumerate(pv):
            a(x); run(n); stamp("n%d" % n)
        for r in range(4): a(f"v_mul_f32 v{O+r}, v{O+r}, v{t0}")
        stamp("p1")
        for r in (4, 6): a(f"v_pk_mul_f32 {vr(O + r, 2)}, {vr(O + r, 2)}, {vr(t0, 2)} op_sel_hi:[1,0]")
        for i in range(4): a(cvt(PKO + i, O + i, O + 4 + i))
        if opt.get("tst"): a("s_barrier\n s_nop 15\n s_nop 15\n s_nop 15")
        a(f"ds_write_b128 {vOw}, {vr(PKO)}")
        if not nw >> 6 & 1: (zero(a, 56, 64), zero(a, 28, 36 - 2*opt.get('zz', 0)))
        stamp("p2")
        wo_reg = lambda j: ar(128 + j*8, 8) if j < 12 else vr(KX + (j - 12)*8, 8)
    else:
        WB = [88, 96, 104, 112, 120, 16, 56, 64]
        WA, OA, PK = [28, 32, 36, 40, 44, 48, 52, 72], 76, [84, 24]
        def woh(j, h): return f"ds_read_b128 {vr(WB[j % 8] + 4*h)}, {vW} offset:{j*2048 + 1024*h}"
        nv = len(vs); sh = 32 - nv
        if opt.get("fs", 0):
            for n, x in enumerate(kfold): F(n, x)
            D(6, "wr", kwr)
        else:
            F(0, kfold[0]); F(0, kfold[1])
            for x in kfold[2:]: F(1, x)
            D(2, "wr", kwr)
        v4 = opt.get("v4", 8)
        bar(v4, 4)
        wl = [(k // 2, k % 2) for k in range(16)]
        if opt.get("pw", 1):
            pos = {2*t + t4 % 2: n for n, (t, t4) in enumerate(vs) if t4 >= 2}
            free_at = {5: 0, 6: 3, 1: pos[11], 2: pos[12], 3: pos[13], 4: pos[14]}
            slot = pos[10] + 2
            for jj in (5, 6, 1, 2, 3, 4):
                for hh in range(2):
                    slot = max(slot, free_at[jj])
                    if slot < nv - 1:
                        D(slot, "_", woh(jj, hh)); wl.remove((jj, hh)); slot += 1
        pad("p4", (4, 6, 10, 12, 14, 16, 18))
        zl = [(r, "0") for r in range(28, 52, 2)]
        for i in range(3, nv - 2):
            if opt.get("zv", 0) and zl and i + sh > (zl[0][0] - MEMA) // 4 * 4 + 3:
                r, val = zl.pop(0); F(i, f"v_mov_b64 {vr(r, 2)}, {val}")
        F(nv-3, add(80)); F(nv-3, add(82)); F(nv-2, add(84)); F(nv-2, add(86))
        for x in (cvt(KV+6, 80, 82), cvt(KV+7, 84, 86), add(72), add(74), cvt(KV+4, 72, 74)): F(nv-1, x)
        for n, (tau, t4) in enumerate(vs):
            if n + 1 < nv and vs[n+1][1] >= 2 and 2*vs[n+1][0] + vs[n+1][1] % 2 >= 5: W(n, ("w", 2*vs[n+1][0] + vs[n+1][1] % 2))
            smv(tau, t4)(); run(n); stamp("v%d" % n)
        assert not fill and not pend
        stamp("sc")
        busy(a, opt.get("xw", 0))
        for x in (add(76), add(78), cvt(KV+5, 76, 78)): a(x)
        if opt.get("tst"): a(f"s_cmp_eq_u32 s6, 63\n s_cbranch_scc1 L_chain_done\n s_barrier\n s_nop 15\n s_nop 15\n s_nop 15")
        tk["wr"] = a.ds(f"ds_write_b128 {vMem0}, {vr(KV+4)} offset:{L_VM - 2048}")
        a(f"s_cmp_eq_u32 s6, 63\n s_cbranch_scc1 L_chain_done")
        if nw >> 5 & 1 and not opt.get("tst"): a("s_barrier")
        if not nw >> 5 & 1:
            a.wait_ds(tk["wr"]); a("s_barrier")
        stamp("pv")
        zl += [(52, "0"), (54, "0"), (72, "0"), (74, "0")]
        for n, (r, v_) in enumerate(zl):
            a(f"v_mov_b64 {vr(r, 2)}, {v_}")
            if n >= 2 and wl: a(woh(*wl.pop(0)))
        for x in wl: a(woh(*x))
        busy(a, opt.get("bv", 0))
        stamp("p2")
        wo_reg = lambda j: vr(WB[j % 8], 8)
    a("s_nop 0" if (A and opt.get("tst")) else "s_barrier" if (nw >> 6 & 1) else "s_waitcnt lgkmcnt(0)\n s_barrier")
    stamp("b6")
    to = [a.ds(f"ds_read_b128 {vr(OA + 4*t)}, {vOr} offset:{t*1024}") for t in range(2)]
    if A and nw >> 6 & 1: (zero(a, 56, 64), zero(a, 28, 36 - 2*opt.get('zz', 0)))
    busy(a, opt.get("bo2", 0))
    stamp("wo")
    def wf(T, h): return add(WA[T] + 2*h)
    def wpk(T, h): return cvt(PK[T//4] + (T % 4)//2 + 2*h, WA[T] + 2*h, WA[T+1] + 2*h)
    def tag(T, h):
        r = PK[T//4] + (T % 4)//2 + 2*h
        return f"v_and_or_b32 v{r}, v{r}, -2, s97"
    def wst(hf): return f"buffer_store_dwordx4 {vr(PK[hf])}, {vPst}, {WS}, s{45+hf} offen {st}"
    post = {3: [wf(0, 0)], 4: [wf(0, 1)], 5: [wf(1, 0), wf(1, 1)], 6: [wpk(0, 0), wpk(0, 1)],
            7: [wf(2, 0), wf(2, 1)], 8: [tag(0, 0), tag(0, 1)], 9: [wf(3, 0), wf(3, 1), wpk(2, 0), wpk(2, 1), tag(2, 0), tag(2, 1)],
            11: [wf(4, 0)], 12: [wf(4, 1)], 13: [wf(5, 0), wf(5, 1)], 14: [wpk(4, 0), wpk(4, 1)], 15: [wf(6, 0), wf(6, 1), tag(4, 0), tag(4, 1)]}
    for j, xs in post.items():
        for x in xs: F(j, x)
    pad("p5", (1, 2, 1, 3, 4, 2, 0))
    pad("p6", (10, 12, 10, 13, 14, 12, 11))
    if A:
        assert not opt.get("ml")
        zs_ = [r for r in range(36 - 2*opt.get("zz", 0), 36, 2)] + [24, 26]
        for k, r in enumerate(zs_): Z(k % 3 if k < 3 else k, r, r + 2)
        Z(10, 44, 48) if len(zs_) > 2 else (Z(2, 44, 46), Z(10, 46, 48))
    F(9, wst(0), 2)
    if val:
        F(5, f"v_cmp_u_f32 vcc, v{WA[0]}, v{WA[0]+2}")
        F(8, f"s_cbranch_vccnz {P}_oredo\n{P}_ook:")
    F(0, lambda: a.wait_ds(to[1]))
    if A and aw:
        for k, x in enumerate(awr): D(k + aw - 1, "aw", x)
        W(11, "aw")
    if not A:
        for j in range(8, 16):
            p0, p1 = [(j - 8 + (j - 8)//2, j - 8 + (j - 7)//2), {8: (0, 1), 9: (2, 3), 10: (4, 5), 11: (6, 7), 12: (8, 8), 13: (9, 9), 14: (10, 10), 15: (11, 11)}[j],
                      {8: (0, 0), 9: (1, 1), 10: (2, 2), 11: (3, 4), 12: (5, 6), 13: (7, 8), 14: (9, 9), 15: (10, 10)}[j],
                      {8: (0, 0), 9: (1, 1), 10: (2, 2), 11: (3, 3), 12: (4, 5), 13: (6, 7), 14: (8, 9), 15: (9, 10)}[j]][opt.get("vs", 0)]
            D(p0, "_", woh(j, 0), 3 if p0 == 9 else 0); D(p1, ("o", j), woh(j, 1), 3 if p1 == 9 else 0); W(j - 1, ("o", j))
    a.wait_ds(to[0])
    a(f"{P}_wo:")
    for j in range(16):
        T, t = j // 2, j % 2
        a(f"{SM} {vr(WA[T])}, {vr(OA + 4*t)}, {wo_reg(j)}, {vIdx}")
        run(j)
        stamp("w%d" % j)
    ein = opt.get("ein", 0) if A else 0
    if ein == 1: a(inbox)
    for x in (wf(7, 0), wf(7, 1), wpk(6, 0), wpk(6, 1), tag(6, 0), tag(6, 1)): a(x)
    if ein == 2: a(inbox)
    a(wst(1))
    a.drop = ()
    stamp("h1")
    c1, c2 = opt.get("c1", 2) if A else opt.get("c1v", 3), opt.get("c2", 2) if A else opt.get("c2v", 2)
    RD = LS
    nsp = opt.get("nsp", 0) >> (0 if A else 1) & 1
    work = [lambda: (zero(a, 28, 36, "s[98:99]"), zero(a, 36, 38, "-1"))]
    if A:
        work += [lambda: (zero(a, 120, 124, "-1") if opt.get("pe_") else a(f"ds_read_b128 v[120:123], {vKa}"),
                          a(f"ds_read_b128 v[124:127], {vMem0} offset:{L_VM}"), zero(a, 24, 28, "-1"),
                          a(f"ds_write_b128 {vMem0}, v[24:27] offset:{L_VM}") if (opt.get("vw", 0) or opt.get("nb", 0)) else None),
                 lambda: zero(a, ACQ, ACQ + 8), lambda: zero(a, ACK, ACK + 8)]
        work += [lambda: busy(a, 2)] * 4
    else:
        for j in range(5): work.append(lambda j=j: (a(wq_half(j, 0)), a(wq_half(j, 1)), zero(a, ACQ + 4*j, ACQ + 4*j + 4)))
        work += [lambda: (zero(a, 24, 28, "-1"), zero(a, ACQ + 20, ACQ + 24)), lambda: (zero(a, ACQ + 24, ACQ + 32), zero(a, 16, 20, "-1"))]
    wm = opt.get("wm", 1)
    gath = f"buffer_load_dwordx4 v[24:27], {vLin}, {WS}, s49 offen sc1"
    if wm & 1:
        SETS = (28, 48)
        def req(b): return f"buffer_load_dwordx4 {vr(b)}, {vLin}, {WS}, s47 offen sc1\n buffer_load_dwordx4 {vr(b+4)}, {vLin}, {WS}, s47 offen offset:1024 sc1"
        def exam(b):
            a(f"{MF} {vr(RD)}, {vr(SEL)}, {vr(b)}, 0")
            a(f"v_bitop3_b32 v44, v{b}, v{b+1}, s98 bitop3:0xbd\n v_bitop3_b32 v45, v{b+2}, v{b+3}, s98 bitop3:0xbd")
            a(f"{MF} {vr(RD)}, {vr(SEL)}, {vr(b+4)}, {vr(RD)}")
            a(f"v_bitop3_b32 v46, v{b+4}, v{b+5}, s98 bitop3:0xbd\n v_bitop3_b32 v47, v{b+6}, v{b+7}, s98 bitop3:0xbd")
            a("v_or3_b32 v44, v44, v45, v46\n v_bitop3_b32 v44, v44, v47, 1 bitop3:0xa8\n v_cmp_ne_u32 vcc, 0, v44")
        def fold4():
            for k in range(2): a(f"v_add_f32_dpp v{38+k}, v{RD+k}, v{RD+k} row_ror:4 row_mask:0xf bank_mask:0x5")
            for k in range(2): a(f"v_add_f32_dpp v{38+k}, v{RD+2+k}, v{RD+2+k} row_ror:4 row_mask:0xf bank_mask:0xa")
        work[0] = lambda: zero(a, 36, 38, "-1")
        for w_ in (work[:4] if A else work): w_()
        w0, w1, w2 = (opt.get("a0", 2), opt.get("a1", 8), opt.get("a2", 0)) if A else (opt.get("v0", 8), opt.get("v1", 9), opt.get("v2", 4))
        if not ein: busy(a, w0); a(req(SETS[0]))
        two = opt.get("sa", 1) if A else opt.get("sv", 1)
        busy(a, w1)
        if two: a(req(SETS[1]))
        if A:
            next_seg(a, P, opt.get("tl3", 0))
            a("s_waitcnt lgkmcnt(0)")
        a("s_mov_b32 s96, 0")
        busy(a, w2)
        for k in range(opt.get("p7" + cl_, 0)): a("s_nop 0")
        a(f"s_waitcnt vmcnt({(1 if ein else 0) + (2 if two else 0)})\n{P}_r10:")
        exam(SETS[0])
        fold4()
        a(f"s_cbranch_vccnz {P}_r11\n{P}_r1ok:")
        stamp("r1")
    else:
        pm = opt.get("pe", 0x90) if A else opt.get("pl", 0x100)
        for k in range(9):
            if k == 8: busy(a, opt.get("de", 1) if A else opt.get("dl", 8))
            if pm >> k & 1: a(inbox)
            if k < 8: work[k]()
        if A: a("s_waitcnt lgkmcnt(0)")
        a(f"s_mov_b32 s96, 0\n s_cmp_lg_u32 s97, 0\n s_cbranch_scc1 {P}_r11")
        for ph in range(2):
            a(f"{P}_r1{ph}:")
            if free == 1: a("s_waitcnt vmcnt(0)")
            op3 = ("v_or3_b32 {0}, {1}, {2}, {3}", "v_bitop3_b32 {0}, {1}, {2}, {3} bitop3:0x80")[ph]
            for k in range(c1):
                a(op3.format("v45", "v28", "v29", "v30")); a(op3.format("v46", "v31", "v32", "v33")); a(op3.format("v45", "v45", "v34", "v35"))
                a(f"""
                v_bitop3_b32 v45, v45, v46, 1 bitop3:{('0xa8', '0x80')[ph]}
                v_cmp_ne_u32 vcc, {'v45' if free else ph}, v45
                """)
                if not nsp: a(f"{MF} {vr(RD)}, {vr(SEL)}, v[28:31], 0\n {MF} {vr(RD)}, {vr(SEL)}, v[32:35], {vr(RD)}")
                a(f"s_cbranch_vccz {P}_r1ok")
            a(f"s_mov_b64 exec, vcc\n {inbox}\n s_mov_b64 exec, -1")
            if prof: a("s_add_u32 s30, s30, 1")
            G.spin_tail(a, f"{P}_r1{ph}")
        a(f"{P}_r1ok:")
        stamp("r1")
        gath = f"buffer_load_dwordx4 v[24:27], {vLin}, {WS}, s49 offen sc1"
        if nsp: a(f"{MF} {vr(RD)}, {vr(SEL)}, v[28:31], 0\n {MF} {vr(RD)}, {vr(SEL)}, v[32:35], {vr(RD)}")
        else: a("s_nop 5")
    assert wm & 1
    for k in range(2): a(f"v_add_f32_dpp v{38+k}, v{38+k}, v{38+k} row_ror:8 row_mask:0xf bank_mask:0xf")
    a("s_mov_b64 exec, s[58:59]")
    a(cvt(38, 38, 39))
    a(f"buffer_store_dword v38, {vPub}, {WS}, s48 offen {st}")
    stamp("h2")
    a(f"buffer_store_dword v36, {vPub}, {WS}, s51 offen {st}\n s_mov_b64 exec, -1")
    if not lw: zero(a, LS, LS + 4, "-1")
    lr = 0 if lw else opt.get("lr", 1) if A else opt.get("lrv", 1)
    book = lambda: (a(f"s_mov_b32 s80, s6\n s_add_u32 s6, s6, 1\n s_add_u32 s53, s53, 0x20000\n s_mov_b32 s96, 0\n v_mov_b32 {vT}, 0"), ring_next(a))
    if A:
        a("s_waitcnt vmcnt(9)")
        items = [lambda k=k: [a(f"v_accvgpr_read_b32 v{KX + r}, a{NK + r}") for r in range(8*k, 8*k + 8)] for k in range(4)]
        items += [book] + ([] if wm & 1 else [lambda: addr_prep(a)]) + [lambda: busy(a, 2)] * opt.get("gb", 0)
        ga = opt.get("ga", 0x28)
        for k in range(len(items) + 1):
            if ga >> k & 1: a(gath)
            if k < len(items): items[k]()
        assert 0 < ga < 2 << len(items)
    else:
        busy(a, opt.get("gl", 0))
        a(gath)
        if not wm & 1: addr_prep(a)
        busy(a, opt.get("gv", 3))
        if opt.get("g2", 3) & 2: a(gath)
        book()
    a("s_waitcnt lgkmcnt(0)")
    if not A: a("s_sub_u32 s7, s6, 1\n s_mov_b32 m0, s7\n v_writelane_b32 v11, s60, m0" if opt.get("per") else "s_nop 0\n s_nop 0\n v_mov_b32_e64 v11, 0")
    if lr & 2: a(lload)
    for k in range(opt.get("p8" + cl_, 0)): a("s_nop 0")
    stamp("g1")
    if rot:
        assert prof != 1
        busy(a, opt.get("a3", 4) if A else opt.get("v3", 4))
        a(f"s_branch {P}_head\n{P}_gretry:")
        a(f"s_mov_b64 exec, vcc\n {gath}\n s_mov_b64 exec, -1")
        if prof: a("s_add_u32 s31, s31, 1")
        a("s_nop 7")
        zero(a, ACQ, ACQ + 4); zero(a, ACK, ACK + 4)
        G.spin_tail(a, f"{P}_head")
    else:
        if wm & 2:
            c2 = 1
            assert opt.get("g2", 3) == 3
            busy(a, opt.get("a3", 0) if A else opt.get("v3", 2))
        a(f"{P}_r2:")
        if wm & 2: a("s_waitcnt vmcnt(1)")
        if free == 1: a("s_waitcnt vmcnt(0)")
        for k in range(c2):
            a(f"v_max3_u32 {vT}, v24, v25, v26\n v_max_u32 {vT}, {vT}, v27\n v_cmp_eq_u32 vcc, -1, {'v0' if free else vT}")
            a(f"s_cbranch_vccz {P}_prof" if prof == 1 else f"s_cbranch_vccz {P}_loop")
        a(f"s_mov_b64 exec, vcc\n {gath}\n s_mov_b64 exec, -1")
        if lr & 1: a(lload)
        if prof: a("s_add_u32 s31, s31, 1")
        G.spin_tail(a, f"{P}_r2")
    if prof == 1:
        a(f"{P}_prof:")
        stamp("end")
        a("s_waitcnt lgkmcnt(0)")
        if opt.get("trace"):
            assert cnt[0] <= 8
            a("s_lshl_b32 s7, s3, 6\n s_add_u32 s7, s7, s6\n s_lshl_b32 s7, s7, 5\n v_lshrrev_b32 v46, 2, v0\n v_add_u32 v46, s7, v46")
            for k in range(cnt[0]): a(f"v_writelane_b32 v45, s{60+2*k}, {k}")
            a(f"s_mov_b64 exec, 0xff\n ds_write_b32 v46, v45\n s_mov_b64 exec, -1\n s_branch {P}_loop")
        a(f"s_cmp_lt_u32 s6, 5\n s_cbranch_scc1 {P}_loop")
        for k in range(cnt[0] - 1): a(f"s_sub_u32 s7, s{62+2*k}, s{60+2*k}\n s_add_u32 s{20+k}, s{20+k}, s7")
        a(f"s_branch {P}_loop")
    if wm & 1:
        a(f"{P}_r11:")
        if not two: a(f"s_cmp_lg_u32 s96, 0\n s_cbranch_scc1 {P}_r12\n {req(SETS[1])}\n{P}_r12:")
        a(f"s_mov_b64 exec, vcc\n {req(SETS[0])}\n s_mov_b64 exec, -1")
        if prof: a("s_add_u32 s30, s30, 1")
        a("s_waitcnt vmcnt(2)")
        exam(SETS[1])
        fold4()
        a(f"s_cbranch_vccz {P}_r1ok\n s_mov_b64 exec, vcc\n {req(SETS[1])}\n s_mov_b64 exec, -1\n s_waitcnt vmcnt(2)")
        if prof: a("s_add_u32 s30, s30, 1")
        G.spin_tail(a, f"{P}_r10")
    lchk = f"v_max3_u32 {vT}, v{LS}, v{LS+1}, v{LS+2}\n v_max_u32 {vT}, {vT}, v{LS+3}\n v_cmp_eq_u32 vcc, -1, {vT}\n {lwr}\n s_waitcnt lgkmcnt(0)\n s_cbranch_vccz {P}_lok"
    a(f"{P}_lretry:")
    if not lw:
        if prof: a("s_add_u32 s25, s25, 100")
        a(f"s_waitcnt vmcnt({tk['Ln']})"); a(lchk)
    a(f"{P}_lr2:")
    a(f"s_mov_b64 exec, vcc\n {lload}\n s_mov_b64 exec, -1\n s_waitcnt vmcnt(0)")
    if prof: a("s_add_u32 s29, s29, 1")
    a(lchk)
    G.spin_tail(a, f"{P}_lr2")
    if A: fb_wait(a, P, prof)
    if val:
        def missing(b, n):
            a(f"v_max3_u32 {vT}, v{b}, v{b+1}, v{b+2}")
            for r in range(b + 3, b + n): a(f"v_max_u32 {vT}, {vT}, v{r}")
            a(f"v_cmp_eq_u32 vcc, -1, {vT}")
        if A:
            q = "quad_perm:[2,3,0,1] row_mask:0xf bank_mask:0xf"
            a(f"{P}_vredo:\n s_mov_b32 s96, 0\n{P}_vr1:\n ds_read_b128 {vr(VM)}, {vMem0} offset:{L_VM}\n s_waitcnt lgkmcnt(0)")
            missing(VM, 4)
            a(f"s_cbranch_vccz {P}_vr2")
            G.spin_tail(a, f"{P}_vr1")
            a(f"""
            {P}_vr2:
            v_cmp_lt_f32 vcc, s78, v{t0+1}
            s_cbranch_vccz {P}_vr3
            v_max_f32 v{t0+1}, 0, v{t0+1}
            v_mov_b32 v{t0+2}, v{t0+1}
            v_permlane16_swap_b32 v{t0+1}, v{t0+2}
            v_max_f32 v{t0+1}, v{t0+1}, v{t0+2}
            v_mov_b32 v{t0+2}, v{t0+1}
            v_permlane32_swap_b32 v{t0+1}, v{t0+2}
            v_max_f32 v{t0+1}, v{t0+1}, v{t0+2}
            v_max_f32_dpp v{t0+1}, v{t0+1}, v{t0+1} {q}
            v_sub_f32 v{M}, v{M}, v{t0+1}
            v_sub_f32 v{M+1}, v{M+1}, v{t0+1}
            v_sub_f32 v{t0+1}, 0, v{t0+1}
            v_exp_f32 v{M+2}, v{M}
            v_exp_f32 v{M+3}, v{M+1}
            v_exp_f32 v{t0+1}, v{t0+1}
            """)
            for x in mpack: a(x)
            for k, r in enumerate(regs): a(f"v_mul_f32 v{r}, v{r}, v{t0+1}")
            for k in range(4): a(cvt(PX + k, regs[2*k], regs[2*k+1]))
            for k in range(4): a(sw(PXB + k, PX + k))
            if prof: a("s_add_u32 s26, s26, 64")
            a(f"{P}_vr3:")
            if prof: a("s_add_u32 s28, s28, 64")
            for x in pv + inv: a(x)
            a.fence()
            a(f"s_branch {P}_vok")
        a(f"{P}_oredo:")
        missing(OA, 8)
        a(f"s_cbranch_vccz {P}_ook\n s_mov_b32 s96, 0\n{P}_or1:")
        for t in range(2): a(f"ds_read_b128 {vr(OA + 4*t)}, {vOr} offset:{t*1024}")
        a("s_waitcnt lgkmcnt(0)")
        missing(OA, 8)
        a(f"s_cbranch_vccz {P}_or2")
        G.spin_tail(a, f"{P}_or1")
        a(f"{P}_or2:")
        if prof: a("s_add_u32 s27, s27, 64")
        for T in range(5): zero(a, WA[T], WA[T] + 4)
        if not A:
            for k in range(16): a(woh(k // 2, k % 2))
            a("s_waitcnt lgkmcnt(0)")
        a.fence()
        a(f"s_branch {P}_wo")

def role_chain(a, opt):
    startup(a, opt)
    loop(a, opt, "FA", "", True)
    loop(a, opt, "FV", "", False)
    loop(a, opt, "SA", "sc1", True)
    loop(a, opt, "SV", "sc1", False)
    if opt.get("nb"):
        a("L_chain_end:\n s_waitcnt lgkmcnt(0)\n s_barrier\n s_branch L_chain_fin")
    a(f"L_chain_done:")
    if opt.get("nb"): a("s_waitcnt lgkmcnt(0)\n s_barrier")
    a(f"ds_read_b128 {vr(KV)}, {vKp}\n s_add_u32 s53, s53, 0x20000\n s_waitcnt lgkmcnt(0)")
    for k in range(2): a(f"buffer_store_dwordx4 {vr(KV + 4*k)}, {vLin}, {G.WS}, s53 offen offset:{2048*k} sc1")
    if opt.get("per"):
        a(f"s_lshl_b32 s7, s4, 2\n s_add_u32 s7, s7, s3\n s_lshl_b32 s7, s7, 8\n s_add_u32 s7, s7, {G.PROF + 0x40000}\n v_lshrrev_b32 v24, 2, v0\n buffer_store_dword v11, v24, {G.WS}, s7 offen sc1")
    a(("L_chain_fin" if opt.get("nb") else "L_chain_end") + ":\n s_waitcnt vmcnt(0)")
    G.tl(a, opt, 3, "v24", True)
    if opt.get("trace"):
        a(f"s_lshl_b32 s7, s3, 11\n v_add_u32 v24, s7, v0\n ds_read_b128 v[28:31], v24\n ds_read_b128 v[32:35], v24 offset:1024\n s_waitcnt lgkmcnt(0)")
        a(f"s_lshl_b32 s7, s4, 2\n s_add_u32 s7, s7, s3\n s_lshl_b32 s7, s7, 11\n s_add_u32 s7, s7, {G.PROF + 0x40000}")
        a(f"buffer_store_dwordx4 v[28:31], v0, {G.WS}, s7 offen sc1\n buffer_store_dwordx4 v[32:35], v0, {G.WS}, s7 offen offset:1024 sc1")
    if opt.get("prof"):
        a(f"s_lshl_b32 s7, s4, 2\n s_add_u32 s7, s7, s3\n s_lshl_b32 s7, s7, 6\n s_add_u32 s7, s7, {G.PROF}\n s_mov_b64 exec, 1")
        for k in range(12):
            a(f"v_mov_b32 v24, s{20+k}\n buffer_store_dword v24, off, {G.WS}, s7 offset:{4*k} sc1")
    a("s_waitcnt vmcnt(0)\n s_endpgm")
```

```python
import sys, math, struct
from asmlib2 import *

NAME = "gated_mix__memory_aug_recurrent_mem_tr__glu_gated_reglu__prompt"

FLG_FB  = 0x0000
FLG_FH  = 0x4000
FLG_FC  = 0x60000
FLG_FF  = 0x68000
MEMB = 0x10000
SCR  = 0x50000
PART = 0x100000
KVM  = 0x300000
KXV  = 0x1000000
KSEG = 33 * 16384
CP   = 0x3200000
FP   = 0x7000000
PROF = 0x9000000
QXG  = 0xA000000
D_CH, D_INIT, D_WK, D_ERR, D_GO = 0, 64, 128, 192, 224
WSTR = 32784
L_KX, L_MX, L_QK, L_OB, L_KV, L_ROLE = 131200, 139392, 147584, 152704, 156800, 161792
XROW = 1040; XBUF = 32 * XROW
L_OX = 2 * XBUF; L_KM = L_OX + 8192; L_VM = L_KM + 2048
LDS_BYTES = 163840
SPIN = 200_000_000

X, WS, DBG, OUT, W1, W2, W3, W4 = ["s[%d:%d]" % (b, b + 3) for b in (8, 12, 16, 20, 24, 28, 32, 36)]
P_X, P_MEM0, P_WQ, P_WK, P_WV, P_WO, P_WG, P_WU, P_WD, P_GW, P_OUT, P_DBG, P_WS = 60, 62, 64, 66, 68, 70, 76, 78, 80, 82, 84, 86, 88

ROLES = (("B", 32, 96), ("C", 96, 160), ("F", 160, 188), ("R", 188, 252))
def f32bits(x): return struct.unpack("<I", struct.pack("<f", x))[0]
CSC = f32bits(128 ** -0.5 * math.log2(math.e))

def srd(a, base, ptr, size):
    a(f"s_mov_b32 s{base}, s{ptr}\n s_mov_b32 s{base+1}, s{ptr+1}\n s_mov_b32 s{base+2}, {size}\n s_mov_b32 s{base+3}, 0x20000")

def spin_tail(a, loop, sleep=0):
    if sleep: a(f"s_sleep {sleep}")
    limit = SPIN // (150 + 64 * sleep + (200 if sleep else 0))
    a(f"s_add_u32 s96, s96, 1\n s_cmp_lt_u32 s96, {limit}\n s_cbranch_scc1 {loop}\n s_branch L_bail")

def wait_scalar(a, srdn, soff, need, dst, vt, sleep=1):
    lp = a.label("WS"); ok = a.label("WSOK")
    a(f"s_mov_b32 s96, 0\n{lp}:")
    a(f"buffer_load_dword {vt}, off, {srdn}, {soff} sc1\n s_waitcnt vmcnt(0)\n v_readfirstlane_b32 {dst}, {vt}")
    a(f"s_nop 3\n s_cmp_ge_u32 {dst}, {need}\n s_cbranch_scc1 {ok}")
    spin_tail(a, lp, sleep)
    a(f"{ok}:")

def wait_go(a, vt, sleep):
    a(f"s_mov_b32 s90, {D_GO}")
    wait_scalar(a, DBG, "s90", 1, "s7", vt, sleep)

def wait_lanes(a, vaddr, soff, nl, need, vt, sleep=1):
    lp = a.label("WL"); ok = a.label("WLOK")
    a(f"s_mov_b32 s96, 0\n s_mov_b32 exec_lo, {hex((1 << nl) - 1)}\n s_mov_b32 exec_hi, 0\n{lp}:")
    a(f"buffer_load_dword {vt}, {vaddr}, {WS}, {soff} offen sc1\n s_waitcnt vmcnt(0)\n v_cmp_gt_u32 vcc, {need}, {vt}\n s_cbranch_vccz {ok}")
    spin_tail(a, lp, sleep)
    a(f"{ok}:\n s_mov_b64 exec, -1")

def flag_store(a, soff, sval, vt):
    a(f"v_mov_b32 {vt}, {sval}\n s_mov_b64 exec, 1\n buffer_store_dword {vt}, off, {WS}, {soff} sc1\n s_mov_b64 exec, -1")

TL = PROF + 0x10000
def tl(a, opt, k, vt="v24", chain=False):
    if opt.get("hd"):
        if k == 1: return
        sk = a.label("HD")
        slot = {0: 2, 2: 3, 3: 5, 4: 7}[k] + (1 if (chain and k in (2, 3)) else 0)
        cond = "s_and_b32 s100, s2, 63\n s_or_b32 s100, s100, s3\n s_cmp_lg_u32 s100, 0" if k == 0 else "s_cmp_lg_u32 s3, 0"
        if k == 2 and not chain: return
        a(f"{cond}\n s_cbranch_scc1 {sk}\n s_memrealtime s[100:101]\n s_waitcnt lgkmcnt(0)\n v_mov_b32 {vt}, s100")
        a(f"s_mov_b64 exec, 1\n buffer_atomic_umax {vt}, off, {DBG}, 0 offset:{4*slot}\n s_mov_b64 exec, -1\n{sk}:")
        return
    if not opt.get("tl"): return
    sk = a.label("TL")
    a(f"s_cmp_lg_u32 s3, 0\n s_cbranch_scc1 {sk}\n s_memrealtime s[100:101]\n s_waitcnt lgkmcnt(0)\n v_mov_b32 {vt}, s100")
    a(f"s_lshl_b32 s100, s2, 5\n s_add_u32 s100, s100, {TL}\n s_mov_b64 exec, 1\n buffer_store_dword {vt}, off, {WS}, s100 offset:{4*k} sc1")
    if k in (2, 3):
        a(f"s_memtime s[98:99]\n s_waitcnt lgkmcnt(0) vmcnt(0)\n v_mov_b32 {vt}, s98\n buffer_store_dword {vt}, off, {WS}, s100 offset:{4*(k+3)} sc1")
    a(f"s_mov_b64 exec, -1\n{sk}:")

def wp(a, opt, k):
    if opt.get("jit") and k is not None:
        sk = a.label("JW")
        a(f"s_mul_i32 s98, s6, {5 + 2*k}\n s_mul_i32 s99, s2, {11 + 4*k}\n s_add_u32 s98, s98, s99\n s_mul_i32 s99, s3, {23 + opt['jit']}\n s_xor_b32 s98, s98, s99")
        a(f"s_and_b32 s98, s98, 7\n s_cmp_lg_u32 s98, {k % 8}\n s_cbranch_scc1 {sk}\n s_sleep {(20, 60, 120)[(k + opt['jit']) % 3]}\n{sk}:")
    if not opt.get("wprof"): return
    a(f"s_memtime s[100:101]\n s_waitcnt lgkmcnt(0)\n s_sub_u32 s99, s100, s98\n s_mov_b32 s98, s100")
    if k is not None: a(f"s_add_u32 s{76+k}, s{76+k}, s99")
def wp_init(a, opt):
    if not opt.get("wprof"): return
    for k in range(8): a(f"s_mov_b32 s{76+k}, 0")
    wp(a, opt, None)
def wp_dump(a, opt):
    if not opt.get("wprof"): return
    a(f"s_lshl_b32 s7, s2, 2\n s_add_u32 s7, s7, s3\n s_lshl_b32 s7, s7, 5\n s_add_u32 s7, s7, {PROF + 0x20000}\n s_mov_b64 exec, 1")
    for k in range(8): a(f"v_mov_b32 v24, s{76+k}\n buffer_store_dword v24, off, {WS}, s7 offset:{4*k} sc1")
    a("s_mov_b64 exec, -1")

def init_arrive(a, vt):
    sk = a.label("IA")
    a(f"s_barrier\n s_cmp_lg_u32 s3, 0\n s_cbranch_scc1 {sk}")
    a(f"v_mov_b32 {vt}, 1\n s_mov_b64 exec, 1\n buffer_atomic_add {vt}, off, {DBG}, 0 offset:{D_INIT}\n s_mov_b64 exec, -1\n{sk}:")
    a.vm_n -= 1

def load_stream(a, jobs, tmp=32, depth=12, out=128, fl='', ahead=0):
    units = [(job, u) for job in jobs for u in range(16)]
    n = len(units); tok = {}
    def touch(k):
        if ahead and k < n and k % 4 == 0 and units[k][0].get('touch'): units[k][0]['touch'](units[k][1] // 4)
    def issue(k):
        touch(k + ahead)
        job, u = units[k]
        a(f"s_mov_b32 s7, {job['row'](u) * job['stride']}")
        r = tmp + 8 * (k % depth)
        a(f"buffer_load_dwordx4 {vr(r)}, {job['v0']}, {job['srd']}, s7 offen {fl}")
        if job['stride'] < 4096:
            tok[k] = a.vm(f"buffer_load_dwordx4 {vr(r+4)}, {job['v0']}, {job['srd']}, s7 offen offset:{job['stride']} {fl}")
        else:
            tok[k] = a.vm(f"buffer_load_dwordx4 {vr(r+4)}, {job['v1']}, {job['srd']}, s7 offen {fl}")
    for k in range(ahead): touch(k)
    for k in range(min(depth, n)): issue(k)
    for k in range(n):
        job, u = units[k]
        a.wait_vm(tok[k])
        r = tmp + 8 * (k % depth)
        for c in range(8):
            d = job['dst'](u, c) if (job['kind'] == 'reg' or c in job.get('regc', ())) else out + 4*c + u % 4
            a(f"v_perm_b32 v{d}, v{r+4+c//2}, v{r+c//2}, s{40 + c % 2}")
        if k + depth < n: issue(k + depth)
        if job.get('group'):
            if u % 4 == 3: job['group'](u // 4)
        elif job['kind'] == 'lds' and u % 4 == 3:
            for c in range(8):
                if c not in job.get('regc', ()): a(f"ds_write_b128 {job['vdst']}, {vr(out + 4*c)} offset:{job['imm'](u // 4, c)}")
        if u == 0 and job.get('first'): job['first']()
        if u == 15 and job.get('done'): job['done']()

def lds_to_regs(a, vsrc, dst, first=0):
    def done():
        a("s_waitcnt lgkmcnt(0)\n s_barrier")
        for f in range(first, 32): a(f"ds_read_b128 {dst(f)}, {vsrc} offset:{f*1024}")
        a("s_waitcnt lgkmcnt(0)\n s_barrier")
    return done

def w1_setup(a, stride, scol):
    a(f"""
    s_mov_b32 s90, {8*stride}
    v_mul_lo_u32 v24, v1, s90
    v_lshl_add_u32 v24, v2, 4, v24
    s_mul_i32 s7, s3, {128*stride}
    s_add_u32 s7, s7, {scol}
    v_add_u32 v24, s7, v24
    v_add_u32 v25, {stride}, v24
    v_lshrrev_b32 v26, 2, v2
    s_mov_b32 s90, {WSTR}
    v_mul_lo_u32 v26, v26, s90
    v_lshl_add_u32 v26, v1, 8, v26
    v_and_b32 v27, 3, v2
    v_lshl_add_u32 v26, v27, 6, v26
    s_lshl_b32 s7, s3, 13
    v_add_u32 v26, s7, v26
    s_mul_i32 s7, s3, {WSTR}
    v_add_u32 v27, s7, v0
    """)

def w1_job(a, srdn, stride, dst):
    return dict(kind='lds', srd=srdn, stride=stride, v0="v24", v1="v25", row=lambda u: 32*(u//4) + 2*(u%4), vdst="v26",
                imm=lambda grp, c: (grp*2 + c % 2)*1024 + (c//2)*16, done=lds_to_regs(a, "v27", dst))

def w2_job(a, srdn, sbase, row0=0, done=None):
    a(f"v_lshlrev_b32 v28, 13, v1\n v_lshl_add_u32 v28, v2, 4, v28\n s_lshl_b32 s7, s3, 8\n s_add_u32 s7, s7, {sbase}\n v_add_u32 v28, s7, v28")
    return dict(kind='reg', srd=srdn, stride=1024, v0="v28", row=lambda u: row0 + 32*(u//4) + 2*(u%4), done=done,
                dst=lambda u, T: 128 + (T*4 + u//4)*4 + u % 4)

def prologue(a, opt):
    a.note("""One persistent workgroup per CU. Roles are handed out by (die, arrival rank): die 0 runs the 64-step recurrence,
the other dies run producer/consumer stages around it; surplus workgroups fill places other dies left empty.""")
    a(f"""
    s_cmp_ge_u32 s2, 256
    s_cbranch_scc1 L_end
    s_load_dwordx16 s[60:75], s[0:1], 0
    s_load_dwordx8 s[76:83], s[0:1], 64
    s_load_dwordx4 s[84:87], s[0:1], 96
    s_load_dwordx2 s[88:89], s[0:1], 112
    v_lshrrev_b32 v1, 6, v0
    v_and_b32 v0, 63, v0
    v_readfirstlane_b32 s3, v1
    s_mov_b32 s40, 0x05040100
    s_mov_b32 s41, 0x07060302
    s_mov_b32 s42, {CSC}
    s_getreg_b32 s4, hwreg(HW_REG_XCC_ID)
    s_and_b32 s4, s4, 7
    """)
    if opt.get("force_slow"):
        a("s_lshr_b32 s7, s2, 6\n s_add_u32 s7, s7, 1\n s_cmp_lt_u32 s2, 20\n s_cselect_b32 s4, 0, s7")
    a("s_waitcnt lgkmcnt(0)")
    srd(a, 8, P_X, 0x200000); srd(a, 12, P_WS, 0x10000000); srd(a, 16, P_DBG, 256)
    a(f"""
    v_mov_b32 v3, {L_ROLE}
    """)
    tl(a, opt, 0)
    a(f"""
    s_cmp_lg_u32 s3, 0
    s_cbranch_scc1 L_role_wait
    v_lshlrev_b32 v4, 2, v0
    v_add_u32 v4, {D_WK}, v4
    v_cmp_eq_u32 vcc, 0, v0
    v_cndmask_b32 v4, v4, v0, vcc
    s_mov_b64 exec, 1
    s_lshl_b32 s7, s4, 2
    s_add_u32 s7, s7, {D_WK}
    s_cmp_eq_u32 s4, 0
    s_cselect_b32 s7, {D_CH}, s7
    v_mov_b32 v2, 1
    buffer_atomic_add v2, off, {DBG}, s7 sc0
    s_waitcnt vmcnt(0)
    v_readfirstlane_b32 s5, v2
    s_nop 3
    s_cmp_lt_u32 s5, 32
    s_cbranch_scc1 L_role_slot
    ; more than 32 workgroups on this die: take one of the places another die left empty
    v_mov_b32 v2, 1
    buffer_atomic_add v2, off, {DBG}, 0 offset:{D_WK} sc0
    s_waitcnt vmcnt(0)
    v_readfirstlane_b32 s6, v2
    s_mov_b64 exec, 0xff
    s_mov_b32 s96, 0
    L_role_census:
    buffer_load_dword v2, v4, {DBG}, 0 offen sc1
    s_waitcnt vmcnt(0)
    """)
    for x in range(8): a(f"v_readlane_b32 s{44+x}, v2, {x}")
    a("s_nop 3\n s_mov_b32 s7, 0")
    for x in range(8): a(f"s_add_u32 s7, s7, s{44+x}")
    a("s_cmp_ge_u32 s7, 256\n s_cbranch_scc1 L_role_pick")
    spin_tail(a, "L_role_census", 4)
    a("L_role_pick:\n s_mov_b64 exec, 1")
    for x in range(8):
        a(f"s_min_u32 s7, s{44+x}, 32\n s_mov_b32 s4, {x}\n s_add_u32 s5, s7, s6\n s_cmp_lt_u32 s5, 32\n s_cbranch_scc1 L_role_slot\n s_sub_u32 s6, s5, 32")
    a(f"""
    s_mov_b32 s5, 255
    s_branch L_role_have
    L_role_slot:
    s_mul_i32 s7, s5, 7
    s_add_u32 s7, s7, s4
    s_add_u32 s7, s7, 31
    s_cmp_eq_u32 s4, 0
    s_cselect_b32 s5, s5, s7
    L_role_have:
    v_mov_b32 v2, s5
    ds_write_b32 v3, v2
    s_waitcnt lgkmcnt(0)
    s_mov_b64 exec, -1
    L_role_wait:
    """)
    if opt.get("pt", 1):
        srd(a, 24, P_WK, 0x400000)
        a(f"""
        s_cmp_eq_u32 s3, 0
        s_cbranch_scc1 L_pt_done
        s_cmp_lg_u32 s4, 0
        s_cbranch_scc1 L_pt_done
        s_lshr_b32 s7, s2, 3
        s_and_b32 s43, s7, 7
        s_lshl_b32 s43, s43, 16
        s_lshr_b32 s7, s7, 3
        s_lshl_b32 s7, s7, 20
        s_add_u32 s7, s7, s43
        s_sub_u32 s43, s3, 1
        s_mul_i32 s43, s43, {0x80000 if opt.get("pt", 1) == 2 else 0x4000}
        s_add_u32 s7, s7, s43
        v_lshlrev_b32 v4, 7, v0
        s_nop 15
        """)
        for k in range(4 if opt.get("pt", 1) == 2 else 2): a(f"buffer_load_dword v{100+k}, v4, {W1}, s7 offen\n s_add_u32 s7, s7, 8192")
        a("L_pt_done:")
    if opt.get("w0", 0):
        order = [(P_WK, P_WO), (P_WQ,), (P_WV,)]
        a(f"""
        s_cmp_eq_u32 s3, 0
        s_cbranch_scc1 L_w0_done
        s_cmp_eq_u32 s4, 0
        s_cbranch_scc1 L_w0_done
        s_lshr_b32 s7, s2, 3
        s_mul_i32 s7, s7, 7
        s_add_u32 s7, s7, s4
        s_sub_u32 s7, s7, 1
        s_mul_i32 s7, s7, {147*128}
        s_add_u32 s43, s7, 8192
        s_add_u32 s44, s7, 16384
        v_lshlrev_b32 v4, 7, v0
        s_nop 15
        """)
        for w, ps in enumerate(order):
            nx = a.label("W0")
            a(f"s_cmp_lg_u32 s3, {w+1}\n s_cbranch_scc1 {nx}")
            for n, p in enumerate(ps):
                srd(a, 24, p, 0x400000)
                a(f"buffer_load_dword v{100+3*n}, v4, {W1}, s7 offen\n buffer_load_dword v{101+3*n}, v4, {W1}, s43 offen")
                a(f"s_mov_b64 exec, 0x7ffff\n buffer_load_dword v{102+3*n}, v4, {W1}, s44 offen\n s_mov_b64 exec, -1")
            a(f"{nx}:")
        a("L_w0_done:")
    if opt.get("cw", 0):
        a(f"""
        s_cmp_lg_u32 s3, 1
        s_cbranch_scc1 L_code_done
        s_getpc_b64 s[44:45]
        L_code_base:
        s_mov_b32 s46, L_code_end-L_code_base
        s_mov_b32 s47, 0x20000
        v_lshlrev_b32 v4, 7, v0
        s_mov_b32 s7, 0
        s_nop 15
        s_nop 15
        """)
        for k in range(7): a(f"buffer_load_dword v{100+k}, v4, s[44:47], s7 offen\n s_add_u32 s7, s7, 8192")
        a("L_code_done:")
    a(f"""
    s_barrier
    ds_read_b32 v2, v3
    s_waitcnt lgkmcnt(0)
    v_readfirstlane_b32 s4, v2
    v_lshrrev_b32 v1, 4, v0
    v_and_b32 v2, 15, v0
    s_nop 2
    s_and_b32 s4, s4, 255
    """)
    tl(a, opt, 1)
    if opt.get("tl"):
        a(f"v_mov_b32 v24, s4\n s_lshl_b32 s100, s2, 5\n s_add_u32 s100, s100, {TL}\n buffer_store_dword v24, off, {WS}, s100 offset:28 sc1")
    a(f"""
    s_cmp_lt_u32 s4, 32
    s_cbranch_scc1 L_chain
    s_cmp_lt_u32 s4, 96
    s_cbranch_scc1 L_B
    """)
    if not opt.get("nocfr"): a("""
    s_cmp_lt_u32 s4, 160
    s_cbranch_scc1 L_C
    s_cmp_lt_u32 s4, 188
    s_cbranch_scc1 L_F
    s_cmp_lt_u32 s4, 252
    s_cbranch_scc1 L_R
    """)
    init_arrive(a, "v3")
    a("s_cmp_lg_u32 s4, 252\n s_cbranch_scc1 L_end\n s_cmp_lg_u32 s3, 0\n s_cbranch_scc1 L_end")
    wait_scalar(a, DBG, D_INIT, 256, "s7", "v3", 12)
    a(f"""
    v_mov_b32 v3, 1
    s_mov_b64 exec, 1
    buffer_store_dword v3, off, {DBG}, 0 offset:{D_GO} sc1
    s_waitcnt vmcnt(0)
    s_endpgm
    L_bail:
    s_mov_b64 exec, 1
    v_mov_b32 v0, s4
    v_add_u32 v0, 0x100, v0
    buffer_store_dword v0, off, {DBG}, 0 offset:{D_ERR}
    s_waitcnt vmcnt(0)
    L_end:
    s_endpgm
    """)

def x_dma(a, sseg, sbuf):
    a(f"s_lshl_b32 s90, {sseg}, 15\n s_lshl_b32 s91, s3, 13\n s_add_u32 s90, s90, s91")
    a(f"s_mul_i32 s91, s3, {8*XROW}\n s_add_u32 s91, s91, {sbuf}")
    for r in range(8):
        a(f"s_add_u32 m0, s91, {r*XROW}")
        a(f"s_nop 0\n buffer_load_dwordx4 v0, {X}, s90 offen lds")
        if r < 7: a("s_add_u32 s90, s90, 1024")

def gemm1(a, vx, mats, fr, mid=None):
    tok = {}
    def rd(t):
        for rt in range(2):
            tok[t] = a.ds(f"ds_read_b128 {vr(fr + 8*(t%3) + 4*rt)}, {vx} offset:{rt*16*XROW + t*64}")
    rd(0); rd(1)
    for t in range(16):
        if t + 2 < 16: rd(t + 2)
        a.wait_ds(tok[t])
        for wreg, acc, wA in mats:
            for T in range(2):
                for rt in range(2):
                    xf = vr(fr + 8*(t%3) + 4*rt); d = vr(acc(T, rt)); c = d if t else "0"
                    A, B = (wreg(t, T), xf) if wA else (xf, wreg(t, T))
                    a(f"v_mfma_f32_16x16x32_bf16 {d}, {A}, {B}, {c}")
        if mid and t == mid[0]: mid[1]()

ST2 = 'sc1'
def stage2(a, vrd, vst, sdst, oa, acc, tmp, nt=4, hook=None):
    tok = {}
    for rt in range(2):
        for t in range(nt):
            tok[(rt, t)] = a.ds(f"ds_read_b128 {oa(rt*nt+t)}, {vrd} offset:{(rt*nt+t)*1024}")
    def cv(rt, i, p):
        a(f"v_cvt_pk_bf16_f32 v{tmp + 4*(i%2) + p}, v{acc + (rt*8+2*p)*4 + i}, v{acc + (rt*8+2*p+1)*4 + i}")
    def st(rt, i):
        a(f"buffer_store_dwordx4 {vr(tmp + 4*(i%2))}, {vst}, {WS}, {'s7' if rt else sdst} offen offset:{i*1024} {ST2}")
    a(f"s_add_u32 s7, {sdst}, 16384")
    for rt in range(2):
        for t in range(nt):
            a.wait_ds(tok[(rt, t)])
            for T in range(8):
                d = vr(acc + (rt*8+T)*4)
                a(f"v_mfma_f32_16x16x32_bf16 {d}, {oa(rt*nt+t)}, {(vr, ar)[t//4](128 + (T*4 + t % 4)*4)}, {d if t else '0'}")
                if rt == 1 and t < 4 and 2 <= T < 6: cv(0, t, T - 2)
                if rt == 1 and t < 4 and T == 6: st(0, t)
            if hook and (rt, t) == hook[0]: hook[1]()
    for i in range(4):
        for p in range(4): cv(1, i, p)
        st(1, i)

def worker_top(a, name, nst):
    a("s_waitcnt vmcnt(0)")
    a(f"{name}_loop:\n s_waitcnt vmcnt({nst})\n s_barrier")
    a(f"s_lshl_b32 s43, s6, 1\n s_add_u32 s43, s43, s5")
    a(f"s_add_u32 s44, s43, 2\n s_min_u32 s44, s44, 63\n s_sub_u32 s45, {XBUF}, s46")
    x_dma(a, "s44", "s45")
    a(f"v_add_u32 v4, s46, v3")

def worker_bot(a, name):
    a(f"s_sub_u32 s46, {XBUF}, s46\n s_add_u32 s6, s6, 1\n s_cmp_lt_u32 s6, 32")
    a.fence()
    a(f"s_cbranch_scc1 {name}_loop")

def worker_init(a, first, per):
    a(f"s_sub_u32 s4, s4, {first}\n s_cmp_ge_u32 s4, {per}\n s_cselect_b32 s5, 1, 0\n s_cselect_b32 s7, {per}, 0\n s_sub_u32 s4, s4, s7")
    a("s_mov_b32 s6, 0\n s_mov_b32 s46, 0")
    a(f"s_mov_b32 s7, {XROW}\n v_mul_lo_u32 v3, v2, s7\n v_lshl_add_u32 v3, v1, 4, v3\n v_lshlrev_b32 v0, 4, v0")

def wave_flag(a, base):
    a(f"s_lshl_b32 s47, s5, 2\n s_add_u32 s47, s47, s3\n s_lshl_b32 s47, s47, 11\n s_lshl_b32 s7, s4, 7\n s_add_u32 s47, s47, s7\n s_add_u32 s47, s47, {base}")
    flag_store(a, "s47", "0", "v24")

def worker_end(a, opt):
    wp_dump(a, opt)
    tl(a, opt, 3)
    a("s_waitcnt vmcnt(0)\n s_endpgm")

def role_B(a, opt):
    a.note('B: q,k,v of the x rows for one head, every second segment (weights resident)')
    a("L_B:")
    worker_init(a, 32, 32)
    a(f"s_lshl_b32 s47, s4, 7\n s_lshl_b32 s7, s5, 2\n s_add_u32 s47, s47, s7\n s_add_u32 s47, s47, {FLG_FB}\n v_lshrrev_b32 v5, 1, v0")
    def flags(kv, q):
        a(f"v_mov_b32 v6, {q}\n v_writelane_b32 v6, {kv}, 0\n s_mov_b64 exec, 3\n buffer_store_dword v6, v5, {WS}, s47 offen sc1\n s_mov_b64 exec, -1")
    flags("0", "0")
    srd(a, 24, P_WK, 0x400000); srd(a, 28, P_WV, 0x400000); srd(a, 32, P_WQ, 0x400000)
    a("s_lshl_b32 s48, s4, 8")
    w1_setup(a, 8192, "s48")
    def publish():
        sk = a.label("BF")
        a(f"s_barrier\n s_cmp_lg_u32 s3, 0\n s_cbranch_scc1 {sk}\n s_max_u32 s7, s6, {opt.get('fkv', 0)}")
        flags("s7", "s6")
        a(f"{sk}:")
        a.vm_n -= 1
    mk = lambda acc: (lambda t, T: ar((t*2+T)*4), lambda T, rt: acc + (T*2+rt)*4, True)
    mv = lambda acc: (lambda t, T: ar(128 + (t*2+T)*4), lambda T, rt: acc + (T*2+rt)*4, False)
    def kv_out(ak, av, r0):
        a(f"s_lshl_b32 s52, s43, 5\n s_add_u32 s52, s52, s4\n s_add_u32 s48, s52, s43\n s_lshl_b32 s48, s48, 14\n s_add_u32 s48, s48, {KXV}")
        a("s_lshl_b32 s7, s3, 10\n s_add_u32 s49, s48, s7\n s_add_u32 s50, s49, 4096")
        a(f"s_lshl_b32 s52, s52, 13\n s_add_u32 s52, s52, s7\n s_add_u32 s52, s52, {QXG}\n s_add_u32 s53, s52, 4096")
        a("s_lshl_b32 s7, s3, 11\n s_add_u32 s51, s48, s7\n s_add_u32 s51, s51, 8192")
        for rt in range(2):
            r = r0 + 4*rt
            for i in range(4): a(f"v_cvt_pk_bf16_f32 v{r+i}, v{ak + rt*4 + i}, v{ak + (2+rt)*4 + i}")
            a(f"buffer_store_dwordx4 {vr(r)}, v0, {WS}, s{49+rt} offen sc1")
        for T in range(2):
            r = r0 + 8 + 4*T; b = av + T*8
            for p in range(4): a(f"v_cvt_pk_bf16_f32 v{r+p}, v{b + 2*p}, v{b + 2*p + 1}")
            a(f"buffer_store_dwordx4 {vr(r)}, v0, {WS}, s51 offen offset:{T*1024} sc1")
    def reread():
        if opt.get("rr"):
            a(f"s_lshl_b32 s7, s3, 12\n s_add_u32 s7, s7, s48\n v_lshlrev_b32 v7, 2, v0\n buffer_load_dword v7, v7, {WS}, s7 offen sc1")
    jv = w1_job(a, W2, 8192, lambda f: ar(128 + 4*f))
    vdone = jv['done']
    def first_kv():
        vdone()
        x_dma(a, "s5", "s46")
        a("s_mov_b32 s43, s5\n s_waitcnt vmcnt(0)\n s_barrier")
        gemm1(a, "v3", [mk(192), mv(208)], 160)
        kv_out(192, 208, 224)
        a("s_waitcnt vmcnt(0)")
        publish()
    if opt.get("fkv", 0): jv['done'] = first_kv
    jk = w1_job(a, W1, 8192, lambda f: ar(4*f))
    jk['first'] = lambda: init_arrive(a, "v28")
    jq = w1_job(a, W3, 8192, lambda f: vr(128 + 4*f))
    if opt.get("bo", 1): load_stream(a, [jk, jq, jv], tmp=64, depth=8, out=32)
    else: load_stream(a, [jk, jv, jq])
    x_dma(a, "s5", "s46")
    tl(a, opt, 2)
    wp_init(a, opt)
    worker_top(a, "B", 6)
    wp(a, opt, 0)
    gemm1(a, "v4", [mk(64), mv(80), (lambda t, T: vr(128 + (t*2+T)*4), lambda T, rt: 96 + (T*2+rt)*4, True)], 32,
          mid=(4, lambda: (a("s_waitcnt vmcnt(8)"), publish(), reread())))
    wp(a, opt, 1)
    kv_out(64, 80, 112)
    for rt in range(2):
        r = 56 + 4*rt
        for i in range(4): a(f"v_cvt_pk_bf16_f32 v{r+i}, v{96 + rt*4 + i}, v{96 + (2+rt)*4 + i}")
        a(f"buffer_store_dwordx4 {vr(r)}, v0, {WS}, s{52+rt} offen sc1")
    wp(a, opt, 7)
    if opt.get("p1", 1):
        a(f"s_cmp_ge_u32 s6, {opt.get('p1', 2)}\n s_cbranch_scc1 B_later\n s_add_u32 s6, s6, 1\n s_waitcnt vmcnt(0)")
        publish()
        a("s_sub_u32 s6, s6, 1\nB_later:")
    worker_bot(a, "B")
    a("s_waitcnt vmcnt(0)")
    publish()
    worker_end(a, opt)

def st2_addrs(a):
    a(f"v_add_u32 v6, {L_OX}, v0")
    a(f"v_lshlrev_b32 v7, 12, v1\n v_lshl_add_u32 v7, v2, 4, v7\n s_lshl_b32 s7, s3, 8\n v_add_u32 v7, s7, v7")

def role_F(a, opt):
    a.note('F: 128 hidden columns of the gated FFN, every second segment -> partial output')
    a("L_F:")
    if opt.get("noF"):
        init_arrive(a, "v24"); tl(a, opt, 3); a("s_waitcnt vmcnt(0)\n s_endpgm")
    worker_init(a, 160, 14)
    wave_flag(a, FLG_FF)
    a("s_waitcnt vmcnt(0)")
    init_arrive(a, "v24")
    if opt.get("hold", 3) & 1:
        wait_go(a, "v24", opt.get("si", 64))
        a(f"s_lshl_b32 s48, s4, 7\n s_add_u32 s48, s48, {FLG_FB + opt.get('hf', 8)}")
        if not opt.get("hi", 1) & 1: wait_scalar(a, WS, "s48", 1, "s7", "v24", 16)
    srd(a, 24, P_WG, 512*3584); srd(a, 28, P_WU, 512*3584); srd(a, 32, P_WD, 1792*1024)
    a("s_lshl_b32 s48, s4, 8")
    w1_setup(a, 3584, "s48")
    a("s_lshl_b32 s48, s4, 17")
    load_stream(a, [w1_job(a, W1, 3584, lambda f: ar(4*f)), w1_job(a, W2, 3584, lambda f: ar(128 + 4*f)), w2_job(a, W3, "s48")])
    x_dma(a, "s5", "s46")
    st2_addrs(a)
    a("s_lshl_b32 s7, s3, 10\n v_add_u32 v5, s7, v6")
    tl(a, opt, 2)
    wp_init(a, opt)
    worker_top(a, "F", 8)
    wp(a, opt, 0)
    gemm1(a, "v4", [(lambda t, T: ar((t*2+T)*4), lambda T, rt: 64 + (T*2+rt)*4, True),
                    (lambda t, T: ar(128 + (t*2+T)*4), lambda T, rt: 80 + (T*2+rt)*4, True)], 32,
          mid=(9, lambda: (a("s_waitcnt vmcnt(8)"), flag_store(a, "s47", "s6", "v24"))))
    wp(a, opt, 1)
    for r in range(16): a(f"v_max_f32 v{64+r}, 0, v{64+r}")
    for r in range(16): a(f"v_mul_f32 v{64+r}, v{64+r}, v{80+r}")
    for rt in range(2):
        r = 96 + 4*rt
        for i in range(4): a(f"v_cvt_pk_bf16_f32 v{r+i}, v{64 + rt*4 + i}, v{64 + (2+rt)*4 + i}")
        a(f"ds_write_b128 v5, {vr(r)} offset:{rt*4096}")
    a(f"s_lshl_b32 s48, s43, 4\n s_add_u32 s48, s48, s4\n s_lshl_b32 s48, s48, 15\n s_and_b32 s48, s48, {hex((opt.get('fring', 64) << 19) - 1)}\n s_add_u32 s48, s48, {FP}")
    a("s_waitcnt lgkmcnt(0)\n s_barrier")
    stage2(a, "v6", "v7", "s48", lambda f: vr(32 + 4*f), 64, 24)
    wp(a, opt, 7)
    if opt.get("zf"): a(f"s_sleep {opt['zf']}")
    worker_bot(a, "F")
    a("s_waitcnt vmcnt(0)")
    flag_store(a, "s47", "s6", "v24")
    worker_end(a, opt)

def softmax(a, X0, X1, M, t, pX, pM):
    a(f"""
    v_max3_f32 v{t}, v{X0}, v{X0+1}, v{X0+2}
    v_max3_f32 v{t+1}, v{X0+3}, v{X1}, v{X1+1}
    v_max3_f32 v{t}, v{t}, v{X1+2}, v{X1+3}
    v_max3_f32 v{t+1}, v{t+1}, v{M}, v{M+1}
    v_max_f32 v{t}, v{t}, v{t+1}
    v_max_f32 v{t+1}, v{t}, v{t+1}
    v_permlane16_swap_b32 v{t}, v{t+1}
    v_max_f32 v{t+2}, v{t}, v{t+1}
    v_max_f32 v{t+3}, v{t}, v{t+1}
    v_permlane32_swap_b32 v{t+2}, v{t+3}
    v_max_f32 v{t}, v{t+2}, v{t+3}
    v_mul_f32 v{t}, s42, v{t}
    """)
    regs = [X0, X0+1, X0+2, X0+3, X1, X1+1, X1+2, X1+3, M, M+1]
    for r in regs: a(f"v_fma_f32 v{r}, v{r}, s42, -v{t}")
    for k, r in enumerate(regs):
        a(f"v_exp_f32 v{r}, v{r}")
        if k >= 2 and k % 2 == 0: a(f"v_cvt_pk_bf16_f32 v{pX + k//2 - 1}, v{regs[k-2]}, v{regs[k-1]}")
    a(f"v_cvt_pk_bf16_f32 v{pM}, v{M}, v{M+1}\n v_cvt_pk_bf16_f32 v{pM+3}, v{M}, v{M+1}")

def role_C(a, opt):
    C_OX, C_KV = 49152, 65536
    a("L_C:")
    if opt.get("noC"):
        init_arrive(a, "v24"); tl(a, opt, 3); a("s_waitcnt vmcnt(0)\n s_endpgm")
    a("s_sub_u32 s4, s4, 96\n s_lshr_b32 s5, s4, 4\n s_and_b32 s4, s4, 15\n s_mov_b32 s6, 0\n v_lshlrev_b32 v0, 4, v0")
    wave_flag(a, FLG_FC)
    a(f"""
    s_lshr_b32 s52, s3, 1
    s_and_b32 s53, s3, 1
    s_lshl_b32 s58, s4, 1
    s_add_u32 s58, s58, s52
    s_lshl_b32 s55, s5, 5
    s_add_u32 s55, s55, s58
    s_lshl_b32 s55, s55, 12
    s_lshl_b32 s7, s53, 11
    s_add_u32 s55, s55, s7
    s_add_u32 s55, s55, {KVM}
    v_mov_b64 v[24:25], -1
    v_mov_b64 v[26:27], -1
    s_add_u32 s7, s55, {15*0x80000}
    buffer_store_dwordx4 v[24:27], v0, {WS}, s7 offen sc1
    buffer_store_dwordx4 v[24:27], v0, {WS}, s7 offen offset:1024 sc1
    s_lshl_b32 s50, s58, 9
    s_add_u32 s50, s50, {FLG_FH}
    v_lshlrev_b32 v9, 3, v0
    """)
    a("s_waitcnt vmcnt(0)")
    init_arrive(a, "v24")
    if opt.get("hold", 3) & 2:
        wait_go(a, "v24", opt.get("si", 64))
        a(f"s_lshl_b32 s48, s58, 7\n s_add_u32 s48, s48, {FLG_FB + opt.get('hc', 0)}")
        if not opt.get("hi", 1) & 2: wait_scalar(a, WS, "s48", 1, "s7", "v24", 16)
    srd(a, 28, P_WO, 0x400000)
    a("s_lshl_b32 s48, s4, 18")
    load_stream(a, [w2_job(a, W2, "s48", 128, lambda: [a(f"v_accvgpr_write_b32 a{r}, v{r}") for r in range(128, 256)]), w2_job(a, W2, "s48")])
    st2_addrs(a)
    a(f"""
    v_add_u32 v6, {C_OX}, v0
    s_mul_i32 s59, s52, 24576
    v_add_u32 v3, s59, v0
    s_lshl_b32 s7, s53, 12
    s_add_u32 s7, s7, 16384
    v_add_u32 v4, s7, v3
    s_lshl_b32 s7, s3, 11
    s_add_u32 s7, s7, {C_KV}
    v_add_u32 v8, s7, v0
    s_lshl_b32 s7, s52, 12
    s_add_u32 s90, s7, {C_KV + 2048}
    v_add_u32 v11, s90, v0
    v_lshrrev_b32 v24, 2, v2
    v_and_b32 v25, 1, v2
    v_lshl_add_u32 v10, v24, 1, v25
    v_lshlrev_b32 v10, 4, v10
    v_lshl_add_u32 v10, v1, 7, v10
    s_add_u32 s90, s7, {C_KV}
    v_add_u32 v10, s90, v10
    s_lshl_b32 s90, s53, 13
    s_add_u32 s90, s90, s7
    v_add_u32 v12, s90, v6
    s_lshl_b32 s7, s53, 4
    v_add_u32 v14, s7, v2
    v_lshlrev_b32 v15, 2, v1
    v_sub_u32 v14, v14, v15
    """)
    for k in range(8):
        a(f"v_cmp_le_i32 s[{60+2*k}:{61+2*k}], {k if k < 4 else 12 + k}, v14")
    a("v_mov_b32 v14, 0xf149f2ca")
    for r in range(16, 20): a(f"v_mov_b32 v{r}, 0x3f803f80")
    a("v_mov_b32 v21, 0\n v_mov_b32 v22, 0")
    a(f"s_lshl_b32 s54, s58, 7\n s_and_b32 s7, s5, 1\n s_lshl_b32 s7, s7, 2\n s_add_u32 s54, s54, s7\n s_add_u32 s54, s54, {FLG_FB + 8}\n s_mov_b32 s56, 0")
    wait_go(a, "v24", opt.get("si", 64))
    QB, KX, VX = 0, 16, 48
    def fetch(sidx):
        ok = a.label("CB")
        a(f"s_lshl_b32 s49, {sidx}, 2\n s_add_u32 s49, s49, s5\n s_lshr_b32 s57, s49, 1\n s_cmp_gt_u32 s56, s57\n s_cbranch_scc1 {ok}\n s_add_u32 s57, s57, 1")
        wait_scalar(a, WS, "s54", "s57", "s56", "v13", 4)
        a(f"{ok}:")
        a(f"s_lshl_b32 s49, s49, 5\n s_add_u32 s49, s49, s58")
        a(f"s_lshl_b32 s57, s49, 13\n s_lshl_b32 s7, s53, 12\n s_add_u32 s57, s57, s7\n s_add_u32 s57, s57, {QXG}\n s_add_u32 s7, s7, s59\n s_add_u32 m0, s7, 16384")
        a(f"s_lshr_b32 s7, s49, 5\n s_add_u32 s49, s49, s7\n s_lshl_b32 s49, s49, 14\n s_add_u32 s49, s49, {KXV}\n s_lshl_b32 s7, s53, 13\n s_add_u32 s49, s49, s7\n s_add_u32 s7, s7, s59")
        for f in range(4): a(f"buffer_load_dwordx4 v0, {WS}, s57 offen offset:{f*1024} sc1 lds")
        for hf in range(2):
            a(f"s_add_u32 m0, s7, {hf*4096}")
            if hf: a("s_add_u32 s49, s49, 4096")
            for f in range(4): a(f"buffer_load_dwordx4 v0, {WS}, s49 offen offset:{f*1024} sc1 lds")
    fetch("s6")
    tl(a, opt, 2)
    wp_init(a, opt)
    a("s_waitcnt vmcnt(0)\nC_loop:\n s_barrier")
    wp(a, opt, 0)
    for f in range(4): a(f"ds_read_b128 {ar(QB + 4*f)}, v4 offset:{f*1024}")
    for f in range(16): a(f"ds_read_b128 {ar(KX + 4*f)}, v3 offset:{f*1024}")
    a("s_waitcnt lgkmcnt(0)")
    KM, VM, X0, X1, M = 88, 104, 116, 120, 124
    for rt in range(2):
        d = vr(X0 + 4*rt)
        for t in range(4): a(f"v_mfma_f32_16x16x32_bf16 {d}, {ar(KX + (rt*4+t)*4)}, {ar(QB + 4*t)}, {d if t else '0'}")
    for k in range(8): a(f"v_cndmask_b32 v{X0+k}, v14, v{X0+k}, s[{60+2*k}:{61+2*k}]")
    wp(a, opt, 1)
    a("s_cmp_eq_u32 s6, 15\n s_cbranch_scc1 C_direct\n s_lshl_b32 s57, s6, 2\n s_add_u32 s57, s57, s5\n s_add_u32 s57, s57, 1")
    wait_lanes(a, "v9", "s50", 2, "s57", "v24", opt.get("slh", 4))
    a(f"""
    C_direct:
    s_mov_b32 s96, 0
    C_poll:
    buffer_load_dwordx4 v[24:27], v0, {WS}, s55 offen sc1
    buffer_load_dwordx4 v[28:31], v0, {WS}, s55 offen offset:1024 sc1
    s_waitcnt vmcnt(0)
    v_max3_u32 v32, v24, v25, v26
    v_max3_u32 v33, v27, v28, v29
    v_max3_u32 v32, v32, v30, v31
    v_max_u32 v32, v32, v33
    v_cmp_eq_u32 vcc, -1, v32
    s_cbranch_vccz C_have
    """)
    spin_tail(a, "C_poll", opt.get("slc", 1))
    a("C_have:")
    wp(a, opt, 3)
    a("ds_write_b128 v8, v[24:27]\n ds_write_b128 v8, v[28:31] offset:1024\n s_add_u32 s55, s55, 0x80000\n s_waitcnt lgkmcnt(0)\n s_barrier")
    tk = [a.ds(f"ds_read_b128 {vr(KM + 4*t)}, v10 offset:{t*512}") for t in range(4)]
    for f in range(2): a(f"ds_read_b128 {vr(VM + 4*f)}, v11 offset:{f*1024}")
    for t in range(4):
        a.wait_ds(tk[t])
        a(f"v_mfma_f32_16x16x32_bf16 {vr(M)}, {vr(KM + 4*t)}, {ar(QB + 4*t)}, {vr(M) if t else '0'}")
    wp(a, opt, 4)
    PX, PM, O, Lr = 24, 20, 32, 64
    softmax(a, X0, X1, M, 28, PX, PM)
    a("s_waitcnt lgkmcnt(0)")
    a(f"v_mfma_f32_16x16x32_bf16 {vr(Lr)}, v[16:19], {vr(PX)}, 0")
    for f in range(8): a(f"v_mfma_f32_16x16x32_bf16 {vr(O + 4*f)}, {ar(VX + 4*f)}, {vr(PX)}, 0")
    a(f"v_mfma_f32_16x16x16_bf16 {vr(Lr)}, v[16:17], {vr(PM, 2)}, {vr(Lr)}")
    for f in range(8):
        a(f"v_mfma_f32_16x16x16_bf16 {vr(O + 4*f)}, {vr(VM + 2*(f//2), 2)}, {vr(PM + 2*(f%2), 2)}, {vr(O + 4*f)}")
        if f == 2: a(f"v_rcp_f32 v28, v{Lr}")
        if f >= 3:
            for r in range(2): a(f"v_mul_f32 v{O + 2*(f-3) + r}, v{O + 2*(f-3) + r}, v28")
    for hw in range(4):
        r = 68 + 4*hw
        for q in range(max(10, 8*hw), 8*hw + 8, 2): a(f"v_pk_mul_f32 {vr(O + q, 2)}, {vr(O + q, 2)}, v[28:29] op_sel_hi:[1,0]")
        for i in range(4): a(f"v_cvt_pk_bf16_f32 v{r+i}, v{O + 8*hw + i}, v{O + 8*hw + 4 + i}")
        a(f"ds_write_b128 v12, {vr(r)} offset:{hw*1024}")
    wp(a, opt, 5)
    a("s_cmp_eq_u32 s6, 15\n s_cbranch_scc1 C_nofetch\n s_add_u32 s44, s6, 1")
    fetch("s44")
    a("C_nofetch:")
    a(f"s_lshl_b32 s48, s6, 2\n s_add_u32 s48, s48, s5\n s_lshl_b32 s48, s48, 4\n s_add_u32 s48, s48, s4\n s_lshl_b32 s48, s48, 15\n s_add_u32 s48, s48, {CP}")
    a("s_waitcnt lgkmcnt(0)\n s_barrier")
    wp(a, opt, 6)
    def announce():
        a("s_cmp_lg_u32 s6, 15\n s_cbranch_scc1 C_noann\n s_cmp_lt_u32 s5, 2\n s_cbranch_scc1 C_noann")
        flag_store(a, "s47", "16", "v13")
        a("C_noann:")
    stage2(a, "v6", "v7", "s48", lambda f: ar(4*f), 64, 24, 8, ((1, opt.get("an", 6)), announce) if opt.get("rd", 1) == 2 else None)
    wp(a, opt, 7)
    a("s_add_u32 s6, s6, 1\n s_waitcnt vmcnt(0)")
    flag_store(a, "s47", "s6", "v13")
    wp(a, opt, 2)
    a("s_cmp_lt_u32 s6, 16")
    a.fence()
    a("s_cbranch_scc1 C_loop")
    worker_end(a, opt)

def make_sel(a, b, t):
    a(f"v_and_b32 v{t}, 1, v2\n v_lshlrev_b32 v{t}, 4, v{t}\n v_mov_b32 v{t+1}, 0x3f80\n v_lshlrev_b32 v{t}, v{t}, v{t+1}")
    a(f"v_bfe_u32 v{t+1}, v2, 1, 2")
    for p in range(4):
        a(f"v_cmp_eq_u32 vcc, {p}, v{t+1}\n v_cndmask_b32 v{b+p}, 0, v{t}, vcc")

def role_R(a, opt):
    a.note('R: one row of every second segment: sums the partial outputs, gate, blend, store')
    a("L_R:")
    if opt.get("noR"):
        init_arrive(a, "v24"); a("s_waitcnt vmcnt(0)\n s_endpgm")
    a("s_sub_u32 s4, s4, 188\n s_lshr_b32 s5, s4, 5\n s_and_b32 s4, s4, 31")
    a(f"""
    v_lshlrev_b32 v4, 15, v1
    v_lshl_add_u32 v4, v2, 4, v4
    s_lshl_b32 s7, s4, 10
    s_lshl_b32 s43, s3, 8
    s_add_u32 s7, s7, s43
    v_add_u32 v4, s7, v4
    v_lshlrev_b32 v5, 3, v1
    v_lshl_add_u32 v5, v2, 4, v5
    v_add_u32 v5, s7, v5
    v_mov_b64 v[24:25], -1
    v_mov_b64 v[26:27], -1
    s_lshl_b32 s45, s5, 19
    s_add_u32 s45, s45, {CP + (62 << 19)}
    """)
    for u in range(4): a(f"buffer_store_dwordx4 v[24:27], v4, {WS}, s45 offen sc1\n s_add_u32 s45, s45, 0x20000")
    a("s_waitcnt vmcnt(0)")
    init_arrive(a, "v24")
    if opt.get("warm", 1):
        a("s_lshl_b32 s7, s5, 5\n s_add_u32 s7, s7, s4\n s_lshl_b32 s7, s7, 2\n s_add_u32 s7, s7, s3\n s_lshl_b32 s7, s7, 14\n v_lshlrev_b32 v24, 7, v0")
        for n, p in enumerate([(P_WQ, P_WV, P_WO), (P_WO,), (P_WK, P_WQ, P_WV, P_WO), (P_WQ, P_WO), (P_WV, P_WO)][opt.get("warm", 1) - 1]):
            srd(a, 24, p, 0x400000)
            a(f"buffer_load_dword v{26+2*n}, v24, {W1}, s7 offen\n s_add_u32 s43, s7, 8192\n buffer_load_dword v{27+2*n}, v24, {W1}, s43 offen")
            if opt.get("wseq"): a("s_waitcnt vmcnt(0)")
        a("s_waitcnt vmcnt(0)")
    srd(a, 20, P_OUT, 0x200000); srd(a, 24, P_GW, 1024)
    make_sel(a, 16, 24)
    a(f"""
    v_lshlrev_b32 v3, 7, v0
    v_lshlrev_b32 v0, 4, v0
    buffer_load_dwordx4 v[8:11], v0, {W1}, 0 offen
    s_lshl_b32 s7, s5, 2
    s_add_u32 s7, s7, s3
    s_lshl_b32 s7, s7, 11
    s_add_u32 s54, s7, {FLG_FC}
    s_add_u32 s55, s7, {FLG_FF}
    s_mov_b32 s6, 0
    s_mov_b32 s58, {f32bits(-math.log2(math.e))}
    """)
    for r in range(76, 80): a(f"v_mov_b32 v{r}, 0")
    wait_go(a, "v24", opt.get("si", 64))
    tl(a, opt, 2)
    wp_init(a, opt)
    a(f"""
    R_loop:
    s_lshl_b32 s43, s6, 1
    s_add_u32 s43, s43, s5
    s_add_u32 s57, s6, 1
    s_lshl_b32 s44, s43, 15
    s_lshl_b32 s7, s4, 10
    s_add_u32 s7, s7, s44
    buffer_load_dwordx4 v[12:15], v0, {X}, s7 offen
    """)
    wait_lanes(a, "v3", "s55", 14, "s57", "v24", opt.get("slr", 2))
    wp(a, opt, 0)
    a(f"s_lshl_b32 s45, s43, 19\n s_and_b32 s45, s45, {hex((opt.get('fring', 64) << 19) - 1)}\n s_add_u32 s45, s45, {FP}")
    for u in range(4):
        if u == 3: a("s_mov_b32 exec_hi, 0")
        a(f"buffer_load_dwordx4 {vr(64 + 4*u)}, v4, {WS}, s45 offen {['sc1', 'sc1 nt'][opt.get('rnt', 0)]}")
        if u < 3: a("s_add_u32 s45, s45, 0x20000")
    a("s_mov_b64 exec, -1")
    a("v_mov_b32 v24, 0")
    for p in range(4): a(f"v_dot2c_f32_bf16 v24, v{12+p}, v{8+p}")
    for k in (8, 4, 2, 1): a(f"v_add_f32_dpp v24, v24, v24 row_ror:{k} row_mask:0xf bank_mask:0xf")
    a("""
    v_mov_b32 v25, v24
    v_permlane16_swap_b32 v24, v25
    v_add_f32 v24, v24, v25
    v_mov_b32 v25, v24
    v_permlane32_swap_b32 v24, v25
    v_add_f32 v24, v24, v25
    v_mul_f32 v24, s58, v24
    v_exp_f32 v24, v24
    v_add_f32 v24, 1.0, v24
    v_rcp_f32 v6, v24
    v_sub_f32 v7, 1.0, v6
    s_waitcnt vmcnt(0)
    """)
    for u in range(4): a(f"v_mfma_f32_16x16x32_bf16 v[28:31], v[16:19], {vr(64 + 4*u)}, {'v[28:31]' if u else '0'}")
    for i in range(4): a(f"v_mul_f32 v{28+i}, v{28+i}, v7")
    wp(a, opt, 1)
    rd = opt.get("rd", 1)
    if rd == 1: a("s_cmp_eq_u32 s6, 31\n s_cbranch_scc1 R_direct")
    if rd == 3: a("s_cmp_eq_u32 s6, 31\n s_cbranch_scc1 R_watch")
    a("s_and_b32 s7, s6, 1\n s_lshl_b32 s7, s7, 14\n s_add_u32 s46, s54, s7\n s_lshr_b32 s57, s6, 1\n s_add_u32 s57, s57, 1")
    wait_lanes(a, "v3", "s46", 16, "s57", "v24", opt.get("slr", 2))
    if rd == 3:
        a(f"""
        s_branch R_direct
        R_watch:
        s_lshl_b32 s45, s43, 4
        s_and_b32 s7, s4, 15
        s_add_u32 s45, s45, s7
        s_lshl_b32 s45, s45, 15
        s_add_u32 s45, s45, {CP}
        s_mov_b32 s96, 0
        s_mov_b64 exec, 1
        R_w1:
        buffer_load_dword v24, v4, {WS}, s45 offen sc1
        s_waitcnt vmcnt(0)
        v_cmp_eq_u32 vcc, -1, v24
        s_cbranch_vccz R_w2
        """)
        spin_tail(a, "R_w1", opt.get("slw", 1))
        a("R_w2:\n s_mov_b64 exec, -1")
        if opt.get("rw"): a(f"s_sleep {opt['rw']}")
    a("R_direct:\n s_mov_b32 s96, 0")
    wp(a, opt, 2)
    a(f"R_poll:\n s_lshl_b32 s45, s43, 19\n s_add_u32 s45, s45, {CP}")
    tok = []
    for u in range(4):
        tok.append(a.vm(f"buffer_load_dwordx4 {vr(32 + 4*u)}, v4, {WS}, s45 offen sc1"))
        if u < 3: a("s_add_u32 s45, s45, 0x20000")
    for u in range(4):
        a.wait_vm(tok[u])
        a(f"v_mfma_f32_16x16x32_bf16 v[24:27], v[16:19], {vr(32 + 4*u)}, {'v[24:27]' if u else '0'}")
        a(f"v_max3_u32 v{48+u}, v{32+4*u}, v{33+4*u}, v{34+4*u}\n v_max_u32 v{48+u}, v{48+u}, v{35+4*u}")
    a("v_max3_u32 v48, v48, v49, v50\n v_max_u32 v48, v48, v51\n v_cmp_eq_u32 vcc, -1, v48\n s_cbranch_vccz R_have")
    spin_tail(a, "R_poll", opt.get("sld", 2))
    a("R_have:\n s_nop 3")
    for i in range(4): a(f"v_fma_f32 v{24+i}, v{24+i}, v6, v{28+i}")
    a(f"""
    v_cvt_pk_bf16_f32 v24, v24, v25
    v_cvt_pk_bf16_f32 v25, v26, v27
    s_mov_b32 exec_hi, 0
    buffer_store_dwordx2 v[24:25], v5, {OUT}, s44 offen {['', 'sc1', 'nt', 'sc0 sc1'][opt.get('ost', 1)]}
    s_mov_b64 exec, -1
    """)
    wp(a, opt, 3)
    a("s_add_u32 s6, s6, 1\n s_cmp_lt_u32 s6, 32")
    a.fence()
    a("s_cbranch_scc1 R_loop\n s_waitcnt vmcnt(0)")
    wp_dump(a, opt)
    tl(a, opt, 3)
    a("s_waitcnt vmcnt(0)\n s_endpgm")

TUNED = dict(fq=18, a1=9, nv3=2, p2v=1, p3a=7, p3v=5, p4a=2, p4v=1, p5a=4, p5v=2, p6a=3, p7a=7, p7v=7, p8a=1, p8v=1, v0=7, vs=2)
def build(opt):
    opt = dict(TUNED, **opt)
    global CP, FP, QXG, KVM
    CP, FP, QXG, KVM = opt.get("CP", 0x3200000), opt.get("FP", 0x7000000), opt.get("QXG", 0xA000000), opt.get("KVM", 0x300000)
    from chain import role_chain
    global ST2
    ST2 = ['sc1', 'sc1 nt', ''][opt.get('st2', 0)]
    a = Asm()
    prologue(a, opt)
    if not opt.get("nocfr"): role_R(a, opt)
    role_chain(a, opt)
    role_B(a, opt)
    if not opt.get("nocfr"):
        role_C(a, opt)
        role_F(a, opt)
    a("L_code_end:")
    hdr = open("cdna_kernels/%s.s.ref" % NAME).read().split("; Override")[0] if opt.get("hdr", True) else ""
    k = NAME + "_kernel"
    return f"""{hdr}; @launch grid=(256,1,1) block=(256,1,1) lds={LDS_BYTES}
.amdgcn_target "amdgcn-amd-amdhsa--gfx950"
.text
.globl {k}
.p2align 8
.type {k},@function
{k}:
{a.text()}.section .rodata,"a"
.p2align 6
.amdhsa_kernel {k}
  .amdhsa_next_free_vgpr 512
  .amdhsa_next_free_sgpr 102
  .amdhsa_accum_offset 256
  .amdhsa_group_segment_fixed_size 0
  .amdhsa_kernarg_size 120
  .amdhsa_user_sgpr_count 2
  .amdhsa_user_sgpr_kernarg_segment_ptr 1
  .amdhsa_system_sgpr_workgroup_id_x 1
.end_amdhsa_kernel
"""

if __name__ == "__main__":
    opt = {}
    out = "cdna_kernels/%s.s" % NAME
    for arg in sys.argv[1:]:
        k, _, v = arg.partition("=")
        if k == "out": out = v
        elif k in ("stamps", "drop", "xp"): opt[k] = v.split(",")
        else: opt[k] = int(v, 0) if v else 1
    open(out, "w").write(build(opt))
    print("wrote", out)
```
